```python
import torch

def _softmax(x, axis=-1):
    return torch.softmax(x, dim=axis)

def _gelu(x):
    return torch.nn.functional.gelu(x, approximate='tanh')

def _silu(x):
    return torch.nn.functional.silu(x)

def _sigmoid(x):
    return torch.sigmoid(x)

def _layernorm(x, axis=-1, eps=1e-05):
    m = x.mean(dim=axis, keepdim=True)
    v = x.var(dim=axis, keepdim=True, unbiased=False)
    return (x - m) / torch.sqrt(v + eps)

def _scatter_add(tgt, idx, src, axis=0):
    return tgt.clone().index_add_(axis, idx, src)

def _segment_sum(src, seg, n):
    out = torch.zeros((n,) + src.shape[1:], dtype=src.dtype)
    return out.index_add_(0, seg, src)

def _pad(x, pw):
    flat = tuple((v for pair in reversed(pw) for v in pair))
    return torch.nn.functional.pad(x, flat)
kernel_name = 'parallel_sum__memory_aug_recurrent_mem_tr__dense_activation_squared_relu__prompt'

def setup_inputs():

    _w = lambda a: (lambda t: t.to(torch.bfloat16) if t.is_floating_point() else t)(torch.as_tensor(a))

    def _A_setup():
        B, S, Dm = (1, 2048, 448)
        H, Dh = (16, 256)
        M, seg = (8, 32)
        seg = min(seg, S)
        S = S // seg * seg
        return {'x': _w((lambda *s: torch.randn(*s, dtype=torch.bfloat16) * 0.05)(B, S, Dm)), 'mem0': _w((lambda *s: torch.randn(*s, dtype=torch.bfloat16) * 1.6)(B, M, Dm)), 'Wq': _w((lambda *s: torch.randn(*s, dtype=torch.bfloat16) * 0.8)(Dm, H, Dh) * Dm ** (-0.5)), 'Wk': _w((lambda *s: torch.randn(*s, dtype=torch.bfloat16) * 0.8)(Dm, H, Dh) * Dm ** (-0.5)), 'Wv': _w((lambda *s: torch.randn(*s, dtype=torch.bfloat16) * 1.6)(Dm, H, Dh) * Dm ** (-0.5)), 'Wo': _w((lambda *s: torch.randn(*s, dtype=torch.bfloat16) * 1.6)(H, Dh, Dm) * (H * Dh) ** (-0.5)), 'seg_len': seg}
    _A_in = _A_setup()

    def _B_setup():
        B, S, D, F = (1, 2048, 448, 1792)
        return {'x': _w((lambda *s: torch.randn(*s, dtype=torch.bfloat16) * 0.05)(B, S, D)), 'w1': _w((lambda *s: torch.randn(*s, dtype=torch.bfloat16) * 0.05)(D, F)), 'b1': _w((lambda *s: torch.randn(*s, dtype=torch.bfloat16) * 0.4)(F)), 'w2': _w((lambda *s: torch.randn(*s, dtype=torch.bfloat16) * 0.05)(F, D)), 'b2': _w((lambda *s: torch.randn(*s, dtype=torch.bfloat16) * 0.8)(D))}
    _B_in = _B_setup()
    return {'A_x': _A_in['x'], 'A_mem0': _A_in['mem0'], 'A_Wq': _A_in['Wq'], 'A_Wk': _A_in['Wk'], 'A_Wv': _A_in['Wv'], 'A_Wo': _A_in['Wo'], 'A_seg_len': _A_in['seg_len'], 'B_x': _B_in['x'], 'B_w1': _B_in['w1'], 'B_b1': _B_in['b1'], 'B_w2': _B_in['w2'], 'B_b2': _B_in['b2']}

def reference(A_x, A_mem0, A_Wq, A_Wk, A_Wv, A_Wo, A_seg_len, B_x, B_w1, B_b1, B_w2, B_b2):

    def _A_ref(x, mem0, Wq, Wk, Wv, Wo, seg_len):
        B, S, Dm = x.shape
        H, Dh = (Wq.shape[1], Wq.shape[2])
        M = mem0.shape[1]
        scale = Dh ** (-0.5)
        n_seg = S // seg_len
        L = M + seg_len
        idx = torch.arange(L)
        mask = (idx[:, None] < M) | (idx[:, None] >= idx[None, :])
        mem = mem0
        outs = []
        for s in range(n_seg):
            xs = x[:, s * seg_len:(s + 1) * seg_len, :].clone()
            h = torch.concatenate([mem, xs], axis=1)
            q = torch.einsum('btd,dhe->bhte', h, Wq)
            k = torch.einsum('btd,dhe->bhte', h, Wk)
            v = torch.einsum('btd,dhe->bhte', h, Wv)
            scores = torch.einsum('bhqe,bhke->bhqk', q, k) * scale
            scores = torch.where(mask[None, None], scores, -1000000000.0)
            p = _softmax(scores, axis=-1)
            o = torch.einsum('bhqk,bhke->bhqe', p, v)
            o = torch.einsum('bhte,hed->btd', o, Wo)
            mem = o[:, :M, :].clone()
            outs.append(o[:, M:, :])
        return torch.concatenate(outs, axis=1)

    def _B_ref(x, w1, b1, w2, b2):
        h = torch.einsum('bsd,df->bsf', x, w1) + b1
        zero = torch.zeros_like(h)
        r = torch.where(h > zero, h, zero)
        h = r * r
        out = torch.einsum('bsf,fd->bsd', h, w2) + b2
        return out
    x = A_x
    xn = _layernorm(x, axis=-1)
    return x + _A_ref(xn, A_mem0, A_Wq, A_Wk, A_Wv, A_Wo, A_seg_len) + _B_ref(xn, B_w1, B_b1, B_w2, B_b2)
```

```python
import re

TRANS = ('v_exp_f32', 'v_log_f32', 'v_rcp_f32', 'v_rsq_f32', 'v_sqrt_f32', 'v_sin_f32', 'v_cos_f32',
         'v_rcp_iflag_f32')


def _regs(tok):
    tok = tok.strip()
    tok = tok.lstrip('-')
    m = re.fullmatch(r'abs\((.*)\)', tok) or re.fullmatch(r'\|(.*)\|', tok)
    if m:
        tok = m.group(1)
    m = re.fullmatch(r'([vas])(\d+)', tok)
    if m:
        k, n = m.group(1), int(m.group(2))
        return [(k, n)]
    m = re.fullmatch(r'([vas])\[(\d+):(\d+)\]', tok)
    if m:
        k = m.group(1)
        return [(k, i) for i in range(int(m.group(2)), int(m.group(3)) + 1)]
    if tok in ('vcc', 'vcc_lo', 'vcc_hi'):
        return [('s', 'vcc')]
    if tok in ('exec', 'exec_lo', 'exec_hi'):
        return [('s', 'exec')]
    if tok == 'm0':
        return [('s', 'm0')]
    return []


def _split_ops(s):
    out, depth, cur = [], 0, ''
    for ch in s:
        if ch in '[(':
            depth += 1
        if ch in '])':
            depth -= 1
        if ch == ',' and depth == 0:
            out.append(cur)
            cur = ''
        else:
            cur += ch
    if cur.strip():
        out.append(cur)
    return out


class Ins:
    __slots__ = ('text', 'op', 'dst', 'src', 'cls', 'passes', 'dpp', 'srcC', 'srcAB', 'wide_store', 'sdata',
                 'nop', 'label', 'target', 'lds')

    def __init__(self, text):
        self.text = text
        t = text.split(';')[0].strip()
        self.label = None
        self.target = None
        self.op = ''
        self.dst, self.src = [], []
        self.cls = 'other'
        self.passes = 0
        self.dpp = False
        self.srcC, self.srcAB = [], []
        self.wide_store = False
        self.sdata = []
        self.nop = 1
        self.lds = False
        if not t:
            self.cls = 'none'
            return
        if t.endswith(':'):
            self.cls = 'label'
            self.label = t[:-1]
            return
        if t.startswith('.'):
            self.cls = 'none'
            return
        parts = t.split(None, 1)
        op = parts[0]
        rest = parts[1] if len(parts) > 1 else ''
        self.op = op
        ops = _split_ops(rest)
        mods = ''
        if ops:
            last = ops[-1].strip().split(None, 1)
            ops[-1] = last[0] if last else ''
            mods = last[1] if len(last) > 1 else ''
        R = [_regs(o) for o in ops]
        flat = lambda l: [x for y in l for x in y]
        base = re.sub(r'_(e32|e64|dpp|sdwa)$', '', op)
        if op == 's_nop':
            self.cls = 'nop'
            self.nop = int(ops[0], 0) + 1
        elif op.startswith('s_cbranch') or op == 's_branch':
            self.cls = 'branch'
            self.target = ops[0].strip()
            if 'vcc' in op:
                self.src = [('s', 'vcc')]
        elif op.startswith('v_mfma') or op.startswith('v_smfmac'):
            self.cls = 'mfma'
            self.passes = 8 if '32x32' in op else 4
            self.dst = R[0]
            if op.startswith('v_smfmac'):
                self.srcAB = R[1] + R[2] + R[3]
                self.srcC = R[0]
            else:
                self.srcAB = R[1] + R[2]
                self.srcC = R[3]
            self.src = self.srcAB + self.srcC
        elif op.startswith('v_'):
            self.cls = 'trans' if base in TRANS else 'valu'
            self.dpp = ('quad_perm' in mods or 'row_' in mods or op.endswith('_dpp'))
            if base.startswith('v_cmpx'):
                self.dst = R[0] + [('s', 'exec')]
                self.src = flat(R[1:])
            elif base in ('v_permlane16_swap_b32', 'v_permlane32_swap_b32', 'v_swap_b32'):
                self.dst = R[0] + R[1]
                self.src = R[0] + R[1]
                if 'permlane' in base:
                    self.cls = 'permlane'
            elif base in ('v_add_co_u32', 'v_sub_co_u32', 'v_addc_co_u32', 'v_subb_co_u32', 'v_subrev_co_u32'):
                self.dst = R[0] + R[1]
                self.src = flat(R[2:])
            else:
                self.dst = R[0]
                self.src = flat(R[1:])
                if base.startswith('v_fmac') or base.startswith('v_pk_fmac') or base.startswith('v_dot2c') or self.dpp \
                        or base == 'v_writelane_b32':
                    self.src = self.src + R[0]
                if base in ('v_readfirstlane_b32', 'v_readlane_b32'):
                    self.cls = 'readlane'
        elif op.startswith('buffer_') or op.startswith('global_'):
            self.cls = 'vmem'
            allm = ' ' + mods + ' '
            self.lds = ' lds ' in allm or '_lds_' in op
            if op in ('buffer_wbl2', 'buffer_inv'):
                pass
            elif 'store' in op:
                self.src = flat(R)
                self.sdata = R[0] if op.startswith('buffer_') else R[1]
                self.wide_store = op.endswith('x4') or op.endswith('x3')
            elif 'atomic' in op:
                self.src = flat(R)
                if ' sc0 ' in allm:
                    self.dst = R[0]
            elif self.lds:
                self.src = flat(R) + [('s', 'm0')]
            else:
                self.dst = R[0]
                self.src = flat(R[1:])
                if 'd16' in op:
                    self.src += R[0]
        elif op.startswith('ds_'):
            self.cls = 'ds'
            if op.startswith('ds_read') or 'permute' in op or 'swizzle' in op or op.endswith('_rtn_u32') or op.endswith('_rtn_f32'):
                self.dst = R[0]
                self.src = flat(R[1:])
            else:
                self.src = flat(R)
        elif op.startswith('s_'):
            self.cls = 'salu'
            if op.startswith('s_cmp') or op.startswith('s_bitcmp') or op in ('s_waitcnt', 's_barrier', 's_endpgm',
                                                                               's_sleep', 's_setprio'):
                self.src = flat(R)
            else:
                self.dst = R[0] if R else []
                self.src = flat(R[1:])
                if 'saveexec' in op:
                    self.dst = self.dst + [('s', 'exec')]


def _isv(r):
    return r[0] in 'va'


def required(p, c):
    need = 0
    pd = set(p.dst)
    valu_like = ('valu', 'trans', 'permlane', 'readlane')
    if p.cls in valu_like:
        pv = {r for r in pd if _isv(r)}
        ps = {r for r in pd if r[0] == 's'}
        if c.cls == 'mfma' and pv & set(c.src):
            need = max(need, 2)
        if c.cls in valu_like and c.dpp and pv & set(c.src):
            need = max(need, 2)
        if c.cls == 'permlane' and pv & set(c.src):
            need = max(need, 2)
        if c.cls == 'readlane' and pv & set(c.src):
            need = max(need, 1)
        if p.cls == 'trans' and c.cls in valu_like + ('mfma',) and c.cls != 'trans' and pv & set(c.src):
            need = max(need, 1)
        if ps:
            if c.cls == 'vmem' and ps & set(c.src):
                need = max(need, 5)
            if c.cls in valu_like and ps & set(c.src):
                need = max(need, 4 if c.cls == 'readlane' else 2)
            if ('s', 'exec') in ps:
                if c.cls == 'mfma' or c.cls in ('readlane', 'permlane'):
                    need = max(need, 4)
                if c.dpp:
                    need = max(need, 5)
            if c.cls == 'salu' and ps & set(c.src):
                need = max(need, 1)
    if p.cls == 'mfma':
        big = {4: 8, 8: 12}[p.passes]
        part = {4: 6, 8: 10}[p.passes]
        war = {4: 3, 8: 7}[p.passes]
        if c.cls == 'mfma':
            if pd & set(c.srcAB):
                need = max(need, big)
            if pd & set(c.srcC):
                if not (c.srcC == p.dst and c.passes == p.passes):
                    need = max(need, part)
            elif pd & set(c.dst):
                need = max(need, part)
        elif c.cls in valu_like + ('vmem', 'ds'):
            if pd & (set(c.src) | set(c.dst)):
                need = max(need, big)
            if c.cls in valu_like and set(p.srcC) & set(c.dst):
                need = max(need, war)
    if p.cls == 'vmem' and p.wide_store and set(p.sdata) & set(c.dst):
        need = max(need, 2)
    if p.cls == 'salu' and ('s', 'm0') in pd and c.cls == 'vmem' and c.lds:
        need = max(need, 1)
    if p.cls == 'salu' and ('s', 'exec') in pd and c.dpp:
        need = max(need, 0)
    return need


WINDOW = 14


def _gap_need(hist, c):
    miss = 0
    dist = 0
    for p in reversed(hist):
        n = required(p, c)
        if n > dist:
            miss = max(miss, n - dist)
        dist += p.nop
        if dist >= WINDOW:
            break
    return miss


def hazard_pass(lines):
    ins = [Ins(l) for l in lines]
    out = []
    hist = []
    for i in ins:
        if i.cls in ('none', 'label'):
            out.append(i)
            continue
        miss = _gap_need(hist, i)
        if miss:
            n = Ins('    s_nop %d' % (miss - 1))
            out.append(n)
            hist.append(n)
        out.append(i)
        hist.append(i)
        if i.op in ('s_branch', 's_endpgm'):
            hist = []
        hist = hist[-WINDOW:]
    changed = True
    rounds = 0
    while changed and rounds < 5000:
        changed = False
        rounds += 1
        labels = {x.label: k for k, x in enumerate(out) if x.cls == 'label'}
        for k, x in enumerate(out):
            if x.cls != 'branch' or x.target not in labels:
                continue
            h = []
            j = k
            while j >= 0 and len(h) < WINDOW:
                y = out[j]
                if y.cls not in ('none', 'label'):
                    if j != k and y.op in ('s_branch', 's_endpgm'):
                        break
                    h.insert(0, y)
                j -= 1
            q = labels[x.target] + 1
            cnt = 0
            worst = 0
            hh = list(h)
            while q < len(out) and cnt < WINDOW:
                y = out[q]
                if y.cls not in ('none', 'label'):
                    worst = max(worst, _gap_need(hh, y))
                    hh.append(y)
                    cnt += y.nop
                    if y.op in ('s_branch', 's_endpgm'):
                        break
                q += 1
            if worst:
                out.insert(labels[x.target] + 1, Ins('    s_nop %d ; branch-target pad' % (worst - 1)))
                changed = True
                break
    return [x.text for x in out]


class Prog:
    def __init__(self):
        self.lines = []
        self._lab = 0

    def e(self, s):
        for l in s.split('\n'):
            l = l.strip()
            if not l:
                continue
            if l.endswith(':') or l.startswith('.') or l.startswith(';'):
                self.lines.append(l)
            else:
                self.lines.append('    ' + l)

    def label(self, stem='L'):
        self._lab += 1
        return '%s_%d' % (stem, self._lab)

    def text(self):
        out = []
        for l in self.lines:
            t = l.strip()
            if t.startswith('s_waitcnt') and out and out[-1].strip().startswith('s_waitcnt'):
                c = dict(re.findall(r'(vmcnt|lgkmcnt)\((\d+)\)', out[-1]))
                for k, v in re.findall(r'(vmcnt|lgkmcnt)\((\d+)\)', t):
                    c[k] = str(min(int(v), int(c.get(k, 99))))
                out[-1] = '    s_waitcnt ' + ' '.join('%s(%s)' % kv for kv in sorted(c.items(), reverse=True))
            else:
                out.append(l)
        return '\n'.join(hazard_pass(out)) + '\n'


def vr(k, base, n=1):
    return '%s%d' % (k, base) if n == 1 else '%s[%d:%d]' % (k, base, base + n - 1)


class R:
    def __init__(self, kind, base, n):
        self.kind, self.base, self.n = kind, base, n

    def __str__(self):
        return vr(self.kind, self.base, self.n)

    def __getitem__(self, i):
        if isinstance(i, slice):
            a = i.start or 0
            b = self.n if i.stop is None else i.stop
            assert 0 <= a < b <= self.n, (a, b, self.n)
            return R(self.kind, self.base + a, b - a)
        assert 0 <= i < self.n
        return R(self.kind, self.base + i, 1)


class Alloc:
    def __init__(self, kind, lo, hi):
        self.kind, self.next, self.hi = kind, lo, hi

    def get(self, n=1, align=1):
        if n >= 2 and align < 2:
            align = 2
        b = (self.next + align - 1) // align * align
        assert b + n <= self.hi, 'out of %s regs (need %d at %d, limit %d)' % (self.kind, n, b, self.hi)
        self.next = b + n
        return R(self.kind, b, n)

    def left(self):
        return self.hi - self.next
```

```python
S, D, H, E, F, M, L, NS = 2048, 448, 16, 256, 1792, 8, 32, 64

WS_WQK = 0x0000000
WS_WVO = 0x0700000
WS_YX = 0x1000000
WS_XNB = 0x3000000
WS_XNA = 0x3200000
WS_MEMR = 0x3400000
WS_PR = 0x34c0000
WS_MEMA = 0x3600000
WS_YMA = 0x3800000
WS_PX = 0x4000000
WS_PM = 0x4200000
WS_FLAGS = 0x4400000
WS_CNT = WS_FLAGS + 0x4000
C_YX = 0
C_PY = 0x2000
C_MEM = 0x4000
C_WF = 0x4080
CNT_BYTES = 0x4100
WS_STAMP = 0x4500000
WS_W1F = 0x4600000
WS_W2F = 0x4800000
WS_BASE = 0x4a00000
WS_BYTES = 268435456


def xnb_blk(chunk):
    return 2 * chunk if chunk < 4 else 2 * (chunk - 4) + 1


QK_SLOTS = [
    [0, 4, 1, 2, 3, 5, 6],
    [1, 5, 2, 3, 0, 6, 4],
    [2, 6, 3, 0, 1, 4, 5],
    [3, 4, 5, 6, 0, 1, 2],
]
VO_SLOTS = [[(k + 2 * w) % 7 for k in range(7)] for w in range(4)]
QK_TILES = [
    [(0, 0), (0, 1), (0, 2), (0, 3), (1, 2), (1, 3), (1, 1)],
    [(0, 0), (0, 1), (0, 2), (0, 3), (1, 2), (1, 3), (1, 0)],
    [(0, 0), (0, 1), (0, 2), (0, 3), (1, 0), (1, 1), (1, 3)],
    [(0, 0), (0, 1), (0, 2), (0, 3), (1, 0), (1, 1), (1, 2)],
]


def set_quad(w, st, v, half):
    if st == 0:
        return 2 * w + v
    if w < 3:
        return 2 * (4 + w) + v
    return (2 * (4 + v) + v) if half == 0 else (12 + v)


def qk_col(w, t, n):
    st, pos = QK_TILES[w][t]
    th = set_quad(w, st, pos & 1, pos >> 1)
    return 32 * th + 8 * (n >> 2) + 4 * (pos >> 1) + (n & 3)


def tile_col(j, n):
    return 64 * (j >> 2) + 8 * (j & 3) + (n & 7) + 32 * (n >> 3)


def vo_col(w, t, n):
    return tile_col(7 * w + t, n)


def frag_row(chunk, gB, rho, b):
    return 64 * chunk + 32 * (rho & 1) + 16 * (rho >> 2) + 4 * gB + 2 * ((rho >> 1) & 1) + b


def xs_row(w, st, gB, rho, b):
    return 32 * set_quad(w, st, rho & 1, gB & 1) + 16 * (rho >> 2) + 4 * gB + 2 * ((rho >> 1) & 1) + b
```

```python
import math, struct
from asmlib import *
from layout import *

LOG2E_16 = struct.unpack('<I', struct.pack('<f', math.log2(math.e) / 16))[0]
P_LA = 0
P_LB = 32768
P_LDS = P_LB + 4 * 28672


def srd(e, s, koff, nbytes):
    e(f'''s_load_dwordx2 s[{s}:{s + 1}], s[0:1], {koff}
    s_mov_b32 s{s + 2}, {nbytes}
    s_mov_b32 s{s + 3}, 0x20000''')


def gemm_job(p, mat, st=''):
    e = p.e
    V = Alloc('v', 1, 256)
    vL, vG, vC, t0, t1 = (V.get() for _ in range(5))
    vAo, vBo, vRd, vL16, vTr = (V.get() for _ in range(5))
    Af = V.get(32, 4)
    Bf = V.get(56, 4)
    acc = V.get(112, 4)
    o = V.get(8, 4)
    e(f'''v_and_b32 {vL}, 63, v0
    v_lshrrev_b32 {vG}, 4, {vL}
    v_and_b32 {vC}, 15, {vL}
    v_lshlrev_b32 {vL16}, 4, {vL}
    v_and_b32 {t0}, 3, {vL}
    v_xor_b32 {t0}, {t0}, {vG}
    v_lshlrev_b32 {t0}, 4, {t0}
    v_lshrrev_b32 {t1}, 2, {vL}
    v_lshl_add_u32 {vAo}, {t1}, 13, {t0}
    v_and_b32 {t1}, 3, {t1}
    v_lshl_add_u32 {t1}, {vG}, 3, {t1}
    v_lshl_add_u32 {vBo}, {t1}, 13, {t0}
    v_lshrrev_b32 {t0}, 2, {vC}
    v_xor_b32 {t0}, {t0}, {vG}
    v_lshl_add_u32 {t0}, {vC}, 2, {t0}
    v_lshlrev_b32 {vRd}, 4, {t0}
    s_lshl_b32 s20, s11, 19
    s_lshl_b32 s21, s9, 17
    s_add_u32 s20, s20, s21
    s_lshl_b32 s21, s10, 9
    s_add_u32 s20, s20, s21
    s_lshl_b32 s22, s9, 13
    s_mul_i32 s23, s9, 7168''')
    for ks in range(8):
        e(f'''s_add_u32 m0, s22, {P_LA + ks * (1024 - 64)}
        buffer_load_dwordx4 {vAo}, s[12:15], s20 offen offset:{ks * 64} lds''')
    if mat == 0:
        for tt in range(7):
            e(f'''s_mul_i32 s31, s9, 7
            s_add_u32 s31, s31, {tt}
            s_lshr_b32 s32, s31, 1
            s_lshl_b32 s32, s32, 18
            s_and_b32 s31, s31, 1
            s_lshl_b32 s31, s31, 15
            s_add_u32 s31, s31, s32
            s_add_u32 s{24 + tt}, s31, s21''')
        e(f'v_add_u32 {vTr}, s23, {vRd}')
    else:
        e(f'''s_mul_i32 s24, s10, 229376
        s_add_u32 s24, s24, s23
        v_lshrrev_b32 {t0}, 2, {vC}
        v_lshl_add_u32 {t0}, {vG}, 3, {t0}
        v_mul_u32_u24 {t0}, 896, {t0}
        v_and_b32 {t1}, 1, {vC}
        v_lshl_add_u32 {t0}, {t1}, 3, {t0}
        v_bfe_u32 {t1}, {vC}, 1, 1
        v_lshl_add_u32 {vTr}, {t1}, 6, {t0}''')
        vT = [V.get() for _ in range(7)]
        for tt in range(7):
            e(f'''s_mul_i32 s31, s9, 7
            s_add_u32 s31, s31, {tt}
            s_lshr_b32 s32, s31, 2
            s_lshl_b32 s32, s32, 7
            s_and_b32 s31, s31, 3
            s_lshl_b32 s31, s31, 4
            s_add_u32 s31, s31, s32
            s_add_u32 s31, s31, {P_LB}
            v_add_u32 {vT[tt]}, s31, {vTr}''')

    def dma_b(ks):
        base = P_LB + (ks & 3) * 28672
        for tt in range(7):
            if mat == 0:
                e(f'''s_add_u32 m0, s23, {base + tt * 1024 - ks * 64}
                buffer_load_dwordx4 {vBo}, s[16:19], s{24 + tt} offen offset:{ks * 64} lds''')
            else:
                if tt in (0, 4):
                    e(f'''s_add_u32 m0, s23, {base + tt * 1024}
                    s_add_u32 s31, s24, {ks * 28672 + tt * 1024}''')
                e(f'buffer_load_dwordx4 {vL16}, s[16:19], s31 offen offset:{(tt & 3) * 1024} lds')

    def reads(ks):
        b = ks & 1
        for rt in range(4):
            e(f'ds_read_b128 {Af[16 * b + 4 * rt:16 * b + 4 * rt + 4]}, {vRd} offset:{P_LA + (rt * 8 + ks) * 1024}')
        for tt in range(7):
            d = Bf[28 * b + 4 * tt:28 * b + 4 * tt + 4]
            if mat == 0:
                off = P_LB + (ks & 3) * 28672 + tt * 1024
                if off + 7168 * 3 + 1024 > 65535 + 0:
                    pass
                e(f'ds_read_b128 {d}, {vRB[ks & 3]} offset:{tt * 1024}')
            else:
                off = (ks & 1) * 28672
                e(f'ds_read_b64_tr_b16 {d[0:2]}, {vT[tt]} offset:{off}')
                e(f'ds_read_b64_tr_b16 {d[2:4]}, {vT[tt]} offset:{off + 4 * 896}')
    if mat == 0:
        vRB = [V.get() for _ in range(4)]
        for i in range(4):
            e(f'v_add_u32 {vRB[i]}, {P_LB + i * 28672}, {vTr}')
    for ks in range(3):
        dma_b(ks)
    for ks in range(8):
        nxt = min(7, ks + 2) - ks
        e(f's_waitcnt vmcnt({7 * nxt})')
        e('s_barrier')
        if ks + 3 < 8:
            dma_b(ks + 3)
        if mat == 1 and ks in (2, 6):
            for tt in range(7):
                e(f'v_add_u32 {vT[tt]}, {2 * 28672}, {vT[tt]}')
        if mat == 1 and ks == 4:
            for tt in range(7):
                e(f'v_subrev_u32 {vT[tt]}, {2 * 28672}, {vT[tt]}')
        reads(ks)
        e('s_waitcnt lgkmcnt(0)')
        b = ks & 1
        for tt in range(7):
            for rt in range(4):
                d = acc[16 * tt + 4 * rt:16 * tt + 4 * rt + 4]
                e(f'v_mfma_f32_16x16x32_bf16 {d}, {Af[16 * b + 4 * rt:16 * b + 4 * rt + 4]}, '
                  f'{Bf[28 * b + 4 * tt:28 * b + 4 * tt + 4]}, {0 if ks == 0 else d}')
    e(f'''s_mul_i32 s20, s10, 28
    s_mul_i32 s21, s9, 7
    s_add_u32 s20, s20, s21
    s_mul_i32 s20, s20, 7
    s_add_u32 s20, s20, s11
    s_lshl_b32 s20, s20, 11
    s_add_u32 s20, s20, {WS_WQK if mat == 0 else WS_WVO}
    s_mov_b32 s21, {LOG2E_16}''')
    for tt in range(7):
        a = acc[16 * tt:16 * tt + 16]
        if mat == 0:
            for i in range(16):
                e(f'v_mul_f32 {a[i]}, s21, {a[i]}')
        oo = Bf[8 * (tt % 4):8 * (tt % 4) + 8]
        for hi in range(2):
            for v in range(2):
                r = a[4 * (2 * v + hi):4 * (2 * v + hi) + 4]
                e(f'v_cvt_pk_bf16_f32 {oo[4 * hi + v]}, {r[0]}, {r[1]}')
                e(f'v_cvt_pk_bf16_f32 {oo[4 * hi + 2 + v]}, {r[2]}, {r[3]}')
        e(f'''buffer_store_dwordx4 {oo[0:4]}, {vL16}, s[4:7], s20 offen {st}
        buffer_store_dwordx4 {oo[4:8]}, {vL16}, s[4:7], s20 offen offset:1024 {st}
        s_add_u32 s20, s20, {7 * 2048}''')


def ln_job(p, st=''):
    e = p.e
    V = Alloc('v', 1, 256)
    vL, vG, vC, t0, t1, vL16, vO, mean, rs = (V.get() for _ in range(9))
    X = V.get(56, 4)
    Fv = V.get(112, 4)
    Bq = V.get(64, 4)
    e(f'''v_and_b32 {vL}, 63, v0
    v_lshrrev_b32 {vG}, 4, {vL}
    v_and_b32 {vC}, 15, {vL}
    v_lshlrev_b32 {vL16}, 4, {vL}
    v_mul_u32_u24 {vO}, 896, {vC}
    v_lshl_add_u32 {vO}, {vG}, 4, {vO}
    s_mul_i32 s20, s10, {16 * 896}''')
    for th in range(14):
        e(f'buffer_load_dwordx4 {X[4 * th:4 * th + 4]}, {vO}, s[12:15], s20 offen offset:{64 * th}')
    e(f'''v_mov_b32 {t0}, 0
    v_mov_b32 {t1}, 0''')
    for th in range(14):
        e(f's_waitcnt vmcnt({13 - th})')
        for d in range(4):
            i = 4 * th + d
            e(f'''v_lshlrev_b32 {Fv[2 * i]}, 16, {X[i]}
            v_and_b32 {Fv[2 * i + 1]}, 0xffff0000, {X[i]}
            v_add_f32 {t0}, {t0}, {Fv[2 * i]}
            v_add_f32 {t1}, {t1}, {Fv[2 * i + 1]}''')

    def allred(x, y):
        e(f'''v_mov_b32 {y}, {x}
        v_permlane16_swap_b32 {x}, {y}
        v_add_f32 {x}, {x}, {y}
        v_mov_b32 {y}, {x}
        v_permlane32_swap_b32 {x}, {y}
        v_add_f32 {x}, {x}, {y}''')
    inv = struct.unpack('<I', struct.pack('<f', 1.0 / 448))[0]
    eps = struct.unpack('<I', struct.pack('<f', 1e-5))[0]
    e(f'v_add_f32 {t0}, {t0}, {t1}')
    allred(t0, t1)
    e(f'''v_mul_f32 {mean}, {inv}, {t0}
    v_mov_b32 {t0}, 0
    v_mov_b32 {rs}, 0''')
    for i in range(0, 112, 2):
        e(f'''v_sub_f32 {t1}, {Fv[i]}, {mean}
        v_sub_f32 {vO}, {Fv[i + 1]}, {mean}
        v_fmac_f32 {t0}, {t1}, {t1}
        v_fmac_f32 {rs}, {vO}, {vO}''')
    e(f'v_add_f32 {t0}, {t0}, {rs}')
    allred(t0, t1)

    def rnd(x):
        e(f'''v_cvt_pk_bf16_f32 {x}, {x}, {x}
        v_and_b32 {x}, 0xffff0000, {x}''')
    e(f'v_mul_f32 {t0}, {inv}, {t0}')
    rnd(t0)
    e(f'v_add_f32 {t0}, {eps}, {t0}')
    rnd(t0)
    e(f'v_sqrt_f32 {t0}, {t0}')
    rnd(t0)
    e(f'v_rcp_f32 {rs}, {t0}')
    rnd(mean)
    for i in range(56):
        a, b = Fv[2 * i], Fv[2 * i + 1]
        e(f'''v_sub_f32 {a}, {a}, {mean}
        v_sub_f32 {b}, {b}, {mean}
        v_cvt_pk_bf16_f32 {X[i]}, {a}, {b}
        v_lshlrev_b32 {a}, 16, {X[i]}
        v_and_b32 {b}, 0xffff0000, {X[i]}
        v_mul_f32 {a}, {a}, {rs}
        v_mul_f32 {b}, {b}, {rs}
        v_cvt_pk_bf16_f32 {X[i]}, {a}, {b}''')
    e(f'''s_lshl_b32 s20, s10, 14
    s_add_u32 s20, s20, {WS_XNA}''')
    for th in range(14):
        if th and th % 4 == 0:
            e('s_add_u32 s20, s20, 4096')
        e(f'buffer_store_dwordx4 {X[4 * th:4 * th + 4]}, {vL16}, s[4:7], s20 offen offset:{(th & 3) * 1024} {st}')
    for k in range(7):
        for v in range(2):
            x = X[4 * (2 * k + v):4 * (2 * k + v) + 4]
            for d in range(4):
                e(f'v_mov_b32 {Bq[8 * k + 4 * (d >> 1) + 2 * (d & 1) + v]}, {x[d]}')
        for q in range(4):
            e(f'v_permlane16_swap_b32 {Bq[8 * k + q]}, {Bq[8 * k + 4 + q]}')
        for q in range(4):
            e(f'v_permlane32_swap_b32 {Bq[8 * k + q]}, {Bq[8 * k + 4 + q]}')
    e(f'''v_and_b32 {t0}, 1, {vG}
    v_cmp_eq_u32 vcc, 0, {t0}''')
    for q in range(8):
        src = Bq[8 * (4 + (q & 1)) + q]
        e(f'v_cndmask_b32 {Bq[56 + q]}, {Bq[48 + q]}, {src}, vcc')
    e(f'''s_lshr_b32 s20, s10, 1
    s_lshl_b32 s20, s20, 15
    s_and_b32 s21, s10, 1
    s_lshl_b32 s21, s21, 11
    s_add_u32 s20, s20, s21
    s_add_u32 s20, s20, {WS_XNB}''')
    for k in range(8):
        blk = xnb_blk(k) if k < 7 else 7
        e(f'''s_add_u32 s21, s20, {blk * 4096}
        buffer_store_dwordx4 {Bq[8 * k:8 * k + 4]}, {vL16}, s[4:7], s21 offen {st}
        buffer_store_dwordx4 {Bq[8 * k + 4:8 * k + 8]}, {vL16}, s[4:7], s21 offen offset:1024 {st}''')


def prep_kernel(p, name):
    e = p.e
    e(f'{name}:')
    e('''s_cmp_ge_u32 s2, 256
    s_cbranch_scc1 PREP_EXIT
    v_lshrrev_b32 v1, 6, v0
    v_readfirstlane_b32 s9, v1
    s_and_b32 s3, s2, 7
    s_lshr_b32 s8, s2, 3''')
    srd(e, 4, 112, WS_BYTES)
    e('''s_cmp_ge_u32 s8, 28
    s_cbranch_scc1 PREP_LN
    s_mul_i32 s20, s8, 37
    s_lshr_b32 s20, s20, 8        ; q/7
    s_mul_i32 s21, s20, 7
    s_sub_u32 s11, s8, s21        ; chunk
    s_lshl_b32 s3, s3, 2
    s_add_u32 s20, s20, s3
    s_lshr_b32 s10, s20, 1
    s_bitcmp1_b32 s20, 0
    s_cbranch_scc1 PREP_VO''')
    srd(e, 12, 16, 448 * 8192)
    srd(e, 16, 24, 448 * 8192)
    e('s_waitcnt lgkmcnt(0)')
    gemm_job(p, 0)
    e('s_endpgm\nPREP_VO:')
    srd(e, 12, 32, 448 * 8192)
    srd(e, 16, 40, 448 * 8192)
    e('s_waitcnt lgkmcnt(0)')
    gemm_job(p, 1)
    e('s_endpgm\nPREP_LN:')
    srd(e, 12, 0, S * D * 2)
    e(f'''s_sub_u32 s10, s2, 224
    s_lshl_b32 s10, s10, 2
    s_add_u32 s10, s10, s9
    s_waitcnt lgkmcnt(0)
    v_and_b32 v1, 63, v0
    v_lshlrev_b32 v1, 2, v1
    v_mov_b32 v2, 0
    s_lshl_b32 s20, s10, 8
    s_add_u32 s20, s20, {WS_CNT}
    buffer_store_dword v2, v1, s[4:7], s20 offen''')
    ln_job(p)
    e('PREP_EXIT:\ns_endpgm')


KD = '''.section .rodata,"a"
.p2align 6
.amdhsa_kernel %s
  .amdhsa_next_free_vgpr %d
  .amdhsa_next_free_sgpr 102
  .amdhsa_accum_offset 256
  .amdhsa_group_segment_fixed_size 0
  .amdhsa_kernarg_size 120
  .amdhsa_user_sgpr_count 2
  .amdhsa_user_sgpr_kernarg_segment_ptr 1
  .amdhsa_system_sgpr_workgroup_id_x 1
.end_amdhsa_kernel
'''

if __name__ == '__main__':
    import sys
    p = Prog()
    prep_kernel(p, 'prep_kernel')
    txt = '; @launch grid=(256,1,1) block=(256,1,1) lds=%d\n.amdgcn_target "amdgcn-amd-amdhsa--gfx950"\n.text\n.globl prep_kernel\n.p2align 8\n.type prep_kernel,@function\n' % P_LDS
    open(sys.argv[1], 'w').write(txt + p.text() + KD % ('prep_kernel', 256))
```

```python
from asmlib import *
from layout import *

sWS = 's[4:7]'
sIDX, sWAVE, sSTEP = 's8', 's9', 's10'
sH = 's11'
sDBG = 's[12:15]'
sM0D = 's[16:19]'
sJ = 's24'
sMEM, sMEM2 = 's26', 's27'
sP, sPRST = 's28', 's29'
sMEMW, sMEMRST = 's32', 's33'
sT0, sT1, sT2, sT3 = 's34', 's35', 's36', 's37'
sTO = 's38'
sSTEP1 = 's39'
sYX = 's40'
sDA = 's41'
sFLG = 's43'
sTIME = 's[44:45]'
sTIME2 = 's[46:47]'
sV0 = 's[48:49]'
sCHK = 's[50:51]'
sXS, sXS2 = 's52', 's53'
sYXS, sYXS2 = 's64', 's65'
sSLOW = 's66'
sCNT = ['s68', 's69', 's70', 's71']
NSTAMP = 15
STAMP0 = 72

L_W = 0
L_SP = 8 * 14336
L_DUMP = L_SP + 4 * 1296
L_END = L_DUMP + 256
RS = 1056
OOB = 0x40000000
TIMEOUT = 200000
FLAG_STRIDE = 768
FLAG2_OFF = 4096 + 128
NREP = 4


class Cfg:
    stamps = 0
    dual = 1
    alone = 0
    diag = 1
    nsteps = 63
    fake = 0
    delay = 0
    vdelay = 0
    flagpos = 1
    pdelay = 32
    f2pos = 2
    nsc = 2
    gap = 14
    pdepth = 5
    pspace = 9
    vdepth = 3
    fz1 = 11
    fz2 = 9
    qtouch = 2
    pf = 3


def stamp(p, cfg, i):
    if cfg.stamps:
        p.e(f's_memtime s[{STAMP0 + 2 * i}:{STAMP0 + 2 * i + 1}]')


def nops(e, n):
    while n > 0:
        k = min(n, 16)
        e(f's_nop {k - 1}')
        n -= k


class VM:
    def __init__(self, e, cnt='vmcnt'):
        self.e, self.n, self.tag, self.cnt = e, 0, {}, cnt

    def issue(self, text, tag=None):
        self.e(text)
        self.n += 1
        if tag is not None:
            self.tag[tag] = self.n

    def wait(self, tag):
        self.e(f's_waitcnt {self.cnt}({self.n - self.tag[tag]})')


def team_barrier(p, w, vt):
    e = p.e
    e('s_waitcnt vmcnt(0) lgkmcnt(0)\ns_barrier')
    if w == 0:
        lp, done = p.label('TB'), p.label('TBD')
        e(f"""v_mov_b32 {vt[0]}, 0
        v_mov_b32 {vt[1]}, 1
        s_mov_b64 exec, 1
        buffer_atomic_add {vt[1]}, {vt[0]}, {sDBG}, 0 offen
        {lp}:
        buffer_load_dword {vt[2]}, {vt[0]}, {sDBG}, 0 offen sc1
        s_waitcnt vmcnt(0)
        v_readfirstlane_b32 {sT1}, {vt[2]}
        s_cmp_ge_u32 {sT1}, 32
        s_cbranch_scc1 {done}
        s_sub_u32 {sTO}, {sTO}, 1
        s_cmp_gt_i32 {sTO}, 0
        s_cbranch_scc1 {lp}
        {done}:
        s_mov_b64 exec, -1""")
    e('s_barrier')
    e(f"""v_mov_b32 {vt[0]}, 12
    buffer_load_dword {vt[2]}, {vt[0]}, {sDBG}, 0 offen sc1
    s_waitcnt vmcnt(0)
    v_readfirstlane_b32 {sSLOW}, {vt[2]}""")


def epilogue(p, w, cfg, vt):
    e = p.e
    if not cfg.diag:
        e('s_endpgm')
        return
    e(f"""s_memtime {sTIME2}
    s_waitcnt lgkmcnt(0) vmcnt(0)
    s_sub_u32 s46, s46, s44
    s_lshl_b32 {sT0}, {sIDX}, 2
    s_add_u32 {sT0}, {sT0}, {w}
    s_lshl_b32 {sT0}, {sT0}, 7
    s_add_u32 {sT0}, {sT0}, {WS_STAMP}
    v_mov_b32 {vt[0]}, 0
    v_mov_b32 {vt[1]}, s46
    buffer_store_dword {vt[1]}, {vt[0]}, {sWS}, {sT0} offen
    v_mov_b32 {vt[1]}, {sTO}
    buffer_store_dword {vt[1]}, {vt[0]}, {sWS}, {sT0} offen offset:4""")
    for i in range(NSTAMP):
        e(f"""v_mov_b32 {vt[1]}, s{STAMP0 + 2 * i}
        buffer_store_dword {vt[1]}, {vt[0]}, {sWS}, {sT0} offen offset:{64 + 4 * i}""")
    for i, c in enumerate(sCNT):
        e(f"""v_mov_b32 {vt[1]}, {c}
        buffer_store_dword {vt[1]}, {vt[0]}, {sWS}, {sT0} offen offset:{40 + 4 * i}""")
    if cfg.stamps:
        e(f's_mov_b32 {sT3}, 0')
        for i in range(24):
            e(f"""s_memrealtime s[44:45]
            s_memtime s[46:47]
            s_waitcnt lgkmcnt(0)
            s_mul_i32 s44, s44, 24
            s_sub_u32 s46, s46, s44""")
            if i == 0:
                e(f's_mov_b32 {sT2}, s46')
            e(f"""s_sub_u32 s46, s46, {sT2}
            s_min_i32 {sT3}, {sT3}, s46
            s_nop {i % 5}""")
        e(f"""s_add_u32 {sT2}, {sT2}, {sT3}
        v_mov_b32 {vt[1]}, {sT2}
        buffer_store_dword {vt[1]}, {vt[0]}, {sWS}, {sT0} offen offset:8""")
    e('s_endpgm')


def flag_store_off(e, dst, vLane, tmp, idx_sgpr, base):
    e(f'''v_mul_u32_u24 {dst}, {FLAG_STRIDE}, {vLane}
    s_lshl_b32 {sT1}, {idx_sgpr}, 2
    s_add_u32 {sT1}, {sT1}, {base}
    v_add_u32 {dst}, {sT1}, {dst}
    v_mov_b32 {tmp}, {OOB}
    v_cmp_gt_u32 vcc, {NREP}, {vLane}
    v_cndmask_b32 {dst}, {tmp}, {dst}, vcc''')


def flag_poll_off(e, dst, vLane, base, last):
    e(f'''s_and_b32 {sT1}, {sIDX}, {NREP - 1}
    s_mul_i32 {sT1}, {sT1}, {FLAG_STRIDE}
    s_add_u32 {sT1}, {sT1}, {base}
    v_min_u32 {dst}, {last}, {vLane}
    v_lshlrev_b32 {dst}, 2, {dst}
    v_add_u32 {dst}, {sT1}, {dst}''')


def engine_wave(p, w, cfg):
    e = p.e
    V = Alloc('v', 0, 64)
    vLane = V.get()
    vt = [V.get() for _ in range(5)]
    vL16, vL128, vFo, vFs, vD, vF = V.get(), V.get(), V.get(), V.get(), V.get(), V.get()
    mreg = V.get(8, 4)
    e(f'''v_and_b32 {vLane}, 63, v0
    v_lshlrev_b32 {vL16}, 4, {vLane}
    v_lshlrev_b32 {vL128}, 7, {vLane}
    s_mov_b32 {sFLG}, {WS_FLAGS}
    s_mov_b32 {sSTEP}, 0
    s_mov_b32 {sTO}, {TIMEOUT}''')
    for c in sCNT:
        e(f's_mov_b32 {c}, 0')
    flag_poll_off(e, vFo, vLane, FLAG2_OFF, 13)
    e(f's_mov_b32 {sT2}, 14')
    flag_store_off(e, vFs, vLane, vt[4], sT2, FLAG2_OFF)
    vL4, vOne = V.get(), V.get()
    sG, sCN = 's20', 's21'
    e(f"""v_lshlrev_b32 {vL4}, 2, {vLane}
    v_mov_b32 {vOne}, 1
    s_mov_b32 {sCN}, {WS_CNT}
    s_mov_b32 {sG}, {1000 if cfg.alone else -1}""")
    tail = []

    def gate(need, first):
        GL, GD = p.label('GL'), p.label('GD')
        if not first:
            e(f"""s_cmp_ge_i32 {sG}, 63
            s_cbranch_scc1 {GD}""")
        e(f'{GL}:')
        if not cfg.alone:
            e(f"""buffer_load_dword {vF}, {vL4}, {sWS}, {sCN} offen offset:{C_YX} sc1
            s_waitcnt vmcnt(0)
            v_cmp_gt_u32 vcc, 16, {vF}
            s_ff1_i32_b64 {sG}, vcc
            s_cmp_lt_i32 {sG}, 0
            s_cselect_b32 {sG}, 64, {sG}
            s_sub_u32 {sG}, {sG}, 1""")
        e(f"""s_max_i32 {sT1}, {sG}, 0
        v_mov_b32 {vt[0]}, {sT1}
        buffer_store_dword {vt[0]}, {vFs}, {sWS}, {sFLG} offen {'sc1' if first else ''}""")
        if not first:
            sl, bk = p.label('SL'), p.label('SB')
            e(f"""s_cmp_lg_u32 {sSLOW}, 0
            s_cbranch_scc1 {sl}
            {bk}:""")
            tail.extend([f'{sl}:', f'buffer_store_dword {vt[0]}, {vFs}, {sWS}, {sFLG} offen sc1', f's_branch {bk}'])
        e(f"""s_sub_u32 {sTO}, {sTO}, 1
        s_cmp_gt_i32 {sTO}, 0
        s_cbranch_scc0 {GD}
        s_cmp_lt_i32 {sG}, {need}
        s_cbranch_scc1 {GL}
        {GD}:""")
    if w == 1:
        sk = p.label('SK')
        e(f"""s_cmp_lg_u32 {sH}, 14
        s_cbranch_scc1 {sk}""")
        gate(0, True)
        e(f'{sk}:')
    if w < 3:
        e(f'''s_mov_b32 {sT1}, {WS_MEMR + w * 8192}
        buffer_load_dword {vD}, {vL128}, {sWS}, {sT1} offen sc1''')
    team_barrier(p, w, vt)
    if cfg.diag:
        e(f's_memtime {sTIME}')
    LOOP, END, PL, GO, E1, AR, NX = (p.label(x) for x in ('LOOP', 'END', 'PL', 'GO', 'E1', 'AR', 'NX'))
    nq = 16 * cfg.qtouch
    rest = list(range(nq, 56))
    n1 = min(len(rest), (len(rest) + 7 + 1) // 2)
    u1, u0 = rest[:n1], rest[n1:]
    clampn = lambda d, s_: f's_and_b32 {d}, {s_}, 1' if cfg.fake else f's_min_u32 {d}, {s_}, 63'
    e(f'''{LOOP}:
    s_add_u32 {sT3}, {sSTEP}, {cfg.pf}
    {clampn(sT3, sT3)}
    s_mul_i32 {sYXS}, {sT3}, {28 * 16384}
    s_add_u32 {sYXS}, {sYXS}, {WS_YX}
    s_lshl_b32 {sXS}, {sT3}, 15
    s_add_u32 {sXS}, {sXS}, {WS_XNB + w * 8192}
    s_lshl_b32 {sMEM}, {sSTEP}, 13
    s_add_u32 {sMEMW}, {sMEM}, {WS_MEMA + w * 2048}
    s_add_u32 {sMEM}, {sMEM}, {WS_MEMR + w * 2048}
    s_cmp_lg_u32 {sH}, 14
    s_cbranch_scc1 {E1}''')
    nch = 2 if w < 3 else 1
    e(f'{AR}:')
    for i in range(nch):
        e(f'buffer_load_dwordx4 {mreg[4 * i:4 * i + 4]}, {vL16}, {sWS}, {sMEM} offen offset:{1024 * i} sc1')
    e(f'''s_sub_u32 {sTO}, {sTO}, 1
    s_cmp_gt_i32 {sTO}, 0
    s_cbranch_scc0 {END}
    s_waitcnt vmcnt(0)
    v_max3_u32 {vt[0]}, {mreg[0]}, {mreg[1]}, {mreg[2]}
    v_max_u32 {vt[0]}, {vt[0]}, {mreg[3]}''')
    if nch == 2:
        e(f'''v_max3_u32 {vt[0]}, {vt[0]}, {mreg[4]}, {mreg[5]}
        v_max3_u32 {vt[0]}, {vt[0]}, {mreg[6]}, {mreg[7]}''')
    e(f'''v_cmp_eq_u32 vcc, -1, {vt[0]}
    s_cbranch_vccnz {AR}''')
    for i in range(nch):
        e(f'buffer_store_dwordx4 {mreg[4 * i:4 * i + 4]}, {vL16}, {sWS}, {sMEMW} offen offset:{1024 * i} sc1')
    nt = 1
    if w == 0:
        e(f'''s_add_u32 {sDA}, {sMEM}, {3 * 8192}
        buffer_load_dword {vD}, {vL128}, {sWS}, {sDA} offen sc1''')
        nt += 1
    e(f'buffer_load_dword {vD}, {vL128}, {sWS}, {sXS} offen sc1')
    for u in u0[(3 - w)::4]:
        e(f'''s_add_u32 {sDA}, {sYXS}, {u * 8192}
        buffer_load_dword {vD}, {vL128}, {sWS}, {sDA} offen sc1''')
        nt += 1
    e(f"""s_waitcnt vmcnt({nt})
    v_mov_b32 {vt[0]}, {C_MEM}
    s_mov_b64 exec, 1
    buffer_atomic_add {vOne}, {vt[0]}, {sWS}, {sCN} offen
    s_mov_b64 exec, -1
    s_cmp_ge_u32 {sSTEP}, {cfg.nsteps}
    s_cbranch_scc1 {END}""")
    if w == 1:
        e(f's_add_u32 {sT2}, {sSTEP}, 1')
        e(f's_min_u32 {sT2}, {sT2}, 63')
        gate(sT2, False)
    e(f'''s_branch {NX}
    {E1}:
    s_cmp_ge_u32 {sSTEP}, {cfg.nsteps}
    s_cbranch_scc1 {END}''')
    for u in u1[w::4]:
        e(f'''s_add_u32 {sDA}, {sYXS}, {u * 8192}
        buffer_load_dword {vD}, {vL128}, {sWS}, {sDA} offen sc1''')
    e(f'''{NX}:
    s_add_u32 {sSTEP}, {sSTEP}, 1''')
    if w == 0:
        e(f'''{PL}:
        buffer_load_dword {vF}, {vFo}, {sWS}, {sFLG} offen sc1
        s_sub_u32 {sTO}, {sTO}, 1
        s_cmp_gt_i32 {sTO}, 0
        s_cbranch_scc0 {GO}
        s_waitcnt vmcnt(0)
        v_cmp_gt_u32 vcc, {sSTEP}, {vF}
        s_cbranch_vccnz {PL}
        {GO}:''')
    e(f'''s_barrier
    s_branch {LOOP}
    {END}:''')
    epilogue(p, w, cfg, vt)
    for l in tail:
        e(l)


def team_wave(p, role, w, cfg):
    if role == 2:
        return engine_wave(p, w, cfg)
    qk = role == 0
    NT = 7 if qk else 8
    NR = 5 if qk else 8
    AH = 4 if qk else 3
    slots = (QK_SLOTS if qk else VO_SLOTS)[w]
    V = Alloc('v', 0, 256)
    A = Alloc('a', 0, 256)
    vLane = V.get()
    vG, vC = V.get(), V.get()
    vt = [V.get() for _ in range(5)]
    vIdx, vL16, vStep, vFo, vFs, vNeg1, vWL = (V.get() for _ in range(7))
    memA = V.get(28, 4)
    Tacc = V.get(4 * NT, 4)
    lds_tiles = [4] if qk else [6, 7]
    stg = V.get(16 * len(lds_tiles), 4)
    wl0 = L_W + w * len(lds_tiles) * 14336
    lds_rel = {t: i * 14336 for i, t in enumerate(lds_tiles)}
    if qk:
        Did = V.get(8, 4)
        AS = V.get(4, 4)
        xsB = V.get(32, 4)
        Alast = V.get(4, 4)
        Sx = V.get(8, 4)
        Sm = V.get(4, 4)
        Idn = V.get(4, 4)
        vSW, vSW2, vSR, vPo, vL128 = (V.get() for _ in range(5))
        if w == 3:
            Mx = V.get(4, 4)
        Fp = [Did[i] for i in range(8)]
        toucher = w >= 4 - cfg.qtouch
    else:
        YX = V.get(32, 4)
        Ym = V.get(8, 4)
        vL8, vRW, vRR, vMr = (V.get() for _ in range(4))
        PM, PX = memA[0:2], memA[4:12]
        Facc = memA[12:20]
        Fp = [memA[20 + i] for i in range(8)]
    poller = (w == 0) or (not qk and w == 2)
    frag = {}
    for t in range(NT):
        if t in lds_tiles:
            continue
        for k in range(7):
            frag[(t, k)] = A.get(8, 4) if A.left() >= 8 else V.get(8, 4)
    e = p.e

    e(f'''v_and_b32 {vLane}, 63, v0
    v_lshrrev_b32 {vG}, 4, {vLane}
    v_and_b32 {vC}, 15, {vLane}
    v_lshlrev_b32 {vL16}, 4, {vLane}
    v_add_u32 {vWL}, {wl0}, {vL16}
    v_bfe_u32 {vt[0]}, {vC}, 1, 1          ; v(c)
    v_lshrrev_b32 {vt[1]}, 2, {vC}
    v_lshlrev_b32 {vt[1]}, 1, {vt[1]}
    v_and_b32 {vt[2]}, 1, {vC}
    v_add_u32 {vt[1]}, {vt[1]}, {vt[2]}    ; m(c)
    v_mul_u32_u24 {vIdx}, 0xaaaa, {vt[0]}
    v_add_u32 {vIdx}, 0x4444, {vIdx}
    v_mov_b32 {vNeg1}, -1
    s_mov_b32 {sFLG}, {WS_FLAGS}
    s_mul_i32 {sT0}, {sH}, {28 * 14336 if qk else 2 * 14336}''')
    n_out = 0
    for t in range(NT):
        for k in range(7):
            if qk:
                st_, pos = QK_TILES[w][t]
                T = 2 * set_quad(w, st_, pos & 1, pos >> 1) + (pos >> 1)
                off = WS_WQK + (T * 7 + slots[k]) * 2048
            else:
                off = WS_WVO + (((4 * w + (t & 3)) * 28 + (t >> 2)) * 7 + slots[k]) * 2048
            e(f's_add_u32 {sT1}, {sT0}, {off}')
            if t in lds_tiles:
                e(f'''s_mov_b32 m0, {wl0 + lds_rel[t] + k * 2048}
                buffer_load_dwordx4 {vL16}, {sWS}, {sT1} offen lds
                buffer_load_dwordx4 {vL16}, {sWS}, {sT1} offen offset:1024 lds''')
            else:
                f = frag[(t, k)]
                e(f'''buffer_load_dwordx4 {f[0:4]}, {vL16}, {sWS}, {sT1} offen
                buffer_load_dwordx4 {f[4:8]}, {vL16}, {sWS}, {sT1} offen offset:1024''')
            n_out += 2
            if n_out >= 48:
                e('s_waitcnt vmcnt(24)')
                n_out = 24
    if qk:
        e(f'''v_lshlrev_b32 {vL128}, 7, {vLane}
        v_lshrrev_b32 {vt[2]}, 2, {vC}
        v_and_b32 {vt[3]}, 1, {vC}
        v_lshlrev_b32 {vt[3]}, 4, {vt[3]}
        v_mov_b32 {vt[4]}, 0x3f80
        v_lshlrev_b32 {vt[3]}, {vt[3]}, {vt[4]}
        v_cmp_eq_u32 vcc, {vt[2]}, {vG}
        v_cndmask_b32 {vt[3]}, 0, {vt[3]}, vcc
        v_cmp_eq_u32 vcc, 0, {vt[0]}
        v_cndmask_b32 {Idn[0]}, 0, {vt[3]}, vcc
        v_cndmask_b32 {Idn[1]}, 0, {vt[3]}, vcc
        v_cndmask_b32 {Idn[2]}, {vt[3]}, 0, vcc
        v_cndmask_b32 {Idn[3]}, {vt[3]}, 0, vcc
        s_mov_b64 {sV0}, vcc
        v_mul_u32_u24 {vt[2]}, 320, {vG}
        v_add_u32 {vt[2]}, {L_SP + w * 1296}, {vt[2]}
        v_and_b32 {vt[3]}, 12, {vC}
        v_add_u32 {vt[3]}, {vt[3]}, {vC}
        v_lshl_add_u32 {vSW}, {vt[3]}, 2, {vt[2]}
        v_lshl_add_u32 {vt[2]}, {vt[1]}, 2, {vt[2]}
        v_add_u32 {vt[2]}, 128, {vt[2]}
        v_lshlrev_b32 {vt[3]}, 2, {vC}
        v_add_u32 {vt[3]}, {L_DUMP}, {vt[3]}
        v_cndmask_b32 {vSW2}, {vt[3]}, {vt[2]}, vcc
        v_lshrrev_b32 {vt[0]}, 5, {vLane}
        v_and_b32 {vt[1]}, 31, {vLane}
        v_mul_u32_u24 {vt[2]}, 160, {vt[0]}
        v_lshl_add_u32 {vt[2]}, {vt[1]}, 3, {vt[2]}
        v_add_u32 {vt[2]}, {L_SP + 2 * w * 160}, {vt[2]}
        v_mov_b32 {vt[3]}, {L_SP + 1280}
        v_cmp_gt_u32 vcc, 20, {vt[1]}
        v_cndmask_b32 {vSR}, {vt[3]}, {vt[2]}, vcc
        v_and_b32 {vt[2]}, 1, {vt[1]}
        v_lshl_add_u32 {vt[2]}, {vt[2]}, 1, {vt[0]}
        v_lshlrev_b32 {vt[2]}, 4, {vt[2]}
        v_bfe_u32 {vt[3]}, {vt[1]}, 3, 1
        v_lshl_add_u32 {vt[3]}, {vt[3]}, 8, {vt[2]}
        v_bfe_u32 {vt[4]}, {vt[1]}, 1, 2
        v_lshl_add_u32 {vt[3]}, {vt[4]}, 2, {vt[3]}
        s_lshl_b32 {sT1}, {sH}, 9
        s_add_u32 {sT1}, {sT1}, {2048 + 64 * w}
        v_add_u32 {vt[3]}, {sT1}, {vt[3]}
        v_and_b32 {vt[2]}, 3, {vt[1]}
        v_lshlrev_b32 {vt[2]}, 7, {vt[2]}
        v_lshl_add_u32 {vt[2]}, {vt[0]}, 3, {vt[2]}
        s_lshr_b32 {sT1}, {sH}, 2
        s_lshl_b32 {sT1}, {sT1}, 9
        s_and_b32 {sT2}, {sH}, 1
        s_lshl_b32 {sT2}, {sT2}, 4
        s_add_u32 {sT1}, {sT1}, {sT2}
        s_and_b32 {sT2}, {sH}, 2
        s_lshl_b32 {sT2}, {sT2}, 1
        s_add_u32 {sT1}, {sT1}, {sT2}
        s_add_u32 {sT1}, {sT1}, {32 * w}
        v_add_u32 {vt[2]}, {sT1}, {vt[2]}
        v_mov_b32 {vt[4]}, {OOB}
        v_cndmask_b32 {vt[2]}, {vt[4]}, {vt[2]}, vcc
        v_cmp_gt_u32 vcc, 16, {vt[1]}
        v_cndmask_b32 {vPo}, {vt[2]}, {vt[3]}, vcc''')
        for r in range(4):
            e(f'''s_mov_b32 {sT1}, {WS_PR + r * 16384}
            buffer_store_dword {vNeg1}, {vPo}, {sWS}, {sT1} offen sc1''')
        e(f"""v_mov_b32 {vt[2]}, {L_SP + w * 1296 + 1280}
        v_mov_b32 {vt[3]}, 0xf149f2ca
        ds_write2_b32 {vt[2]}, {vt[3]}, {vt[3]} offset0:0 offset1:1""")
        flag_store_off(e, vFs, vLane, vt[4], sH, 0)
        if w == 1:
            e(f'''v_mov_b32 {vt[4]}, 0
            buffer_store_dword {vt[4]}, {vFs}, {sWS}, {sFLG} offen sc1''')
        for i in range(4):
            e(f'v_mov_b32 {Alast[i]}, 0')
        if poller:
            flag_poll_off(e, vFo, vLane, FLAG2_OFF, 14)
        e(f'''s_mul_i32 {sYX}, {sH}, {cfg.qtouch * 8192}
        s_add_u32 {sYX}, {sYX}, {WS_YX + (3 - w) * 8192}''')
    else:
        e(f'''v_lshlrev_b32 {vL8}, 3, {vLane}
        v_lshlrev_b32 {vt[2]}, 7, {vG}
        v_lshl_add_u32 {vt[2]}, {vC}, 2, {vt[2]}
        v_add_u32 {vRW}, {L_SP + w * RS}, {vt[2]}
        v_bfe_u32 {vt[2]}, {vLane}, 2, 1
        v_lshl_add_u32 {vt[2]}, {vG}, 1, {vt[2]}       ; m
        v_lshlrev_b32 {vt[3]}, 6, {vt[2]}
        v_bfe_u32 {vt[4]}, {vLane}, 3, 1
        v_lshl_add_u32 {vt[3]}, {vt[4]}, 5, {vt[3]}
        v_and_b32 {vt[0]}, 3, {vLane}
        v_lshl_add_u32 {vt[3]}, {vt[0]}, 3, {vt[3]}
        v_add_u32 {vRR}, {L_SP + (w & 1) * 512}, {vt[3]}
        s_lshl_b32 {sJ}, {sH}, 1
        s_add_u32 {sJ}, {sJ}, {w & 1}
        s_lshl_b32 {sT1}, {sJ}, 8
        v_lshlrev_b32 {vt[3]}, 2, {vLane}
        v_add_u32 {vMr}, {sT1}, {vt[3]}
        s_lshl_b32 {sYX}, {sH}, 15
        s_add_u32 {sYX}, {sYX}, {WS_YX + w * 4096}''')
        if w < 2:
            e(f'''v_mul_u32_u24 {vt[2]}, 896, {vt[2]}
            v_lshl_add_u32 {vt[2]}, {vt[4]}, 6, {vt[2]}
            v_lshl_add_u32 {vt[2]}, {vt[0]}, 2, {vt[2]}
            s_lshr_b32 {sT1}, {sJ}, 2
            s_lshl_b32 {sT1}, {sT1}, 7
            s_and_b32 {sT2}, {sJ}, 3
            s_lshl_b32 {sT2}, {sT2}, 4
            s_add_u32 {sT1}, {sT1}, {sT2}
            buffer_load_dword {vt[3]}, {vt[2]}, {sM0D}, {sT1} offen
            s_waitcnt vmcnt(0)
            s_mov_b32 {sT1}, {WS_MEMR}
            buffer_store_dword {vt[3]}, {vMr}, {sWS}, {sT1} offen sc1''')
            for r in range(1, 3):
                e(f'''s_mov_b32 {sT1}, {WS_MEMR + r * 8192}
                buffer_store_dword {vNeg1}, {vMr}, {sWS}, {sT1} offen sc1''')
        flag_store_off(e, vFs, vLane, vt[4], sH, FLAG2_OFF)
        if w == 3:
            e(f'''v_mov_b32 {vt[4]}, 0
            buffer_store_dword {vt[4]}, {vFs}, {sWS}, {sFLG} offen sc1''')
        if w == 0:
            flag_poll_off(e, vFo, vLane, 0, 15)
        if w == 2:
            flag_poll_off(e, vFo, vLane, FLAG2_OFF, 14)

    def xs_bases(nxt):
        return [f's_lshl_b32 {sXS}, {nxt}, 15', f's_add_u32 {sXS}, {sXS}, {WS_XNB + w * 8192}', f's_add_u32 {sXS2}, {sXS}, 4096']

    def xs_loads():
        return [f'buffer_load_dwordx4 {xsB[4 * i:4 * i + 4]}, {vL16}, {sWS}, {sXS if i < 4 else sXS2} offen '
                f'offset:{(i & 3) * 1024} sc1' for i in range(8)]

    winA = []
    if qk:
        winA = [f'buffer_store_dword {vNeg1}, {vPo}, {sWS}, {sPRST} offen']
        if toucher:
            winA += [f'buffer_load_dword {vt[3]}, {vL128}, {sWS}, {sYXS} offen sc1']
    else:
        if w < 2:
            winA = [f'buffer_store_dword {vNeg1}, {vMr}, {sWS}, {sMEMRST} offen']
        winA += [f'buffer_load_dwordx4 {YX[4 * i:4 * i + 4]}, {vL16}, {sWS}, {sYXS if i < 4 else sYXS2} offen '
                 f'offset:{(i & 3) * 1024} sc1' for i in range(8)]

    e(f"""s_mov_b32 {sSTEP}, 0
    s_mov_b32 {sTO}, {TIMEOUT}""")
    for c in sCNT:
        e(f's_mov_b32 {c}, 0')
    if qk:
        for l in xs_bases(sSTEP) + xs_loads():
            e(l)
    team_barrier(p, w, vt)
    if cfg.diag:
        e(f's_memtime {sTIME}')

    LOOP, END = p.label('LOOP'), p.label('END')
    FAIL, JOIN = p.label('FAIL'), p.label('JOIN')
    tail = []
    vm = VM(e)
    lg = VM(e, 'lgkmcnt')

    def st2(text):
        vm.issue(text)
        if cfg.dual:
            sl, bk = p.label('SL'), p.label('SB')
            e(f's_cmp_lg_u32 {sSLOW}, 0')
            e(f's_cbranch_scc1 {sl}')
            e(f'{bk}:')
            tail.extend([f'{sl}:', text + ' sc1', f's_branch {bk}'])

    def side(text):
        if 'store' in text:
            st2(text)
        else:
            vm.issue(text)

    def chunk_txt(k, fl):
        off = slots[k] * 1024
        so = sMEM if off < 4096 else sMEM2
        return f'buffer_load_dwordx4 {memA[4 * k:4 * k + 4]}, {vL16}, {sWS}, {so} offen offset:{off & 4095} {fl}'

    def chunk_load(k):
        vm.issue(chunk_txt(k, '' if k >= cfg.nsc else 'sc1'), ('c', k))

    def stg_read(k):
        o = []
        for i, t in enumerate(lds_tiles):
            r = stg[16 * i + 8 * (k & 1):16 * i + 8 * (k & 1) + 8]
            o.append(f'ds_read_b128 {r[0:4]}, {vWL} offset:{lds_rel[t] + k * 2048}')
            o.append(f'ds_read_b128 {r[4:8]}, {vWL} offset:{lds_rel[t] + k * 2048 + 1024}')
        return o

    def wfrag(t, k):
        if t in lds_tiles:
            i = lds_tiles.index(t)
            return stg[16 * i + 8 * (k & 1):16 * i + 8 * (k & 1) + 8]
        return frag[(t, k)]

    def smf_txt(t, k):
        return f'v_smfmac_f32_16x16x64_bf16 {Tacc[4 * t:4 * t + 4]}, {memA[4 * k:4 * k + 4]}, {wfrag(t, k)}, {vIdx}'

    def smf(t, k):
        e(smf_txt(t, k))

    def slot_calc():
        e(f"""s_lshl_b32 {sMEM}, {sSTEP}, 13
        s_add_u32 {sMEM}, {sMEM}, {WS_MEMR}
        s_add_u32 {sMEM2}, {sMEM}, 4096""")

    clampn = lambda d, s_: f's_and_b32 {d}, {s_}, 1' if cfg.fake else f's_min_u32 {d}, {s_}, 63'
    sal = [f's_add_u32 {sSTEP1}, {sSTEP}, 1', f's_mov_b64 {sCHK}, -1', f'v_mov_b32 {vStep}, {sSTEP1}',
           f's_and_b32 {sT0}, {sSTEP}, 3', f's_lshl_b32 {sP}, {sT0}, 14']
    if qk:
        sal += [f's_add_u32 {sP}, {sP}, {WS_PR}', f's_xor_b32 {sPRST}, {sP}, {2 << 14}', clampn(sT3, sSTEP1)] + xs_bases(sT3)
        if toucher:
            sal += [f's_add_u32 {sT3}, {sSTEP}, {cfg.pf}', clampn(sT3, sT3), f's_mul_i32 {sYXS}, {sT3}, {28 * 16384}',
                    f's_add_u32 {sYXS}, {sYXS}, {sYX}']
    else:
        sal += [f's_add_u32 {sPRST}, {sP}, {WS_PR + 2048 + 2048 * w}', f's_add_u32 {sP}, {sP}, {WS_PR + 512 * w}',
                f's_add_u32 {sMEMW}, {sMEM}, 8192', f's_add_u32 {sMEMRST}, {sMEM}, 16384',
                clampn(sT3, sSTEP), f's_mul_i32 {sYXS}, {sT3}, {28 * 16384}', f's_add_u32 {sYXS}, {sYXS}, {sYX}',
                f's_add_u32 {sYXS2}, {sYXS}, 16384']
    assert (WS_PR & (3 << 14)) == 0
    zero_all = [f'v_mov_b32 {Tacc[i]}, 0' for i in range(4 * NT)]
    if qk:
        zero_all += [f'v_mov_b32 {Sx[i]}, 0' for i in range(8)]
    for l in zero_all:
        e(l)
    zq = list(zero_all)

    def fz(n):
        for _ in range(n):
            if zq:
                e(zq.pop(0))

    def poll_loop(nd):
        PL, GO = p.label('PL'), p.label('GO')
        pl = lambda i: f'buffer_load_dword {Fp[i]}, {vFo}, {sWS}, {sFLG} offen sc1'
        for i in range(nd):
            e(pl(i))
            if i < nd - 1:
                nops(e, cfg.pspace * cfg.pdepth // nd)
        e(f'{PL}:')
        for i in range(nd):
            e(f"""s_waitcnt vmcnt({nd - 1})
            v_cmp_gt_u32 vcc, {sSTEP1}, {Fp[i]}
            {pl(i)}
            s_cbranch_vccz {GO}""")
        e(f"""s_sub_u32 {sTO}, {sTO}, 1
        s_cmp_gt_i32 {sTO}, 0
        s_cbranch_scc1 {PL}
        {GO}:""")

    slot_calc()
    e(f'{LOOP}:')
    stamp(p, cfg, 0)
    nops(e, cfg.delay if qk else cfg.vdelay)
    fill = stg_read(0) + stg_read(1) + sal
    per = (len(fill) + AH - 2) // (AH - 1)
    for k in range(AH):
        chunk_load(k)
        if k < AH - 1:
            part = fill[k * per:(k + 1) * per]
            for l in part:
                if l.startswith('ds_'):
                    lg.issue(l)
                else:
                    e(l)
            nops(e, cfg.gap - len(part))
    for i, t in enumerate(lds_tiles):
        lg.tag[('s', 0, t)] = lg.n - 4 * len(lds_tiles) + 2 * (i + 1)
        lg.tag[('s', 1, t)] = lg.n - 2 * len(lds_tiles) + 2 * (i + 1)
    stamp(p, cfg, 1)

    def retry(k):
        RT, BK = p.label('RT'), p.label('BK')
        t = [f'{RT}:', f's_add_u32 {sCNT[3]}, {sCNT[3]}, 1'] + [chunk_txt(kk, 'sc1') for kk in range(k, min(7, k + 2))]
        t += [f's_sub_u32 {sTO}, {sTO}, 1', f's_cmp_gt_i32 {sTO}, 0', f's_cbranch_scc0 {END}']
        if k == 0:
            t += zero_all[:12]
        t += ['s_waitcnt vmcnt(0)', f'v_cmp_eq_u32 vcc, -1, {memA[4 * k]}', f's_cbranch_vccnz {RT}']
        if k == 0:
            t += [smf_txt(0, 0), smf_txt(1, 0), smf_txt(2, 0)]
        t += [f's_branch {BK}']
        tail.extend(t)
        e(f's_cbranch_vccnz {RT}')
        e(f'{BK}:')

    vm.wait(('c', 0))
    stamp(p, cfg, 9)
    nslot = 0
    for k in range(7):
        sr = stg_read(k + 1) if 1 <= k <= 5 else []
        for t in range(NR):
            smf(t, k)
            used = 0
            if k == 0 and t == 2:
                retry(0)
            if t == NR - 1 and k < 6:
                retry(k + 1)
                used = 1
            if t == 0 and k + AH < 7:
                chunk_load(k + AH)
                used = 1
            elif k + AH >= 7 and nslot % 3 == 0 and winA and not used:
                side(winA.pop(0))
                used = 1
            if k + AH >= 7:
                nslot += 1
            if sr and (not used or (len(sr) > NR - 1 - t)):
                lg.issue(sr.pop(0), ('s', k + 1, lds_tiles[len(lds_tiles) - 1 - len(sr) // 2]))
            if t + 1 in lds_tiles:
                lg.wait(('s', k, t + 1))
            if k == 0 and t == 0:
                e(f'v_cmp_eq_u32 vcc, -1, {memA[0]}')
            if t == NR - 3 and k < 6:
                vm.wait(('c', k + 1))
                e(f'v_cmp_eq_u32 vcc, -1, {memA[4 * k + 4]}')
        assert not sr
    tail += [f'{FAIL}:', f's_add_u32 {sCNT[0]}, {sCNT[0]}, 1', f's_mov_b64 {sCHK}, 0', f'{FAIL}b:']
    tail += [chunk_txt(k, 'sc1') for k in range(7)]
    tail += [f's_sub_u32 {sTO}, {sTO}, 1', f's_cmp_gt_i32 {sTO}, 0', f's_cbranch_scc0 {END}']
    tail += zero_all[:4 * NT] + stg_read(0) + stg_read(1) + ['s_waitcnt vmcnt(0)']
    tail += [f'v_max3_u32 {vt[0]}, {memA[0]}, {memA[1]}, {memA[2]}']
    for i in range(3, 27, 2):
        tail += [f'v_max3_u32 {vt[0]}, {vt[0]}, {memA[i]}, {memA[i + 1]}']
    tail += [f'v_max_u32 {vt[0]}, {vt[0]}, {memA[27]}', f'v_cmp_eq_u32 vcc, -1, {vt[0]}', f's_cbranch_vccnz {FAIL}b']
    nl = 2 * len(lds_tiles)
    for k in range(7):
        tail += [f's_waitcnt lgkmcnt({nl if k < 6 else 0})'] + [smf_txt(t, k) for t in range(NR)]
        if k < 5:
            tail += stg_read(k + 2)
    tail += ['s_nop 7', f's_branch {JOIN}']
    e(f'{JOIN}:')
    stamp(p, cfg, 2)

    def check_branch():
        e(f's_and_b64 vcc, vcc, {sCHK}')
        e(f's_cbranch_scc1 {FAIL}')

    if qk:
        assert not winA

        def cv(t, i):
            a = Tacc[4 * t:4 * t + 4]
            if t == 6:
                dst = Alast[2 * (QK_TILES[w][6][1] & 1) + i]
            else:
                dst = Tacc[4 * (t & ~1) + 2 * (t & 1) + i]
            e(f'v_cvt_pk_bf16_f32 {dst}, {a[2 * i]}, {a[2 * i + 1]}')

        def ident(pair, hi):
            src = Alast if pair == 3 else Tacc[8 * pair:8 * pair + 4]
            e(f'v_mfma_f32_16x16x32_bf16 {Did[4 * hi:4 * hi + 4]}, {src}, {Idn}, 0')

        def cv2(hi, i):
            d = Did[4 * hi:4 * hi + 4]
            e(f'v_cvt_pk_bf16_f32 {AS[2 * hi + i]}, {d[2 * i]}, {d[2 * i + 1]}')

        def sx(st, kt):
            e(f'v_smfmac_f32_16x16x64_bf16 {Sx[4 * kt:4 * kt + 4]}, {AS}, {xsB[16 * st + 8 * kt:16 * st + 8 * kt + 8]}, {vIdx}')

        def sm(st):
            b = Mx if (w == 3 and st == 1) else memA[4 * st:4 * st + 4]
            e(f'v_mfma_f32_16x16x32_bf16 {Sm}, {AS}, {b}, {0 if st == 0 else Sm}')

        def flag(pos):
            if cfg.flagpos == pos and w == 1:
                st2(f'buffer_store_dword {vStep}, {vFs}, {sWS}, {sFLG} offen')
                stamp(p, cfg, 8)

        if w == 3:
            zq[0:0] = [f'v_cndmask_b32 {Mx[0]}, {memA[8]}, {memA[4]}, {sV0}',
                       f'v_cndmask_b32 {Mx[1]}, {memA[9]}, {memA[5]}, {sV0}',
                       f'v_mov_b32 {Mx[2]}, {memA[14]}', f'v_mov_b32 {Mx[3]}, {memA[15]}']
        fh = QK_TILES[w][4][1] >> 1
        smf(5, 0); e('s_nop 1'); cv(0, 0)
        smf(5, 1); cv(0, 1)
        smf(5, 2); cv(1, 0)
        smf(5, 3); cv(1, 1)
        smf(5, 4); cv(2, 0)
        smf(5, 5); cv(2, 1)
        ident(0, 0); cv(3, 0); cv(3, 1)
        smf(5, 6); cv(4, 0)
        ident(1, 1); cv(4, 1)
        smf(6, 0); e('s_nop 0'); e(f'v_cmp_u_f32 vcc, {Did[0]}, {Did[1]}')
        smf(6, 1); cv2(0, 0)
        smf(6, 2); cv2(0, 1)
        smf(6, 3); check_branch()
        smf(6, 4); cv(5, 0)
        smf(6, 5); cv(5, 1)
        smf(6, 6); cv2(1, 0)
        cv2(1, 1)
        fz(2)
        xq = xs_loads()

        def xl():
            vm.issue(xq.pop(0))
        sx(0, 0); fz(1)
        ident(2, fh); xl()
        cv(6, 0); cv(6, 1)
        sx(0, 1); xl()
        ident(3, 1 - fh)
        sm(0)
        xl()
        fz(1)
        cv2(fh, 0); cv2(fh, 1)
        xl()
        fz(2)
        cv2(1 - fh, 0); cv2(1 - fh, 1)
        fz(2)
        sx(1, 0)
        sx(1, 1)
        sm(1)
        flag(-3)
        stamp(p, cfg, 3)
        xl()
        fz(1)
        xl()
        fz(2)
        e(f"""v_add_f32 {Sx[0]}, {Sx[0]}, {Sx[2]}
        v_add_f32 {Sx[1]}, {Sx[1]}, {Sx[3]}
        ds_write2_b32 {vSW}, {Sx[0]}, {Sx[1]} offset0:0 offset1:40
        v_add_f32 {Sx[4]}, {Sx[4]}, {Sx[6]}
        v_add_f32 {Sx[5]}, {Sx[5]}, {Sx[7]}
        ds_write2_b32 {vSW}, {Sx[4]}, {Sx[5]} offset0:4 offset1:44
        v_add_f32_dpp {Sm[0]}, {Sm[2]}, {Sm[0]} quad_perm:[2,3,0,1] row_mask:0xf bank_mask:0xf
        v_add_f32_dpp {Sm[1]}, {Sm[3]}, {Sm[1]} quad_perm:[2,3,0,1] row_mask:0xf bank_mask:0xf
        ds_write2_b32 {vSW2}, {Sm[0]}, {Sm[1]} offset0:0 offset1:40""")
        flag(-2)
        fz(1); xl(); fz(2); xl(); fz(cfg.fz1 - 8)
        flag(-1)
        fz(1)
        assert not xq and len(zq) >= 8
        e("""s_waitcnt lgkmcnt(0)
        s_barrier""")
        stamp(p, cfg, 4)
        dpps = ['quad_perm:[1,0,3,2]', 'quad_perm:[2,3,0,1]', 'row_half_mirror', 'row_mirror']
        x, y = vt[0], vt[1]
        r = R('v', memA.base, 8)
        for i in range(4):
            e(f'ds_read_b64 {r[2 * i:2 * i + 2]}, {vSR} offset:{1296 * i}')
            if i % 2 == 0:
                fz(1)
        fz(1)
        flag(0)
        fz(cfg.fz2 - 3)
        flag(1)
        fz(1)
        e(f"""s_waitcnt lgkmcnt(2)
        v_add_f32 {r[0]}, {r[0]}, {r[2]}
        v_add_f32 {r[1]}, {r[1]}, {r[3]}
        s_waitcnt lgkmcnt(0)
        v_add_f32 {r[4]}, {r[4]}, {r[6]}
        v_add_f32 {r[5]}, {r[5]}, {r[7]}
        v_add_f32 {r[0]}, {r[0]}, {r[4]}
        v_add_f32 {r[1]}, {r[1]}, {r[5]}""")

        def allred(op):
            for i, d in enumerate(dpps):
                if op == 'max' and cfg.flagpos == 2 + i and w == 1:
                    flag(2 + i)
                else:
                    fz(2)
                e(f'v_{op}_f32_dpp {x}, {x}, {x} {d} row_mask:0xf bank_mask:0xf')
            e(f"""v_mov_b32 {y}, {x}
            v_permlane16_swap_b32 {x}, {y}
            v_{op}_f32 {x}, {x}, {y}""")
        e(f'v_max_f32 {x}, {r[0]}, {r[1]}')
        allred('max')
        e(f"""v_sub_f32 {r[0]}, {r[0]}, {x}
        v_sub_f32 {r[1]}, {r[1]}, {x}
        v_exp_f32 {r[0]}, {r[0]}
        v_exp_f32 {r[1]}, {r[1]}
        v_add_f32 {x}, {r[0]}, {r[1]}""")
        allred('add')
        e(f"""v_rcp_f32 {x}, {x}
        v_mul_f32 {r[0]}, {r[0]}, {x}
        v_mul_f32 {r[1]}, {r[1]}, {x}
        v_cvt_pk_bf16_f32 {y}, {r[0]}, {r[1]}""")
        st2(f'buffer_store_dword {y}, {vPo}, {sWS}, {sP} offen')
        stamp(p, cfg, 5)
        fz(40)
        e(f's_add_u32 {sSTEP}, {sSTEP}, 1')
        slot_calc()
        if poller:
            e('s_waitcnt vmcnt(0)')
            stamp(p, cfg, 6)
            poll_loop(cfg.pdepth)
        stamp(p, cfg, 7)
        e('s_barrier')
    else:
        while winA:
            side(winA.pop(0))
        for t in range(8):
            a = Tacc[4 * t:4 * t + 4]
            e(f'v_add_f32 {a[0]}, {a[0]}, {a[2]}')
            e(f'v_add_f32 {a[1]}, {a[1]}, {a[3]}')
            if t == 0:
                e(f'v_cmp_u_f32 vcc, {a[0]}, {a[1]}')
            e(f'v_cvt_pk_bf16_f32 {Ym[t]}, {a[0]}, {a[1]}')
            if t == 2:
                check_branch()
        stamp(p, cfg, 3)
        e(f's_mov_b64 {sCHK}, -1')
        fz(32)
        zf = [f'v_mov_b32 {Facc[i]}, 0' for i in range(8)]
        for l in zf:
            e(l)
        e(f's_add_u32 {sSTEP}, {sSTEP}, 1')
        slot_calc()
        if w == 0:
            poll_loop(cfg.pdepth)
            stamp(p, cfg, 5)
            nops(e, cfg.pdelay)
        e('s_barrier')
        stamp(p, cfg, 6)
        PR, PB, PD = p.label('PR'), p.label('PB'), p.label('PD')
        pl = [f'buffer_load_dwordx2 {PM}, {vL8}, {sWS}, {sP} offen sc1',
              f'buffer_load_dwordx4 {PX[0:4]}, {vL16}, {sWS}, {sPRST} offen sc1',
              f'buffer_load_dwordx4 {PX[4:8]}, {vL16}, {sWS}, {sPRST} offen offset:1024 sc1']
        for i, l in enumerate(pl):
            vm.issue(l, ('p', i))

        def flag2(pos):
            if cfg.f2pos == pos and w == 3:
                st2(f'buffer_store_dword {vStep}, {vFs}, {sWS}, {sFLG} offen')
                stamp(p, cfg, 8)
        flag2(0)
        if cfg.f2pos > 10 and w == 3:
            nops(e, cfg.f2pos - 10)
            flag2(cfg.f2pos)
        fm = []
        for tt in range(2):
            fm.append(f'v_smfmac_f32_16x16x32_bf16 {Facc[4 * tt:4 * tt + 4]}, {PM}, {Ym[4 * tt:4 * tt + 4]}, {vIdx}')
        for q in range(2):
            for tt in range(2):
                fm.append(f'v_smfmac_f32_16x16x64_bf16 {Facc[4 * tt:4 * tt + 4]}, {PX[4 * q:4 * q + 4]}, '
                          f'{YX[16 * tt + 8 * q:16 * tt + 8 * q + 8]}, {vIdx}')
        for i in range(3):
            vm.wait(('p', i))
            if i == 0:
                stamp(p, cfg, 4)
            e(fm[2 * i])
            if i == 0:
                flag2(1)
            e(fm[2 * i + 1])
        e(f'{PB}:')
        for i in range(6):
            e(f'v_mov_b32 {vt[4]}, 0')
        e(f"""v_add_f32 {Facc[0]}, {Facc[0]}, {Facc[2]}
        v_add_f32 {Facc[1]}, {Facc[1]}, {Facc[3]}
        ds_write2_b32 {vRW}, {Facc[0]}, {Facc[1]} offset0:0 offset1:16
        v_add_f32 {Facc[4]}, {Facc[4]}, {Facc[6]}
        v_add_f32 {Facc[5]}, {Facc[5]}, {Facc[7]}
        ds_write2_b32 {vRW}, {Facc[4]}, {Facc[5]} offset0:128 offset1:144
        v_cmp_u_f32 vcc, {Facc[0]}, {Facc[1]}""")
        for i in range(4 if w < 2 else 0):
            e(f'v_mov_b32 {vt[4]}, 0')
        e(f"""s_and_b64 vcc, vcc, {sCHK}
        s_cbranch_scc1 {PR}
        {PD}:""")
        flag2(2)
        tail += [f'{PR}:', f's_add_u32 {sCNT[1]}, {sCNT[1]}, 1', f's_mov_b64 {sCHK}, 0'] + pl
        tail += [f's_sub_u32 {sTO}, {sTO}, 1', f's_cmp_gt_i32 {sTO}, 0', f's_cbranch_scc0 {PD}', 's_waitcnt lgkmcnt(0)'] + zf
        tail += ['s_waitcnt vmcnt(0)', f'v_max3_u32 {vt[0]}, {PM[0]}, {PM[1]}, {PX[0]}']
        for i in (1, 3, 5):
            tail += [f'v_max3_u32 {vt[0]}, {vt[0]}, {PX[i]}, {PX[i + 1]}']
        tail += [f'v_max_u32 {vt[0]}, {vt[0]}, {PX[7]}', f'v_cmp_eq_u32 vcc, -1, {vt[0]}', f's_cbranch_vccnz {PR}']
        tail += fm + [f's_branch {PB}']
        if w < 2:
            e(f'v_mov_b32 {vt[4]}, 0')
        e("""s_waitcnt lgkmcnt(0)
        s_barrier""")
        flag2(3)
        if w < 2:
            r = stg
            for i in range(4):
                e(f'ds_read_b64 {r[2 * i:2 * i + 2]}, {vRR} offset:{RS * i}')
                if i % 2 == 0:
                    e(f'v_mov_b32 {vt[4]}, 0')
            for i in range(8):
                e(f'v_mov_b32 {vt[4]}, 0')
            e(f"""s_waitcnt lgkmcnt(2)
            v_add_f32 {r[0]}, {r[0]}, {r[2]}
            v_add_f32 {r[1]}, {r[1]}, {r[3]}
            s_waitcnt lgkmcnt(0)
            v_add_f32 {r[4]}, {r[4]}, {r[6]}
            v_add_f32 {r[5]}, {r[5]}, {r[7]}
            v_add_f32 {r[0]}, {r[0]}, {r[4]}
            v_add_f32 {r[1]}, {r[1]}, {r[5]}
            v_cvt_pk_bf16_f32 {vt[0]}, {r[0]}, {r[1]}""")
            st2(f'buffer_store_dword {vt[0]}, {vMr}, {sWS}, {sMEMW} offen')
        if w == 2:
            poll_loop(cfg.vdepth)
        stamp(p, cfg, 7)
        e('s_barrier')
    assert not zq
    e(f"""s_cmp_lt_u32 {sSTEP}, {cfg.nsteps}
    s_cbranch_scc1 {LOOP}
    {END}:""")
    epilogue(p, w, cfg, vt)
    for l in tail:
        e(l)


HEADER = '''; generated
; @launch grid=(256,1,1) block=(256,1,1) lds=%d
.amdgcn_target "amdgcn-amd-amdhsa--gfx950"
.text
.globl %s
.p2align 8
.type %s,@function
'''
FOOTER = '''.section .rodata,"a"
.p2align 6
.amdhsa_kernel %s
  .amdhsa_next_free_vgpr 512
  .amdhsa_next_free_sgpr 102
  .amdhsa_accum_offset 256
  .amdhsa_group_segment_fixed_size 0
  .amdhsa_kernarg_size 120
  .amdhsa_user_sgpr_count 2
  .amdhsa_user_sgpr_kernarg_segment_ptr 1
  .amdhsa_system_sgpr_workgroup_id_x 1
.end_amdhsa_kernel
'''


def wave_dispatch(e, nm):
    e(f'''s_cmp_eq_u32 {sWAVE}, 0
    s_cbranch_scc1 {nm}0
    s_cmp_eq_u32 {sWAVE}, 1
    s_cbranch_scc1 {nm}1
    s_cmp_eq_u32 {sWAVE}, 2
    s_cbranch_scc1 {nm}2
    s_branch {nm}3''')


def standalone(cfg, name='team_kernel'):
    p = Prog()
    e = p.e
    e(f'{name}:')
    e(f'''s_and_b32 s3, s2, 7
    s_cmp_lg_u32 s3, 0
    s_cbranch_scc1 EXIT
    s_cmp_ge_u32 s2, 256
    s_cbranch_scc1 EXIT
    s_lshr_b32 {sIDX}, s2, 3
    s_load_dwordx2 s[4:5], s[0:1], 112
    s_load_dwordx2 s[12:13], s[0:1], 104
    s_load_dwordx2 s[16:17], s[0:1], 8
    v_lshrrev_b32 v1, 6, v0
    v_readfirstlane_b32 {sWAVE}, v1
    s_mov_b32 s6, {WS_BYTES}
    s_mov_b32 s7, 0x20000
    s_mov_b32 s14, 256
    s_mov_b32 s15, 0x20000
    s_mov_b32 s18, 7168
    s_mov_b32 s19, 0x20000
    s_and_b32 {sH}, {sIDX}, 15''')
    for i in range(NSTAMP):
        e(f's_mov_b32 s{STAMP0 + 2 * i}, 0')
    e(f'''s_waitcnt lgkmcnt(0)
    s_cmp_ge_u32 {sIDX}, 16
    s_cbranch_scc1 ROLE_VO''')
    wave_dispatch(e, 'QK')
    e(f'''ROLE_VO:
    s_cmp_ge_u32 {sH}, 14
    s_cbranch_scc1 ROLE_EN''')
    wave_dispatch(e, 'VO')
    e('ROLE_EN:')
    wave_dispatch(e, 'EN')
    e('EXIT:\ns_endpgm')
    for role, nm in ((0, 'QK'), (1, 'VO'), (2, 'EN')):
        for w in range(4):
            e(f'{nm}{w}:')
            team_wave(p, role, w, cfg)
    return HEADER % (L_END, name, name) + p.text() + FOOTER % name


if __name__ == '__main__':
    import sys
    cfg = Cfg()
    for a in sys.argv[2:]:
        k, v = a.split('=')
        assert hasattr(cfg, k), k
        setattr(cfg, k, int(v) if not isinstance(getattr(cfg, k), str) else v)
    open(sys.argv[1], 'w').write(standalone(cfg))
```

```python
from asmlib import *
from layout import *
from prep import srd

sWS = 's[4:7]'
sW = 's9'
sTO = 's38'
sCN = 's39'
TIMEOUT = 400000
OOB = 0x40000000
NRY = 3


def wait_ge(p, vaddr, vtmp, val, sleep=4):
    e = p.e
    L, D = p.label('WT'), p.label('WD')
    e(f'''{L}:
    buffer_load_dword {vtmp}, {vaddr}, {sWS}, {sCN} offen sc1
    s_sub_u32 {sTO}, {sTO}, 1
    s_cmp_gt_i32 {sTO}, 0
    s_cbranch_scc0 {D}
    s_waitcnt vmcnt(0)
    v_cmp_gt_u32 vcc, {val}, {vtmp}
    s_cbranch_vccz {D}
    s_sleep {sleep}
    s_branch {L}
    {D}:''')


def signal(p, vaddr, vtmp):
    e = p.e
    L = p.label('SG')
    e(f'''s_waitcnt vmcnt(0) lgkmcnt(0)
    s_barrier
    s_cmp_lg_u32 {sW}, 0
    s_cbranch_scc1 {L}
    v_mov_b32 {vtmp}, 1
    s_mov_b64 exec, 1
    buffer_atomic_add {vtmp}, {vaddr}, {sWS}, {sCN} offen
    s_mov_b64 exec, -1
    {L}:''')


def yt_worker(p, kind):
    e = p.e
    isY = kind == 0
    V = Alloc('v', 1, 256)
    A = Alloc('a', 0, 256)
    vL, vG, vC, t0, t1, t2, vL16, vL128, vCA = (V.get() for _ in range(9))
    x1, x2 = V.get(), V.get()
    if not isY:
        Sx = V.get(8, 4)
        Sm = V.get(8, 4)
    else:
        vIdx = V.get()
    buf = V.get(32, 4)
    acc = V.get(56, 4)
    frag = {}
    for t in range(7):
        for k in range(7):
            frag[(t, k)] = A.get(8, 4) if A.left() >= 8 else V.get(8, 4)
    sS, sX, sXN, sO, sA, sB = 's12', 's13', 's14', 's15', 's16', 's17'
    e(f'''v_and_b32 {vL}, 63, v0
    v_lshrrev_b32 {vG}, 4, {vL}
    v_and_b32 {vC}, 15, {vL}
    v_lshlrev_b32 {vL16}, 4, {vL}
    v_lshlrev_b32 {vL128}, 7, {vL}
    s_mov_b32 {sTO}, {TIMEOUT}
    s_mov_b32 {sCN}, {WS_CNT}
    s_mov_b32 {sS}, s11
    s_lshl_b32 {sX}, {sS}, 15
    s_add_u32 {sX}, {sX}, {WS_XNB}''')

    def a_load(q, base):
        e(f's_add_u32 {sA}, {base}, {xnb_blk(q) * 4096}')
        for i in range(4):
            e(f'buffer_load_dwordx4 {buf[16 * (q & 1) + 4 * i:16 * (q & 1) + 4 * i + 4]}, {vL16}, {sWS}, {sA} offen offset:{i * 1024} sc1')
    a_load(1, sX)
    a_load(0, sX)
    e(f'''s_mul_i32 {sB}, s10, 28
    s_mul_i32 {sA}, {sW}, 7
    s_add_u32 {sB}, {sB}, {sA}
    s_mul_i32 {sB}, {sB}, 14336
    s_add_u32 {sB}, {sB}, {WS_WVO if isY else WS_WQK}''')
    n_out = 0
    for k in range(7):
        for t in range(7):
            f = frag[(t, k)]
            e(f'''s_add_u32 {sA}, {sB}, {(t * 7 + k) * 2048}
            buffer_load_dwordx4 {f[0:4]}, {vL16}, {sWS}, {sA} offen sc1
            buffer_load_dwordx4 {f[4:8]}, {vL16}, {sWS}, {sA} offen offset:1024 sc1''')
            n_out += 2
            if n_out >= 48:
                e('s_waitcnt vmcnt(24)')
                n_out = 24
    if isY:
        e(f'''v_bfe_u32 {t0}, {vC}, 1, 1
        v_mul_u32_u24 {vIdx}, 0xaaaa, {t0}
        v_add_u32 {vIdx}, 0x4444, {vIdx}
        v_lshlrev_b32 {t0}, 12, {vG}
        v_lshl_add_u32 {t0}, {vC}, 4, {t0}
        s_mul_i32 {sA}, {sW}, {7 * 4096}
        s_lshl_b32 {sB}, s10, 8
        s_add_u32 {sA}, {sA}, {sB}
        v_add_u32 {x1}, {sA}, {t0}
        v_add_u32 {t0}, {4 * 4096}, {x1}
        v_mov_b32 {t1}, {OOB}
        v_cmp_gt_u32 vcc, 3, {vG}
        v_cndmask_b32 {x2}, {t1}, {t0}, vcc''')
    else:
        for i, x in enumerate((x1, x2)):
            e(f'''s_mul_i32 {sA}, {sW}, 7
            s_add_u32 {sA}, {sA}, {i}
            s_lshr_b32 {sB}, {sA}, 1
            s_lshl_b32 {sB}, {sB}, 10
            s_and_b32 {sA}, {sA}, 1
            s_lshl_b32 {sA}, {sA}, 3
            s_add_u32 {sA}, {sA}, {sB}
            v_add_u32 {x}, {sA}, {vL16}''')
        e(f'''s_and_b32 {sA}, {sW}, 1
        s_lshl_b32 {sA}, {sA}, 4
        v_add_u32 {t0}, {sA}, {vC}
        v_lshlrev_b32 {t1}, 2, {vG}''')
        for i in range(8):
            e(f'''v_add_u32 {t2}, {16 * (i >> 2) + (i & 3)}, {t1}
            v_cmp_le_u32 s[{40 + 2 * i}:{41 + 2 * i}], {t2}, {t0}''')
    e('s_waitcnt vmcnt(0)')
    JOB, DONE = p.label('JOB'), p.label('JD')
    e(f'''{JOB}:
    s_add_u32 {sXN}, {sS}, {NRY}
    s_min_u32 {sXN}, {sXN}, 63
    s_lshl_b32 {sXN}, {sXN}, 15
    s_add_u32 {sXN}, {sXN}, {WS_XNB}''')
    for q in range(7):
        if q == 0:
            e('s_waitcnt vmcnt(0)')
            e(f'''s_lshl_b32 {sA}, {sW}, 13
            s_add_u32 {sA}, {sA}, {sXN}
            buffer_load_dword {t2}, {vL128}, {sWS}, {sA} offen sc1''')
        elif q >= 2:
            e(f's_waitcnt vmcnt({4 if q < 6 else 0})')
        if q == 6:
            a_load(1, sXN)
        n = 0
        for rh in range(2):
            for t in range(7):
                for kt in range(2):
                    d = acc[8 * t + 4 * kt:8 * t + 4 * kt + 4]
                    xa = buf[16 * (q & 1) + 8 * kt + 4 * rh:16 * (q & 1) + 8 * kt + 4 * rh + 4]
                    wf = frag[(t, q)][4 * rh:4 * rh + 4]
                    c = 0 if (q == 0 and rh == 0) else d
                    if isY:
                        e(f'v_mfma_f32_16x16x32_bf16 {d}, {xa}, {wf}, {c}')
                    else:
                        e(f'v_mfma_f32_16x16x32_bf16 {d}, {wf}, {xa}, {c}')
        if q + 2 < 7:
            a_load(q + 2, sX)
    if isY:
        a_load(0, sXN)
        e(f'''s_mul_i32 {sO}, {sS}, {28 * 16384}
        s_mul_i32 {sA}, {sW}, {7 * 16384}
        s_add_u32 {sO}, {sO}, {sA}
        s_lshl_b32 {sA}, s10, 10
        s_add_u32 {sO}, {sO}, {sA}
        s_add_u32 {sO}, {sO}, {WS_YX}''')
        for t in range(7):
            a = acc[8 * t:8 * t + 8]
            for i in range(4):
                e(f'v_cvt_pk_bf16_f32 {a[i]}, {a[2 * i]}, {a[2 * i + 1]}')
            e(f'''buffer_store_dwordx4 {a[0:4]}, {vL16}, {sWS}, {sO} offen sc1
            s_add_u32 {sO}, {sO}, 16384''')
        e(f'''s_lshl_b32 {sA}, {sS}, 2
        v_mov_b32 {vCA}, {sA}''')
        signal(p, vCA, t0)
        e(f'''s_mov_b32 {sX}, {sXN}
        s_add_u32 {sS}, {sS}, {NRY}
        s_cmp_lt_u32 {sS}, 64
        s_cbranch_scc1 {JOB}''')
        MJ = p.label('MJ')
        e(f'''s_mov_b32 {sS}, s11
        {MJ}:''')
        for i in range(28):
            e(f'v_mov_b32 {acc[i]}, 0')
        e(f'''v_mov_b32 {vCA}, {C_MEM}
        s_add_u32 {sA}, {sS}, 1
        s_lshl_b32 {sB}, {sA}, 2''')
        wait_ge(p, vCA, t0, sB, 2)
        e(f'''s_lshl_b32 {sA}, {sS}, 13
        s_add_u32 {sA}, {sA}, {WS_MEMA}
        s_add_u32 {sB}, {sA}, 4096''')
        for k in range(7):
            e(f'buffer_load_dwordx4 {buf[4 * k:4 * k + 4]}, {vL16}, {sWS}, {sA if k < 4 else sB} offen offset:{(k & 3) * 1024} sc1')
        for k in range(7):
            e(f's_waitcnt vmcnt({6 - k})')
            for t in range(7):
                e(f'v_smfmac_f32_16x16x64_bf16 {acc[4 * t:4 * t + 4]}, {buf[4 * k:4 * k + 4]}, {frag[(t, k)]}, {vIdx}')
        o = acc[32:40]
        for t in range(7):
            a = acc[4 * t:4 * t + 4]
            e(f'''v_add_f32 {a[0]}, {a[0]}, {a[2]}
            v_add_f32 {a[1]}, {a[1]}, {a[3]}
            v_cvt_pk_bf16_f32 {o[t]}, {a[0]}, {a[1]}''')
        e(f'''v_mov_b32 {o[7]}, 0
        s_lshl_b32 {sO}, {sS}, 17
        s_add_u32 {sO}, {sO}, {WS_YMA}''')
        for b in (0, 4):
            e(f'''v_permlane32_swap_b32 {o[b]}, {o[b + 2]}
            v_permlane32_swap_b32 {o[b + 1]}, {o[b + 3]}
            v_permlane16_swap_b32 {o[b]}, {o[b + 1]}
            v_permlane16_swap_b32 {o[b + 2]}, {o[b + 3]}
            buffer_store_dwordx4 {o[b:b + 4]}, {x1 if b == 0 else x2}, {sWS}, {sO} offen sc1''')
        e(f'''s_lshl_b32 {sA}, {sS}, 7
        s_add_u32 {sA}, {sA}, {C_PY}
        v_mov_b32 {vCA}, {sA}''')
        signal(p, vCA, t0)
        e(f'''s_add_u32 {sS}, {sS}, {NRY}
        s_cmp_lt_u32 {sS}, 64
        s_cbranch_scc1 {MJ}
        s_endpgm''')
        return
    for t in range(7):
        for qt in range(2):
            a = acc[8 * t + 4 * qt:8 * t + 4 * qt + 4]
            e(f'''v_cvt_pk_bf16_f32 {a[0]}, {a[0]}, {a[1]}
            v_cvt_pk_bf16_f32 {a[1]}, {a[2]}, {a[3]}
            ds_write_b64 {x2 if (t & 1) else x1}, {a[0:2]} offset:{(t >> 1) * 1024 + qt * 14336}''')
    SK = p.label('TSK')
    e(f'''s_waitcnt vmcnt(0) lgkmcnt(0)
    s_barrier
    s_cmp_ge_u32 {sW}, 2
    s_cbranch_scc1 {SK}
    s_mul_i32 {sA}, {sW}, 14336
    v_add_u32 {t0}, {sA}, {vL16}''')
    for th in range(14):
        e(f'ds_read_b128 {acc[4 * th:4 * th + 4]}, {t0} offset:{th * 1024}')
    e(f'''s_lshl_b32 {sO}, {sS}, 15
    s_add_u32 {sO}, {sO}, {WS_XNA}''')
    items = [(kt, th) for kt in range(2) for th in range(14)]

    def xa_load(i):
        kt, th = items[i]
        if th % 4 == 0:
            e(f's_add_u32 {sA}, {sO}, {kt * 16384 + th * 1024}')
        e(f'buffer_load_dwordx4 {buf[4 * (i & 7):4 * (i & 7) + 4]}, {vL16}, {sWS}, {sA} offen offset:{(th & 3) * 1024} sc1')
    for i in range(8):
        xa_load(i)
    e('s_waitcnt lgkmcnt(0)')
    for i, (kt, th) in enumerate(items):
        e(f's_waitcnt vmcnt({min(7, 27 - i)})')
        d = Sx[4 * kt:4 * kt + 4]
        e(f'v_mfma_f32_16x16x32_bf16 {d}, {buf[4 * (i & 7):4 * (i & 7) + 4]}, {acc[4 * th:4 * th + 4]}, {0 if th == 0 else d}')
        if i + 8 < 28:
            xa_load(i + 8)
    e(f'v_mov_b32 {t1}, 0xff800000')
    for i in range(8):
        e(f'v_cndmask_b32 {Sx[i]}, {t1}, {Sx[i]}, s[{40 + 2 * i}:{41 + 2 * i}]')
    e(f'''v_mov_b32 {vCA}, {C_MEM}
    s_add_u32 {sA}, {sS}, 1
    s_lshl_b32 {sB}, {sA}, 2''')
    wait_ge(p, vCA, t0, sB, 2)
    e(f'''s_lshl_b32 {sA}, {sS}, 13
    s_add_u32 {sA}, {sA}, {WS_MEMA}
    s_add_u32 {sB}, {sA}, 4096''')
    for k in range(7):
        e(f'buffer_load_dwordx4 {buf[4 * k:4 * k + 4]}, {vL16}, {sWS}, {sA if k < 4 else sB} offen offset:{(k & 3) * 1024} sc1')
    for k in range(7):
        e(f's_waitcnt vmcnt({6 - k})')
        for v in range(2):
            d = Sm[4 * v:4 * v + 4]
            e(f'v_mfma_f32_16x16x32_bf16 {d}, {buf[4 * k:4 * k + 4]}, {acc[4 * (2 * k + v):4 * (2 * k + v) + 4]}, {0 if k == 0 else d}')
    vals = [Sx[i] for i in range(8)] + [Sm[0], Sm[1]]

    def allred(op):
        e(f'''v_mov_b32 {t1}, {t0}
        v_permlane16_swap_b32 {t0}, {t1}
        v_{op}_f32 {t0}, {t0}, {t1}
        v_mov_b32 {t1}, {t0}
        v_permlane32_swap_b32 {t0}, {t1}
        v_{op}_f32 {t0}, {t0}, {t1}''')
    e(f'''v_max3_f32 {t0}, {Sx[0]}, {Sx[1]}, {Sx[2]}
    v_max3_f32 {t0}, {t0}, {Sx[3]}, {Sx[4]}
    v_max3_f32 {t0}, {t0}, {Sx[5]}, {Sx[6]}
    v_max_f32 {t0}, {t0}, {Sx[7]}
    v_add_f32 {Sm[0]}, {Sm[0]}, {Sm[6]}
    v_add_f32 {Sm[1]}, {Sm[1]}, {Sm[7]}
    v_max3_f32 {t0}, {t0}, {Sm[0]}, {Sm[1]}''')
    allred('max')
    for v in vals:
        e(f'v_sub_f32 {v}, {v}, {t0}')
    for v in vals:
        e(f'v_exp_f32 {v}, {v}')
    e(f'v_add_f32 {t0}, {vals[0]}, {vals[1]}')
    for v in vals[2:]:
        e(f'v_add_f32 {t0}, {t0}, {v}')
    allred('add')
    e(f'v_rcp_f32 {t0}, {t0}')
    for v in vals:
        e(f'v_mul_f32 {v}, {v}, {t0}')
    for i in range(4):
        e(f'v_cvt_pk_bf16_f32 {Sx[i]}, {Sx[2 * i]}, {Sx[2 * i + 1]}')
    e(f'''v_cvt_pk_bf16_f32 {Sm[0]}, {Sm[0]}, {Sm[1]}
    s_lshl_b32 {sA}, {sS}, 1
    s_add_u32 {sA}, {sA}, {sW}
    s_lshl_b32 {sA}, {sA}, 4
    s_add_u32 {sA}, {sA}, s10            ; (s*2+qt)*16 + h
    s_lshl_b32 {sB}, {sA}, 10
    s_add_u32 {sB}, {sB}, {WS_PX}
    buffer_store_dwordx4 {Sx[0:4]}, {vL16}, {sWS}, {sB} offen sc1
    s_lshl_b32 {sB}, {sA}, 8
    s_add_u32 {sB}, {sB}, {WS_PM}
    v_lshlrev_b32 {t0}, 4, {vC}
    v_lshl_add_u32 {t0}, {vG}, 2, {t0}
    buffer_store_dword {Sm[0]}, {t0}, {sWS}, {sB} offen sc1''')
    a_load(1, sXN)
    e(f'{SK}:')
    a_load(0, sXN)
    e(f'''s_lshl_b32 {sA}, {sS}, 7
    s_add_u32 {sA}, {sA}, {C_PY}
    v_mov_b32 {vCA}, {sA}''')
    signal(p, vCA, t0)
    e(f'''s_mov_b32 {sX}, {sXN}
    s_add_u32 {sS}, {sS}, {NRY}
    s_cmp_lt_u32 {sS}, 64
    s_cbranch_scc1 {JOB}
    s_endpgm''')


def f_worker(p):
    e = p.e
    V = Alloc('v', 1, 256)
    vL, vG, vC, t0, t1, t2, vL16, vCA, vB1 = (V.get() for _ in range(9))
    vQ = [V.get() for _ in range(7)]
    vRo = [V.get() for _ in range(4)]
    vGo = [V.get() for _ in range(4)]
    H = V.get(8, 4)
    Bs = V.get(4, 4)
    acc = V.get(112, 4)
    XF = V.get(56, 4)
    PA = V.get(40, 4)
    sS, sXx, sA, sB, sC, sI, sF1, sF2 = 's12', 's13', 's14', 's15', 's32', 's33', 's34', 's35'
    rW1, rW2, rB1, rB2 = 's[16:19]', 's[20:23]', 's[24:27]', 's[28:31]'
    rX, rO = 's[40:43]', 's[44:47]'
    srd(e, 16, 64, 448 * 1792 * 2)
    srd(e, 20, 80, 448 * 1792 * 2)
    srd(e, 24, 72, 1792 * 2)
    srd(e, 28, 88, 448 * 2)
    srd(e, 40, 0, S * D * 2)
    srd(e, 44, 96, S * D * 2)
    e(f'''v_and_b32 {vL}, 63, v0
    v_lshrrev_b32 {vG}, 4, {vL}
    v_and_b32 {vC}, 15, {vL}
    v_lshlrev_b32 {vL16}, 4, {vL}
    v_lshlrev_b32 {vB1}, 3, {vG}
    s_mov_b32 {sTO}, {TIMEOUT}
    s_mov_b32 {sCN}, {WS_CNT}
    s_lshr_b32 {sS}, s10, 1
    s_and_b32 {sXx}, s10, 1''')
    for q in range(7):
        e(f'v_add_u32 {vQ[q]}, {q * 4096}, {vL16}')
    e(f'''v_mul_u32_u24 {t0}, {4 * 3584}, {vG}
    v_lshl_add_u32 {t0}, {vC}, 1, {t0}            ; w1 voffset
    v_mul_u32_u24 {t1}, {4 * 896}, {vG}
    v_and_b32 {t2}, 7, {vC}
    v_lshl_add_u32 {t1}, {t2}, 1, {t1}
    v_lshrrev_b32 {t2}, 3, {vC}
    v_lshl_add_u32 {t1}, {t2}, 6, {t1}            ; w2 voffset
    s_lshl_b32 {sI}, s10, 2
    s_add_u32 {sI}, {sI}, {sW}
    s_waitcnt lgkmcnt(0)''')
    C0 = p.label('CV')
    e(f'''{C0}:
    ; W1F id -> ft = id/14, rem = id%14 -> byte (64*chunk + 16*rh)*3584 + 32*ft
    s_mul_i32 {sA}, {sI}, 4682
    s_lshr_b32 {sA}, {sA}, 16
    s_mul_i32 {sB}, {sA}, 14
    s_sub_u32 {sB}, {sI}, {sB}
    s_lshl_b32 {sA}, {sA}, 5
    s_lshr_b32 {sC}, {sB}, 1
    s_mul_i32 {sC}, {sC}, {64 * 3584}
    s_add_u32 {sA}, {sA}, {sC}
    s_and_b32 {sB}, {sB}, 1
    s_mul_i32 {sB}, {sB}, {16 * 3584}
    s_add_u32 {sA}, {sA}, {sB}''')
    for el in range(8):
        rho, b = el >> 1, el & 1
        e(f'''s_add_u32 {sB}, {sA}, {(32 * (rho & 1) + 2 * (rho >> 1) + b) * 3584}
        buffer_load_ushort {acc[el]}, {t0}, {rW1}, {sB} offen''')
    e(f'''; W2F id -> F = id/28, j = id%28 -> byte 32F*896 + (64*(j>>2) + 8*(j&3))*2
    s_mul_i32 {sA}, {sI}, 2341
    s_lshr_b32 {sA}, {sA}, 16
    s_mul_i32 {sB}, {sA}, 28
    s_sub_u32 {sB}, {sI}, {sB}
    s_mul_i32 {sA}, {sA}, {32 * 896}
    s_lshr_b32 {sC}, {sB}, 2
    s_lshl_b32 {sC}, {sC}, 7
    s_add_u32 {sA}, {sA}, {sC}
    s_and_b32 {sB}, {sB}, 3
    s_lshl_b32 {sB}, {sB}, 4
    s_add_u32 {sA}, {sA}, {sB}
    s_add_u32 {sB}, {sA}, {16 * 896}''')
    for el in range(8):
        e(f'buffer_load_ushort {acc[8 + el]}, {t1}, {rW2}, {sA if el < 4 else sB} offen offset:{(el & 3) * 896}')
    e(f'''s_lshl_b32 {sA}, {sI}, 10
    s_add_u32 {sB}, {sA}, {WS_W2F}
    s_add_u32 {sA}, {sA}, {WS_W1F}
    s_waitcnt vmcnt(0)''')
    for i in range(8):
        e(f'v_lshl_or_b32 {acc[16 + i]}, {acc[2 * i + 1]}, 16, {acc[2 * i]}')
    e(f'''buffer_store_dwordx4 {acc[16:20]}, {vL16}, {sWS}, {sA} offen sc1
    buffer_store_dwordx4 {acc[20:24]}, {vL16}, {sWS}, {sB} offen sc1
    s_add_u32 {sI}, {sI}, 512
    s_cmp_lt_u32 {sI}, 1568
    s_cbranch_scc1 {C0}
    v_mov_b32 {vCA}, {C_WF}''')
    signal(p, vCA, t0)
    e(f'''s_lshl_b32 {sA}, {sS}, 15
    s_lshl_b32 {sB}, {sXx}, 11
    s_add_u32 {sA}, {sA}, {sB}
    s_add_u32 {sA}, {sA}, {WS_XNB}''')
    for k in range(7):
        for rh in range(2):
            e(f'buffer_load_dwordx4 {XF[8 * k + 4 * rh:8 * k + 4 * rh + 4]}, {vQ[xnb_blk(k)]}, {sWS}, {sA} offen offset:{rh * 1024} sc1')
    for i in range(112):
        e(f'v_mov_b32 {acc[i]}, 0')
    e(f's_mov_b32 {sA}, 128')
    wait_ge(p, vCA, t0, sA, 8)
    bA = R('a', 0, 112)
    bB = R('a', 112, 112)

    def blk_load(dst, so, i):
        return f'buffer_load_dwordx4 {dst[4 * i:4 * i + 4]}, {vQ[i >> 2]}, {sWS}, {so} offen offset:{(i & 3) * 1024} sc1'
    e(f'''s_mul_i32 {sF1}, {sW}, 28672
    s_add_u32 {sF2}, {sF1}, {WS_W2F}
    s_add_u32 {sF1}, {sF1}, {WS_W1F}
    s_lshl_b32 {sC}, {sW}, 6
    s_mov_b32 {sI}, 0''')
    for i in range(28):
        e(blk_load(bA, sF1, i))
    FL = p.label('FL')
    e(f'''{FL}:
    buffer_load_dwordx2 {Bs[0:2]}, {vB1}, {rB1}, {sC} offen
    buffer_load_dwordx2 {Bs[2:4]}, {vB1}, {rB1}, {sC} offen offset:32
    s_add_u32 {sF1}, {sF1}, {4 * 28672}''')
    for i in range(28):
        a, kk = i // 14, i % 14
        e(f's_waitcnt vmcnt({29})')
        d = H[4 * a:4 * a + 4]
        e(f'v_mfma_f32_16x16x32_bf16 {d}, {bA[4 * i:4 * i + 4]}, {XF[4 * kk:4 * kk + 4]}, {0 if kk == 0 else d}')
        e(blk_load(bB, sF2, i))
    e('s_waitcnt vmcnt(28)')
    for i in range(4):
        a, b = H[2 * i], H[2 * i + 1]
        e(f'''v_cvt_pk_bf16_f32 {t0}, {a}, {b}
        v_lshlrev_b32 {a}, 16, {t0}
        v_and_b32 {b}, 0xffff0000, {t0}
        v_lshlrev_b32 {t1}, 16, {Bs[i]}
        v_and_b32 {t2}, 0xffff0000, {Bs[i]}
        v_add_f32 {a}, {a}, {t1}
        v_add_f32 {b}, {b}, {t2}
        v_cvt_pk_bf16_f32 {t0}, {a}, {b}
        v_lshlrev_b32 {a}, 16, {t0}
        v_and_b32 {b}, 0xffff0000, {t0}
        v_max_f32 {a}, 0, {a}
        v_max_f32 {b}, 0, {b}
        v_mul_f32 {a}, {a}, {a}
        v_mul_f32 {b}, {b}, {b}
        v_cvt_pk_bf16_f32 {PA[i]}, {a}, {b}''')
    for i in range(28):
        e(f's_waitcnt vmcnt({27})')
        d = acc[4 * i:4 * i + 4]
        e(f'v_mfma_f32_16x16x32_bf16 {d}, {PA[0:4]}, {bB[4 * i:4 * i + 4]}, {d}')
        e(blk_load(bA, sF1, i))
    e(f'''s_add_u32 {sF2}, {sF2}, {4 * 28672}
    s_add_u32 {sC}, {sC}, 256
    s_add_u32 {sI}, {sI}, 1
    s_cmp_lt_u32 {sI}, 14
    s_cbranch_scc1 {FL}''')

    def reduce_write(ntile, nq, rowb):
        e(f'''v_mul_u32_u24 {t0}, {4 * rowb}, {vG}
        v_lshl_add_u32 {t0}, {vC}, 2, {t0}
        s_lshl_b32 {sA}, {sW}, 15
        v_add_u32 {t0}, {sA}, {t0}''')
        u = rowb // 256
        for tt in range(ntile):
            for qt in range(nq):
                a = acc[4 * (tt * nq + qt):4 * (tt * nq + qt) + 4]
                for r in (0, 2):
                    o = (16 * qt + r) * u
                    e(f'ds_write2st64_b32 {t0}, {a[r]}, {a[r + 1]} offset0:{o} offset1:{o + u}')
            e(f'v_add_u32 {t0}, 64, {t0}')
        e('s_waitcnt lgkmcnt(0)\ns_barrier')

    def reader_setup(nunit, rowb, jbase_sgpr, rowbase_sgpr):
        mul = {56: 1171, 28: 2341}[nunit]
        for rd in range(4):
            e(f'''v_add_u32 {t0}, {256 * rd}, v0
            v_mul_u32_u24 {t1}, {mul}, {t0}
            v_lshrrev_b32 {t1}, 16, {t1}                 ; token
            v_mul_u32_u24 {t2}, {nunit}, {t1}
            v_sub_u32 {t2}, {t0}, {t2}                   ; q
            v_mul_u32_u24 {vRo[rd]}, {rowb}, {t1}
            v_lshl_add_u32 {vRo[rd]}, {t2}, 5, {vRo[rd]}
            v_add_u32 {t1}, {rowbase_sgpr}, {t1}
            v_mul_u32_u24 {vGo[rd]}, 896, {t1}
            v_and_b32 {t1}, 1, {t2}
            v_lshl_add_u32 {vGo[rd]}, {t1}, 6, {vGo[rd]}
            v_lshrrev_b32 {t2}, 1, {t2}
            v_add_u32 {t2}, {jbase_sgpr}, {t2}           ; j
            v_lshrrev_b32 {t1}, 2, {t2}
            v_lshl_add_u32 {vGo[rd]}, {t1}, 7, {vGo[rd]}
            v_and_b32 {t1}, 3, {t2}
            v_lshl_add_u32 {vGo[rd]}, {t1}, 4, {vGo[rd]}''')
        e(f'''v_cmp_gt_u32 vcc, 128, v0
        v_mov_b32 {t0}, {OOB}
        v_cndmask_b32 {vGo[3]}, {t0}, {vGo[3]}, vcc
        v_cndmask_b32 {vRo[3]}, 0, {vRo[3]}, vcc''')

    def reduce_read(rd, dst):
        e(f'v_add_u32 {t0}, 65536, {vRo[rd]}')
        for ww in range(4):
            ad = vRo[rd] if ww < 2 else t0
            for hh in range(2):
                e(f'ds_read_b128 {dst[8 * ww + 4 * hh:8 * ww + 4 * hh + 4]}, {ad} offset:{(ww & 1) * 32768 + hh * 16}')
        e('s_waitcnt lgkmcnt(0)')
        for i in range(8):
            e(f'''v_add_f32 {dst[i]}, {dst[i]}, {dst[8 + i]}
            v_add_f32 {dst[16 + i]}, {dst[16 + i]}, {dst[24 + i]}
            v_add_f32 {dst[i]}, {dst[i]}, {dst[16 + i]}''')

    def add_packed(vals, pk):
        for i in range(4):
            a, b = vals[2 * i], vals[2 * i + 1]
            e(f'''v_cvt_pk_bf16_f32 {t0}, {a}, {b}
            v_lshlrev_b32 {a}, 16, {t0}
            v_and_b32 {b}, 0xffff0000, {t0}
            v_lshlrev_b32 {t1}, 16, {pk[i]}
            v_and_b32 {t2}, 0xffff0000, {pk[i]}
            v_add_f32 {a}, {a}, {t1}
            v_add_f32 {b}, {b}, {t2}''')

    e('s_waitcnt vmcnt(0)')
    reduce_write(28, 1, 2048)
    e(f'''s_mov_b32 {sA}, 0
    s_mov_b32 {sB}, 0''')
    reader_setup(56, 2048, sA, sB)
    e(f'''s_lshl_b32 {sB}, s10, 4
    s_mul_i32 {sB}, {sB}, 896
    s_add_u32 {sB}, {sB}, {WS_BASE}''')
    for rd in range(4):
        e(f'''v_lshrrev_b32 {t1}, 11, {vRo[rd]}
        v_mul_u32_u24 {t1}, 896, {t1}
        v_sub_u32 {t1}, {vGo[rd]}, {t1}
        buffer_load_dwordx4 {PA[4 * rd:4 * rd + 4]}, {t1}, {rB2}, 0 offen''')
    for rd in range(4):
        d = XF[0:32]
        reduce_read(rd, d)
        e(f's_waitcnt vmcnt({3})' if False else 's_waitcnt vmcnt(0)')
        add_packed(d, PA[4 * rd:4 * rd + 4])
        o = XF[32 + 4 * rd:36 + 4 * rd]
        for i in range(4):
            e(f'v_cvt_pk_bf16_f32 {o[i]}, {d[2 * i]}, {d[2 * i + 1]}')
    for rd in range(4):
        e(f'buffer_store_dwordx4 {XF[32 + 4 * rd:36 + 4 * rd]}, {vGo[rd]}, {sWS}, {sB} offen sc1')
    e(f'''s_lshl_b32 {sA}, {sS}, 7
    s_add_u32 {sA}, {sA}, {C_PY}
    v_mov_b32 {vCA}, {sA}''')
    signal(p, vCA, t0)
    e(f'''s_lshl_b32 {sA}, {sS}, 2
    v_mov_b32 {t2}, {sA}
    s_mov_b32 {sA}, 16''')
    wait_ge(p, t2, t0, sA, 8)
    YB = R('a', 0, 224)
    XR = R('a', 224, 16)
    e(f'''s_mul_i32 {sA}, {sS}, {28 * 16384}
    s_mul_i32 {sB}, {sXx}, {14 * 16384}
    s_add_u32 {sA}, {sA}, {sB}
    s_lshl_b32 {sB}, {sW}, 12
    s_add_u32 {sA}, {sA}, {sB}
    s_add_u32 {sA}, {sA}, {WS_YX}''')
    for tt in range(14):
        for hh in range(4):
            e(f'buffer_load_dwordx4 {YB[16 * tt + 4 * hh:16 * tt + 4 * hh + 4]}, {vL16}, {sWS}, {sA} offen offset:{hh * 1024} sc1')
        e(f's_add_u32 {sA}, {sA}, 16384')
    e(f'''s_mul_i32 {sA}, {sXx}, 14
    s_lshl_b32 {sB}, {sS}, 5''')
    reader_setup(28, 1024, sA, sB)
    for rd in range(4):
        e(f'buffer_load_dwordx4 {XR[4 * rd:4 * rd + 4]}, {vGo[rd]}, {rX}, 0 offen')
    e(f's_mov_b32 {sA}, 34')
    wait_ge(p, vCA, t0, sA, 2)
    e(f'''s_lshl_b32 {sA}, {sS}, 15
    s_lshl_b32 {sB}, {sW}, 12
    s_add_u32 {sA}, {sA}, {sB}
    s_add_u32 {sA}, {sA}, {WS_PX}
    s_add_u32 {sB}, {sA}, 16384''')
    for hh in range(4):
        for qt in range(2):
            e(f'buffer_load_dwordx4 {PA[8 * hh + 4 * qt:8 * hh + 4 * qt + 4]}, {vL16}, {sWS}, {sB if qt else sA} offen offset:{hh * 1024} sc1')
    e(f'''s_lshl_b32 {sA}, {sS}, 13
    s_lshl_b32 {sB}, {sW}, 10
    s_add_u32 {sA}, {sA}, {sB}
    s_add_u32 {sA}, {sA}, {WS_PM}
    buffer_load_dwordx4 {PA[32:36]}, {vL16}, {sWS}, {sA} offen sc1
    buffer_load_dwordx4 {PA[36:40]}, {vQ[1]}, {sWS}, {sA} offen sc1
    s_lshl_b32 {sA}, {sS}, 17
    s_add_u32 {sA}, {sA}, {sB}
    s_mul_i32 {sB}, {sXx}, {14 * 4096}
    s_add_u32 {sA}, {sA}, {sB}
    s_add_u32 {sA}, {sA}, {WS_YMA}
    s_add_u32 {sB}, {sA}, {7 * 4096}''')
    for tt in range(14):
        e(f'buffer_load_dwordx4 {XF[4 * tt:4 * tt + 4]}, {vQ[tt % 7]}, {sWS}, {sA if tt < 7 else sB} offen sc1')
    BR = R('a', 240, 16)
    e(f's_mov_b32 {sB}, {WS_BASE}')
    for rd in range(4):
        e(f'buffer_load_dwordx4 {BR[4 * rd:4 * rd + 4]}, {vGo[rd]}, {sWS}, {sB} offen sc1')
    for hh in range(4):
        e(f's_waitcnt vmcnt({20 + 6 - 2 * hh})')
        for tt in range(14):
            for qt in range(2):
                d = acc[4 * (2 * tt + qt):4 * (2 * tt + qt) + 4]
                e(f'v_mfma_f32_16x16x32_bf16 {d}, {PA[8 * hh + 4 * qt:8 * hh + 4 * qt + 4]}, '
                  f'{YB[16 * tt + 4 * hh:16 * tt + 4 * hh + 4]}, {0 if hh == 0 else d}')
    e('s_waitcnt vmcnt(4)')
    for tt in range(14):
        for qt in range(2):
            d = acc[4 * (2 * tt + qt):4 * (2 * tt + qt) + 4]
            e(f'v_mfma_f32_16x16x32_bf16 {d}, {PA[32 + 4 * qt:36 + 4 * qt]}, {XF[4 * tt:4 * tt + 4]}, {d}')
    reduce_write(14, 2, 1024)
    e('s_waitcnt vmcnt(0)')
    for rd in range(4):
        d = XF[0:32]
        reduce_read(rd, d)
        for i in range(4):
            e(f'''v_accvgpr_read_b32 {PA[i]}, {XR[4 * rd + i]}
            v_accvgpr_read_b32 {PA[4 + i]}, {BR[4 * rd + i]}''')
        add_packed(d, PA[0:4])
        add_packed(d, PA[4:8])
        o = XF[32 + 4 * rd:36 + 4 * rd]
        for i in range(4):
            e(f'v_cvt_pk_bf16_f32 {o[i]}, {d[2 * i]}, {d[2 * i + 1]}')
        e(f'buffer_store_dwordx4 {o}, {vGo[rd]}, {rO}, 0 offen')
    e('s_endpgm')
```

```python
import sys
from asmlib import *
from layout import *
import team, workers, prep
from team import *

NAME = 'parallel_sum__memory_aug_recurrent_mem_tr__dense_activation_squared_relu__prompt'
MAIN_LDS = 131072


def main_kernel(p, name, cfg):
    e = p.e
    e(f'{name}:')
    e(f'''s_cmp_ge_u32 s2, 256
    s_cbranch_scc1 EXIT
    s_load_dwordx2 s[4:5], s[0:1], 112
    s_load_dwordx2 s[12:13], s[0:1], 104
    s_load_dwordx2 s[16:17], s[0:1], 8
    v_lshrrev_b32 v1, 6, v0
    v_readfirstlane_b32 {sWAVE}, v1
    s_mov_b32 s6, {WS_BYTES}
    s_mov_b32 s7, 0x20000
    s_mov_b32 s14, 256
    s_mov_b32 s15, 0x20000
    s_mov_b32 s18, 7168
    s_mov_b32 s19, 0x20000
    s_getreg_b32 s20, hwreg(HW_REG_XCC_ID)
    s_and_b32 s20, s20, 15
    v_mov_b32 v4, 0
    s_waitcnt lgkmcnt(0)
    s_cmp_lg_u32 {sWAVE}, 0
    s_cbranch_scc1 EL_WAIT
    s_mov_b64 exec, 1
    s_cmp_lg_u32 s20, {cfg.xcc}
    s_cbranch_scc1 EL_WORKER
    v_mov_b32 v1, 1
    v_mov_b32 v2, 8
    buffer_atomic_add v1, v2, s[12:15], 0 offen sc0
    s_waitcnt vmcnt(0)
    v_readfirstlane_b32 s21, v1
    s_cmp_lt_u32 s21, 32
    s_cbranch_scc1 EL_DONE
    EL_WORKER:
    v_mov_b32 v1, 1
    v_mov_b32 v2, 4
    buffer_atomic_add v1, v2, s[12:15], 0 offen sc0
    s_waitcnt vmcnt(0)
    v_readfirstlane_b32 s21, v1
    s_add_u32 s21, s21, 32
    s_cmp_lt_u32 s21, 256
    s_cbranch_scc1 EL_DONE
    s_sub_u32 s21, {256 + 31}, s21
    v_mov_b32 v1, 1
    v_mov_b32 v2, 12
    buffer_store_dword v1, v2, s[12:15], 0 offen sc1
    EL_DONE:
    v_mov_b32 v1, s21
    ds_write_b32 v4, v1
    s_mov_b64 exec, -1
    s_waitcnt vmcnt(0) lgkmcnt(0)
    EL_WAIT:
    s_barrier
    ds_read_b32 v1, v4
    s_waitcnt lgkmcnt(0)
    v_readfirstlane_b32 {sIDX}, v1
    s_barrier
    s_and_b32 {sIDX}, {sIDX}, 255
    s_cmp_ge_u32 {sIDX}, 32
    s_cbranch_scc1 WORKER
    s_and_b32 {sH}, {sIDX}, 15''')
    if cfg.diag:
        for i in range(NSTAMP):
            e(f's_mov_b32 s{STAMP0 + 2 * i}, 0')
    e(f'''s_cmp_ge_u32 {sIDX}, 16
    s_cbranch_scc1 ROLE_VO''')
    wave_dispatch(e, 'QK')
    e(f'''ROLE_VO:
    s_cmp_ge_u32 {sH}, 14
    s_cbranch_scc1 ROLE_EN''')
    wave_dispatch(e, 'VO')
    e('ROLE_EN:')
    wave_dispatch(e, 'EN')
    n = 16 * workers.NRY
    e(f'''WORKER:
    s_sub_u32 s8, s8, 32
    s_cmp_ge_u32 s8, {2 * n}
    s_cbranch_scc1 ROLE_F
    s_and_b32 s10, s8, 15
    s_lshr_b32 s11, s8, 4
    s_cmp_ge_u32 s8, {n}
    s_cbranch_scc0 ROLE_Y
    s_sub_u32 s11, s11, {workers.NRY}
    s_branch ROLE_T
    EXIT:
    s_endpgm''')
    e('ROLE_Y:')
    workers.yt_worker(p, 0)
    e('ROLE_T:')
    workers.yt_worker(p, 1)
    e(f'ROLE_F:\ns_sub_u32 s10, s8, {2 * n}')
    workers.f_worker(p)
    for role, nm in ((0, 'QK'), (1, 'VO'), (2, 'EN')):
        for w in range(4):
            e(f'{nm}{w}:')
            team_wave(p, role, w, cfg)


def build(cfg):
    hdr = open('cdna_kernels/%s.s.ref' % NAME).read().split('; Override launch')[0]
    hdr += '; @launch kernel=prep_kernel grid=(256,1,1) block=(256,1,1) lds=%d\n' % prep.P_LDS
    hdr += '; @launch kernel=%s_kernel grid=(256,1,1) block=(256,1,1) lds=%d\n' % (NAME, MAIN_LDS)
    hdr += '.amdgcn_target "amdgcn-amd-amdhsa--gfx950"\n.text\n'
    out = hdr
    p = Prog()
    prep.prep_kernel(p, 'prep_kernel')
    out += '.globl prep_kernel\n.p2align 8\n.type prep_kernel,@function\n' + p.text()
    p = Prog()
    main_kernel(p, NAME + '_kernel', cfg)
    out += '.globl %s_kernel\n.p2align 8\n.type %s_kernel,@function\n' % (NAME, NAME) + p.text()
    out += prep.KD % ('prep_kernel', 256) + prep.KD % (NAME + '_kernel', 512)
    out = out.replace('\n    ', '\n')
    return out


def parse(args):
    cfg = Cfg()
    cfg.xcc = 0
    for a in args:
        k, v = a.split('=')
        assert hasattr(cfg, k), k
        setattr(cfg, k, int(v))
    return cfg


if __name__ == '__main__':
    open(sys.argv[1], 'w').write(build(parse(sys.argv[2:])))
```

```python
import re

TRANS = ('v_exp_f32', 'v_log_f32', 'v_rcp_f32', 'v_rsq_f32', 'v_sqrt_f32', 'v_sin_f32', 'v_cos_f32',
         'v_rcp_iflag_f32')


def _regs(tok):
    tok = tok.strip()
    tok = tok.lstrip('-')
    m = re.fullmatch(r'abs\((.*)\)', tok) or re.fullmatch(r'\|(.*)\|', tok)
    if m:
        tok = m.group(1)
    m = re.fullmatch(r'([vas])(\d+)', tok)
    if m:
        k, n = m.group(1), int(m.group(2))
        return [(k, n)]
    m = re.fullmatch(r'([vas])\[(\d+):(\d+)\]', tok)
    if m:
        k = m.group(1)
        return [(k, i) for i in range(int(m.group(2)), int(m.group(3)) + 1)]
    if tok in ('vcc', 'vcc_lo', 'vcc_hi'):
        return [('s', 'vcc')]
    if tok in ('exec', 'exec_lo', 'exec_hi'):
        return [('s', 'exec')]
    if tok == 'm0':
        return [('s', 'm0')]
    return []


def _split_ops(s):
    out, depth, cur = [], 0, ''
    for ch in s:
        if ch in '[(':
            depth += 1
        if ch in '])':
            depth -= 1
        if ch == ',' and depth == 0:
            out.append(cur)
            cur = ''
        else:
            cur += ch
    if cur.strip():
        out.append(cur)
    return out


class Ins:
    __slots__ = ('text', 'op', 'dst', 'src', 'cls', 'passes', 'dpp', 'srcC', 'srcAB', 'wide_store', 'sdata',
                 'nop', 'label', 'target', 'lds')

    def __init__(self, text):
        self.text = text
        t = text.split(';')[0].strip()
        self.label = None
        self.target = None
        self.op = ''
        self.dst, self.src = [], []
        self.cls = 'other'
        self.passes = 0
        self.dpp = False
        self.srcC, self.srcAB = [], []
        self.wide_store = False
        self.sdata = []
        self.nop = 1
        self.lds = False
        if not t:
            self.cls = 'none'
            return
        if t.endswith(':'):
            self.cls = 'label'
            self.label = t[:-1]
            return
        if t.startswith('.'):
            self.cls = 'none'
            return
        parts = t.split(None, 1)
        op = parts[0]
        rest = parts[1] if len(parts) > 1 else ''
        self.op = op
        ops = _split_ops(rest)
        mods = ''
        if ops:
            last = ops[-1].strip().split(None, 1)
            ops[-1] = last[0] if last else ''
            mods = last[1] if len(last) > 1 else ''
        R = [_regs(o) for o in ops]
        flat = lambda l: [x for y in l for x in y]
        base = re.sub(r'_(e32|e64|dpp|sdwa)$', '', op)
        if op == 's_nop':
            self.cls = 'nop'
            self.nop = int(ops[0], 0) + 1
        elif op.startswith('s_cbranch') or op == 's_branch':
            self.cls = 'branch'
            self.target = ops[0].strip()
            if 'vcc' in op:
                self.src = [('s', 'vcc')]
        elif op.startswith('v_mfma') or op.startswith('v_smfmac'):
            self.cls = 'mfma'
            self.passes = 8 if '32x32' in op else 4
            self.dst = R[0]
            if op.startswith('v_smfmac'):
                self.srcAB = R[1] + R[2] + R[3]
                self.srcC = R[0]
            else:
                self.srcAB = R[1] + R[2]
                self.srcC = R[3]
            self.src = self.srcAB + self.srcC
        elif op.startswith('v_'):
            self.cls = 'trans' if base in TRANS else 'valu'
            self.dpp = ('quad_perm' in mods or 'row_' in mods or op.endswith('_dpp'))
            if base.startswith('v_cmpx'):
                self.dst = R[0] + [('s', 'exec')]
                self.src = flat(R[1:])
            elif base in ('v_permlane16_swap_b32', 'v_permlane32_swap_b32', 'v_swap_b32'):
                self.dst = R[0] + R[1]
                self.src = R[0] + R[1]
                if 'permlane' in base:
                    self.cls = 'permlane'
            elif base in ('v_add_co_u32', 'v_sub_co_u32', 'v_addc_co_u32', 'v_subb_co_u32', 'v_subrev_co_u32'):
                self.dst = R[0] + R[1]
                self.src = flat(R[2:])
            else:
                self.dst = R[0]
                self.src = flat(R[1:])
                if base.startswith('v_fmac') or base.startswith('v_pk_fmac') or base.startswith('v_dot2c') or self.dpp \
                        or base == 'v_writelane_b32':
                    self.src = self.src + R[0]
                if base in ('v_readfirstlane_b32', 'v_readlane_b32'):
                    self.cls = 'readlane'
        elif op.startswith('buffer_') or op.startswith('global_'):
            self.cls = 'vmem'
            allm = ' ' + mods + ' '
            self.lds = ' lds ' in allm or '_lds_' in op
            if op in ('buffer_wbl2', 'buffer_inv'):
                pass
            elif 'store' in op:
                self.src = flat(R)
                self.sdata = R[0] if op.startswith('buffer_') else R[1]
                self.wide_store = op.endswith('x4') or op.endswith('x3')
            elif 'atomic' in op:
                self.src = flat(R)
                if ' sc0 ' in allm:
                    self.dst = R[0]
            elif self.lds:
                self.src = flat(R) + [('s', 'm0')]
            else:
                self.dst = R[0]
                self.src = flat(R[1:])
                if 'd16' in op:
                    self.src += R[0]
        elif op.startswith('ds_'):
            self.cls = 'ds'
            if op.startswith('ds_read') or 'permute' in op or 'swizzle' in op or op.endswith('_rtn_u32') or op.endswith('_rtn_f32'):
                self.dst = R[0]
                self.src = flat(R[1:])
            else:
                self.src = flat(R)
        elif op.startswith('s_'):
            self.cls = 'salu'
            if op.startswith('s_cmp') or op.startswith('s_bitcmp') or op in ('s_waitcnt', 's_barrier', 's_endpgm',
                                                                               's_sleep', 's_setprio'):
                self.src = flat(R)
            else:
                self.dst = R[0] if R else []
                self.src = flat(R[1:])
                if 'saveexec' in op:
                    self.dst = self.dst + [('s', 'exec')]


def _isv(r):
    return r[0] in 'va'


def required(p, c):
    need = 0
    pd = set(p.dst)
    valu_like = ('valu', 'trans', 'permlane', 'readlane')
    if p.cls in valu_like:
        pv = {r for r in pd if _isv(r)}
        ps = {r for r in pd if r[0] == 's'}
        if c.cls == 'mfma' and pv & set(c.src):
            need = max(need, 2)
        if c.cls in valu_like and c.dpp and pv & set(c.src):
            need = max(need, 2)
        if c.cls == 'permlane' and pv & set(c.src):
            need = max(need, 2)
        if c.cls == 'readlane' and pv & set(c.src):
            need = max(need, 1)
        if p.cls == 'trans' and c.cls in valu_like + ('mfma',) and c.cls != 'trans' and pv & set(c.src):
            need = max(need, 1)
        if ps:
            if c.cls == 'vmem' and ps & set(c.src):
                need = max(need, 5)
            if c.cls in valu_like and ps & set(c.src):
                need = max(need, 4 if c.cls == 'readlane' else 2)
            if ('s', 'exec') in ps:
                if c.cls == 'mfma' or c.cls in ('readlane', 'permlane'):
                    need = max(need, 4)
                if c.dpp:
                    need = max(need, 5)
            if c.cls == 'salu' and ps & set(c.src):
                need = max(need, 1)
    if p.cls == 'mfma':
        big = {4: 8, 8: 12}[p.passes]
        part = {4: 6, 8: 10}[p.passes]
        war = {4: 3, 8: 7}[p.passes]
        if c.cls == 'mfma':
            if pd & set(c.srcAB):
                need = max(need, big)
            if pd & set(c.srcC):
                if not (c.srcC == p.dst and c.passes == p.passes):
                    need = max(need, part)
            elif pd & set(c.dst):
                need = max(need, part)
        elif c.cls in valu_like + ('vmem', 'ds'):
            if pd & (set(c.src) | set(c.dst)):
                need = max(need, big)
            if c.cls in valu_like and set(p.srcC) & set(c.dst):
                need = max(need, war)
    if p.cls == 'vmem' and p.wide_store and set(p.sdata) & set(c.dst):
        need = max(need, 2)
    if p.cls == 'salu' and ('s', 'm0') in pd and c.cls == 'vmem' and c.lds:
        need = max(need, 1)
    if p.cls == 'salu' and ('s', 'exec') in pd and c.dpp:
        need = max(need, 0)
    return need


WINDOW = 14


def _gap_need(hist, c):
    miss = 0
    seq = hist + [c]
    n = len(hist)
    for i in range(n - 1, -1, -1):
        need = required(seq[i], c)
        if not need:
            continue
        t, last_m = 0, (0, seq[i].passes) if seq[i].cls == 'mfma' else None
        prev = seq[i]
        for q in seq[i + 1:]:
            t += prev.nop
            if q.cls == 'mfma':
                if last_m is not None and TIME_MODEL[0]:
                    t = max(t, last_m[0] + last_m[1])
                last_m = (t, q.passes)
            prev = q
        if t - 1 < need:
            t2, last_m = 0, (0, seq[i].passes) if seq[i].cls == 'mfma' else None
            prev = seq[i]
            for q in seq[i + 1:-1]:
                t2 += prev.nop
                if q.cls == 'mfma':
                    if last_m is not None and TIME_MODEL[0]:
                        t2 = max(t2, last_m[0] + last_m[1])
                    last_m = (t2, q.passes)
                prev = q
            t2 += prev.nop
            miss = max(miss, need - (t2 - 1))
    return miss


TIME_MODEL = [True]


def hazard_pass(lines):
    ins = [Ins(l) for l in lines]
    out = []
    hist = []
    for i in ins:
        if i.cls in ('none', 'label'):
            out.append(i)
            continue
        miss = _gap_need(hist, i)
        if miss:
            n = Ins('    s_nop %d' % (miss - 1))
            out.append(n)
            hist.append(n)
        out.append(i)
        hist.append(i)
        if i.op in ('s_branch', 's_endpgm'):
            hist = []
        hist = hist[-WINDOW:]
    changed = True
    rounds = 0
    while changed and rounds < 5000:
        changed = False
        rounds += 1
        labels = {x.label: k for k, x in enumerate(out) if x.cls == 'label'}
        for k, x in enumerate(out):
            if x.cls != 'branch' or x.target not in labels:
                continue
            h = []
            j = k
            while j >= 0 and len(h) < WINDOW:
                y = out[j]
                if y.cls not in ('none', 'label'):
                    if j != k and y.op in ('s_branch', 's_endpgm'):
                        break
                    h.insert(0, y)
                j -= 1
            q = labels[x.target] + 1
            cnt = 0
            worst = 0
            hh = list(h)
            while q < len(out) and cnt < WINDOW:
                y = out[q]
                if y.cls not in ('none', 'label'):
                    worst = max(worst, _gap_need(hh, y))
                    hh.append(y)
                    cnt += y.nop
                    if y.op in ('s_branch', 's_endpgm'):
                        break
                q += 1
            if worst:
                out.insert(labels[x.target] + 1, Ins('    s_nop %d ; branch-target pad' % (worst - 1)))
                changed = True
                break
    return [x.text for x in out]


class Prog:
    def __init__(self):
        self.lines = []
        self._lab = 0

    def e(self, s):
        for l in s.split('\n'):
            l = l.strip()
            if not l:
                continue
            if l.endswith(':') or l.startswith('.') or l.startswith(';'):
                self.lines.append(l)
            else:
                self.lines.append('    ' + l)

    def label(self, stem='L'):
        self._lab += 1
        return '%s_%d' % (stem, self._lab)

    def text(self):
        out = []
        for l in self.lines:
            t = l.strip()
            if t.startswith('s_waitcnt') and out and out[-1].strip().startswith('s_waitcnt'):
                c = dict(re.findall(r'(vmcnt|lgkmcnt)\((\d+)\)', out[-1]))
                for k, v in re.findall(r'(vmcnt|lgkmcnt)\((\d+)\)', t):
                    c[k] = str(min(int(v), int(c.get(k, 99))))
                out[-1] = '    s_waitcnt ' + ' '.join('%s(%s)' % kv for kv in sorted(c.items(), reverse=True))
            else:
                out.append(l)
        return '\n'.join(hazard_pass(out)) + '\n'


def vr(k, base, n=1):
    return '%s%d' % (k, base) if n == 1 else '%s[%d:%d]' % (k, base, base + n - 1)


class R:
    def __init__(self, kind, base, n):
        self.kind, self.base, self.n = kind, base, n

    def __str__(self):
        return vr(self.kind, self.base, self.n)

    def __getitem__(self, i):
        if isinstance(i, slice):
            a = i.start or 0
            b = self.n if i.stop is None else i.stop
            assert 0 <= a < b <= self.n, (a, b, self.n)
            return R(self.kind, self.base + a, b - a)
        assert 0 <= i < self.n
        return R(self.kind, self.base + i, 1)


class Alloc:
    def __init__(self, kind, lo, hi):
        self.kind, self.next, self.hi = kind, lo, hi

    def get(self, n=1, align=1):
        if n >= 2 and align < 2:
            align = 2
        b = (self.next + align - 1) // align * align
        assert b + n <= self.hi, 'out of %s regs (need %d at %d, limit %d)' % (self.kind, n, b, self.hi)
        self.next = b + n
        return R(self.kind, b, n)

    def left(self):
        return self.hi - self.next


TL_ON = [False]


def tl(p, slot, idx_sgpr, base, va='v254', vb='v255', save=True):
    if not TL_ON[0]:
        return
    p.e(f"""s_memrealtime s[96:97]
    s_lshl_b32 s98, {idx_sgpr}, 6
    s_add_u32 s98, s98, {base + 4 * slot}
    s_waitcnt lgkmcnt(0)
    v_mov_b32 {va}, s96
    v_mov_b32 {vb}, 0
    buffer_store_dword {va}, {vb}, s[4:7], s98 offen""")
```

```python
S, D, H, E, F, M, L, NS = 2048, 448, 16, 256, 1792, 8, 32, 64

WS_WQK = 0x0000000
WS_WVO = 0x0700000
WS_YX = 0x1000000
WS_XNB = 0x3000000
WS_XNA = 0x3200000
WS_MEMR = 0x3400000
WS_PR = 0x34c0000
WS_MEMA = 0x3600000
WS_YMA = 0x3800000
WS_PX = 0x4000000
WS_PM = 0x4200000
WS_FLAGS = 0x4400000
WS_CNT = WS_FLAGS + 0x4000
C_YX = 0
C_PY = 0x2000
C_INIT = 0x4000
C_WF = 0x4080
C_MAT = 0x4400
C_LN = 0x5400
CNT_BYTES = 0x5800
WS_STAMP = 0x4500000
WS_TL = WS_STAMP + 0x10000
WS_W1F = 0x4600000
WS_W2F = 0x4800000
WS_BASE = 0x4a00000
WS_BYTES = 268435456


def xnb_blk(chunk):
    return 2 * chunk if chunk < 4 else 2 * (chunk - 4) + 1


QK_SLOTS = [
    [0, 4, 1, 2, 3, 5, 6],
    [1, 5, 2, 3, 0, 6, 4],
    [2, 6, 3, 0, 1, 4, 5],
    [3, 4, 5, 6, 0, 1, 2],
]
VO_SLOTS = [[(k + 2 * w) % 7 for k in range(7)] for w in range(4)]
QK_TILES = [
    [(0, 0), (0, 1), (0, 2), (0, 3), (1, 2), (1, 3), (1, 1)],
    [(0, 0), (0, 1), (0, 2), (0, 3), (1, 2), (1, 3), (1, 0)],
    [(0, 0), (0, 1), (0, 2), (0, 3), (1, 0), (1, 1), (1, 3)],
    [(0, 0), (0, 1), (0, 2), (0, 3), (1, 0), (1, 1), (1, 2)],
]


def set_quad(w, st, v, half):
    if st == 0:
        return 2 * w + v
    if w < 3:
        return 2 * (4 + w) + v
    return (2 * (4 + v) + v) if half == 0 else (12 + v)


def qk_col(w, t, n):
    st, pos = QK_TILES[w][t]
    th = set_quad(w, st, pos & 1, pos >> 1)
    return 32 * th + 8 * (n >> 2) + 4 * (pos >> 1) + (n & 3)


def tile_col(j, n):
    return 64 * (j >> 2) + 8 * (j & 3) + (n & 7) + 32 * (n >> 3)


def vo_col(w, t, n):
    return tile_col(7 * w + t, n)


def frag_row(chunk, gB, rho, b):
    return 64 * chunk + 32 * (rho & 1) + 16 * (rho >> 2) + 4 * gB + 2 * ((rho >> 1) & 1) + b


def xs_row(w, st, gB, rho, b):
    return 32 * set_quad(w, st, rho & 1, gB & 1) + 16 * (rho >> 2) + 4 * gB + 2 * ((rho >> 1) & 1) + b
```

```python
import math, struct
from asmlib import *
from layout import *

LOG2E_16 = struct.unpack('<I', struct.pack('<f', math.log2(math.e) / 16))[0]
P_LA = 0
P_LB = 32768
P_LDS = P_LB + 4 * 28672


def srd(e, s, koff, nbytes):
    e(f'''s_load_dwordx2 s[{s}:{s + 1}], s[0:1], {koff}
    s_mov_b32 s{s + 2}, {nbytes}
    s_mov_b32 s{s + 3}, 0x20000''')


def gemm_job(p, mat, st='', mid=None):
    e = p.e
    V = Alloc('v', 1, 250)
    vL, vG, vC, t0, t1 = (V.get() for _ in range(5))
    vAo, vBo, vRd, vL16, vTr = (V.get() for _ in range(5))
    Af = V.get(32, 4)
    Bf = V.get(56, 4)
    acc = V.get(112, 4)
    o = V.get(8, 4)
    e(f'''v_and_b32 {vL}, 63, v0
    v_lshrrev_b32 {vG}, 4, {vL}
    v_and_b32 {vC}, 15, {vL}
    v_lshlrev_b32 {vL16}, 4, {vL}
    v_and_b32 {t0}, 3, {vL}
    v_xor_b32 {t0}, {t0}, {vG}
    v_lshlrev_b32 {t0}, 4, {t0}
    v_lshrrev_b32 {t1}, 2, {vL}
    v_lshl_add_u32 {vAo}, {t1}, 13, {t0}
    v_and_b32 {t1}, 3, {t1}
    v_lshl_add_u32 {t1}, {vG}, 3, {t1}
    v_lshl_add_u32 {vBo}, {t1}, 13, {t0}
    v_lshrrev_b32 {t0}, 2, {vC}
    v_xor_b32 {t0}, {t0}, {vG}
    v_lshl_add_u32 {t0}, {vC}, 2, {t0}
    v_lshlrev_b32 {vRd}, 4, {t0}
    s_lshl_b32 s20, s11, 19
    s_lshl_b32 s21, s9, 17
    s_add_u32 s20, s20, s21
    s_lshl_b32 s21, s10, 9
    s_add_u32 s20, s20, s21
    s_lshl_b32 s22, s9, 13
    s_mul_i32 s23, s9, 7168''')
    for ks in range(8):
        e(f'''s_add_u32 m0, s22, {P_LA + ks * (1024 - 64)}
        buffer_load_dwordx4 {vAo}, s[12:15], s20 offen offset:{ks * 64} lds''')
    if mat == 0:
        for tt in range(7):
            e(f'''s_mul_i32 s31, s9, 7
            s_add_u32 s31, s31, {tt}
            s_lshr_b32 s32, s31, 1
            s_lshl_b32 s32, s32, 18
            s_and_b32 s31, s31, 1
            s_lshl_b32 s31, s31, 15
            s_add_u32 s31, s31, s32
            s_add_u32 s{24 + tt}, s31, s21''')
        e(f'v_add_u32 {vTr}, s23, {vRd}')
    else:
        e(f'''s_mul_i32 s24, s10, 229376
        s_add_u32 s24, s24, s23
        v_lshrrev_b32 {t0}, 2, {vC}
        v_lshl_add_u32 {t0}, {vG}, 3, {t0}
        v_mul_u32_u24 {t0}, 896, {t0}
        v_and_b32 {t1}, 1, {vC}
        v_lshl_add_u32 {t0}, {t1}, 3, {t0}
        v_bfe_u32 {t1}, {vC}, 1, 1
        v_lshl_add_u32 {vTr}, {t1}, 6, {t0}''')
        vT = [V.get() for _ in range(7)]
        for tt in range(7):
            e(f'''s_mul_i32 s31, s9, 7
            s_add_u32 s31, s31, {tt}
            s_lshr_b32 s32, s31, 2
            s_lshl_b32 s32, s32, 7
            s_and_b32 s31, s31, 3
            s_lshl_b32 s31, s31, 4
            s_add_u32 s31, s31, s32
            s_add_u32 s31, s31, {P_LB}
            v_add_u32 {vT[tt]}, s31, {vTr}''')

    from team import VM
    vm = VM(e)

    def dma_b(ks):
        base = P_LB + (ks & 3) * 28672
        o_ = []
        for tt in range(7):
            if mat == 0:
                o_.append(([f's_add_u32 m0, s23, {base + tt * 1024 - ks * 64}'],
                           f'buffer_load_dwordx4 {vBo}, s[16:19], s{24 + tt} offen offset:{ks * 64} lds'))
            else:
                su = []
                if tt in (0, 4):
                    su = [f's_add_u32 m0, s23, {base + tt * 1024}', f's_add_u32 s31, s24, {ks * 28672 + tt * 1024}']
                o_.append((su, f'buffer_load_dwordx4 {vL16}, s[16:19], s31 offen offset:{(tt & 3) * 1024} lds'))
        return [(su, l, ('b', ks)) for su, l in o_]

    def emit(job):
        for x in job[0]:
            e(x)
        vm.issue(job[1], job[2])

    def reads(ks):
        b = ks & 1
        o_ = []
        if mat == 1 and ks in (2, 4, 6):
            for tt in range(7):
                o_.append(f'{"v_subrev_u32" if ks == 4 else "v_add_u32"} {vT[tt]}, {2 * 28672}, {vT[tt]}')
        for rt in range(4):
            o_.append(f'ds_read_b128 {Af[16 * b + 4 * rt:16 * b + 4 * rt + 4]}, {vRd} offset:{P_LA + (rt * 8 + ks) * 1024}')
        for tt in range(7):
            d = Bf[28 * b + 4 * tt:28 * b + 4 * tt + 4]
            if mat == 0:
                o_.append(f'ds_read_b128 {d}, {vRB[ks & 3]} offset:{tt * 1024}')
            else:
                off = (ks & 1) * 28672
                o_.append(f'ds_read_b64_tr_b16 {d[0:2]}, {vT[tt]} offset:{off}')
                o_.append(f'ds_read_b64_tr_b16 {d[2:4]}, {vT[tt]} offset:{off + 4 * 896}')
        return o_
    for j in dma_b(0):
        emit(j)
    if mat == 0:
        e(f"""v_lshrrev_b32 {t0}, 2, {vL}
        v_lshlrev_b32 {t0}, 13, {t0}
        v_and_b32 {t1}, 3, {vL}
        v_lshl_add_u32 {t0}, {t1}, 7, {t0}""")
        vm.issue(f'buffer_load_dword {o[0]}, {t0}, s[16:19], s20 offen')
        vRB = [V.get() for _ in range(4)]
        for i in range(4):
            e(f'v_add_u32 {vRB[i]}, {P_LB + i * 28672}, {vTr}')
    else:
        e(f"""v_lshlrev_b32 {t0}, 7, {vL}
        s_lshl_b32 s31, s11, 2
        s_add_u32 s31, s31, s9
        s_lshl_b32 s31, s31, 13
        s_mul_i32 s32, s10, 229376
        s_add_u32 s31, s31, s32""")
        vm.issue(f'buffer_load_dword {o[0]}, {t0}, s[16:19], s31 offen')
    for ks in (1, 2, 3):
        for j in dma_b(ks):
            emit(j)
    vm.wait(('b', 0))
    e('s_barrier')
    for l in reads(0):
        e(l)
    for ks in range(8):
        side = []
        if ks < 7:
            vm.wait(('b', ks + 1))
        e('s_waitcnt lgkmcnt(0)')
        if ks < 7:
            e('s_barrier')
            side = reads(ks + 1)
        if TL_ON[0]:
            e(f's_memrealtime s[{60 + 2 * ks}:{61 + 2 * ks}]')
        dj = dma_b(ks + 4) if ks + 4 < 8 else []
        if ks == 4 and mid is not None:
            dj = [mid]
        b = ks & 1
        n = 0
        for tt in range(7):
            for rt in range(4):
                d = acc[16 * tt + 4 * rt:16 * tt + 4 * rt + 4]
                e(f'v_mfma_f32_16x16x32_bf16 {d}, {Af[16 * b + 4 * rt:16 * b + 4 * rt + 4]}, '
                  f'{Bf[28 * b + 4 * tt:28 * b + 4 * tt + 4]}, {0 if ks == 0 else d}')
                if n % 4 == 0 and dj:
                    emit(dj.pop(0))
                if side:
                    e(side.pop(0))
                n += 1
        assert not side and not dj
    if TL_ON[0]:
        e('s_memrealtime s[76:77]')
    e(f'''s_mul_i32 s20, s10, 28
    s_mul_i32 s21, s9, 7
    s_add_u32 s20, s20, s21
    s_mul_i32 s20, s20, 7
    s_add_u32 s20, s20, s11
    s_lshl_b32 s20, s20, 11
    s_add_u32 s20, s20, {WS_WQK if mat == 0 else WS_WVO}
    s_mov_b32 s21, {LOG2E_16}''')
    for tt in range(7):
        a = acc[16 * tt:16 * tt + 16]
        if mat == 0:
            for i in range(16):
                e(f'v_mul_f32 {a[i]}, s21, {a[i]}')
        oo = Bf[8 * (tt % 4):8 * (tt % 4) + 8]
        for hi in range(2):
            for v in range(2):
                r = a[4 * (2 * v + hi):4 * (2 * v + hi) + 4]
                e(f'v_cvt_pk_bf16_f32 {oo[4 * hi + v]}, {r[0]}, {r[1]}')
                e(f'v_cvt_pk_bf16_f32 {oo[4 * hi + 2 + v]}, {r[2]}, {r[3]}')
        e(f'''buffer_store_dwordx4 {oo[0:4]}, {vL16}, s[4:7], s20 offen {st}
        buffer_store_dwordx4 {oo[4:8]}, {vL16}, s[4:7], s20 offen offset:1024 {st}
        s_add_u32 s20, s20, {7 * 2048}''')
    if TL_ON[0]:
        e(f's_lshl_b32 s98, s2, 6\ns_add_u32 s98, s98, {WS_TL}\nv_mov_b32 v255, 0\ns_waitcnt lgkmcnt(0)')
        for i in range(9):
            e(f'v_mov_b32 v254, s{60 + 2 * i}\nbuffer_store_dword v254, v255, s[4:7], s98 offen offset:{8 + 4 * i}')


def ln_job(p, st='', mid=None):
    e = p.e
    V = Alloc('v', 1, 244)
    vL, vG, vC, t0, t1, vL16, vO, mean, rs = (V.get() for _ in range(9))
    X = V.get(56, 4)
    Fv = V.get(112, 4)
    Bq = V.get(64, 4)
    e(f'''v_and_b32 {vL}, 63, v0
    v_lshrrev_b32 {vG}, 4, {vL}
    v_and_b32 {vC}, 15, {vL}
    v_lshlrev_b32 {vL16}, 4, {vL}
    v_mul_u32_u24 {vO}, 896, {vC}
    v_lshl_add_u32 {vO}, {vG}, 4, {vO}
    s_mul_i32 s20, s10, {16 * 896}''')
    for th in range(14):
        e(f'buffer_load_dwordx4 {X[4 * th:4 * th + 4]}, {vO}, s[12:15], s20 offen offset:{64 * th}')
    e(f'''v_mov_b32 {t0}, 0
    v_mov_b32 {t1}, 0''')
    for th in range(14):
        e(f's_waitcnt vmcnt({13 - th})')
        for d in range(4):
            i = 4 * th + d
            e(f'''v_lshlrev_b32 {Fv[2 * i]}, 16, {X[i]}
            v_and_b32 {Fv[2 * i + 1]}, 0xffff0000, {X[i]}
            v_add_f32 {t0}, {t0}, {Fv[2 * i]}
            v_add_f32 {t1}, {t1}, {Fv[2 * i + 1]}''')

    if mid is not None:
        e(mid[1])

    def allred(x, y):
        e(f'''v_mov_b32 {y}, {x}
        v_permlane16_swap_b32 {x}, {y}
        v_add_f32 {x}, {x}, {y}
        v_mov_b32 {y}, {x}
        v_permlane32_swap_b32 {x}, {y}
        v_add_f32 {x}, {x}, {y}''')
    inv = struct.unpack('<I', struct.pack('<f', 1.0 / 448))[0]
    eps = struct.unpack('<I', struct.pack('<f', 1e-5))[0]
    e(f'v_add_f32 {t0}, {t0}, {t1}')
    allred(t0, t1)
    e(f'''v_mul_f32 {mean}, {inv}, {t0}
    v_mov_b32 {t0}, 0
    v_mov_b32 {rs}, 0''')
    for i in range(0, 112, 2):
        e(f'''v_sub_f32 {t1}, {Fv[i]}, {mean}
        v_sub_f32 {vO}, {Fv[i + 1]}, {mean}
        v_fmac_f32 {t0}, {t1}, {t1}
        v_fmac_f32 {rs}, {vO}, {vO}''')
    e(f'v_add_f32 {t0}, {t0}, {rs}')
    allred(t0, t1)

    def rnd(x):
        e(f'''v_cvt_pk_bf16_f32 {x}, {x}, {x}
        v_and_b32 {x}, 0xffff0000, {x}''')
    e(f'v_mul_f32 {t0}, {inv}, {t0}')
    rnd(t0)
    e(f'v_add_f32 {t0}, {eps}, {t0}')
    rnd(t0)
    e(f'v_sqrt_f32 {t0}, {t0}')
    rnd(t0)
    e(f'v_rcp_f32 {rs}, {t0}')
    rnd(mean)
    for i in range(56):
        a, b = Fv[2 * i], Fv[2 * i + 1]
        e(f'''v_sub_f32 {a}, {a}, {mean}
        v_sub_f32 {b}, {b}, {mean}
        v_cvt_pk_bf16_f32 {X[i]}, {a}, {b}
        v_lshlrev_b32 {a}, 16, {X[i]}
        v_and_b32 {b}, 0xffff0000, {X[i]}
        v_mul_f32 {a}, {a}, {rs}
        v_mul_f32 {b}, {b}, {rs}
        v_cvt_pk_bf16_f32 {X[i]}, {a}, {b}''')
    e(f'''s_lshl_b32 s20, s10, 14
    s_add_u32 s20, s20, {WS_XNA}''')
    for th in range(14):
        if th and th % 4 == 0:
            e('s_add_u32 s20, s20, 4096')
        e(f'buffer_store_dwordx4 {X[4 * th:4 * th + 4]}, {vL16}, s[4:7], s20 offen offset:{(th & 3) * 1024} {st}')
    for k in range(7):
        for v in range(2):
            x = X[4 * (2 * k + v):4 * (2 * k + v) + 4]
            for d in range(4):
                e(f'v_mov_b32 {Bq[8 * k + 4 * (d >> 1) + 2 * (d & 1) + v]}, {x[d]}')
        for q in range(4):
            e(f'v_permlane16_swap_b32 {Bq[8 * k + q]}, {Bq[8 * k + 4 + q]}')
        for q in range(4):
            e(f'v_permlane32_swap_b32 {Bq[8 * k + q]}, {Bq[8 * k + 4 + q]}')
    e(f'''v_and_b32 {t0}, 1, {vG}
    v_cmp_eq_u32 vcc, 0, {t0}''')
    for q in range(8):
        src = Bq[8 * (4 + (q & 1)) + q]
        e(f'v_cndmask_b32 {Bq[56 + q]}, {Bq[48 + q]}, {src}, vcc')
    e(f'''s_lshr_b32 s20, s10, 1
    s_lshl_b32 s20, s20, 15
    s_and_b32 s21, s10, 1
    s_lshl_b32 s21, s21, 11
    s_add_u32 s20, s20, s21
    s_add_u32 s20, s20, {WS_XNB}''')
    for k in range(8):
        blk = xnb_blk(k) if k < 7 else 7
        e(f'''s_add_u32 s21, s20, {blk * 4096}
        buffer_store_dwordx4 {Bq[8 * k:8 * k + 4]}, {vL16}, s[4:7], s21 offen {st}
        buffer_store_dwordx4 {Bq[8 * k + 4:8 * k + 8]}, {vL16}, s[4:7], s21 offen offset:1024 {st}''')


def prep_kernel(p, name):
    e = p.e
    e(f'{name}:')
    e('''s_cmp_ge_u32 s2, 256
    s_cbranch_scc1 PREP_EXIT
    v_lshrrev_b32 v1, 6, v0
    v_readfirstlane_b32 s9, v1
    s_and_b32 s3, s2, 7
    s_lshr_b32 s8, s2, 3''')
    srd(e, 4, 112, WS_BYTES)
    e('''s_cmp_ge_u32 s8, 28
    s_cbranch_scc1 PREP_LN
    s_mul_i32 s20, s8, 37
    s_lshr_b32 s20, s20, 8        ; q/7
    s_mul_i32 s21, s20, 7
    s_sub_u32 s11, s8, s21        ; chunk
    s_lshl_b32 s3, s3, 2
    s_add_u32 s20, s20, s3
    s_lshr_b32 s10, s20, 1
    s_bitcmp1_b32 s20, 0
    s_cbranch_scc1 PREP_VO''')
    srd(e, 12, 16, 448 * 8192)
    srd(e, 16, 24, 448 * 8192)
    e('s_waitcnt lgkmcnt(0)')
    tl(p, 0, 's2', WS_TL)
    gemm_job(p, 0)
    e('s_waitcnt vmcnt(0)')
    tl(p, 1, 's2', WS_TL)
    e('s_endpgm\nPREP_VO:')
    srd(e, 12, 32, 448 * 8192)
    srd(e, 16, 40, 448 * 8192)
    e('s_waitcnt lgkmcnt(0)')
    tl(p, 0, 's2', WS_TL)
    gemm_job(p, 1)
    e('s_waitcnt vmcnt(0)')
    tl(p, 1, 's2', WS_TL)
    e('s_endpgm\nPREP_LN:')
    srd(e, 12, 0, S * D * 2)
    e(f'''s_sub_u32 s10, s2, 224
    s_lshl_b32 s10, s10, 2
    s_add_u32 s10, s10, s9
    s_waitcnt lgkmcnt(0)
    v_and_b32 v1, 63, v0
    v_lshlrev_b32 v1, 2, v1
    v_mov_b32 v2, 0
    s_lshl_b32 s20, s10, 8
    s_add_u32 s20, s20, {WS_CNT}
    buffer_store_dword v2, v1, s[4:7], s20 offen''')
    tl(p, 0, 's2', WS_TL)
    ln_job(p)
    e('s_waitcnt vmcnt(0)')
    tl(p, 1, 's2', WS_TL)
    e('PREP_EXIT:\ns_endpgm')


KD = '''.section .rodata,"a"
.p2align 6
.amdhsa_kernel %s
  .amdhsa_next_free_vgpr %d
  .amdhsa_next_free_sgpr 102
  .amdhsa_accum_offset 256
  .amdhsa_group_segment_fixed_size 0
  .amdhsa_kernarg_size 120
  .amdhsa_user_sgpr_count 2
  .amdhsa_user_sgpr_kernarg_segment_ptr 1
  .amdhsa_system_sgpr_workgroup_id_x 1
.end_amdhsa_kernel
'''

if __name__ == '__main__':
    import sys
    p = Prog()
    prep_kernel(p, 'prep_kernel')
    txt = '; @launch grid=(256,1,1) block=(256,1,1) lds=%d\n.amdgcn_target "amdgcn-amd-amdhsa--gfx950"\n.text\n.globl prep_kernel\n.p2align 8\n.type prep_kernel,@function\n' % P_LDS
    open(sys.argv[1], 'w').write(txt + p.text() + KD % ('prep_kernel', 256))
```

```python
from asmlib import *
from layout import *

sWS = 's[4:7]'
sIDX, sWAVE, sSTEP = 's8', 's9', 's10'
sH = 's11'
sDBG = 's[12:15]'
sM0D = 's[16:19]'
sJ = 's24'
sMEM, sMEM2 = 's26', 's27'
sP, sPRST = 's28', 's29'
sMEMW, sMEMRST = 's32', 's33'
sT0, sT1, sT2, sT3 = 's34', 's35', 's36', 's37'
sTO = 's38'
sSTEP1 = 's39'
sYX = 's40'
sDA = 's41'
sFLG = 's43'
sTIME = 's[44:45]'
sTIME2 = 's[46:47]'
sV0 = 's[48:49]'
sCHK = 's[50:51]'
sXS, sXS2 = 's52', 's53'
sYXS, sYXS2 = 's64', 's65'
sYQ = ['s64', 's65', 's54', 's55']
sPQ = ['s20', 's21', 's22', 's23']
sRO = ['s56', 's57', 's58', 's59']
sSLOW = 's66'
sCNT = ['s68', 's69', 's70', 's71']
NSTAMP = 12
STAMP0 = 72

L_W = 0
L_SP = 4 * 14336
L_DUMP = L_SP + 4 * 1296
L_YM = 10 * 14336
L_END = L_YM + 8192
NF2 = 14
OOB = 0x40000000
TIMEOUT = 200000
FLAG_STRIDE = 640
FLAG2_OFF = 4096 + 128
NREP = [4, 8]


class Cfg:
    stamps = 0
    dual = 1
    alone = 0
    diag = 1
    nsteps = 63
    fake = 0
    delay = 0
    vdelay = 0
    flagpos = 1
    pdelay = 12
    f2pos = 7
    nsc = 2
    gap = 14
    pdepth = 5
    pspace = 9
    vdepth = 3
    fz1 = 4
    fz2 = 11
    qtouch = 0
    vah = 5
    xsall = 1
    rot = 1
    qpace = 2
    chk = 2
    standin = 1
    nowait = 1
    nrep1 = 4
    nrep2 = 8
    qdepth = 4
    qstart = 0
    vstart = 64
    ppace = 0
    prio = 0
    nyx = 14
    tlb = 1
    xsb = 1
    pf = 3


def stamp(p, cfg, i):
    if cfg.stamps:
        p.e(f's_memtime s[{STAMP0 + 2 * i}:{STAMP0 + 2 * i + 1}]')


def nops(e, n):
    while n > 0:
        k = min(n, 16)
        e(f's_nop {k - 1}')
        n -= k


class VM:
    def __init__(self, e, cnt='vmcnt'):
        self.e, self.n, self.tag, self.cnt = e, 0, {}, cnt

    def issue(self, text, tag=None):
        self.e(text)
        self.n += 1
        if tag is not None:
            self.tag[tag] = self.n

    def wait(self, tag):
        self.e(f's_waitcnt {self.cnt}({self.n - self.tag[tag]})')


def team_barrier(p, w, vt):
    e = p.e
    e('s_waitcnt vmcnt(0) lgkmcnt(0)\ns_barrier')
    if w == 0:
        tl(p, 1, 's100', WS_TL + 16384)
        lp, done = p.label('TB'), p.label('TBD')
        e(f"""v_mov_b32 {vt[0]}, 0
        v_mov_b32 {vt[1]}, 1
        s_mov_b64 exec, 1
        buffer_atomic_add {vt[1]}, {vt[0]}, {sDBG}, 0 offen
        {lp}:
        buffer_load_dword {vt[2]}, {vt[0]}, {sDBG}, 0 offen sc1
        s_waitcnt vmcnt(0)
        v_readfirstlane_b32 {sT1}, {vt[2]}
        s_cmp_ge_u32 {sT1}, 32
        s_cbranch_scc1 {done}
        s_sub_u32 {sTO}, {sTO}, 1
        s_cmp_gt_i32 {sTO}, 0
        s_cbranch_scc1 {lp}
        {done}:
        s_mov_b64 exec, -1""")
    e('s_barrier')
    e(f"""v_mov_b32 {vt[0]}, 12
    buffer_load_dword {vt[2]}, {vt[0]}, {sDBG}, 0 offen sc1
    s_waitcnt vmcnt(0)
    v_readfirstlane_b32 {sSLOW}, {vt[2]}""")
    if w == 0:
        tl(p, 2, 's100', WS_TL + 16384)


def epilogue(p, w, cfg, vt):
    e = p.e
    if w == 0:
        tl(p, 3, 's100', WS_TL + 16384)
    if not cfg.diag:
        e('s_endpgm')
        return
    e(f"""s_memtime {sTIME2}
    s_waitcnt lgkmcnt(0) vmcnt(0)
    s_sub_u32 s46, s46, s44
    s_lshl_b32 {sT0}, {sIDX}, 2
    s_add_u32 {sT0}, {sT0}, {w}
    s_lshl_b32 {sT0}, {sT0}, 7
    s_add_u32 {sT0}, {sT0}, {WS_STAMP}
    v_mov_b32 {vt[0]}, 0
    v_mov_b32 {vt[1]}, s46
    buffer_store_dword {vt[1]}, {vt[0]}, {sWS}, {sT0} offen
    v_mov_b32 {vt[1]}, {sTO}
    buffer_store_dword {vt[1]}, {vt[0]}, {sWS}, {sT0} offen offset:4""")
    for i in range(NSTAMP):
        e(f"""v_mov_b32 {vt[1]}, s{STAMP0 + 2 * i}
        buffer_store_dword {vt[1]}, {vt[0]}, {sWS}, {sT0} offen offset:{64 + 4 * i}""")
    for i, c in enumerate(sCNT):
        e(f"""v_mov_b32 {vt[1]}, {c}
        buffer_store_dword {vt[1]}, {vt[0]}, {sWS}, {sT0} offen offset:{40 + 4 * i}""")
    if cfg.stamps:
        e(f's_mov_b32 {sT3}, 0')
        for i in range(24):
            e(f"""s_memrealtime s[44:45]
            s_memtime s[46:47]
            s_waitcnt lgkmcnt(0)
            s_mul_i32 s44, s44, 24
            s_sub_u32 s46, s46, s44""")
            if i == 0:
                e(f's_mov_b32 {sT2}, s46')
            e(f"""s_sub_u32 s46, s46, {sT2}
            s_min_i32 {sT3}, {sT3}, s46
            s_nop {i % 5}""")
        e(f"""s_add_u32 {sT2}, {sT2}, {sT3}
        v_mov_b32 {vt[1]}, {sT2}
        buffer_store_dword {vt[1]}, {vt[0]}, {sWS}, {sT0} offen offset:8""")
    e('s_endpgm')


def flag_store_off(e, dst, vLane, tmp, idx_sgpr, base):
    e(f'''v_mul_u32_u24 {dst}, {FLAG_STRIDE}, {vLane}
    s_lshl_b32 {sT1}, {idx_sgpr}, 2
    s_add_u32 {sT1}, {sT1}, {base}
    v_add_u32 {dst}, {sT1}, {dst}
    v_mov_b32 {tmp}, {OOB}
    v_cmp_gt_u32 vcc, {NREP[1 if base else 0]}, {vLane}
    v_cndmask_b32 {dst}, {tmp}, {dst}, vcc''')


def flag_poll_off(e, dst, vLane, base, last):
    e(f'''s_and_b32 {sT1}, {sIDX}, {NREP[1 if base else 0] - 1}
    s_mul_i32 {sT1}, {sT1}, {FLAG_STRIDE}
    s_add_u32 {sT1}, {sT1}, {base}
    v_min_u32 {dst}, {last}, {vLane}
    v_lshlrev_b32 {dst}, 2, {dst}
    v_add_u32 {dst}, {sT1}, {dst}''')


def engine_wave(p, w, cfg):
    e = p.e
    V = Alloc('v', 0, 64)
    vLane = V.get()
    vt = [V.get() for _ in range(5)]
    vL16, vL128, vFo, vFs, vD, vF = V.get(), V.get(), V.get(), V.get(), V.get(), V.get()
    mreg = V.get(8, 4)
    e(f'''v_and_b32 {vLane}, 63, v0
    v_lshlrev_b32 {vL16}, 4, {vLane}
    v_lshlrev_b32 {vL128}, 7, {vLane}
    s_mov_b32 {sFLG}, {WS_FLAGS}
    s_mov_b32 {sSTEP}, 0
    s_mov_b32 {sTO}, {TIMEOUT}''')
    for c in sCNT:
        e(f's_mov_b32 {c}, 0')
    flag_poll_off(e, vFo, vLane, FLAG2_OFF, NF2 - 1)
    e(f's_mov_b32 {sT2}, {NF2}')
    flag_store_off(e, vFs, vLane, vt[4], sT2, FLAG2_OFF)
    vL4, vOne = V.get(), V.get()
    sG, sCN = 's20', 's21'
    e(f"""v_lshlrev_b32 {vL4}, 2, {vLane}
    v_mov_b32 {vOne}, 1
    s_mov_b32 {sCN}, {WS_CNT}
    s_mov_b32 {sG}, {1000 if cfg.alone else -1}""")
    tail = []

    def gate(need, first):
        GL, GD = p.label('GL'), p.label('GD')
        if not first:
            e(f"""s_cmp_ge_i32 {sG}, 63
            s_cbranch_scc1 {GD}""")
        e(f'{GL}:')
        if not cfg.alone:
            e(f"""buffer_load_dword {vF}, {vL4}, {sWS}, {sCN} offen offset:{C_YX} sc1
            s_waitcnt vmcnt(0)
            v_cmp_gt_u32 vcc, 16, {vF}
            s_ff1_i32_b64 {sG}, vcc
            s_cmp_lt_i32 {sG}, 0
            s_cselect_b32 {sG}, 64, {sG}
            s_sub_u32 {sG}, {sG}, 1""")
        e(f"""s_max_i32 {sT1}, {sG}, 0
        v_mov_b32 {vt[0]}, {sT1}
        buffer_store_dword {vt[0]}, {vFs}, {sWS}, {sFLG} offen {'sc1' if first else ''}""")
        if not first:
            sl, bk = p.label('SL'), p.label('SB')
            e(f"""s_cmp_lg_u32 {sSLOW}, 0
            s_cbranch_scc1 {sl}
            {bk}:""")
            tail.extend([f'{sl}:', f'buffer_store_dword {vt[0]}, {vFs}, {sWS}, {sFLG} offen sc1', f's_branch {bk}'])
        e(f"""s_sub_u32 {sTO}, {sTO}, 1
        s_cmp_gt_i32 {sTO}, 0
        s_cbranch_scc0 {GD}
        s_cmp_lt_i32 {sG}, {need}
        s_cbranch_scc1 {GL}
        {GD}:""")
    if w == 1:
        sk = p.label('SK')
        e(f"""s_cmp_lg_u32 {sH}, 14
        s_cbranch_scc1 {sk}""")
        gate(0, True)
        e(f'{sk}:')
    team_barrier(p, w, vt)
    if cfg.diag:
        e(f's_memtime {sTIME}')
    e(f'''s_sub_u32 {sT2}, {sH}, 14
    s_lshl_b32 {sT2}, {sT2}, 15
    s_add_u32 {sT1}, {sT2}, {WS_MEMR + w * 8192}
    buffer_load_dword {vD}, {vL128}, {sWS}, {sT1} offen sc1
    s_add_u32 {sT1}, {sT2}, {WS_PR + w * 8192}
    buffer_load_dword {vD}, {vL128}, {sWS}, {sT1} offen sc1''')
    LOOP, END, PL, GO, E1, AR, NX = (p.label(x) for x in ('LOOP', 'END', 'PL', 'GO', 'E1', 'AR', 'NX'))
    nq = 16 * cfg.qtouch
    rest = list(range(nq, 56)) if cfg.qtouch else ([u for u in range(56) if u & 3 == 3] + [u for u in range(56) if u & 3 == 1])[:cfg.nyx]
    n1 = min(len(rest), (len(rest) + 7 + 1) // 2)
    u1, u0 = rest[:n1], rest[n1:]
    clampn = lambda d, s_: f's_and_b32 {d}, {s_}, 1' if cfg.fake else f's_min_u32 {d}, {s_}, 63'
    e(f'''{LOOP}:
    s_add_u32 {sT3}, {sSTEP}, {cfg.pf}
    {clampn(sT3, sT3)}
    s_mul_i32 {sYXS}, {sT3}, {28 * 16384}
    s_add_u32 {sYXS}, {sYXS}, {WS_YX}
    s_lshl_b32 {sXS}, {sT3}, 15
    s_add_u32 {sXS}, {sXS}, {WS_XNB + w * 8192}
    s_lshl_b32 {sMEM}, {sSTEP}, 13
    s_add_u32 {sMEMW}, {sMEM}, {WS_MEMA + w * 2048}
    s_add_u32 {sMEM}, {sMEM}, {WS_MEMR + w * 2048}
    s_cmp_lg_u32 {sH}, 14
    s_cbranch_scc1 {E1}''')
    nch = 2 if w < 3 else 1
    e(f'{AR}:')
    for i in range(nch):
        e(f'buffer_load_dwordx4 {mreg[4 * i:4 * i + 4]}, {vL16}, {sWS}, {sMEM} offen offset:{1024 * i} sc1')
    e(f'''s_sub_u32 {sTO}, {sTO}, 1
    s_cmp_gt_i32 {sTO}, 0
    s_cbranch_scc0 {END}
    s_waitcnt vmcnt(0)
    v_max3_u32 {vt[0]}, {mreg[0]}, {mreg[1]}, {mreg[2]}
    v_max_u32 {vt[0]}, {vt[0]}, {mreg[3]}''')
    if nch == 2:
        e(f'''v_max3_u32 {vt[0]}, {vt[0]}, {mreg[4]}, {mreg[5]}
        v_max3_u32 {vt[0]}, {vt[0]}, {mreg[6]}, {mreg[7]}''')
    e(f'''v_cmp_eq_u32 vcc, -1, {vt[0]}
    s_cbranch_vccnz {AR}''')
    for i in range(nch):
        e(f'buffer_store_dwordx4 {mreg[4 * i:4 * i + 4]}, {vL16}, {sWS}, {sMEMW} offen offset:{1024 * i} sc1')
    nt = 1
    if w == 0:
        e(f'''s_add_u32 {sDA}, {sMEM}, {5 * 8192}
        buffer_load_dword {vD}, {vL128}, {sWS}, {sDA} offen sc1''')
        nt += 1
    e(f'buffer_load_dword {vD}, {vL128}, {sWS}, {sXS} offen sc1')
    for u in u0[(3 - w)::4]:
        e(f'''s_add_u32 {sDA}, {sYXS}, {u * 8192}
        buffer_load_dword {vD}, {vL128}, {sWS}, {sDA} offen sc1''')
        nt += 1
    e(f"""s_cmp_ge_u32 {sSTEP}, {cfg.nsteps - 1}
    s_cbranch_scc1 {END}""")
    if w == 1:
        e(f's_add_u32 {sT2}, {sSTEP}, 1')
        e(f's_min_u32 {sT2}, {sT2}, 63')
        gate(sT2, False)
    e(f'''s_branch {NX}
    {E1}:
    s_cmp_ge_u32 {sSTEP}, {cfg.nsteps - cfg.pf}
    s_cbranch_scc1 {END}''')
    for u in u1[w::4]:
        e(f'''s_add_u32 {sDA}, {sYXS}, {u * 8192}
        buffer_load_dword {vD}, {vL128}, {sWS}, {sDA} offen sc1''')
    e(f'''{NX}:
    s_add_u32 {sSTEP}, {sSTEP}, 1''')
    if w == 0:
        e(f'''{PL}:
        buffer_load_dword {vF}, {vFo}, {sWS}, {sFLG} offen sc1
        s_sub_u32 {sTO}, {sTO}, 1
        s_cmp_gt_i32 {sTO}, 0
        s_cbranch_scc0 {GO}
        s_waitcnt vmcnt(0)
        v_cmp_gt_u32 vcc, {sSTEP}, {vF}
        s_cbranch_vccnz {PL}
        {GO}:''')
    e(f'''s_barrier
    s_branch {LOOP}
    {END}:''')
    epilogue(p, w, cfg, vt)
    for l in tail:
        e(l)


def team_wave(p, role, w, cfg):
    NREP[0], NREP[1] = cfg.nrep1, cfg.nrep2
    if role == 2:
        return engine_wave(p, w, cfg)
    qk = role == 0
    NT = 7 if qk else 8
    NR = 5 if qk else 8
    AH = 4 if qk else cfg.vah
    fin = not qk and w < 2
    slots = (QK_SLOTS if qk else VO_SLOTS)[w]
    V = Alloc('v', 0, 254)
    A = Alloc('a', 0, 256)
    vLane = V.get()
    vG, vC = V.get(), V.get()
    vt = [V.get() for _ in range(5)]
    vIdx, vL16, vStep, vFo, vFs, vNeg1, vWL = (V.get() for _ in range(7))
    lds_tiles = [4] if qk else ([5, 6, 7] if fin else [6, 7])
    memA = V.get(28, 4)
    stg = V.get(16 * len(lds_tiles), 4)
    assert stg.base == memA.base + 28
    Tacc = V.get(4 * NT, 4)
    wl0 = L_W + (w if qk else [0, 3, 6, 8][w]) * 14336
    lds_rel = {t: i * 14336 for i, t in enumerate(lds_tiles)}
    if qk:
        Did = V.get(8, 4)
        AS = V.get(8, 4)
        xsB = V.get(32, 4)
        Alast = V.get(4, 4)
        Sx = V.get(8, 4)
        Sm = V.get(4, 4)
        Idn = V.get(4, 4)
        vSW, vSW2, vSR, vPo, vL128, vSZ = (V.get() for _ in range(6))
        if w == 3:
            Mx = V.get(4, 4)
        Fp = [Did[i] for i in range(8)]
        toucher = w >= 4 - cfg.qtouch
    else:
        Ym = V.get(8, 4)
        vYW = V.get()
        Fp = [memA[20 + i] for i in range(8)]
        if fin:
            YX = V.get(64, 4)
            vMo, vMr = V.get(), V.get()
            Afin = R('v', memA.base, 40)
            BM = stg[16:32]
            Facc = stg[32:36]
            Bfin = [BM[0:8], BM[8:16]] + [YX[8 * i:8 * i + 8] for i in range(8)]
    poller = (qk and w == 0) or (not qk and w >= 2)
    frag = {}
    for t in range(NT):
        if t in lds_tiles:
            continue
        for k in range(7):
            frag[(t, k)] = A.get(8, 4) if A.left() >= 8 else V.get(8, 4)
    e = p.e

    e(f'''v_and_b32 {vLane}, 63, v0
    v_lshrrev_b32 {vG}, 4, {vLane}
    v_and_b32 {vC}, 15, {vLane}
    v_lshlrev_b32 {vL16}, 4, {vLane}
    v_add_u32 {vWL}, {wl0}, {vL16}
    v_bfe_u32 {vt[0]}, {vC}, 1, 1          ; v(c)
    v_lshrrev_b32 {vt[1]}, 2, {vC}
    v_lshlrev_b32 {vt[1]}, 1, {vt[1]}
    v_and_b32 {vt[2]}, 1, {vC}
    v_add_u32 {vt[1]}, {vt[1]}, {vt[2]}    ; m(c)
    v_mul_u32_u24 {vIdx}, 0xaaaa, {vt[0]}
    v_add_u32 {vIdx}, 0x4444, {vIdx}
    v_mov_b32 {vNeg1}, -1
    s_mov_b32 {sFLG}, {WS_FLAGS}
    s_mul_i32 {sT0}, {sH}, {28 * 14336 if qk else 2 * 14336}''')
    n_out = 0
    for t in range(NT):
        for k in range(7):
            if qk:
                st_, pos = QK_TILES[w][t]
                T = 2 * set_quad(w, st_, pos & 1, pos >> 1) + (pos >> 1)
                off = WS_WQK + (T * 7 + slots[k]) * 2048
            else:
                off = WS_WVO + (((4 * w + (t & 3)) * 28 + (t >> 2)) * 7 + slots[k]) * 2048
            e(f's_add_u32 {sT1}, {sT0}, {off}')
            if t in lds_tiles:
                e(f'''s_mov_b32 m0, {wl0 + lds_rel[t] + k * 2048}
                buffer_load_dwordx4 {vL16}, {sWS}, {sT1} offen sc1 lds
                buffer_load_dwordx4 {vL16}, {sWS}, {sT1} offen offset:1024 sc1 lds''')
            else:
                f = frag[(t, k)]
                e(f'''buffer_load_dwordx4 {f[0:4]}, {vL16}, {sWS}, {sT1} offen sc1
                buffer_load_dwordx4 {f[4:8]}, {vL16}, {sWS}, {sT1} offen offset:1024 sc1''')
            n_out += 2
            if n_out >= 48:
                e('s_waitcnt vmcnt(24)')
                n_out = 24
    if qk:
        e(f'''v_lshlrev_b32 {vL128}, 7, {vLane}
        v_lshrrev_b32 {vt[2]}, 2, {vC}
        v_and_b32 {vt[3]}, 1, {vC}
        v_lshlrev_b32 {vt[3]}, 4, {vt[3]}
        v_mov_b32 {vt[4]}, 0x3f80
        v_lshlrev_b32 {vt[3]}, {vt[3]}, {vt[4]}
        v_cmp_eq_u32 vcc, {vt[2]}, {vG}
        v_cndmask_b32 {vt[3]}, 0, {vt[3]}, vcc
        v_cmp_eq_u32 vcc, 0, {vt[0]}
        v_cndmask_b32 {Idn[0]}, 0, {vt[3]}, vcc
        v_cndmask_b32 {Idn[1]}, 0, {vt[3]}, vcc
        v_cndmask_b32 {Idn[2]}, {vt[3]}, 0, vcc
        v_cndmask_b32 {Idn[3]}, {vt[3]}, 0, vcc
        s_mov_b64 {sV0}, vcc
        v_mul_u32_u24 {vt[2]}, 320, {vG}
        v_add_u32 {vt[2]}, {L_SP + w * 1296}, {vt[2]}
        v_and_b32 {vt[3]}, 12, {vC}
        v_add_u32 {vt[3]}, {vt[3]}, {vC}
        v_lshl_add_u32 {vSW}, {vt[3]}, 2, {vt[2]}
        v_lshl_add_u32 {vt[2]}, {vt[1]}, 2, {vt[2]}
        v_add_u32 {vt[2]}, 128, {vt[2]}
        v_lshlrev_b32 {vt[3]}, 2, {vC}
        v_add_u32 {vt[3]}, {L_DUMP}, {vt[3]}
        v_cndmask_b32 {vSW2}, {vt[3]}, {vt[2]}, vcc
        v_lshrrev_b32 {vt[0]}, 5, {vLane}
        v_and_b32 {vt[1]}, 31, {vLane}
        v_mul_u32_u24 {vt[2]}, 160, {vt[0]}
        v_lshl_add_u32 {vt[2]}, {vt[1]}, 3, {vt[2]}
        v_add_u32 {vt[2]}, {L_SP + 2 * w * 160}, {vt[2]}
        v_mov_b32 {vt[3]}, {L_SP + 1280}
        v_cmp_gt_u32 vcc, 20, {vt[1]}
        v_cndmask_b32 {vSR}, {vt[3]}, {vt[2]}, vcc
        v_mov_b32 {vt[3]}, {L_SP + 1288}
        v_cndmask_b32 {vSZ}, {vt[3]}, {vt[2]}, vcc
        v_and_b32 {vt[2]}, 1, {vt[1]}
        v_lshl_add_u32 {vt[2]}, {vt[2]}, 1, {vt[0]}
        v_lshlrev_b32 {vt[2]}, 4, {vt[2]}
        v_bfe_u32 {vt[3]}, {vt[1]}, 3, 1
        v_lshl_add_u32 {vt[3]}, {vt[3]}, 8, {vt[2]}
        v_bfe_u32 {vt[4]}, {vt[1]}, 1, 2
        v_lshl_add_u32 {vt[3]}, {vt[4]}, 2, {vt[3]}
        s_lshl_b32 {sT1}, {sH}, 9
        s_add_u32 {sT1}, {sT1}, {2048 + 64 * w}
        v_add_u32 {vt[3]}, {sT1}, {vt[3]}
        v_bfe_u32 {vt[2]}, {vt[1]}, 1, 1
        v_lshlrev_b32 {vt[2]}, 8, {vt[2]}
        v_lshl_add_u32 {vt[2]}, {vt[0]}, 4, {vt[2]}
        v_and_b32 {vt[4]}, 1, {vt[1]}
        v_lshl_add_u32 {vt[2]}, {vt[4]}, 3, {vt[2]}
        s_lshr_b32 {sT1}, {sH}, 2
        s_lshl_b32 {sT1}, {sT1}, 9
        s_and_b32 {sT2}, {sH}, 1
        s_lshl_b32 {sT2}, {sT2}, 5
        s_add_u32 {sT1}, {sT1}, {sT2}
        s_and_b32 {sT2}, {sH}, 2
        s_lshl_b32 {sT2}, {sT2}, 1
        s_add_u32 {sT1}, {sT1}, {sT2}
        s_add_u32 {sT1}, {sT1}, {64 * w}
        v_add_u32 {vt[2]}, {sT1}, {vt[2]}
        v_mov_b32 {vt[4]}, {OOB}
        v_cndmask_b32 {vt[2]}, {vt[4]}, {vt[2]}, vcc
        v_cmp_gt_u32 vcc, 16, {vt[1]}
        v_cndmask_b32 {vPo}, {vt[2]}, {vt[3]}, vcc''')
        for r in range(4):
            e(f'''s_mov_b32 {sT1}, {WS_PR + r * 16384}
            buffer_store_dword {vNeg1}, {vPo}, {sWS}, {sT1} offen sc1''')
        e(f"""v_mov_b32 {vt[2]}, {L_SP + w * 1296 + 1280}
        v_mov_b32 {vt[3]}, 0xf149f2ca
        ds_write2_b32 {vt[2]}, {vt[3]}, {vt[3]} offset0:0 offset1:1""")
        flag_store_off(e, vFs, vLane, vt[4], sH, 0)
        if w == 1:
            e(f'''v_mov_b32 {vt[4]}, 0
            buffer_store_dword {vt[4]}, {vFs}, {sWS}, {sFLG} offen sc1''')
        for i in range(4):
            e(f'v_mov_b32 {Alast[i]}, 0')
        if poller:
            flag_poll_off(e, vFo, vLane, FLAG2_OFF, NF2)
        e(f'''s_mul_i32 {sYX}, {sH}, {cfg.qtouch * 8192}
        s_add_u32 {sYX}, {sYX}, {WS_YX + (3 - w) * 8192}''')
    else:
        e(f'v_add_u32 {vYW}, {L_YM}, {vL16}')
        if fin:
            e(f'''s_lshl_b32 {sJ}, {sH}, 1
            s_add_u32 {sJ}, {sJ}, {w}
            v_lshrrev_b32 {vt[2]}, 3, {vC}
            v_lshlrev_b32 {vt[2]}, 5, {vt[2]}
            v_lshl_add_u32 {vt[2]}, {vG}, 6, {vt[2]}
            v_and_b32 {vt[3]}, 7, {vC}
            v_lshl_add_u32 {vt[2]}, {vt[3]}, 1, {vt[2]}
            s_lshl_b32 {sT1}, {sJ}, 8
            v_add_u32 {vMo}, {sT1}, {vt[2]}
            v_lshlrev_b32 {vt[2]}, 2, {vLane}
            v_add_u32 {vMr}, {sT1}, {vt[2]}
            s_lshl_b32 {sYX}, {sJ}, 14
            s_add_u32 {sYX}, {sYX}, {WS_YX}''')
            for g_ in range(4):
                e(f'''s_add_u32 {sRO[g_]}, {sJ if cfg.rot else 0}, {g_}
                s_and_b32 {sRO[g_]}, {sRO[g_]}, 3
                s_lshl_b32 {sRO[g_]}, {sRO[g_]}, 11''')
            e(f'''v_bfe_u32 {vt[2]}, {vLane}, 2, 1
            v_lshl_add_u32 {vt[2]}, {vG}, 1, {vt[2]}
            v_mul_u32_u24 {vt[2]}, 896, {vt[2]}
            v_bfe_u32 {vt[3]}, {vLane}, 3, 1
            v_lshl_add_u32 {vt[2]}, {vt[3]}, 6, {vt[2]}
            v_and_b32 {vt[3]}, 3, {vLane}
            v_lshl_add_u32 {vt[2]}, {vt[3]}, 2, {vt[2]}
            s_lshr_b32 {sT1}, {sJ}, 2
            s_lshl_b32 {sT1}, {sT1}, 7
            s_and_b32 {sT2}, {sJ}, 3
            s_lshl_b32 {sT2}, {sT2}, 4
            s_add_u32 {sT1}, {sT1}, {sT2}
            buffer_load_dword {vt[3]}, {vt[2]}, {sM0D}, {sT1} offen
            s_waitcnt vmcnt(0)
            s_mov_b32 {sT1}, {WS_MEMR}
            buffer_store_dword {vt[3]}, {vMr}, {sWS}, {sT1} offen sc1''')
            for r in range(1, 3):
                e(f'''s_mov_b32 {sT1}, {WS_MEMR + r * 8192}
                buffer_store_dword {vNeg1}, {vMr}, {sWS}, {sT1} offen sc1''')
            flag_store_off(e, vFs, vLane, vt[4], sH, FLAG2_OFF)
            if w == 0:
                e(f'''v_mov_b32 {vt[4]}, 0
                buffer_store_dword {vt[4]}, {vFs}, {sWS}, {sFLG} offen sc1''')
        if w == 2:
            flag_poll_off(e, vFo, vLane, 0, 15)
        if w == 3:
            flag_poll_off(e, vFo, vLane, FLAG2_OFF, NF2)

    def xs_bases(nxt):
        if cfg.xsall:
            return [f's_lshl_b32 {sXS}, {nxt}, 15', f's_add_u32 {sXS}, {sXS}, {WS_XNB + w * 8192}', f's_add_u32 {sXS2}, {sXS}, 4096']
        return [f's_add_u32 {sXS2}, {sXS}, 4096', f's_lshl_b32 {sXS}, {nxt}, 15', f's_add_u32 {sXS}, {sXS}, {WS_XNB + w * 8192}']

    def xs_loads():
        return [f'buffer_load_dwordx4 {xsB[4 * i:4 * i + 4]}, {vL16}, {sWS}, {sXS if i < 4 else sXS2} offen '
                f'offset:{(i & 3) * 1024} sc1' for i in range(8)]

    winA = []
    if qk:
        winA = xs_loads()[(0 if cfg.xsall else 4):]
        if toucher:
            winA += [f'buffer_load_dword {vt[3]}, {vL128}, {sWS}, {sYXS} offen sc1']
    elif fin:
        winA = [f'buffer_store_dword {vNeg1}, {vMr}, {sWS}, {sMEMRST} offen']
        winA += [f'buffer_load_dwordx4 {YX[4 * i:4 * i + 4]}, {vL16}, {sWS}, {sYQ[i >> 2]} offen '
                 f'offset:{(i & 3) * 1024} sc1' for i in range(16)]

    e(f"""s_mov_b32 {sSTEP}, 0
    s_mov_b32 {sTO}, {TIMEOUT}""")
    for c in sCNT:
        e(f's_mov_b32 {c}, 0')
    if qk:
        for l in ([] if cfg.xsall else xs_bases(sSTEP)[1:] + xs_loads()[:4]):
            e(l)
        if cfg.nowait:
            e(f'v_mov_b32 {vt[0]}, -1\nv_mov_b32 {vt[1]}, -1')
            assert vt[1].base == vt[0].base + 1
            for i in range(4):
                e(f'ds_write2_b32 {vSZ}, {vNeg1}, {vNeg1} offset0:0 offset1:1' if i == 0 else
                  f'v_add_u32 {vt[2]}, {1296 * i}, {vSZ}\nds_write2_b32 {vt[2]}, {vNeg1}, {vNeg1} offset0:0 offset1:1')
    team_barrier(p, w, vt)
    if cfg.diag:
        e(f's_memtime {sTIME}')

    LOOP, END = p.label('LOOP'), p.label('END')
    FAIL, JOIN = p.label('FAIL'), p.label('JOIN')
    tail = []
    vm = VM(e)
    lg = VM(e, 'lgkmcnt')

    def slow(texts):
        if cfg.dual:
            sl, bk = p.label('SL'), p.label('SB')
            e(f's_cmp_lg_u32 {sSLOW}, 0')
            e(f's_cbranch_scc1 {sl}')
            e(f'{bk}:')
            tail.extend([f'{sl}:'] + [t + ' sc1' for t in texts] + [f's_branch {bk}'])

    def st2(text):
        vm.issue(text)
        slow([text])

    nside = [0]

    def side(text):
        if 'store' in text:
            st2(text)
        else:
            nside[0] += 1
            vm.issue(text, ('side', nside[0]))

    def chunk_txt(k, fl):
        off = slots[k] * 1024
        so = sMEM if off < 4096 else sMEM2
        return f'buffer_load_dwordx4 {memA[4 * k:4 * k + 4]}, {vL16}, {sWS}, {so} offen offset:{off & 4095} {fl}'

    def chunk_load(k):
        vm.issue(chunk_txt(k, '' if k >= cfg.nsc else 'sc1'), ('c', k))

    def stg_read(k):
        o = []
        for i, t in enumerate(lds_tiles):
            r = stg[16 * i + 8 * (k & 1):16 * i + 8 * (k & 1) + 8]
            o.append(f'ds_read_b128 {r[0:4]}, {vWL} offset:{lds_rel[t] + k * 2048}')
            o.append(f'ds_read_b128 {r[4:8]}, {vWL} offset:{lds_rel[t] + k * 2048 + 1024}')
        return o

    def wfrag(t, k):
        if t in lds_tiles:
            i = lds_tiles.index(t)
            return stg[16 * i + 8 * (k & 1):16 * i + 8 * (k & 1) + 8]
        return frag[(t, k)]

    def smf_txt(t, k):
        return f'v_smfmac_f32_16x16x64_bf16 {Tacc[4 * t:4 * t + 4]}, {memA[4 * k:4 * k + 4]}, {wfrag(t, k)}, {vIdx}'

    def smf(t, k):
        e(smf_txt(t, k))

    def slot_calc():
        e(f"""s_lshl_b32 {sMEM}, {sSTEP}, 13
        s_add_u32 {sMEM}, {sMEM}, {WS_MEMR}
        s_add_u32 {sMEM2}, {sMEM}, 4096""")

    clampn = lambda d, s_: f's_and_b32 {d}, {s_}, 1' if cfg.fake else f's_min_u32 {d}, {s_}, 63'
    sal = [f's_add_u32 {sSTEP1}, {sSTEP}, 1', f's_mov_b64 {sCHK}, -1', f'v_mov_b32 {vStep}, {sSTEP1}',
           f's_and_b32 {sT0}, {sSTEP}, 3', f's_lshl_b32 {sP}, {sT0}, 14']
    if qk:
        sal += [f's_add_u32 {sP}, {sP}, {WS_PR}', f's_xor_b32 {sPRST}, {sP}, {2 << 14}', clampn(sT3, sSTEP if cfg.xsall else sSTEP1)] + xs_bases(sT3)
        if toucher:
            sal += [f's_add_u32 {sT3}, {sSTEP}, {cfg.pf}', clampn(sT3, sT3), f's_mul_i32 {sYXS}, {sT3}, {28 * 16384}',
                    f's_add_u32 {sYXS}, {sYXS}, {sYX}']
    elif fin:
        sal += [f's_add_u32 {sP}, {sP}, {WS_PR}',
                f's_add_u32 {sMEMW}, {sMEM}, 8192', f's_add_u32 {sMEMRST}, {sMEM}, 16384',
                clampn(sT3, sSTEP), f's_mul_i32 {sT3}, {sT3}, {28 * 16384}', f's_add_u32 {sT3}, {sT3}, {sYX}']
        sal += [f's_lshl1_add_u32 {sYQ[i]}, {sRO[i]}, {sT3}' for i in range(4)]
        sal += [f's_add_u32 {sPQ[i]}, {sP}, {sRO[i]}' for i in range(4)]
    assert (WS_PR & (3 << 14)) == 0
    zero_all = [f'v_mov_b32 {Tacc[i]}, 0' for i in range(4 * NT)]
    if qk:
        zero_all += [f'v_mov_b32 {Sx[i]}, 0' for i in range(8)]
    for l in zero_all:
        e(l)
    zq = list(zero_all)

    def fz(n):
        for _ in range(n):
            if zq:
                e(zq.pop(0))

    def poll_loop(nd, tgt=None):
        PL, GO = p.label('PL'), p.label('GO')
        GL = GO
        if tgt:
            GO = tgt
        pl = lambda i: f'buffer_load_dword {Fp[i]}, {vFo}, {sWS}, {sFLG} offen sc1'
        for i in range(nd):
            e(pl(i))
            if i < nd - 1:
                nops(e, cfg.pspace * cfg.pdepth // nd)
        e(f'{PL}:')
        for i in range(nd):
            e(f"""s_waitcnt vmcnt({nd - 1})
            v_cmp_gt_u32 vcc, {sSTEP1}, {Fp[i]}
            {pl(i)}
            s_cbranch_vccz {GO}""")
        e(f"""s_sub_u32 {sTO}, {sTO}, 1
        s_cmp_gt_i32 {sTO}, 0
        s_cbranch_scc1 {PL}
        {GL}:""")

    def loop_end(polls):
        e(f"""s_cmp_ge_u32 {sSTEP}, {cfg.nsteps}
        s_cbranch_scc1 {END}""")
        if polls:
            polls()
        e(f's_branch {LOOP}')

    slot_calc()
    if cfg.prio and fin and w == 0:
        e('s_setprio 2')
    e(f'{LOOP}:')
    if not fin:
        stamp(p, cfg, 7)
    e('s_barrier')
    stamp(p, cfg, 0)
    nops(e, cfg.delay if qk else cfg.vdelay)
    fill = stg_read(0) + stg_read(1) + sal
    per = (len(fill) + AH - 2) // (AH - 1)
    for k in range(AH):
        chunk_load(k)
        if k < AH - 1:
            part = fill[k * per:(k + 1) * per]
            for l in part:
                if l.startswith('ds_'):
                    lg.issue(l)
                else:
                    e(l)
            nops(e, cfg.gap - len(part))
    for i, t in enumerate(lds_tiles):
        lg.tag[('s', 0, t)] = lg.n - 4 * len(lds_tiles) + 2 * (i + 1)
        lg.tag[('s', 1, t)] = lg.n - 2 * len(lds_tiles) + 2 * (i + 1)
    stamp(p, cfg, 1)

    def retry(k):
        RT, BK = p.label('RT'), p.label('BK')
        nre = 2 if cfg.chk == 2 else AH + 1
        t = [f'{RT}:', f's_add_u32 {sCNT[3]}, {sCNT[3]}, 1'] + [chunk_txt(kk, 'sc1') for kk in range(k, min(7, k + nre))]
        t += [f's_sub_u32 {sTO}, {sTO}, 1', f's_cmp_gt_i32 {sTO}, 0', f's_cbranch_scc0 {END}']
        if k == 0:
            t += zero_all[:12]
        t += ['s_waitcnt vmcnt(0)', f'v_cmp_eq_u32 vcc, -1, {memA[4 * k]}', f's_cbranch_vccnz {RT}']
        if k == 0:
            t += [smf_txt(0, 0), smf_txt(1, 0), smf_txt(2, 0)]
        t += [f's_branch {BK}']
        tail.extend(t)
        e(f's_cbranch_vccnz {RT}')
        e(f'{BK}:')

    def cv_txt(t, i):
        a = Tacc[4 * t:4 * t + 4]
        if t == 6:
            dst = Alast[2 * (QK_TILES[w][6][1] & 1) + i]
        else:
            dst = Tacc[4 * (t & ~1) + 2 * (t & 1) + i]
        return f'v_cvt_pk_bf16_f32 {dst}, {a[2 * i]}, {a[2 * i + 1]}'
    late_v = [cv_txt(0, 0), cv_txt(0, 1), cv_txt(1, 0)] if qk else []
    chk = cfg.chk if qk else 2

    vm.wait(('c', 0))
    stamp(p, cfg, 9)
    nslot = 0
    pace = cfg.qpace if qk else 2
    early = 1 if (qk and cfg.xsall) else 0
    for k in range(7):
        sr = stg_read(k + 1) if 1 <= k <= 5 else []
        for t in range(NR):
            smf(t, k)
            used = 0
            if k == 0 and t == 2 and chk:
                retry(0)
            if t == NR - 1 and k < 6 and chk == 2:
                retry(k + 1)
                used = 1
            if t == 0 and k + AH < 7:
                chunk_load(k + AH)
                used = 1
            elif k + AH + early >= 7 and nslot % pace == 0 and winA and not used:
                side(winA.pop(0))
                used = 1
            if k + AH + early >= 7:
                nslot += 1
            if sr and (not used or (len(sr) > NR - 1 - t)):
                lg.issue(sr.pop(0), ('s', k + 1, lds_tiles[len(lds_tiles) - 1 - len(sr) // 2]))
            if t + 1 in lds_tiles:
                lg.wait(('s', k, t + 1))
            if k == 0 and t == 0 and chk:
                e(f'v_cmp_eq_u32 vcc, -1, {memA[0]}')
            if chk == 2:
                if t == NR - 3 and k < 6:
                    vm.wait(('c', k + 1))
                    e(f'v_cmp_eq_u32 vcc, -1, {memA[4 * k + 4]}')
            elif t == NR - 1 and k < 6:
                vm.wait(('c', k + 1))
            if qk and k == 6 and t >= 2:
                e(late_v[t - 2])
        assert not sr
    tail += [f'{FAIL}:', f's_add_u32 {sCNT[0]}, {sCNT[0]}, 1', f's_mov_b64 {sCHK}, 0', f'{FAIL}b:']
    tail += [chunk_txt(k, 'sc1') for k in range(7)]
    tail += [f's_sub_u32 {sTO}, {sTO}, 1', f's_cmp_gt_i32 {sTO}, 0', f's_cbranch_scc0 {END}']
    tail += zero_all[:4 * NT] + stg_read(0) + stg_read(1) + ['s_waitcnt vmcnt(0)']
    tail += [f'v_max3_u32 {vt[0]}, {memA[0]}, {memA[1]}, {memA[2]}']
    for i in range(3, 27, 2):
        tail += [f'v_max3_u32 {vt[0]}, {vt[0]}, {memA[i]}, {memA[i + 1]}']
    tail += [f'v_max_u32 {vt[0]}, {vt[0]}, {memA[27]}', f'v_cmp_eq_u32 vcc, -1, {vt[0]}', f's_cbranch_vccnz {FAIL}b']
    nl = 2 * len(lds_tiles)
    for k in range(7):
        tail += [f's_waitcnt lgkmcnt({nl if k < 6 else 0})'] + [smf_txt(t, k) for t in range(NR)]
        if k < 5:
            tail += stg_read(k + 2)
    tail += late_v + ['s_nop 7', f's_branch {JOIN}']
    e(f'{JOIN}:')
    stamp(p, cfg, 2)

    def check_branch():
        e(f's_and_b64 vcc, vcc, {sCHK}')
        e(f's_cbranch_scc1 {FAIL}')

    if qk:
        assert not winA

        def cv(t, i):
            e(cv_txt(t, i))

        def ident(pair, hi):
            src = Alast if pair == 3 else Tacc[8 * pair:8 * pair + 4]
            e(f'v_mfma_f32_16x16x32_bf16 {Did[4 * hi:4 * hi + 4]}, {src}, {Idn}, 0')

        def cv2(st, hi, i):
            d = Did[4 * hi:4 * hi + 4]
            e(f'v_cvt_pk_bf16_f32 {AS[4 * st + 2 * hi + i]}, {d[2 * i]}, {d[2 * i + 1]}')

        def sx(st, kt):
            e(f'v_smfmac_f32_16x16x64_bf16 {Sx[4 * kt:4 * kt + 4]}, {AS[4 * st:4 * st + 4]}, '
              f'{xsB[16 * st + 8 * kt:16 * st + 8 * kt + 8]}, {vIdx}')

        def sm(st):
            b = Mx if (w == 3 and st == 1) else memA[4 * st:4 * st + 4]
            e(f'v_mfma_f32_16x16x32_bf16 {Sm}, {AS[4 * st:4 * st + 4]}, {b}, {0 if st == 0 else Sm}')

        def flag(pos):
            if cfg.flagpos == pos and w == 1:
                vm.issue(f'buffer_store_dword {vStep}, {vFs}, {sWS}, {sFLG} offen')
                stamp(p, cfg, 8)

        if w == 3:
            zq[0:0] = [f'v_cndmask_b32 {Mx[0]}, {memA[8]}, {memA[4]}, {sV0}',
                       f'v_cndmask_b32 {Mx[1]}, {memA[9]}, {memA[5]}, {sV0}',
                       f'v_mov_b32 {Mx[2]}, {memA[14]}', f'v_mov_b32 {Mx[3]}, {memA[15]}']
        fh = QK_TILES[w][4][1] >> 1
        smf(5, 0); cv(1, 1)
        smf(5, 1); cv(2, 0)
        ident(0, 0); cv(2, 1); cv(3, 0)
        smf(5, 2); cv(3, 1)
        smf(5, 3); cv(4, 0)
        ident(1, 1); cv2(0, 0, 0); cv2(0, 0, 1)
        smf(5, 4); e(f'v_cmp_u_f32 vcc, {Did[0]}, {Did[1]}')
        smf(5, 5); cv(4, 1)
        smf(5, 6); cv2(0, 1, 0)
        smf(6, 0); cv2(0, 1, 1)
        smf(6, 1); check_branch()
        smf(6, 2); cv(5, 0)
        smf(6, 3); cv(5, 1)
        smf(6, 4); fz(1)
        smf(6, 5); fz(1)
        smf(6, 6); fz(1)
        ident(2, fh); fz(2)
        sm(0); cv(6, 0); cv(6, 1)
        fz(1); cv2(1, fh, 0)
        nx = 8 if cfg.xsall else 4
        ident(3, 1 - fh)
        if cfg.xsall:
            vm.wait(('side', 4))
        cv2(1, fh, 1); fz(1)
        sx(0, 0); fz(1)
        sx(0, 1)
        cv2(1, 1 - fh, 0); cv2(1, 1 - fh, 1)
        fz(1)
        vm.wait(('side', nx - 2))
        sx(1, 0)
        vm.wait(('side', nx))
        sx(1, 1)
        sm(1)
        flag(-3)
        stamp(p, cfg, 3)
        e(f"""v_add_f32 {Sx[0]}, {Sx[0]}, {Sx[2]}
        v_add_f32 {Sx[1]}, {Sx[1]}, {Sx[3]}
        ds_write2_b32 {vSW}, {Sx[0]}, {Sx[1]} offset0:0 offset1:40
        v_add_f32 {Sx[4]}, {Sx[4]}, {Sx[6]}
        v_add_f32 {Sx[5]}, {Sx[5]}, {Sx[7]}
        ds_write2_b32 {vSW}, {Sx[4]}, {Sx[5]} offset0:4 offset1:44
        v_add_f32_dpp {Sm[0]}, {Sm[2]}, {Sm[0]} quad_perm:[2,3,0,1] row_mask:0xf bank_mask:0xf
        v_add_f32_dpp {Sm[1]}, {Sm[3]}, {Sm[1]} quad_perm:[2,3,0,1] row_mask:0xf bank_mask:0xf
        ds_write2_b32 {vSW2}, {Sm[0]}, {Sm[1]} offset0:0 offset1:40""")
        flag(-2)
        fz(cfg.fz1 - 1)
        flag(-1)
        fz(1)
        assert len(zq) >= 8
        if not cfg.nowait:
            e('s_waitcnt lgkmcnt(0)')
        e('s_barrier')
        stamp(p, cfg, 4)
        dpps = ['quad_perm:[1,0,3,2]', 'quad_perm:[2,3,0,1]', 'row_half_mirror', 'row_mirror']
        x, y = vt[0], vt[1]
        r = R('v', memA.base, 12)
        warm = lambda n: [e(zq.pop(0)) if len(zq) > 8 else e(f'v_mov_b32 {vt[4]}, 0') for _ in range(n)]
        rd_txt = [f'ds_read_b64 {r[2 * i:2 * i + 2]}, {vSR} offset:{1296 * i}' for i in range(4)]
        for i in range(4):
            e(rd_txt[i])
            if i % 2 == 0:
                warm(1)
        warm(1)
        flag(0)
        warm(cfg.fz2 - 3)
        flag(1)
        warm(1)
        add_txt = f"""s_waitcnt lgkmcnt(2)
        v_add_f32 {r[0]}, {r[0]}, {r[2]}
        v_add_f32 {r[1]}, {r[1]}, {r[3]}
        s_waitcnt lgkmcnt(0)
        v_add_f32 {r[4]}, {r[4]}, {r[6]}
        v_add_f32 {r[5]}, {r[5]}, {r[7]}
        v_add_f32 {r[0]}, {r[0]}, {r[4]}
        v_add_f32 {r[1]}, {r[1]}, {r[5]}"""
        e(add_txt)

        def allred(op, em, main):
            for i, d in enumerate(dpps):
                pos_ = (2 if op == 'max' else 8) + i
                if main and cfg.flagpos == pos_ and w == 1:
                    flag(pos_)
                elif main:
                    fz(2)
                em(f'v_{op}_f32_dpp {x}, {x}, {x} {d} row_mask:0xf bank_mask:0xf')
            em(f'v_mov_b32 {y}, {x}')
            if op == 'max' and main:
                flag(6)
            em(f'v_permlane16_swap_b32 {x}, {y}')
            em(f'v_{op}_f32 {x}, {x}, {y}')

        pst_txt = f'buffer_store_dword {y}, {vPo}, {sWS}, {sP} offen'

        def softmax_true(em, main):
            em(f'v_max_f32 {x}, {r[0]}, {r[1]}')
            allred('max', em, main)
            for l in (f'v_sub_f32 {r[8]}, {r[0]}, {x}', f'v_sub_f32 {r[9]}, {r[1]}, {x}',
                      f'v_exp_f32 {r[8]}, {r[8]}', f'v_exp_f32 {r[9]}, {r[9]}'):
                em(l)
            if main:
                flag(7)
            em(f'v_add_f32 {x}, {r[8]}, {r[9]}')
            allred('add', em, main)
            for l in (f'v_rcp_f32 {r[10]}, {x}', f'v_subrev_u32 {x}, 0x21800000, {x}', f'v_mul_f32 {r[8]}, {r[8]}, {r[10]}',
                      f'v_mul_f32 {r[9]}, {r[9]}, {r[10]}', f'v_cvt_pk_bf16_f32 {y}, {r[8]}, {r[9]}'):
                em(l)
        if cfg.standin:
            e(f"""v_exp_f32 {r[8]}, {r[0]}
            v_exp_f32 {r[9]}, {r[1]}""")
            flag(7)
            e(f'v_add_f32 {x}, {r[8]}, {r[9]}')
            allred('add', e, True)
            e(f"""v_rcp_f32 {r[10]}, {x}
            v_subrev_u32 {x}, 0x21800000, {x}
            v_mul_f32 {r[8]}, {r[8]}, {r[10]}
            v_mul_f32 {r[9]}, {r[9]}, {r[10]}
            v_cvt_pk_bf16_f32 {y}, {r[8]}, {r[9]}""")
        else:
            softmax_true(e, True)
        if cfg.standin or cfg.nowait:
            FB, FD = p.label('FB'), p.label('FD')
            e(f'v_cmpx_gt_u32 vcc, 0x50000000, {x}')
            vm.issue(pst_txt)
            e(f"""s_mov_b64 exec, -1
            s_cmp_lg_u64 vcc, -1
            s_cbranch_scc1 {FB}
            {FD}:""")
            tail += [f'{FB}:', f's_add_u32 {sCNT[2]}, {sCNT[2]}, 1']
            if cfg.nowait:
                tail += rd_txt + [f's_sub_u32 {sTO}, {sTO}, 1', f's_cmp_gt_i32 {sTO}, 0', f's_cbranch_scc0 {FD}',
                                  's_waitcnt lgkmcnt(0)', f'v_max3_u32 {x}, {r[0]}, {r[1]}, {r[2]}',
                                  f'v_max3_u32 {x}, {x}, {r[3]}, {r[4]}', f'v_max3_u32 {x}, {x}, {r[5]}, {r[6]}',
                                  f'v_max_u32 {x}, {x}, {r[7]}', f'v_cmp_eq_u32 vcc, -1, {x}', f's_cbranch_vccnz {FB}']
                tail += [l.strip() for l in add_txt.split('\n')]
            softmax_true(tail.append, False)
            tail += [pst_txt, f's_branch {FD}']
        else:
            vm.issue(pst_txt)
        stamp(p, cfg, 5)
        slow([f'buffer_store_dword {y}, {vPo}, {sWS}, {sP} offen'] +
             ([f'buffer_store_dword {vStep}, {vFs}, {sWS}, {sFLG} offen'] if w == 1 else []))
        e('s_barrier')
        st2(f'buffer_store_dword {vNeg1}, {vPo}, {sWS}, {sPRST} offen')
        if cfg.tlb and w == 3:
            e(f"""v_mov_b32 {vt[2]}, {2 * 8192 + 7680}
            buffer_load_dword {vt[3]}, {vt[2]}, {sWS}, {sMEM} offen sc1
            v_mov_b32 {vt[2]}, {32768 if cfg.xsall else 65536}
            buffer_load_dword {vt[3]}, {vt[2]}, {sWS}, {sXS2} offen sc1""")
        for l in ([] if cfg.xsall else xs_loads()[:4]):
            e(l)
        if cfg.nowait:
            e(f'v_mov_b32 {r[0]}, -1\nv_mov_b32 {r[1]}, -1')
            for i in range(4):
                e(f'ds_write_b64 {vSZ}, {r[0:2]} offset:{1296 * i}')
            e('s_waitcnt lgkmcnt(0)')
        fz(40)
        if TL_ON[0] and w == 2:
            e(f"""s_memtime s[96:97]
            s_lshl_b32 s98, {sH}, 8
            s_lshl_b32 s99, {sSTEP}, 2
            s_add_u32 s98, s98, s99
            s_add_u32 s98, s98, {WS_TL + 0x8000}
            s_waitcnt lgkmcnt(0)
            v_mov_b32 v254, s96
            v_mov_b32 v255, 0
            buffer_store_dword v254, v255, {sWS}, s98 offen""")
        e(f's_add_u32 {sSTEP}, {sSTEP}, 1')
        slot_calc()

        def qpoll():
            e('s_waitcnt vmcnt(0)')
            stamp(p, cfg, 6)
            nops(e, cfg.qstart)
            poll_loop(cfg.qdepth, LOOP)
        loop_end(qpoll if poller else None)
    else:
        while winA:
            side(winA.pop(0))
        for t in range(8):
            a = Tacc[4 * t:4 * t + 4]
            e(f'v_add_f32 {a[0]}, {a[0]}, {a[2]}')
            e(f'v_add_f32 {a[1]}, {a[1]}, {a[3]}')
            if t == 0:
                e(f'v_cmp_u_f32 vcc, {a[0]}, {a[1]}')
            e(f'v_cvt_pk_bf16_f32 {Ym[t]}, {a[0]}, {a[1]}')
            if t == 2:
                check_branch()
        e(f"""ds_write_b128 {vYW}, {Ym[0:4]} offset:{w * 1024}
        ds_write_b128 {vYW}, {Ym[4:8]} offset:{4096 + w * 1024}""")
        stamp(p, cfg, 3)
        if cfg.tlb and w == 3:
            e(f"""v_mov_b32 {vt[2]}, {3 * 8192 + 7680}
            buffer_load_dword {vt[3]}, {vt[2]}, {sWS}, {sMEM} offen sc1""")
        fz(32)
        e(f's_add_u32 {sSTEP}, {sSTEP}, 1')
        slot_calc()
        e('s_waitcnt lgkmcnt(0)\ns_barrier')
        if fin:
            for i in range(4):
                e(f'ds_read_b128 {BM[4 * i:4 * i + 4]}, {vYW} offset:{w * 4096 + i * 1024}')
            zf = [f'v_mov_b32 {Facc[i]}, 0' for i in range(4)]
            for l in (zf if w == 0 else []):
                e(l)
            e('s_waitcnt vmcnt(0) lgkmcnt(0)')
            stamp(p, cfg, 5)
        if w == 2:
            poll_loop(cfg.pdepth)
            stamp(p, cfg, 5)
            nops(e, cfg.pdelay)
        e('s_barrier')
        stamp(p, cfg, 6)
        if fin:
            PD, PF, PR, PB = p.label('PD'), p.label('PF'), p.label('PR'), p.label('PB')

            def p_txt(i):
                so, of = (sP, i * 1024) if i < 2 else (sPQ[(i - 2) >> 1], 2048 + (i & 1) * 1024)
                return f'buffer_load_dwordx4 {Afin[4 * i:4 * i + 4]}, {vL16}, {sWS}, {so} offen offset:{of} sc1'

            def f_txt(i):
                return f'v_smfmac_f32_16x16x64_bf16 {Facc}, {Afin[4 * i:4 * i + 4]}, {Bfin[i]}, {vIdx}'
            for l in (zf if w == 1 else []):
                e(l)
            for i in range(10):
                vm.issue(p_txt(i), ('p', i))
                if i < 9:
                    nops(e, cfg.ppace)
            stamp(p, cfg, 11)
            e(f'{PB}:')
            vm.wait(('p', 0))
            stamp(p, cfg, 4)
            f2 = f'buffer_store_dword {vStep}, {vFs}, {sWS}, {sFLG} offen'
            for i in range(10):
                e(f_txt(i))
                if i == max(cfg.f2pos, 2):
                    e(f's_cbranch_vccnz {PR}')
                if i == cfg.f2pos and w == 0:
                    vm.issue(f2)
                    stamp(p, cfg, 8)
                if i < 9:
                    vm.wait(('p', i + 1))
                if i == 0:
                    e(f'v_max3_u32 {vt[0]}, {Afin[0]}, {Afin[1]}, {Afin[4]}')
                    e(f'v_max_u32 {vt[0]}, {vt[0]}, {Afin[5]}')
                if i == 1:
                    e(f'v_cmp_eq_u32 vcc, -1, {vt[0]}')
            tail += [f'{PR}:', f's_add_u32 {sCNT[1]}, {sCNT[1]}, 1'] + [p_txt(i) for i in range(10)] + zf
            tail += [f's_sub_u32 {sTO}, {sTO}, 1', f's_cmp_gt_i32 {sTO}, 0', f's_cbranch_scc1 {PB}', f's_branch {PD}']
            fsum = [f'v_add_f32 {Facc[0]}, {Facc[0]}, {Facc[2]}', f'v_add_f32 {Facc[1]}, {Facc[1]}, {Facc[3]}']
            stamp(p, cfg, 10)
            for i in range(7):
                e(f'v_mov_b32 {vt[4]}, 0')
            for l in fsum:
                e(l)
            st_txt = [f'buffer_store_short {vt[0]}, {vMo}, {sWS}, {sMEMW} offen',
                      f'buffer_store_short_d16_hi {vt[0]}, {vMo}, {sWS}, {sMEMW} offen offset:16']
            e(f"""v_cvt_pk_bf16_f32 {vt[0]}, {Facc[0]}, {Facc[1]}
            v_cmpx_o_f32 vcc, {Facc[0]}, {Facc[1]}""")
            for l in st_txt:
                e(l)
            stamp(p, cfg, 7)
            e(f"""s_mov_b64 exec, -1
            s_cmp_lg_u64 vcc, -1
            s_cbranch_scc1 {PF}
            {PD}:""")
            slow(st_txt + ([f2] if w == 0 else []))
            tail += [f'{PF}:', f's_add_u32 {sCNT[1]}, {sCNT[1]}, 0x10000']
            tail += [p_txt(i) for i in range(10)]
            tail += [f's_sub_u32 {sTO}, {sTO}, 1', f's_cmp_gt_i32 {sTO}, 0', f's_cbranch_scc0 {PD}']
            tail += zf + ['s_waitcnt vmcnt(0)']
            tail += [f'v_max3_u32 {vt[0]}, {Afin[0]}, {Afin[1]}, {Afin[2]}']
            for i in range(3, 39, 2):
                tail += [f'v_max3_u32 {vt[0]}, {vt[0]}, {Afin[i]}, {Afin[i + 1]}']
            tail += [f'v_max_u32 {vt[0]}, {vt[0]}, {Afin[39]}', f'v_cmp_eq_u32 vcc, -1, {vt[0]}', f's_cbranch_vccnz {PF}']
            tail += [f_txt(i) for i in range(10)] + fsum + [f'v_cvt_pk_bf16_f32 {vt[0]}, {Facc[0]}, {Facc[1]}'] + st_txt
            tail += [f's_branch {PD}']

        def vpoll():
            nops(e, cfg.vstart)
            poll_loop(cfg.vdepth, LOOP)
        loop_end(vpoll if w == 3 else None)
    assert not zq
    e(f'{END}:')
    if fin:
        e(f's_add_u32 {sMEMW}, {sMEMW}, {WS_MEMA - WS_MEMR}')
        for l in st_txt:
            e(l + ' sc1')
    epilogue(p, w, cfg, vt)
    for l in tail:
        e(l)


HEADER = '''; generated
; @launch grid=(256,1,1) block=(256,1,1) lds=%d
.amdgcn_target "amdgcn-amd-amdhsa--gfx950"
.text
.globl %s
.p2align 8
.type %s,@function
'''
FOOTER = '''.section .rodata,"a"
.p2align 6
.amdhsa_kernel %s
  .amdhsa_next_free_vgpr 512
  .amdhsa_next_free_sgpr 102
  .amdhsa_accum_offset 256
  .amdhsa_group_segment_fixed_size 0
  .amdhsa_kernarg_size 120
  .amdhsa_user_sgpr_count 2
  .amdhsa_user_sgpr_kernarg_segment_ptr 1
  .amdhsa_system_sgpr_workgroup_id_x 1
.end_amdhsa_kernel
'''


def wave_dispatch(e, nm):
    e(f'''s_cmp_eq_u32 {sWAVE}, 0
    s_cbranch_scc1 {nm}0
    s_cmp_eq_u32 {sWAVE}, 1
    s_cbranch_scc1 {nm}1
    s_cmp_eq_u32 {sWAVE}, 2
    s_cbranch_scc1 {nm}2
    s_branch {nm}3''')


def standalone(cfg, name='team_kernel'):
    TL_ON[0] = True
    p = Prog()
    e = p.e
    e(f'{name}:')
    e(f'''s_and_b32 s3, s2, 7
    s_cmp_lg_u32 s3, 0
    s_cbranch_scc1 EXIT
    s_cmp_ge_u32 s2, 256
    s_cbranch_scc1 EXIT
    s_lshr_b32 {sIDX}, s2, 3
    s_mov_b32 s100, {sIDX}
    s_load_dwordx2 s[4:5], s[0:1], 112
    s_load_dwordx2 s[12:13], s[0:1], 104
    s_load_dwordx2 s[16:17], s[0:1], 8
    v_lshrrev_b32 v1, 6, v0
    v_readfirstlane_b32 {sWAVE}, v1
    s_mov_b32 s6, {WS_BYTES}
    s_mov_b32 s7, 0x20000
    s_mov_b32 s14, 256
    s_mov_b32 s15, 0x20000
    s_mov_b32 s18, 7168
    s_mov_b32 s19, 0x20000
    s_and_b32 {sH}, {sIDX}, 15''')
    for i in range(NSTAMP):
        e(f's_mov_b32 s{STAMP0 + 2 * i}, 0')
    e(f'''s_waitcnt lgkmcnt(0)
    s_cmp_ge_u32 {sIDX}, 16
    s_cbranch_scc1 ROLE_VO''')
    wave_dispatch(e, 'QK')
    e(f'''ROLE_VO:
    s_cmp_ge_u32 {sH}, 14
    s_cbranch_scc1 ROLE_EN''')
    wave_dispatch(e, 'VO')
    e('ROLE_EN:')
    wave_dispatch(e, 'EN')
    e('EXIT:\ns_endpgm')
    for role, nm in ((0, 'QK'), (1, 'VO'), (2, 'EN')):
        for w in range(4):
            e(f'{nm}{w}:')
            team_wave(p, role, w, cfg)
    return HEADER % (L_END, name, name) + p.text() + FOOTER % name


if __name__ == '__main__':
    import sys
    cfg = Cfg()
    for a in sys.argv[2:]:
        k, v = a.split('=')
        assert hasattr(cfg, k), k
        setattr(cfg, k, int(v) if not isinstance(getattr(cfg, k), str) else v)
    open(sys.argv[1], 'w').write(standalone(cfg))
```

```python
from asmlib import *
from layout import *
from prep import srd

sWS = 's[4:7]'
sW = 's9'
sTO = 's38'
sCN = 's39'
TIMEOUT = 400000
OOB = 0x40000000
NRY = 3


def wait_ge(p, vaddr, vtmp, val, sleep=4):
    e = p.e
    L, D = p.label('WT'), p.label('WD')
    e(f'''{L}:
    buffer_load_dword {vtmp}, {vaddr}, {sWS}, {sCN} offen sc1
    s_sub_u32 {sTO}, {sTO}, 1
    s_cmp_gt_i32 {sTO}, 0
    s_cbranch_scc0 {D}
    s_waitcnt vmcnt(0)
    v_cmp_gt_u32 vcc, {val}, {vtmp}
    s_cbranch_vccz {D}
    s_sleep {sleep}
    s_branch {L}
    {D}:''')


def signal(p, vaddr, vtmp):
    e = p.e
    L = p.label('SG')
    e(f'''s_waitcnt vmcnt(0) lgkmcnt(0)
    s_barrier
    s_cmp_lg_u32 {sW}, 0
    s_cbranch_scc1 {L}
    v_mov_b32 {vtmp}, 1
    s_mov_b64 exec, 1
    buffer_atomic_add {vtmp}, {vaddr}, {sWS}, {sCN} offen
    s_mov_b64 exec, -1
    {L}:''')


def load_valid(p, loads, regs, vtmp, sleep):
    e = p.e
    L, D = p.label('LV'), p.label('LD')
    e(f'{L}:')
    for l in loads:
        e(l)
    e(f"""s_sub_u32 {sTO}, {sTO}, 1
    s_cmp_gt_i32 {sTO}, 0
    s_cbranch_scc0 {D}""")
    n = len(loads)
    per = len(regs) // n
    for i in range(n):
        e(f's_waitcnt vmcnt({n - 1 - i})')
        r = regs[per * i:per * i + per]
        if per == 1:
            e(f'v_mov_b32 {vtmp}, {r[0]}' if i == 0 else f'v_max_u32 {vtmp}, {vtmp}, {r[0]}')
        else:
            e(f'v_max_u32 {vtmp}, {r[0]}, {r[1]}' if i == 0 else f'v_max3_u32 {vtmp}, {vtmp}, {r[0]}, {r[1]}')
            e(f'v_max3_u32 {vtmp}, {vtmp}, {r[2]}, {r[3]}')
    e(f"""v_cmp_eq_u32 vcc, -1, {vtmp}
    s_cbranch_vccz {D}
    s_sleep {sleep}
    s_branch {L}
    {D}:
    s_waitcnt vmcnt(0)""")


def yt_worker(p, kind):
    e = p.e
    isY = kind == 0
    L_T, L_XA = 65536, 98304
    V = Alloc('v', 1, 254)
    A = Alloc('a', 0, 256)
    vL, vG, vC, t0, t1, t2, vL16, vXB, vCA = (V.get() for _ in range(9))
    x1, x2 = V.get(), V.get()
    if not isY:
        Sx = V.get(8, 4)
        Sm = V.get(8, 4)
    else:
        vIdx = V.get()
    buf = V.get(32, 4)
    acc = V.get(56, 4)
    frag = {}
    for t in range(7):
        for k in range(7):
            frag[(t, k)] = A.get(8, 4) if A.left() >= 8 else V.get(8, 4)
    sS, sCur, sW7, sO, sA, sB, sPrev = 's12', 's13', 's14', 's15', 's16', 's17', 's18'
    TLB = WS_TL + 16384
    e(f"""v_and_b32 {vL}, 63, v0
    v_lshrrev_b32 {vG}, 4, {vL}
    v_and_b32 {vC}, 15, {vL}
    v_lshlrev_b32 {vL16}, 4, {vL}
    v_mov_b32 {vXB}, {vL16}
    s_mov_b32 {sTO}, {TIMEOUT}
    s_mov_b32 {sCN}, {WS_CNT}
    s_mov_b32 {sS}, s11
    s_mov_b32 {sCur}, 0
    s_mov_b32 {sPrev}, {OOB}
    s_mul_i32 {sW7}, {sW}, 7168""")

    def xb_dma(seg, lds):
        e(f"""s_lshl_b32 {sA}, {seg}, 15
        s_add_u32 {sA}, {sA}, {sW7}
        s_add_u32 {sA}, {sA}, {WS_XNB}
        s_add_u32 m0, {lds}, {sW7}""")
        for i in range(7):
            if i == 4:
                e(f's_add_u32 {sA}, {sA}, 4096\ns_add_u32 m0, m0, 4096')
            e(f'buffer_load_dwordx4 {vL16}, {sWS}, {sA} offen offset:{(i & 3) * 1024} sc1 lds')

    def mem_wait():
        e(f"""s_lshl_b32 {sA}, {sS}, 13
        s_add_u32 {sA}, {sA}, {WS_MEMA}
        s_add_u32 {sB}, {sA}, 4096""")
        load_valid(p, [f'buffer_load_dwordx4 {buf[4 * k:4 * k + 4]}, {vL16}, {sWS}, {sA if k < 4 else sB} offen '
                       f'offset:{(k & 3) * 1024} sc1' for k in range(7)], [buf[i] for i in range(28)], t0, 3)
    if not isY:
        e(f'v_mov_b32 {vCA}, {C_YX}\ns_mov_b32 {sA}, 16')
        wait_ge(p, vCA, t0, sA, 16)
    xb_dma(sS, sCur)
    e(f"""s_mul_i32 {sB}, s10, 28
    s_mul_i32 {sA}, {sW}, 7
    s_add_u32 {sB}, {sB}, {sA}
    s_mul_i32 {sB}, {sB}, 14336
    s_add_u32 {sB}, {sB}, {WS_WVO if isY else WS_WQK}""")
    n_out = 7
    for t in range(7):
        for k in range(7):
            f = frag[(t, k)]
            if k % 2 == 0:
                e(f's_add_u32 {sA}, {sB}, {(t * 7 + k) * 2048}')
            o = (k & 1) * 2048
            e(f"""buffer_load_dwordx4 {f[0:4]}, {vL16}, {sWS}, {sA} offen offset:{o} sc1
            buffer_load_dwordx4 {f[4:8]}, {vL16}, {sWS}, {sA} offen offset:{o + 1024} sc1""")
            n_out += 2
            if n_out >= 60:
                e('s_waitcnt vmcnt(40)')
                n_out = 40
    if isY:
        e(f"""v_bfe_u32 {t0}, {vC}, 1, 1
        v_mul_u32_u24 {vIdx}, 0xaaaa, {t0}
        v_add_u32 {vIdx}, 0x4444, {vIdx}
        v_lshlrev_b32 {t0}, 12, {vG}
        v_lshl_add_u32 {t0}, {vC}, 4, {t0}
        s_mul_i32 {sA}, {sW}, {7 * 4096}
        s_lshl_b32 {sB}, s10, 8
        s_add_u32 {sA}, {sA}, {sB}
        v_add_u32 {x1}, {sA}, {t0}
        v_add_u32 {t0}, {4 * 4096}, {x1}
        v_mov_b32 {t1}, {OOB}
        v_cmp_gt_u32 vcc, 3, {vG}
        v_cndmask_b32 {x2}, {t1}, {t0}, vcc""")
    else:
        for i, x in enumerate((x1, x2)):
            e(f"""s_mul_i32 {sA}, {sW}, 7
            s_add_u32 {sA}, {sA}, {i}
            s_lshr_b32 {sB}, {sA}, 1
            s_lshl_b32 {sB}, {sB}, 10
            s_and_b32 {sA}, {sA}, 1
            s_lshl_b32 {sA}, {sA}, 3
            s_add_u32 {sA}, {sA}, {sB}
            s_add_u32 {sA}, {sA}, {L_T}
            v_add_u32 {x}, {sA}, {vL16}""")
        e(f"""s_and_b32 {sA}, {sW}, 1
        s_lshl_b32 {sA}, {sA}, 4
        v_add_u32 {t0}, {sA}, {vC}
        v_lshlrev_b32 {t1}, 2, {vG}""")
        for i in range(8):
            e(f"""v_add_u32 {t2}, {16 * (i >> 2) + (i & 3)}, {t1}
            v_cmp_le_u32 s[{40 + 2 * i}:{41 + 2 * i}], {t2}, {t0}""")

    def init_marks():
        IL = p.label('IL')
        mk = buf[0:4]
        for i in range(4):
            e(f'v_mov_b32 {mk[i]}, -1')
        e(f's_mov_b32 {sO}, s11')
        if not isY:
            e(f"""v_lshlrev_b32 {t0}, 2, {vL}
            s_cmp_ge_u32 {sW}, 2
            s_cbranch_scc1 {IL}x""")
        e(f'{IL}:')
        if isY:
            e(f"""s_lshl_b32 {sA}, {sO}, 17
            s_add_u32 {sA}, {sA}, {WS_YMA}
            buffer_store_dwordx4 {mk}, {x1}, {sWS}, {sA} offen sc1
            buffer_store_dwordx4 {mk}, {x2}, {sWS}, {sA} offen sc1""")
        else:
            e(f"""s_lshl_b32 {sA}, {sO}, 1
            s_add_u32 {sA}, {sA}, {sW}
            s_lshl_b32 {sA}, {sA}, 4
            s_add_u32 {sA}, {sA}, s10
            s_lshl_b32 {sB}, {sA}, 10
            s_add_u32 {sB}, {sB}, {WS_PX}
            s_lshl_b32 {sA}, {sA}, 8
            s_add_u32 {sA}, {sA}, {WS_PM}
            buffer_store_dwordx4 {mk}, {vL16}, {sWS}, {sB} offen sc1
            buffer_store_dword {mk[0]}, {t0}, {sWS}, {sA} offen sc1""")
        e(f"""s_add_u32 {sO}, {sO}, {NRY}
        s_cmp_lt_u32 {sO}, 64
        s_cbranch_scc1 {IL}
        {IL}x:
        v_mov_b32 {vCA}, {C_INIT}""")
        signal(p, vCA, t0)
    e('s_waitcnt vmcnt(0)')
    if not isY:
        init_marks()
    tl(p, 1, 's100', TLB)
    JOB = p.label('JOB')
    nst = 7 if isY else 2
    ndma = 7 if isY else 14
    e(f"""{JOB}:
    s_waitcnt vmcnt({nst}) lgkmcnt(0)
    s_barrier""")

    def rd(q):
        return [f'ds_read_b128 {buf[16 * (q & 1) + 4 * i:16 * (q & 1) + 4 * i + 4]}, {vXB} offset:{xnb_blk(q) * 4096 + i * 1024}'
                for i in range(4)]
    for l in rd(0):
        e(l)
    if not isY:
        e(f"""s_lshl_b32 {sA}, {sS}, 15
        s_lshr_b32 {sB}, {sW}, 1
        s_lshl_b32 {sB}, {sB}, 11
        s_add_u32 {sA}, {sA}, {sB}
        s_add_u32 {sA}, {sA}, {sW7}
        s_add_u32 {sA}, {sA}, {WS_XNA}
        s_add_u32 m0, {sW7}, {L_XA}""")
        for i in range(7):
            if i == 4:
                e(f's_add_u32 {sA}, {sA}, 4096\ns_add_u32 m0, m0, 4096')
            e(f'buffer_load_dwordx4 {vL16}, {sWS}, {sA} offen offset:{(i & 3) * 1024} sc1 lds')
    e(f"""s_add_u32 {sB}, {sS}, {NRY}
    s_min_u32 {sB}, {sB}, 63
    s_xor_b32 {sCur}, {sCur}, 32768""")
    xb_dma(sB, sCur)
    for q in range(7):
        side = rd(q + 1) if q < 6 else []
        e('s_waitcnt lgkmcnt(0)')
        if q == 4 and isY:
            SG = p.label('SG')
            e(f"""s_waitcnt vmcnt({ndma})
            s_barrier
            s_cmp_lg_u32 {sW}, 0
            s_cbranch_scc1 {SG}
            v_mov_b32 {t0}, 1
            v_mov_b32 {vCA}, {sPrev}
            s_mov_b64 exec, 1
            buffer_atomic_add {t0}, {vCA}, {sWS}, {sCN} offen
            s_mov_b64 exec, -1
            {SG}:""")
        n = 0
        for rh in range(2):
            for t in range(7):
                for kt in range(2):
                    d = acc[8 * t + 4 * kt:8 * t + 4 * kt + 4]
                    xa = buf[16 * (q & 1) + 8 * kt + 4 * rh:16 * (q & 1) + 8 * kt + 4 * rh + 4]
                    wf = frag[(t, q)][4 * rh:4 * rh + 4]
                    c = 0 if (q == 0 and rh == 0) else d
                    if isY:
                        e(f'v_mfma_f32_16x16x32_bf16 {d}, {xa}, {wf}, {c}')
                    else:
                        e(f'v_mfma_f32_16x16x32_bf16 {d}, {wf}, {xa}, {c}')
                    if side and n % 4 == 1:
                        e(side.pop(0))
                    n += 1
    e(f'v_xor_b32 {vXB}, 32768, {vXB}')
    if isY:
        e(f"""s_mul_i32 {sO}, {sS}, {28 * 16384}
        s_mul_i32 {sA}, {sW}, {7 * 16384}
        s_add_u32 {sO}, {sO}, {sA}
        s_lshl_b32 {sA}, s10, 10
        s_add_u32 {sO}, {sO}, {sA}
        s_add_u32 {sO}, {sO}, {WS_YX}""")
        for t in range(7):
            a = acc[8 * t:8 * t + 8]
            for i in range(4):
                e(f'v_cvt_pk_bf16_f32 {a[i]}, {a[2 * i]}, {a[2 * i + 1]}')
            e(f"""buffer_store_dwordx4 {a[0:4]}, {vL16}, {sWS}, {sO} offen sc1
            s_add_u32 {sO}, {sO}, 16384""")
        NF = p.label('NF')
        e(f"""s_lshl_b32 {sPrev}, {sS}, 2
        s_cmp_lg_u32 {sS}, s11
        s_cbranch_scc1 {NF}
        v_mov_b32 {vCA}, {sPrev}
        s_mov_b32 {sPrev}, {OOB}""")
        signal(p, vCA, t0)
        tl(p, 2, 's100', TLB)
        e(f"""{NF}:
        s_add_u32 {sS}, {sS}, {NRY}
        s_cmp_lt_u32 {sS}, 64
        s_cbranch_scc1 {JOB}
        v_mov_b32 {vCA}, {sPrev}""")
        signal(p, vCA, t0)
        init_marks()
        tl(p, 3, 's100', TLB)
        MJ = p.label('MJ')
        e(f"""s_mov_b32 {sS}, s11
        {MJ}:""")
        for i in range(28):
            e(f'v_mov_b32 {acc[i]}, 0')
        mem_wait()
        for k in range(7):
            for t in range(7):
                e(f'v_smfmac_f32_16x16x64_bf16 {acc[4 * t:4 * t + 4]}, {buf[4 * k:4 * k + 4]}, {frag[(t, k)]}, {vIdx}')
        o = acc[32:40]
        for t in range(7):
            a = acc[4 * t:4 * t + 4]
            e(f"""v_add_f32 {a[0]}, {a[0]}, {a[2]}
            v_add_f32 {a[1]}, {a[1]}, {a[3]}
            v_cvt_pk_bf16_f32 {o[t]}, {a[0]}, {a[1]}""")
        e(f"""v_mov_b32 {o[7]}, 0
        s_lshl_b32 {sO}, {sS}, 17
        s_add_u32 {sO}, {sO}, {WS_YMA}""")
        for b in (0, 4):
            e(f"""v_permlane32_swap_b32 {o[b]}, {o[b + 2]}
            v_permlane32_swap_b32 {o[b + 1]}, {o[b + 3]}
            v_permlane16_swap_b32 {o[b]}, {o[b + 1]}
            v_permlane16_swap_b32 {o[b + 2]}, {o[b + 3]}
            buffer_store_dwordx4 {o[b:b + 4]}, {x1 if b == 0 else x2}, {sWS}, {sO} offen sc1""")
        e(f"""s_add_u32 {sS}, {sS}, {NRY}
        s_cmp_lt_u32 {sS}, 64
        s_cbranch_scc1 {MJ}""")
        tl(p, 4, 's100', TLB)
        e('s_endpgm')
        return
    for t in range(7):
        for qt in range(2):
            a = acc[8 * t + 4 * qt:8 * t + 4 * qt + 4]
            e(f"""v_cvt_pk_bf16_f32 {a[0]}, {a[0]}, {a[1]}
            v_cvt_pk_bf16_f32 {a[1]}, {a[2]}, {a[3]}
            ds_write_b64 {x2 if (t & 1) else x1}, {a[0:2]} offset:{(t >> 1) * 1024 + qt * 14336}""")
    SK = p.label('TSK')
    e(f"""s_waitcnt vmcnt(0) lgkmcnt(0)
    s_barrier
    s_cmp_ge_u32 {sW}, 2
    s_cbranch_scc1 {SK}
    s_mul_i32 {sA}, {sW}, 14336
    s_add_u32 {sA}, {sA}, {L_T}
    v_add_u32 {t0}, {sA}, {vL16}
    v_add_u32 {t2}, {L_XA}, {vL16}""")
    for th in range(14):
        e(f'ds_read_b128 {acc[4 * th:4 * th + 4]}, {t0} offset:{th * 1024}')
    e('s_waitcnt lgkmcnt(6)')

    def xa_rd(i):
        e(f'ds_read_b128 {buf[4 * (i & 7):4 * (i & 7) + 4]}, {t2} offset:{i * 1024}')
    for i in range(8):
        xa_rd(i)
    for i in range(28):
        kt, th = i // 14, i % 14
        e(f's_waitcnt lgkmcnt({min(7, 27 - i)})')
        d = Sx[4 * kt:4 * kt + 4]
        e(f'v_mfma_f32_16x16x32_bf16 {d}, {buf[4 * (i & 7):4 * (i & 7) + 4]}, {acc[4 * th:4 * th + 4]}, {0 if th == 0 else d}')
        if i + 8 < 28:
            xa_rd(i + 8)
    e(f'v_mov_b32 {t1}, 0xff800000')
    for i in range(8):
        e(f'v_cndmask_b32 {Sx[i]}, {t1}, {Sx[i]}, s[{40 + 2 * i}:{41 + 2 * i}]')
    e(f"""v_max3_f32 {t2}, {Sx[0]}, {Sx[1]}, {Sx[2]}
    v_max3_f32 {t2}, {t2}, {Sx[3]}, {Sx[4]}
    v_max3_f32 {t2}, {t2}, {Sx[5]}, {Sx[6]}
    v_max_f32 {t2}, {t2}, {Sx[7]}""")
    mem_wait()
    for k in range(7):
        for v in range(2):
            d = Sm[4 * v:4 * v + 4]
            e(f'v_mfma_f32_16x16x32_bf16 {d}, {buf[4 * k:4 * k + 4]}, {acc[4 * (2 * k + v):4 * (2 * k + v) + 4]}, {0 if k == 0 else d}')
    vals = [Sx[i] for i in range(8)] + [Sm[0], Sm[1]]

    def allred(op):
        e(f"""v_mov_b32 {t1}, {t0}
        v_permlane16_swap_b32 {t0}, {t1}
        v_{op}_f32 {t0}, {t0}, {t1}
        v_mov_b32 {t1}, {t0}
        v_permlane32_swap_b32 {t0}, {t1}
        v_{op}_f32 {t0}, {t0}, {t1}""")
    e(f"""s_lshl_b32 {sA}, {sS}, 1
    s_add_u32 {sA}, {sA}, {sW}
    s_lshl_b32 {sA}, {sA}, 4
    s_add_u32 {sA}, {sA}, s10            ; (s*2+qt)*16 + h
    s_lshl_b32 {sB}, {sA}, 10
    s_add_u32 {sB}, {sB}, {WS_PX}
    s_lshl_b32 {sA}, {sA}, 8
    s_add_u32 {sA}, {sA}, {WS_PM}
    v_add_f32 {Sm[0]}, {Sm[0]}, {Sm[6]}
    v_add_f32 {Sm[1]}, {Sm[1]}, {Sm[7]}
    v_max3_f32 {t0}, {t2}, {Sm[0]}, {Sm[1]}""")
    allred('max')
    for v in vals:
        e(f'v_sub_f32 {v}, {v}, {t0}')
    for v in vals:
        e(f'v_exp_f32 {v}, {v}')
    e(f'v_add_f32 {t0}, {vals[0]}, {vals[1]}')
    for v in vals[2:]:
        e(f'v_add_f32 {t0}, {t0}, {v}')
    allred('add')
    e(f'v_rcp_f32 {t0}, {t0}')
    for v in vals:
        e(f'v_mul_f32 {v}, {v}, {t0}')
    for i in range(4):
        e(f'v_cvt_pk_bf16_f32 {Sx[i]}, {Sx[2 * i]}, {Sx[2 * i + 1]}')
    e(f"""v_cvt_pk_bf16_f32 {Sm[0]}, {Sm[0]}, {Sm[1]}
    buffer_store_dwordx4 {Sx[0:4]}, {vL16}, {sWS}, {sB} offen sc1
    v_lshlrev_b32 {t0}, 4, {vC}
    v_lshl_add_u32 {t0}, {vG}, 2, {t0}
    buffer_store_dword {Sm[0]}, {t0}, {sWS}, {sA} offen sc1
    {SK}:
    s_add_u32 {sS}, {sS}, {NRY}
    s_cmp_lt_u32 {sS}, 64
    s_cbranch_scc1 {JOB}""")
    tl(p, 4, 's100', TLB)
    e('s_endpgm')


def f_worker(p):
    e = p.e
    V = Alloc('v', 1, 256)
    vL, vG, vC, t0, t1, t2, vL16, vCA, vB1 = (V.get() for _ in range(9))
    vQ = [V.get() for _ in range(7)]
    vRo = [V.get() for _ in range(4)]
    vGo = [V.get() for _ in range(4)]
    H = V.get(8, 4)
    Bs = V.get(4, 4)
    acc = V.get(112, 4)
    XF = V.get(56, 4)
    PA = V.get(40, 4)
    sS, sXx, sA, sB, sC, sI, sF1, sF2 = 's12', 's13', 's14', 's15', 's32', 's33', 's34', 's35'
    rW1, rW2, rB1, rB2 = 's[16:19]', 's[20:23]', 's[24:27]', 's[28:31]'
    rX, rO = 's[40:43]', 's[44:47]'
    srd(e, 16, 64, 448 * 1792 * 2)
    srd(e, 20, 80, 448 * 1792 * 2)
    srd(e, 24, 72, 1792 * 2)
    srd(e, 28, 88, 448 * 2)
    srd(e, 40, 0, S * D * 2)
    srd(e, 44, 96, S * D * 2)
    e(f'''v_and_b32 {vL}, 63, v0
    v_lshrrev_b32 {vG}, 4, {vL}
    v_and_b32 {vC}, 15, {vL}
    v_lshlrev_b32 {vL16}, 4, {vL}
    v_lshlrev_b32 {vB1}, 3, {vG}
    s_mov_b32 {sTO}, {TIMEOUT}
    s_mov_b32 {sCN}, {WS_CNT}
    s_lshr_b32 {sS}, s10, 1
    s_and_b32 {sXx}, s10, 1''')
    for q in range(7):
        e(f'v_add_u32 {vQ[q]}, {q * 4096}, {vL16}')
    e(f'v_mov_b32 {vCA}, {C_YX}\ns_mov_b32 {sA}, 16')
    wait_ge(p, vCA, t0, sA, 16)
    e(f'''v_mul_u32_u24 {t0}, {4 * 3584}, {vG}
    v_lshl_add_u32 {t0}, {vC}, 1, {t0}            ; w1 voffset
    v_mul_u32_u24 {t1}, {4 * 896}, {vG}
    v_and_b32 {t2}, 7, {vC}
    v_lshl_add_u32 {t1}, {t2}, 1, {t1}
    v_lshrrev_b32 {t2}, 3, {vC}
    v_lshl_add_u32 {t1}, {t2}, 6, {t1}            ; w2 voffset
    s_lshl_b32 {sI}, s10, 2
    s_add_u32 {sI}, {sI}, {sW}
    s_waitcnt lgkmcnt(0)''')
    C0 = p.label('CV')
    e(f'''{C0}:
    ; W1F id -> ft = id/14, rem = id%14 -> byte (64*chunk + 16*rh)*3584 + 32*ft
    s_mul_i32 {sA}, {sI}, 4682
    s_lshr_b32 {sA}, {sA}, 16
    s_mul_i32 {sB}, {sA}, 14
    s_sub_u32 {sB}, {sI}, {sB}
    s_lshl_b32 {sA}, {sA}, 5
    s_lshr_b32 {sC}, {sB}, 1
    s_mul_i32 {sC}, {sC}, {64 * 3584}
    s_add_u32 {sA}, {sA}, {sC}
    s_and_b32 {sB}, {sB}, 1
    s_mul_i32 {sB}, {sB}, {16 * 3584}
    s_add_u32 {sA}, {sA}, {sB}''')
    for el in range(8):
        rho, b = el >> 1, el & 1
        e(f'''s_add_u32 {sB}, {sA}, {(32 * (rho & 1) + 2 * (rho >> 1) + b) * 3584}
        buffer_load_ushort {acc[el]}, {t0}, {rW1}, {sB} offen''')
    e(f'''; W2F id -> F = id/28, j = id%28 -> byte 32F*896 + (64*(j>>2) + 8*(j&3))*2
    s_mul_i32 {sA}, {sI}, 2341
    s_lshr_b32 {sA}, {sA}, 16
    s_mul_i32 {sB}, {sA}, 28
    s_sub_u32 {sB}, {sI}, {sB}
    s_mul_i32 {sA}, {sA}, {32 * 896}
    s_lshr_b32 {sC}, {sB}, 2
    s_lshl_b32 {sC}, {sC}, 7
    s_add_u32 {sA}, {sA}, {sC}
    s_and_b32 {sB}, {sB}, 3
    s_lshl_b32 {sB}, {sB}, 4
    s_add_u32 {sA}, {sA}, {sB}
    s_add_u32 {sB}, {sA}, {16 * 896}''')
    for el in range(8):
        e(f'buffer_load_ushort {acc[8 + el]}, {t1}, {rW2}, {sA if el < 4 else sB} offen offset:{(el & 3) * 896}')
    e(f'''s_lshl_b32 {sA}, {sI}, 10
    s_add_u32 {sB}, {sA}, {WS_W2F}
    s_add_u32 {sA}, {sA}, {WS_W1F}
    s_waitcnt vmcnt(0)''')
    for i in range(8):
        e(f'v_lshl_or_b32 {acc[16 + i]}, {acc[2 * i + 1]}, 16, {acc[2 * i]}')
    e(f'''buffer_store_dwordx4 {acc[16:20]}, {vL16}, {sWS}, {sA} offen sc1
    buffer_store_dwordx4 {acc[20:24]}, {vL16}, {sWS}, {sB} offen sc1
    s_add_u32 {sI}, {sI}, 512
    s_cmp_lt_u32 {sI}, 1568
    s_cbranch_scc1 {C0}
    v_mov_b32 {vCA}, {C_WF}''')
    signal(p, vCA, t0)
    e(f'''s_lshl_b32 {sA}, {sS}, 15
    s_lshl_b32 {sB}, {sXx}, 11
    s_add_u32 {sA}, {sA}, {sB}
    s_add_u32 {sA}, {sA}, {WS_XNB}''')
    for k in range(7):
        for rh in range(2):
            e(f'buffer_load_dwordx4 {XF[8 * k + 4 * rh:8 * k + 4 * rh + 4]}, {vQ[xnb_blk(k)]}, {sWS}, {sA} offen offset:{rh * 1024} sc1')
    for i in range(112):
        e(f'v_mov_b32 {acc[i]}, 0')
    e(f's_mov_b32 {sA}, 128')
    wait_ge(p, vCA, t0, sA, 8)
    tl(p, 1, 's100', WS_TL + 16384)
    bA = R('a', 0, 112)
    bB = R('a', 112, 112)

    def blk_load(dst, so, i):
        return f'buffer_load_dwordx4 {dst[4 * i:4 * i + 4]}, {vQ[i >> 2]}, {sWS}, {so} offen offset:{(i & 3) * 1024} sc1'
    e(f'''s_mul_i32 {sF1}, {sW}, 28672
    s_add_u32 {sF2}, {sF1}, {WS_W2F}
    s_add_u32 {sF1}, {sF1}, {WS_W1F}
    s_lshl_b32 {sC}, {sW}, 6
    s_mov_b32 {sI}, 0''')
    for i in range(28):
        e(blk_load(bA, sF1, i))
    FL = p.label('FL')
    e(f'''{FL}:
    buffer_load_dwordx2 {Bs[0:2]}, {vB1}, {rB1}, {sC} offen
    buffer_load_dwordx2 {Bs[2:4]}, {vB1}, {rB1}, {sC} offen offset:32
    s_add_u32 {sF1}, {sF1}, {4 * 28672}''')
    for i in range(28):
        a, kk = i // 14, i % 14
        e(f's_waitcnt vmcnt({29})')
        d = H[4 * a:4 * a + 4]
        e(f'v_mfma_f32_16x16x32_bf16 {d}, {bA[4 * i:4 * i + 4]}, {XF[4 * kk:4 * kk + 4]}, {0 if kk == 0 else d}')
        e(blk_load(bB, sF2, i))
    e('s_waitcnt vmcnt(28)')
    for i in range(4):
        a, b = H[2 * i], H[2 * i + 1]
        e(f'''v_cvt_pk_bf16_f32 {t0}, {a}, {b}
        v_lshlrev_b32 {a}, 16, {t0}
        v_and_b32 {b}, 0xffff0000, {t0}
        v_lshlrev_b32 {t1}, 16, {Bs[i]}
        v_and_b32 {t2}, 0xffff0000, {Bs[i]}
        v_add_f32 {a}, {a}, {t1}
        v_add_f32 {b}, {b}, {t2}
        v_cvt_pk_bf16_f32 {t0}, {a}, {b}
        v_lshlrev_b32 {a}, 16, {t0}
        v_and_b32 {b}, 0xffff0000, {t0}
        v_max_f32 {a}, 0, {a}
        v_max_f32 {b}, 0, {b}
        v_mul_f32 {a}, {a}, {a}
        v_mul_f32 {b}, {b}, {b}
        v_cvt_pk_bf16_f32 {PA[i]}, {a}, {b}''')
    for i in range(28):
        e(f's_waitcnt vmcnt({27})')
        d = acc[4 * i:4 * i + 4]
        e(f'v_mfma_f32_16x16x32_bf16 {d}, {PA[0:4]}, {bB[4 * i:4 * i + 4]}, {d}')
        e(blk_load(bA, sF1, i))
    e(f'''s_add_u32 {sF2}, {sF2}, {4 * 28672}
    s_add_u32 {sC}, {sC}, 256
    s_add_u32 {sI}, {sI}, 1
    s_cmp_lt_u32 {sI}, 14
    s_cbranch_scc1 {FL}''')

    def reduce_write(ntile, nq, rowb):
        e(f'''v_mul_u32_u24 {t0}, {4 * rowb}, {vG}
        v_lshl_add_u32 {t0}, {vC}, 2, {t0}
        s_lshl_b32 {sA}, {sW}, 15
        v_add_u32 {t0}, {sA}, {t0}''')
        u = rowb // 256
        for tt in range(ntile):
            for qt in range(nq):
                a = acc[4 * (tt * nq + qt):4 * (tt * nq + qt) + 4]
                for r in (0, 2):
                    o = (16 * qt + r) * u
                    e(f'ds_write2st64_b32 {t0}, {a[r]}, {a[r + 1]} offset0:{o} offset1:{o + u}')
            e(f'v_add_u32 {t0}, 64, {t0}')
        e('s_waitcnt lgkmcnt(0)\ns_barrier')

    def reader_setup(nunit, rowb, jbase_sgpr, rowbase_sgpr):
        mul = {56: 1171, 28: 2341}[nunit]
        for rd in range(4):
            e(f'''v_add_u32 {t0}, {256 * rd}, v0
            v_mul_u32_u24 {t1}, {mul}, {t0}
            v_lshrrev_b32 {t1}, 16, {t1}                 ; token
            v_mul_u32_u24 {t2}, {nunit}, {t1}
            v_sub_u32 {t2}, {t0}, {t2}                   ; q
            v_mul_u32_u24 {vRo[rd]}, {rowb}, {t1}
            v_lshl_add_u32 {vRo[rd]}, {t2}, 5, {vRo[rd]}
            v_add_u32 {t1}, {rowbase_sgpr}, {t1}
            v_mul_u32_u24 {vGo[rd]}, 896, {t1}
            v_and_b32 {t1}, 1, {t2}
            v_lshl_add_u32 {vGo[rd]}, {t1}, 6, {vGo[rd]}
            v_lshrrev_b32 {t2}, 1, {t2}
            v_add_u32 {t2}, {jbase_sgpr}, {t2}           ; j
            v_lshrrev_b32 {t1}, 2, {t2}
            v_lshl_add_u32 {vGo[rd]}, {t1}, 7, {vGo[rd]}
            v_and_b32 {t1}, 3, {t2}
            v_lshl_add_u32 {vGo[rd]}, {t1}, 4, {vGo[rd]}''')
        e(f'''v_cmp_gt_u32 vcc, 128, v0
        v_mov_b32 {t0}, {OOB}
        v_cndmask_b32 {vGo[3]}, {t0}, {vGo[3]}, vcc
        v_cndmask_b32 {vRo[3]}, 0, {vRo[3]}, vcc''')

    def reduce_read(rd, dst):
        e(f'v_add_u32 {t0}, 65536, {vRo[rd]}')
        for ww in range(4):
            ad = vRo[rd] if ww < 2 else t0
            for hh in range(2):
                e(f'ds_read_b128 {dst[8 * ww + 4 * hh:8 * ww + 4 * hh + 4]}, {ad} offset:{(ww & 1) * 32768 + hh * 16}')
        e('s_waitcnt lgkmcnt(0)')
        for i in range(8):
            e(f'''v_add_f32 {dst[i]}, {dst[i]}, {dst[8 + i]}
            v_add_f32 {dst[16 + i]}, {dst[16 + i]}, {dst[24 + i]}
            v_add_f32 {dst[i]}, {dst[i]}, {dst[16 + i]}''')

    def add_packed(vals, pk):
        for i in range(4):
            a, b = vals[2 * i], vals[2 * i + 1]
            e(f'''v_cvt_pk_bf16_f32 {t0}, {a}, {b}
            v_lshlrev_b32 {a}, 16, {t0}
            v_and_b32 {b}, 0xffff0000, {t0}
            v_lshlrev_b32 {t1}, 16, {pk[i]}
            v_and_b32 {t2}, 0xffff0000, {pk[i]}
            v_add_f32 {a}, {a}, {t1}
            v_add_f32 {b}, {b}, {t2}''')

    e('s_waitcnt vmcnt(0)')
    reduce_write(28, 1, 2048)
    e(f'''s_mov_b32 {sA}, 0
    s_mov_b32 {sB}, 0''')
    reader_setup(56, 2048, sA, sB)
    e(f'''s_lshl_b32 {sB}, s10, 4
    s_mul_i32 {sB}, {sB}, 896
    s_add_u32 {sB}, {sB}, {WS_BASE}''')
    for rd in range(4):
        e(f'''v_lshrrev_b32 {t1}, 11, {vRo[rd]}
        v_mul_u32_u24 {t1}, 896, {t1}
        v_sub_u32 {t1}, {vGo[rd]}, {t1}
        buffer_load_dwordx4 {PA[4 * rd:4 * rd + 4]}, {t1}, {rB2}, 0 offen''')
    for rd in range(4):
        d = XF[0:32]
        reduce_read(rd, d)
        e(f's_waitcnt vmcnt({3})' if False else 's_waitcnt vmcnt(0)')
        add_packed(d, PA[4 * rd:4 * rd + 4])
        o = XF[32 + 4 * rd:36 + 4 * rd]
        for i in range(4):
            e(f'v_cvt_pk_bf16_f32 {o[i]}, {d[2 * i]}, {d[2 * i + 1]}')
    for rd in range(4):
        e(f'buffer_store_dwordx4 {XF[32 + 4 * rd:36 + 4 * rd]}, {vGo[rd]}, {sWS}, {sB} offen sc1')
    e(f'''s_lshl_b32 {sA}, {sS}, 7
    s_add_u32 {sA}, {sA}, {C_PY}
    v_mov_b32 {vCA}, {sA}''')
    signal(p, vCA, t0)
    tl(p, 2, 's100', WS_TL + 16384)
    sCG = 's36'
    e(f"""s_cmp_ge_u32 s10, 126
    s_cbranch_scc1 EXIT
    s_mul_i32 {sS}, s10, 147
    s_lshr_b32 {sS}, {sS}, 10
    s_mul_i32 {sCG}, {sS}, 7
    s_sub_u32 {sCG}, s10, {sCG}
    v_mov_b32 {vCA}, {C_INIT}
    s_mov_b32 {sA}, {32 * NRY}""")
    wait_ge(p, vCA, t0, sA, 16)
    YB = R('a', 0, 64)
    XR, BR = XF[16:20], XF[20:24]
    YM = XF[0:16]
    vWr, vRd, vG2 = vRo[0], vRo[1], vGo[0]
    e(f"""; LDS write: w*8192 + 4g*256 + ((n&7) + 32*(n>>3))*4
    v_lshlrev_b32 {vWr}, 10, {vG}
    v_and_b32 {t0}, 7, {vC}
    v_lshl_add_u32 {vWr}, {t0}, 2, {vWr}
    v_lshrrev_b32 {t0}, 3, {vC}
    v_lshl_add_u32 {vWr}, {t0}, 7, {vWr}
    s_lshl_b32 {sA}, {sW}, 13
    v_add_u32 {vWr}, {sA}, {vWr}
    v_lshlrev_b32 {vRd}, 5, v0
    v_lshrrev_b32 {t0}, 3, v0
    v_mul_u32_u24 {vG2}, 896, {t0}
    v_and_b32 {t0}, 7, v0
    v_lshl_add_u32 {vG2}, {t0}, 4, {vG2}
    s_lshl_b32 {sA}, {sCG}, 7
    v_add_u32 {vG2}, {sA}, {vG2}""")
    J2 = p.label('J2')
    e(f"""{J2}:
    s_lshl_b32 {sA}, {sS}, 2
    v_mov_b32 {vCA}, {sA}
    s_mov_b32 {sA}, 16""")
    wait_ge(p, vCA, t0, sA, 8)
    e(f"""s_lshl_b32 {sA}, {sS}, 7
    s_add_u32 {sA}, {sA}, {C_PY}
    v_mov_b32 {vCA}, {sA}
    s_mov_b32 {sA}, 2""")
    wait_ge(p, vCA, t0, sA, 8)
    e(f"""s_mul_i32 {sA}, {sS}, {28 * 16384}
    s_lshl_b32 {sB}, {sCG}, 16
    s_add_u32 {sA}, {sA}, {sB}
    s_lshl_b32 {sB}, {sW}, 12
    s_add_u32 {sA}, {sA}, {sB}
    s_add_u32 {sA}, {sA}, {WS_YX}""")
    for tt in range(4):
        for hh in range(4):
            e(f'buffer_load_dwordx4 {YB[16 * tt + 4 * hh:16 * tt + 4 * hh + 4]}, {vL16}, {sWS}, {sA} offen offset:{hh * 1024} sc1')
        e(f's_add_u32 {sA}, {sA}, 16384')
    e(f"""s_mul_i32 {sI}, {sS}, {32 * 896}
    s_add_u32 {sB}, {sI}, {WS_BASE}
    buffer_load_dwordx4 {XR}, {vG2}, {rX}, {sI} offen
    buffer_load_dwordx4 {BR}, {vG2}, {sWS}, {sB} offen sc1
    s_lshl_b32 {sA}, {sS}, 13
    s_add_u32 {sA}, {sA}, {WS_MEMA}
    v_mov_b32 {t1}, 0""")
    load_valid(p, [f'buffer_load_dword {t2}, {t1}, {sWS}, {sA} offen sc1'], [t2], t0, 8)
    tl(p, 3, 's100', WS_TL + 16384)
    e(f"""s_lshl_b32 {sA}, {sS}, 15
    s_lshl_b32 {sB}, {sW}, 12
    s_add_u32 {sA}, {sA}, {sB}
    s_add_u32 {sA}, {sA}, {WS_PX}
    s_lshl_b32 {sF1}, {sS}, 13
    s_lshl_b32 {sB}, {sW}, 10
    s_add_u32 {sF1}, {sF1}, {sB}
    s_add_u32 {sF1}, {sF1}, {WS_PM}
    s_lshl_b32 {sF2}, {sS}, 17
    s_add_u32 {sF2}, {sF2}, {sB}
    s_lshl_b32 {sB}, {sCG}, 14
    s_add_u32 {sF2}, {sF2}, {sB}
    s_add_u32 {sF2}, {sF2}, {WS_YMA}""")
    lds_ = []
    for hh in range(4):
        for qt in range(2):
            lds_.append(f'buffer_load_dwordx4 {PA[8 * hh + 4 * qt:8 * hh + 4 * qt + 4]}, {vQ[4 * qt]}, {sWS}, {sA} offen offset:{hh * 1024} sc1')
    lds_ += [f'buffer_load_dwordx4 {PA[32 + 4 * qt:36 + 4 * qt]}, {vQ[qt]}, {sWS}, {sF1} offen sc1' for qt in range(2)]
    lds_ += [f'buffer_load_dwordx4 {YM[4 * tt:4 * tt + 4]}, {vQ[tt]}, {sWS}, {sF2} offen sc1' for tt in range(4)]
    load_valid(p, lds_, [PA[i] for i in range(40)] + [YM[i] for i in range(16)], t0, 1)
    for hh in range(5):
        for tt in range(4):
            for qt in range(2):
                d = acc[4 * (2 * tt + qt):4 * (2 * tt + qt) + 4]
                bb = YB[16 * tt + 4 * hh:16 * tt + 4 * hh + 4] if hh < 4 else YM[4 * tt:4 * tt + 4]
                e(f'v_mfma_f32_16x16x32_bf16 {d}, {PA[8 * hh + 4 * qt:8 * hh + 4 * qt + 4]}, {bb}, {0 if hh == 0 else d}')
    for tt in range(4):
        if tt:
            e(f'v_add_u32 {t0}, {32 * tt}, {vWr}')
        for qt in range(2):
            a_ = acc[4 * (2 * tt + qt):4 * (2 * tt + qt) + 4]
            for r in (0, 2):
                e(f'ds_write2st64_b32 {t0 if tt else vWr}, {a_[r]}, {a_[r + 1]} offset0:{16 * qt + r} offset1:{16 * qt + r + 1}')
    e('s_waitcnt lgkmcnt(0)\ns_barrier')
    d = acc[32:64]
    for ww in range(4):
        for hh in range(2):
            e(f'ds_read_b128 {d[8 * ww + 4 * hh:8 * ww + 4 * hh + 4]}, {vRd} offset:{ww * 8192 + hh * 16}')
    e('s_waitcnt lgkmcnt(0)\ns_barrier')
    for i in range(8):
        e(f"""v_add_f32 {d[i]}, {d[i]}, {d[8 + i]}
        v_add_f32 {d[16 + i]}, {d[16 + i]}, {d[24 + i]}
        v_add_f32 {d[i]}, {d[i]}, {d[16 + i]}""")
    add_packed(d, XR)
    add_packed(d, BR)
    o = acc[64:68]
    for i in range(4):
        e(f'v_cvt_pk_bf16_f32 {o[i]}, {d[2 * i]}, {d[2 * i + 1]}')
    e(f"""buffer_store_dwordx4 {o}, {vG2}, {rO}, {sI} offen
    s_add_u32 {sS}, {sS}, 18
    s_cmp_lt_u32 {sS}, 64
    s_cbranch_scc1 {J2}""")
    if TL_ON[0]:
        e('s_waitcnt vmcnt(0)')
    tl(p, 4, 's100', WS_TL + 16384)
    e('s_endpgm')
```

```python
import sys
from asmlib import *
from layout import *
import team, workers, prep
from team import *

NAME = 'parallel_sum__memory_aug_recurrent_mem_tr__dense_activation_squared_relu__prompt'
MAIN_LDS = 131072


def ready_wait(p, kind):
    e = p.e
    L, W = p.label('RW'), p.label('RB')
    e(f"""s_cmp_lg_u32 {sWAVE}, 0
    s_cbranch_scc1 {W}
    s_mov_b32 s23, {WS_CNT}
    s_and_b32 s22, {sIDX}, 7
    s_lshl_b32 s22, s22, 7
    s_add_u32 s22, s22, {C_LN}
    v_and_b32 v1, 31, v0
    v_lshlrev_b32 v1, 2, v1
    v_add_u32 v1, s22, v1
    v_and_b32 v3, 7, v0
    v_min_u32 v3, 6, v3
    v_lshlrev_b32 v3, 2, v3""")
    if kind == 'one':
        e(f"""s_lshl_b32 s21, s21, 7
        s_add_u32 s21, s21, {C_MAT}
        v_add_u32 v3, s21, v3
        v_cmp_gt_u32 vcc, 32, v0
        v_cndmask_b32 v1, v3, v1, vcc""")
    if kind == 'vo':
        e(f"""v_lshrrev_b32 v2, 3, v0
        v_lshl_add_u32 v2, v2, 8, v3
        v_add_u32 v2, {C_MAT + 128}, v2""")
    e(f"""s_mov_b32 s22, 200000
    {L}:
    buffer_load_dword v3, v1, s[4:7], s23 offen sc1""")
    if kind == 'vo':
        e("""buffer_load_dword v5, v2, s[4:7], s23 offen sc1
        buffer_load_dword v6, v2, s[4:7], s23 offen offset:2048 sc1""")
    e(f"""s_sub_u32 s22, s22, 1
    s_cmp_gt_i32 s22, 0
    s_cbranch_scc0 {W}
    s_waitcnt vmcnt(0)""")
    if kind == 'vo':
        e('v_min3_u32 v3, v3, v5, v6')
    e(f"""v_cmp_ne_u32 vcc, 1, v3
    s_cbranch_vccz {W}
    s_sleep 4
    s_branch {L}
    {W}:
    s_barrier""")


def main_kernel(p, name, cfg):
    e = p.e
    srd = prep.srd
    e(f'{name}:')
    e(f"""s_cmp_ge_u32 s2, 256
    s_cbranch_scc1 EXIT
    v_lshrrev_b32 v1, 6, v0
    v_readfirstlane_b32 s9, v1
    s_and_b32 s3, s2, 7
    s_lshr_b32 s8, s2, 3""")
    srd(e, 4, 112, WS_BYTES)
    srd(e, 84, 104, 256)
    e(f"""s_getreg_b32 s88, hwreg(HW_REG_XCC_ID)
    s_and_b32 s88, s88, 7""")
    if cfg.fb:
        e("""s_and_b32 s20, s8, 1
        s_cmp_eq_u32 s88, 0
        s_cselect_b32 s88, s20, s88""")
    e(f"""s_lshl_b32 s20, s88, 2
    s_add_u32 s20, s20, 160
    v_mov_b32 v250, 1
    v_mov_b32 v251, {OOB}
    v_mov_b32 v252, s20
    v_cmp_eq_u32 vcc, 0, v0
    v_cndmask_b32 v251, v251, v252, vcc
    s_cmp_ge_u32 s8, 28
    s_cbranch_scc1 PREP_LN
    s_mul_i32 s20, s8, 37
    s_lshr_b32 s20, s20, 8        ; q/7
    s_mul_i32 s21, s20, 7
    s_sub_u32 s11, s8, s21        ; chunk
    s_lshl_b32 s3, s3, 2
    s_add_u32 s20, s20, s3
    s_lshl_b32 s89, s20, 7
    s_lshl_b32 s21, s11, 2
    s_add_u32 s89, s89, s21
    s_add_u32 s89, s89, {C_MAT}   ; done word
    s_mov_b32 s90, 1              ; replicas
    s_lshr_b32 s10, s20, 1
    s_bitcmp1_b32 s20, 0
    s_cbranch_scc1 PREP_VO""")
    mid = ([], 'buffer_atomic_add v250, v251, s[84:87], 0 offen sc0', 'el')
    srd(e, 12, 16, 448 * 8192)
    srd(e, 16, 24, 448 * 8192)
    e('s_waitcnt lgkmcnt(0)')
    tl(p, 0, 's2', WS_TL)
    prep.gemm_job(p, 0, 'sc1', mid)
    e('s_branch PREP_DONE\nPREP_VO:')
    srd(e, 12, 32, 448 * 8192)
    srd(e, 16, 40, 448 * 8192)
    e('s_waitcnt lgkmcnt(0)')
    tl(p, 0, 's2', WS_TL)
    prep.gemm_job(p, 1, 'sc1', mid)
    e('s_branch PREP_DONE\nPREP_LN:')
    srd(e, 12, 0, S * D * 2)
    e(f"""s_sub_u32 s10, s2, 224
    s_lshl_b32 s89, s10, 2
    s_add_u32 s89, s89, {C_LN}
    s_mov_b32 s90, 8
    s_lshl_b32 s10, s10, 2
    s_add_u32 s10, s10, s9
    s_waitcnt lgkmcnt(0)
    s_cmp_lg_u32 s2, 224
    s_cbranch_scc1 NO_INIT
    v_lshlrev_b32 v1, 4, v0
    v_mov_b32 v4, 0
    v_mov_b32 v5, 0
    v_mov_b32 v6, 0
    v_mov_b32 v7, 0""")
    for i in range(6):
        e(f"""s_mov_b32 s20, {WS_CNT + i * 4096}
        buffer_store_dwordx4 v[4:7], v1, s[4:7], s20 offen sc1""")
    e("""s_waitcnt vmcnt(0)
    s_barrier
    v_mov_b32 v1, 16
    v_mov_b32 v2, 1
    buffer_store_dword v2, v1, s[84:87], 0 offen sc1
    NO_INIT:""")
    mk = f"""v_and_b32 v248, 63, v0
    v_lshlrev_b32 v248, 4, v248
    v_mov_b32 v244, -1
    v_mov_b32 v245, -1
    v_mov_b32 v246, -1
    v_mov_b32 v247, -1
    s_lshl_b32 s20, s10, 12
    s_add_u32 s20, s20, {WS_MEMA}
    """ + '\n'.join(f'buffer_store_dwordx4 v[244:247], v248, s[4:7], s20 offen offset:{1024 * i} sc1' for i in range(4))
    tl(p, 0, 's2', WS_TL)
    prep.ln_job(p, 'sc1', ([], mid[1] + '\n' + mk))
    e('PREP_DONE:')
    srd(e, 12, 104, 256)
    srd(e, 16, 8, 7168)
    e(f"""v_mov_b32 v4, 0
    v_mov_b32 v252, 16
    buffer_load_dword v253, v252, s[84:87], 0 offen sc1
    s_waitcnt vmcnt(0) lgkmcnt(0)
    s_barrier""")
    tl(p, 1, 's2', WS_TL)
    e(f"""s_cmp_lg_u32 {sWAVE}, 0
    s_cbranch_scc1 EL_WAIT
    v_mov_b32 v1, 16
    s_mov_b32 s22, 200000
    INIT_WAIT:
    v_readfirstlane_b32 s21, v253
    s_cmp_eq_u32 s21, 1
    s_cbranch_scc1 INIT_OK
    buffer_load_dword v253, v1, s[12:15], 0 offen sc1
    s_sub_u32 s22, s22, 1
    s_cmp_gt_i32 s22, 0
    s_waitcnt vmcnt(0)
    s_cbranch_scc1 INIT_WAIT
    INIT_OK:
    v_lshlrev_b32 v2, 7, v0
    v_add_u32 v2, s89, v2
    v_mov_b32 v3, {OOB}
    v_cmp_gt_u32 vcc, s90, v0
    v_cndmask_b32 v2, v3, v2, vcc
    v_mov_b32 v1, 1
    s_mov_b32 s22, {WS_CNT}
    buffer_store_dword v1, v2, s[4:7], s22 offen sc1
    v_readfirstlane_b32 s21, v250
    s_cmp_lt_u32 s21, 32
    s_cbranch_scc1 EL_MAP
    v_and_b32 v1, 7, v0
    v_lshlrev_b32 v1, 2, v1
    s_mov_b32 s22, 200000
    EL_SUM:
    buffer_load_dword v3, v1, s[12:15], 0 offen offset:160 sc1
    s_waitcnt vmcnt(0)
    s_mov_b32 s23, 0""")
    for i in range(8):
        e(f'v_readlane_b32 s{24 + i}, v3, {i}')
    for i in range(8):
        e(f's_add_u32 s23, s23, s{24 + i}')
    e(f"""s_sub_u32 s22, s22, 1
    s_cmp_gt_i32 s22, 0
    s_cbranch_scc0 EXIT
    s_cmp_lt_u32 s23, 256
    s_cbranch_scc1 EL_SUM
    v_mov_b32 v1, 1
    v_mov_b32 v2, 4
    s_mov_b64 exec, 1
    buffer_atomic_add v1, v2, s[12:15], 0 offen sc0
    s_waitcnt vmcnt(0)
    s_mov_b64 exec, -1
    v_readfirstlane_b32 s22, v1""")
    for i in range(8):
        e(f"""s_min_u32 s21, s{24 + i}, 32
        s_sub_u32 s23, 32, s21
        s_add_u32 s21, s21, s22
        s_mov_b32 s88, {i}
        s_cmp_lt_u32 s22, s23
        s_cbranch_scc1 EL_TOOK
        s_sub_u32 s22, s22, s23""")
    e(f"""s_branch EXIT
    EL_TOOK:
    s_cmp_lg_u32 s88, {cfg.xcc}
    s_cbranch_scc1 EL_MAP
    v_mov_b32 v1, 1
    v_mov_b32 v2, 12
    buffer_store_dword v1, v2, s[12:15], 0 offen sc1
    EL_MAP:
    s_cmp_eq_u32 s88, {cfg.xcc}
    s_cbranch_scc1 EL_DONE
    s_sub_u32 s22, s88, {cfg.xcc + 1}
    s_and_b32 s22, s22, 7
    s_mul_i32 s21, s21, 7
    s_add_u32 s21, s21, s22
    s_add_u32 s21, s21, 32
    EL_DONE:
    v_mov_b32 v1, s21
    ds_write_b32 v4, v1
    s_waitcnt lgkmcnt(0)
    EL_WAIT:
    s_barrier
    ds_read_b32 v1, v4
    s_waitcnt lgkmcnt(0)
    v_readfirstlane_b32 {sIDX}, v1
    s_and_b32 {sIDX}, {sIDX}, 255
    s_mov_b32 s100, {sIDX}""")
    tl(p, 0, 's100', WS_TL + 16384)
    e(f"""s_cmp_ge_u32 {sIDX}, 32
    s_cbranch_scc1 WORKER
    s_and_b32 {sH}, {sIDX}, 15""")
    if cfg.diag:
        for i in range(NSTAMP):
            e(f's_mov_b32 s{STAMP0 + 2 * i}, 0')
    e(f"""s_cmp_ge_u32 {sIDX}, 16
    s_cbranch_scc1 ROLE_VO
    s_lshl_b32 s21, {sH}, 1""")
    ready_wait(p, 'one')
    tl(p, 5, 's100', WS_TL + 16384)
    wave_dispatch(e, 'QK')
    e(f"""ROLE_VO:
    s_cmp_ge_u32 {sH}, 14
    s_cbranch_scc1 ROLE_EN""")
    ready_wait(p, 'vo')
    tl(p, 5, 's100', WS_TL + 16384)
    wave_dispatch(e, 'VO')
    e('ROLE_EN:')
    ready_wait(p, 'ln')
    wave_dispatch(e, 'EN')
    e(f"""WORKER:
    s_sub_u32 s8, s8, 32
    s_cmp_ge_u32 s8, 96
    s_cbranch_scc1 ROLE_F
    s_cmp_ge_u32 s8, 48
    s_cselect_b32 s20, 48, 0
    s_sub_u32 s20, s8, s20            ; y
    s_cmp_ge_u32 s20, 42
    s_cbranch_scc1 WK_HI
    s_cmp_ge_u32 s20, 21
    s_cselect_b32 s21, 21, 0
    s_cselect_b32 s10, 7, 0
    s_sub_u32 s20, s20, s21
    s_mul_i32 s11, s20, 37
    s_lshr_b32 s11, s11, 8            ; replica
    s_mul_i32 s21, s11, 7
    s_sub_u32 s20, s20, s21
    s_add_u32 s10, s10, s20           ; head
    s_branch WK_GO
    WK_HI:
    s_cmp_ge_u32 s20, 45
    s_cselect_b32 s10, 15, 14
    s_cselect_b32 s21, 45, 42
    s_sub_u32 s11, s20, s21
    WK_GO:
    s_lshl_b32 s21, s10, 1
    s_cmp_ge_u32 s8, 48
    s_cbranch_scc1 ROLE_T
    s_add_u32 s21, s21, 1""")
    ready_wait(p, 'one')
    tl(p, 5, 's100', WS_TL + 16384)
    workers.yt_worker(p, 0)
    e('EXIT:\ns_endpgm')
    e('ROLE_T:')
    ready_wait(p, 'one')
    workers.yt_worker(p, 1)
    e('ROLE_F:')
    ready_wait(p, 'ln')
    e('s_sub_u32 s10, s8, 96')
    workers.f_worker(p)
    for role, nm in ((0, 'QK'), (1, 'VO'), (2, 'EN')):
        for w in range(4):
            e(f'{nm}{w}:')
            team_wave(p, role, w, cfg)


def build(cfg):
    TL_ON[0] = bool(cfg.tl)
    hdr = open('cdna_kernels/%s.s.ref' % NAME).read().split('; Override launch')[0]
    hdr += '; @launch grid=(256,1,1) block=(256,1,1) lds=%d\n' % max(prep.P_LDS, L_END, MAIN_LDS)
    hdr += '.amdgcn_target "amdgcn-amd-amdhsa--gfx950"\n.text\n'
    out = hdr
    p = Prog()
    main_kernel(p, NAME + '_kernel', cfg)
    out += '.globl %s_kernel\n.p2align 8\n.type %s_kernel,@function\n' % (NAME, NAME) + p.text()
    out += prep.KD % (NAME + '_kernel', 512)
    out = out.replace('\n    ', '\n')
    return out


def parse(args):
    cfg = Cfg()
    cfg.xcc = 0
    cfg.tl = 0
    cfg.fb = 0
    for a in args:
        k, v = a.split('=')
        assert hasattr(cfg, k), k
        setattr(cfg, k, int(v))
    return cfg


if __name__ == '__main__':
    open(sys.argv[1], 'w').write(build(parse(sys.argv[2:])))
```

```python
S, D, H, E, F, M, L, NS = 2048, 448, 16, 256, 1792, 8, 32, 64

WS_WQK = 0x0000000
WS_WVO = 0x0700000
WS_YX = 0x1000000
WS_XNB = 0x3000000
WS_XNA = 0x3200000
WS_MEMR = 0x3400000
WS_PR = 0x34c0000
WS_MEMA = 0x3600000
WS_YMA = 0x3800000
WS_PX = 0x4000000
WS_PM = 0x4200000
WS_FLAGS = 0x4400000
WS_CNT = WS_FLAGS + 0x4000
C_YX = 0
C_PY = 0x2000
C_INIT = 0x4000
C_WF = 0x4080
C_MAT = 0x4400
C_LN = 0x5400
C_GO = 0x5800
C_TB = 0x5c00
CNT_BYTES = 0x6000
WS_STAMP = 0x4500000
WS_TL = WS_STAMP + 0x10000
WS_W1F = 0x4600000
WS_W2F = 0x4800000
WS_BASE = 0x4a00000
WS_BYTES = 268435456


YTS = [16384]


def xnb_blk(chunk):
    return 2 * chunk if chunk < 4 else 2 * (chunk - 4) + 1


QK_SLOTS = [
    [0, 1, 2, 3, 4, 5, 6],
    [1, 2, 0, 3, 5, 6, 4],
    [2, 0, 1, 3, 6, 4, 5],
    [1, 0, 2, 3, 4, 6, 5],
]
VO_SLOTS = QK_SLOTS
QK_TILES = [
    [(0, 0), (0, 1), (0, 2), (0, 3), (1, 2), (1, 3), (1, 1)],
    [(0, 0), (0, 1), (0, 2), (0, 3), (1, 2), (1, 3), (1, 0)],
    [(0, 0), (0, 1), (0, 2), (0, 3), (1, 0), (1, 1), (1, 3)],
    [(0, 0), (0, 1), (0, 2), (0, 3), (1, 0), (1, 1), (1, 2)],
]


def set_quad(w, st, v, half):
    if st == 0:
        return 2 * w + v
    if w < 3:
        return 2 * (4 + w) + v
    return (2 * (4 + v) + v) if half == 0 else (12 + v)


def qk_col(w, t, n):
    st, pos = QK_TILES[w][t]
    th = set_quad(w, st, pos & 1, pos >> 1)
    return 32 * th + 8 * (n >> 2) + 4 * (pos >> 1) + (n & 3)


def tile_col(j, n):
    return 64 * (j >> 2) + 8 * (j & 3) + (n & 7) + 32 * (n >> 3)


def vo_col(w, t, n):
    return tile_col(7 * w + t, n)


def frag_row(chunk, gB, rho, b):
    return 64 * chunk + 32 * (rho & 1) + 16 * (rho >> 2) + 4 * gB + 2 * ((rho >> 1) & 1) + b


def xs_row(w, st, gB, rho, b):
    return 32 * set_quad(w, st, rho & 1, gB & 1) + 16 * (rho >> 2) + 4 * gB + 2 * ((rho >> 1) & 1) + b
```

```python
import math, struct
from asmlib import *
from layout import *

LOG2E_16 = struct.unpack('<I', struct.pack('<f', math.log2(math.e) / 16))[0]
P_LA = 0
P_LB = 32768
P_LDS = P_LB + 4 * 28672


def srd(e, s, koff, nbytes):
    e(f'''s_load_dwordx2 s[{s}:{s + 1}], s[0:1], {koff}
    s_mov_b32 s{s + 2}, {nbytes}
    s_mov_b32 s{s + 3}, 0x20000''')


def gemm_job(p, mat, st='', mid=None):
    e = p.e
    V = Alloc('v', 1, 250)
    vL, vG, vC, t0, t1 = (V.get() for _ in range(5))
    vAo, vBo, vRd, vL16, vTr = (V.get() for _ in range(5))
    Af = V.get(32, 4)
    Bf = V.get(56, 4)
    acc = V.get(112, 4)
    o = V.get(8, 4)
    e(f'''v_and_b32 {vL}, 63, v0
    v_lshrrev_b32 {vG}, 4, {vL}
    v_and_b32 {vC}, 15, {vL}
    v_lshlrev_b32 {vL16}, 4, {vL}
    v_and_b32 {t0}, 3, {vL}
    v_xor_b32 {t0}, {t0}, {vG}
    v_lshlrev_b32 {t0}, 4, {t0}
    v_lshrrev_b32 {t1}, 2, {vL}
    v_lshl_add_u32 {vAo}, {t1}, 13, {t0}
    v_and_b32 {t1}, 3, {t1}
    v_lshl_add_u32 {t1}, {vG}, 3, {t1}
    v_lshl_add_u32 {vBo}, {t1}, 13, {t0}
    v_lshrrev_b32 {t0}, 2, {vC}
    v_xor_b32 {t0}, {t0}, {vG}
    v_lshl_add_u32 {t0}, {vC}, 2, {t0}
    v_lshlrev_b32 {vRd}, 4, {t0}
    s_lshl_b32 s20, s11, 19
    s_lshl_b32 s21, s9, 17
    s_add_u32 s20, s20, s21
    s_lshl_b32 s21, s10, 9
    s_add_u32 s20, s20, s21
    s_lshl_b32 s22, s9, 13
    s_mul_i32 s23, s9, 7168''')
    for ks in range(8):
        e(f'''s_add_u32 m0, s22, {P_LA + ks * (1024 - 64)}
        buffer_load_dwordx4 {vAo}, s[12:15], s20 offen offset:{ks * 64} lds''')
    if mat == 0:
        for tt in range(7):
            e(f'''s_mul_i32 s31, s9, 7
            s_add_u32 s31, s31, {tt}
            s_lshr_b32 s32, s31, 1
            s_lshl_b32 s32, s32, 18
            s_and_b32 s31, s31, 1
            s_lshl_b32 s31, s31, 15
            s_add_u32 s31, s31, s32
            s_add_u32 s{24 + tt}, s31, s21''')
        e(f'v_add_u32 {vTr}, s23, {vRd}')
    else:
        e(f'''s_mul_i32 s24, s10, 229376
        s_add_u32 s24, s24, s23
        v_lshrrev_b32 {t0}, 2, {vC}
        v_lshl_add_u32 {t0}, {vG}, 3, {t0}
        v_mul_u32_u24 {t0}, 896, {t0}
        v_and_b32 {t1}, 1, {vC}
        v_lshl_add_u32 {t0}, {t1}, 3, {t0}
        v_bfe_u32 {t1}, {vC}, 1, 1
        v_lshl_add_u32 {vTr}, {t1}, 6, {t0}''')
        vT = [V.get() for _ in range(7)]
        for tt in range(7):
            e(f'''s_mul_i32 s31, s9, 7
            s_add_u32 s31, s31, {tt}
            s_lshr_b32 s32, s31, 2
            s_lshl_b32 s32, s32, 7
            s_and_b32 s31, s31, 3
            s_lshl_b32 s31, s31, 4
            s_add_u32 s31, s31, s32
            s_add_u32 s31, s31, {P_LB}
            v_add_u32 {vT[tt]}, s31, {vTr}''')

    from team import VM
    vm = VM(e)

    def dma_b(ks):
        base = P_LB + (ks & 3) * 28672
        o_ = []
        for tt in range(7):
            if mat == 0:
                o_.append(([f's_add_u32 m0, s23, {base + tt * 1024 - ks * 64}'],
                           f'buffer_load_dwordx4 {vBo}, s[16:19], s{24 + tt} offen offset:{ks * 64} lds'))
            else:
                su = []
                if tt in (0, 4):
                    su = [f's_add_u32 m0, s23, {base + tt * 1024}', f's_add_u32 s31, s24, {ks * 28672 + tt * 1024}']
                o_.append((su, f'buffer_load_dwordx4 {vL16}, s[16:19], s31 offen offset:{(tt & 3) * 1024} lds'))
        return [(su, l, ('b', ks)) for su, l in o_]

    def emit(job):
        for x in job[0]:
            e(x)
        vm.issue(job[1], job[2])

    def reads(ks):
        b = ks & 1
        o_ = []
        if mat == 1 and ks in (2, 4, 6):
            for tt in range(7):
                o_.append(f'{"v_subrev_u32" if ks == 4 else "v_add_u32"} {vT[tt]}, {2 * 28672}, {vT[tt]}')
        for rt in range(4):
            o_.append(f'ds_read_b128 {Af[16 * b + 4 * rt:16 * b + 4 * rt + 4]}, {vRd} offset:{P_LA + (rt * 8 + ks) * 1024}')
        for tt in range(7):
            d = Bf[28 * b + 4 * tt:28 * b + 4 * tt + 4]
            if mat == 0:
                o_.append(f'ds_read_b128 {d}, {vRB[ks & 3]} offset:{tt * 1024}')
            else:
                off = (ks & 1) * 28672
                o_.append(f'ds_read_b64_tr_b16 {d[0:2]}, {vT[tt]} offset:{off}')
                o_.append(f'ds_read_b64_tr_b16 {d[2:4]}, {vT[tt]} offset:{off + 4 * 896}')
        return o_
    for j in dma_b(0):
        emit(j)
    if mat == 0:
        e(f"""v_lshrrev_b32 {t0}, 2, {vL}
        v_lshlrev_b32 {t0}, 13, {t0}
        v_and_b32 {t1}, 3, {vL}
        v_lshl_add_u32 {t0}, {t1}, 7, {t0}""")
        vm.issue(f'buffer_load_dword {o[0]}, {t0}, s[16:19], s20 offen')
        vRB = [V.get() for _ in range(4)]
        for i in range(4):
            e(f'v_add_u32 {vRB[i]}, {P_LB + i * 28672}, {vTr}')
    else:
        e(f"""v_lshlrev_b32 {t0}, 7, {vL}
        s_lshl_b32 s31, s11, 2
        s_add_u32 s31, s31, s9
        s_lshl_b32 s31, s31, 13
        s_mul_i32 s32, s10, 229376
        s_add_u32 s31, s31, s32""")
        vm.issue(f'buffer_load_dword {o[0]}, {t0}, s[16:19], s31 offen')
    for ks in (1, 2, 3):
        for j in dma_b(ks):
            emit(j)
    vm.wait(('b', 0))
    e('s_barrier')
    for l in reads(0):
        e(l)
    for ks in range(8):
        side = []
        if ks < 7:
            vm.wait(('b', ks + 1))
        e('s_waitcnt lgkmcnt(0)')
        if ks < 7:
            e('s_barrier')
            side = reads(ks + 1)
        if TL_ON[0]:
            e(f's_memrealtime s[{60 + 2 * ks}:{61 + 2 * ks}]')
        dj = dma_b(ks + 4) if ks + 4 < 8 else []
        if ks == 4 and mid is not None:
            dj = [mid]
        b = ks & 1
        n = 0
        for tt in range(7):
            for rt in range(4):
                d = acc[16 * tt + 4 * rt:16 * tt + 4 * rt + 4]
                e(f'v_mfma_f32_16x16x32_bf16 {d}, {Af[16 * b + 4 * rt:16 * b + 4 * rt + 4]}, '
                  f'{Bf[28 * b + 4 * tt:28 * b + 4 * tt + 4]}, {0 if ks == 0 else d}')
                if n % 4 == 0 and dj:
                    emit(dj.pop(0))
                if side:
                    e(side.pop(0))
                n += 1
        assert not side and not dj
    if TL_ON[0]:
        e('s_memrealtime s[76:77]')
    e(f'''s_mul_i32 s20, s10, 28
    s_mul_i32 s21, s9, 7
    s_add_u32 s20, s20, s21
    s_mul_i32 s20, s20, 7
    s_add_u32 s20, s20, s11
    s_lshl_b32 s20, s20, 11
    s_add_u32 s20, s20, {WS_WQK if mat == 0 else WS_WVO}
    s_mov_b32 s21, {LOG2E_16}''')
    for tt in range(7):
        a = acc[16 * tt:16 * tt + 16]
        if mat == 0:
            for i in range(16):
                e(f'v_mul_f32 {a[i]}, s21, {a[i]}')
        oo = Bf[8 * (tt % 4):8 * (tt % 4) + 8]
        for hi in range(2):
            for v in range(2):
                r = a[4 * (2 * v + hi):4 * (2 * v + hi) + 4]
                e(f'v_cvt_pk_bf16_f32 {oo[4 * hi + v]}, {r[0]}, {r[1]}')
                e(f'v_cvt_pk_bf16_f32 {oo[4 * hi + 2 + v]}, {r[2]}, {r[3]}')
        e(f'''buffer_store_dwordx4 {oo[0:4]}, {vL16}, s[4:7], s20 offen {st}
        buffer_store_dwordx4 {oo[4:8]}, {vL16}, s[4:7], s20 offen offset:1024 {st}
        s_add_u32 s20, s20, {7 * 2048}''')
    if TL_ON[0]:
        e(f's_lshl_b32 s98, s2, 6\ns_add_u32 s98, s98, {WS_TL}\nv_mov_b32 v255, 0\ns_waitcnt lgkmcnt(0)')
        for i in range(9):
            e(f'v_mov_b32 v254, s{60 + 2 * i}\nbuffer_store_dword v254, v255, s[4:7], s98 offen offset:{8 + 4 * i}')


H_LB = 32768
NRING = 7
H_LDS = H_LB + NRING * 16384


def gemm_half(p, mat, rA, rB, touch_next=None, tlslot=2, after_issue=None, mid=None):
    from team import VM
    e = p.e
    V = Alloc('v', 1, 244)
    vL, vG, vC, t0, t1, vL16 = (V.get() for _ in range(6))
    vD = [V.get(), V.get()]
    vE = [V.get(), V.get()]
    vRa = [V.get(), V.get()]
    vRb = [V.get(), V.get()]
    vT = [V.get() for _ in range(7)]
    dummy = V.get()
    Af = V.get(16, 4)
    Bf = V.get(56, 4)
    acc = V.get(56, 4)
    vm = VM(e)
    e(f"""v_and_b32 {vL}, 63, v0
    v_lshrrev_b32 {vG}, 4, {vL}
    v_and_b32 {vC}, 15, {vL}
    v_lshlrev_b32 {vL16}, 4, {vL}
    s_and_b32 s34, s9, 1
    s_lshr_b32 s35, s9, 1
    v_and_b32 {t0}, 7, {vL}
    v_xor_b32 {t0}, {t0}, {vG}
    v_lshlrev_b32 {t0}, 4, {t0}
    v_lshrrev_b32 {t1}, 3, {vL}
    v_lshl_add_u32 {vD[0]}, {t1}, 13, {t0}
    v_xor_b32 {vD[1]}, 64, {vD[0]}
    v_add_u32 {vD[1]}, {8 * 8192}, {vD[1]}
    v_lshrrev_b32 {t1}, 1, {vC}
    v_xor_b32 {t1}, {t1}, {vG}
    v_lshlrev_b32 {t1}, 4, {t1}
    v_lshl_add_u32 {t1}, {vC}, 7, {t1}
    s_lshl_b32 s20, s34, 13
    v_add_u32 {vRa[0]}, s20, {t1}
    v_xor_b32 {vRa[1]}, 64, {vRa[0]}
    s_lshl_b32 s20, s11, 19
    s_lshl_b32 s21, s9, 17
    s_add_u32 s20, s20, s21
    s_lshl_b32 s21, s10, 9
    s_add_u32 s20, s20, s21
    s_lshl_b32 s22, s9, 13""")

    def a_dma(kp):
        for pc in range(2):
            e(f's_add_u32 m0, s22, {kp * 2048 + pc * 1024 - kp * 128}')
            vm.issue(f'buffer_load_dwordx4 {vD[pc]}, {rA}, s20 offen offset:{kp * 128} lds', ('a', kp))
    if mat == 0:
        e(f"""v_lshrrev_b32 {t1}, 5, {vL}
        v_bfe_u32 {vE[0]}, {vL}, 3, 2
        v_lshl_add_u32 {t1}, {t1}, 3, {vE[0]}
        v_lshl_add_u32 {vE[0]}, {t1}, 13, {t0}
        s_lshl_b32 s23, s34, 6
        v_xor_b32 {vE[0]}, s23, {vE[0]}
        s_lshl_b32 s23, s34, 17
        v_add_u32 {vE[0]}, s23, {vE[0]}
        s_mul_i32 s23, s35, {7 * 8192}
        s_add_u32 s23, s23, {H_LB}
        v_and_b32 {t1}, 0x1fff, {vRa[0]}
        v_add_u32 {vRb[0]}, s23, {t1}
        v_xor_b32 {vRb[1]}, 64, {vRb[0]}
        s_lshl_b32 s31, s34, 10
        s_add_u32 s23, s23, s31""")
        for tt in range(7):
            e(f"""s_mul_i32 s31, s33, 14
            s_mul_i32 s32, s35, 7
            s_add_u32 s31, s31, s32
            s_add_u32 s31, s31, {tt}
            s_lshr_b32 s32, s31, 1
            s_lshl_b32 s32, s32, 18
            s_and_b32 s31, s31, 1
            s_lshl_b32 s31, s31, 15
            s_add_u32 s31, s31, s32
            s_add_u32 s{24 + tt}, s31, s21""")
        for kp in range(4):
            a_dma(kp)
            for tt in range(7):
                e(f's_add_u32 m0, s23, {tt * 8192 + kp * 2048 - kp * 128}')
                vm.issue(f'buffer_load_dwordx4 {vE[0]}, {rB}, s{24 + tt} offen offset:{kp * 128} lds', ('b', 2 * kp))
            vm.tag[('b', 2 * kp + 1)] = vm.tag[('b', 2 * kp)]
            if kp == 0 and after_issue:
                after_issue(vm.n)
        late = {}
    else:
        e(f"""v_lshrrev_b32 {t1}, 5, {vL}
        v_and_b32 {t0}, 31, {vL}
        v_xor_b32 {t0}, {t0}, {t1}
        s_lshl_b32 s23, s34, 3
        v_xor_b32 {t0}, s23, {t0}
        v_lshlrev_b32 {t0}, 4, {t0}
        v_mul_u32_u24 {t1}, 896, {t1}
        v_add_u32 {vE[0]}, {t0}, {t1}
        v_xor_b32 {t0}, 32, {t0}
        v_add_u32 {vE[1]}, {t0}, {t1}
        s_mul_i32 s24, s10, 229376
        s_mul_i32 s23, s33, 384
        s_add_u32 s24, s24, s23
        s_mul_i32 s23, s9, {8 * 896}
        s_add_u32 s24, s24, s23
        s_lshl_b32 s23, s9, 12
        s_add_u32 s23, s23, {H_LB}
        v_lshrrev_b32 {t0}, 2, {vC}
        v_lshl_add_u32 {t1}, {vG}, 3, {t0}
        v_lshlrev_b32 {vRb[0]}, 9, {t1}
        v_and_b32 {t1}, 11, {t1}
        v_and_b32 {t0}, 1, {vC}
        v_lshl_add_u32 {vRb[0]}, {t0}, 3, {vRb[0]}
        v_add_u32 {vRb[0]}, {H_LB}, {vRb[0]}
        v_and_b32 {t0}, 2, {vC}
        v_lshlrev_b32 {t0}, 1, {t0}""")
        for tt in range(7):
            e(f"""s_mul_i32 s31, s33, 14
            s_mul_i32 s32, s35, 7
            s_add_u32 s31, s31, s32
            s_add_u32 s31, s31, {tt}
            s_lshr_b32 s32, s31, 2
            s_lshl_b32 s32, s32, 3
            s_and_b32 s31, s31, 3
            s_add_u32 s31, s31, s32
            s_mul_i32 s32, s33, 24
            s_sub_u32 s31, s31, s32
            v_add_u32 {vT[tt]}, s31, {t0}
            v_xor_b32 {vT[tt]}, {vT[tt]}, {t1}
            v_lshl_add_u32 {vT[tt]}, {vT[tt]}, 4, {vRb[0]}""")

        def b_jobs(ks):
            o_ = []
            for pc in range(4):
                su = [f's_add_u32 m0, s23, {(ks % NRING) * 16384 + pc * 1024}',
                      f's_add_u32 s31, s24, {ks * 28672 + pc * 1792}']
                o_.append((su, f'buffer_load_dwordx4 {vE[pc & 1]}, {rB}, s31 offen lds', ('b', ks)))
            return o_
        for ks in range(NRING):
            if ks % 2 == 0:
                a_dma(ks // 2)
            for su, l, tg in b_jobs(ks):
                for x in su:
                    e(x)
                vm.issue(l, tg)
        late = {ks - NRING: b_jobs(ks) for ks in range(NRING, 8)}
    def reads(ks):
        b = ks & 1
        o_ = []
        if mat == 1 and ks in (3, 6, 7):
            dlt = {3: 3 * 16384, 6: 3 * 16384, 7: -6 * 16384}[ks]
            for tt in range(7):
                o_.append(f'{"v_subrev_u32" if dlt < 0 else "v_add_u32"} {vT[tt]}, {abs(dlt)}, {vT[tt]}')
        for v in range(2):
            o_.append(f'ds_read_b128 {Af[8 * b + 4 * v:8 * b + 4 * v + 4]}, {vRa[ks & 1]} offset:{v * 16384 + (ks >> 1) * 2048}')
        for tt in range(7):
            d = Bf[28 * b + 4 * tt:28 * b + 4 * tt + 4]
            if mat == 0:
                o_.append(f'ds_read_b128 {d}, {vRb[ks & 1]} offset:{tt * 8192 + (ks >> 1) * 2048}')
            else:
                off = (ks % 3 if ks < 6 else 0) * 16384
                o_.append(f'ds_read_b64_tr_b16 {d[0:2]}, {vT[tt]} offset:{off}')
                o_.append(f'ds_read_b64_tr_b16 {d[2:4]}, {vT[tt]} offset:{off + 2048}')
        return o_
    vm.wait(('b', 0))
    e('s_barrier')
    for l in reads(0):
        e(l)
    for ks in range(8):
        side = []
        sync = ks < 7 and (mat == 1 or ks % 2 == 1)
        if sync:
            vm.wait(('b', ks + 1))
        e('s_waitcnt lgkmcnt(0)')
        if sync:
            e('s_barrier')
        if ks < 7:
            side = reads(ks + 1)
        if TL_ON[0] and ks == 0:
            e(f's_memrealtime s[{60 + 2 * tlslot}:{61 + 2 * tlslot}]')
        for su, l, tg in late.get(ks, []):
            for x in su:
                e(x)
            vm.issue(l, tg)
        if touch_next and ks == 0:
            for x in touch_next(t0, t1, vL):
                e(x)
            vm.issue(f'buffer_load_dword {dummy}, {t0}, {touch_next.rA}, s31 offen')
            vm.issue(f'buffer_load_dword {dummy}, {t0}, {touch_next.rB}, s31 offen')
        if mid and ks == 1:
            vm.issue(mid)
        b = ks & 1
        for tt in range(7):
            for v in range(2):
                d = acc[8 * tt + 4 * v:8 * tt + 4 * v + 4]
                e(f'v_mfma_f32_16x16x32_bf16 {d}, {Af[8 * b + 4 * v:8 * b + 4 * v + 4]}, '
                  f'{Bf[28 * b + 4 * tt:28 * b + 4 * tt + 4]}, {0 if ks == 0 else d}')
                for _ in range(2):
                    if side:
                        e(side.pop(0))
        assert not side
    if TL_ON[0]:
        e(f's_memrealtime s[{62 + 2 * tlslot}:{63 + 2 * tlslot}]')
    e(f"""s_barrier
    s_mul_i32 s20, s10, 28
    s_mul_i32 s21, s33, 14
    s_add_u32 s20, s20, s21
    s_mul_i32 s21, s35, 7
    s_add_u32 s20, s20, s21
    s_mul_i32 s20, s20, 7
    s_add_u32 s20, s20, s11
    s_lshl_b32 s20, s20, 11
    s_lshl_b32 s21, s34, 10
    s_add_u32 s20, s20, s21
    s_add_u32 s20, s20, {WS_WQK if mat == 0 else WS_WVO}
    s_mov_b32 s21, {LOG2E_16}""")
    for tt in range(7):
        a = acc[8 * tt:8 * tt + 8]
        if mat == 0:
            for i in range(8):
                e(f'v_mul_f32 {a[i]}, s21, {a[i]}')
        oo = Bf[4 * tt:4 * tt + 4]
        for v in range(2):
            e(f'v_cvt_pk_bf16_f32 {oo[v]}, {a[4 * v]}, {a[4 * v + 1]}')
            e(f'v_cvt_pk_bf16_f32 {oo[2 + v]}, {a[4 * v + 2]}, {a[4 * v + 3]}')
        e(f"""buffer_store_dwordx4 {oo}, {vL16}, s[4:7], s20 offen sc1
        s_add_u32 s20, s20, {7 * 2048}""")


def ln_job(p, st='', mid=None):
    e = p.e
    V = Alloc('v', 1, 244)
    vL, vG, vC, t0, t1, vL16, vO, mean, rs = (V.get() for _ in range(9))
    X = V.get(56, 4)
    Fv = V.get(112, 4)
    Bq = V.get(64, 4)
    e(f'''v_and_b32 {vL}, 63, v0
    v_lshrrev_b32 {vG}, 4, {vL}
    v_and_b32 {vC}, 15, {vL}
    v_lshlrev_b32 {vL16}, 4, {vL}
    v_mul_u32_u24 {vO}, 896, {vC}
    v_lshl_add_u32 {vO}, {vG}, 4, {vO}
    s_mul_i32 s20, s10, {16 * 896}''')
    for th in range(14):
        e(f'buffer_load_dwordx4 {X[4 * th:4 * th + 4]}, {vO}, s[48:51], s20 offen offset:{64 * th}')
    e(f'''v_mov_b32 {t0}, 0
    v_mov_b32 {t1}, 0''')
    for th in range(14):
        e(f's_waitcnt vmcnt({13 - th})')
        for d in range(4):
            i = 4 * th + d
            e(f'''v_lshlrev_b32 {Fv[2 * i]}, 16, {X[i]}
            v_and_b32 {Fv[2 * i + 1]}, 0xffff0000, {X[i]}
            v_add_f32 {t0}, {t0}, {Fv[2 * i]}
            v_add_f32 {t1}, {t1}, {Fv[2 * i + 1]}''')

    if mid is not None:
        e(mid[1])

    def allred(x, y):
        e(f'''v_mov_b32 {y}, {x}
        v_permlane16_swap_b32 {x}, {y}
        v_add_f32 {x}, {x}, {y}
        v_mov_b32 {y}, {x}
        v_permlane32_swap_b32 {x}, {y}
        v_add_f32 {x}, {x}, {y}''')
    inv = struct.unpack('<I', struct.pack('<f', 1.0 / 448))[0]
    eps = struct.unpack('<I', struct.pack('<f', 1e-5))[0]
    e(f'v_add_f32 {t0}, {t0}, {t1}')
    allred(t0, t1)
    e(f'''v_mul_f32 {mean}, {inv}, {t0}
    v_mov_b32 {t0}, 0
    v_mov_b32 {rs}, 0''')
    for i in range(0, 112, 2):
        e(f'''v_sub_f32 {t1}, {Fv[i]}, {mean}
        v_sub_f32 {vO}, {Fv[i + 1]}, {mean}
        v_fmac_f32 {t0}, {t1}, {t1}
        v_fmac_f32 {rs}, {vO}, {vO}''')
    e(f'v_add_f32 {t0}, {t0}, {rs}')
    allred(t0, t1)

    def rnd(x):
        e(f'''v_cvt_pk_bf16_f32 {x}, {x}, {x}
        v_and_b32 {x}, 0xffff0000, {x}''')
    e(f'v_mul_f32 {t0}, {inv}, {t0}')
    rnd(t0)
    e(f'v_add_f32 {t0}, {eps}, {t0}')
    rnd(t0)
    e(f'v_sqrt_f32 {t0}, {t0}')
    rnd(t0)
    e(f'v_rcp_f32 {rs}, {t0}')
    rnd(mean)
    for i in range(56):
        a, b = Fv[2 * i], Fv[2 * i + 1]
        e(f'''v_sub_f32 {a}, {a}, {mean}
        v_sub_f32 {b}, {b}, {mean}
        v_cvt_pk_bf16_f32 {X[i]}, {a}, {b}
        v_lshlrev_b32 {a}, 16, {X[i]}
        v_and_b32 {b}, 0xffff0000, {X[i]}
        v_mul_f32 {a}, {a}, {rs}
        v_mul_f32 {b}, {b}, {rs}
        v_cvt_pk_bf16_f32 {X[i]}, {a}, {b}''')
    e(f'''s_lshl_b32 s20, s10, 14
    s_add_u32 s20, s20, {WS_XNA}''')
    for th in range(14):
        if th and th % 4 == 0:
            e('s_add_u32 s20, s20, 4096')
        e(f'buffer_store_dwordx4 {X[4 * th:4 * th + 4]}, {vL16}, s[4:7], s20 offen offset:{(th & 3) * 1024} {st}')
    for k in range(7):
        for v in range(2):
            x = X[4 * (2 * k + v):4 * (2 * k + v) + 4]
            for d in range(4):
                e(f'v_mov_b32 {Bq[8 * k + 4 * (d >> 1) + 2 * (d & 1) + v]}, {x[d]}')
        for q in range(4):
            e(f'v_permlane16_swap_b32 {Bq[8 * k + q]}, {Bq[8 * k + 4 + q]}')
        for q in range(4):
            e(f'v_permlane32_swap_b32 {Bq[8 * k + q]}, {Bq[8 * k + 4 + q]}')
    e(f'''v_and_b32 {t0}, 1, {vG}
    v_cmp_eq_u32 vcc, 0, {t0}''')
    for q in range(8):
        src = Bq[8 * (4 + (q & 1)) + q]
        e(f'v_cndmask_b32 {Bq[56 + q]}, {Bq[48 + q]}, {src}, vcc')
    e(f'''s_lshr_b32 s20, s10, 1
    s_lshl_b32 s20, s20, 15
    s_and_b32 s21, s10, 1
    s_lshl_b32 s21, s21, 11
    s_add_u32 s20, s20, s21
    s_add_u32 s20, s20, {WS_XNB}''')
    for k in range(8):
        blk = xnb_blk(k) if k < 7 else 7
        e(f'''s_add_u32 s21, s20, {blk * 4096}
        buffer_store_dwordx4 {Bq[8 * k:8 * k + 4]}, {vL16}, s[4:7], s21 offen {st}
        buffer_store_dwordx4 {Bq[8 * k + 4:8 * k + 8]}, {vL16}, s[4:7], s21 offen offset:1024 {st}''')


def prep_kernel(p, name):
    e = p.e
    e(f'{name}:')
    e('''s_cmp_ge_u32 s2, 256
    s_cbranch_scc1 PREP_EXIT
    v_lshrrev_b32 v1, 6, v0
    v_readfirstlane_b32 s9, v1
    s_and_b32 s3, s2, 7
    s_lshr_b32 s8, s2, 3''')
    srd(e, 4, 112, WS_BYTES)
    e('''s_cmp_ge_u32 s8, 28
    s_cbranch_scc1 PREP_LN
    s_mul_i32 s20, s8, 37
    s_lshr_b32 s20, s20, 8        ; q/7
    s_mul_i32 s21, s20, 7
    s_sub_u32 s11, s8, s21        ; chunk
    s_lshl_b32 s3, s3, 2
    s_add_u32 s20, s20, s3
    s_lshr_b32 s10, s20, 1
    s_bitcmp1_b32 s20, 0
    s_cbranch_scc1 PREP_VO''')
    srd(e, 12, 16, 448 * 8192)
    srd(e, 16, 24, 448 * 8192)
    e('s_waitcnt lgkmcnt(0)')
    tl(p, 0, 's2', WS_TL)
    gemm_job(p, 0)
    e('s_waitcnt vmcnt(0)')
    tl(p, 1, 's2', WS_TL)
    e('s_endpgm\nPREP_VO:')
    srd(e, 12, 32, 448 * 8192)
    srd(e, 16, 40, 448 * 8192)
    e('s_waitcnt lgkmcnt(0)')
    tl(p, 0, 's2', WS_TL)
    gemm_job(p, 1)
    e('s_waitcnt vmcnt(0)')
    tl(p, 1, 's2', WS_TL)
    e('s_endpgm\nPREP_LN:')
    srd(e, 12, 0, S * D * 2)
    e(f'''s_sub_u32 s10, s2, 224
    s_lshl_b32 s10, s10, 2
    s_add_u32 s10, s10, s9
    s_waitcnt lgkmcnt(0)
    v_and_b32 v1, 63, v0
    v_lshlrev_b32 v1, 2, v1
    v_mov_b32 v2, 0
    s_lshl_b32 s20, s10, 8
    s_add_u32 s20, s20, {WS_CNT}
    buffer_store_dword v2, v1, s[4:7], s20 offen''')
    tl(p, 0, 's2', WS_TL)
    ln_job(p)
    e('s_waitcnt vmcnt(0)')
    tl(p, 1, 's2', WS_TL)
    e('PREP_EXIT:\ns_endpgm')


KD = '''.section .rodata,"a"
.p2align 6
.amdhsa_kernel %s
  .amdhsa_next_free_vgpr %d
  .amdhsa_next_free_sgpr 102
  .amdhsa_accum_offset 256
  .amdhsa_group_segment_fixed_size 0
  .amdhsa_kernarg_size 120
  .amdhsa_user_sgpr_count 2
  .amdhsa_user_sgpr_kernarg_segment_ptr 1
  .amdhsa_system_sgpr_workgroup_id_x 1
.end_amdhsa_kernel
'''

if __name__ == '__main__':
    import sys
    p = Prog()
    prep_kernel(p, 'prep_kernel')
    txt = '; @launch grid=(256,1,1) block=(256,1,1) lds=%d\n.amdgcn_target "amdgcn-amd-amdhsa--gfx950"\n.text\n.globl prep_kernel\n.p2align 8\n.type prep_kernel,@function\n' % P_LDS
    open(sys.argv[1], 'w').write(txt + p.text() + KD % ('prep_kernel', 256))
```

```python
from asmlib import *
from layout import *

sWS = 's[4:7]'
sIDX, sWAVE, sSTEP = 's8', 's9', 's10'
sH = 's11'
sDBG = 's[12:15]'
sM0D = 's[16:19]'
sJ = 's24'
sMEM, sMEM2 = 's26', 's27'
sP, sPRST = 's28', 's29'
sMEMW, sMEMRST = 's32', 's33'
sT0, sT1, sT2, sT3 = 's34', 's35', 's36', 's37'
sTO = 's38'
sSTEP1 = 's39'
sYX = 's40'
sDA = 's41'
sFLG = 's43'
sTIME = 's[44:45]'
sTIME2 = 's[46:47]'
sV0 = 's[48:49]'
sCHK = 's[50:51]'
sXS, sXS2 = 's52', 's53'
sYXS, sYXS2 = 's64', 's65'
sYQ = ['s64', 's65', 's54', 's55']
sPQ = ['s20', 's21', 's22', 's23']
sRO = ['s56', 's57', 's58', 's59']
sSLOW = 's66'
sCNT = ['s68', 's69', 's70', 's71']
NSTAMP = 12
STAMP0 = 72

L_W = 0
L_SP = 4 * 14336
L_DUMP = L_SP + 4 * 1296
L_YM = 10 * 14336
L_TB = L_YM + 8192
L_END = L_TB + 64
NF2 = 14
OOB = 0x40000000
TIMEOUT = 200000
FLAG_STRIDE = 640
FLAG2_OFF = 4096 + 128
NREP = [4, 8]


class Cfg:
    stamps = 0
    dual = 1
    alone = 0
    diag = 1
    nsteps = 63
    fake = 0
    delay = 0
    vdelay = 0
    flagpos = 7
    pdelay = 0
    f2pos = 2
    nsc = 2
    gap = 14
    pdepth = 5
    pspace = 9
    vdepth = 3
    fz1 = 4
    fz2 = 6
    qtouch = 0
    vah = 4
    wtlb = 1
    gostep = 2
    qah = 4
    xsall = 1
    rot = 1
    qpace = 2
    chk = 2
    standin = 1
    nowait = 1
    nrep1 = 4
    nrep2 = 4
    qdepth = 4
    qstart = 0
    vstart = 64
    ppace = 0
    prio = 0
    bpos = 9
    vchk = 1
    selfpoll = 1
    nyx = 8
    tlb = 1
    xsb = 1
    pf = 3


def stamp(p, cfg, i):
    if cfg.stamps:
        p.e(f's_memtime s[{STAMP0 + 2 * i}:{STAMP0 + 2 * i + 1}]')


def nops(e, n):
    while n > 0:
        k = min(n, 16)
        e(f's_nop {k - 1}')
        n -= k


class VM:
    def __init__(self, e, cnt='vmcnt'):
        self.e, self.n, self.tag, self.cnt = e, 0, {}, cnt

    def issue(self, text, tag=None):
        self.e(text)
        self.n += 1
        if tag is not None:
            self.tag[tag] = self.n

    def wait(self, tag):
        self.e(f's_waitcnt {self.cnt}({self.n - self.tag[tag]})')


def team_barrier(p, w, vt):
    e = p.e
    e('s_waitcnt vmcnt(0) lgkmcnt(0)\ns_barrier')
    lp, done = p.label('TB'), p.label('TBD')
    e(f's_mov_b32 {sT0}, {WS_CNT + C_TB}')
    if w == 0:
        tl(p, 1, 's100', WS_TL + 16384)
        e(f"""v_lshlrev_b32 {vt[0]}, 7, v0
        s_lshl_b32 {sT1}, {sIDX}, 2
        v_add_u32 {vt[0]}, {sT1}, {vt[0]}
        v_mov_b32 {vt[1]}, {OOB}
        v_cmp_gt_u32 vcc, 4, v0
        v_cndmask_b32 {vt[0]}, {vt[1]}, {vt[0]}, vcc
        s_add_u32 {sT1}, {sSLOW}, 1
        v_mov_b32 {vt[1]}, {sT1}
        buffer_store_dword {vt[1]}, {vt[0]}, {sWS}, {sT0} offen sc1""")
        e(f"""v_and_b32 {vt[0]}, 31, v0
        v_lshlrev_b32 {vt[0]}, 2, {vt[0]}
        s_and_b32 {sT1}, {sIDX}, 3
        s_lshl_b32 {sT1}, {sT1}, 7
        s_add_u32 {sT0}, {sT0}, {sT1}
        {lp}:
        buffer_load_dword {vt[2]}, {vt[0]}, {sWS}, {sT0} offen sc1
        s_sub_u32 {sTO}, {sTO}, 1
        s_cmp_gt_i32 {sTO}, 0
        s_cbranch_scc0 {done}
        s_waitcnt vmcnt(0)
        v_cmp_eq_u32 vcc, 0, {vt[2]}
        s_cbranch_vccnz {lp}
        {done}:
        v_cmp_lt_u32 vcc, 1, {vt[2]}
        s_or_b32 {sSLOW}, vcc_lo, vcc_hi
        v_mov_b32 {vt[1]}, {sSLOW}
        v_mov_b32 {vt[0]}, {L_TB}
        ds_write_b32 {vt[0]}, {vt[1]}
        s_waitcnt lgkmcnt(0)""")
    e(f"""s_barrier
    v_mov_b32 {vt[0]}, {L_TB}
    ds_read_b32 {vt[1]}, {vt[0]}
    s_waitcnt lgkmcnt(0)
    v_readfirstlane_b32 {sSLOW}, {vt[1]}""")
    if w == 0:
        tl(p, 2, 's100', WS_TL + 16384)


def epilogue(p, w, cfg, vt):
    e = p.e
    if w == 0:
        tl(p, 3, 's100', WS_TL + 16384)
    if not cfg.diag:
        e('s_endpgm')
        return
    e(f"""s_memtime {sTIME2}
    s_waitcnt lgkmcnt(0) vmcnt(0)
    s_sub_u32 s46, s46, s44
    s_lshl_b32 {sT0}, {sIDX}, 2
    s_add_u32 {sT0}, {sT0}, {w}
    s_lshl_b32 {sT0}, {sT0}, 7
    s_add_u32 {sT0}, {sT0}, {WS_STAMP}
    v_mov_b32 {vt[0]}, 0
    v_mov_b32 {vt[1]}, s46
    buffer_store_dword {vt[1]}, {vt[0]}, {sWS}, {sT0} offen
    v_mov_b32 {vt[1]}, {sTO}
    buffer_store_dword {vt[1]}, {vt[0]}, {sWS}, {sT0} offen offset:4""")
    for i in range(NSTAMP):
        e(f"""v_mov_b32 {vt[1]}, s{STAMP0 + 2 * i}
        buffer_store_dword {vt[1]}, {vt[0]}, {sWS}, {sT0} offen offset:{64 + 4 * i}""")
    for i, c in enumerate(sCNT):
        e(f"""v_mov_b32 {vt[1]}, {c}
        buffer_store_dword {vt[1]}, {vt[0]}, {sWS}, {sT0} offen offset:{40 + 4 * i}""")
    if cfg.stamps:
        e(f's_mov_b32 {sT3}, 0')
        for i in range(24):
            e(f"""s_memrealtime s[44:45]
            s_memtime s[46:47]
            s_waitcnt lgkmcnt(0)
            s_mul_i32 s44, s44, 24
            s_sub_u32 s46, s46, s44""")
            if i == 0:
                e(f's_mov_b32 {sT2}, s46')
            e(f"""s_sub_u32 s46, s46, {sT2}
            s_min_i32 {sT3}, {sT3}, s46
            s_nop {i % 5}""")
        e(f"""s_add_u32 {sT2}, {sT2}, {sT3}
        v_mov_b32 {vt[1]}, {sT2}
        buffer_store_dword {vt[1]}, {vt[0]}, {sWS}, {sT0} offen offset:8""")
    e('s_endpgm')


def flag_store_off(e, dst, vLane, tmp, idx_sgpr, base):
    e(f'''v_mul_u32_u24 {dst}, {FLAG_STRIDE}, {vLane}
    s_lshl_b32 {sT1}, {idx_sgpr}, 2
    s_add_u32 {sT1}, {sT1}, {base}
    v_add_u32 {dst}, {sT1}, {dst}
    v_mov_b32 {tmp}, {OOB}
    v_cmp_gt_u32 vcc, {NREP[1 if base else 0]}, {vLane}
    v_cndmask_b32 {dst}, {tmp}, {dst}, vcc''')


def flag_poll_off(e, dst, vLane, base, last):
    e(f'''s_and_b32 {sT1}, {sIDX}, {NREP[1 if base else 0] - 1}
    s_mul_i32 {sT1}, {sT1}, {FLAG_STRIDE}
    s_add_u32 {sT1}, {sT1}, {base}
    v_min_u32 {dst}, {last}, {vLane}
    v_lshlrev_b32 {dst}, 2, {dst}
    v_add_u32 {dst}, {sT1}, {dst}''')


def engine_wave(p, w, cfg):
    e = p.e
    V = Alloc('v', 0, 64)
    vLane = V.get()
    vt = [V.get() for _ in range(5)]
    vL16, vL128, vFo, vFs, vD, vF = V.get(), V.get(), V.get(), V.get(), V.get(), V.get()
    mreg = V.get(8, 4)
    e(f'''v_and_b32 {vLane}, 63, v0
    v_lshlrev_b32 {vL16}, 4, {vLane}
    v_lshlrev_b32 {vL128}, 7, {vLane}
    s_mov_b32 {sFLG}, {WS_FLAGS}
    s_mov_b32 {sSTEP}, 0
    s_mov_b32 {sTO}, {TIMEOUT}''')
    for c in sCNT:
        e(f's_mov_b32 {c}, 0')
    flag_poll_off(e, vFo, vLane, FLAG2_OFF, NF2 - 1)
    e(f's_mov_b32 {sT2}, {NF2}')
    flag_store_off(e, vFs, vLane, vt[4], sT2, FLAG2_OFF)
    vL4, vOne = V.get(), V.get()
    sG, sCN = 's20', 's21'
    e(f"""v_lshlrev_b32 {vL4}, 2, {vLane}
    v_mov_b32 {vOne}, 1
    s_mov_b32 {sCN}, {WS_CNT}
    s_mov_b32 {sG}, {1000 if cfg.alone else -1}""")
    tail = []

    def gate(need, first):
        GL, GD = p.label('GL'), p.label('GD')
        if not first:
            e(f"""s_cmp_ge_i32 {sG}, 63
            s_cbranch_scc1 {GD}""")
        e(f'{GL}:')
        if not cfg.alone:
            e(f"""buffer_load_dword {vF}, {vL4}, {sWS}, {sCN} offen offset:{C_YX} sc1
            s_waitcnt vmcnt(0)
            v_cmp_gt_u32 vcc, 16, {vF}
            s_ff1_i32_b64 {sG}, vcc
            s_cmp_lt_i32 {sG}, 0
            s_cselect_b32 {sG}, 64, {sG}
            s_sub_u32 {sG}, {sG}, 1""")
        e(f"""s_max_i32 {sT1}, {sG}, 0
        v_mov_b32 {vt[0]}, {sT1}
        buffer_store_dword {vt[0]}, {vFs}, {sWS}, {sFLG} offen {'sc1' if first else ''}""")
        if not first:
            sl, bk = p.label('SL'), p.label('SB')
            e(f"""s_cmp_lg_u32 {sSLOW}, 0
            s_cbranch_scc1 {sl}
            {bk}:""")
            tail.extend([f'{sl}:', f'buffer_store_dword {vt[0]}, {vFs}, {sWS}, {sFLG} offen sc1', f's_branch {bk}'])
        e(f"""s_sub_u32 {sTO}, {sTO}, 1
        s_cmp_gt_i32 {sTO}, 0
        s_cbranch_scc0 {GD}
        s_cmp_lt_i32 {sG}, {need}
        s_cbranch_scc1 {GL}
        {GD}:""")
    if w == 1:
        sk = p.label('SK')
        e(f"""s_cmp_lg_u32 {sH}, 14
        s_cbranch_scc1 {sk}""")
        gate(0, True)
        e(f'{sk}:')
    for i in range(cfg.pf):
        e(f"""s_mov_b32 {sT1}, {WS_XNB + i * 32768 + w * 8192}
        buffer_load_dword {vD}, {vL128}, {sWS}, {sT1} offen sc1""")
    team_barrier(p, w, vt)
    if cfg.diag:
        e(f's_memtime {sTIME}')
    e(f'''s_sub_u32 {sT2}, {sH}, 14
    s_lshl_b32 {sT2}, {sT2}, 15
    s_add_u32 {sT1}, {sT2}, {WS_MEMR + w * 8192}
    buffer_load_dword {vD}, {vL128}, {sWS}, {sT1} offen sc1
    s_add_u32 {sT1}, {sT2}, {WS_PR + w * 8192}
    buffer_load_dword {vD}, {vL128}, {sWS}, {sT1} offen sc1''')
    LOOP, END, PL, GO, E1, AR, NX = (p.label(x) for x in ('LOOP', 'END', 'PL', 'GO', 'E1', 'AR', 'NX'))
    nq = 16 * cfg.qtouch
    rest = list(range(nq, 56)) if cfg.qtouch else ([u for u in range(28, 56) if u & 1] + [u for u in range(28) if u & 1])[:cfg.nyx]
    n1 = min(len(rest), (len(rest) + 7 + 1) // 2)
    u1, u0 = rest[:n1], rest[n1:]
    clampn = lambda d, s_: f's_and_b32 {d}, {s_}, 1' if cfg.fake else f's_min_u32 {d}, {s_}, 63'
    e(f'''{LOOP}:
    s_add_u32 {sT3}, {sSTEP}, {cfg.pf}
    {clampn(sT3, sT3)}
    s_mul_i32 {sYXS}, {sT3}, {28 * 16384}
    s_add_u32 {sYXS}, {sYXS}, {WS_YX}
    s_lshl_b32 {sXS}, {sT3}, 15
    s_add_u32 {sXS}, {sXS}, {WS_XNB + w * 8192}
    s_lshl_b32 {sMEM}, {sSTEP}, 13
    s_add_u32 {sMEMW}, {sMEM}, {WS_MEMA + w * 2048}
    s_add_u32 {sMEM}, {sMEM}, {WS_MEMR + w * 2048}
    s_cmp_lg_u32 {sH}, 14
    s_cbranch_scc1 {E1}''')
    nch = 2 if w < 3 else 1
    e(f'{AR}:')
    for i in range(nch):
        e(f'buffer_load_dwordx4 {mreg[4 * i:4 * i + 4]}, {vL16}, {sWS}, {sMEM} offen offset:{1024 * i} sc1')
    e(f'''s_sub_u32 {sTO}, {sTO}, 1
    s_cmp_gt_i32 {sTO}, 0
    s_cbranch_scc0 {END}
    s_waitcnt vmcnt(0)
    v_max3_u32 {vt[0]}, {mreg[0]}, {mreg[1]}, {mreg[2]}
    v_max_u32 {vt[0]}, {vt[0]}, {mreg[3]}''')
    if nch == 2:
        e(f'''v_max3_u32 {vt[0]}, {vt[0]}, {mreg[4]}, {mreg[5]}
        v_max3_u32 {vt[0]}, {vt[0]}, {mreg[6]}, {mreg[7]}''')
    e(f'''v_cmp_eq_u32 vcc, -1, {vt[0]}
    s_cbranch_vccnz {AR}''')
    for i in range(nch):
        e(f'buffer_store_dwordx4 {mreg[4 * i:4 * i + 4]}, {vL16}, {sWS}, {sMEMW} offen offset:{1024 * i} sc1')
    if w == 2:
        gs = p.label('GS')
        e(f"""s_cmp_lg_u32 {sSTEP}, {cfg.gostep}
        s_cbranch_scc1 {gs}
        v_mov_b32 {vt[1]}, {OOB}
        v_cmp_gt_u32 vcc, 8, {vLane}
        v_cndmask_b32 {vt[1]}, {vt[1]}, {vL128}, vcc
        s_add_u32 {sT1}, {sCN}, {C_GO}
        buffer_store_dword {vOne}, {vt[1]}, {sWS}, {sT1} offen sc1
        {gs}:""")
    e(f"""s_cmp_ge_u32 {sSTEP}, {cfg.nsteps - 1}
    s_cbranch_scc1 {END}""")
    if w == 1:
        e(f's_add_u32 {sT2}, {sSTEP}, 1')
        e(f's_min_u32 {sT2}, {sT2}, 63')
        gate(sT2, False)
    e(f'''s_branch {NX}
    {E1}:
    s_cmp_ge_u32 {sSTEP}, {cfg.nsteps - cfg.pf}
    s_cbranch_scc1 {END}''')
    if w == 0:
        e(f'''s_add_u32 {sDA}, {sMEM}, {5 * 8192}
        buffer_load_dword {vD}, {vL128}, {sWS}, {sDA} offen sc1''')
    e(f'buffer_load_dword {vD}, {vL128}, {sWS}, {sXS} offen sc1')
    for u in rest[(3 - w)::4]:
        e(f'''s_add_u32 {sDA}, {sYXS}, {u * 8192}
        buffer_load_dword {vD}, {vL128}, {sWS}, {sDA} offen sc1''')
    e(f'''{NX}:
    s_add_u32 {sSTEP}, {sSTEP}, 1''')
    if w == 0:
        e(f'''{PL}:
        buffer_load_dword {vF}, {vFo}, {sWS}, {sFLG} offen sc1
        s_sub_u32 {sTO}, {sTO}, 1
        s_cmp_gt_i32 {sTO}, 0
        s_cbranch_scc0 {GO}
        s_waitcnt vmcnt(0)
        v_cmp_gt_u32 vcc, {sSTEP}, {vF}
        s_cbranch_vccnz {PL}
        {GO}:''')
    e(f'''s_barrier
    s_branch {LOOP}
    {END}:''')
    epilogue(p, w, cfg, vt)
    for l in tail:
        e(l)


def team_wave(p, role, w, cfg):
    NREP[0], NREP[1] = cfg.nrep1, cfg.nrep2
    if role == 2:
        return engine_wave(p, w, cfg)
    qk = role == 0
    NT = 7 if qk else 8
    NR = 5 if qk else 6
    AH = cfg.qah if qk else cfg.vah
    fin = not qk and w < 2
    slots = (QK_SLOTS if qk else VO_SLOTS)[w]
    V = Alloc('v', 0, 254)
    A = Alloc('a', 0, 256)
    vLane = V.get()
    vG, vC = V.get(), V.get()
    vt = [V.get() for _ in range(5)]
    vIdx, vL16, vStep, vFo, vFs, vNeg1, vWL = (V.get() for _ in range(7))
    lds_tiles = [4] if qk else ([3, 4, 5] if fin else [4, 5])
    memA = V.get(28, 4)
    stg = V.get(16 * len(lds_tiles), 4)
    assert stg.base == memA.base + 28
    Tacc = V.get(4 * NT, 4)
    wl0 = L_W + (w if qk else [0, 3, 6, 8][w]) * 14336
    lds_rel = {t: i * 14336 for i, t in enumerate(lds_tiles)}
    if qk:
        Did = V.get(8, 4)
        AS = V.get(8, 4)
        xsB = V.get(32, 4)
        Alast = V.get(4, 4)
        Sx = V.get(8, 4)
        Sm = V.get(4, 4)
        Idn = V.get(4, 4)
        vSW, vSW2, vSR, vPo, vL128, vSZ = (V.get() for _ in range(6))
        if w == 3:
            Mx = V.get(4, 4)
        Fp = [Did[i] for i in range(8)]
        toucher = w >= 4 - cfg.qtouch
    else:
        Ym = V.get(8, 4)
        vYW = V.get()
        Fp = [memA[20 + i] for i in range(8)]
        if fin:
            YX = V.get(64, 4)
            vMo, vMr = V.get(), V.get()
            Afin = R('v', memA.base, 40)
            BM = stg[16:32]
            Facc = stg[32:36]
            Bfin = [BM[0:8], BM[8:16]] + [YX[8 * i:8 * i + 8] for i in range(8)]
    poller = (qk and w == 0) or (not qk and w >= 2)
    frag = {}
    for t in range(NT):
        if t in lds_tiles:
            continue
        for k in range(7):
            frag[(t, k)] = A.get(8, 4) if A.left() >= 8 else V.get(8, 4)
    e = p.e

    e(f'''v_and_b32 {vLane}, 63, v0
    v_lshrrev_b32 {vG}, 4, {vLane}
    v_and_b32 {vC}, 15, {vLane}
    v_lshlrev_b32 {vL16}, 4, {vLane}
    v_add_u32 {vWL}, {wl0}, {vL16}
    v_bfe_u32 {vt[0]}, {vC}, 1, 1          ; v(c)
    v_lshrrev_b32 {vt[1]}, 2, {vC}
    v_lshlrev_b32 {vt[1]}, 1, {vt[1]}
    v_and_b32 {vt[2]}, 1, {vC}
    v_add_u32 {vt[1]}, {vt[1]}, {vt[2]}    ; m(c)
    v_mul_u32_u24 {vIdx}, 0xaaaa, {vt[0]}
    v_add_u32 {vIdx}, 0x4444, {vIdx}
    v_mov_b32 {vNeg1}, -1
    s_mov_b32 {sFLG}, {WS_FLAGS}''')
    if qk:
        e(f'''v_lshlrev_b32 {vL128}, 7, {vLane}
        v_lshrrev_b32 {vt[2]}, 2, {vC}
        v_and_b32 {vt[3]}, 1, {vC}
        v_lshlrev_b32 {vt[3]}, 4, {vt[3]}
        v_mov_b32 {vt[4]}, 0x3f80
        v_lshlrev_b32 {vt[3]}, {vt[3]}, {vt[4]}
        v_cmp_eq_u32 vcc, {vt[2]}, {vG}
        v_cndmask_b32 {vt[3]}, 0, {vt[3]}, vcc
        v_cmp_eq_u32 vcc, 0, {vt[0]}
        v_cndmask_b32 {Idn[0]}, 0, {vt[3]}, vcc
        v_cndmask_b32 {Idn[1]}, 0, {vt[3]}, vcc
        v_cndmask_b32 {Idn[2]}, {vt[3]}, 0, vcc
        v_cndmask_b32 {Idn[3]}, {vt[3]}, 0, vcc
        s_mov_b64 {sV0}, vcc
        v_mul_u32_u24 {vt[2]}, 320, {vG}
        v_add_u32 {vt[2]}, {L_SP + w * 1296}, {vt[2]}
        v_and_b32 {vt[3]}, 12, {vC}
        v_add_u32 {vt[3]}, {vt[3]}, {vC}
        v_lshl_add_u32 {vSW}, {vt[3]}, 2, {vt[2]}
        v_lshl_add_u32 {vt[2]}, {vt[1]}, 2, {vt[2]}
        v_add_u32 {vt[2]}, 128, {vt[2]}
        v_lshlrev_b32 {vt[3]}, 2, {vC}
        v_add_u32 {vt[3]}, {L_DUMP}, {vt[3]}
        v_cndmask_b32 {vSW2}, {vt[3]}, {vt[2]}, vcc
        v_lshrrev_b32 {vt[0]}, 5, {vLane}
        v_and_b32 {vt[1]}, 31, {vLane}
        v_mul_u32_u24 {vt[2]}, 160, {vt[0]}
        v_lshl_add_u32 {vt[2]}, {vt[1]}, 3, {vt[2]}
        v_add_u32 {vt[2]}, {L_SP + 2 * w * 160}, {vt[2]}
        v_mov_b32 {vt[3]}, {L_SP + 1280}
        v_cmp_gt_u32 vcc, 20, {vt[1]}
        v_cndmask_b32 {vSR}, {vt[3]}, {vt[2]}, vcc
        v_mov_b32 {vt[3]}, {L_SP + 1288}
        v_cndmask_b32 {vSZ}, {vt[3]}, {vt[2]}, vcc
        v_and_b32 {vt[2]}, 1, {vt[1]}
        v_lshl_add_u32 {vt[2]}, {vt[2]}, 1, {vt[0]}
        v_lshlrev_b32 {vt[2]}, 4, {vt[2]}
        v_bfe_u32 {vt[3]}, {vt[1]}, 3, 1
        v_lshl_add_u32 {vt[3]}, {vt[3]}, 8, {vt[2]}
        v_bfe_u32 {vt[4]}, {vt[1]}, 1, 2
        v_lshl_add_u32 {vt[3]}, {vt[4]}, 2, {vt[3]}
        s_lshl_b32 {sT1}, {sH}, 9
        s_add_u32 {sT1}, {sT1}, {2048 + 64 * w}
        v_add_u32 {vt[3]}, {sT1}, {vt[3]}
        v_bfe_u32 {vt[2]}, {vt[1]}, 1, 1
        v_lshlrev_b32 {vt[2]}, 8, {vt[2]}
        v_lshl_add_u32 {vt[2]}, {vt[0]}, 4, {vt[2]}
        v_and_b32 {vt[4]}, 1, {vt[1]}
        v_lshl_add_u32 {vt[2]}, {vt[4]}, 3, {vt[2]}
        s_lshr_b32 {sT1}, {sH}, 2
        s_lshl_b32 {sT1}, {sT1}, 9
        s_and_b32 {sT2}, {sH}, 1
        s_lshl_b32 {sT2}, {sT2}, 5
        s_add_u32 {sT1}, {sT1}, {sT2}
        s_and_b32 {sT2}, {sH}, 2
        s_lshl_b32 {sT2}, {sT2}, 1
        s_add_u32 {sT1}, {sT1}, {sT2}
        s_add_u32 {sT1}, {sT1}, {64 * w}
        v_add_u32 {vt[2]}, {sT1}, {vt[2]}
        v_mov_b32 {vt[4]}, {OOB}
        v_cndmask_b32 {vt[2]}, {vt[4]}, {vt[2]}, vcc
        v_cmp_gt_u32 vcc, 16, {vt[1]}
        v_cndmask_b32 {vPo}, {vt[2]}, {vt[3]}, vcc''')
        for r in range(4):
            e(f'''s_mov_b32 {sT1}, {WS_PR + r * 16384}
            buffer_store_dword {vNeg1}, {vPo}, {sWS}, {sT1} offen sc1''')
        e(f"""v_mov_b32 {vt[2]}, {L_SP + w * 1296 + 1280}
        v_mov_b32 {vt[3]}, 0xf149f2ca
        ds_write2_b32 {vt[2]}, {vt[3]}, {vt[3]} offset0:0 offset1:1""")
        flag_store_off(e, vFs, vLane, vt[4], sH, 0)
        if w == 1:
            e(f'''v_mov_b32 {vt[4]}, 0
            buffer_store_dword {vt[4]}, {vFs}, {sWS}, {sFLG} offen sc1''')
        for i in range(4):
            e(f'v_mov_b32 {Alast[i]}, 0')
        if poller:
            flag_poll_off(e, vFo, vLane, FLAG2_OFF, NF2)
        e(f'''s_mul_i32 {sYX}, {sH}, {cfg.qtouch * 8192}
        s_add_u32 {sYX}, {sYX}, {WS_YX + (3 - w) * 8192}''')
    else:
        e(f'v_add_u32 {vYW}, {L_YM}, {vL16}')
        if fin:
            e(f'''s_add_u32 {sJ}, {sH}, {14 * w}
            v_lshrrev_b32 {vt[2]}, 3, {vC}
            v_lshlrev_b32 {vt[2]}, 5, {vt[2]}
            v_lshl_add_u32 {vt[2]}, {vG}, 6, {vt[2]}
            v_and_b32 {vt[3]}, 7, {vC}
            v_lshl_add_u32 {vt[2]}, {vt[3]}, 1, {vt[2]}
            s_lshl_b32 {sT1}, {sJ}, 8
            v_add_u32 {vMo}, {sT1}, {vt[2]}
            v_lshlrev_b32 {vt[2]}, 2, {vLane}
            v_add_u32 {vMr}, {sT1}, {vt[2]}
            s_lshl_b32 {sYX}, {sJ}, 14
            s_add_u32 {sYX}, {sYX}, {WS_YX}''')
            for g_ in range(4):
                e(f'''s_add_u32 {sRO[g_]}, {sJ if cfg.rot else 0}, {g_}
                s_and_b32 {sRO[g_]}, {sRO[g_]}, 3
                s_lshl_b32 {sRO[g_]}, {sRO[g_]}, 11''')
            e(f'''v_bfe_u32 {vt[2]}, {vLane}, 2, 1
            v_lshl_add_u32 {vt[2]}, {vG}, 1, {vt[2]}
            v_mul_u32_u24 {vt[2]}, 896, {vt[2]}
            v_bfe_u32 {vt[3]}, {vLane}, 3, 1
            v_lshl_add_u32 {vt[2]}, {vt[3]}, 6, {vt[2]}
            v_and_b32 {vt[3]}, 3, {vLane}
            v_lshl_add_u32 {vt[2]}, {vt[3]}, 2, {vt[2]}
            s_lshr_b32 {sT1}, {sJ}, 2
            s_lshl_b32 {sT1}, {sT1}, 7
            s_and_b32 {sT2}, {sJ}, 3
            s_lshl_b32 {sT2}, {sT2}, 4
            s_add_u32 {sT1}, {sT1}, {sT2}
            buffer_load_dword {vt[3]}, {vt[2]}, {sM0D}, {sT1} offen
            s_waitcnt vmcnt(0)
            s_mov_b32 {sT1}, {WS_MEMR}
            buffer_store_dword {vt[3]}, {vMr}, {sWS}, {sT1} offen sc1''')
            for r in range(1, 3):
                e(f'''s_mov_b32 {sT1}, {WS_MEMR + r * 8192}
                buffer_store_dword {vNeg1}, {vMr}, {sWS}, {sT1} offen sc1''')
            flag_store_off(e, vFs, vLane, vt[4], sH, FLAG2_OFF)
            if w == 0:
                e(f'''v_mov_b32 {vt[4]}, 0
                buffer_store_dword {vt[4]}, {vFs}, {sWS}, {sFLG} offen sc1''')
        if w == (0 if cfg.selfpoll else 2):
            flag_poll_off(e, vFo, vLane, 0, 15)
        if w == 3:
            flag_poll_off(e, vFo, vLane, FLAG2_OFF, NF2)

    def xs_bases(nxt):
        if cfg.xsall:
            return [f's_lshl_b32 {sXS}, {nxt}, 15', f's_add_u32 {sXS}, {sXS}, {WS_XNB + w * 8192}', f's_add_u32 {sXS2}, {sXS}, 4096']
        return [f's_add_u32 {sXS2}, {sXS}, 4096', f's_lshl_b32 {sXS}, {nxt}, 15', f's_add_u32 {sXS}, {sXS}, {WS_XNB + w * 8192}']

    def xs_loads():
        return [f'buffer_load_dwordx4 {xsB[4 * i:4 * i + 4]}, {vL16}, {sWS}, {sXS if i < 4 else sXS2} offen '
                f'offset:{(i & 3) * 1024} sc1' for i in range(8)]

    winA = []
    if qk:
        winA = xs_loads()[(0 if cfg.xsall else 4):]
        if toucher:
            winA += [f'buffer_load_dword {vt[3]}, {vL128}, {sWS}, {sYXS} offen sc1']
    elif fin:
        winA = [f'buffer_load_dwordx4 {YX[4 * i:4 * i + 4]}, {vL16}, {sWS}, {sYQ[i >> 2]} offen '
                 f'offset:{(i & 3) * 1024} sc1' for i in range(16)]

    e(f"""s_mov_b32 {sSTEP}, 0
    s_mov_b32 {sTO}, {TIMEOUT}""")
    for c in sCNT:
        e(f's_mov_b32 {c}, 0')
    if qk:
        for l in ([] if cfg.xsall else xs_bases(sSTEP)[1:] + xs_loads()[:4]):
            e(l)
        if cfg.nowait:
            e(f'v_mov_b32 {vt[0]}, -1\nv_mov_b32 {vt[1]}, -1')
            assert vt[1].base == vt[0].base + 1
            for i in range(4):
                e(f'ds_write2_b32 {vSZ}, {vNeg1}, {vNeg1} offset0:0 offset1:1' if i == 0 else
                  f'v_add_u32 {vt[2]}, {1296 * i}, {vSZ}\nds_write2_b32 {vt[2]}, {vNeg1}, {vNeg1} offset0:0 offset1:1')
    if not cfg.alone:
        RL, RD = p.label('RL'), p.label('RD')
        if qk:
            e(f"""v_min_u32 {vt[0]}, 24, {vLane}
            v_lshlrev_b32 {vt[0]}, 14, {vt[0]}
            s_mul_i32 {sT0}, {sH}, {28 * 14336}
            s_add_u32 {sT0}, {sT0}, {WS_WQK}""")
        else:
            e(f"""v_and_b32 {vt[0]}, 7, {vLane}
            v_mul_u32_u24 {vt[0]}, {14 * 14336}, {vt[0]}
            v_bfe_u32 {vt[1]}, {vLane}, 3, 1
            v_mul_u32_u24 {vt[1]}, 14332, {vt[1]}
            v_add_u32 {vt[0]}, {vt[0]}, {vt[1]}
            s_mul_i32 {sT0}, {sH}, 14336
            s_add_u32 {sT0}, {sT0}, {WS_WVO + 4 * w * 28 * 14336}""")
        if cfg.wtlb:
            e(f'buffer_load_dword {vt[1]}, {vt[0]}, {sWS}, {sT0} offen sc1\ns_waitcnt vmcnt(0)')
        e(f"""v_min_u32 {vt[0]}, 13, {vC}
        v_lshlrev_b32 {vt[0]}, 2, {vt[0]}""")
        if qk:
            e(f"""s_lshl_b32 {sT1}, {sH}, 8
            s_add_u32 {sT1}, {sT1}, {C_MAT}
            v_add_u32 {vt[0]}, {sT1}, {vt[0]}""")
        else:
            e(f"""v_lshl_add_u32 {vt[0]}, {vG}, 8, {vt[0]}
            v_add_u32 {vt[0]}, {C_MAT + 128 + w * 1024}, {vt[0]}""")
        e(f"""s_mov_b32 {sT0}, {WS_CNT}
        {RL}:
        buffer_load_dword {vt[1]}, {vt[0]}, {sWS}, {sT0} offen sc1
        s_sub_u32 {sTO}, {sTO}, 1
        s_cmp_gt_i32 {sTO}, 0
        s_cbranch_scc0 {RD}
        s_waitcnt vmcnt(0)
        v_cmp_ne_u32 vcc, 1, {vt[1]}
        s_cbranch_vccz {RD}
        s_sleep 4
        s_branch {RL}
        {RD}:""")
        if w == 0:
            tl(p, 5, 's100', WS_TL + 16384)
    e(f's_mul_i32 {sT0}, {sH}, {28 * 14336 if qk else 14336}')
    n_out = 0
    for t in range(NT):
        for k in range(7):
            if qk:
                st_, pos = QK_TILES[w][t]
                T = 2 * set_quad(w, st_, pos & 1, pos >> 1) + (pos >> 1)
                off = WS_WQK + (T * 7 + slots[k]) * 2048
            else:
                off = WS_WVO + (((4 * w + (t & 3)) * 28 + 14 * (t >> 2)) * 7 + slots[k]) * 2048
            e(f's_add_u32 {sT1}, {sT0}, {off}')
            if t in lds_tiles:
                e(f'''s_mov_b32 m0, {wl0 + lds_rel[t] + k * 2048}
                buffer_load_dwordx4 {vL16}, {sWS}, {sT1} offen sc1 lds
                buffer_load_dwordx4 {vL16}, {sWS}, {sT1} offen offset:1024 sc1 lds''')
            else:
                f = frag[(t, k)]
                e(f'''buffer_load_dwordx4 {f[0:4]}, {vL16}, {sWS}, {sT1} offen sc1
                buffer_load_dwordx4 {f[4:8]}, {vL16}, {sWS}, {sT1} offen offset:1024 sc1''')
            n_out += 2
            if n_out >= 60:
                e('s_waitcnt vmcnt(40)')
                n_out = 40
    team_barrier(p, w, vt)
    if cfg.diag:
        e(f's_memtime {sTIME}')

    LOOP, END = p.label('LOOP'), p.label('END')
    FAIL, JOIN = p.label('FAIL'), p.label('JOIN')
    tail = []
    vm = VM(e)
    lg = VM(e, 'lgkmcnt')

    def slow(texts):
        if cfg.dual:
            sl, bk = p.label('SL'), p.label('SB')
            e(f's_cmp_lg_u32 {sSLOW}, 0')
            e(f's_cbranch_scc1 {sl}')
            e(f'{bk}:')
            tail.extend([f'{sl}:'] + [t + ' sc1' for t in texts] + [f's_branch {bk}'])

    def st2(text):
        vm.issue(text)
        slow([text])

    nside = [0]

    def side(text):
        if 'store' in text:
            st2(text)
        else:
            nside[0] += 1
            vm.issue(text, ('side', nside[0]))

    def chunk_txt(k, fl):
        off = slots[k] * 1024
        so = sMEM if off < 4096 else sMEM2
        return f'buffer_load_dwordx4 {memA[4 * k:4 * k + 4]}, {vL16}, {sWS}, {so} offen offset:{off & 4095} {fl}'

    def chunk_load(k):
        vm.issue(chunk_txt(k, '' if k >= cfg.nsc else 'sc1'), ('c', k))

    def stg_read(k):
        o = []
        for i, t in enumerate(lds_tiles):
            r = stg[16 * i + 8 * (k & 1):16 * i + 8 * (k & 1) + 8]
            o.append(f'ds_read_b128 {r[0:4]}, {vWL} offset:{lds_rel[t] + k * 2048}')
            o.append(f'ds_read_b128 {r[4:8]}, {vWL} offset:{lds_rel[t] + k * 2048 + 1024}')
        return o

    def wfrag(t, k):
        if t in lds_tiles:
            i = lds_tiles.index(t)
            return stg[16 * i + 8 * (k & 1):16 * i + 8 * (k & 1) + 8]
        return frag[(t, k)]

    def smf_txt(t, k):
        return f'v_smfmac_f32_16x16x64_bf16 {Tacc[4 * t:4 * t + 4]}, {memA[4 * k:4 * k + 4]}, {wfrag(t, k)}, {vIdx}'

    def smf(t, k):
        e(smf_txt(t, k))

    def slot_calc():
        e(f"""s_lshl_b32 {sMEM}, {sSTEP}, 13
        s_add_u32 {sMEM}, {sMEM}, {WS_MEMR}
        s_add_u32 {sMEM2}, {sMEM}, 4096""")

    clampn = lambda d, s_: f's_and_b32 {d}, {s_}, 1' if cfg.fake else f's_min_u32 {d}, {s_}, 63'
    sal = [f's_add_u32 {sSTEP1}, {sSTEP}, 1', f's_mov_b64 {sCHK}, -1', f'v_mov_b32 {vStep}, {sSTEP1}',
           f's_and_b32 {sT0}, {sSTEP}, 3', f's_lshl_b32 {sP}, {sT0}, 14']
    if qk:
        sal += [f's_add_u32 {sP}, {sP}, {WS_PR}', f's_xor_b32 {sPRST}, {sP}, {2 << 14}', clampn(sT3, sSTEP if cfg.xsall else sSTEP1)] + xs_bases(sT3)
        if toucher:
            sal += [f's_add_u32 {sT3}, {sSTEP}, {cfg.pf}', clampn(sT3, sT3), f's_mul_i32 {sYXS}, {sT3}, {28 * 16384}',
                    f's_add_u32 {sYXS}, {sYXS}, {sYX}']
    elif fin:
        sal += [f's_add_u32 {sP}, {sP}, {WS_PR}',
                f's_add_u32 {sMEMW}, {sMEM}, 8192', f's_add_u32 {sMEMRST}, {sMEM}, 16384',
                clampn(sT3, sSTEP), f's_mul_i32 {sT3}, {sT3}, {28 * 16384}', f's_add_u32 {sT3}, {sT3}, {sYX}']
        sal += [f's_lshl1_add_u32 {sYQ[i]}, {sRO[i]}, {sT3}' for i in range(4)]
        sal += [f's_add_u32 {sPQ[i]}, {sP}, {sRO[i]}' for i in range(4)]
    assert (WS_PR & (3 << 14)) == 0
    zero_all = [f'v_mov_b32 {Tacc[i]}, 0' for i in range(4 * NT)]
    if qk:
        zero_all += [f'v_mov_b32 {Sx[i]}, 0' for i in range(8)]
    for l in zero_all:
        e(l)
    zq = list(zero_all)

    def fz(n):
        for _ in range(n):
            if zq:
                e(zq.pop(0))

    def poll_loop(nd, tgt=None, between=None):
        PL, GO = p.label('PL'), p.label('GO')
        GL = GO
        if tgt:
            GO = tgt
        pl = lambda i: f'buffer_load_dword {Fp[i]}, {vFo}, {sWS}, {sFLG} offen sc1'
        for i in range(nd):
            e(pl(i))
            if between:
                between(i)
            elif i < nd - 1:
                nops(e, cfg.pspace * cfg.pdepth // nd)
        e(f'{PL}:')
        for i in range(nd):
            e(f"""s_waitcnt vmcnt({nd - 1})
            v_cmp_gt_u32 vcc, {sSTEP1}, {Fp[i]}
            {pl(i)}
            s_cbranch_vccz {GO}""")
        e(f"""s_sub_u32 {sTO}, {sTO}, 1
        s_cmp_gt_i32 {sTO}, 0
        s_cbranch_scc1 {PL}
        {GL}:""")

    def loop_end(polls):
        e(f"""s_cmp_ge_u32 {sSTEP}, {cfg.nsteps}
        s_cbranch_scc1 {END}""")
        if polls:
            polls()
        e(f's_branch {LOOP}')

    slot_calc()
    if cfg.prio and fin and w == 0:
        e('s_setprio 2')
    e(f'{LOOP}:')
    if not fin:
        stamp(p, cfg, 7)
    e('s_barrier')
    stamp(p, cfg, 0)
    nops(e, cfg.delay if qk else cfg.vdelay)
    fill = stg_read(0) + stg_read(1) + sal
    per = (len(fill) + AH - 2) // (AH - 1)
    for k in range(AH):
        chunk_load(k)
        if k < AH - 1:
            part = fill[k * per:(k + 1) * per]
            for l in part:
                if l.startswith('ds_'):
                    lg.issue(l)
                else:
                    e(l)
            nops(e, cfg.gap - len(part))
    for i, t in enumerate(lds_tiles):
        lg.tag[('s', 0, t)] = lg.n - 4 * len(lds_tiles) + 2 * (i + 1)
        lg.tag[('s', 1, t)] = lg.n - 2 * len(lds_tiles) + 2 * (i + 1)
    stamp(p, cfg, 1)

    def retry(k):
        RT, BK = p.label('RT'), p.label('BK')
        nre = 2 if chk == 2 else AH + 1
        t = [f'{RT}:', f's_add_u32 {sCNT[3]}, {sCNT[3]}, 1'] + [chunk_txt(kk, 'sc1') for kk in range(k, min(7, k + nre))]
        t += [f's_sub_u32 {sTO}, {sTO}, 1', f's_cmp_gt_i32 {sTO}, 0', f's_cbranch_scc0 {END}']
        if k == 0:
            t += zero_all[:12]
        t += ['s_waitcnt vmcnt(0)', f'v_cmp_eq_u32 vcc, -1, {memA[4 * k]}', f's_cbranch_vccnz {RT}']
        if k == 0:
            t += [smf_txt(0, 0), smf_txt(1, 0), smf_txt(2, 0)]
        t += [f's_branch {BK}']
        tail.extend(t)
        e(f's_cbranch_vccnz {RT}')
        e(f'{BK}:')

    def cv_txt(t, i):
        a = Tacc[4 * t:4 * t + 4]
        if t == 6:
            dst = Alast[2 * (QK_TILES[w][6][1] & 1) + i]
        else:
            dst = Tacc[4 * (t & ~1) + 2 * (t & 1) + i]
        return f'v_cvt_pk_bf16_f32 {dst}, {a[2 * i]}, {a[2 * i + 1]}'
    late_v = [cv_txt(0, 0), cv_txt(0, 1), cv_txt(1, 0)] if qk else []
    chk = cfg.chk if qk else cfg.vchk

    vm.wait(('c', 0))
    stamp(p, cfg, 9)
    nslot = 0
    nxt_c = AH
    pace = cfg.qpace if qk else 2
    early = 1 if (qk and cfg.xsall) else 0
    for k in range(7):
        sr = stg_read(k + 1) if 1 <= k <= 5 else []
        for t in range(NR):
            smf(t, k)
            used = 0
            if k == 0 and t == 2 and chk:
                retry(0)
            if t == NR - 1 and k < 6 and chk == 2:
                retry(k + 1)
                used = 1
            if qk:
                if t == 0 and k + AH < 7:
                    chunk_load(k + AH)
                    used = 1
                elif k + AH + early >= 7 and nslot % pace == 0 and winA and not used:
                    side(winA.pop(0))
                    used = 1
                if k + AH + early >= 7:
                    nslot += 1
            else:
                if nxt_c < 7:
                    if t % 3 == 0:
                        chunk_load(nxt_c)
                        nxt_c += 1
                        used = 1
                elif winA and nslot % 2 == 0 and not used:
                    side(winA.pop(0))
                    used = 1
                nslot += 1
            if sr and (not used or (len(sr) > NR - 1 - t)):
                lg.issue(sr.pop(0), ('s', k + 1, lds_tiles[len(lds_tiles) - 1 - len(sr) // 2]))
            if t + 1 in lds_tiles:
                lg.wait(('s', k, t + 1))
            if k == 0 and t == 0 and chk:
                e(f'v_cmp_eq_u32 vcc, -1, {memA[0]}')
            if chk == 2:
                if t == NR - 3 and k < 6:
                    vm.wait(('c', k + 1))
                    e(f'v_cmp_eq_u32 vcc, -1, {memA[4 * k + 4]}')
            elif t == NR - 1 and k < 6:
                vm.wait(('c', k + 1))
            if qk and k == 6 and t >= 2:
                e(late_v[t - 2])
        assert not sr
    tail += [f'{FAIL}:', f's_add_u32 {sCNT[0]}, {sCNT[0]}, 1', f's_mov_b64 {sCHK}, 0', f'{FAIL}b:']
    tail += [chunk_txt(k, 'sc1') for k in range(7)]
    tail += [f's_sub_u32 {sTO}, {sTO}, 1', f's_cmp_gt_i32 {sTO}, 0', f's_cbranch_scc0 {END}']
    tail += zero_all[:4 * NT] + stg_read(0) + stg_read(1) + ['s_waitcnt vmcnt(0)']
    tail += [f'v_max3_u32 {vt[0]}, {memA[0]}, {memA[1]}, {memA[2]}']
    for i in range(3, 27, 2):
        tail += [f'v_max3_u32 {vt[0]}, {vt[0]}, {memA[i]}, {memA[i + 1]}']
    tail += [f'v_max_u32 {vt[0]}, {vt[0]}, {memA[27]}', f'v_cmp_eq_u32 vcc, -1, {vt[0]}', f's_cbranch_vccnz {FAIL}b']
    nl = 2 * len(lds_tiles)
    for k in range(7):
        tail += [f's_waitcnt lgkmcnt({nl if k < 6 else 0})'] + [smf_txt(t, k) for t in range(NR)]
        if k < 5:
            tail += stg_read(k + 2)
    tail += late_v + ['s_nop 7', f's_branch {JOIN}']
    e(f'{JOIN}:')
    stamp(p, cfg, 2)

    def check_branch():
        e(f's_and_b64 vcc, vcc, {sCHK}')
        e(f's_cbranch_scc1 {FAIL}')

    if qk:
        assert not winA

        def cv(t, i):
            e(cv_txt(t, i))

        def ident(pair, hi):
            src = Alast if pair == 3 else Tacc[8 * pair:8 * pair + 4]
            e(f'v_mfma_f32_16x16x32_bf16 {Did[4 * hi:4 * hi + 4]}, {src}, {Idn}, 0')

        def cv2(st, hi, i):
            d = Did[4 * hi:4 * hi + 4]
            e(f'v_cvt_pk_bf16_f32 {AS[4 * st + 2 * hi + i]}, {d[2 * i]}, {d[2 * i + 1]}')

        def sx(st, kt):
            e(f'v_smfmac_f32_16x16x64_bf16 {Sx[4 * kt:4 * kt + 4]}, {AS[4 * st:4 * st + 4]}, '
              f'{xsB[16 * st + 8 * kt:16 * st + 8 * kt + 8]}, {vIdx}')

        def mch(c_):
            k_ = slots.index(c_)
            return memA[4 * k_:4 * k_ + 4]

        def sm(st):
            b = Mx if (w == 3 and st == 1) else mch(w + 4 * st)
            e(f'v_mfma_f32_16x16x32_bf16 {Sm}, {AS[4 * st:4 * st + 4]}, {b}, {0 if st == 0 else Sm}')

        def flag(pos):
            if cfg.flagpos == pos and w == 1:
                vm.issue(f'buffer_store_dword {vStep}, {vFs}, {sWS}, {sFLG} offen')
                stamp(p, cfg, 8)

        if w == 3:
            zq[0:0] = [f'v_cndmask_b32 {Mx[0]}, {mch(5)[0]}, {mch(4)[0]}, {sV0}',
                       f'v_cndmask_b32 {Mx[1]}, {mch(5)[1]}, {mch(4)[1]}, {sV0}',
                       f'v_mov_b32 {Mx[2]}, {mch(6)[2]}', f'v_mov_b32 {Mx[3]}, {mch(6)[3]}']
        fh = QK_TILES[w][4][1] >> 1
        smf(5, 0); cv(1, 1)
        smf(5, 1); cv(2, 0)
        ident(0, 0); cv(2, 1); cv(3, 0)
        smf(5, 2); cv(3, 1)
        smf(5, 3); cv(4, 0)
        ident(1, 1); cv2(0, 0, 0); cv2(0, 0, 1)
        smf(5, 4); e(f'v_cmp_u_f32 vcc, {Did[0]}, {Did[1]}')
        smf(5, 5); cv(4, 1)
        smf(5, 6); cv2(0, 1, 0)
        smf(6, 0); cv2(0, 1, 1)
        smf(6, 1); check_branch()
        smf(6, 2); cv(5, 0)
        smf(6, 3); cv(5, 1)
        smf(6, 4); fz(1)
        smf(6, 5); fz(1)
        smf(6, 6); fz(1)
        ident(2, fh); fz(2)
        sm(0); cv(6, 0); cv(6, 1)
        fz(1); cv2(1, fh, 0)
        nx = 8 if cfg.xsall else 4
        ident(3, 1 - fh)
        if cfg.xsall:
            vm.wait(('side', 4))
        cv2(1, fh, 1); fz(1)
        sx(0, 0); fz(1)
        sx(0, 1)
        cv2(1, 1 - fh, 0); cv2(1, 1 - fh, 1)
        fz(1)
        vm.wait(('side', nx - 2))
        sx(1, 0)
        vm.wait(('side', nx))
        sx(1, 1)
        sm(1)
        flag(-3)
        stamp(p, cfg, 3)
        e(f"""v_add_f32 {Sx[0]}, {Sx[0]}, {Sx[2]}
        v_add_f32 {Sx[1]}, {Sx[1]}, {Sx[3]}
        ds_write2_b32 {vSW}, {Sx[0]}, {Sx[1]} offset0:0 offset1:40
        v_add_f32 {Sx[4]}, {Sx[4]}, {Sx[6]}
        v_add_f32 {Sx[5]}, {Sx[5]}, {Sx[7]}
        ds_write2_b32 {vSW}, {Sx[4]}, {Sx[5]} offset0:4 offset1:44
        v_add_f32_dpp {Sm[0]}, {Sm[2]}, {Sm[0]} quad_perm:[2,3,0,1] row_mask:0xf bank_mask:0xf
        v_add_f32_dpp {Sm[1]}, {Sm[3]}, {Sm[1]} quad_perm:[2,3,0,1] row_mask:0xf bank_mask:0xf
        ds_write2_b32 {vSW2}, {Sm[0]}, {Sm[1]} offset0:0 offset1:40""")
        flag(-2)
        fz(cfg.fz1 - 1)
        flag(-1)
        fz(1)
        assert len(zq) >= 8
        if not cfg.nowait:
            e('s_waitcnt lgkmcnt(0)')
        e('s_barrier')
        stamp(p, cfg, 4)
        dpps = ['quad_perm:[1,0,3,2]', 'quad_perm:[2,3,0,1]', 'row_half_mirror', 'row_mirror']
        x, y = vt[0], vt[1]
        r = R('v', memA.base, 12)
        warm = lambda n: [e(zq.pop(0)) if len(zq) > 8 else e(f'v_mov_b32 {vt[4]}, 0') for _ in range(n)]
        rd_txt = [f'ds_read_b64 {r[2 * i:2 * i + 2]}, {vSR} offset:{1296 * i}' for i in range(4)]
        for i in range(4):
            e(rd_txt[i])
            if i % 2 == 0:
                warm(1)
        warm(1)
        flag(0)
        warm(cfg.fz2 - 3)
        flag(1)
        warm(1)
        add_txt = f"""s_waitcnt lgkmcnt(2)
        v_add_f32 {r[0]}, {r[0]}, {r[2]}
        v_add_f32 {r[1]}, {r[1]}, {r[3]}
        s_waitcnt lgkmcnt(0)
        v_add_f32 {r[4]}, {r[4]}, {r[6]}
        v_add_f32 {r[5]}, {r[5]}, {r[7]}
        v_add_f32 {r[0]}, {r[0]}, {r[4]}
        v_add_f32 {r[1]}, {r[1]}, {r[5]}"""
        e(add_txt)

        def allred(op, em, main):
            for i, d in enumerate(dpps):
                pos_ = (2 if op == 'max' else 8) + i
                if main and cfg.flagpos == pos_ and w == 1:
                    flag(pos_)
                elif main:
                    fz(2)
                em(f'v_{op}_f32_dpp {x}, {x}, {x} {d} row_mask:0xf bank_mask:0xf')
            em(f'v_mov_b32 {y}, {x}')
            if op == 'max' and main:
                flag(6)
            em(f'v_permlane16_swap_b32 {x}, {y}')
            em(f'v_{op}_f32 {x}, {x}, {y}')

        pst_txt = f'buffer_store_dword {y}, {vPo}, {sWS}, {sP} offen'

        def softmax_true(em, main):
            em(f'v_max_f32 {x}, {r[0]}, {r[1]}')
            allred('max', em, main)
            for l in (f'v_sub_f32 {r[8]}, {r[0]}, {x}', f'v_sub_f32 {r[9]}, {r[1]}, {x}',
                      f'v_exp_f32 {r[8]}, {r[8]}', f'v_exp_f32 {r[9]}, {r[9]}'):
                em(l)
            if main:
                flag(7)
            em(f'v_add_f32 {x}, {r[8]}, {r[9]}')
            allred('add', em, main)
            for l in (f'v_rcp_f32 {r[10]}, {x}', f'v_subrev_u32 {x}, 0x21800000, {x}', f'v_mul_f32 {r[8]}, {r[8]}, {r[10]}',
                      f'v_mul_f32 {r[9]}, {r[9]}, {r[10]}', f'v_cvt_pk_bf16_f32 {y}, {r[8]}, {r[9]}'):
                em(l)
        if cfg.standin:
            e(f"""v_exp_f32 {r[8]}, {r[0]}
            v_exp_f32 {r[9]}, {r[1]}""")
            flag(7)
            e(f'v_add_f32 {x}, {r[8]}, {r[9]}')
            allred('add', e, True)
            e(f"""v_rcp_f32 {r[10]}, {x}
            v_subrev_u32 {x}, 0x21800000, {x}
            v_mul_f32 {r[8]}, {r[8]}, {r[10]}
            v_mul_f32 {r[9]}, {r[9]}, {r[10]}
            v_cvt_pk_bf16_f32 {y}, {r[8]}, {r[9]}""")
        else:
            softmax_true(e, True)
        if cfg.standin or cfg.nowait:
            FB, FD = p.label('FB'), p.label('FD')
            e(f'v_cmpx_gt_u32 vcc, 0x50000000, {x}')
            vm.issue(pst_txt)
            e(f"""s_mov_b64 exec, -1
            s_cmp_lg_u64 vcc, -1
            s_cbranch_scc1 {FB}
            {FD}:""")
            tail += [f'{FB}:', f's_add_u32 {sCNT[2]}, {sCNT[2]}, 1']
            if cfg.nowait:
                tail += rd_txt + [f's_sub_u32 {sTO}, {sTO}, 1', f's_cmp_gt_i32 {sTO}, 0', f's_cbranch_scc0 {FD}',
                                  's_waitcnt lgkmcnt(0)', f'v_max3_u32 {x}, {r[0]}, {r[1]}, {r[2]}',
                                  f'v_max3_u32 {x}, {x}, {r[3]}, {r[4]}', f'v_max3_u32 {x}, {x}, {r[5]}, {r[6]}',
                                  f'v_max_u32 {x}, {x}, {r[7]}', f'v_cmp_eq_u32 vcc, -1, {x}', f's_cbranch_vccnz {FB}']
                tail += [l.strip() for l in add_txt.split('\n')]
            softmax_true(tail.append, False)
            tail += [pst_txt, f's_branch {FD}']
        else:
            vm.issue(pst_txt)
        stamp(p, cfg, 5)
        slow([f'buffer_store_dword {y}, {vPo}, {sWS}, {sP} offen'] +
             ([f'buffer_store_dword {vStep}, {vFs}, {sWS}, {sFLG} offen'] if w == 1 else []))
        e('s_barrier')
        st2(f'buffer_store_dword {vNeg1}, {vPo}, {sWS}, {sPRST} offen')
        if cfg.tlb and w == 3:
            e(f"""v_mov_b32 {vt[2]}, {2 * 8192 + 7680}
            buffer_load_dword {vt[3]}, {vt[2]}, {sWS}, {sMEM} offen sc1
            v_mov_b32 {vt[2]}, {32768 if cfg.xsall else 65536}
            buffer_load_dword {vt[3]}, {vt[2]}, {sWS}, {sXS2} offen sc1""")
        for l in ([] if cfg.xsall else xs_loads()[:4]):
            e(l)
        if cfg.nowait:
            e(f'v_mov_b32 {r[0]}, -1\nv_mov_b32 {r[1]}, -1')
            for i in range(4):
                e(f'ds_write_b64 {vSZ}, {r[0:2]} offset:{1296 * i}')
            e('s_waitcnt lgkmcnt(0)')
        fz(40)
        if TL_ON[0] and w == 2:
            e(f"""s_memtime s[96:97]
            s_lshl_b32 s98, {sH}, 8
            s_lshl_b32 s99, {sSTEP}, 2
            s_add_u32 s98, s98, s99
            s_add_u32 s98, s98, {WS_TL + 0x8000}
            s_waitcnt lgkmcnt(0)
            v_mov_b32 v254, s96
            v_mov_b32 v255, 0
            buffer_store_dword v254, v255, {sWS}, s98 offen""")
        e(f's_add_u32 {sSTEP}, {sSTEP}, 1')
        slot_calc()

        def qpoll():
            e('s_waitcnt vmcnt(0)')
            stamp(p, cfg, 6)
            nops(e, cfg.qstart)
            poll_loop(cfg.qdepth, LOOP)
        loop_end(qpoll if poller else None)
    else:
        def pk(t):
            a = Tacc[4 * t:4 * t + 4]
            return [f'v_add_f32 {a[0]}, {a[0]}, {a[2]}', f'v_add_f32 {a[1]}, {a[1]}, {a[3]}',
                    f'v_cvt_pk_bf16_f32 {Ym[t]}, {a[0]}, {a[1]}']
        vq = pk(0)[:2] + [f'v_cmp_u_f32 vcc, {Tacc[0]}, {Tacc[1]}'] + pk(0)[2:]
        for t in range(1, 6):
            vq += pk(t)
        n = 0
        for t in (6, 7):
            for k in range(7):
                smf(t, k)
                if n == 4:
                    check_branch()
                elif winA:
                    side(winA.pop(0))
                if n == 10:
                    vq += pk(6)
                for _ in range(2 if n % 2 else 1):
                    if vq:
                        e(vq.pop(0))
                n += 1
        assert not winA
        for l in vq + pk(7):
            e(l)
        e(f"""ds_write_b128 {vYW}, {Ym[0:4]} offset:{w * 1024}
        ds_write_b128 {vYW}, {Ym[4:8]} offset:{4096 + w * 1024}""")
        if fin and cfg.selfpoll and w == 0:
            e(f'buffer_store_dword {vNeg1}, {vMr}, {sWS}, {sMEMRST} offen')
        stamp(p, cfg, 3)
        if cfg.tlb and w == 3:
            e(f"""v_mov_b32 {vt[2]}, {3 * 8192 + 7680}
            buffer_load_dword {vt[3]}, {vt[2]}, {sWS}, {sMEM} offen sc1""")
        sp0 = cfg.selfpoll and w == 0
        bm_rd = [f'ds_read_b128 {BM[4 * i:4 * i + 4]}, {vYW} offset:{w * 4096 + i * 1024}' for i in range(4)] if fin else []
        zf = [f'v_mov_b32 {Facc[i]}, 0' for i in range(4)] if fin else []

        def part(i):
            if i == 0:
                fz(6)
                e(f's_add_u32 {sSTEP}, {sSTEP}, 1')
                slot_calc()
            elif i == 1:
                e('s_waitcnt lgkmcnt(0)\ns_barrier')
            elif i == 2:
                for l in bm_rd + zf:
                    e(l)
                if fin and not sp0:
                    e(f'buffer_store_dword {vNeg1}, {vMr}, {sWS}, {sMEMRST} offen')
            else:
                fz(6)
        if sp0:
            poll_loop(cfg.pdepth, None, part)
            stamp(p, cfg, 5)
            nops(e, cfg.pdelay)
        else:
            for i in range(3):
                part(i)
            if fin:
                stamp(p, cfg, 5)
            fz(32)
            if w == 2 and not cfg.selfpoll:
                poll_loop(cfg.pdepth)
                stamp(p, cfg, 5)
                nops(e, cfg.pdelay)
        if not sp0:
            e('s_barrier')
        stamp(p, cfg, 6)
        if fin:
            PD, PF, PR, PB = p.label('PD'), p.label('PF'), p.label('PR'), p.label('PB')

            def p_txt(i):
                so, of = (sP, i * 1024) if i < 2 else (sPQ[(i - 2) >> 1], 2048 + (i & 1) * 1024)
                return f'buffer_load_dwordx4 {Afin[4 * i:4 * i + 4]}, {vL16}, {sWS}, {so} offen offset:{of} sc1'

            def f_txt(i):
                return f'v_smfmac_f32_16x16x64_bf16 {Facc}, {Afin[4 * i:4 * i + 4]}, {Bfin[i]}, {vIdx}'
            if w == 1 and not cfg.selfpoll:
                nops(e, 4)
            f2 = f'buffer_store_dword {vStep}, {vFs}, {sWS}, {sFLG} offen'
            burst = []
            for i in range(10):
                vm.issue(p_txt(i), ('p', i))
                burst.append(p_txt(i))
                if (sp0 and -12 <= cfg.f2pos <= -2 and i == 11 + cfg.f2pos) or (w == 1 and i == cfg.f2pos - 20):
                    vm.issue(f2)
                    burst.append(f2)
                    stamp(p, cfg, 8)
                if sp0 and i == cfg.bpos:
                    e('s_barrier')
            stamp(p, cfg, 11)
            e(f'{PB}:')
            if cfg.f2pos == -1 and w == 0:
                vm.issue(f2)
                stamp(p, cfg, 8)
            fz(32)
            e('s_waitcnt lgkmcnt(0)')
            vm.wait(('p', 0))
            stamp(p, cfg, 4)
            for i in range(10):
                e(f_txt(i))
                if i == (max(cfg.f2pos, 2) if cfg.f2pos < 10 else 2):
                    e(f's_cbranch_vccnz {PR}')
                if i == cfg.f2pos and w == 0:
                    vm.issue(f2)
                    stamp(p, cfg, 8)
                if i < 9:
                    vm.wait(('p', i + 1))
                if i == 0:
                    e(f'v_max3_u32 {vt[0]}, {Afin[0]}, {Afin[1]}, {Afin[4]}')
                    e(f'v_max_u32 {vt[0]}, {vt[0]}, {Afin[5]}')
                if i == 1:
                    e(f'v_cmp_eq_u32 vcc, -1, {vt[0]}')
            tail += [f'{PR}:', f's_add_u32 {sCNT[1]}, {sCNT[1]}, 1'] + burst + zf
            tail += [f's_sub_u32 {sTO}, {sTO}, 1', f's_cmp_gt_i32 {sTO}, 0', f's_cbranch_scc1 {PB}', f's_branch {PD}']
            fsum = [f'v_add_f32 {Facc[0]}, {Facc[0]}, {Facc[2]}', f'v_add_f32 {Facc[1]}, {Facc[1]}, {Facc[3]}']
            stamp(p, cfg, 10)
            for i in range(7):
                e(f'v_mov_b32 {vt[4]}, 0')
            for l in fsum:
                e(l)
            st_txt = [f'buffer_store_short {vt[0]}, {vMo}, {sWS}, {sMEMW} offen',
                      f'buffer_store_short_d16_hi {vt[0]}, {vMo}, {sWS}, {sMEMW} offen offset:16']
            e(f"""v_cvt_pk_bf16_f32 {vt[0]}, {Facc[0]}, {Facc[1]}
            v_cmpx_o_f32 vcc, {Facc[0]}, {Facc[1]}""")
            for l in st_txt:
                e(l)
            stamp(p, cfg, 7)
            e(f"""s_mov_b64 exec, -1
            s_cmp_lg_u64 vcc, -1
            s_cbranch_scc1 {PF}
            {PD}:""")
            rst = f'buffer_store_dword {vNeg1}, {vMr}, {sWS}, {sMEMRST} offen'
            slow(st_txt + ([f2] if w == (1 if cfg.f2pos >= 20 else 0) else []) + [rst])
            tail += [f'{PF}:', f's_add_u32 {sCNT[1]}, {sCNT[1]}, 0x10000']
            tail += [p_txt(i) for i in range(10)]
            tail += [f's_sub_u32 {sTO}, {sTO}, 1', f's_cmp_gt_i32 {sTO}, 0', f's_cbranch_scc0 {PD}']
            tail += zf + ['s_waitcnt vmcnt(0)']
            tail += [f'v_max3_u32 {vt[0]}, {Afin[0]}, {Afin[1]}, {Afin[2]}']
            for i in range(3, 39, 2):
                tail += [f'v_max3_u32 {vt[0]}, {vt[0]}, {Afin[i]}, {Afin[i + 1]}']
            tail += [f'v_max_u32 {vt[0]}, {vt[0]}, {Afin[39]}', f'v_cmp_eq_u32 vcc, -1, {vt[0]}', f's_cbranch_vccnz {PF}']
            tail += [f_txt(i) for i in range(10)] + fsum + [f'v_cvt_pk_bf16_f32 {vt[0]}, {Facc[0]}, {Facc[1]}'] + st_txt
            tail += [f's_branch {PD}']

        def vpoll():
            nops(e, cfg.vstart)
            poll_loop(cfg.vdepth, LOOP)
        loop_end(vpoll if w == 3 else None)
    assert not zq
    e(f'{END}:')
    if fin:
        e(f's_add_u32 {sMEMW}, {sMEMW}, {WS_MEMA - WS_MEMR}')
        for l in st_txt:
            e(l + ' sc1')
    epilogue(p, w, cfg, vt)
    for l in tail:
        e(l)


HEADER = '''; generated
; @launch grid=(256,1,1) block=(256,1,1) lds=%d
.amdgcn_target "amdgcn-amd-amdhsa--gfx950"
.text
.globl %s
.p2align 8
.type %s,@function
'''
FOOTER = '''.section .rodata,"a"
.p2align 6
.amdhsa_kernel %s
  .amdhsa_next_free_vgpr 512
  .amdhsa_next_free_sgpr 102
  .amdhsa_accum_offset 256
  .amdhsa_group_segment_fixed_size 0
  .amdhsa_kernarg_size 120
  .amdhsa_user_sgpr_count 2
  .amdhsa_user_sgpr_kernarg_segment_ptr 1
  .amdhsa_system_sgpr_workgroup_id_x 1
.end_amdhsa_kernel
'''


def wave_dispatch(e, nm):
    e(f'''s_cmp_eq_u32 {sWAVE}, 0
    s_cbranch_scc1 {nm}0
    s_cmp_eq_u32 {sWAVE}, 1
    s_cbranch_scc1 {nm}1
    s_cmp_eq_u32 {sWAVE}, 2
    s_cbranch_scc1 {nm}2
    s_branch {nm}3''')


def standalone(cfg, name='team_kernel'):
    TL_ON[0] = True
    p = Prog()
    e = p.e
    e(f'{name}:')
    e(f'''s_and_b32 s3, s2, 7
    s_cmp_lg_u32 s3, 0
    s_cbranch_scc1 EXIT
    s_cmp_ge_u32 s2, 256
    s_cbranch_scc1 EXIT
    s_lshr_b32 {sIDX}, s2, 3
    s_mov_b32 s100, {sIDX}
    s_mov_b32 {sSLOW}, 0
    s_load_dwordx2 s[4:5], s[0:1], 112
    s_load_dwordx2 s[12:13], s[0:1], 104
    s_load_dwordx2 s[16:17], s[0:1], 8
    v_lshrrev_b32 v1, 6, v0
    v_readfirstlane_b32 {sWAVE}, v1
    s_mov_b32 s6, {WS_BYTES}
    s_mov_b32 s7, 0x20000
    s_mov_b32 s14, 256
    s_mov_b32 s15, 0x20000
    s_mov_b32 s18, 7168
    s_mov_b32 s19, 0x20000
    s_and_b32 {sH}, {sIDX}, 15''')
    for i in range(NSTAMP):
        e(f's_mov_b32 s{STAMP0 + 2 * i}, 0')
    e(f'''s_waitcnt lgkmcnt(0)
    s_cmp_ge_u32 {sIDX}, 16
    s_cbranch_scc1 ROLE_VO''')
    wave_dispatch(e, 'QK')
    e(f'''ROLE_VO:
    s_cmp_ge_u32 {sH}, 14
    s_cbranch_scc1 ROLE_EN''')
    wave_dispatch(e, 'VO')
    e('ROLE_EN:')
    wave_dispatch(e, 'EN')
    e('EXIT:\ns_endpgm')
    for role, nm in ((0, 'QK'), (1, 'VO'), (2, 'EN')):
        for w in range(4):
            e(f'{nm}{w}:')
            team_wave(p, role, w, cfg)
    return HEADER % (L_END, name, name) + p.text() + FOOTER % name


if __name__ == '__main__':
    import sys
    cfg = Cfg()
    for a in sys.argv[2:]:
        k, v = a.split('=')
        assert hasattr(cfg, k), k
        setattr(cfg, k, int(v) if not isinstance(getattr(cfg, k), str) else v)
    open(sys.argv[1], 'w').write(standalone(cfg))
```

```python
from asmlib import *
from layout import *
from prep import srd

sWS = 's[4:7]'
sW = 's9'
sTO = 's38'
sCN = 's39'
TIMEOUT = 400000
OOB = 0x40000000
NRY = 3


def wait_ge(p, vaddr, vtmp, val, sleep=4):
    e = p.e
    L, D = p.label('WT'), p.label('WD')
    e(f'''{L}:
    buffer_load_dword {vtmp}, {vaddr}, {sWS}, {sCN} offen sc1
    s_sub_u32 {sTO}, {sTO}, 1
    s_cmp_gt_i32 {sTO}, 0
    s_cbranch_scc0 {D}
    s_waitcnt vmcnt(0)
    v_cmp_gt_u32 vcc, {val}, {vtmp}
    s_cbranch_vccz {D}
    s_sleep {sleep}
    s_branch {L}
    {D}:''')


def signal(p, vaddr, vtmp):
    e = p.e
    L = p.label('SG')
    e(f'''s_waitcnt vmcnt(0) lgkmcnt(0)
    s_barrier
    s_cmp_lg_u32 {sW}, 0
    s_cbranch_scc1 {L}
    v_mov_b32 {vtmp}, 1
    s_mov_b64 exec, 1
    buffer_atomic_add {vtmp}, {vaddr}, {sWS}, {sCN} offen
    s_mov_b64 exec, -1
    {L}:''')


def go_wait(p, vCA, t0, sA):
    L = p.label('GW')
    p.e(f"""s_cmp_lg_u32 {sW}, 0
    s_cbranch_scc1 {L}
    s_and_b32 {sA}, s8, 7
    s_lshl_b32 {sA}, {sA}, 7
    s_add_u32 {sA}, {sA}, {C_GO}
    v_mov_b32 {vCA}, {sA}""")
    wait_ge(p, vCA, t0, 1, 16)
    p.e(f'{L}:\ns_barrier')


def load_valid(p, loads, regs, vtmp, sleep):
    e = p.e
    L, D = p.label('LV'), p.label('LD')
    e(f'{L}:')
    for l in loads:
        e(l)
    e(f"""s_sub_u32 {sTO}, {sTO}, 1
    s_cmp_gt_i32 {sTO}, 0
    s_cbranch_scc0 {D}""")
    n = len(loads)
    per = len(regs) // n
    for i in range(n):
        e(f's_waitcnt vmcnt({n - 1 - i})')
        r = regs[per * i:per * i + per]
        if per == 1:
            e(f'v_mov_b32 {vtmp}, {r[0]}' if i == 0 else f'v_max_u32 {vtmp}, {vtmp}, {r[0]}')
        else:
            e(f'v_max_u32 {vtmp}, {r[0]}, {r[1]}' if i == 0 else f'v_max3_u32 {vtmp}, {vtmp}, {r[0]}, {r[1]}')
            e(f'v_max3_u32 {vtmp}, {vtmp}, {r[2]}, {r[3]}')
    e(f"""v_cmp_eq_u32 vcc, -1, {vtmp}
    s_cbranch_vccz {D}
    s_sleep {sleep}
    s_branch {L}
    {D}:
    s_waitcnt vmcnt(0)""")


def yt_worker(p, kind):
    e = p.e
    isY = kind == 0
    L_T, L_XA = 65536, 98304
    V = Alloc('v', 1, 254)
    A = Alloc('a', 0, 256)
    vL, vG, vC, t0, t1, t2, vL16, vXB, vCA = (V.get() for _ in range(9))
    x1, x2 = V.get(), V.get()
    if not isY:
        Sx = V.get(8, 4)
        Sm = V.get(8, 4)
    else:
        vIdx = V.get()
    buf = V.get(32, 4)
    acc = V.get(56, 4)
    frag = {}
    for t in range(7):
        for k in range(7):
            frag[(t, k)] = A.get(8, 4) if A.left() >= 8 else V.get(8, 4)
    sS, sCur, sW7, sO, sA, sB, sPrev = 's12', 's13', 's14', 's15', 's16', 's17', 's18'
    TLB = WS_TL + 16384
    e(f"""v_and_b32 {vL}, 63, v0
    v_lshrrev_b32 {vG}, 4, {vL}
    v_and_b32 {vC}, 15, {vL}
    v_lshlrev_b32 {vL16}, 4, {vL}
    v_mov_b32 {vXB}, {vL16}
    s_mov_b32 {sTO}, {TIMEOUT}
    s_mov_b32 {sCN}, {WS_CNT}
    s_mov_b32 {sS}, s11
    s_mov_b32 {sCur}, 0
    s_mov_b32 {sPrev}, {OOB}
    s_mul_i32 {sW7}, {sW}, 7168""")

    def xb_dma(seg, lds):
        e(f"""s_lshl_b32 {sA}, {seg}, 15
        s_add_u32 {sA}, {sA}, {sW7}
        s_add_u32 {sA}, {sA}, {WS_XNB}
        s_add_u32 m0, {lds}, {sW7}""")
        for i in range(7):
            if i == 4:
                e(f's_add_u32 {sA}, {sA}, 4096\ns_add_u32 m0, m0, 4096')
            e(f'buffer_load_dwordx4 {vL16}, {sWS}, {sA} offen offset:{(i & 3) * 1024} sc1 lds')

    def mem_wait():
        e(f"""s_lshl_b32 {sA}, {sS}, 13
        s_add_u32 {sA}, {sA}, {WS_MEMA}
        s_add_u32 {sB}, {sA}, 4096""")
        load_valid(p, [f'buffer_load_dwordx4 {buf[4 * k:4 * k + 4]}, {vL16}, {sWS}, {sA if k < 4 else sB} offen '
                       f'offset:{(k & 3) * 1024} sc1' for k in range(7)], [buf[i] for i in range(28)], t0, 3)
    if not isY:
        go_wait(p, vCA, t0, sA)
    xb_dma(sS, sCur)
    e(f"""s_mul_i32 {sB}, s10, 28
    s_mul_i32 {sA}, {sW}, 7
    s_add_u32 {sB}, {sB}, {sA}
    s_mul_i32 {sB}, {sB}, 14336
    s_add_u32 {sB}, {sB}, {WS_WVO if isY else WS_WQK}""")
    n_out = 7
    for t in range(7):
        for k in range(7):
            f = frag[(t, k)]
            if k % 2 == 0:
                e(f's_add_u32 {sA}, {sB}, {(t * 7 + k) * 2048}')
            o = (k & 1) * 2048
            e(f"""buffer_load_dwordx4 {f[0:4]}, {vL16}, {sWS}, {sA} offen offset:{o} sc1
            buffer_load_dwordx4 {f[4:8]}, {vL16}, {sWS}, {sA} offen offset:{o + 1024} sc1""")
            n_out += 2
            if n_out >= 60:
                e('s_waitcnt vmcnt(40)')
                n_out = 40
    if isY:
        e(f"""v_bfe_u32 {t0}, {vC}, 1, 1
        v_mul_u32_u24 {vIdx}, 0xaaaa, {t0}
        v_add_u32 {vIdx}, 0x4444, {vIdx}
        v_lshlrev_b32 {t0}, 12, {vG}
        v_lshl_add_u32 {t0}, {vC}, 4, {t0}
        s_mul_i32 {sA}, {sW}, {7 * 4096}
        s_lshl_b32 {sB}, s10, 8
        s_add_u32 {sA}, {sA}, {sB}
        v_add_u32 {x1}, {sA}, {t0}
        v_add_u32 {t0}, {4 * 4096}, {x1}
        v_mov_b32 {t1}, {OOB}
        v_cmp_gt_u32 vcc, 3, {vG}
        v_cndmask_b32 {x2}, {t1}, {t0}, vcc""")
    else:
        for i, x in enumerate((x1, x2)):
            e(f"""s_mul_i32 {sA}, {sW}, 7
            s_add_u32 {sA}, {sA}, {i}
            s_lshr_b32 {sB}, {sA}, 1
            s_lshl_b32 {sB}, {sB}, 10
            s_and_b32 {sA}, {sA}, 1
            s_lshl_b32 {sA}, {sA}, 3
            s_add_u32 {sA}, {sA}, {sB}
            s_add_u32 {sA}, {sA}, {L_T}
            v_add_u32 {x}, {sA}, {vL16}""")
        e(f"""s_and_b32 {sA}, {sW}, 1
        s_lshl_b32 {sA}, {sA}, 4
        v_add_u32 {t0}, {sA}, {vC}
        v_lshlrev_b32 {t1}, 2, {vG}""")
        for i in range(8):
            e(f"""v_add_u32 {t2}, {16 * (i >> 2) + (i & 3)}, {t1}
            v_cmp_le_u32 s[{40 + 2 * i}:{41 + 2 * i}], {t2}, {t0}""")

    def init_marks():
        IL = p.label('IL')
        mk = buf[0:4]
        for i in range(4):
            e(f'v_mov_b32 {mk[i]}, -1')
        e(f's_mov_b32 {sO}, s11')
        if not isY:
            e(f"""v_lshlrev_b32 {t0}, 2, {vL}
            s_cmp_ge_u32 {sW}, 2
            s_cbranch_scc1 {IL}x""")
        e(f'{IL}:')
        if isY:
            e(f"""s_lshl_b32 {sA}, {sO}, 17
            s_add_u32 {sA}, {sA}, {WS_YMA}
            buffer_store_dwordx4 {mk}, {x1}, {sWS}, {sA} offen sc1
            buffer_store_dwordx4 {mk}, {x2}, {sWS}, {sA} offen sc1""")
        else:
            e(f"""s_lshl_b32 {sA}, {sO}, 1
            s_add_u32 {sA}, {sA}, {sW}
            s_lshl_b32 {sA}, {sA}, 4
            s_add_u32 {sA}, {sA}, s10
            s_lshl_b32 {sB}, {sA}, 10
            s_add_u32 {sB}, {sB}, {WS_PX}
            s_lshl_b32 {sA}, {sA}, 8
            s_add_u32 {sA}, {sA}, {WS_PM}
            buffer_store_dwordx4 {mk}, {vL16}, {sWS}, {sB} offen sc1
            buffer_store_dword {mk[0]}, {t0}, {sWS}, {sA} offen sc1""")
        e(f"""s_add_u32 {sO}, {sO}, {NRY}
        s_cmp_lt_u32 {sO}, 64
        s_cbranch_scc1 {IL}
        {IL}x:
        v_mov_b32 {vCA}, {C_INIT}""")
        signal(p, vCA, t0)
    e('s_waitcnt vmcnt(0)')
    if not isY:
        init_marks()
    tl(p, 1, 's100', TLB)
    JOB = p.label('JOB')
    nst = 7 if isY else 2
    ndma = 7 if isY else 14
    e(f"""{JOB}:
    s_waitcnt vmcnt({nst}) lgkmcnt(0)
    s_barrier""")

    def rd(q):
        return [f'ds_read_b128 {buf[16 * (q & 1) + 4 * i:16 * (q & 1) + 4 * i + 4]}, {vXB} offset:{xnb_blk(q) * 4096 + i * 1024}'
                for i in range(4)]
    for l in rd(0):
        e(l)
    if not isY:
        e(f"""s_lshl_b32 {sA}, {sS}, 15
        s_lshr_b32 {sB}, {sW}, 1
        s_lshl_b32 {sB}, {sB}, 11
        s_add_u32 {sA}, {sA}, {sB}
        s_add_u32 {sA}, {sA}, {sW7}
        s_add_u32 {sA}, {sA}, {WS_XNA}
        s_add_u32 m0, {sW7}, {L_XA}""")
        for i in range(7):
            if i == 4:
                e(f's_add_u32 {sA}, {sA}, 4096\ns_add_u32 m0, m0, 4096')
            e(f'buffer_load_dwordx4 {vL16}, {sWS}, {sA} offen offset:{(i & 3) * 1024} sc1 lds')
    e(f"""s_add_u32 {sB}, {sS}, {NRY}
    s_min_u32 {sB}, {sB}, 63
    s_xor_b32 {sCur}, {sCur}, 32768""")
    xb_dma(sB, sCur)
    for q in range(7):
        side = rd(q + 1) if q < 6 else []
        e('s_waitcnt lgkmcnt(0)')
        if q == 4 and isY:
            SG = p.label('SG')
            e(f"""s_waitcnt vmcnt({ndma})
            s_barrier
            s_cmp_lg_u32 {sW}, 0
            s_cbranch_scc1 {SG}
            v_mov_b32 {t0}, 1
            v_mov_b32 {vCA}, {sPrev}
            s_mov_b64 exec, 1
            buffer_atomic_add {t0}, {vCA}, {sWS}, {sCN} offen
            s_mov_b64 exec, -1
            {SG}:""")
        n = 0
        for rh in range(2):
            for t in range(7):
                for kt in range(2):
                    d = acc[8 * t + 4 * kt:8 * t + 4 * kt + 4]
                    xa = buf[16 * (q & 1) + 8 * kt + 4 * rh:16 * (q & 1) + 8 * kt + 4 * rh + 4]
                    wf = frag[(t, q)][4 * rh:4 * rh + 4]
                    c = 0 if (q == 0 and rh == 0) else d
                    if isY:
                        e(f'v_mfma_f32_16x16x32_bf16 {d}, {xa}, {wf}, {c}')
                    else:
                        e(f'v_mfma_f32_16x16x32_bf16 {d}, {wf}, {xa}, {c}')
                    if side and n % 4 == 1:
                        e(side.pop(0))
                    n += 1
    e(f'v_xor_b32 {vXB}, 32768, {vXB}')
    if isY:
        e(f"""s_mul_i32 {sO}, {sS}, {28 * 16384}
        s_mul_i32 {sA}, {sW}, {7 * 16384}
        s_add_u32 {sO}, {sO}, {sA}
        s_lshl_b32 {sA}, s10, 10
        s_add_u32 {sO}, {sO}, {sA}
        s_add_u32 {sO}, {sO}, {WS_YX}""")
        for t in range(7):
            a = acc[8 * t:8 * t + 8]
            for i in range(4):
                e(f'v_cvt_pk_bf16_f32 {a[i]}, {a[2 * i]}, {a[2 * i + 1]}')
            e(f"""buffer_store_dwordx4 {a[0:4]}, {vL16}, {sWS}, {sO} offen sc1
            s_add_u32 {sO}, {sO}, 16384""")
        NF = p.label('NF')
        e(f"""s_lshl_b32 {sPrev}, {sS}, 2
        s_cmp_lg_u32 {sS}, s11
        s_cbranch_scc1 {NF}
        v_mov_b32 {vCA}, {sPrev}
        s_mov_b32 {sPrev}, {OOB}""")
        signal(p, vCA, t0)
        tl(p, 2, 's100', TLB)
        e(f"""{NF}:
        s_sub_u32 {sA}, {sS}, s11
        s_cmp_lg_u32 {sA}, {5 * NRY}
        s_cbranch_scc1 {NF}x
        v_and_b32 {vCA}, 31, {vL}
        v_lshlrev_b32 {vCA}, 2, {vCA}
        v_add_u32 {vCA}, {C_LN}, {vCA}""")
        wait_ge(p, vCA, t0, 1, 8)
        e(f"""{NF}x:
        s_add_u32 {sS}, {sS}, {NRY}
        s_cmp_lt_u32 {sS}, 64
        s_cbranch_scc1 {JOB}
        v_mov_b32 {vCA}, {sPrev}""")
        signal(p, vCA, t0)
        init_marks()
        tl(p, 3, 's100', TLB)
        MJ = p.label('MJ')
        e(f"""s_mov_b32 {sS}, s11
        {MJ}:""")
        for i in range(28):
            e(f'v_mov_b32 {acc[i]}, 0')
        mem_wait()
        for k in range(7):
            for t in range(7):
                e(f'v_smfmac_f32_16x16x64_bf16 {acc[4 * t:4 * t + 4]}, {buf[4 * k:4 * k + 4]}, {frag[(t, k)]}, {vIdx}')
        o = acc[32:40]
        for t in range(7):
            a = acc[4 * t:4 * t + 4]
            e(f"""v_add_f32 {a[0]}, {a[0]}, {a[2]}
            v_add_f32 {a[1]}, {a[1]}, {a[3]}
            v_cvt_pk_bf16_f32 {o[t]}, {a[0]}, {a[1]}""")
        e(f"""v_mov_b32 {o[7]}, 0
        s_lshl_b32 {sO}, {sS}, 17
        s_add_u32 {sO}, {sO}, {WS_YMA}""")
        for b in (0, 4):
            e(f"""v_permlane32_swap_b32 {o[b]}, {o[b + 2]}
            v_permlane32_swap_b32 {o[b + 1]}, {o[b + 3]}
            v_permlane16_swap_b32 {o[b]}, {o[b + 1]}
            v_permlane16_swap_b32 {o[b + 2]}, {o[b + 3]}
            buffer_store_dwordx4 {o[b:b + 4]}, {x1 if b == 0 else x2}, {sWS}, {sO} offen sc1""")
        e(f"""s_add_u32 {sS}, {sS}, {NRY}
        s_cmp_lt_u32 {sS}, 64
        s_cbranch_scc1 {MJ}""")
        tl(p, 4, 's100', TLB)
        e('s_endpgm')
        return
    for t in range(7):
        for qt in range(2):
            a = acc[8 * t + 4 * qt:8 * t + 4 * qt + 4]
            e(f"""v_cvt_pk_bf16_f32 {a[0]}, {a[0]}, {a[1]}
            v_cvt_pk_bf16_f32 {a[1]}, {a[2]}, {a[3]}
            ds_write_b64 {x2 if (t & 1) else x1}, {a[0:2]} offset:{(t >> 1) * 1024 + qt * 14336}""")
    SK = p.label('TSK')
    e(f"""s_waitcnt vmcnt(0) lgkmcnt(0)
    s_barrier
    s_cmp_ge_u32 {sW}, 2
    s_cbranch_scc1 {SK}
    s_mul_i32 {sA}, {sW}, 14336
    s_add_u32 {sA}, {sA}, {L_T}
    v_add_u32 {t0}, {sA}, {vL16}
    v_add_u32 {t2}, {L_XA}, {vL16}""")
    for th in range(14):
        e(f'ds_read_b128 {acc[4 * th:4 * th + 4]}, {t0} offset:{th * 1024}')
    e('s_waitcnt lgkmcnt(6)')

    def xa_rd(i):
        e(f'ds_read_b128 {buf[4 * (i & 7):4 * (i & 7) + 4]}, {t2} offset:{i * 1024}')
    for i in range(8):
        xa_rd(i)
    for i in range(28):
        kt, th = i // 14, i % 14
        e(f's_waitcnt lgkmcnt({min(7, 27 - i)})')
        d = Sx[4 * kt:4 * kt + 4]
        e(f'v_mfma_f32_16x16x32_bf16 {d}, {buf[4 * (i & 7):4 * (i & 7) + 4]}, {acc[4 * th:4 * th + 4]}, {0 if th == 0 else d}')
        if i + 8 < 28:
            xa_rd(i + 8)
    e(f'v_mov_b32 {t1}, 0xff800000')
    for i in range(8):
        e(f'v_cndmask_b32 {Sx[i]}, {t1}, {Sx[i]}, s[{40 + 2 * i}:{41 + 2 * i}]')
    e(f"""v_max3_f32 {t2}, {Sx[0]}, {Sx[1]}, {Sx[2]}
    v_max3_f32 {t2}, {t2}, {Sx[3]}, {Sx[4]}
    v_max3_f32 {t2}, {t2}, {Sx[5]}, {Sx[6]}
    v_max_f32 {t2}, {t2}, {Sx[7]}""")
    mem_wait()
    for k in range(7):
        for v in range(2):
            d = Sm[4 * v:4 * v + 4]
            e(f'v_mfma_f32_16x16x32_bf16 {d}, {buf[4 * k:4 * k + 4]}, {acc[4 * (2 * k + v):4 * (2 * k + v) + 4]}, {0 if k == 0 else d}')
    vals = [Sx[i] for i in range(8)] + [Sm[0], Sm[1]]

    def allred(op):
        e(f"""v_mov_b32 {t1}, {t0}
        v_permlane16_swap_b32 {t0}, {t1}
        v_{op}_f32 {t0}, {t0}, {t1}
        v_mov_b32 {t1}, {t0}
        v_permlane32_swap_b32 {t0}, {t1}
        v_{op}_f32 {t0}, {t0}, {t1}""")
    e(f"""s_lshl_b32 {sA}, {sS}, 1
    s_add_u32 {sA}, {sA}, {sW}
    s_lshl_b32 {sA}, {sA}, 4
    s_add_u32 {sA}, {sA}, s10            ; (s*2+qt)*16 + h
    s_lshl_b32 {sB}, {sA}, 10
    s_add_u32 {sB}, {sB}, {WS_PX}
    s_lshl_b32 {sA}, {sA}, 8
    s_add_u32 {sA}, {sA}, {WS_PM}
    v_add_f32 {Sm[0]}, {Sm[0]}, {Sm[6]}
    v_add_f32 {Sm[1]}, {Sm[1]}, {Sm[7]}
    v_max3_f32 {t0}, {t2}, {Sm[0]}, {Sm[1]}""")
    allred('max')
    for v in vals:
        e(f'v_sub_f32 {v}, {v}, {t0}')
    for v in vals:
        e(f'v_exp_f32 {v}, {v}')
    e(f'v_add_f32 {t0}, {vals[0]}, {vals[1]}')
    for v in vals[2:]:
        e(f'v_add_f32 {t0}, {t0}, {v}')
    allred('add')
    e(f'v_rcp_f32 {t0}, {t0}')
    for v in vals:
        e(f'v_mul_f32 {v}, {v}, {t0}')
    for i in range(4):
        e(f'v_cvt_pk_bf16_f32 {Sx[i]}, {Sx[2 * i]}, {Sx[2 * i + 1]}')
    e(f"""v_cvt_pk_bf16_f32 {Sm[0]}, {Sm[0]}, {Sm[1]}
    buffer_store_dwordx4 {Sx[0:4]}, {vL16}, {sWS}, {sB} offen sc1
    v_lshlrev_b32 {t0}, 4, {vC}
    v_lshl_add_u32 {t0}, {vG}, 2, {t0}
    buffer_store_dword {Sm[0]}, {t0}, {sWS}, {sA} offen sc1
    {SK}:
    s_add_u32 {sS}, {sS}, {NRY}
    s_cmp_lt_u32 {sS}, 64
    s_cbranch_scc1 {JOB}""")
    tl(p, 4, 's100', TLB)
    e('s_endpgm')


def f_worker(p):
    e = p.e
    V = Alloc('v', 1, 256)
    vL, vG, vC, t0, t1, t2, vL16, vCA, vB1 = (V.get() for _ in range(9))
    vQ = [V.get() for _ in range(7)]
    vRo = [V.get() for _ in range(4)]
    vGo = [V.get() for _ in range(4)]
    H = V.get(8, 4)
    Bs = V.get(4, 4)
    acc = V.get(112, 4)
    XF = V.get(56, 4)
    PA = V.get(40, 4)
    sS, sXx, sA, sB, sC, sI, sF1, sF2 = 's12', 's13', 's14', 's15', 's32', 's33', 's34', 's35'
    rW1, rW2, rB1, rB2 = 's[16:19]', 's[20:23]', 's[24:27]', 's[28:31]'
    rX, rO = 's[40:43]', 's[44:47]'
    srd(e, 16, 64, 448 * 1792 * 2)
    srd(e, 20, 80, 448 * 1792 * 2)
    srd(e, 24, 72, 1792 * 2)
    srd(e, 28, 88, 448 * 2)
    srd(e, 40, 0, S * D * 2)
    srd(e, 44, 96, S * D * 2)
    e(f'''v_and_b32 {vL}, 63, v0
    v_lshrrev_b32 {vG}, 4, {vL}
    v_and_b32 {vC}, 15, {vL}
    v_lshlrev_b32 {vL16}, 4, {vL}
    v_lshlrev_b32 {vB1}, 3, {vG}
    s_mov_b32 {sTO}, {TIMEOUT}
    s_mov_b32 {sCN}, {WS_CNT}
    s_lshr_b32 {sS}, s10, 1
    s_and_b32 {sXx}, s10, 1''')
    for q in range(7):
        e(f'v_add_u32 {vQ[q]}, {q * 4096}, {vL16}')
    go_wait(p, vCA, t0, sA)
    e(f'''v_mul_u32_u24 {t0}, {4 * 3584}, {vG}
    v_lshl_add_u32 {t0}, {vC}, 1, {t0}            ; w1 voffset
    v_mul_u32_u24 {t1}, {4 * 896}, {vG}
    v_and_b32 {t2}, 7, {vC}
    v_lshl_add_u32 {t1}, {t2}, 1, {t1}
    v_lshrrev_b32 {t2}, 3, {vC}
    v_lshl_add_u32 {t1}, {t2}, 6, {t1}            ; w2 voffset
    s_lshl_b32 {sI}, s10, 2
    s_add_u32 {sI}, {sI}, {sW}
    s_waitcnt lgkmcnt(0)''')
    C0 = p.label('CV')
    e(f'''{C0}:
    ; W1F id -> ft = id/14, rem = id%14 -> byte (64*chunk + 16*rh)*3584 + 32*ft
    s_mul_i32 {sA}, {sI}, 4682
    s_lshr_b32 {sA}, {sA}, 16
    s_mul_i32 {sB}, {sA}, 14
    s_sub_u32 {sB}, {sI}, {sB}
    s_lshl_b32 {sA}, {sA}, 5
    s_lshr_b32 {sC}, {sB}, 1
    s_mul_i32 {sC}, {sC}, {64 * 3584}
    s_add_u32 {sA}, {sA}, {sC}
    s_and_b32 {sB}, {sB}, 1
    s_mul_i32 {sB}, {sB}, {16 * 3584}
    s_add_u32 {sA}, {sA}, {sB}''')
    for el in range(8):
        rho, b = el >> 1, el & 1
        e(f'''s_add_u32 {sB}, {sA}, {(32 * (rho & 1) + 2 * (rho >> 1) + b) * 3584}
        buffer_load_ushort {acc[el]}, {t0}, {rW1}, {sB} offen''')
    e(f'''; W2F id -> F = id/28, j = id%28 -> byte 32F*896 + (64*(j>>2) + 8*(j&3))*2
    s_mul_i32 {sA}, {sI}, 2341
    s_lshr_b32 {sA}, {sA}, 16
    s_mul_i32 {sB}, {sA}, 28
    s_sub_u32 {sB}, {sI}, {sB}
    s_mul_i32 {sA}, {sA}, {32 * 896}
    s_lshr_b32 {sC}, {sB}, 2
    s_lshl_b32 {sC}, {sC}, 7
    s_add_u32 {sA}, {sA}, {sC}
    s_and_b32 {sB}, {sB}, 3
    s_lshl_b32 {sB}, {sB}, 4
    s_add_u32 {sA}, {sA}, {sB}
    s_add_u32 {sB}, {sA}, {16 * 896}''')
    for el in range(8):
        e(f'buffer_load_ushort {acc[8 + el]}, {t1}, {rW2}, {sA if el < 4 else sB} offen offset:{(el & 3) * 896}')
    e(f'''s_lshl_b32 {sA}, {sI}, 10
    s_add_u32 {sB}, {sA}, {WS_W2F}
    s_add_u32 {sA}, {sA}, {WS_W1F}
    s_waitcnt vmcnt(0)''')
    for i in range(8):
        e(f'v_lshl_or_b32 {acc[16 + i]}, {acc[2 * i + 1]}, 16, {acc[2 * i]}')
    e(f'''buffer_store_dwordx4 {acc[16:20]}, {vL16}, {sWS}, {sA} offen sc1
    buffer_store_dwordx4 {acc[20:24]}, {vL16}, {sWS}, {sB} offen sc1
    s_add_u32 {sI}, {sI}, 512
    s_cmp_lt_u32 {sI}, 1568
    s_cbranch_scc1 {C0}
    v_mov_b32 {vCA}, {C_WF}''')
    signal(p, vCA, t0)
    e(f'''s_lshl_b32 {sA}, {sS}, 15
    s_lshl_b32 {sB}, {sXx}, 11
    s_add_u32 {sA}, {sA}, {sB}
    s_add_u32 {sA}, {sA}, {WS_XNB}''')
    for k in range(7):
        for rh in range(2):
            e(f'buffer_load_dwordx4 {XF[8 * k + 4 * rh:8 * k + 4 * rh + 4]}, {vQ[xnb_blk(k)]}, {sWS}, {sA} offen offset:{rh * 1024} sc1')
    for i in range(112):
        e(f'v_mov_b32 {acc[i]}, 0')
    e(f's_mov_b32 {sA}, 128')
    wait_ge(p, vCA, t0, sA, 8)
    tl(p, 1, 's100', WS_TL + 16384)
    bA = R('a', 0, 112)
    bB = R('a', 112, 112)

    def blk_load(dst, so, i):
        return f'buffer_load_dwordx4 {dst[4 * i:4 * i + 4]}, {vQ[i >> 2]}, {sWS}, {so} offen offset:{(i & 3) * 1024} sc1'
    e(f'''s_mul_i32 {sF1}, {sW}, 28672
    s_add_u32 {sF2}, {sF1}, {WS_W2F}
    s_add_u32 {sF1}, {sF1}, {WS_W1F}
    s_lshl_b32 {sC}, {sW}, 6
    s_mov_b32 {sI}, 0''')
    for i in range(28):
        e(blk_load(bA, sF1, i))
    FL = p.label('FL')
    e(f'''{FL}:
    buffer_load_dwordx2 {Bs[0:2]}, {vB1}, {rB1}, {sC} offen
    buffer_load_dwordx2 {Bs[2:4]}, {vB1}, {rB1}, {sC} offen offset:32
    s_add_u32 {sF1}, {sF1}, {4 * 28672}''')
    for i in range(28):
        a, kk = i // 14, i % 14
        e(f's_waitcnt vmcnt({29})')
        d = H[4 * a:4 * a + 4]
        e(f'v_mfma_f32_16x16x32_bf16 {d}, {bA[4 * i:4 * i + 4]}, {XF[4 * kk:4 * kk + 4]}, {0 if kk == 0 else d}')
        e(blk_load(bB, sF2, i))
    e('s_waitcnt vmcnt(28)')
    for i in range(4):
        a, b = H[2 * i], H[2 * i + 1]
        e(f'''v_cvt_pk_bf16_f32 {t0}, {a}, {b}
        v_lshlrev_b32 {a}, 16, {t0}
        v_and_b32 {b}, 0xffff0000, {t0}
        v_lshlrev_b32 {t1}, 16, {Bs[i]}
        v_and_b32 {t2}, 0xffff0000, {Bs[i]}
        v_add_f32 {a}, {a}, {t1}
        v_add_f32 {b}, {b}, {t2}
        v_cvt_pk_bf16_f32 {t0}, {a}, {b}
        v_lshlrev_b32 {a}, 16, {t0}
        v_and_b32 {b}, 0xffff0000, {t0}
        v_max_f32 {a}, 0, {a}
        v_max_f32 {b}, 0, {b}
        v_mul_f32 {a}, {a}, {a}
        v_mul_f32 {b}, {b}, {b}
        v_cvt_pk_bf16_f32 {PA[i]}, {a}, {b}''')
    for i in range(28):
        e(f's_waitcnt vmcnt({27})')
        d = acc[4 * i:4 * i + 4]
        e(f'v_mfma_f32_16x16x32_bf16 {d}, {PA[0:4]}, {bB[4 * i:4 * i + 4]}, {d}')
        e(blk_load(bA, sF1, i))
    e(f'''s_add_u32 {sF2}, {sF2}, {4 * 28672}
    s_add_u32 {sC}, {sC}, 256
    s_add_u32 {sI}, {sI}, 1
    s_cmp_lt_u32 {sI}, 14
    s_cbranch_scc1 {FL}''')

    def reduce_write(ntile, nq, rowb):
        e(f'''v_mul_u32_u24 {t0}, {4 * rowb}, {vG}
        v_lshl_add_u32 {t0}, {vC}, 2, {t0}
        s_lshl_b32 {sA}, {sW}, 15
        v_add_u32 {t0}, {sA}, {t0}''')
        u = rowb // 256
        for tt in range(ntile):
            for qt in range(nq):
                a = acc[4 * (tt * nq + qt):4 * (tt * nq + qt) + 4]
                for r in (0, 2):
                    o = (16 * qt + r) * u
                    e(f'ds_write2st64_b32 {t0}, {a[r]}, {a[r + 1]} offset0:{o} offset1:{o + u}')
            e(f'v_add_u32 {t0}, 64, {t0}')
        e('s_waitcnt lgkmcnt(0)\ns_barrier')

    def reader_setup(nunit, rowb, jbase_sgpr, rowbase_sgpr):
        mul = {56: 1171, 28: 2341}[nunit]
        for rd in range(4):
            e(f'''v_add_u32 {t0}, {256 * rd}, v0
            v_mul_u32_u24 {t1}, {mul}, {t0}
            v_lshrrev_b32 {t1}, 16, {t1}                 ; token
            v_mul_u32_u24 {t2}, {nunit}, {t1}
            v_sub_u32 {t2}, {t0}, {t2}                   ; q
            v_mul_u32_u24 {vRo[rd]}, {rowb}, {t1}
            v_lshl_add_u32 {vRo[rd]}, {t2}, 5, {vRo[rd]}
            v_add_u32 {t1}, {rowbase_sgpr}, {t1}
            v_mul_u32_u24 {vGo[rd]}, 896, {t1}
            v_and_b32 {t1}, 1, {t2}
            v_lshl_add_u32 {vGo[rd]}, {t1}, 6, {vGo[rd]}
            v_lshrrev_b32 {t2}, 1, {t2}
            v_add_u32 {t2}, {jbase_sgpr}, {t2}           ; j
            v_lshrrev_b32 {t1}, 2, {t2}
            v_lshl_add_u32 {vGo[rd]}, {t1}, 7, {vGo[rd]}
            v_and_b32 {t1}, 3, {t2}
            v_lshl_add_u32 {vGo[rd]}, {t1}, 4, {vGo[rd]}''')
        e(f'''v_cmp_gt_u32 vcc, 128, v0
        v_mov_b32 {t0}, {OOB}
        v_cndmask_b32 {vGo[3]}, {t0}, {vGo[3]}, vcc
        v_cndmask_b32 {vRo[3]}, 0, {vRo[3]}, vcc''')

    def reduce_read(rd, dst):
        e(f'v_add_u32 {t0}, 65536, {vRo[rd]}')
        for ww in range(4):
            ad = vRo[rd] if ww < 2 else t0
            for hh in range(2):
                e(f'ds_read_b128 {dst[8 * ww + 4 * hh:8 * ww + 4 * hh + 4]}, {ad} offset:{(ww & 1) * 32768 + hh * 16}')
        e('s_waitcnt lgkmcnt(0)')
        for i in range(8):
            e(f'''v_add_f32 {dst[i]}, {dst[i]}, {dst[8 + i]}
            v_add_f32 {dst[16 + i]}, {dst[16 + i]}, {dst[24 + i]}
            v_add_f32 {dst[i]}, {dst[i]}, {dst[16 + i]}''')

    def add_packed(vals, pk):
        for i in range(4):
            a, b = vals[2 * i], vals[2 * i + 1]
            e(f'''v_cvt_pk_bf16_f32 {t0}, {a}, {b}
            v_lshlrev_b32 {a}, 16, {t0}
            v_and_b32 {b}, 0xffff0000, {t0}
            v_lshlrev_b32 {t1}, 16, {pk[i]}
            v_and_b32 {t2}, 0xffff0000, {pk[i]}
            v_add_f32 {a}, {a}, {t1}
            v_add_f32 {b}, {b}, {t2}''')

    e('s_waitcnt vmcnt(0)')
    reduce_write(28, 1, 2048)
    e(f'''s_mov_b32 {sA}, 0
    s_mov_b32 {sB}, 0''')
    reader_setup(56, 2048, sA, sB)
    e(f'''s_lshl_b32 {sB}, s10, 4
    s_mul_i32 {sB}, {sB}, 896
    s_add_u32 {sB}, {sB}, {WS_BASE}''')
    for rd in range(4):
        e(f'''v_lshrrev_b32 {t1}, 11, {vRo[rd]}
        v_mul_u32_u24 {t1}, 896, {t1}
        v_sub_u32 {t1}, {vGo[rd]}, {t1}
        buffer_load_dwordx4 {PA[4 * rd:4 * rd + 4]}, {t1}, {rB2}, 0 offen''')
    for rd in range(4):
        d = XF[0:32]
        reduce_read(rd, d)
        e(f's_waitcnt vmcnt({3})' if False else 's_waitcnt vmcnt(0)')
        add_packed(d, PA[4 * rd:4 * rd + 4])
        o = XF[32 + 4 * rd:36 + 4 * rd]
        for i in range(4):
            e(f'v_cvt_pk_bf16_f32 {o[i]}, {d[2 * i]}, {d[2 * i + 1]}')
    for rd in range(4):
        e(f'buffer_store_dwordx4 {XF[32 + 4 * rd:36 + 4 * rd]}, {vGo[rd]}, {sWS}, {sB} offen sc1')
    e(f'''s_lshl_b32 {sA}, {sS}, 7
    s_add_u32 {sA}, {sA}, {C_PY}
    v_mov_b32 {vCA}, {sA}''')
    signal(p, vCA, t0)
    tl(p, 2, 's100', WS_TL + 16384)
    sCG = 's36'
    e(f"""s_cmp_ge_u32 s10, 126
    s_cbranch_scc1 EXIT
    s_mul_i32 {sS}, s10, 147
    s_lshr_b32 {sS}, {sS}, 10
    s_mul_i32 {sCG}, {sS}, 7
    s_sub_u32 {sCG}, s10, {sCG}
    v_mov_b32 {vCA}, {C_INIT}
    s_mov_b32 {sA}, {32 * NRY}""")
    wait_ge(p, vCA, t0, sA, 16)
    YB = R('a', 0, 64)
    XR, BR = XF[16:20], XF[20:24]
    YM = XF[0:16]
    vWr, vRd, vG2 = vRo[0], vRo[1], vGo[0]
    e(f"""; LDS write: w*8192 + 4g*256 + ((n&7) + 32*(n>>3))*4
    v_lshlrev_b32 {vWr}, 10, {vG}
    v_and_b32 {t0}, 7, {vC}
    v_lshl_add_u32 {vWr}, {t0}, 2, {vWr}
    v_lshrrev_b32 {t0}, 3, {vC}
    v_lshl_add_u32 {vWr}, {t0}, 7, {vWr}
    s_lshl_b32 {sA}, {sW}, 13
    v_add_u32 {vWr}, {sA}, {vWr}
    v_lshlrev_b32 {vRd}, 5, v0
    v_lshrrev_b32 {t0}, 3, v0
    v_mul_u32_u24 {vG2}, 896, {t0}
    v_and_b32 {t0}, 7, v0
    v_lshl_add_u32 {vG2}, {t0}, 4, {vG2}
    s_lshl_b32 {sA}, {sCG}, 7
    v_add_u32 {vG2}, {sA}, {vG2}""")
    J2 = p.label('J2')
    e(f"""{J2}:
    s_lshl_b32 {sA}, {sS}, 2
    v_mov_b32 {vCA}, {sA}
    s_mov_b32 {sA}, 16""")
    wait_ge(p, vCA, t0, sA, 8)
    e(f"""s_lshl_b32 {sA}, {sS}, 7
    s_add_u32 {sA}, {sA}, {C_PY}
    v_mov_b32 {vCA}, {sA}
    s_mov_b32 {sA}, 2""")
    wait_ge(p, vCA, t0, sA, 8)
    e(f"""s_mul_i32 {sA}, {sS}, {28 * 16384}
    s_lshl_b32 {sB}, {sCG}, 16
    s_add_u32 {sA}, {sA}, {sB}
    s_lshl_b32 {sB}, {sW}, 12
    s_add_u32 {sA}, {sA}, {sB}
    s_add_u32 {sA}, {sA}, {WS_YX}""")
    for tt in range(4):
        for hh in range(4):
            e(f'buffer_load_dwordx4 {YB[16 * tt + 4 * hh:16 * tt + 4 * hh + 4]}, {vL16}, {sWS}, {sA} offen offset:{hh * 1024} sc1')
        e(f's_add_u32 {sA}, {sA}, 16384')
    e(f"""s_mul_i32 {sI}, {sS}, {32 * 896}
    s_add_u32 {sB}, {sI}, {WS_BASE}
    buffer_load_dwordx4 {XR}, {vG2}, {rX}, {sI} offen
    buffer_load_dwordx4 {BR}, {vG2}, {sWS}, {sB} offen sc1
    s_lshl_b32 {sA}, {sS}, 13
    s_add_u32 {sA}, {sA}, {WS_MEMA}
    v_mov_b32 {t1}, 0""")
    load_valid(p, [f'buffer_load_dword {t2}, {t1}, {sWS}, {sA} offen sc1'], [t2], t0, 8)
    tl(p, 3, 's100', WS_TL + 16384)
    e(f"""s_lshl_b32 {sA}, {sS}, 15
    s_lshl_b32 {sB}, {sW}, 12
    s_add_u32 {sA}, {sA}, {sB}
    s_add_u32 {sA}, {sA}, {WS_PX}
    s_lshl_b32 {sF1}, {sS}, 13
    s_lshl_b32 {sB}, {sW}, 10
    s_add_u32 {sF1}, {sF1}, {sB}
    s_add_u32 {sF1}, {sF1}, {WS_PM}
    s_lshl_b32 {sF2}, {sS}, 17
    s_add_u32 {sF2}, {sF2}, {sB}
    s_lshl_b32 {sB}, {sCG}, 14
    s_add_u32 {sF2}, {sF2}, {sB}
    s_add_u32 {sF2}, {sF2}, {WS_YMA}""")
    lds_ = []
    for hh in range(4):
        for qt in range(2):
            lds_.append(f'buffer_load_dwordx4 {PA[8 * hh + 4 * qt:8 * hh + 4 * qt + 4]}, {vQ[4 * qt]}, {sWS}, {sA} offen offset:{hh * 1024} sc1')
    lds_ += [f'buffer_load_dwordx4 {PA[32 + 4 * qt:36 + 4 * qt]}, {vQ[qt]}, {sWS}, {sF1} offen sc1' for qt in range(2)]
    lds_ += [f'buffer_load_dwordx4 {YM[4 * tt:4 * tt + 4]}, {vQ[tt]}, {sWS}, {sF2} offen sc1' for tt in range(4)]
    load_valid(p, lds_, [PA[i] for i in range(40)] + [YM[i] for i in range(16)], t0, 1)
    for hh in range(5):
        for tt in range(4):
            for qt in range(2):
                d = acc[4 * (2 * tt + qt):4 * (2 * tt + qt) + 4]
                bb = YB[16 * tt + 4 * hh:16 * tt + 4 * hh + 4] if hh < 4 else YM[4 * tt:4 * tt + 4]
                e(f'v_mfma_f32_16x16x32_bf16 {d}, {PA[8 * hh + 4 * qt:8 * hh + 4 * qt + 4]}, {bb}, {0 if hh == 0 else d}')
    for tt in range(4):
        if tt:
            e(f'v_add_u32 {t0}, {32 * tt}, {vWr}')
        for qt in range(2):
            a_ = acc[4 * (2 * tt + qt):4 * (2 * tt + qt) + 4]
            for r in (0, 2):
                e(f'ds_write2st64_b32 {t0 if tt else vWr}, {a_[r]}, {a_[r + 1]} offset0:{16 * qt + r} offset1:{16 * qt + r + 1}')
    e('s_waitcnt lgkmcnt(0)\ns_barrier')
    d = acc[32:64]
    for ww in range(4):
        for hh in range(2):
            e(f'ds_read_b128 {d[8 * ww + 4 * hh:8 * ww + 4 * hh + 4]}, {vRd} offset:{ww * 8192 + hh * 16}')
    e('s_waitcnt lgkmcnt(0)\ns_barrier')
    for i in range(8):
        e(f"""v_add_f32 {d[i]}, {d[i]}, {d[8 + i]}
        v_add_f32 {d[16 + i]}, {d[16 + i]}, {d[24 + i]}
        v_add_f32 {d[i]}, {d[i]}, {d[16 + i]}""")
    add_packed(d, XR)
    add_packed(d, BR)
    o = acc[64:68]
    for i in range(4):
        e(f'v_cvt_pk_bf16_f32 {o[i]}, {d[2 * i]}, {d[2 * i + 1]}')
    e(f"""buffer_store_dwordx4 {o}, {vG2}, {rO}, {sI} offen
    s_add_u32 {sS}, {sS}, 18
    s_cmp_lt_u32 {sS}, 64
    s_cbranch_scc1 {J2}""")
    if TL_ON[0]:
        e('s_waitcnt vmcnt(0)')
    tl(p, 4, 's100', WS_TL + 16384)
    e('s_endpgm')
```

```python
import sys
from asmlib import *
from layout import *
import team, workers, prep
from team import *

NAME = 'parallel_sum__memory_aug_recurrent_mem_tr__dense_activation_squared_relu__prompt'
MAIN_LDS = 131072


def ready_wait(p, kind, lnmask=31):
    e = p.e
    L, W = p.label('RW'), p.label('RB')
    e(f"""s_cmp_lg_u32 {sWAVE}, 0
    s_cbranch_scc1 {W}
    s_mov_b32 s23, {WS_CNT}
    s_and_b32 s22, {sIDX}, 7
    s_lshl_b32 s22, s22, 7
    s_add_u32 s22, s22, {C_LN}
    v_and_b32 v1, {lnmask}, v0
    v_lshlrev_b32 v1, 2, v1
    v_add_u32 v1, s22, v1
    v_and_b32 v3, 15, v0
    v_min_u32 v3, 13, v3
    v_lshlrev_b32 v3, 2, v3""")
    if kind == 'one':
        e(f"""s_lshl_b32 s21, s21, 7
        s_add_u32 s21, s21, {C_MAT}
        v_add_u32 v3, s21, v3
        v_cmp_gt_u32 vcc, 32, v0
        v_cndmask_b32 v1, v3, v1, vcc""")
    if kind == 'vo':
        e(f"""v_lshrrev_b32 v2, 4, v0
        v_lshl_add_u32 v2, v2, 8, v3
        v_add_u32 v2, {C_MAT + 128}, v2""")
    e(f"""s_mov_b32 s22, 200000
    {L}:
    buffer_load_dword v3, v1, s[4:7], s23 offen sc1""")
    if kind == 'vo':
        e("""buffer_load_dword v5, v2, s[4:7], s23 offen sc1
        buffer_load_dword v6, v2, s[4:7], s23 offen offset:1024 sc1
        buffer_load_dword v7, v2, s[4:7], s23 offen offset:2048 sc1
        buffer_load_dword v8, v2, s[4:7], s23 offen offset:3072 sc1""")
    e(f"""s_sub_u32 s22, s22, 1
    s_cmp_gt_i32 s22, 0
    s_cbranch_scc0 {W}
    s_waitcnt vmcnt(0)""")
    if kind == 'vo':
        e('v_min3_u32 v3, v3, v5, v6\nv_min3_u32 v3, v3, v7, v8')
    e(f"""v_cmp_ne_u32 vcc, 1, v3
    s_cbranch_vccz {W}
    s_sleep 4
    s_branch {L}
    {W}:
    s_barrier""")


def done_flag(p, off_sgpr, nrep):
    e = p.e
    W, L, K = p.label('DW'), p.label('DL'), p.label('DK')
    e(f"""s_cmp_lg_u32 {sWAVE}, 0
    s_cbranch_scc1 {W}
    s_mov_b32 s91, 200000
    {L}:
    v_readfirstlane_b32 s92, v253
    s_cmp_eq_u32 s92, 1
    s_cbranch_scc1 {K}
    buffer_load_dword v253, v252, s[84:87], 0 offen sc1
    s_sub_u32 s91, s91, 1
    s_cmp_gt_i32 s91, 0
    s_waitcnt vmcnt(0)
    s_cbranch_scc1 {L}
    {K}:
    v_lshlrev_b32 v250, 7, v0
    v_add_u32 v250, {off_sgpr}, v250
    v_mov_b32 v251, {OOB}
    v_cmp_gt_u32 vcc, {nrep}, v0
    v_cndmask_b32 v250, v251, v250, vcc
    v_mov_b32 v251, 1
    s_mov_b32 s92, {WS_CNT}
    buffer_store_dword v251, v250, s[4:7], s92 offen sc1
    {W}:""")


def main_kernel(p, name, cfg):
    e = p.e
    srd = prep.srd
    WB = 448 * 8192
    e(f'{name}:')
    e(f"""s_cmp_ge_u32 s2, 256
    s_cbranch_scc1 EXIT""")
    srd(e, 84, 104, 256)
    srd(e, 4, 112, WS_BYTES)
    srd(e, 12, 32, WB)
    srd(e, 16, 40, WB)
    srd(e, 40, 16, WB)
    srd(e, 44, 24, WB)
    srd(e, 48, 0, S * D * 2)
    e(f"""v_lshrrev_b32 v1, 6, v0
    v_readfirstlane_b32 s9, v1
    s_getreg_b32 s88, hwreg(HW_REG_XCC_ID)
    s_and_b32 s88, s88, 7""")
    if cfg.fb:
        e("""s_bfe_u32 s20, s2, 0x10003
        s_cmp_eq_u32 s88, 0
        s_cselect_b32 s88, s20, s88""")
    e(f"""; optimistic slot (die, s2>>3); the claim is checked after the first jobs
    s_lshr_b32 s21, s2, 3
    s_mov_b32 {sSLOW}, 0
    s_lshl_b32 s20, s88, 2
    s_add_u32 s20, s20, 160
    s_lshl_b32 s93, 1, s21
    v_mov_b32 v249, s93
    v_mov_b32 v248, {OOB}
    v_mov_b32 v247, s20
    v_cmp_eq_u32 vcc, 0, v0
    v_cndmask_b32 v248, v248, v247, vcc
    v_mov_b32 v252, 16
    v_mov_b32 v253, 0
    s_waitcnt lgkmcnt(0)""")
    tl(p, 0, 's2', WS_TL)
    e(f"""s_cmp_lg_u32 s2, 248
    s_cbranch_scc1 NO_INIT
    ; one workgroup clears the hand-off words, then says so in d_debug
    v_lshlrev_b32 v1, 4, v0
    v_mov_b32 v4, 0
    v_mov_b32 v5, 0
    v_mov_b32 v6, 0
    v_mov_b32 v7, 0""")
    for i in range(6):
        e(f"""s_mov_b32 s20, {WS_CNT + i * 4096}
        buffer_store_dwordx4 v[4:7], v1, s[4:7], s20 offen sc1""")
    e("""s_waitcnt vmcnt(0)
    s_barrier
    v_mov_b32 v2, 1
    buffer_store_dword v2, v252, s[84:87], 0 offen sc1
    NO_INIT:""")
    claim = 'buffer_atomic_or v249, v248, s[84:87], 0 offen sc0'
    e(f"""SLOT:
    s_sub_u32 s22, s88, {cfg.xcc + 1}
    s_and_b32 s22, s22, 7
    s_cmp_eq_u32 s22, 7
    s_cbranch_scc1 PREP_LN
    s_mul_i32 s100, s21, 7
    s_add_u32 s100, s100, s22
    s_add_u32 s100, s100, 32
    s_lshl_b32 s20, s22, 5
    s_add_u32 s20, s20, s21             ; job
    s_mul_i32 s10, s20, 4682
    s_lshr_b32 s10, s10, 16             ; head
    s_mul_i32 s21, s10, 14
    s_sub_u32 s20, s20, s21
    s_lshr_b32 s11, s20, 1              ; chunk
    s_and_b32 s33, s20, 1
    s_lshl_b32 s89, s10, 8
    s_lshl_b32 s20, s20, 2
    s_add_u32 s89, s89, s20
    s_add_u32 s89, s89, {C_MAT}
    s_add_u32 s90, s89, 128""")
    tl(p, 0, 's100', WS_TL + 16384)

    def tn(t0, t1, vL):
        return [f'v_bfe_u32 {t0}, {vL}, 2, 3', f'v_lshlrev_b32 {t0}, 13, {t0}', f'v_and_b32 {t1}, 3, {vL}',
                f'v_lshl_add_u32 {t0}, {t1}, 7, {t0}', 's_lshl_b32 s31, s11, 19', 's_lshl_b32 s32, s33, 18',
                's_add_u32 s31, s31, s32', 's_lshl_b32 s32, s9, 16', 's_add_u32 s31, s31, s32', 's_add_u32 s31, s31, s21']
    tn.rA, tn.rB = 's[40:43]', 's[44:47]'
    prep.gemm_half(p, 1, 's[12:15]', 's[16:19]', tn, 2)
    e('buffer_load_dword v253, v252, s[84:87], 0 offen sc1')

    def sig1(n):
        e(f's_waitcnt vmcnt({n})\ns_barrier')
        done_flag(p, 's90', 1)
        if TL_ON[0]:
            e('s_memrealtime s[68:69]')
    prep.gemm_half(p, 0, 's[40:43]', 's[44:47]', None, 5, sig1, claim)
    e('s_waitcnt vmcnt(0)\ns_barrier')
    done_flag(p, 's89', 1)
    if TL_ON[0]:
        e(f's_lshl_b32 s98, s2, 6\ns_add_u32 s98, s98, {WS_TL}\nv_mov_b32 v255, 0\ns_waitcnt lgkmcnt(0)')
        for i in range(2, 7):
            e(f'v_mov_b32 v254, s{60 + 2 * i}\nbuffer_store_dword v254, v255, s[4:7], s98 offen offset:{4 * i}')
    e('s_branch PREP_DONE\nPREP_LN:')
    e(f"""s_mov_b32 s100, s21
    s_lshl_b32 s89, s21, 2
    s_add_u32 s89, s89, {C_LN}
    s_lshl_b32 s10, s21, 2
    s_add_u32 s10, s10, s9
    {claim}""")
    tl(p, 0, 's100', WS_TL + 16384)
    e("""s_cmp_ge_u32 s21, 16
    s_cselect_b32 s90, 0, 8
    s_cselect_b32 s10, 0, s10
    s_cbranch_scc1 LN_END
    LN_LOOP:""")
    mk = f"""
    v_and_b32 v250, 63, v0
    v_lshlrev_b32 v250, 4, v250
    v_mov_b32 v244, -1
    v_mov_b32 v245, -1
    v_mov_b32 v246, -1
    v_mov_b32 v247, -1
    s_lshl_b32 s20, s10, 12
    s_add_u32 s20, s20, {WS_MEMA}
    """ + '\n'.join(f'buffer_store_dwordx4 v[244:247], v250, s[4:7], s20 offen offset:{1024 * i} sc1' for i in range(4))
    prep.ln_job(p, 'sc1', ([], mk))
    e('LN_END:\nbuffer_load_dword v253, v252, s[84:87], 0 offen sc1\ns_waitcnt vmcnt(0)\ns_barrier')
    done_flag(p, 's89', 's90')
    e('s_cmp_ge_u32 s10, 64\ns_cbranch_scc1 F_CONT')
    e(f"""PREP_DONE:
    v_mov_b32 v4, 0
    s_cmp_lg_u32 s9, 0
    s_cbranch_scc1 EL_WAIT
    v_readfirstlane_b32 s20, v249
    s_and_b32 s20, s20, s93
    s_mov_b32 s21, -1
    s_cbranch_scc0 EL_PUB
    s_lshl_b32 s20, s88, 2
    s_add_u32 s20, s20, 192
    v_mov_b32 v1, 1
    v_mov_b32 v2, s20
    s_mov_b64 exec, 1
    buffer_atomic_add v1, v2, s[84:87], 0 offen sc0
    s_waitcnt vmcnt(0)
    s_mov_b64 exec, -1
    v_readfirstlane_b32 s94, v1
    v_and_b32 v1, 15, v0
    v_lshlrev_b32 v1, 2, v1
    s_mov_b32 s22, 200000
    EL_SUM:
    buffer_load_dword v3, v1, s[84:87], 0 offen offset:160 sc1
    s_waitcnt vmcnt(0)
    s_mov_b32 s23, 0""")
    for i in range(16):
        e(f'v_readlane_b32 s{24 + i}, v3, {i}')
    for i in range(8):
        e(f's_bcnt1_i32_b32 s20, s{24 + i}\ns_add_u32 s23, s23, s20\ns_add_u32 s23, s23, s{32 + i}')
    e(f"""s_sub_u32 s22, s22, 1
    s_cmp_gt_i32 s22, 0
    s_cbranch_scc0 EXIT
    s_cmp_lt_u32 s23, 256
    s_cbranch_scc1 EL_SUM
    v_readlane_b32 s95, v3, s88
    s_mov_b32 s21, 0
    s_bcnt0_i32_b32 s20, s95
    s_cmp_lt_u32 s94, s20
    s_cbranch_scc1 EL_BIT
    v_mov_b32 v1, 1
    v_mov_b32 v2, 4
    s_mov_b64 exec, 1
    buffer_atomic_add v1, v2, s[84:87], 0 offen sc0
    s_waitcnt vmcnt(0)
    s_mov_b64 exec, -1
    v_readfirstlane_b32 s22, v1
    s_mov_b32 s21, 256""")
    for i in range(8):
        e(f"""s_bcnt0_i32_b32 s20, s{24 + i}
        s_min_u32 s23, s20, s{32 + i}
        s_sub_u32 s20, s20, s23
        s_add_u32 s94, s23, s22
        s_mov_b32 s95, s{24 + i}
        s_mov_b32 s88, {i}
        s_cmp_lt_u32 s22, s20
        s_cbranch_scc1 EL_BIT
        s_sub_u32 s22, s22, s20""")
    e(f"""s_branch EXIT
    EL_BIT:
    s_ff0_i32_b32 s20, s95
    s_bitset1_b32 s95, s20
    s_sub_u32 s94, s94, 1
    s_cbranch_scc0 EL_BIT
    s_and_b32 s20, s20, 31
    s_add_u32 s21, s21, s20
    s_lshl_b32 s20, s88, 16
    s_add_u32 s21, s21, s20
    EL_PUB:
    v_mov_b32 v1, s21
    ds_write_b32 v4, v1
    s_waitcnt lgkmcnt(0)
    EL_WAIT:
    s_barrier
    ds_read_b32 v1, v4
    s_waitcnt lgkmcnt(0)
    v_readfirstlane_b32 s21, v1
    s_cmp_eq_u32 s21, -1
    s_cbranch_scc1 EL_OK
    s_barrier
    s_bfe_u32 {sSLOW}, s21, 0x10008
    s_bfe_u32 s88, s21, 0x30010
    s_and_b32 s21, s21, 31
    s_mov_b32 s93, 0
    v_mov_b32 v248, {OOB}
    s_branch SLOT
    EL_OK:""")
    tl(p, 1, 's2', WS_TL)
    srd(e, 16, 8, 7168)
    e(f's_mov_b32 {sIDX}, s100\ns_waitcnt lgkmcnt(0)')
    e(f"""s_cmp_ge_u32 {sIDX}, 32
    s_cbranch_scc1 WORKER
    s_and_b32 {sH}, {sIDX}, 15""")
    if cfg.diag:
        for i in range(NSTAMP):
            e(f's_mov_b32 s{STAMP0 + 2 * i}, 0')
    e(f"""s_cmp_ge_u32 {sIDX}, 16
    s_cbranch_scc1 ROLE_VO
    s_barrier""")
    wave_dispatch(e, 'QK')
    e(f"""ROLE_VO:
    s_cmp_ge_u32 {sH}, 14
    s_cbranch_scc1 ROLE_EN""")
    e('s_barrier')
    wave_dispatch(e, 'VO')
    e('ROLE_EN:')
    ready_wait(p, 'ln', 15)
    wave_dispatch(e, 'EN')
    e(f"""WORKER:
    s_sub_u32 s8, s8, 32
    s_cmp_ge_u32 s8, 96
    s_cbranch_scc1 ROLE_F
    s_cmp_ge_u32 s8, 48
    s_cselect_b32 s20, 48, 0
    s_sub_u32 s20, s8, s20            ; y
    s_cmp_ge_u32 s20, 42
    s_cbranch_scc1 WK_HI
    s_cmp_ge_u32 s20, 21
    s_cselect_b32 s21, 21, 0
    s_cselect_b32 s10, 7, 0
    s_sub_u32 s20, s20, s21
    s_mul_i32 s11, s20, 37
    s_lshr_b32 s11, s11, 8            ; replica
    s_mul_i32 s21, s11, 7
    s_sub_u32 s20, s20, s21
    s_add_u32 s10, s10, s20           ; head
    s_branch WK_GO
    WK_HI:
    s_cmp_ge_u32 s20, 45
    s_cselect_b32 s10, 15, 14
    s_cselect_b32 s21, 45, 42
    s_sub_u32 s11, s20, s21
    WK_GO:
    s_lshl_b32 s21, s10, 1
    s_cmp_ge_u32 s8, 48
    s_cbranch_scc1 ROLE_T
    s_add_u32 s21, s21, 1""")
    ready_wait(p, 'one', 15)
    tl(p, 5, 's100', WS_TL + 16384)
    workers.yt_worker(p, 0)
    e('EXIT:\ns_endpgm')
    e('ROLE_T:')
    ready_wait(p, 'one')
    workers.yt_worker(p, 1)
    e(f"""ROLE_F:
    s_cmp_ge_u32 s8, 112
    s_cbranch_scc1 F_CONT
    s_sub_u32 s10, s8, 80
    s_lshl_b32 s89, s10, 2
    s_add_u32 s89, s89, {C_LN}
    s_mov_b32 s90, 8
    s_lshl_b32 s10, s10, 2
    s_add_u32 s10, s10, s9
    s_branch LN_LOOP
    F_CONT:""")
    ready_wait(p, 'ln')
    e('s_sub_u32 s10, s8, 96')
    workers.f_worker(p)
    for role, nm in ((0, 'QK'), (1, 'VO'), (2, 'EN')):
        for w in range(4):
            e(f'{nm}{w}:')
            team_wave(p, role, w, cfg)


def build(cfg):
    TL_ON[0] = bool(cfg.tl)
    hdr = open('cdna_kernels/%s.s.ref' % NAME).read().split('; Override launch')[0]
    hdr += '; @launch grid=(256,1,1) block=(256,1,1) lds=%d\n' % max(prep.H_LDS, L_END, MAIN_LDS)
    hdr += '.amdgcn_target "amdgcn-amd-amdhsa--gfx950"\n.text\n'
    out = hdr
    p = Prog()
    main_kernel(p, NAME + '_kernel', cfg)
    out += '.globl %s_kernel\n.p2align 8\n.type %s_kernel,@function\n' % (NAME, NAME) + p.text()
    out += prep.KD % (NAME + '_kernel', 512)
    out = out.replace('\n    ', '\n')
    return out


def parse(args):
    cfg = Cfg()
    cfg.xcc = 0
    cfg.tl = 0
    cfg.fb = 0
    for a in args:
        k, v = a.split('=')
        assert hasattr(cfg, k), k
        setattr(cfg, k, int(v))
    return cfg


if __name__ == '__main__':
    open(sys.argv[1], 'w').write(build(parse(sys.argv[2:])))
```

```python
from asmlib import *
from layout import *

sWS = 's[4:7]'
sIDX, sWAVE, sSTEP = 's8', 's9', 's10'
sH = 's11'
sDBG = 's[12:15]'
sM0D = 's[16:19]'
sJ = 's24'
sMEM, sMEM2 = 's26', 's27'
sP, sPRST = 's28', 's29'
sMEMW, sMEMRST = 's32', 's33'
sT0, sT1, sT2, sT3 = 's34', 's35', 's36', 's37'
sTO = 's38'
sSTEP1 = 's39'
sYX = 's40'
sDA = 's41'
sFLG = 's43'
sTIME = 's[44:45]'
sTIME2 = 's[46:47]'
sV0 = 's[48:49]'
sCHK = 's[50:51]'
sXS, sXS2 = 's52', 's53'
sYXS, sYXS2 = 's64', 's65'
sYQ = ['s64', 's65', 's54', 's55']
sPQ = ['s20', 's21', 's22', 's23']
sRO = ['s56', 's57', 's58', 's59']
sSLOW = 's66'
sCNT = ['s68', 's69', 's70', 's71']
NSTAMP = 12
STAMP0 = 72

L_W = 0
L_SP = 4 * 14336
L_DUMP = L_SP + 4 * 1296
L_YM = 10 * 14336
L_TB = L_YM + 8192
L_END = L_TB + 64
NF2 = 14
OOB = 0x40000000
TIMEOUT = 200000
FLAG_STRIDE = 640
FLAG2_OFF = 4096 + 128
NREP = [4, 8]


class Cfg:
    stamps = 0
    dual = 1
    alone = 0
    diag = 1
    nsteps = 63
    fake = 0
    delay = 0
    vdelay = 0
    flagpos = 1
    pdelay = 0
    f2pos = 2
    nsc = 1
    gap = 14
    pdepth = 7
    pspace = 0
    vdepth = 2
    fz1 = 4
    fz2 = 6
    qtouch = 0
    vah = 4
    vpw = 0
    gapbar = 1
    qlate = 0
    lead = 4
    wtlb = 1
    gostep = 2
    qah = 4
    xsall = 1
    rot = 1
    qpace = 2
    chk = 2
    standin = 1
    nowait = 1
    nrep1 = 4
    nrep2 = 4
    qdepth = 5
    qstart = 0
    vstart = 64
    ppace = 0
    prio = 0
    bpos = 9
    vchk = 1
    selfpoll = 1
    nyx = 12
    tlb = 1
    xsb = 1
    pf = 3


def stamp(p, cfg, i):
    if cfg.stamps:
        p.e(f's_memtime s[{STAMP0 + 2 * i}:{STAMP0 + 2 * i + 1}]')


def nops(e, n):
    while n > 0:
        k = min(n, 16)
        e(f's_nop {k - 1}')
        n -= k


class VM:
    def __init__(self, e, cnt='vmcnt'):
        self.e, self.n, self.tag, self.cnt = e, 0, {}, cnt

    def issue(self, text, tag=None):
        self.e(text)
        self.n += 1
        if tag is not None:
            self.tag[tag] = self.n

    def wait(self, tag):
        self.e(f's_waitcnt {self.cnt}({self.n - self.tag[tag]})')


def team_barrier(p, w, vt):
    e = p.e
    e('s_waitcnt vmcnt(0) lgkmcnt(0)\ns_barrier')
    lp, done = p.label('TB'), p.label('TBD')
    e(f's_mov_b32 {sT0}, {WS_CNT + C_TB}')
    if w == 0:
        tl(p, 1, 's100', WS_TL + 16384)
        e(f"""v_lshlrev_b32 {vt[0]}, 7, v0
        s_lshl_b32 {sT1}, {sIDX}, 2
        v_add_u32 {vt[0]}, {sT1}, {vt[0]}
        v_mov_b32 {vt[1]}, {OOB}
        v_cmp_gt_u32 vcc, 4, v0
        v_cndmask_b32 {vt[0]}, {vt[1]}, {vt[0]}, vcc
        s_add_u32 {sT1}, {sSLOW}, 1
        v_mov_b32 {vt[1]}, {sT1}
        buffer_store_dword {vt[1]}, {vt[0]}, {sWS}, {sT0} offen sc1""")
        e(f"""v_and_b32 {vt[0]}, 31, v0
        v_lshlrev_b32 {vt[0]}, 2, {vt[0]}
        s_and_b32 {sT1}, {sIDX}, 3
        s_lshl_b32 {sT1}, {sT1}, 7
        s_add_u32 {sT0}, {sT0}, {sT1}
        {lp}:
        buffer_load_dword {vt[2]}, {vt[0]}, {sWS}, {sT0} offen sc1
        s_sub_u32 {sTO}, {sTO}, 1
        s_cmp_gt_i32 {sTO}, 0
        s_cbranch_scc0 {done}
        s_waitcnt vmcnt(0)
        v_cmp_eq_u32 vcc, 0, {vt[2]}
        s_cbranch_vccnz {lp}
        {done}:
        v_cmp_lt_u32 vcc, 1, {vt[2]}
        s_or_b32 {sSLOW}, vcc_lo, vcc_hi
        v_mov_b32 {vt[1]}, {sSLOW}
        v_mov_b32 {vt[0]}, {L_TB}
        ds_write_b32 {vt[0]}, {vt[1]}
        s_waitcnt lgkmcnt(0)""")
    e(f"""s_barrier
    v_mov_b32 {vt[0]}, {L_TB}
    ds_read_b32 {vt[1]}, {vt[0]}
    s_waitcnt lgkmcnt(0)
    v_readfirstlane_b32 {sSLOW}, {vt[1]}""")
    if w == 0:
        tl(p, 2, 's100', WS_TL + 16384)


def epilogue(p, w, cfg, vt):
    e = p.e
    if w == 0:
        tl(p, 3, 's100', WS_TL + 16384)
    if not cfg.diag:
        e('s_endpgm')
        return
    e(f"""s_memtime {sTIME2}
    s_waitcnt lgkmcnt(0) vmcnt(0)
    s_sub_u32 s46, s46, s44
    s_lshl_b32 {sT0}, {sIDX}, 2
    s_add_u32 {sT0}, {sT0}, {w}
    s_lshl_b32 {sT0}, {sT0}, 7
    s_add_u32 {sT0}, {sT0}, {WS_STAMP}
    v_mov_b32 {vt[0]}, 0
    v_mov_b32 {vt[1]}, s46
    buffer_store_dword {vt[1]}, {vt[0]}, {sWS}, {sT0} offen
    v_mov_b32 {vt[1]}, {sTO}
    buffer_store_dword {vt[1]}, {vt[0]}, {sWS}, {sT0} offen offset:4""")
    for i in range(NSTAMP):
        e(f"""v_mov_b32 {vt[1]}, s{STAMP0 + 2 * i}
        buffer_store_dword {vt[1]}, {vt[0]}, {sWS}, {sT0} offen offset:{64 + 4 * i}""")
    for i, c in enumerate(sCNT):
        e(f"""v_mov_b32 {vt[1]}, {c}
        buffer_store_dword {vt[1]}, {vt[0]}, {sWS}, {sT0} offen offset:{40 + 4 * i}""")
    if cfg.stamps:
        e(f's_mov_b32 {sT3}, 0')
        for i in range(24):
            e(f"""s_memrealtime s[44:45]
            s_memtime s[46:47]
            s_waitcnt lgkmcnt(0)
            s_mul_i32 s44, s44, 24
            s_sub_u32 s46, s46, s44""")
            if i == 0:
                e(f's_mov_b32 {sT2}, s46')
            e(f"""s_sub_u32 s46, s46, {sT2}
            s_min_i32 {sT3}, {sT3}, s46
            s_nop {i % 5}""")
        e(f"""s_add_u32 {sT2}, {sT2}, {sT3}
        v_mov_b32 {vt[1]}, {sT2}
        buffer_store_dword {vt[1]}, {vt[0]}, {sWS}, {sT0} offen offset:8""")
    e('s_endpgm')


def flag_store_off(e, dst, vLane, tmp, idx_sgpr, base):
    e(f'''v_mul_u32_u24 {dst}, {FLAG_STRIDE}, {vLane}
    s_lshl_b32 {sT1}, {idx_sgpr}, 2
    s_add_u32 {sT1}, {sT1}, {base}
    v_add_u32 {dst}, {sT1}, {dst}
    v_mov_b32 {tmp}, {OOB}
    v_cmp_gt_u32 vcc, {NREP[1 if base else 0]}, {vLane}
    v_cndmask_b32 {dst}, {tmp}, {dst}, vcc''')


def flag_poll_off(e, dst, vLane, base, last):
    e(f'''s_and_b32 {sT1}, {sIDX}, {NREP[1 if base else 0] - 1}
    s_mul_i32 {sT1}, {sT1}, {FLAG_STRIDE}
    s_add_u32 {sT1}, {sT1}, {base}
    v_min_u32 {dst}, {last}, {vLane}
    v_lshlrev_b32 {dst}, 2, {dst}
    v_add_u32 {dst}, {sT1}, {dst}''')


def engine_wave(p, w, cfg):
    e = p.e
    V = Alloc('v', 0, 64)
    vLane = V.get()
    vt = [V.get() for _ in range(5)]
    vL16, vL128, vFo, vFs, vD, vF = V.get(), V.get(), V.get(), V.get(), V.get(), V.get()
    mreg = V.get(8, 4)
    e(f'''v_and_b32 {vLane}, 63, v0
    v_lshlrev_b32 {vL16}, 4, {vLane}
    v_lshlrev_b32 {vL128}, 7, {vLane}
    s_mov_b32 {sFLG}, {WS_FLAGS}
    s_mov_b32 {sSTEP}, 0
    s_mov_b32 {sTO}, {TIMEOUT}''')
    for c in sCNT:
        e(f's_mov_b32 {c}, 0')
    flag_poll_off(e, vFo, vLane, FLAG2_OFF, NF2 - 1)
    e(f's_mov_b32 {sT2}, {NF2}')
    flag_store_off(e, vFs, vLane, vt[4], sT2, FLAG2_OFF)
    vL4, vOne = V.get(), V.get()
    sG, sCN = 's20', 's21'
    e(f"""v_lshlrev_b32 {vL4}, 2, {vLane}
    v_mov_b32 {vOne}, 1
    s_mov_b32 {sCN}, {WS_CNT}
    s_mov_b32 {sG}, {1000 if cfg.alone else -1}""")
    tail = []

    def gate(need, first):
        GL, GD = p.label('GL'), p.label('GD')
        if not first:
            e(f"""s_cmp_ge_i32 {sG}, 63
            s_cbranch_scc1 {GD}""")
        e(f'{GL}:')
        if not cfg.alone:
            e(f"""buffer_load_dword {vF}, {vL4}, {sWS}, {sCN} offen offset:{C_YX} sc1
            s_waitcnt vmcnt(0)
            v_cmp_gt_u32 vcc, 16, {vF}
            s_ff1_i32_b64 {sG}, vcc
            s_cmp_lt_i32 {sG}, 0
            s_cselect_b32 {sG}, 64, {sG}
            s_sub_u32 {sG}, {sG}, 1""")
        e(f"""s_max_i32 {sT1}, {sG}, 0
        v_mov_b32 {vt[0]}, {sT1}
        buffer_store_dword {vt[0]}, {vFs}, {sWS}, {sFLG} offen {'sc1' if first else ''}""")
        if not first:
            sl, bk = p.label('SL'), p.label('SB')
            e(f"""s_cmp_lg_u32 {sSLOW}, 0
            s_cbranch_scc1 {sl}
            {bk}:""")
            tail.extend([f'{sl}:', f'buffer_store_dword {vt[0]}, {vFs}, {sWS}, {sFLG} offen sc1', f's_branch {bk}'])
        e(f"""s_sub_u32 {sTO}, {sTO}, 1
        s_cmp_gt_i32 {sTO}, 0
        s_cbranch_scc0 {GD}
        s_cmp_lt_i32 {sG}, {need}
        s_cbranch_scc1 {GL}
        {GD}:""")
    if w == 1:
        sk = p.label('SK')
        e(f"""s_cmp_lg_u32 {sH}, 14
        s_cbranch_scc1 {sk}""")
        gate(0, True)
        e(f'{sk}:')
    for i in range(cfg.pf):
        e(f"""s_mov_b32 {sT1}, {WS_XNB + i * 32768 + w * 8192}
        buffer_load_dword {vD}, {vL128}, {sWS}, {sT1} offen sc1""")
    team_barrier(p, w, vt)
    if cfg.diag:
        e(f's_memtime {sTIME}')
    e(f'''s_sub_u32 {sT2}, {sH}, 14
    s_lshl_b32 {sT2}, {sT2}, 15
    s_add_u32 {sT1}, {sT2}, {WS_MEMR + w * 8192}
    buffer_load_dword {vD}, {vL128}, {sWS}, {sT1} offen sc1
    s_add_u32 {sT1}, {sT2}, {WS_PR + w * 8192}
    buffer_load_dword {vD}, {vL128}, {sWS}, {sT1} offen sc1''')
    e(f'v_mov_b32 {vF}, 0')
    LOOP, END, PL, GO, E1, AR, NX = (p.label(x) for x in ('LOOP', 'END', 'PL', 'GO', 'E1', 'AR', 'NX'))
    nq = 16 * cfg.qtouch
    rest = list(range(nq, 56)) if cfg.qtouch else ([u for u in range(28, 56) if u & 1] + [u for u in range(28) if u & 1])[:cfg.nyx]
    n1 = min(len(rest), (len(rest) + 7 + 1) // 2)
    u1, u0 = rest[:n1], rest[n1:]
    clampn = lambda d, s_: f's_and_b32 {d}, {s_}, 1' if cfg.fake else f's_min_u32 {d}, {s_}, 63'
    e(f'''{LOOP}:
    s_add_u32 {sT3}, {sSTEP}, {cfg.pf}
    {clampn(sT3, sT3)}
    s_mul_i32 {sYXS}, {sT3}, {28 * 16384}
    s_add_u32 {sYXS}, {sYXS}, {WS_YX}
    s_lshl_b32 {sXS}, {sT3}, 15
    s_add_u32 {sXS}, {sXS}, {WS_XNB + w * 8192}
    s_lshl_b32 {sMEM}, {sSTEP}, 13
    s_add_u32 {sMEMW}, {sMEM}, {WS_MEMA + w * 2048}
    s_add_u32 {sMEM}, {sMEM}, {WS_MEMR + w * 2048}
    s_cmp_lg_u32 {sH}, 14
    s_cbranch_scc1 {E1}''')
    nch = 2 if w < 3 else 1
    e(f'{AR}:')
    for i in range(nch):
        e(f'buffer_load_dwordx4 {mreg[4 * i:4 * i + 4]}, {vL16}, {sWS}, {sMEM} offen offset:{1024 * i} sc1')
    e(f'''s_sub_u32 {sTO}, {sTO}, 1
    s_cmp_gt_i32 {sTO}, 0
    s_cbranch_scc0 {END}
    s_waitcnt vmcnt(0)
    v_max3_u32 {vt[0]}, {mreg[0]}, {mreg[1]}, {mreg[2]}
    v_max_u32 {vt[0]}, {vt[0]}, {mreg[3]}''')
    if nch == 2:
        e(f'''v_max3_u32 {vt[0]}, {vt[0]}, {mreg[4]}, {mreg[5]}
        v_max3_u32 {vt[0]}, {vt[0]}, {mreg[6]}, {mreg[7]}''')
    e(f'''v_cmp_eq_u32 vcc, -1, {vt[0]}
    s_cbranch_vccnz {AR}''')
    for i in range(nch):
        e(f'buffer_store_dwordx4 {mreg[4 * i:4 * i + 4]}, {vL16}, {sWS}, {sMEMW} offen offset:{1024 * i} sc1')
    if w == 2:
        gs = p.label('GS')
        e(f"""s_cmp_lg_u32 {sSTEP}, {cfg.gostep}
        s_cbranch_scc1 {gs}
        v_mov_b32 {vt[1]}, {OOB}
        v_cmp_gt_u32 vcc, 8, {vLane}
        v_cndmask_b32 {vt[1]}, {vt[1]}, {vL128}, vcc
        s_add_u32 {sT1}, {sCN}, {C_GO}
        buffer_store_dword {vOne}, {vt[1]}, {sWS}, {sT1} offen sc1
        {gs}:""")
    e(f"""s_cmp_ge_u32 {sSTEP}, {cfg.nsteps - 1}
    s_cbranch_scc1 {END}""")
    if w == 1:
        e(f's_add_u32 {sT2}, {sSTEP}, 1')
        e(f's_min_u32 {sT2}, {sT2}, 63')
        gate(sT2, False)
    odd = [u for u in range(56) if u & 1]
    mine = (odd[16:] + odd[:16] if cfg.qlate else odd)[:cfg.nyx][(3 - w)::4]
    nt = len(mine) + 2 + (1 if w == 0 else 0)
    SP = p.label('SP')
    tail += [f'{E1}:', f's_cmp_ge_u32 {sSTEP}, {cfg.nsteps - cfg.pf}', f's_cbranch_scc1 {END}']
    if w == 0:
        tail += [f's_add_u32 {sDA}, {sMEM}, {(cfg.pf + 2) * 8192}', f'buffer_load_dword {vD}, {vL128}, {sWS}, {sDA} offen sc1']
    tail += [f'buffer_load_dword {vD}, {vL128}, {sWS}, {sXS} offen sc1']
    for u in mine:
        tail += [f's_add_u32 {sDA}, {sYXS}, {u * 8192}', f'buffer_load_dword {vD}, {vL128}, {sWS}, {sDA} offen sc1']
    tail += [f's_add_u32 {sSTEP}, {sSTEP}, 1', f's_sub_u32 {sT2}, {sSTEP}, {cfg.lead - cfg.pf}', f's_max_i32 {sT2}, {sT2}, 0',
             f's_waitcnt vmcnt({nt - 1})', f'v_cmp_gt_u32 vcc, {sT2}, {vF}',
             f'buffer_load_dword {vF}, {vFo}, {sWS}, {sFLG} offen sc1', f's_cbranch_vccz {LOOP}',
             f'{SP}:', f's_sub_u32 {sTO}, {sTO}, 1', f's_cmp_gt_i32 {sTO}, 0', f's_cbranch_scc0 {END}', 's_waitcnt vmcnt(0)',
             f'v_cmp_gt_u32 vcc, {sT2}, {vF}', f's_cbranch_vccz {LOOP}', 's_sleep 4',
             f'buffer_load_dword {vF}, {vFo}, {sWS}, {sFLG} offen sc1', f's_branch {SP}']
    e(f'''{NX}:
    s_add_u32 {sSTEP}, {sSTEP}, 1''')
    if w == 0:
        e(f'''{PL}:
        buffer_load_dword {vF}, {vFo}, {sWS}, {sFLG} offen sc1
        s_sub_u32 {sTO}, {sTO}, 1
        s_cmp_gt_i32 {sTO}, 0
        s_cbranch_scc0 {GO}
        s_waitcnt vmcnt(0)
        v_cmp_gt_u32 vcc, {sSTEP}, {vF}
        s_cbranch_vccnz {PL}
        {GO}:''')
    e(f'''s_barrier
    s_branch {LOOP}
    {END}:''')
    epilogue(p, w, cfg, vt)
    for l in tail:
        e(l)


def team_wave(p, role, w, cfg):
    NREP[0], NREP[1] = cfg.nrep1, cfg.nrep2
    if role == 2:
        return engine_wave(p, w, cfg)
    qk = role == 0
    NT = 7 if qk else 8
    NR = 5 if qk else 6
    AH = cfg.qah if qk else cfg.vah
    fin = not qk and w < 2
    slots = (QK_SLOTS if qk else VO_SLOTS)[w]
    V = Alloc('v', 0, 254)
    A = Alloc('a', 0, 256)
    vLane = V.get()
    vG, vC = V.get(), V.get()
    vt = [V.get() for _ in range(5)]
    vIdx, vL16, vStep, vFo, vFs, vNeg1, vWL = (V.get() for _ in range(7))
    lds_tiles = [4] if qk else ([3, 4, 5] if fin else [4, 5])
    memA = V.get(28, 4)
    stg = V.get(16 * len(lds_tiles), 4)
    assert stg.base == memA.base + 28
    Tacc = V.get(4 * NT, 4)
    wl0 = L_W + (w if qk else [0, 3, 6, 8][w]) * 14336
    lds_rel = {t: i * 14336 for i, t in enumerate(lds_tiles)}
    if qk:
        Did = V.get(8, 4)
        AS = V.get(8, 4)
        xsB = V.get(32, 4)
        Alast = V.get(4, 4)
        Sx = V.get(8, 4)
        Sm = V.get(4, 4)
        Idn = V.get(4, 4)
        vSW, vSW2, vSR, vPo, vL128, vSZ = (V.get() for _ in range(6))
        if w == 3:
            Mx = V.get(4, 4)
        Fp = [Did[i] for i in range(8)]
        toucher = w >= 4 - cfg.qtouch
    else:
        Ym = V.get(8, 4)
        vYW, vFo2 = V.get(), V.get()
        Fp = [memA[20 + i] for i in range(8)]
        if fin:
            YX = V.get(64, 4)
            vMo, vMr = V.get(), V.get()
            Afin = R('v', memA.base, 40)
            BM = stg[16:32]
            Facc = stg[32:36]
            Bfin = [BM[0:8], BM[8:16]] + [YX[8 * i:8 * i + 8] for i in range(8)]
    poller = (qk and w == 0) or (not qk and w >= 2)
    frag = {}
    for t in range(NT):
        if t in lds_tiles:
            continue
        for k in range(7):
            frag[(t, k)] = A.get(8, 4) if A.left() >= 8 else V.get(8, 4)
    e = p.e

    e(f'''v_and_b32 {vLane}, 63, v0
    v_lshrrev_b32 {vG}, 4, {vLane}
    v_and_b32 {vC}, 15, {vLane}
    v_lshlrev_b32 {vL16}, 4, {vLane}
    v_add_u32 {vWL}, {wl0}, {vL16}
    v_bfe_u32 {vt[0]}, {vC}, 1, 1          ; v(c)
    v_lshrrev_b32 {vt[1]}, 2, {vC}
    v_lshlrev_b32 {vt[1]}, 1, {vt[1]}
    v_and_b32 {vt[2]}, 1, {vC}
    v_add_u32 {vt[1]}, {vt[1]}, {vt[2]}    ; m(c)
    v_mul_u32_u24 {vIdx}, 0xaaaa, {vt[0]}
    v_add_u32 {vIdx}, 0x4444, {vIdx}
    v_mov_b32 {vNeg1}, -1
    s_mov_b32 {sFLG}, {WS_FLAGS}''')
    if qk:
        e(f'''v_lshlrev_b32 {vL128}, 7, {vLane}
        v_lshrrev_b32 {vt[2]}, 2, {vC}
        v_and_b32 {vt[3]}, 1, {vC}
        v_lshlrev_b32 {vt[3]}, 4, {vt[3]}
        v_mov_b32 {vt[4]}, 0x3f80
        v_lshlrev_b32 {vt[3]}, {vt[3]}, {vt[4]}
        v_cmp_eq_u32 vcc, {vt[2]}, {vG}
        v_cndmask_b32 {vt[3]}, 0, {vt[3]}, vcc
        v_cmp_eq_u32 vcc, 0, {vt[0]}
        v_cndmask_b32 {Idn[0]}, 0, {vt[3]}, vcc
        v_cndmask_b32 {Idn[1]}, 0, {vt[3]}, vcc
        v_cndmask_b32 {Idn[2]}, {vt[3]}, 0, vcc
        v_cndmask_b32 {Idn[3]}, {vt[3]}, 0, vcc
        s_mov_b64 {sV0}, vcc
        v_mul_u32_u24 {vt[2]}, 320, {vG}
        v_add_u32 {vt[2]}, {L_SP + w * 1296}, {vt[2]}
        v_and_b32 {vt[3]}, 12, {vC}
        v_add_u32 {vt[3]}, {vt[3]}, {vC}
        v_lshl_add_u32 {vSW}, {vt[3]}, 2, {vt[2]}
        v_lshl_add_u32 {vt[2]}, {vt[1]}, 2, {vt[2]}
        v_add_u32 {vt[2]}, 128, {vt[2]}
        v_lshlrev_b32 {vt[3]}, 2, {vC}
        v_add_u32 {vt[3]}, {L_DUMP}, {vt[3]}
        v_cndmask_b32 {vSW2}, {vt[3]}, {vt[2]}, vcc
        v_lshrrev_b32 {vt[0]}, 5, {vLane}
        v_and_b32 {vt[1]}, 31, {vLane}
        v_mul_u32_u24 {vt[2]}, 160, {vt[0]}
        v_lshl_add_u32 {vt[2]}, {vt[1]}, 3, {vt[2]}
        v_add_u32 {vt[2]}, {L_SP + 2 * w * 160}, {vt[2]}
        v_mov_b32 {vt[3]}, {L_SP + 1280}
        v_cmp_gt_u32 vcc, 20, {vt[1]}
        v_cndmask_b32 {vSR}, {vt[3]}, {vt[2]}, vcc
        v_mov_b32 {vt[3]}, {L_SP + 1288}
        v_cndmask_b32 {vSZ}, {vt[3]}, {vt[2]}, vcc
        v_and_b32 {vt[2]}, 1, {vt[1]}
        v_lshl_add_u32 {vt[2]}, {vt[2]}, 1, {vt[0]}
        v_lshlrev_b32 {vt[2]}, 4, {vt[2]}
        v_bfe_u32 {vt[3]}, {vt[1]}, 3, 1
        v_lshl_add_u32 {vt[3]}, {vt[3]}, 8, {vt[2]}
        v_bfe_u32 {vt[4]}, {vt[1]}, 1, 2
        v_lshl_add_u32 {vt[3]}, {vt[4]}, 2, {vt[3]}
        s_lshl_b32 {sT1}, {sH}, 9
        s_add_u32 {sT1}, {sT1}, {2048 + 64 * w}
        v_add_u32 {vt[3]}, {sT1}, {vt[3]}
        v_bfe_u32 {vt[2]}, {vt[1]}, 1, 1
        v_lshlrev_b32 {vt[2]}, 8, {vt[2]}
        v_lshl_add_u32 {vt[2]}, {vt[0]}, 4, {vt[2]}
        v_and_b32 {vt[4]}, 1, {vt[1]}
        v_lshl_add_u32 {vt[2]}, {vt[4]}, 3, {vt[2]}
        s_lshr_b32 {sT1}, {sH}, 2
        s_lshl_b32 {sT1}, {sT1}, 9
        s_and_b32 {sT2}, {sH}, 1
        s_lshl_b32 {sT2}, {sT2}, 5
        s_add_u32 {sT1}, {sT1}, {sT2}
        s_and_b32 {sT2}, {sH}, 2
        s_lshl_b32 {sT2}, {sT2}, 1
        s_add_u32 {sT1}, {sT1}, {sT2}
        s_add_u32 {sT1}, {sT1}, {64 * w}
        v_add_u32 {vt[2]}, {sT1}, {vt[2]}
        v_mov_b32 {vt[4]}, {OOB}
        v_cndmask_b32 {vt[2]}, {vt[4]}, {vt[2]}, vcc
        v_cmp_gt_u32 vcc, 16, {vt[1]}
        v_cndmask_b32 {vPo}, {vt[2]}, {vt[3]}, vcc''')
        for r in range(4):
            e(f'''s_mov_b32 {sT1}, {WS_PR + r * 16384}
            buffer_store_dword {vNeg1}, {vPo}, {sWS}, {sT1} offen sc1''')
        e(f"""v_mov_b32 {vt[2]}, {L_SP + w * 1296 + 1280}
        v_mov_b32 {vt[3]}, 0xf149f2ca
        ds_write2_b32 {vt[2]}, {vt[3]}, {vt[3]} offset0:0 offset1:1""")
        flag_store_off(e, vFs, vLane, vt[4], sH, 0)
        if w == 1:
            e(f'''v_mov_b32 {vt[4]}, 0
            buffer_store_dword {vt[4]}, {vFs}, {sWS}, {sFLG} offen sc1''')
        for i in range(4):
            e(f'v_mov_b32 {Alast[i]}, 0')
        if poller:
            flag_poll_off(e, vFo, vLane, FLAG2_OFF, NF2)
        e(f'''s_mul_i32 {sYX}, {sH}, {cfg.qtouch * 8192}
        s_add_u32 {sYX}, {sYX}, {WS_YX + (3 - w) * 8192}''')
    else:
        e(f'v_add_u32 {vYW}, {L_YM}, {vL16}')
        if fin:
            e(f'''s_add_u32 {sJ}, {sH}, {14 * w}
            v_lshrrev_b32 {vt[2]}, 3, {vC}
            v_lshlrev_b32 {vt[2]}, 5, {vt[2]}
            v_lshl_add_u32 {vt[2]}, {vG}, 6, {vt[2]}
            v_and_b32 {vt[3]}, 7, {vC}
            v_lshl_add_u32 {vt[2]}, {vt[3]}, 1, {vt[2]}
            s_lshl_b32 {sT1}, {sJ}, 8
            v_add_u32 {vMo}, {sT1}, {vt[2]}
            v_lshlrev_b32 {vt[2]}, 2, {vLane}
            v_add_u32 {vMr}, {sT1}, {vt[2]}
            s_lshl_b32 {sYX}, {sJ}, 14
            s_add_u32 {sYX}, {sYX}, {WS_YX}''')
            for g_ in range(4):
                e(f'''s_add_u32 {sRO[g_]}, {sJ if cfg.rot else 0}, {g_}
                s_and_b32 {sRO[g_]}, {sRO[g_]}, 3
                s_lshl_b32 {sRO[g_]}, {sRO[g_]}, 11''')
            e(f'''v_bfe_u32 {vt[2]}, {vLane}, 2, 1
            v_lshl_add_u32 {vt[2]}, {vG}, 1, {vt[2]}
            v_mul_u32_u24 {vt[2]}, 896, {vt[2]}
            v_bfe_u32 {vt[3]}, {vLane}, 3, 1
            v_lshl_add_u32 {vt[2]}, {vt[3]}, 6, {vt[2]}
            v_and_b32 {vt[3]}, 3, {vLane}
            v_lshl_add_u32 {vt[2]}, {vt[3]}, 2, {vt[2]}
            s_lshr_b32 {sT1}, {sJ}, 2
            s_lshl_b32 {sT1}, {sT1}, 7
            s_and_b32 {sT2}, {sJ}, 3
            s_lshl_b32 {sT2}, {sT2}, 4
            s_add_u32 {sT1}, {sT1}, {sT2}
            buffer_load_dword {vt[3]}, {vt[2]}, {sM0D}, {sT1} offen
            s_waitcnt vmcnt(0)
            s_mov_b32 {sT1}, {WS_MEMR}
            buffer_store_dword {vt[3]}, {vMr}, {sWS}, {sT1} offen sc1''')
            for r in range(1, 3):
                e(f'''s_mov_b32 {sT1}, {WS_MEMR + r * 8192}
                buffer_store_dword {vNeg1}, {vMr}, {sWS}, {sT1} offen sc1''')
            flag_store_off(e, vFs, vLane, vt[4], sH, FLAG2_OFF)
            if w == 0:
                e(f'''v_mov_b32 {vt[4]}, 0
                buffer_store_dword {vt[4]}, {vFs}, {sWS}, {sFLG} offen sc1''')
        if w == (0 if cfg.selfpoll else 2):
            flag_poll_off(e, vFo, vLane, 0, 15)
        if w == cfg.vpw:
            flag_poll_off(e, vFo2, vLane, FLAG2_OFF, NF2)

    def xs_bases(nxt):
        if cfg.xsall:
            return [f's_lshl_b32 {sXS}, {nxt}, 15', f's_add_u32 {sXS}, {sXS}, {WS_XNB + w * 8192}', f's_add_u32 {sXS2}, {sXS}, 4096']
        return [f's_add_u32 {sXS2}, {sXS}, 4096', f's_lshl_b32 {sXS}, {nxt}, 15', f's_add_u32 {sXS}, {sXS}, {WS_XNB + w * 8192}']

    def xs_loads():
        return [f'buffer_load_dwordx4 {xsB[4 * i:4 * i + 4]}, {vL16}, {sWS}, {sXS if i < 4 else sXS2} offen '
                f'offset:{(i & 3) * 1024} sc1' for i in range(8)]

    winA = []
    if qk:
        winA = xs_loads()[(0 if cfg.xsall else 4):]
        if toucher:
            winA += [f'buffer_load_dword {vt[3]}, {vL128}, {sWS}, {sYXS} offen sc1']
    elif fin:
        winA = [f'buffer_load_dwordx4 {YX[4 * i:4 * i + 4]}, {vL16}, {sWS}, {sYQ[i >> 2]} offen '
                 f'offset:{(i & 3) * 1024} sc1' for i in range(16)]

    e(f"""s_mov_b32 {sSTEP}, 0
    s_mov_b32 {sTO}, {TIMEOUT}""")
    for c in sCNT:
        e(f's_mov_b32 {c}, 0')
    if qk:
        for l in ([] if cfg.xsall else xs_bases(sSTEP)[1:] + xs_loads()[:4]):
            e(l)
        if cfg.nowait:
            e(f'v_mov_b32 {vt[0]}, -1\nv_mov_b32 {vt[1]}, -1')
            assert vt[1].base == vt[0].base + 1
            for i in range(4):
                e(f'ds_write2_b32 {vSZ}, {vNeg1}, {vNeg1} offset0:0 offset1:1' if i == 0 else
                  f'v_add_u32 {vt[2]}, {1296 * i}, {vSZ}\nds_write2_b32 {vt[2]}, {vNeg1}, {vNeg1} offset0:0 offset1:1')
    if not cfg.alone:
        RL, RD = p.label('RL'), p.label('RD')
        if qk:
            e(f"""v_min_u32 {vt[0]}, 24, {vLane}
            v_lshlrev_b32 {vt[0]}, 14, {vt[0]}
            s_mul_i32 {sT0}, {sH}, {28 * 14336}
            s_add_u32 {sT0}, {sT0}, {WS_WQK}""")
        else:
            e(f"""v_and_b32 {vt[0]}, 7, {vLane}
            v_mul_u32_u24 {vt[0]}, {14 * 14336}, {vt[0]}
            v_bfe_u32 {vt[1]}, {vLane}, 3, 1
            v_mul_u32_u24 {vt[1]}, 14332, {vt[1]}
            v_add_u32 {vt[0]}, {vt[0]}, {vt[1]}
            s_mul_i32 {sT0}, {sH}, 14336
            s_add_u32 {sT0}, {sT0}, {WS_WVO + 4 * w * 28 * 14336}""")
        if cfg.wtlb:
            e(f'buffer_load_dword {vt[1]}, {vt[0]}, {sWS}, {sT0} offen sc1\ns_waitcnt vmcnt(0)')
        e(f"""v_min_u32 {vt[0]}, 13, {vC}
        v_lshlrev_b32 {vt[0]}, 2, {vt[0]}""")
        if qk:
            e(f"""s_lshl_b32 {sT1}, {sH}, 8
            s_add_u32 {sT1}, {sT1}, {C_MAT}
            v_add_u32 {vt[0]}, {sT1}, {vt[0]}""")
        else:
            e(f"""v_lshl_add_u32 {vt[0]}, {vG}, 8, {vt[0]}
            v_add_u32 {vt[0]}, {C_MAT + 128 + w * 1024}, {vt[0]}""")
        e(f"""s_mov_b32 {sT0}, {WS_CNT}
        {RL}:
        buffer_load_dword {vt[1]}, {vt[0]}, {sWS}, {sT0} offen sc1
        s_sub_u32 {sTO}, {sTO}, 1
        s_cmp_gt_i32 {sTO}, 0
        s_cbranch_scc0 {RD}
        s_waitcnt vmcnt(0)
        v_cmp_ne_u32 vcc, 1, {vt[1]}
        s_cbranch_vccz {RD}
        s_sleep 4
        s_branch {RL}
        {RD}:""")
        if w == 0:
            tl(p, 5, 's100', WS_TL + 16384)
    e(f's_mul_i32 {sT0}, {sH}, {28 * 14336 if qk else 14336}')
    n_out = 0
    for t in range(NT):
        for k in range(7):
            if qk:
                st_, pos = QK_TILES[w][t]
                T = 2 * set_quad(w, st_, pos & 1, pos >> 1) + (pos >> 1)
                off = WS_WQK + (T * 7 + slots[k]) * 2048
            else:
                off = WS_WVO + (((4 * w + (t & 3)) * 28 + 14 * (t >> 2)) * 7 + slots[k]) * 2048
            e(f's_add_u32 {sT1}, {sT0}, {off}')
            if t in lds_tiles:
                e(f'''s_mov_b32 m0, {wl0 + lds_rel[t] + k * 2048}
                buffer_load_dwordx4 {vL16}, {sWS}, {sT1} offen sc1 lds
                buffer_load_dwordx4 {vL16}, {sWS}, {sT1} offen offset:1024 sc1 lds''')
            else:
                f = frag[(t, k)]
                e(f'''buffer_load_dwordx4 {f[0:4]}, {vL16}, {sWS}, {sT1} offen sc1
                buffer_load_dwordx4 {f[4:8]}, {vL16}, {sWS}, {sT1} offen offset:1024 sc1''')
            n_out += 2
            if n_out >= 60:
                e('s_waitcnt vmcnt(40)')
                n_out = 40
    team_barrier(p, w, vt)
    if cfg.diag:
        e(f's_memtime {sTIME}')

    LOOP, END = p.label('LOOP'), p.label('END')
    FAIL, JOIN = p.label('FAIL'), p.label('JOIN')
    tail = []
    vm = VM(e)
    lg = VM(e, 'lgkmcnt')

    def slow(texts):
        if cfg.dual:
            sl, bk = p.label('SL'), p.label('SB')
            e(f's_cmp_lg_u32 {sSLOW}, 0')
            e(f's_cbranch_scc1 {sl}')
            e(f'{bk}:')
            tail.extend([f'{sl}:'] + [t + ' sc1' for t in texts] + [f's_branch {bk}'])

    def st2(text):
        vm.issue(text)
        slow([text])

    nside = [0]

    def side(text):
        if 'store' in text:
            st2(text)
        else:
            nside[0] += 1
            vm.issue(text, ('side', nside[0]))

    def chunk_txt(k, fl):
        off = slots[k] * 1024
        so = sMEM if off < 4096 else sMEM2
        return f'buffer_load_dwordx4 {memA[4 * k:4 * k + 4]}, {vL16}, {sWS}, {so} offen offset:{off & 4095} {fl}'

    def chunk_load(k):
        vm.issue(chunk_txt(k, '' if k >= cfg.nsc else 'sc1'), ('c', k))

    def stg_read(k):
        o = []
        for i, t in enumerate(lds_tiles):
            r = stg[16 * i + 8 * (k & 1):16 * i + 8 * (k & 1) + 8]
            o.append(f'ds_read_b128 {r[0:4]}, {vWL} offset:{lds_rel[t] + k * 2048}')
            o.append(f'ds_read_b128 {r[4:8]}, {vWL} offset:{lds_rel[t] + k * 2048 + 1024}')
        return o

    def wfrag(t, k):
        if t in lds_tiles:
            i = lds_tiles.index(t)
            return stg[16 * i + 8 * (k & 1):16 * i + 8 * (k & 1) + 8]
        return frag[(t, k)]

    def smf_txt(t, k):
        return f'v_smfmac_f32_16x16x64_bf16 {Tacc[4 * t:4 * t + 4]}, {memA[4 * k:4 * k + 4]}, {wfrag(t, k)}, {vIdx}'

    def smf(t, k):
        e(smf_txt(t, k))

    def slot_calc():
        e(f"""s_lshl_b32 {sMEM}, {sSTEP}, 13
        s_add_u32 {sMEM}, {sMEM}, {WS_MEMR}
        s_add_u32 {sMEM2}, {sMEM}, 4096""")

    clampn = lambda d, s_: f's_and_b32 {d}, {s_}, 1' if cfg.fake else f's_min_u32 {d}, {s_}, 63'
    sal = [f's_add_u32 {sSTEP1}, {sSTEP}, 1', f's_mov_b64 {sCHK}, -1', f'v_mov_b32 {vStep}, {sSTEP1}',
           f's_and_b32 {sT0}, {sSTEP}, 3', f's_lshl_b32 {sP}, {sT0}, 14']
    if qk:
        sal += [f's_add_u32 {sP}, {sP}, {WS_PR}', f's_xor_b32 {sPRST}, {sP}, {2 << 14}', clampn(sT3, sSTEP if cfg.xsall else sSTEP1)] + xs_bases(sT3)
        if toucher:
            sal += [f's_add_u32 {sT3}, {sSTEP}, {cfg.pf}', clampn(sT3, sT3), f's_mul_i32 {sYXS}, {sT3}, {28 * 16384}',
                    f's_add_u32 {sYXS}, {sYXS}, {sYX}']
    elif fin:
        sal += [f's_add_u32 {sP}, {sP}, {WS_PR}',
                f's_add_u32 {sMEMW}, {sMEM}, 8192', f's_add_u32 {sMEMRST}, {sMEM}, 16384',
                clampn(sT3, sSTEP), f's_mul_i32 {sT3}, {sT3}, {28 * 16384}', f's_add_u32 {sT3}, {sT3}, {sYX}']
        sal += [f's_lshl1_add_u32 {sYQ[i]}, {sRO[i]}, {sT3}' for i in range(4)]
        sal += [f's_add_u32 {sPQ[i]}, {sP}, {sRO[i]}' for i in range(4)]
    assert (WS_PR & (3 << 14)) == 0
    zero_all = [f'v_mov_b32 {Tacc[i]}, 0' for i in range(4 * NT)]
    if qk:
        zero_all += [f'v_mov_b32 {Sx[i]}, 0' for i in range(8)]
    for l in zero_all:
        e(l)
    zq = list(zero_all)

    def fz(n):
        for _ in range(n):
            if zq:
                e(zq.pop(0))

    def poll_loop(nd, tgt=None, between=None, vo=None):
        PL, GO = p.label('PL'), p.label('GO')
        GL = GO
        if tgt:
            GO = tgt
        pl = lambda i: f'buffer_load_dword {Fp[i]}, {vo or vFo}, {sWS}, {sFLG} offen sc1'
        for i in range(nd):
            e(pl(i))
            if between:
                between(i)
            elif i < nd - 1:
                nops(e, cfg.pspace * cfg.pdepth // nd)
        e(f'{PL}:')
        for i in range(nd):
            e(f"""s_waitcnt vmcnt({nd - 1})
            v_cmp_gt_u32 vcc, {sSTEP1}, {Fp[i]}
            {pl(i)}
            s_cbranch_vccz {GO}""")
        e(f"""s_sub_u32 {sTO}, {sTO}, 1
        s_cmp_gt_i32 {sTO}, 0
        s_cbranch_scc1 {PL}
        {GL}:""")

    def loop_end(polls):
        e(f"""s_cmp_ge_u32 {sSTEP}, {cfg.nsteps}
        s_cbranch_scc1 {END}""")
        if polls:
            polls()
        e(f's_branch {LOOP}')

    slot_calc()
    if cfg.prio and fin and w == 0:
        e('s_setprio 2')
    e(f'{LOOP}:')
    if not fin:
        stamp(p, cfg, 7)
    e('s_barrier')
    stamp(p, cfg, 0)
    nops(e, cfg.delay if qk else cfg.vdelay)
    fill = stg_read(0) + stg_read(1) + sal
    per = (len(fill) + AH - 2) // (AH - 1)
    for k in range(AH):
        chunk_load(k)
        if k < AH - 1:
            part = fill[k * per:(k + 1) * per]
            for l in part:
                if l.startswith('ds_'):
                    lg.issue(l)
                else:
                    e(l)
            if cfg.gapbar:
                e('s_barrier')
            else:
                nops(e, cfg.gap - len(part))
    for i, t in enumerate(lds_tiles):
        lg.tag[('s', 0, t)] = lg.n - 4 * len(lds_tiles) + 2 * (i + 1)
        lg.tag[('s', 1, t)] = lg.n - 2 * len(lds_tiles) + 2 * (i + 1)
    stamp(p, cfg, 1)

    def retry(k):
        RT, BK = p.label('RT'), p.label('BK')
        nre = 2 if chk == 2 else AH + 1
        t = [f'{RT}:', f's_add_u32 {sCNT[3]}, {sCNT[3]}, 1'] + [chunk_txt(kk, 'sc1') for kk in range(k, min(7, k + nre))]
        t += [f's_sub_u32 {sTO}, {sTO}, 1', f's_cmp_gt_i32 {sTO}, 0', f's_cbranch_scc0 {END}']
        if k == 0:
            t += zero_all[:12]
        t += ['s_waitcnt vmcnt(0)', f'v_cmp_eq_u32 vcc, -1, {memA[4 * k]}', f's_cbranch_vccnz {RT}']
        if k == 0:
            t += [smf_txt(0, 0), smf_txt(1, 0), smf_txt(2, 0)]
        t += [f's_branch {BK}']
        tail.extend(t)
        e(f's_cbranch_vccnz {RT}')
        e(f'{BK}:')

    def cv_txt(t, i):
        a = Tacc[4 * t:4 * t + 4]
        if t == 6:
            dst = Alast[2 * (QK_TILES[w][6][1] & 1) + i]
        else:
            dst = Tacc[4 * (t & ~1) + 2 * (t & 1) + i]
        return f'v_cvt_pk_bf16_f32 {dst}, {a[2 * i]}, {a[2 * i + 1]}'
    late_v = [cv_txt(0, 0), cv_txt(0, 1), cv_txt(1, 0)] if qk else []
    chk = cfg.chk if qk else cfg.vchk

    vm.wait(('c', 0))
    stamp(p, cfg, 9)
    nslot = 0
    nxt_c = AH
    pace = cfg.qpace if qk else 2
    early = 1 if (qk and cfg.xsall) else 0
    for k in range(7):
        sr = stg_read(k + 1) if 1 <= k <= 5 else []
        for t in range(NR):
            smf(t, k)
            used = 0
            if k == 0 and t == 2 and chk:
                retry(0)
            if t == NR - 1 and k < 6 and chk == 2:
                retry(k + 1)
                used = 1
            if qk:
                if t == 0 and k + AH < 7:
                    chunk_load(k + AH)
                    used = 1
                elif k + AH + early >= 7 and nslot % pace == 0 and winA and not used:
                    side(winA.pop(0))
                    used = 1
                if k + AH + early >= 7:
                    nslot += 1
            else:
                if nxt_c < 7:
                    if t % 3 == 0:
                        chunk_load(nxt_c)
                        nxt_c += 1
                        used = 1
                elif winA and nslot % 2 == 0 and not used:
                    side(winA.pop(0))
                    used = 1
                nslot += 1
            if sr and (not used or (len(sr) > NR - 1 - t)):
                lg.issue(sr.pop(0), ('s', k + 1, lds_tiles[len(lds_tiles) - 1 - len(sr) // 2]))
            if t + 1 in lds_tiles:
                lg.wait(('s', k, t + 1))
            if k == 0 and t == 0 and chk:
                e(f'v_cmp_eq_u32 vcc, -1, {memA[0]}')
            if chk == 2:
                if t == NR - 3 and k < 6:
                    vm.wait(('c', k + 1))
                    e(f'v_cmp_eq_u32 vcc, -1, {memA[4 * k + 4]}')
            elif t == NR - 1 and k < 6:
                vm.wait(('c', k + 1))
            if qk and k == 6 and t >= 2:
                e(late_v[t - 2])
        assert not sr
    tail += [f'{FAIL}:', f's_add_u32 {sCNT[0]}, {sCNT[0]}, 1', f's_mov_b64 {sCHK}, 0', f'{FAIL}b:']
    tail += [chunk_txt(k, 'sc1') for k in range(7)]
    tail += [f's_sub_u32 {sTO}, {sTO}, 1', f's_cmp_gt_i32 {sTO}, 0', f's_cbranch_scc0 {END}']
    tail += zero_all[:4 * NT] + stg_read(0) + stg_read(1) + ['s_waitcnt vmcnt(0)']
    tail += [f'v_max3_u32 {vt[0]}, {memA[0]}, {memA[1]}, {memA[2]}']
    for i in range(3, 27, 2):
        tail += [f'v_max3_u32 {vt[0]}, {vt[0]}, {memA[i]}, {memA[i + 1]}']
    tail += [f'v_max_u32 {vt[0]}, {vt[0]}, {memA[27]}', f'v_cmp_eq_u32 vcc, -1, {vt[0]}', f's_cbranch_vccnz {FAIL}b']
    nl = 2 * len(lds_tiles)
    for k in range(7):
        tail += [f's_waitcnt lgkmcnt({nl if k < 6 else 0})'] + [smf_txt(t, k) for t in range(NR)]
        if k < 5:
            tail += stg_read(k + 2)
    tail += late_v + ['s_nop 7', f's_branch {JOIN}']
    e(f'{JOIN}:')
    stamp(p, cfg, 2)

    def check_branch():
        e(f's_and_b64 vcc, vcc, {sCHK}')
        e(f's_cbranch_scc1 {FAIL}')

    if qk:
        assert not winA

        def cv(t, i):
            e(cv_txt(t, i))

        def ident(pair, hi):
            src = Alast if pair == 3 else Tacc[8 * pair:8 * pair + 4]
            e(f'v_mfma_f32_16x16x32_bf16 {Did[4 * hi:4 * hi + 4]}, {src}, {Idn}, 0')

        def cv2(st, hi, i):
            d = Did[4 * hi:4 * hi + 4]
            e(f'v_cvt_pk_bf16_f32 {AS[4 * st + 2 * hi + i]}, {d[2 * i]}, {d[2 * i + 1]}')

        def sx(st, kt):
            e(f'v_smfmac_f32_16x16x64_bf16 {Sx[4 * kt:4 * kt + 4]}, {AS[4 * st:4 * st + 4]}, '
              f'{xsB[16 * st + 8 * kt:16 * st + 8 * kt + 8]}, {vIdx}')

        def mch(c_):
            k_ = slots.index(c_)
            return memA[4 * k_:4 * k_ + 4]

        def sm(st):
            b = Mx if (w == 3 and st == 1) else mch(w + 4 * st)
            e(f'v_mfma_f32_16x16x32_bf16 {Sm}, {AS[4 * st:4 * st + 4]}, {b}, {0 if st == 0 else Sm}')

        def flag(pos):
            if cfg.flagpos == pos and w == 1:
                vm.issue(f'buffer_store_dword {vStep}, {vFs}, {sWS}, {sFLG} offen')
                stamp(p, cfg, 8)

        if w == 3:
            zq[0:0] = [f'v_cndmask_b32 {Mx[0]}, {mch(5)[0]}, {mch(4)[0]}, {sV0}',
                       f'v_cndmask_b32 {Mx[1]}, {mch(5)[1]}, {mch(4)[1]}, {sV0}',
                       f'v_mov_b32 {Mx[2]}, {mch(6)[2]}', f'v_mov_b32 {Mx[3]}, {mch(6)[3]}']
        fh = QK_TILES[w][4][1] >> 1
        smf(5, 0); cv(1, 1)
        smf(5, 1); cv(2, 0)
        ident(0, 0); cv(2, 1); cv(3, 0)
        smf(5, 2); cv(3, 1)
        smf(5, 3); cv(4, 0)
        ident(1, 1); cv2(0, 0, 0); cv2(0, 0, 1)
        smf(5, 4); e(f'v_cmp_u_f32 vcc, {Did[0]}, {Did[1]}')
        smf(5, 5); cv(4, 1)
        smf(5, 6); cv2(0, 1, 0)
        smf(6, 0); cv2(0, 1, 1)
        smf(6, 1); check_branch()
        smf(6, 2); cv(5, 0)
        smf(6, 3); cv(5, 1)
        smf(6, 4); fz(1)
        smf(6, 5); fz(1)
        smf(6, 6); fz(1)
        ident(2, fh); fz(2)
        sm(0); cv(6, 0); cv(6, 1)
        fz(1); cv2(1, fh, 0)
        nx = 8 if cfg.xsall else 4
        ident(3, 1 - fh)
        if cfg.xsall:
            vm.wait(('side', 4))
        cv2(1, fh, 1); fz(1)
        sx(0, 0); fz(1)
        sx(0, 1)
        cv2(1, 1 - fh, 0); cv2(1, 1 - fh, 1)
        fz(1)
        vm.wait(('side', nx - 2))
        sx(1, 0)
        vm.wait(('side', nx))
        sx(1, 1)
        sm(1)
        flag(-3)
        stamp(p, cfg, 3)
        e(f"""v_add_f32 {Sx[0]}, {Sx[0]}, {Sx[2]}
        v_add_f32 {Sx[1]}, {Sx[1]}, {Sx[3]}
        ds_write2_b32 {vSW}, {Sx[0]}, {Sx[1]} offset0:0 offset1:40
        v_add_f32 {Sx[4]}, {Sx[4]}, {Sx[6]}
        v_add_f32 {Sx[5]}, {Sx[5]}, {Sx[7]}
        ds_write2_b32 {vSW}, {Sx[4]}, {Sx[5]} offset0:4 offset1:44
        v_add_f32_dpp {Sm[0]}, {Sm[2]}, {Sm[0]} quad_perm:[2,3,0,1] row_mask:0xf bank_mask:0xf
        v_add_f32_dpp {Sm[1]}, {Sm[3]}, {Sm[1]} quad_perm:[2,3,0,1] row_mask:0xf bank_mask:0xf
        ds_write2_b32 {vSW2}, {Sm[0]}, {Sm[1]} offset0:0 offset1:40""")
        flag(-2)
        fz(cfg.fz1 - 1)
        flag(-1)
        fz(1)
        assert len(zq) >= 8
        if not cfg.nowait:
            e('s_waitcnt lgkmcnt(0)')
        e('s_barrier')
        stamp(p, cfg, 4)
        dpps = ['quad_perm:[1,0,3,2]', 'quad_perm:[2,3,0,1]', 'row_half_mirror', 'row_mirror']
        x, y = vt[0], vt[1]
        r = R('v', memA.base, 12)
        warm = lambda n: [e(zq.pop(0)) if len(zq) > 8 else e(f'v_mov_b32 {vt[4]}, 0') for _ in range(n)]
        rd_txt = [f'ds_read_b64 {r[2 * i:2 * i + 2]}, {vSR} offset:{1296 * i}' for i in range(4)]
        for i in range(4):
            e(rd_txt[i])
            if i % 2 == 0:
                warm(1)
        warm(1)
        flag(0)
        warm(cfg.fz2 - 3)
        flag(1)
        warm(1)
        add_txt = f"""s_waitcnt lgkmcnt(2)
        v_add_f32 {r[0]}, {r[0]}, {r[2]}
        v_add_f32 {r[1]}, {r[1]}, {r[3]}
        s_waitcnt lgkmcnt(0)
        v_add_f32 {r[4]}, {r[4]}, {r[6]}
        v_add_f32 {r[5]}, {r[5]}, {r[7]}
        v_add_f32 {r[0]}, {r[0]}, {r[4]}
        v_add_f32 {r[1]}, {r[1]}, {r[5]}"""
        e(add_txt)

        def allred(op, em, main):
            for i, d in enumerate(dpps):
                pos_ = (2 if op == 'max' else 8) + i
                if main and cfg.flagpos == pos_ and w == 1:
                    flag(pos_)
                elif main:
                    fz(2)
                em(f'v_{op}_f32_dpp {x}, {x}, {x} {d} row_mask:0xf bank_mask:0xf')
            em(f'v_mov_b32 {y}, {x}')
            if op == 'max' and main:
                flag(6)
            em(f'v_permlane16_swap_b32 {x}, {y}')
            em(f'v_{op}_f32 {x}, {x}, {y}')

        pst_txt = f'buffer_store_dword {y}, {vPo}, {sWS}, {sP} offen'

        def softmax_true(em, main):
            em(f'v_max_f32 {x}, {r[0]}, {r[1]}')
            allred('max', em, main)
            for l in (f'v_sub_f32 {r[8]}, {r[0]}, {x}', f'v_sub_f32 {r[9]}, {r[1]}, {x}',
                      f'v_exp_f32 {r[8]}, {r[8]}', f'v_exp_f32 {r[9]}, {r[9]}'):
                em(l)
            if main:
                flag(7)
            em(f'v_add_f32 {x}, {r[8]}, {r[9]}')
            allred('add', em, main)
            for l in (f'v_rcp_f32 {r[10]}, {x}', f'v_subrev_u32 {x}, 0x21800000, {x}', f'v_mul_f32 {r[8]}, {r[8]}, {r[10]}',
                      f'v_mul_f32 {r[9]}, {r[9]}, {r[10]}', f'v_cvt_pk_bf16_f32 {y}, {r[8]}, {r[9]}'):
                em(l)
        if cfg.standin:
            e(f"""v_exp_f32 {r[8]}, {r[0]}
            v_exp_f32 {r[9]}, {r[1]}""")
            flag(7)
            e(f'v_add_f32 {x}, {r[8]}, {r[9]}')
            allred('add', e, True)
            e(f"""v_rcp_f32 {r[10]}, {x}
            v_subrev_u32 {x}, 0x21800000, {x}
            v_mul_f32 {r[8]}, {r[8]}, {r[10]}
            v_mul_f32 {r[9]}, {r[9]}, {r[10]}
            v_cvt_pk_bf16_f32 {y}, {r[8]}, {r[9]}""")
        else:
            softmax_true(e, True)
        if cfg.standin or cfg.nowait:
            FB, FD = p.label('FB'), p.label('FD')
            e(f'v_cmpx_gt_u32 vcc, 0x50000000, {x}')
            vm.issue(pst_txt)
            e(f"""s_mov_b64 exec, -1
            s_cmp_lg_u64 vcc, -1
            s_cbranch_scc1 {FB}
            {FD}:""")
            tail += [f'{FB}:', f's_add_u32 {sCNT[2]}, {sCNT[2]}, 1']
            if cfg.nowait:
                tail += rd_txt + [f's_sub_u32 {sTO}, {sTO}, 1', f's_cmp_gt_i32 {sTO}, 0', f's_cbranch_scc0 {FD}',
                                  's_waitcnt lgkmcnt(0)', f'v_max3_u32 {x}, {r[0]}, {r[1]}, {r[2]}',
                                  f'v_max3_u32 {x}, {x}, {r[3]}, {r[4]}', f'v_max3_u32 {x}, {x}, {r[5]}, {r[6]}',
                                  f'v_max_u32 {x}, {x}, {r[7]}', f'v_cmp_eq_u32 vcc, -1, {x}', f's_cbranch_vccnz {FB}']
                tail += [l.strip() for l in add_txt.split('\n')]
            softmax_true(tail.append, False)
            tail += [pst_txt, f's_branch {FD}']
        else:
            vm.issue(pst_txt)
        stamp(p, cfg, 5)
        slow([f'buffer_store_dword {y}, {vPo}, {sWS}, {sP} offen'] +
             ([f'buffer_store_dword {vStep}, {vFs}, {sWS}, {sFLG} offen'] if w == 1 else []))
        e('s_barrier')
        st2(f'buffer_store_dword {vNeg1}, {vPo}, {sWS}, {sPRST} offen')
        if cfg.qlate and w == 2:
            e(f"""s_add_u32 {sT3}, {sSTEP}, 2
            {clampn(sT3, sT3)}
            s_mul_i32 {sT3}, {sT3}, {28 * 16384}
            s_lshl_b32 {sT2}, {sH}, 14
            s_add_u32 {sT3}, {sT3}, {sT2}
            s_add_u32 {sT3}, {sT3}, {WS_YX + 8192}
            buffer_load_dword {vt[3]}, {vL128}, {sWS}, {sT3} offen sc1""")
        if cfg.tlb and w == 3:
            e(f"""v_mov_b32 {vt[2]}, {2 * 8192 + 7680}
            buffer_load_dword {vt[3]}, {vt[2]}, {sWS}, {sMEM} offen sc1
            v_mov_b32 {vt[2]}, {32768 if cfg.xsall else 65536}
            buffer_load_dword {vt[3]}, {vt[2]}, {sWS}, {sXS2} offen sc1""")
        for l in ([] if cfg.xsall else xs_loads()[:4]):
            e(l)
        if cfg.nowait:
            e(f'v_mov_b32 {r[0]}, -1\nv_mov_b32 {r[1]}, -1')
            for i in range(4):
                e(f'ds_write_b64 {vSZ}, {r[0:2]} offset:{1296 * i}')
            e('s_waitcnt lgkmcnt(0)')
        fz(40)
        if TL_ON[0] and w == 2:
            e(f"""s_memtime s[96:97]
            s_lshl_b32 s98, {sH}, 8
            s_lshl_b32 s99, {sSTEP}, 2
            s_add_u32 s98, s98, s99
            s_add_u32 s98, s98, {WS_TL + 0x8000}
            s_waitcnt lgkmcnt(0)
            v_mov_b32 v254, s96
            v_mov_b32 v255, 0
            buffer_store_dword v254, v255, {sWS}, s98 offen""")
        e(f's_add_u32 {sSTEP}, {sSTEP}, 1')
        slot_calc()

        def qpoll():
            e('s_waitcnt vmcnt(0)')
            stamp(p, cfg, 6)
            nops(e, cfg.qstart)
            poll_loop(cfg.qdepth, LOOP)
        loop_end(qpoll if poller else None)
    else:
        def pk(t):
            a = Tacc[4 * t:4 * t + 4]
            return [f'v_add_f32 {a[0]}, {a[0]}, {a[2]}', f'v_add_f32 {a[1]}, {a[1]}, {a[3]}',
                    f'v_cvt_pk_bf16_f32 {Ym[t]}, {a[0]}, {a[1]}']
        vq = pk(0)[:2] + [f'v_cmp_u_f32 vcc, {Tacc[0]}, {Tacc[1]}'] + pk(0)[2:]
        for t in range(1, 6):
            vq += pk(t)
        n = 0
        for t in (6, 7):
            for k in range(7):
                smf(t, k)
                if n == 4:
                    check_branch()
                elif winA:
                    side(winA.pop(0))
                if n == 10:
                    vq += pk(6)
                for _ in range(2 if n % 2 else 1):
                    if vq:
                        e(vq.pop(0))
                n += 1
        assert not winA
        for l in vq + pk(7):
            e(l)
        e(f"""ds_write_b128 {vYW}, {Ym[0:4]} offset:{w * 1024}
        ds_write_b128 {vYW}, {Ym[4:8]} offset:{4096 + w * 1024}""")
        if fin and cfg.selfpoll and w == 0:
            e(f'buffer_store_dword {vNeg1}, {vMr}, {sWS}, {sMEMRST} offen')
        stamp(p, cfg, 3)
        if cfg.tlb and w == 3:
            e(f"""v_mov_b32 {vt[2]}, {3 * 8192 + 7680}
            buffer_load_dword {vt[3]}, {vt[2]}, {sWS}, {sMEM} offen sc1""")
        sp0 = cfg.selfpoll and w == 0
        bm_rd = [f'ds_read_b128 {BM[4 * i:4 * i + 4]}, {vYW} offset:{w * 4096 + i * 1024}' for i in range(4)] if fin else []
        zf = [f'v_mov_b32 {Facc[i]}, 0' for i in range(4)] if fin else []

        def part(i):
            if i == 0:
                fz(0 if (w == 3 and cfg.vstart == 0) else 6)
                e(f's_add_u32 {sSTEP}, {sSTEP}, 1')
                slot_calc()
            elif i == 1:
                e('s_waitcnt lgkmcnt(0)\ns_barrier')
            elif i == 2:
                for l in bm_rd + zf:
                    e(l)
                if fin and not sp0:
                    e(f'buffer_store_dword {vNeg1}, {vMr}, {sWS}, {sMEMRST} offen')
            else:
                fz(6)
        if sp0:
            poll_loop(cfg.pdepth, None, part)
            stamp(p, cfg, 5)
            nops(e, cfg.pdelay)
        else:
            for i in range(3):
                part(i)
            if fin:
                stamp(p, cfg, 5)
            if not (w == 3 and cfg.vstart == 0):
                fz(32)
            if w == 2 and not cfg.selfpoll:
                poll_loop(cfg.pdepth)
                stamp(p, cfg, 5)
                nops(e, cfg.pdelay)
        if not sp0:
            e('s_barrier')
        stamp(p, cfg, 6)
        if fin:
            PD, PF, PR, PB = p.label('PD'), p.label('PF'), p.label('PR'), p.label('PB')

            def p_txt(i):
                so, of = (sP, i * 1024) if i < 2 else (sPQ[(i - 2) >> 1], 2048 + (i & 1) * 1024)
                return f'buffer_load_dwordx4 {Afin[4 * i:4 * i + 4]}, {vL16}, {sWS}, {so} offen offset:{of} sc1'

            def f_txt(i):
                return f'v_smfmac_f32_16x16x64_bf16 {Facc}, {Afin[4 * i:4 * i + 4]}, {Bfin[i]}, {vIdx}'
            if w == 1 and not cfg.selfpoll:
                nops(e, 4)
            f2 = f'buffer_store_dword {vStep}, {vFs}, {sWS}, {sFLG} offen'
            burst = []
            for i in range(10):
                vm.issue(p_txt(i), ('p', i))
                burst.append(p_txt(i))
                if (sp0 and -12 <= cfg.f2pos <= -2 and i == 11 + cfg.f2pos) or (w == 1 and i == cfg.f2pos - 20):
                    vm.issue(f2)
                    burst.append(f2)
                    stamp(p, cfg, 8)
                if sp0 and i == cfg.bpos:
                    e('s_barrier')
            stamp(p, cfg, 11)
            e(f'{PB}:')
            if cfg.f2pos == -1 and w == 0:
                vm.issue(f2)
                stamp(p, cfg, 8)
            fz(32)
            e('s_waitcnt lgkmcnt(0)')
            vm.wait(('p', 0))
            stamp(p, cfg, 4)
            for i in range(10):
                e(f_txt(i))
                if i == (max(cfg.f2pos, 2) if cfg.f2pos < 10 else 2):
                    e(f's_cbranch_vccnz {PR}')
                if i == cfg.f2pos and w == 0:
                    vm.issue(f2)
                    stamp(p, cfg, 8)
                if i < 9:
                    vm.wait(('p', i + 1))
                if i == 0:
                    e(f'v_max3_u32 {vt[0]}, {Afin[0]}, {Afin[1]}, {Afin[4]}')
                    e(f'v_max_u32 {vt[0]}, {vt[0]}, {Afin[5]}')
                if i == 1:
                    e(f'v_cmp_eq_u32 vcc, -1, {vt[0]}')
            tail += [f'{PR}:', f's_add_u32 {sCNT[1]}, {sCNT[1]}, 1'] + burst + zf
            tail += [f's_sub_u32 {sTO}, {sTO}, 1', f's_cmp_gt_i32 {sTO}, 0', f's_cbranch_scc1 {PB}', f's_branch {PD}']
            fsum = [f'v_add_f32 {Facc[0]}, {Facc[0]}, {Facc[2]}', f'v_add_f32 {Facc[1]}, {Facc[1]}, {Facc[3]}']
            stamp(p, cfg, 10)
            for i in range(7):
                e(f'v_mov_b32 {vt[4]}, 0')
            for l in fsum:
                e(l)
            st_txt = [f'buffer_store_short {vt[0]}, {vMo}, {sWS}, {sMEMW} offen',
                      f'buffer_store_short_d16_hi {vt[0]}, {vMo}, {sWS}, {sMEMW} offen offset:16']
            e(f"""v_cvt_pk_bf16_f32 {vt[0]}, {Facc[0]}, {Facc[1]}
            v_cmpx_o_f32 vcc, {Facc[0]}, {Facc[1]}""")
            for l in st_txt:
                e(l)
            stamp(p, cfg, 7)
            e(f"""s_mov_b64 exec, -1
            s_cmp_lg_u64 vcc, -1
            s_cbranch_scc1 {PF}
            {PD}:""")
            rst = f'buffer_store_dword {vNeg1}, {vMr}, {sWS}, {sMEMRST} offen'
            slow(st_txt + ([f2] if w == (1 if cfg.f2pos >= 20 else 0) else []) + [rst])
            tail += [f'{PF}:', f's_add_u32 {sCNT[1]}, {sCNT[1]}, 0x10000']
            tail += [p_txt(i) for i in range(10)]
            tail += [f's_sub_u32 {sTO}, {sTO}, 1', f's_cmp_gt_i32 {sTO}, 0', f's_cbranch_scc0 {PD}']
            tail += zf + ['s_waitcnt vmcnt(0)']
            tail += [f'v_max3_u32 {vt[0]}, {Afin[0]}, {Afin[1]}, {Afin[2]}']
            for i in range(3, 39, 2):
                tail += [f'v_max3_u32 {vt[0]}, {vt[0]}, {Afin[i]}, {Afin[i + 1]}']
            tail += [f'v_max_u32 {vt[0]}, {vt[0]}, {Afin[39]}', f'v_cmp_eq_u32 vcc, -1, {vt[0]}', f's_cbranch_vccnz {PF}']
            tail += [f_txt(i) for i in range(10)] + fsum + [f'v_cvt_pk_bf16_f32 {vt[0]}, {Facc[0]}, {Facc[1]}'] + st_txt
            tail += [f's_branch {PD}']

        fz(32)

        def vpoll():
            if w == 3:
                nops(e, cfg.vstart)
            poll_loop(cfg.vdepth, LOOP, None, vFo2)
        loop_end(vpoll if w == cfg.vpw else None)
    assert not zq
    e(f'{END}:')
    if fin:
        e(f's_add_u32 {sMEMW}, {sMEMW}, {WS_MEMA - WS_MEMR}')
        for l in st_txt:
            e(l + ' sc1')
    epilogue(p, w, cfg, vt)
    for l in tail:
        if not cfg.diag and any(l.startswith(f's_add_u32 {c},') for c in sCNT):
            continue
        e(l)


HEADER = '''; generated
; @launch grid=(256,1,1) block=(256,1,1) lds=%d
.amdgcn_target "amdgcn-amd-amdhsa--gfx950"
.text
.globl %s
.p2align 8
.type %s,@function
'''
FOOTER = '''.section .rodata,"a"
.p2align 6
.amdhsa_kernel %s
  .amdhsa_next_free_vgpr 512
  .amdhsa_next_free_sgpr 102
  .amdhsa_accum_offset 256
  .amdhsa_group_segment_fixed_size 0
  .amdhsa_kernarg_size 120
  .amdhsa_user_sgpr_count 2
  .amdhsa_user_sgpr_kernarg_segment_ptr 1
  .amdhsa_system_sgpr_workgroup_id_x 1
.end_amdhsa_kernel
'''


def wave_dispatch(e, nm):
    e(f'''s_cmp_eq_u32 {sWAVE}, 0
    s_cbranch_scc1 {nm}0
    s_cmp_eq_u32 {sWAVE}, 1
    s_cbranch_scc1 {nm}1
    s_cmp_eq_u32 {sWAVE}, 2
    s_cbranch_scc1 {nm}2
    s_branch {nm}3''')


def standalone(cfg, name='team_kernel'):
    TL_ON[0] = True
    p = Prog()
    e = p.e
    e(f'{name}:')
    e(f'''s_and_b32 s3, s2, 7
    s_cmp_lg_u32 s3, 0
    s_cbranch_scc1 EXIT
    s_cmp_ge_u32 s2, 256
    s_cbranch_scc1 EXIT
    s_lshr_b32 {sIDX}, s2, 3
    s_mov_b32 s100, {sIDX}
    s_mov_b32 {sSLOW}, 0
    s_load_dwordx2 s[4:5], s[0:1], 112
    s_load_dwordx2 s[12:13], s[0:1], 104
    s_load_dwordx2 s[16:17], s[0:1], 8
    v_lshrrev_b32 v1, 6, v0
    v_readfirstlane_b32 {sWAVE}, v1
    s_mov_b32 s6, {WS_BYTES}
    s_mov_b32 s7, 0x20000
    s_mov_b32 s14, 256
    s_mov_b32 s15, 0x20000
    s_mov_b32 s18, 7168
    s_mov_b32 s19, 0x20000
    s_and_b32 {sH}, {sIDX}, 15''')
    for i in range(NSTAMP):
        e(f's_mov_b32 s{STAMP0 + 2 * i}, 0')
    e(f'''s_waitcnt lgkmcnt(0)
    s_cmp_ge_u32 {sIDX}, 16
    s_cbranch_scc1 ROLE_VO''')
    wave_dispatch(e, 'QK')
    e(f'''ROLE_VO:
    s_cmp_ge_u32 {sH}, 14
    s_cbranch_scc1 ROLE_EN''')
    wave_dispatch(e, 'VO')
    e('ROLE_EN:')
    wave_dispatch(e, 'EN')
    e('EXIT:\ns_endpgm')
    for role, nm in ((0, 'QK'), (1, 'VO'), (2, 'EN')):
        for w in range(4):
            e(f'{nm}{w}:')
            team_wave(p, role, w, cfg)
    return HEADER % (L_END, name, name) + p.text() + FOOTER % name


if __name__ == '__main__':
    import sys
    cfg = Cfg()
    for a in sys.argv[2:]:
        k, v = a.split('=')
        assert hasattr(cfg, k), k
        setattr(cfg, k, int(v) if not isinstance(getattr(cfg, k), str) else v)
    open(sys.argv[1], 'w').write(standalone(cfg))
```

```python
from asmlib import *
from layout import *
from prep import srd

sWS = 's[4:7]'
sW = 's9'
sTO = 's38'
sCN = 's39'
TIMEOUT = 400000
OOB = 0x40000000
MALL = [1]
NRY = 3


def wait_ge(p, vaddr, vtmp, val, sleep=4):
    e = p.e
    L, D = p.label('WT'), p.label('WD')
    e(f'''{L}:
    buffer_load_dword {vtmp}, {vaddr}, {sWS}, {sCN} offen sc1
    s_sub_u32 {sTO}, {sTO}, 1
    s_cmp_gt_i32 {sTO}, 0
    s_cbranch_scc0 {D}
    s_waitcnt vmcnt(0)
    v_cmp_gt_u32 vcc, {val}, {vtmp}
    s_cbranch_vccz {D}
    s_sleep {sleep}
    s_branch {L}
    {D}:''')


def signal(p, vaddr, vtmp):
    e = p.e
    L = p.label('SG')
    e(f'''s_waitcnt vmcnt(0) lgkmcnt(0)
    s_barrier
    s_cmp_lg_u32 {sW}, 0
    s_cbranch_scc1 {L}
    v_mov_b32 {vtmp}, 1
    s_mov_b64 exec, 1
    buffer_atomic_add {vtmp}, {vaddr}, {sWS}, {sCN} offen
    s_mov_b64 exec, -1
    {L}:''')


def go_wait(p, vCA, t0, sA):
    L = p.label('GW')
    p.e(f"""s_cmp_lg_u32 {sW}, 0
    s_cbranch_scc1 {L}
    s_and_b32 {sA}, s8, 7
    s_lshl_b32 {sA}, {sA}, 7
    s_add_u32 {sA}, {sA}, {C_GO}
    v_mov_b32 {vCA}, {sA}""")
    wait_ge(p, vCA, t0, 1, 16)
    p.e(f'{L}:\ns_barrier')


def load_valid(p, loads, regs, vtmp, sleep):
    e = p.e
    L, D = p.label('LV'), p.label('LD')
    e(f'{L}:')
    for l in loads:
        e(l)
    e(f"""s_sub_u32 {sTO}, {sTO}, 1
    s_cmp_gt_i32 {sTO}, 0
    s_cbranch_scc0 {D}""")
    n = len(loads)
    per = len(regs) // n
    for i in range(n):
        e(f's_waitcnt vmcnt({n - 1 - i})')
        r = regs[per * i:per * i + per]
        if per == 1:
            e(f'v_mov_b32 {vtmp}, {r[0]}' if i == 0 else f'v_max_u32 {vtmp}, {vtmp}, {r[0]}')
        else:
            e(f'v_max_u32 {vtmp}, {r[0]}, {r[1]}' if i == 0 else f'v_max3_u32 {vtmp}, {vtmp}, {r[0]}, {r[1]}')
            e(f'v_max3_u32 {vtmp}, {vtmp}, {r[2]}, {r[3]}')
    e(f"""v_cmp_eq_u32 vcc, -1, {vtmp}
    s_cbranch_vccz {D}
    s_sleep {sleep}
    s_branch {L}
    {D}:
    s_waitcnt vmcnt(0)""")


def yt_worker(p, kind):
    e = p.e
    isY = kind == 0
    L_T, L_XA = 65536, 98304
    V = Alloc('v', 1, 254)
    A = Alloc('a', 0, 256)
    vL, vG, vC, t0, t1, t2, vL16, vXB, vCA = (V.get() for _ in range(9))
    x1, x2 = V.get(), V.get()
    if not isY:
        Sx = V.get(8, 4)
        Sm = V.get(8, 4)
    else:
        vIdx, vTo = V.get(), V.get()
    buf = V.get(32, 4)
    acc = V.get(56, 4)
    frag = {}
    for t in range(7):
        for k in range(7):
            frag[(t, k)] = A.get(8, 4) if A.left() >= 8 else V.get(8, 4)
    sS, sCur, sW7, sO, sA, sB, sPrev = 's12', 's13', 's14', 's15', 's16', 's17', 's18'
    TLB = WS_TL + 16384
    e(f"""v_and_b32 {vL}, 63, v0
    v_lshrrev_b32 {vG}, 4, {vL}
    v_and_b32 {vC}, 15, {vL}
    v_lshlrev_b32 {vL16}, 4, {vL}
    v_mov_b32 {vXB}, {vL16}
    s_mov_b32 {sTO}, {TIMEOUT}
    s_mov_b32 {sCN}, {WS_CNT}
    s_mov_b32 {sS}, s11
    s_mov_b32 {sCur}, 0
    s_mov_b32 {sPrev}, {OOB}
    s_mul_i32 {sW7}, {sW}, 7168""")

    def xb_dma(seg, lds):
        e(f"""s_lshl_b32 {sA}, {seg}, 15
        s_add_u32 {sA}, {sA}, {sW7}
        s_add_u32 {sA}, {sA}, {WS_XNB}
        s_add_u32 m0, {lds}, {sW7}""")
        for i in range(7):
            if i == 4:
                e(f's_add_u32 {sA}, {sA}, 4096\ns_add_u32 m0, m0, 4096')
            e(f'buffer_load_dwordx4 {vL16}, {sWS}, {sA} offen offset:{(i & 3) * 1024} sc1 lds')

    def mem_wait():
        e(f"""s_lshl_b32 {sA}, {sS}, 13
        s_add_u32 {sA}, {sA}, {WS_MEMA}
        s_add_u32 {sB}, {sA}, 4096""")
        load_valid(p, [f'buffer_load_dwordx4 {buf[4 * k:4 * k + 4]}, {vL16}, {sWS}, {sA if k < 4 else sB} offen '
                       f'offset:{(k & 3) * 1024} sc1' for k in range(7)], [buf[i] for i in range(28)], t0, 3)
    if not isY:
        go_wait(p, vCA, t0, sA)
    xb_dma(sS, sCur)
    e(f"""s_mul_i32 {sB}, s10, 28
    s_mul_i32 {sA}, {sW}, 7
    s_add_u32 {sB}, {sB}, {sA}
    s_mul_i32 {sB}, {sB}, 14336
    s_add_u32 {sB}, {sB}, {WS_WVO if isY else WS_WQK}""")
    n_out = 7
    for t in range(7):
        for k in range(7):
            f = frag[(t, k)]
            if k % 2 == 0:
                e(f's_add_u32 {sA}, {sB}, {(t * 7 + k) * 2048}')
            o = (k & 1) * 2048
            e(f"""buffer_load_dwordx4 {f[0:4]}, {vL16}, {sWS}, {sA} offen offset:{o} sc1
            buffer_load_dwordx4 {f[4:8]}, {vL16}, {sWS}, {sA} offen offset:{o + 1024} sc1""")
            n_out += 2
            if n_out >= 60:
                e('s_waitcnt vmcnt(40)')
                n_out = 40
    if isY:
        e(f"""v_bfe_u32 {t0}, {vC}, 1, 1
        v_mul_u32_u24 {vIdx}, 0xaaaa, {t0}
        v_add_u32 {vIdx}, 0x4444, {vIdx}
        v_lshlrev_b32 {t0}, 12, {vG}
        v_lshl_add_u32 {t0}, {vC}, 4, {t0}
        s_mul_i32 {sA}, {sW}, {7 * 4096}
        s_lshl_b32 {sB}, s10, 8
        s_add_u32 {sA}, {sA}, {sB}
        v_add_u32 {x1}, {sA}, {t0}
        v_add_u32 {t0}, {4 * 4096}, {x1}
        v_mov_b32 {t1}, {OOB}
        v_cmp_gt_u32 vcc, 3, {vG}
        v_cndmask_b32 {x2}, {t1}, {t0}, vcc
        v_lshrrev_b32 {t0}, 3, {vL}
        v_min_u32 {t0}, 6, {t0}
        v_lshlrev_b32 {t0}, 14, {t0}
        v_and_b32 {t1}, 7, {vL}
        v_lshl_add_u32 {vTo}, {t1}, 7, {t0}
        s_mov_b32 {sO}, {WS_YX + 7 * 16384}""")
    else:
        for i, x in enumerate((x1, x2)):
            e(f"""s_mul_i32 {sA}, {sW}, 7
            s_add_u32 {sA}, {sA}, {i}
            s_lshr_b32 {sB}, {sA}, 1
            s_lshl_b32 {sB}, {sB}, 10
            s_and_b32 {sA}, {sA}, 1
            s_lshl_b32 {sA}, {sA}, 3
            s_add_u32 {sA}, {sA}, {sB}
            s_add_u32 {sA}, {sA}, {L_T}
            v_add_u32 {x}, {sA}, {vL16}""")
        e(f"""s_and_b32 {sA}, {sW}, 1
        s_lshl_b32 {sA}, {sA}, 4
        v_add_u32 {t0}, {sA}, {vC}
        v_lshlrev_b32 {t1}, 2, {vG}""")
        for i in range(8):
            e(f"""v_add_u32 {t2}, {16 * (i >> 2) + (i & 3)}, {t1}
            v_cmp_le_u32 s[{40 + 2 * i}:{41 + 2 * i}], {t2}, {t0}""")

    def init_marks():
        IL = p.label('IL')
        mk = buf[0:4]
        for i in range(4):
            e(f'v_mov_b32 {mk[i]}, -1')
        e(f's_mov_b32 {sO}, s11')
        if not isY:
            e(f"""v_lshlrev_b32 {t0}, 2, {vL}
            s_cmp_ge_u32 {sW}, 2
            s_cbranch_scc1 {IL}x""")
        e(f'{IL}:')
        if isY:
            e(f"""s_lshl_b32 {sA}, {sO}, 17
            s_add_u32 {sA}, {sA}, {WS_YMA}
            buffer_store_dwordx4 {mk}, {x1}, {sWS}, {sA} offen sc1
            buffer_store_dwordx4 {mk}, {x2}, {sWS}, {sA} offen sc1""")
        else:
            e(f"""s_lshl_b32 {sA}, {sO}, 1
            s_add_u32 {sA}, {sA}, {sW}
            s_lshl_b32 {sA}, {sA}, 4
            s_add_u32 {sA}, {sA}, s10
            s_lshl_b32 {sB}, {sA}, 10
            s_add_u32 {sB}, {sB}, {WS_PX}
            s_lshl_b32 {sA}, {sA}, 8
            s_add_u32 {sA}, {sA}, {WS_PM}
            buffer_store_dwordx4 {mk}, {vL16}, {sWS}, {sB} offen sc1
            buffer_store_dword {mk[0]}, {t0}, {sWS}, {sA} offen sc1""")
        e(f"""s_add_u32 {sO}, {sO}, {NRY}
        s_cmp_lt_u32 {sO}, 64
        s_cbranch_scc1 {IL}
        {IL}x:
        v_mov_b32 {vCA}, {C_INIT}""")
        signal(p, vCA, t0)
    e('s_waitcnt vmcnt(0)')
    if not isY:
        init_marks()
    tl(p, 1, 's100', TLB)
    JOB = p.label('JOB')
    nst = 7 if isY else 2
    ndma = 7 if isY else 14
    e(f"""{JOB}:
    s_waitcnt vmcnt({nst}) lgkmcnt(0)
    s_barrier""")

    def rd(q):
        return [f'ds_read_b128 {buf[16 * (q & 1) + 4 * i:16 * (q & 1) + 4 * i + 4]}, {vXB} offset:{xnb_blk(q) * 4096 + i * 1024}'
                for i in range(4)]
    for l in rd(0):
        e(l)
    if not isY:
        e(f"""s_lshl_b32 {sA}, {sS}, 15
        s_lshr_b32 {sB}, {sW}, 1
        s_lshl_b32 {sB}, {sB}, 11
        s_add_u32 {sA}, {sA}, {sB}
        s_add_u32 {sA}, {sA}, {sW7}
        s_add_u32 {sA}, {sA}, {WS_XNA}
        s_add_u32 m0, {sW7}, {L_XA}""")
        for i in range(7):
            if i == 4:
                e(f's_add_u32 {sA}, {sA}, 4096\ns_add_u32 m0, m0, 4096')
            e(f'buffer_load_dwordx4 {vL16}, {sWS}, {sA} offen offset:{(i & 3) * 1024} sc1 lds')
    e(f"""s_add_u32 {sB}, {sS}, {NRY}
    s_min_u32 {sB}, {sB}, 63
    s_xor_b32 {sCur}, {sCur}, 32768""")
    xb_dma(sB, sCur)
    for q in range(7):
        side = rd(q + 1) if q < 6 else []
        e('s_waitcnt lgkmcnt(0)')
        if q == 4 and isY:
            SG = p.label('SG')
            e(f's_waitcnt vmcnt({ndma})')
            if MALL[0]:
                e(f"""s_sub_u32 {sA}, {sO}, {7 * 16384}
                buffer_load_dword {t2}, {vTo}, {sWS}, {sA} offen sc1""")
            e(f"""s_barrier
            s_cmp_lg_u32 {sW}, 0
            s_cbranch_scc1 {SG}
            v_mov_b32 {t0}, 1
            v_mov_b32 {vCA}, {sPrev}
            s_mov_b64 exec, 1
            buffer_atomic_add {t0}, {vCA}, {sWS}, {sCN} offen
            s_mov_b64 exec, -1
            {SG}:""")
        n = 0
        for rh in range(2):
            for t in range(7):
                for kt in range(2):
                    d = acc[8 * t + 4 * kt:8 * t + 4 * kt + 4]
                    xa = buf[16 * (q & 1) + 8 * kt + 4 * rh:16 * (q & 1) + 8 * kt + 4 * rh + 4]
                    wf = frag[(t, q)][4 * rh:4 * rh + 4]
                    c = 0 if (q == 0 and rh == 0) else d
                    if isY:
                        e(f'v_mfma_f32_16x16x32_bf16 {d}, {xa}, {wf}, {c}')
                    else:
                        e(f'v_mfma_f32_16x16x32_bf16 {d}, {wf}, {xa}, {c}')
                    if side and n % 4 == 1:
                        e(side.pop(0))
                    n += 1
    e(f'v_xor_b32 {vXB}, 32768, {vXB}')
    if isY:
        e(f"""s_mul_i32 {sO}, {sS}, {28 * 16384}
        s_mul_i32 {sA}, {sW}, {7 * 16384}
        s_add_u32 {sO}, {sO}, {sA}
        s_lshl_b32 {sA}, s10, 10
        s_add_u32 {sO}, {sO}, {sA}
        s_add_u32 {sO}, {sO}, {WS_YX}""")
        for t in range(7):
            a = acc[8 * t:8 * t + 8]
            for i in range(4):
                e(f'v_cvt_pk_bf16_f32 {a[i]}, {a[2 * i]}, {a[2 * i + 1]}')
            e(f"""buffer_store_dwordx4 {a[0:4]}, {vL16}, {sWS}, {sO} offen sc1
            s_add_u32 {sO}, {sO}, 16384""")
        NF = p.label('NF')
        e(f"""s_lshl_b32 {sPrev}, {sS}, 2
        s_cmp_lg_u32 {sS}, s11
        s_cbranch_scc1 {NF}
        v_mov_b32 {vCA}, {sPrev}
        s_mov_b32 {sPrev}, {OOB}""")
        signal(p, vCA, t0)
        tl(p, 2, 's100', TLB)
        e(f"""{NF}:
        s_sub_u32 {sA}, {sS}, s11
        s_cmp_lg_u32 {sA}, {5 * NRY}
        s_cbranch_scc1 {NF}x
        v_and_b32 {vCA}, 31, {vL}
        v_lshlrev_b32 {vCA}, 2, {vCA}
        v_add_u32 {vCA}, {C_LN}, {vCA}""")
        wait_ge(p, vCA, t0, 1, 8)
        e(f"""{NF}x:
        s_add_u32 {sS}, {sS}, {NRY}
        s_cmp_lt_u32 {sS}, 64
        s_cbranch_scc1 {JOB}
        v_mov_b32 {vCA}, {sPrev}""")
        signal(p, vCA, t0)
        init_marks()
        tl(p, 3, 's100', TLB)
        MJ = p.label('MJ')
        e(f"""s_mov_b32 {sS}, s11
        {MJ}:""")
        for i in range(28):
            e(f'v_mov_b32 {acc[i]}, 0')
        mem_wait()
        for k in range(7):
            for t in range(7):
                e(f'v_smfmac_f32_16x16x64_bf16 {acc[4 * t:4 * t + 4]}, {buf[4 * k:4 * k + 4]}, {frag[(t, k)]}, {vIdx}')
        o = acc[32:40]
        for t in range(7):
            a = acc[4 * t:4 * t + 4]
            e(f"""v_add_f32 {a[0]}, {a[0]}, {a[2]}
            v_add_f32 {a[1]}, {a[1]}, {a[3]}
            v_cvt_pk_bf16_f32 {o[t]}, {a[0]}, {a[1]}""")
        e(f"""v_mov_b32 {o[7]}, 0
        s_lshl_b32 {sO}, {sS}, 17
        s_add_u32 {sO}, {sO}, {WS_YMA}""")
        for b in (0, 4):
            e(f"""v_permlane32_swap_b32 {o[b]}, {o[b + 2]}
            v_permlane32_swap_b32 {o[b + 1]}, {o[b + 3]}
            v_permlane16_swap_b32 {o[b]}, {o[b + 1]}
            v_permlane16_swap_b32 {o[b + 2]}, {o[b + 3]}
            buffer_store_dwordx4 {o[b:b + 4]}, {x1 if b == 0 else x2}, {sWS}, {sO} offen sc1""")
        e(f"""s_add_u32 {sS}, {sS}, {NRY}
        s_cmp_lt_u32 {sS}, 64
        s_cbranch_scc1 {MJ}""")
        tl(p, 4, 's100', TLB)
        e('s_endpgm')
        return
    for t in range(7):
        for qt in range(2):
            a = acc[8 * t + 4 * qt:8 * t + 4 * qt + 4]
            e(f"""v_cvt_pk_bf16_f32 {a[0]}, {a[0]}, {a[1]}
            v_cvt_pk_bf16_f32 {a[1]}, {a[2]}, {a[3]}
            ds_write_b64 {x2 if (t & 1) else x1}, {a[0:2]} offset:{(t >> 1) * 1024 + qt * 14336}""")
    SK = p.label('TSK')
    e(f"""s_waitcnt vmcnt(0) lgkmcnt(0)
    s_barrier
    s_cmp_ge_u32 {sW}, 2
    s_cbranch_scc1 {SK}
    s_mul_i32 {sA}, {sW}, 14336
    s_add_u32 {sA}, {sA}, {L_T}
    v_add_u32 {t0}, {sA}, {vL16}
    v_add_u32 {t2}, {L_XA}, {vL16}""")
    for th in range(14):
        e(f'ds_read_b128 {acc[4 * th:4 * th + 4]}, {t0} offset:{th * 1024}')
    e('s_waitcnt lgkmcnt(6)')

    def xa_rd(i):
        e(f'ds_read_b128 {buf[4 * (i & 7):4 * (i & 7) + 4]}, {t2} offset:{i * 1024}')
    for i in range(8):
        xa_rd(i)
    for i in range(28):
        kt, th = i // 14, i % 14
        e(f's_waitcnt lgkmcnt({min(7, 27 - i)})')
        d = Sx[4 * kt:4 * kt + 4]
        e(f'v_mfma_f32_16x16x32_bf16 {d}, {buf[4 * (i & 7):4 * (i & 7) + 4]}, {acc[4 * th:4 * th + 4]}, {0 if th == 0 else d}')
        if i + 8 < 28:
            xa_rd(i + 8)
    e(f'v_mov_b32 {t1}, 0xff800000')
    for i in range(8):
        e(f'v_cndmask_b32 {Sx[i]}, {t1}, {Sx[i]}, s[{40 + 2 * i}:{41 + 2 * i}]')
    e(f"""v_max3_f32 {t2}, {Sx[0]}, {Sx[1]}, {Sx[2]}
    v_max3_f32 {t2}, {t2}, {Sx[3]}, {Sx[4]}
    v_max3_f32 {t2}, {t2}, {Sx[5]}, {Sx[6]}
    v_max_f32 {t2}, {t2}, {Sx[7]}""")
    mem_wait()
    for k in range(7):
        for v in range(2):
            d = Sm[4 * v:4 * v + 4]
            e(f'v_mfma_f32_16x16x32_bf16 {d}, {buf[4 * k:4 * k + 4]}, {acc[4 * (2 * k + v):4 * (2 * k + v) + 4]}, {0 if k == 0 else d}')
    vals = [Sx[i] for i in range(8)] + [Sm[0], Sm[1]]

    def allred(op):
        e(f"""v_mov_b32 {t1}, {t0}
        v_permlane16_swap_b32 {t0}, {t1}
        v_{op}_f32 {t0}, {t0}, {t1}
        v_mov_b32 {t1}, {t0}
        v_permlane32_swap_b32 {t0}, {t1}
        v_{op}_f32 {t0}, {t0}, {t1}""")
    e(f"""s_lshl_b32 {sA}, {sS}, 1
    s_add_u32 {sA}, {sA}, {sW}
    s_lshl_b32 {sA}, {sA}, 4
    s_add_u32 {sA}, {sA}, s10            ; (s*2+qt)*16 + h
    s_lshl_b32 {sB}, {sA}, 10
    s_add_u32 {sB}, {sB}, {WS_PX}
    s_lshl_b32 {sA}, {sA}, 8
    s_add_u32 {sA}, {sA}, {WS_PM}
    v_add_f32 {Sm[0]}, {Sm[0]}, {Sm[6]}
    v_add_f32 {Sm[1]}, {Sm[1]}, {Sm[7]}
    v_max3_f32 {t0}, {t2}, {Sm[0]}, {Sm[1]}""")
    allred('max')
    for v in vals:
        e(f'v_sub_f32 {v}, {v}, {t0}')
    for v in vals:
        e(f'v_exp_f32 {v}, {v}')
    e(f'v_add_f32 {t0}, {vals[0]}, {vals[1]}')
    for v in vals[2:]:
        e(f'v_add_f32 {t0}, {t0}, {v}')
    allred('add')
    e(f'v_rcp_f32 {t0}, {t0}')
    for v in vals:
        e(f'v_mul_f32 {v}, {v}, {t0}')
    for i in range(4):
        e(f'v_cvt_pk_bf16_f32 {Sx[i]}, {Sx[2 * i]}, {Sx[2 * i + 1]}')
    e(f"""v_cvt_pk_bf16_f32 {Sm[0]}, {Sm[0]}, {Sm[1]}
    buffer_store_dwordx4 {Sx[0:4]}, {vL16}, {sWS}, {sB} offen sc1
    v_lshlrev_b32 {t0}, 4, {vC}
    v_lshl_add_u32 {t0}, {vG}, 2, {t0}
    buffer_store_dword {Sm[0]}, {t0}, {sWS}, {sA} offen sc1
    {SK}:
    s_add_u32 {sS}, {sS}, {NRY}
    s_cmp_lt_u32 {sS}, 64
    s_cbranch_scc1 {JOB}""")
    tl(p, 4, 's100', TLB)
    e('s_endpgm')


def f_worker(p):
    e = p.e
    V = Alloc('v', 1, 256)
    vL, vG, vC, t0, t1, t2, vL16, vCA, vB1 = (V.get() for _ in range(9))
    vQ = [V.get() for _ in range(7)]
    vRo = [V.get() for _ in range(4)]
    vGo = [V.get() for _ in range(4)]
    H = V.get(8, 4)
    Bs = V.get(4, 4)
    acc = V.get(112, 4)
    XF = V.get(56, 4)
    PA = V.get(40, 4)
    sS, sXx, sA, sB, sC, sI, sF1, sF2 = 's12', 's13', 's14', 's15', 's32', 's33', 's34', 's35'
    rW1, rW2, rB1, rB2 = 's[16:19]', 's[20:23]', 's[24:27]', 's[28:31]'
    rX, rO = 's[40:43]', 's[44:47]'
    srd(e, 16, 64, 448 * 1792 * 2)
    srd(e, 20, 80, 448 * 1792 * 2)
    srd(e, 24, 72, 1792 * 2)
    srd(e, 28, 88, 448 * 2)
    srd(e, 40, 0, S * D * 2)
    srd(e, 44, 96, S * D * 2)
    e(f'''v_and_b32 {vL}, 63, v0
    v_lshrrev_b32 {vG}, 4, {vL}
    v_and_b32 {vC}, 15, {vL}
    v_lshlrev_b32 {vL16}, 4, {vL}
    v_lshlrev_b32 {vB1}, 3, {vG}
    s_mov_b32 {sTO}, {TIMEOUT}
    s_mov_b32 {sCN}, {WS_CNT}
    s_lshr_b32 {sS}, s10, 1
    s_and_b32 {sXx}, s10, 1''')
    for q in range(7):
        e(f'v_add_u32 {vQ[q]}, {q * 4096}, {vL16}')
    go_wait(p, vCA, t0, sA)
    e(f'''v_mul_u32_u24 {t0}, {4 * 3584}, {vG}
    v_lshl_add_u32 {t0}, {vC}, 1, {t0}            ; w1 voffset
    v_mul_u32_u24 {t1}, {4 * 896}, {vG}
    v_and_b32 {t2}, 7, {vC}
    v_lshl_add_u32 {t1}, {t2}, 1, {t1}
    v_lshrrev_b32 {t2}, 3, {vC}
    v_lshl_add_u32 {t1}, {t2}, 6, {t1}            ; w2 voffset
    s_lshl_b32 {sI}, s10, 2
    s_add_u32 {sI}, {sI}, {sW}
    s_waitcnt lgkmcnt(0)''')
    C0 = p.label('CV')
    e(f'''{C0}:
    ; W1F id -> ft = id/14, rem = id%14 -> byte (64*chunk + 16*rh)*3584 + 32*ft
    s_mul_i32 {sA}, {sI}, 4682
    s_lshr_b32 {sA}, {sA}, 16
    s_mul_i32 {sB}, {sA}, 14
    s_sub_u32 {sB}, {sI}, {sB}
    s_lshl_b32 {sA}, {sA}, 5
    s_lshr_b32 {sC}, {sB}, 1
    s_mul_i32 {sC}, {sC}, {64 * 3584}
    s_add_u32 {sA}, {sA}, {sC}
    s_and_b32 {sB}, {sB}, 1
    s_mul_i32 {sB}, {sB}, {16 * 3584}
    s_add_u32 {sA}, {sA}, {sB}''')
    for el in range(8):
        rho, b = el >> 1, el & 1
        e(f'''s_add_u32 {sB}, {sA}, {(32 * (rho & 1) + 2 * (rho >> 1) + b) * 3584}
        buffer_load_ushort {acc[el]}, {t0}, {rW1}, {sB} offen''')
    e(f'''; W2F id -> F = id/28, j = id%28 -> byte 32F*896 + (64*(j>>2) + 8*(j&3))*2
    s_mul_i32 {sA}, {sI}, 2341
    s_lshr_b32 {sA}, {sA}, 16
    s_mul_i32 {sB}, {sA}, 28
    s_sub_u32 {sB}, {sI}, {sB}
    s_mul_i32 {sA}, {sA}, {32 * 896}
    s_lshr_b32 {sC}, {sB}, 2
    s_lshl_b32 {sC}, {sC}, 7
    s_add_u32 {sA}, {sA}, {sC}
    s_and_b32 {sB}, {sB}, 3
    s_lshl_b32 {sB}, {sB}, 4
    s_add_u32 {sA}, {sA}, {sB}
    s_add_u32 {sB}, {sA}, {16 * 896}''')
    for el in range(8):
        e(f'buffer_load_ushort {acc[8 + el]}, {t1}, {rW2}, {sA if el < 4 else sB} offen offset:{(el & 3) * 896}')
    e(f'''s_lshl_b32 {sA}, {sI}, 10
    s_add_u32 {sB}, {sA}, {WS_W2F}
    s_add_u32 {sA}, {sA}, {WS_W1F}
    s_waitcnt vmcnt(0)''')
    for i in range(8):
        e(f'v_lshl_or_b32 {acc[16 + i]}, {acc[2 * i + 1]}, 16, {acc[2 * i]}')
    e(f'''buffer_store_dwordx4 {acc[16:20]}, {vL16}, {sWS}, {sA} offen sc1
    buffer_store_dwordx4 {acc[20:24]}, {vL16}, {sWS}, {sB} offen sc1
    s_add_u32 {sI}, {sI}, 512
    s_cmp_lt_u32 {sI}, 1568
    s_cbranch_scc1 {C0}
    v_mov_b32 {vCA}, {C_WF}''')
    signal(p, vCA, t0)
    e(f'''s_lshl_b32 {sA}, {sS}, 15
    s_lshl_b32 {sB}, {sXx}, 11
    s_add_u32 {sA}, {sA}, {sB}
    s_add_u32 {sA}, {sA}, {WS_XNB}''')
    for k in range(7):
        for rh in range(2):
            e(f'buffer_load_dwordx4 {XF[8 * k + 4 * rh:8 * k + 4 * rh + 4]}, {vQ[xnb_blk(k)]}, {sWS}, {sA} offen offset:{rh * 1024} sc1')
    for i in range(112):
        e(f'v_mov_b32 {acc[i]}, 0')
    e(f's_mov_b32 {sA}, 128')
    wait_ge(p, vCA, t0, sA, 8)
    tl(p, 1, 's100', WS_TL + 16384)
    bA = R('a', 0, 112)
    bB = R('a', 112, 112)

    def blk_load(dst, so, i):
        return f'buffer_load_dwordx4 {dst[4 * i:4 * i + 4]}, {vQ[i >> 2]}, {sWS}, {so} offen offset:{(i & 3) * 1024} sc1'
    e(f'''s_mul_i32 {sF1}, {sW}, 28672
    s_add_u32 {sF2}, {sF1}, {WS_W2F}
    s_add_u32 {sF1}, {sF1}, {WS_W1F}
    s_lshl_b32 {sC}, {sW}, 6
    s_mov_b32 {sI}, 0''')
    for i in range(28):
        e(blk_load(bA, sF1, i))
    FL = p.label('FL')
    e(f'''{FL}:
    buffer_load_dwordx2 {Bs[0:2]}, {vB1}, {rB1}, {sC} offen
    buffer_load_dwordx2 {Bs[2:4]}, {vB1}, {rB1}, {sC} offen offset:32
    s_add_u32 {sF1}, {sF1}, {4 * 28672}''')
    for i in range(28):
        a, kk = i // 14, i % 14
        e(f's_waitcnt vmcnt({29})')
        d = H[4 * a:4 * a + 4]
        e(f'v_mfma_f32_16x16x32_bf16 {d}, {bA[4 * i:4 * i + 4]}, {XF[4 * kk:4 * kk + 4]}, {0 if kk == 0 else d}')
        e(blk_load(bB, sF2, i))
    e('s_waitcnt vmcnt(28)')
    for i in range(4):
        a, b = H[2 * i], H[2 * i + 1]
        e(f'''v_cvt_pk_bf16_f32 {t0}, {a}, {b}
        v_lshlrev_b32 {a}, 16, {t0}
        v_and_b32 {b}, 0xffff0000, {t0}
        v_lshlrev_b32 {t1}, 16, {Bs[i]}
        v_and_b32 {t2}, 0xffff0000, {Bs[i]}
        v_add_f32 {a}, {a}, {t1}
        v_add_f32 {b}, {b}, {t2}
        v_cvt_pk_bf16_f32 {t0}, {a}, {b}
        v_lshlrev_b32 {a}, 16, {t0}
        v_and_b32 {b}, 0xffff0000, {t0}
        v_max_f32 {a}, 0, {a}
        v_max_f32 {b}, 0, {b}
        v_mul_f32 {a}, {a}, {a}
        v_mul_f32 {b}, {b}, {b}
        v_cvt_pk_bf16_f32 {PA[i]}, {a}, {b}''')
    for i in range(28):
        e(f's_waitcnt vmcnt({27})')
        d = acc[4 * i:4 * i + 4]
        e(f'v_mfma_f32_16x16x32_bf16 {d}, {PA[0:4]}, {bB[4 * i:4 * i + 4]}, {d}')
        e(blk_load(bA, sF1, i))
    e(f'''s_add_u32 {sF2}, {sF2}, {4 * 28672}
    s_add_u32 {sC}, {sC}, 256
    s_add_u32 {sI}, {sI}, 1
    s_cmp_lt_u32 {sI}, 14
    s_cbranch_scc1 {FL}''')

    def reduce_write(ntile, nq, rowb):
        e(f'''v_mul_u32_u24 {t0}, {4 * rowb}, {vG}
        v_lshl_add_u32 {t0}, {vC}, 2, {t0}
        s_lshl_b32 {sA}, {sW}, 15
        v_add_u32 {t0}, {sA}, {t0}''')
        u = rowb // 256
        for tt in range(ntile):
            for qt in range(nq):
                a = acc[4 * (tt * nq + qt):4 * (tt * nq + qt) + 4]
                for r in (0, 2):
                    o = (16 * qt + r) * u
                    e(f'ds_write2st64_b32 {t0}, {a[r]}, {a[r + 1]} offset0:{o} offset1:{o + u}')
            e(f'v_add_u32 {t0}, 64, {t0}')
        e('s_waitcnt lgkmcnt(0)\ns_barrier')

    def reader_setup(nunit, rowb, jbase_sgpr, rowbase_sgpr):
        mul = {56: 1171, 28: 2341}[nunit]
        for rd in range(4):
            e(f'''v_add_u32 {t0}, {256 * rd}, v0
            v_mul_u32_u24 {t1}, {mul}, {t0}
            v_lshrrev_b32 {t1}, 16, {t1}                 ; token
            v_mul_u32_u24 {t2}, {nunit}, {t1}
            v_sub_u32 {t2}, {t0}, {t2}                   ; q
            v_mul_u32_u24 {vRo[rd]}, {rowb}, {t1}
            v_lshl_add_u32 {vRo[rd]}, {t2}, 5, {vRo[rd]}
            v_add_u32 {t1}, {rowbase_sgpr}, {t1}
            v_mul_u32_u24 {vGo[rd]}, 896, {t1}
            v_and_b32 {t1}, 1, {t2}
            v_lshl_add_u32 {vGo[rd]}, {t1}, 6, {vGo[rd]}
            v_lshrrev_b32 {t2}, 1, {t2}
            v_add_u32 {t2}, {jbase_sgpr}, {t2}           ; j
            v_lshrrev_b32 {t1}, 2, {t2}
            v_lshl_add_u32 {vGo[rd]}, {t1}, 7, {vGo[rd]}
            v_and_b32 {t1}, 3, {t2}
            v_lshl_add_u32 {vGo[rd]}, {t1}, 4, {vGo[rd]}''')
        e(f'''v_cmp_gt_u32 vcc, 128, v0
        v_mov_b32 {t0}, {OOB}
        v_cndmask_b32 {vGo[3]}, {t0}, {vGo[3]}, vcc
        v_cndmask_b32 {vRo[3]}, 0, {vRo[3]}, vcc''')

    def reduce_read(rd, dst):
        e(f'v_add_u32 {t0}, 65536, {vRo[rd]}')
        for ww in range(4):
            ad = vRo[rd] if ww < 2 else t0
            for hh in range(2):
                e(f'ds_read_b128 {dst[8 * ww + 4 * hh:8 * ww + 4 * hh + 4]}, {ad} offset:{(ww & 1) * 32768 + hh * 16}')
        e('s_waitcnt lgkmcnt(0)')
        for i in range(8):
            e(f'''v_add_f32 {dst[i]}, {dst[i]}, {dst[8 + i]}
            v_add_f32 {dst[16 + i]}, {dst[16 + i]}, {dst[24 + i]}
            v_add_f32 {dst[i]}, {dst[i]}, {dst[16 + i]}''')

    def add_packed(vals, pk):
        for i in range(4):
            a, b = vals[2 * i], vals[2 * i + 1]
            e(f'''v_cvt_pk_bf16_f32 {t0}, {a}, {b}
            v_lshlrev_b32 {a}, 16, {t0}
            v_and_b32 {b}, 0xffff0000, {t0}
            v_lshlrev_b32 {t1}, 16, {pk[i]}
            v_and_b32 {t2}, 0xffff0000, {pk[i]}
            v_add_f32 {a}, {a}, {t1}
            v_add_f32 {b}, {b}, {t2}''')

    e('s_waitcnt vmcnt(0)')
    reduce_write(28, 1, 2048)
    e(f'''s_mov_b32 {sA}, 0
    s_mov_b32 {sB}, 0''')
    reader_setup(56, 2048, sA, sB)
    e(f'''s_lshl_b32 {sB}, s10, 4
    s_mul_i32 {sB}, {sB}, 896
    s_add_u32 {sB}, {sB}, {WS_BASE}''')
    for rd in range(4):
        e(f'''v_lshrrev_b32 {t1}, 11, {vRo[rd]}
        v_mul_u32_u24 {t1}, 896, {t1}
        v_sub_u32 {t1}, {vGo[rd]}, {t1}
        buffer_load_dwordx4 {PA[4 * rd:4 * rd + 4]}, {t1}, {rB2}, 0 offen''')
    for rd in range(4):
        d = XF[0:32]
        reduce_read(rd, d)
        e(f's_waitcnt vmcnt({3})' if False else 's_waitcnt vmcnt(0)')
        add_packed(d, PA[4 * rd:4 * rd + 4])
        o = XF[32 + 4 * rd:36 + 4 * rd]
        for i in range(4):
            e(f'v_cvt_pk_bf16_f32 {o[i]}, {d[2 * i]}, {d[2 * i + 1]}')
    for rd in range(4):
        e(f'buffer_store_dwordx4 {XF[32 + 4 * rd:36 + 4 * rd]}, {vGo[rd]}, {sWS}, {sB} offen sc1')
    e(f'''s_lshl_b32 {sA}, {sS}, 7
    s_add_u32 {sA}, {sA}, {C_PY}
    v_mov_b32 {vCA}, {sA}''')
    signal(p, vCA, t0)
    tl(p, 2, 's100', WS_TL + 16384)
    sCG = 's36'
    e(f"""s_cmp_ge_u32 s10, 126
    s_cbranch_scc1 EXIT
    s_mul_i32 {sS}, s10, 147
    s_lshr_b32 {sS}, {sS}, 10
    s_mul_i32 {sCG}, {sS}, 7
    s_sub_u32 {sCG}, s10, {sCG}
    v_mov_b32 {vCA}, {C_INIT}
    s_mov_b32 {sA}, {32 * NRY}""")
    wait_ge(p, vCA, t0, sA, 16)
    YB = R('a', 0, 64)
    XR, BR = XF[16:20], XF[20:24]
    YM = XF[0:16]
    vWr, vRd, vG2 = vRo[0], vRo[1], vGo[0]
    e(f"""; LDS write: w*8192 + 4g*256 + ((n&7) + 32*(n>>3))*4
    v_lshlrev_b32 {vWr}, 10, {vG}
    v_and_b32 {t0}, 7, {vC}
    v_lshl_add_u32 {vWr}, {t0}, 2, {vWr}
    v_lshrrev_b32 {t0}, 3, {vC}
    v_lshl_add_u32 {vWr}, {t0}, 7, {vWr}
    s_lshl_b32 {sA}, {sW}, 13
    v_add_u32 {vWr}, {sA}, {vWr}
    v_lshlrev_b32 {vRd}, 5, v0
    v_lshrrev_b32 {t0}, 3, v0
    v_mul_u32_u24 {vG2}, 896, {t0}
    v_and_b32 {t0}, 7, v0
    v_lshl_add_u32 {vG2}, {t0}, 4, {vG2}
    s_lshl_b32 {sA}, {sCG}, 7
    v_add_u32 {vG2}, {sA}, {vG2}""")
    J2 = p.label('J2')
    e(f"""{J2}:
    s_lshl_b32 {sA}, {sS}, 2
    v_mov_b32 {vCA}, {sA}
    s_mov_b32 {sA}, 16""")
    wait_ge(p, vCA, t0, sA, 8)
    e(f"""s_lshl_b32 {sA}, {sS}, 7
    s_add_u32 {sA}, {sA}, {C_PY}
    v_mov_b32 {vCA}, {sA}
    s_mov_b32 {sA}, 2""")
    wait_ge(p, vCA, t0, sA, 8)
    e(f"""s_mul_i32 {sA}, {sS}, {28 * 16384}
    s_lshl_b32 {sB}, {sCG}, 16
    s_add_u32 {sA}, {sA}, {sB}
    s_lshl_b32 {sB}, {sW}, 12
    s_add_u32 {sA}, {sA}, {sB}
    s_add_u32 {sA}, {sA}, {WS_YX}""")
    for tt in range(4):
        for hh in range(4):
            e(f'buffer_load_dwordx4 {YB[16 * tt + 4 * hh:16 * tt + 4 * hh + 4]}, {vL16}, {sWS}, {sA} offen offset:{hh * 1024} sc1')
        e(f's_add_u32 {sA}, {sA}, 16384')
    e(f"""s_mul_i32 {sI}, {sS}, {32 * 896}
    s_add_u32 {sB}, {sI}, {WS_BASE}
    buffer_load_dwordx4 {XR}, {vG2}, {rX}, {sI} offen
    buffer_load_dwordx4 {BR}, {vG2}, {sWS}, {sB} offen sc1
    s_lshl_b32 {sA}, {sS}, 13
    s_add_u32 {sA}, {sA}, {WS_MEMA}
    v_mov_b32 {t1}, 0""")
    load_valid(p, [f'buffer_load_dword {t2}, {t1}, {sWS}, {sA} offen sc1'], [t2], t0, 8)
    tl(p, 3, 's100', WS_TL + 16384)
    e(f"""s_lshl_b32 {sA}, {sS}, 15
    s_lshl_b32 {sB}, {sW}, 12
    s_add_u32 {sA}, {sA}, {sB}
    s_add_u32 {sA}, {sA}, {WS_PX}
    s_lshl_b32 {sF1}, {sS}, 13
    s_lshl_b32 {sB}, {sW}, 10
    s_add_u32 {sF1}, {sF1}, {sB}
    s_add_u32 {sF1}, {sF1}, {WS_PM}
    s_lshl_b32 {sF2}, {sS}, 17
    s_add_u32 {sF2}, {sF2}, {sB}
    s_lshl_b32 {sB}, {sCG}, 14
    s_add_u32 {sF2}, {sF2}, {sB}
    s_add_u32 {sF2}, {sF2}, {WS_YMA}""")
    lds_ = []
    for hh in range(4):
        for qt in range(2):
            lds_.append(f'buffer_load_dwordx4 {PA[8 * hh + 4 * qt:8 * hh + 4 * qt + 4]}, {vQ[4 * qt]}, {sWS}, {sA} offen offset:{hh * 1024} sc1')
    lds_ += [f'buffer_load_dwordx4 {PA[32 + 4 * qt:36 + 4 * qt]}, {vQ[qt]}, {sWS}, {sF1} offen sc1' for qt in range(2)]
    lds_ += [f'buffer_load_dwordx4 {YM[4 * tt:4 * tt + 4]}, {vQ[tt]}, {sWS}, {sF2} offen sc1' for tt in range(4)]
    load_valid(p, lds_, [PA[i] for i in range(40)] + [YM[i] for i in range(16)], t0, 1)
    for hh in range(5):
        for tt in range(4):
            for qt in range(2):
                d = acc[4 * (2 * tt + qt):4 * (2 * tt + qt) + 4]
                bb = YB[16 * tt + 4 * hh:16 * tt + 4 * hh + 4] if hh < 4 else YM[4 * tt:4 * tt + 4]
                e(f'v_mfma_f32_16x16x32_bf16 {d}, {PA[8 * hh + 4 * qt:8 * hh + 4 * qt + 4]}, {bb}, {0 if hh == 0 else d}')
    for tt in range(4):
        if tt:
            e(f'v_add_u32 {t0}, {32 * tt}, {vWr}')
        for qt in range(2):
            a_ = acc[4 * (2 * tt + qt):4 * (2 * tt + qt) + 4]
            for r in (0, 2):
                e(f'ds_write2st64_b32 {t0 if tt else vWr}, {a_[r]}, {a_[r + 1]} offset0:{16 * qt + r} offset1:{16 * qt + r + 1}')
    e('s_waitcnt lgkmcnt(0)\ns_barrier')
    d = acc[32:64]
    for ww in range(4):
        for hh in range(2):
            e(f'ds_read_b128 {d[8 * ww + 4 * hh:8 * ww + 4 * hh + 4]}, {vRd} offset:{ww * 8192 + hh * 16}')
    e('s_waitcnt lgkmcnt(0)\ns_barrier')
    for i in range(8):
        e(f"""v_add_f32 {d[i]}, {d[i]}, {d[8 + i]}
        v_add_f32 {d[16 + i]}, {d[16 + i]}, {d[24 + i]}
        v_add_f32 {d[i]}, {d[i]}, {d[16 + i]}""")
    add_packed(d, XR)
    add_packed(d, BR)
    o = acc[64:68]
    for i in range(4):
        e(f'v_cvt_pk_bf16_f32 {o[i]}, {d[2 * i]}, {d[2 * i + 1]}')
    e(f"""buffer_store_dwordx4 {o}, {vG2}, {rO}, {sI} offen
    s_add_u32 {sS}, {sS}, 18
    s_cmp_lt_u32 {sS}, 64
    s_cbranch_scc1 {J2}""")
    if TL_ON[0]:
        e('s_waitcnt vmcnt(0)')
    tl(p, 4, 's100', WS_TL + 16384)
    e('s_endpgm')
```

```python
import sys
from asmlib import *
from layout import *
import team, workers, prep
from team import *

NAME = 'parallel_sum__memory_aug_recurrent_mem_tr__dense_activation_squared_relu__prompt'
MAIN_LDS = 131072


def ready_wait(p, kind, lnmask=31):
    e = p.e
    L, W = p.label('RW'), p.label('RB')
    e(f"""s_cmp_lg_u32 {sWAVE}, 0
    s_cbranch_scc1 {W}
    s_mov_b32 s23, {WS_CNT}
    s_and_b32 s22, {sIDX}, 7
    s_lshl_b32 s22, s22, 7
    s_add_u32 s22, s22, {C_LN}
    v_and_b32 v1, {lnmask}, v0
    v_lshlrev_b32 v1, 2, v1
    v_add_u32 v1, s22, v1
    v_and_b32 v3, 15, v0
    v_min_u32 v3, 13, v3
    v_lshlrev_b32 v3, 2, v3""")
    if kind == 'one':
        e(f"""s_lshl_b32 s21, s21, 7
        s_add_u32 s21, s21, {C_MAT}
        v_add_u32 v3, s21, v3
        v_cmp_gt_u32 vcc, 32, v0
        v_cndmask_b32 v1, v3, v1, vcc""")
    if kind == 'vo':
        e(f"""v_lshrrev_b32 v2, 4, v0
        v_lshl_add_u32 v2, v2, 8, v3
        v_add_u32 v2, {C_MAT + 128}, v2""")
    e(f"""s_mov_b32 s22, 200000
    {L}:
    buffer_load_dword v3, v1, s[4:7], s23 offen sc1""")
    if kind == 'vo':
        e("""buffer_load_dword v5, v2, s[4:7], s23 offen sc1
        buffer_load_dword v6, v2, s[4:7], s23 offen offset:1024 sc1
        buffer_load_dword v7, v2, s[4:7], s23 offen offset:2048 sc1
        buffer_load_dword v8, v2, s[4:7], s23 offen offset:3072 sc1""")
    e(f"""s_sub_u32 s22, s22, 1
    s_cmp_gt_i32 s22, 0
    s_cbranch_scc0 {W}
    s_waitcnt vmcnt(0)""")
    if kind == 'vo':
        e('v_min3_u32 v3, v3, v5, v6\nv_min3_u32 v3, v3, v7, v8')
    e(f"""v_cmp_ne_u32 vcc, 1, v3
    s_cbranch_vccz {W}
    s_sleep 4
    s_branch {L}
    {W}:
    s_barrier""")


def done_flag(p, off_sgpr, nrep):
    e = p.e
    W, L, K = p.label('DW'), p.label('DL'), p.label('DK')
    e(f"""s_cmp_lg_u32 {sWAVE}, 0
    s_cbranch_scc1 {W}
    s_mov_b32 s91, 200000
    {L}:
    v_readfirstlane_b32 s92, v253
    s_cmp_eq_u32 s92, 1
    s_cbranch_scc1 {K}
    buffer_load_dword v253, v252, s[84:87], 0 offen sc1
    s_sub_u32 s91, s91, 1
    s_cmp_gt_i32 s91, 0
    s_waitcnt vmcnt(0)
    s_cbranch_scc1 {L}
    {K}:
    v_lshlrev_b32 v250, 7, v0
    v_add_u32 v250, {off_sgpr}, v250
    v_mov_b32 v251, {OOB}
    v_cmp_gt_u32 vcc, {nrep}, v0
    v_cndmask_b32 v250, v251, v250, vcc
    v_mov_b32 v251, 1
    s_mov_b32 s92, {WS_CNT}
    buffer_store_dword v251, v250, s[4:7], s92 offen sc1
    {W}:""")


def main_kernel(p, name, cfg):
    e = p.e
    srd = prep.srd
    WB = 448 * 8192
    e(f'{name}:')
    e(f"""s_cmp_ge_u32 s2, 256
    s_cbranch_scc1 EXIT""")
    srd(e, 84, 104, 256)
    srd(e, 4, 112, WS_BYTES)
    srd(e, 12, 32, WB)
    srd(e, 16, 40, WB)
    srd(e, 40, 16, WB)
    srd(e, 44, 24, WB)
    srd(e, 48, 0, S * D * 2)
    e(f"""v_lshrrev_b32 v1, 6, v0
    v_readfirstlane_b32 s9, v1
    s_getreg_b32 s88, hwreg(HW_REG_XCC_ID)
    s_and_b32 s88, s88, 7""")
    if cfg.fb:
        e("""s_bfe_u32 s20, s2, 0x10003
        s_cmp_eq_u32 s88, 0
        s_cselect_b32 s88, s20, s88""")
    e(f"""; optimistic slot (die, s2>>3); the claim is checked after the first jobs
    s_lshr_b32 s21, s2, 3
    s_mov_b32 {sSLOW}, 0
    s_lshl_b32 s20, s88, 2
    s_add_u32 s20, s20, 160
    s_lshl_b32 s93, 1, s21
    v_mov_b32 v249, s93
    v_mov_b32 v248, {OOB}
    v_mov_b32 v247, s20
    v_cmp_eq_u32 vcc, 0, v0
    v_cndmask_b32 v248, v248, v247, vcc
    v_mov_b32 v252, 16
    v_mov_b32 v253, 0
    s_waitcnt lgkmcnt(0)""")
    tl(p, 0, 's2', WS_TL)
    e(f"""s_cmp_lg_u32 s2, 248
    s_cbranch_scc1 NO_INIT
    ; one workgroup clears the hand-off words, then says so in d_debug
    v_lshlrev_b32 v1, 4, v0
    v_mov_b32 v4, 0
    v_mov_b32 v5, 0
    v_mov_b32 v6, 0
    v_mov_b32 v7, 0""")
    for i in range(6):
        e(f"""s_mov_b32 s20, {WS_CNT + i * 4096}
        buffer_store_dwordx4 v[4:7], v1, s[4:7], s20 offen sc1""")
    e("""s_waitcnt vmcnt(0)
    s_barrier
    v_mov_b32 v2, 1
    buffer_store_dword v2, v252, s[84:87], 0 offen sc1
    NO_INIT:""")
    claim = 'buffer_atomic_or v249, v248, s[84:87], 0 offen sc0'
    e(f"""SLOT:
    s_sub_u32 s22, s88, {cfg.xcc + 1}
    s_and_b32 s22, s22, 7
    s_cmp_eq_u32 s22, 7
    s_cbranch_scc1 PREP_LN
    s_mul_i32 s100, s21, 7
    s_add_u32 s100, s100, s22
    s_add_u32 s100, s100, 32
    s_lshl_b32 s20, s22, 5
    s_add_u32 s20, s20, s21             ; job
    s_mul_i32 s10, s20, 4682
    s_lshr_b32 s10, s10, 16             ; head
    s_mul_i32 s21, s10, 14
    s_sub_u32 s20, s20, s21
    s_lshr_b32 s11, s20, 1              ; chunk
    s_and_b32 s33, s20, 1
    s_lshl_b32 s89, s10, 8
    s_lshl_b32 s20, s20, 2
    s_add_u32 s89, s89, s20
    s_add_u32 s89, s89, {C_MAT}
    s_add_u32 s90, s89, 128""")
    tl(p, 0, 's100', WS_TL + 16384)

    def tn(t0, t1, vL):
        return [f'v_bfe_u32 {t0}, {vL}, 2, 3', f'v_lshlrev_b32 {t0}, 13, {t0}', f'v_and_b32 {t1}, 3, {vL}',
                f'v_lshl_add_u32 {t0}, {t1}, 7, {t0}', 's_lshl_b32 s31, s11, 19', 's_lshl_b32 s32, s33, 18',
                's_add_u32 s31, s31, s32', 's_lshl_b32 s32, s9, 16', 's_add_u32 s31, s31, s32', 's_add_u32 s31, s31, s21']
    tn.rA, tn.rB = 's[40:43]', 's[44:47]'
    prep.gemm_half(p, 1, 's[12:15]', 's[16:19]', tn, 2)
    e('buffer_load_dword v253, v252, s[84:87], 0 offen sc1')

    def sig1(n):
        e(f's_waitcnt vmcnt({n})\ns_barrier')
        done_flag(p, 's90', 1)
        if TL_ON[0]:
            e('s_memrealtime s[68:69]')
    prep.gemm_half(p, 0, 's[40:43]', 's[44:47]', None, 5, sig1, claim)
    e('s_waitcnt vmcnt(0)\ns_barrier')
    done_flag(p, 's89', 1)
    if TL_ON[0]:
        e(f's_lshl_b32 s98, s2, 6\ns_add_u32 s98, s98, {WS_TL}\nv_mov_b32 v255, 0\ns_waitcnt lgkmcnt(0)')
        for i in range(2, 7):
            e(f'v_mov_b32 v254, s{60 + 2 * i}\nbuffer_store_dword v254, v255, s[4:7], s98 offen offset:{4 * i}')
    e('s_branch PREP_DONE\nPREP_LN:')
    e(f"""s_mov_b32 s100, s21
    s_lshl_b32 s89, s21, 2
    s_add_u32 s89, s89, {C_LN}
    s_lshl_b32 s10, s21, 2
    s_add_u32 s10, s10, s9
    {claim}""")
    tl(p, 0, 's100', WS_TL + 16384)
    e("""s_cmp_ge_u32 s21, 16
    s_cselect_b32 s90, 0, 8
    s_cselect_b32 s10, 0, s10
    s_cbranch_scc1 LN_END
    LN_LOOP:""")
    mk = f"""
    v_and_b32 v250, 63, v0
    v_lshlrev_b32 v250, 4, v250
    v_mov_b32 v244, -1
    v_mov_b32 v245, -1
    v_mov_b32 v246, -1
    v_mov_b32 v247, -1
    s_lshl_b32 s20, s10, 12
    s_add_u32 s20, s20, {WS_MEMA}
    """ + '\n'.join(f'buffer_store_dwordx4 v[244:247], v250, s[4:7], s20 offen offset:{1024 * i} sc1' for i in range(4))
    prep.ln_job(p, 'sc1', ([], mk))
    e('LN_END:\nbuffer_load_dword v253, v252, s[84:87], 0 offen sc1\ns_waitcnt vmcnt(0)\ns_barrier')
    done_flag(p, 's89', 's90')
    e('s_cmp_ge_u32 s10, 64\ns_cbranch_scc1 F_CONT')
    e(f"""PREP_DONE:
    v_mov_b32 v4, 0
    s_cmp_lg_u32 s9, 0
    s_cbranch_scc1 EL_WAIT
    v_readfirstlane_b32 s20, v249
    s_and_b32 s20, s20, s93
    s_mov_b32 s21, -1
    s_cbranch_scc0 EL_PUB
    s_lshl_b32 s20, s88, 2
    s_add_u32 s20, s20, 192
    v_mov_b32 v1, 1
    v_mov_b32 v2, s20
    s_mov_b64 exec, 1
    buffer_atomic_add v1, v2, s[84:87], 0 offen sc0
    s_waitcnt vmcnt(0)
    s_mov_b64 exec, -1
    v_readfirstlane_b32 s94, v1
    v_and_b32 v1, 15, v0
    v_lshlrev_b32 v1, 2, v1
    s_mov_b32 s22, 200000
    EL_SUM:
    buffer_load_dword v3, v1, s[84:87], 0 offen offset:160 sc1
    s_waitcnt vmcnt(0)
    s_mov_b32 s23, 0""")
    for i in range(16):
        e(f'v_readlane_b32 s{24 + i}, v3, {i}')
    for i in range(8):
        e(f's_bcnt1_i32_b32 s20, s{24 + i}\ns_add_u32 s23, s23, s20\ns_add_u32 s23, s23, s{32 + i}')
    e(f"""s_sub_u32 s22, s22, 1
    s_cmp_gt_i32 s22, 0
    s_cbranch_scc0 EL_BAD
    s_cmp_lt_u32 s23, 256
    s_cbranch_scc1 EL_SUM
    v_readlane_b32 s95, v3, s88
    s_mov_b32 s21, 0
    s_bcnt0_i32_b32 s20, s95
    s_cmp_lt_u32 s94, s20
    s_cbranch_scc1 EL_BIT
    v_mov_b32 v1, 1
    v_mov_b32 v2, 4
    s_mov_b64 exec, 1
    buffer_atomic_add v1, v2, s[84:87], 0 offen sc0
    s_waitcnt vmcnt(0)
    s_mov_b64 exec, -1
    v_readfirstlane_b32 s22, v1
    s_mov_b32 s21, 256""")
    for i in range(8):
        e(f"""s_bcnt0_i32_b32 s20, s{24 + i}
        s_min_u32 s23, s20, s{32 + i}
        s_sub_u32 s20, s20, s23
        s_add_u32 s94, s23, s22
        s_mov_b32 s95, s{24 + i}
        s_mov_b32 s88, {i}
        s_cmp_lt_u32 s22, s20
        s_cbranch_scc1 EL_BIT
        s_sub_u32 s22, s22, s20""")
    e(f"""EL_BAD:
    s_mov_b32 s21, -2
    s_branch EL_PUB
    EL_BIT:
    s_ff0_i32_b32 s20, s95
    s_bitset1_b32 s95, s20
    s_sub_u32 s94, s94, 1
    s_cbranch_scc0 EL_BIT
    s_and_b32 s20, s20, 31
    s_add_u32 s21, s21, s20
    s_lshl_b32 s20, s88, 16
    s_add_u32 s21, s21, s20
    EL_PUB:
    v_mov_b32 v1, s21
    ds_write_b32 v4, v1
    s_waitcnt lgkmcnt(0)
    EL_WAIT:
    s_barrier
    ds_read_b32 v1, v4
    s_waitcnt lgkmcnt(0)
    v_readfirstlane_b32 s21, v1
    s_cmp_eq_u32 s21, -1
    s_cbranch_scc1 EL_OK
    s_cmp_eq_u32 s21, -2
    s_cbranch_scc1 EXIT
    s_barrier
    s_bfe_u32 {sSLOW}, s21, 0x10008
    s_bfe_u32 s88, s21, 0x30010
    s_and_b32 s21, s21, 31
    s_mov_b32 s93, 0
    v_mov_b32 v248, {OOB}
    s_branch SLOT
    EL_OK:""")
    tl(p, 1, 's2', WS_TL)
    srd(e, 16, 8, 7168)
    e(f's_mov_b32 {sIDX}, s100\ns_waitcnt lgkmcnt(0)')
    e(f"""s_cmp_ge_u32 {sIDX}, 32
    s_cbranch_scc1 WORKER
    s_and_b32 {sH}, {sIDX}, 15""")
    if cfg.diag:
        for i in range(NSTAMP):
            e(f's_mov_b32 s{STAMP0 + 2 * i}, 0')
    e(f"""s_cmp_ge_u32 {sIDX}, 16
    s_cbranch_scc1 ROLE_VO
    s_barrier""")
    wave_dispatch(e, 'QK')
    e(f"""ROLE_VO:
    s_cmp_ge_u32 {sH}, 14
    s_cbranch_scc1 ROLE_EN""")
    e('s_barrier')
    wave_dispatch(e, 'VO')
    e(f"""ROLE_EN:
    v_lshlrev_b32 v1, 7, v0
    s_and_b32 s20, {sH}, 1
    s_mul_i32 s20, s20, {9 * 32768}
    s_add_u32 s20, s20, {WS_MEMR}""")
    for i in range(9):
        e(f'buffer_load_dword v9, v1, s[4:7], s20 offen sc1\ns_add_u32 s20, s20, 32768')
    e('s_waitcnt vmcnt(0)')
    ready_wait(p, 'ln', 15)
    wave_dispatch(e, 'EN')
    e(f"""WORKER:
    s_sub_u32 s8, s8, 32
    s_cmp_ge_u32 s8, 96
    s_cbranch_scc1 ROLE_F
    s_cmp_ge_u32 s8, 48
    s_cselect_b32 s20, 48, 0
    s_sub_u32 s20, s8, s20            ; y
    s_cmp_ge_u32 s20, 42
    s_cbranch_scc1 WK_HI
    s_cmp_ge_u32 s20, 21
    s_cselect_b32 s21, 21, 0
    s_cselect_b32 s10, 7, 0
    s_sub_u32 s20, s20, s21
    s_mul_i32 s11, s20, 37
    s_lshr_b32 s11, s11, 8            ; replica
    s_mul_i32 s21, s11, 7
    s_sub_u32 s20, s20, s21
    s_add_u32 s10, s10, s20           ; head
    s_branch WK_GO
    WK_HI:
    s_cmp_ge_u32 s20, 45
    s_cselect_b32 s10, 15, 14
    s_cselect_b32 s21, 45, 42
    s_sub_u32 s11, s20, s21
    WK_GO:
    s_lshl_b32 s21, s10, 1
    s_cmp_ge_u32 s8, 48
    s_cbranch_scc1 ROLE_T
    s_add_u32 s21, s21, 1""")
    ready_wait(p, 'one', 15)
    tl(p, 5, 's100', WS_TL + 16384)
    workers.yt_worker(p, 0)
    e('EXIT:\ns_endpgm')
    e('ROLE_T:')
    ready_wait(p, 'one')
    workers.yt_worker(p, 1)
    e(f"""ROLE_F:
    s_cmp_ge_u32 s8, 112
    s_cbranch_scc1 F_CONT
    s_sub_u32 s10, s8, 80
    s_lshl_b32 s89, s10, 2
    s_add_u32 s89, s89, {C_LN}
    s_mov_b32 s90, 8
    s_lshl_b32 s10, s10, 2
    s_add_u32 s10, s10, s9
    s_branch LN_LOOP
    F_CONT:""")
    ready_wait(p, 'ln')
    e('s_sub_u32 s10, s8, 96')
    workers.f_worker(p)
    for role, nm in ((0, 'QK'), (1, 'VO'), (2, 'EN')):
        for w in range(4):
            e(f'{nm}{w}:')
            team_wave(p, role, w, cfg)


def build(cfg):
    TL_ON[0] = bool(cfg.tl)
    workers.MALL[0] = cfg.mall
    hdr = open('cdna_kernels/%s.s.ref' % NAME).read().split('; Override launch')[0]
    hdr += '; @launch grid=(256,1,1) block=(256,1,1) lds=%d\n' % max(prep.H_LDS, L_END, MAIN_LDS)
    hdr += '.amdgcn_target "amdgcn-amd-amdhsa--gfx950"\n.text\n'
    out = hdr
    p = Prog()
    main_kernel(p, NAME + '_kernel', cfg)
    out += '.globl %s_kernel\n.p2align 8\n.type %s_kernel,@function\n' % (NAME, NAME) + p.text()
    out += prep.KD % (NAME + '_kernel', 512)
    out = out.replace('\n    ', '\n')
    return out


def parse(args):
    cfg = Cfg()
    cfg.xcc = 0
    cfg.tl = 0
    cfg.fb = 0
    cfg.mall = 0
    for a in args:
        k, v = a.split('=')
        assert hasattr(cfg, k), k
        setattr(cfg, k, int(v))
    return cfg


if __name__ == '__main__':
    open(sys.argv[1], 'w').write(build(parse(sys.argv[2:])))
```

```python
import math, struct
from asmlib import *
from layout import *

LOG2E_16 = struct.unpack('<I', struct.pack('<f', math.log2(math.e) / 16))[0]
P_LA = 0
P_LB = 32768
P_LDS = P_LB + 4 * 28672


def srd(e, s, koff, nbytes):
    e(f'''s_load_dwordx2 s[{s}:{s + 1}], s[0:1], {koff}
    s_mov_b32 s{s + 2}, {nbytes}
    s_mov_b32 s{s + 3}, 0x20000''')


def gemm_job(p, mat, st='', mid=None):
    e = p.e
    V = Alloc('v', 1, 250)
    vL, vG, vC, t0, t1 = (V.get() for _ in range(5))
    vAo, vBo, vRd, vL16, vTr = (V.get() for _ in range(5))
    Af = V.get(32, 4)
    Bf = V.get(56, 4)
    acc = V.get(112, 4)
    o = V.get(8, 4)
    e(f'''v_and_b32 {vL}, 63, v0
    v_lshrrev_b32 {vG}, 4, {vL}
    v_and_b32 {vC}, 15, {vL}
    v_lshlrev_b32 {vL16}, 4, {vL}
    v_and_b32 {t0}, 3, {vL}
    v_xor_b32 {t0}, {t0}, {vG}
    v_lshlrev_b32 {t0}, 4, {t0}
    v_lshrrev_b32 {t1}, 2, {vL}
    v_lshl_add_u32 {vAo}, {t1}, 13, {t0}
    v_and_b32 {t1}, 3, {t1}
    v_lshl_add_u32 {t1}, {vG}, 3, {t1}
    v_lshl_add_u32 {vBo}, {t1}, 13, {t0}
    v_lshrrev_b32 {t0}, 2, {vC}
    v_xor_b32 {t0}, {t0}, {vG}
    v_lshl_add_u32 {t0}, {vC}, 2, {t0}
    v_lshlrev_b32 {vRd}, 4, {t0}
    s_lshl_b32 s20, s11, 19
    s_lshl_b32 s21, s9, 17
    s_add_u32 s20, s20, s21
    s_lshl_b32 s21, s10, 9
    s_add_u32 s20, s20, s21
    s_lshl_b32 s22, s9, 13
    s_mul_i32 s23, s9, 7168''')
    for ks in range(8):
        e(f'''s_add_u32 m0, s22, {P_LA + ks * (1024 - 64)}
        buffer_load_dwordx4 {vAo}, s[12:15], s20 offen offset:{ks * 64} lds''')
    if mat == 0:
        for tt in range(7):
            e(f'''s_mul_i32 s31, s9, 7
            s_add_u32 s31, s31, {tt}
            s_lshr_b32 s32, s31, 1
            s_lshl_b32 s32, s32, 18
            s_and_b32 s31, s31, 1
            s_lshl_b32 s31, s31, 15
            s_add_u32 s31, s31, s32
            s_add_u32 s{24 + tt}, s31, s21''')
        e(f'v_add_u32 {vTr}, s23, {vRd}')
    else:
        e(f'''s_mul_i32 s24, s10, 229376
        s_add_u32 s24, s24, s23
        v_lshrrev_b32 {t0}, 2, {vC}
        v_lshl_add_u32 {t0}, {vG}, 3, {t0}
        v_mul_u32_u24 {t0}, 896, {t0}
        v_and_b32 {t1}, 1, {vC}
        v_lshl_add_u32 {t0}, {t1}, 3, {t0}
        v_bfe_u32 {t1}, {vC}, 1, 1
        v_lshl_add_u32 {vTr}, {t1}, 6, {t0}''')
        vT = [V.get() for _ in range(7)]
        for tt in range(7):
            e(f'''s_mul_i32 s31, s9, 7
            s_add_u32 s31, s31, {tt}
            s_lshr_b32 s32, s31, 2
            s_lshl_b32 s32, s32, 7
            s_and_b32 s31, s31, 3
            s_lshl_b32 s31, s31, 4
            s_add_u32 s31, s31, s32
            s_add_u32 s31, s31, {P_LB}
            v_add_u32 {vT[tt]}, s31, {vTr}''')

    from team import VM
    vm = VM(e)

    def dma_b(ks):
        base = P_LB + (ks & 3) * 28672
        o_ = []
        for tt in range(7):
            if mat == 0:
                o_.append(([f's_add_u32 m0, s23, {base + tt * 1024 - ks * 64}'],
                           f'buffer_load_dwordx4 {vBo}, s[16:19], s{24 + tt} offen offset:{ks * 64} lds'))
            else:
                su = []
                if tt in (0, 4):
                    su = [f's_add_u32 m0, s23, {base + tt * 1024}', f's_add_u32 s31, s24, {ks * 28672 + tt * 1024}']
                o_.append((su, f'buffer_load_dwordx4 {vL16}, s[16:19], s31 offen offset:{(tt & 3) * 1024} lds'))
        return [(su, l, ('b', ks)) for su, l in o_]

    def emit(job):
        for x in job[0]:
            e(x)
        vm.issue(job[1], job[2])

    def reads(ks):
        b = ks & 1
        o_ = []
        if mat == 1 and ks in (2, 4, 6):
            for tt in range(7):
                o_.append(f'{"v_subrev_u32" if ks == 4 else "v_add_u32"} {vT[tt]}, {2 * 28672}, {vT[tt]}')
        for rt in range(4):
            o_.append(f'ds_read_b128 {Af[16 * b + 4 * rt:16 * b + 4 * rt + 4]}, {vRd} offset:{P_LA + (rt * 8 + ks) * 1024}')
        for tt in range(7):
            d = Bf[28 * b + 4 * tt:28 * b + 4 * tt + 4]
            if mat == 0:
                o_.append(f'ds_read_b128 {d}, {vRB[ks & 3]} offset:{tt * 1024}')
            else:
                off = (ks & 1) * 28672
                o_.append(f'ds_read_b64_tr_b16 {d[0:2]}, {vT[tt]} offset:{off}')
                o_.append(f'ds_read_b64_tr_b16 {d[2:4]}, {vT[tt]} offset:{off + 4 * 896}')
        return o_
    for j in dma_b(0):
        emit(j)
    if mat == 0:
        e(f"""v_lshrrev_b32 {t0}, 2, {vL}
        v_lshlrev_b32 {t0}, 13, {t0}
        v_and_b32 {t1}, 3, {vL}
        v_lshl_add_u32 {t0}, {t1}, 7, {t0}""")
        vm.issue(f'buffer_load_dword {o[0]}, {t0}, s[16:19], s20 offen')
        vRB = [V.get() for _ in range(4)]
        for i in range(4):
            e(f'v_add_u32 {vRB[i]}, {P_LB + i * 28672}, {vTr}')
    else:
        e(f"""v_lshlrev_b32 {t0}, 7, {vL}
        s_lshl_b32 s31, s11, 2
        s_add_u32 s31, s31, s9
        s_lshl_b32 s31, s31, 13
        s_mul_i32 s32, s10, 229376
        s_add_u32 s31, s31, s32""")
        vm.issue(f'buffer_load_dword {o[0]}, {t0}, s[16:19], s31 offen')
    for ks in (1, 2, 3):
        for j in dma_b(ks):
            emit(j)
    vm.wait(('b', 0))
    e('s_barrier')
    for l in reads(0):
        e(l)
    for ks in range(8):
        side = []
        if ks < 7:
            vm.wait(('b', ks + 1))
        e('s_waitcnt lgkmcnt(0)')
        if ks < 7:
            e('s_barrier')
            side = reads(ks + 1)
        if TL_ON[0]:
            e(f's_memrealtime s[{60 + 2 * ks}:{61 + 2 * ks}]')
        dj = dma_b(ks + 4) if ks + 4 < 8 else []
        if ks == 4 and mid is not None:
            dj = [mid]
        b = ks & 1
        n = 0
        for tt in range(7):
            for rt in range(4):
                d = acc[16 * tt + 4 * rt:16 * tt + 4 * rt + 4]
                e(f'v_mfma_f32_16x16x32_bf16 {d}, {Af[16 * b + 4 * rt:16 * b + 4 * rt + 4]}, '
                  f'{Bf[28 * b + 4 * tt:28 * b + 4 * tt + 4]}, {0 if ks == 0 else d}')
                if n % 4 == 0 and dj:
                    emit(dj.pop(0))
                if side:
                    e(side.pop(0))
                n += 1
        assert not side and not dj
    if TL_ON[0]:
        e('s_memrealtime s[76:77]')
    e(f'''s_mul_i32 s20, s10, 28
    s_mul_i32 s21, s9, 7
    s_add_u32 s20, s20, s21
    s_mul_i32 s20, s20, 7
    s_add_u32 s20, s20, s11
    s_lshl_b32 s20, s20, 11
    s_add_u32 s20, s20, {WS_WQK if mat == 0 else WS_WVO}
    s_mov_b32 s21, {LOG2E_16}''')
    for tt in range(7):
        a = acc[16 * tt:16 * tt + 16]
        if mat == 0:
            for i in range(16):
                e(f'v_mul_f32 {a[i]}, s21, {a[i]}')
        oo = Bf[8 * (tt % 4):8 * (tt % 4) + 8]
        for hi in range(2):
            for v in range(2):
                r = a[4 * (2 * v + hi):4 * (2 * v + hi) + 4]
                e(f'v_cvt_pk_bf16_f32 {oo[4 * hi + v]}, {r[0]}, {r[1]}')
                e(f'v_cvt_pk_bf16_f32 {oo[4 * hi + 2 + v]}, {r[2]}, {r[3]}')
        e(f'''buffer_store_dwordx4 {oo[0:4]}, {vL16}, s[4:7], s20 offen {st}
        buffer_store_dwordx4 {oo[4:8]}, {vL16}, s[4:7], s20 offen offset:1024 {st}
        s_add_u32 s20, s20, {7 * 2048}''')
    if TL_ON[0]:
        e(f's_lshl_b32 s98, s2, 6\ns_add_u32 s98, s98, {WS_TL}\nv_mov_b32 v255, 0\ns_waitcnt lgkmcnt(0)')
        for i in range(9):
            e(f'v_mov_b32 v254, s{60 + 2 * i}\nbuffer_store_dword v254, v255, s[4:7], s98 offen offset:{8 + 4 * i}')


H_LB = 32768
NRING = 7
H_LDS = H_LB + NRING * 16384


def gemm_half(p, mat, rA, rB, touch_next=None, tlslot=2, after_issue=None, mid=None):
    from team import VM
    e = p.e
    V = Alloc('v', 1, 244)
    vL, vG, vC, t0, t1, vL16 = (V.get() for _ in range(6))
    vD = [V.get(), V.get()]
    vE = [V.get(), V.get()]
    vRa = [V.get(), V.get()]
    vRb = [V.get(), V.get()]
    vT = [V.get() for _ in range(7)]
    dummy = V.get()
    Af = V.get(16, 4)
    Bf = V.get(56, 4)
    acc = V.get(56, 4)
    vm = VM(e)
    e(f"""v_and_b32 {vL}, 63, v0
    v_lshrrev_b32 {vG}, 4, {vL}
    v_and_b32 {vC}, 15, {vL}
    v_lshlrev_b32 {vL16}, 4, {vL}
    s_and_b32 s34, s9, 1
    s_lshr_b32 s35, s9, 1
    v_and_b32 {t0}, 7, {vL}
    v_xor_b32 {t0}, {t0}, {vG}
    v_lshlrev_b32 {t0}, 4, {t0}
    v_lshrrev_b32 {t1}, 3, {vL}
    v_lshl_add_u32 {vD[0]}, {t1}, 13, {t0}
    v_xor_b32 {vD[1]}, 64, {vD[0]}
    v_add_u32 {vD[1]}, {8 * 8192}, {vD[1]}
    v_lshrrev_b32 {t1}, 1, {vC}
    v_xor_b32 {t1}, {t1}, {vG}
    v_lshlrev_b32 {t1}, 4, {t1}
    v_lshl_add_u32 {t1}, {vC}, 7, {t1}
    s_lshl_b32 s20, s34, 13
    v_add_u32 {vRa[0]}, s20, {t1}
    v_xor_b32 {vRa[1]}, 64, {vRa[0]}
    s_lshl_b32 s20, s11, 19
    s_lshl_b32 s21, s9, 17
    s_add_u32 s20, s20, s21
    s_lshl_b32 s21, s10, 9
    s_add_u32 s20, s20, s21
    s_lshl_b32 s22, s9, 13""")

    def a_dma(kp):
        for pc in range(2):
            e(f's_add_u32 m0, s22, {kp * 2048 + pc * 1024 - kp * 128}')
            vm.issue(f'buffer_load_dwordx4 {vD[pc]}, {rA}, s20 offen offset:{kp * 128} lds', ('a', kp))
    if mat == 0:
        e(f"""v_lshrrev_b32 {t1}, 5, {vL}
        v_bfe_u32 {vE[0]}, {vL}, 3, 2
        v_lshl_add_u32 {t1}, {t1}, 3, {vE[0]}
        v_lshl_add_u32 {vE[0]}, {t1}, 13, {t0}
        s_lshl_b32 s23, s34, 6
        v_xor_b32 {vE[0]}, s23, {vE[0]}
        s_lshl_b32 s23, s34, 17
        v_add_u32 {vE[0]}, s23, {vE[0]}
        s_mul_i32 s23, s35, {7 * 8192}
        s_add_u32 s23, s23, {H_LB}
        v_and_b32 {t1}, 0x1fff, {vRa[0]}
        v_add_u32 {vRb[0]}, s23, {t1}
        v_xor_b32 {vRb[1]}, 64, {vRb[0]}
        s_lshl_b32 s31, s34, 10
        s_add_u32 s23, s23, s31""")
        for tt in range(7):
            e(f"""s_mul_i32 s31, s33, 14
            s_mul_i32 s32, s35, 7
            s_add_u32 s31, s31, s32
            s_add_u32 s31, s31, {tt}
            s_lshr_b32 s32, s31, 1
            s_lshl_b32 s32, s32, 18
            s_and_b32 s31, s31, 1
            s_lshl_b32 s31, s31, 15
            s_add_u32 s31, s31, s32
            s_add_u32 s{24 + tt}, s31, s21""")
        for kp in range(4):
            a_dma(kp)
            for tt in range(7):
                e(f's_add_u32 m0, s23, {tt * 8192 + kp * 2048 - kp * 128}')
                vm.issue(f'buffer_load_dwordx4 {vE[0]}, {rB}, s{24 + tt} offen offset:{kp * 128} lds', ('b', 2 * kp))
            vm.tag[('b', 2 * kp + 1)] = vm.tag[('b', 2 * kp)]
            if kp == 0 and after_issue:
                after_issue(vm.n)
        late = {}
    else:
        e(f"""v_lshrrev_b32 {t1}, 5, {vL}
        v_and_b32 {t0}, 31, {vL}
        v_xor_b32 {t0}, {t0}, {t1}
        s_lshl_b32 s23, s34, 3
        v_xor_b32 {t0}, s23, {t0}
        v_lshlrev_b32 {t0}, 4, {t0}
        v_mul_u32_u24 {t1}, 896, {t1}
        v_add_u32 {vE[0]}, {t0}, {t1}
        v_xor_b32 {t0}, 32, {t0}
        v_add_u32 {vE[1]}, {t0}, {t1}
        s_mul_i32 s24, s10, 229376
        s_mul_i32 s23, s33, 384
        s_add_u32 s24, s24, s23
        s_mul_i32 s23, s9, {8 * 896}
        s_add_u32 s24, s24, s23
        s_lshl_b32 s23, s9, 12
        s_add_u32 s23, s23, {H_LB}
        v_lshrrev_b32 {t0}, 2, {vC}
        v_lshl_add_u32 {t1}, {vG}, 3, {t0}
        v_lshlrev_b32 {vRb[0]}, 9, {t1}
        v_and_b32 {t1}, 11, {t1}
        v_and_b32 {t0}, 1, {vC}
        v_lshl_add_u32 {vRb[0]}, {t0}, 3, {vRb[0]}
        v_add_u32 {vRb[0]}, {H_LB}, {vRb[0]}
        v_and_b32 {t0}, 2, {vC}
        v_lshlrev_b32 {t0}, 1, {t0}""")
        for tt in range(7):
            e(f"""s_mul_i32 s31, s33, 14
            s_mul_i32 s32, s35, 7
            s_add_u32 s31, s31, s32
            s_add_u32 s31, s31, {tt}
            s_lshr_b32 s32, s31, 2
            s_lshl_b32 s32, s32, 3
            s_and_b32 s31, s31, 3
            s_add_u32 s31, s31, s32
            s_mul_i32 s32, s33, 24
            s_sub_u32 s31, s31, s32
            v_add_u32 {vT[tt]}, s31, {t0}
            v_xor_b32 {vT[tt]}, {vT[tt]}, {t1}
            v_lshl_add_u32 {vT[tt]}, {vT[tt]}, 4, {vRb[0]}""")

        def b_jobs(ks):
            o_ = []
            for pc in range(4):
                su = [f's_add_u32 m0, s23, {(ks % NRING) * 16384 + pc * 1024}',
                      f's_add_u32 s31, s24, {ks * 28672 + pc * 1792}']
                o_.append((su, f'buffer_load_dwordx4 {vE[pc & 1]}, {rB}, s31 offen lds', ('b', ks)))
            return o_
        for ks in range(NRING):
            if ks % 2 == 0:
                a_dma(ks // 2)
            for su, l, tg in b_jobs(ks):
                for x in su:
                    e(x)
                vm.issue(l, tg)
        late = {ks - NRING: b_jobs(ks) for ks in range(NRING, 8)}
    def reads(ks):
        b = ks & 1
        o_ = []
        if mat == 1 and ks in (3, 6, 7):
            dlt = {3: 3 * 16384, 6: 3 * 16384, 7: -6 * 16384}[ks]
            for tt in range(7):
                o_.append(f'{"v_subrev_u32" if dlt < 0 else "v_add_u32"} {vT[tt]}, {abs(dlt)}, {vT[tt]}')
        for v in range(2):
            o_.append(f'ds_read_b128 {Af[8 * b + 4 * v:8 * b + 4 * v + 4]}, {vRa[ks & 1]} offset:{v * 16384 + (ks >> 1) * 2048}')
        for tt in range(7):
            d = Bf[28 * b + 4 * tt:28 * b + 4 * tt + 4]
            if mat == 0:
                o_.append(f'ds_read_b128 {d}, {vRb[ks & 1]} offset:{tt * 8192 + (ks >> 1) * 2048}')
            else:
                off = (ks % 3 if ks < 6 else 0) * 16384
                o_.append(f'ds_read_b64_tr_b16 {d[0:2]}, {vT[tt]} offset:{off}')
                o_.append(f'ds_read_b64_tr_b16 {d[2:4]}, {vT[tt]} offset:{off + 2048}')
        return o_
    vm.wait(('b', 0))
    e('s_barrier')
    for l in reads(0):
        e(l)
    for ks in range(8):
        side = []
        sync = ks < 7 and (mat == 1 or ks % 2 == 1)
        if sync:
            vm.wait(('b', ks + 1))
        e('s_waitcnt lgkmcnt(0)')
        if sync:
            e('s_barrier')
        if ks < 7:
            side = reads(ks + 1)
        if TL_ON[0] and ks == 0:
            e(f's_memrealtime s[{68 + 2 * tlslot}:{69 + 2 * tlslot}]')
        for su, l, tg in late.get(ks, []):
            for x in su:
                e(x)
            vm.issue(l, tg)
        if touch_next and ks == 0:
            for x in touch_next(t0, t1, vL):
                e(x)
            vm.issue(f'buffer_load_dword {dummy}, {t0}, {touch_next.rA}, s31 offen')
            vm.issue(f'buffer_load_dword {dummy}, {t0}, {touch_next.rB}, s31 offen')
        if mid and ks == 1:
            vm.issue(mid)
        b = ks & 1
        for tt in range(7):
            for v in range(2):
                d = acc[8 * tt + 4 * v:8 * tt + 4 * v + 4]
                e(f'v_mfma_f32_16x16x32_bf16 {d}, {Af[8 * b + 4 * v:8 * b + 4 * v + 4]}, '
                  f'{Bf[28 * b + 4 * tt:28 * b + 4 * tt + 4]}, {0 if ks == 0 else d}')
                for _ in range(2):
                    if side:
                        e(side.pop(0))
        assert not side
    if TL_ON[0]:
        e(f's_memrealtime s[{70 + 2 * tlslot}:{71 + 2 * tlslot}]')
    e('s_barrier')
    if mat == 0:
        e("""s_mul_i32 s20, s10, 28
        s_mul_i32 s21, s33, 14
        s_add_u32 s20, s20, s21
        s_mul_i32 s21, s35, 7
        s_add_u32 s20, s20, s21""")
    else:
        e(f"""s_mul_i32 s20, s35, {7 * 32}
        s_lshl_b32 s21, s10, 1
        s_add_u32 s20, s20, s21
        s_add_u32 s20, s20, s33""")
    tstride = 7 * 2048 * (1 if mat == 0 else 32)
    e(f"""s_mul_i32 s20, s20, 7
    s_add_u32 s20, s20, s11
    s_lshl_b32 s20, s20, 11
    s_lshl_b32 s21, s34, 10
    s_add_u32 s20, s20, s21
    s_add_u32 s20, s20, {WS_WQK if mat == 0 else WS_WVO}
    s_mov_b32 s21, {LOG2E_16}""")
    for tt in range(7):
        a = acc[8 * tt:8 * tt + 8]
        if mat == 0:
            for i in range(8):
                e(f'v_mul_f32 {a[i]}, s21, {a[i]}')
        oo = Bf[4 * tt:4 * tt + 4]
        for v in range(2):
            e(f'v_cvt_pk_bf16_f32 {oo[v]}, {a[4 * v]}, {a[4 * v + 1]}')
            e(f'v_cvt_pk_bf16_f32 {oo[2 + v]}, {a[4 * v + 2]}, {a[4 * v + 3]}')
        e(f"""buffer_store_dwordx4 {oo}, {vL16}, s[4:7], s20 offen sc1
        s_add_u32 s20, s20, {tstride}""")


NBUILD = 4


def qk_tile_T(w, t):
    st_, pos = QK_TILES[w][t]
    return 2 * set_quad(w, st_, pos & 1, pos >> 1) + (pos >> 1)


def built_agpr(t, chunk):
    return (chunk * 6 + (t if t < 4 else t - 1)) * 8


def qk_build(p, rA, rB):
    e = p.e
    V = Alloc('v', 1, 244)
    vL, t0, t1, vL16 = (V.get() for _ in range(4))
    vD = [V.get() for _ in range(4)]
    vRa = [V.get() for _ in range(4)]
    vRb = [V.get() for _ in range(4)]
    Af = V.get(16, 4)
    Bf = V.get(56, 4)
    acc = V.get(56, 4)
    Bv = V.get(56, 4)
    Ba = R('a', 48 * NBUILD, 56)
    assert 48 * NBUILD + 56 <= 256
    bres = lambda ks, tt: (Bv if ks < 2 else Ba)[28 * (ks & 1) + 4 * tt:28 * (ks & 1) + 4 * tt + 4]
    e(f"""v_and_b32 {vL}, 63, v0
    v_lshlrev_b32 {vL16}, 4, {vL}
    v_lshrrev_b32 {t1}, 4, {vL}
    v_and_b32 {t0}, 15, {vL}
    v_xor_b32 {vD[0]}, {t0}, {t1}
    v_lshlrev_b32 {vD[0]}, 4, {vD[0]}
    v_lshl_add_u32 {vRa[0]}, {t0}, 8, {vD[0]}
    v_lshl_add_u32 {vD[0]}, {t1}, 13, {vD[0]}
    s_lshl_b32 s21, s10, 9
    s_mul_i32 s23, s9, 28672
    s_add_u32 s23, s23, {P_LB}
    s_mul_i32 s32, s10, {28 * 14336}
    s_add_u32 s32, s32, {WS_WQK}
    s_lshr_b32 s20, s9, 1
    s_lshl_b32 s22, s20, 14
    s_lshl_b32 s20, s20, 18
    s_add_u32 s20, s20, s21
    s_and_b32 s31, s9, 1
    s_lshl_b32 s34, s31, 12
    s_add_u32 s22, s22, s34
    s_lshl_b32 s31, s31, 8
    s_add_u32 s20, s20, s31""")
    for i in range(1, 4):
        e(f'v_xor_b32 {vD[i]}, {64 * i}, {vD[0]}')
        e(f'v_xor_b32 {vRa[i]}, {64 * i}, {vRa[0]}')
    for i in range(4):
        e(f'v_add_u32 {vRb[i]}, s23, {vRa[i]}')
    TD = p.label('TD')
    for w in range(4):
        nx = p.label('TN')
        if w < 3:
            e(f's_cmp_lg_u32 s9, {w}\ns_cbranch_scc1 {nx}')
        for t in range(7):
            T = qk_tile_T(w, t)
            e(f's_add_u32 s{24 + t}, s21, {(32 * (T >> 1) + 4 * (T & 1)) * 8192}')
            e(f's_add_u32 s{52 + t}, s32, {T * 14336}')
        if w < 3:
            e(f's_branch {TD}\n{nx}:')
    e(f'{TD}:')

    def a_fill():
        o_ = []
        for pc in range(4):
            o_.append(([f's_add_u32 m0, s22, {pc * 1024}', f's_add_u32 s31, s20, {pc * 4 * 8192}'],
                       f'buffer_load_dwordx4 {vD[pc]}, {rA}, s31 offen lds'))
        step = ['s_xor_b32 s22, s22, 8192', 's_bitcmp1_b32 s22, 13', f's_cselect_b32 s31, 16, 48', 's_lshl_b32 s31, s31, 13',
                's_add_u32 s20, s20, s31']
        return o_, step

    def emit(j):
        for x in j[0]:
            e(x)
        e(j[1])

    def b_fill(kh):
        for tt in range(7):
            for pc in range(4):
                e(f's_add_u32 m0, s23, {tt * 4096 + pc * 1024}')
                e(f's_add_u32 s31, s{24 + tt}, {pc * 8 * 8192 + kh * 256}')
                e(f'buffer_load_dwordx4 {vD[pc]}, {rB}, s31 offen lds')
    e(f"""v_lshlrev_b32 {t0}, 16, {vL}
    buffer_load_dword {t1}, {t0}, {rB}, s21 offen
    buffer_load_dword {t1}, {t0}, {rA}, s21 offen""")
    b_fill(0)
    js, step = a_fill()
    for j in js:
        emit(j)
    for x in step:
        e(x)
    e(f"""v_lshrrev_b32 {t0}, 1, {vL}
    v_lshlrev_b32 {t0}, 13, {t0}
    v_and_b32 {t1}, 1, {vL}
    v_lshl_add_u32 {t0}, {t1}, 7, {t0}
    s_mul_i32 s31, s9, {112 * 8192}
    s_add_u32 s31, s31, s21""")
    for i in range(4):
        e(f'buffer_load_dword {t1}, {t0}, {rB}, s31 offen offset:256')
        e(f's_add_u32 s31, s31, {32 * 8192 if i < 2 else 16 * 8192}')
    for tt in range(7):
        e(f's_waitcnt vmcnt({8 + 4 * (6 - tt)}) lgkmcnt(8)')
        for ks in range(4):
            e(f'ds_read_b128 {bres(ks, tt)}, {vRb[ks]} offset:{tt * 4096}')
    e('s_waitcnt lgkmcnt(0)')
    b_fill(1)
    e(f's_mov_b32 s59, {LOG2E_16}\ns_mov_b32 s33, 0\ns_waitcnt vmcnt(32)')

    def a_rd(ks):
        return [f'ds_read_b128 {Af[8 * (ks & 1) + 4 * v:8 * (ks & 1) + 4 * v + 4]}, {vRa[ks & 3]} offset:{v * 16384 + (ks >> 2) * 4096}'
                for v in range(2)]

    def b_rd(ks):
        return [f'ds_read_b128 {Bf[28 * (ks & 1) + 4 * tt:28 * (ks & 1) + 4 * tt + 4]}, {vRb[ks & 3]} offset:{tt * 4096}'
                for tt in range(7)]
    PS = p.label('PS')
    e(f'{PS}:\ns_barrier')
    if TL_ON[0]:
        e(f"""s_memrealtime s[96:97]
        s_lshl_b32 s98, s2, 6
        s_lshl_b32 s99, s33, 2
        s_add_u32 s98, s98, s99
        s_add_u32 s98, s98, {WS_TL + 28}
        s_waitcnt lgkmcnt(0)
        v_mov_b32 v254, s96
        v_mov_b32 v255, 0
        buffer_store_dword v254, v255, s[4:7], s98 offen""")
    for l in a_rd(0):
        e(l)
    js, step = a_fill()
    for j in js:
        emit(j)
    for x in step:
        e(x)
    for ks in range(8):
        if ks == 3:
            e('s_waitcnt vmcnt(4)')
        e('s_waitcnt lgkmcnt(0)')
        side = (a_rd(ks + 1) if ks < 7 else []) + (b_rd(ks + 1) if 3 <= ks < 7 else [])
        for tt in range(7):
            for v in range(2):
                d = acc[8 * tt + 4 * v:8 * tt + 4 * v + 4]
                bb = bres(ks, tt) if ks < 4 else Bf[28 * (ks & 1) + 4 * tt:28 * (ks & 1) + 4 * tt + 4]
                e(f'v_mfma_f32_16x16x32_bf16 {d}, {Af[8 * (ks & 1) + 4 * v:8 * (ks & 1) + 4 * v + 4]}, {bb}, {0 if ks == 0 else d}')
                if side:
                    e(side.pop(0))
        assert not side
    for i in range(4):
        e(f'v_xor_b32 {vRa[i]}, 8192, {vRa[i]}')
    e('s_waitcnt vmcnt(0)')
    for tt in range(7):
        a = acc[8 * tt:8 * tt + 8]
        for i in range(8):
            e(f'v_mul_f32 {a[i]}, s59, {a[i]}')
        oo = Bf[4 * tt:4 * tt + 4]
        for v in range(2):
            e(f'v_cvt_pk_bf16_f32 {oo[v]}, {a[4 * v]}, {a[4 * v + 1]}')
            e(f'v_cvt_pk_bf16_f32 {oo[2 + v]}, {a[4 * v + 2]}, {a[4 * v + 3]}')
        e(f"""buffer_store_dwordx4 {oo}, {vL16}, s[4:7], s{52 + tt} offen sc1
        s_add_u32 s{52 + tt}, s{52 + tt}, 1024""")
    BD = p.label('BD')
    for q in range(2 * NBUILD):
        nx = p.label('BN')
        e(f's_cmp_lg_u32 s33, {q}\ns_cbranch_scc1 {nx}')
        for tt in range(7):
            if tt != 4:
                for i in range(4):
                    e(f'v_accvgpr_write_b32 a{built_agpr(tt, q >> 1) + 4 * (q & 1) + i}, {Bf[4 * tt + i]}')
        e(f's_branch {BD}\n{nx}:')
    e(f"""{BD}:
    s_add_u32 s33, s33, 1
    s_cmp_lt_u32 s33, {2 * NBUILD}
    s_cbranch_scc1 {PS}""")


def ln_job(p, st='', mid=None):
    e = p.e
    V = Alloc('v', 1, 244)
    vL, vG, vC, t0, t1, vL16, vO, mean, rs = (V.get() for _ in range(9))
    X = V.get(56, 4)
    Fv = V.get(112, 4)
    Bq = V.get(64, 4)
    e(f'''v_and_b32 {vL}, 63, v0
    v_lshrrev_b32 {vG}, 4, {vL}
    v_and_b32 {vC}, 15, {vL}
    v_lshlrev_b32 {vL16}, 4, {vL}
    v_mul_u32_u24 {vO}, 896, {vC}
    v_lshl_add_u32 {vO}, {vG}, 4, {vO}
    s_mul_i32 s20, s10, {16 * 896}''')
    for th in range(14):
        e(f'buffer_load_dwordx4 {X[4 * th:4 * th + 4]}, {vO}, s[48:51], s20 offen offset:{64 * th}')
    e(f'''v_mov_b32 {t0}, 0
    v_mov_b32 {t1}, 0''')
    for th in range(14):
        e(f's_waitcnt vmcnt({13 - th})')
        for d in range(4):
            i = 4 * th + d
            e(f'''v_lshlrev_b32 {Fv[2 * i]}, 16, {X[i]}
            v_and_b32 {Fv[2 * i + 1]}, 0xffff0000, {X[i]}
            v_add_f32 {t0}, {t0}, {Fv[2 * i]}
            v_add_f32 {t1}, {t1}, {Fv[2 * i + 1]}''')

    if mid is not None:
        e(mid[1])

    def allred(x, y):
        e(f'''v_mov_b32 {y}, {x}
        v_permlane16_swap_b32 {x}, {y}
        v_add_f32 {x}, {x}, {y}
        v_mov_b32 {y}, {x}
        v_permlane32_swap_b32 {x}, {y}
        v_add_f32 {x}, {x}, {y}''')
    inv = struct.unpack('<I', struct.pack('<f', 1.0 / 448))[0]
    eps = struct.unpack('<I', struct.pack('<f', 1e-5))[0]
    e(f'v_add_f32 {t0}, {t0}, {t1}')
    allred(t0, t1)
    e(f'''v_mul_f32 {mean}, {inv}, {t0}
    v_mov_b32 {t0}, 0
    v_mov_b32 {rs}, 0''')
    for i in range(0, 112, 2):
        e(f'''v_sub_f32 {t1}, {Fv[i]}, {mean}
        v_sub_f32 {vO}, {Fv[i + 1]}, {mean}
        v_fmac_f32 {t0}, {t1}, {t1}
        v_fmac_f32 {rs}, {vO}, {vO}''')
    e(f'v_add_f32 {t0}, {t0}, {rs}')
    allred(t0, t1)

    def rnd(x):
        e(f'''v_cvt_pk_bf16_f32 {x}, {x}, {x}
        v_and_b32 {x}, 0xffff0000, {x}''')
    e(f'v_mul_f32 {t0}, {inv}, {t0}')
    rnd(t0)
    e(f'v_add_f32 {t0}, {eps}, {t0}')
    rnd(t0)
    e(f'v_sqrt_f32 {t0}, {t0}')
    rnd(t0)
    e(f'v_rcp_f32 {rs}, {t0}')
    rnd(mean)
    for i in range(56):
        a, b = Fv[2 * i], Fv[2 * i + 1]
        e(f'''v_sub_f32 {a}, {a}, {mean}
        v_sub_f32 {b}, {b}, {mean}
        v_cvt_pk_bf16_f32 {X[i]}, {a}, {b}
        v_lshlrev_b32 {a}, 16, {X[i]}
        v_and_b32 {b}, 0xffff0000, {X[i]}
        v_mul_f32 {a}, {a}, {rs}
        v_mul_f32 {b}, {b}, {rs}
        v_cvt_pk_bf16_f32 {X[i]}, {a}, {b}''')
    e(f'''s_lshl_b32 s20, s10, 14
    s_add_u32 s20, s20, {WS_XNA}''')
    for th in range(14):
        if th and th % 4 == 0:
            e('s_add_u32 s20, s20, 4096')
        e(f'buffer_store_dwordx4 {X[4 * th:4 * th + 4]}, {vL16}, s[4:7], s20 offen offset:{(th & 3) * 1024} {st}')
    for k in range(7):
        for v in range(2):
            x = X[4 * (2 * k + v):4 * (2 * k + v) + 4]
            for d in range(4):
                e(f'v_mov_b32 {Bq[8 * k + 4 * (d >> 1) + 2 * (d & 1) + v]}, {x[d]}')
        for q in range(4):
            e(f'v_permlane16_swap_b32 {Bq[8 * k + q]}, {Bq[8 * k + 4 + q]}')
        for q in range(4):
            e(f'v_permlane32_swap_b32 {Bq[8 * k + q]}, {Bq[8 * k + 4 + q]}')
    e(f'''v_and_b32 {t0}, 1, {vG}
    v_cmp_eq_u32 vcc, 0, {t0}''')
    for q in range(8):
        src = Bq[8 * (4 + (q & 1)) + q]
        e(f'v_cndmask_b32 {Bq[56 + q]}, {Bq[48 + q]}, {src}, vcc')
    e(f'''s_lshr_b32 s20, s10, 1
    s_lshl_b32 s20, s20, 15
    s_and_b32 s21, s10, 1
    s_lshl_b32 s21, s21, 11
    s_add_u32 s20, s20, s21
    s_add_u32 s20, s20, {WS_XNB}''')
    for k in range(8):
        blk = xnb_blk(k) if k < 7 else 7
        e(f'''s_add_u32 s21, s20, {blk * 4096}
        buffer_store_dwordx4 {Bq[8 * k:8 * k + 4]}, {vL16}, s[4:7], s21 offen {st}
        buffer_store_dwordx4 {Bq[8 * k + 4:8 * k + 8]}, {vL16}, s[4:7], s21 offen offset:1024 {st}''')


def prep_kernel(p, name):
    e = p.e
    e(f'{name}:')
    e('''s_cmp_ge_u32 s2, 256
    s_cbranch_scc1 PREP_EXIT
    v_lshrrev_b32 v1, 6, v0
    v_readfirstlane_b32 s9, v1
    s_and_b32 s3, s2, 7
    s_lshr_b32 s8, s2, 3''')
    srd(e, 4, 112, WS_BYTES)
    e('''s_cmp_ge_u32 s8, 28
    s_cbranch_scc1 PREP_LN
    s_mul_i32 s20, s8, 37
    s_lshr_b32 s20, s20, 8        ; q/7
    s_mul_i32 s21, s20, 7
    s_sub_u32 s11, s8, s21        ; chunk
    s_lshl_b32 s3, s3, 2
    s_add_u32 s20, s20, s3
    s_lshr_b32 s10, s20, 1
    s_bitcmp1_b32 s20, 0
    s_cbranch_scc1 PREP_VO''')
    srd(e, 12, 16, 448 * 8192)
    srd(e, 16, 24, 448 * 8192)
    e('s_waitcnt lgkmcnt(0)')
    tl(p, 0, 's2', WS_TL)
    gemm_job(p, 0)
    e('s_waitcnt vmcnt(0)')
    tl(p, 1, 's2', WS_TL)
    e('s_endpgm\nPREP_VO:')
    srd(e, 12, 32, 448 * 8192)
    srd(e, 16, 40, 448 * 8192)
    e('s_waitcnt lgkmcnt(0)')
    tl(p, 0, 's2', WS_TL)
    gemm_job(p, 1)
    e('s_waitcnt vmcnt(0)')
    tl(p, 1, 's2', WS_TL)
    e('s_endpgm\nPREP_LN:')
    srd(e, 12, 0, S * D * 2)
    e(f'''s_sub_u32 s10, s2, 224
    s_lshl_b32 s10, s10, 2
    s_add_u32 s10, s10, s9
    s_waitcnt lgkmcnt(0)
    v_and_b32 v1, 63, v0
    v_lshlrev_b32 v1, 2, v1
    v_mov_b32 v2, 0
    s_lshl_b32 s20, s10, 8
    s_add_u32 s20, s20, {WS_CNT}
    buffer_store_dword v2, v1, s[4:7], s20 offen''')
    tl(p, 0, 's2', WS_TL)
    ln_job(p)
    e('s_waitcnt vmcnt(0)')
    tl(p, 1, 's2', WS_TL)
    e('PREP_EXIT:\ns_endpgm')


KD = '''.section .rodata,"a"
.p2align 6
.amdhsa_kernel %s
  .amdhsa_next_free_vgpr %d
  .amdhsa_next_free_sgpr 102
  .amdhsa_accum_offset 256
  .amdhsa_group_segment_fixed_size 0
  .amdhsa_kernarg_size 120
  .amdhsa_user_sgpr_count 2
  .amdhsa_user_sgpr_kernarg_segment_ptr 1
  .amdhsa_system_sgpr_workgroup_id_x 1
.end_amdhsa_kernel
'''

if __name__ == '__main__':
    import sys
    p = Prog()
    prep_kernel(p, 'prep_kernel')
    txt = '; @launch grid=(256,1,1) block=(256,1,1) lds=%d\n.amdgcn_target "amdgcn-amd-amdhsa--gfx950"\n.text\n.globl prep_kernel\n.p2align 8\n.type prep_kernel,@function\n' % P_LDS
    open(sys.argv[1], 'w').write(txt + p.text() + KD % ('prep_kernel', 256))
```

```python
from asmlib import *
from layout import *

sWS = 's[4:7]'
sIDX, sWAVE, sSTEP = 's8', 's9', 's10'
sH = 's11'
sDBG = 's[12:15]'
sM0D = 's[16:19]'
sJ = 's24'
sMEM, sMEM2 = 's26', 's27'
sP, sPRST = 's28', 's29'
sMEMW, sMEMRST = 's32', 's33'
sT0, sT1, sT2, sT3 = 's34', 's35', 's36', 's37'
sTO = 's38'
sSTEP1 = 's39'
sYX = 's40'
sDA = 's41'
sFLG = 's43'
sTIME = 's[44:45]'
sTIME2 = 's[46:47]'
sV0 = 's[48:49]'
sCHK = 's[50:51]'
sXS, sXS2 = 's52', 's53'
sYXS, sYXS2 = 's64', 's65'
sYQ = ['s64', 's65', 's54', 's55']
sPQ = ['s20', 's21', 's22', 's23']
sRO = ['s56', 's57', 's58', 's59']
sSLOW = 's66'
sCNT = ['s68', 's69', 's70', 's71']
NSTAMP = 12
STAMP0 = 72

L_W = 0
L_SP = 4 * 14336
L_DUMP = L_SP + 4 * 1296
L_YM = 10 * 14336
L_TB = L_YM + 8192
L_END = L_TB + 64
NF2 = 14
OOB = 0x40000000
TIMEOUT = 200000
FLAG_STRIDE = 640
FLAG2_OFF = 4096 + 128
NREP = [4, 8]


class Cfg:
    stamps = 0
    dual = 1
    alone = 0
    diag = 1
    nsteps = 63
    fake = 0
    delay = 0
    vdelay = 0
    flagpos = 1
    pdelay = 0
    f2pos = 2
    nsc = 1
    gap = 14
    pdepth = 7
    pspace = 0
    vdepth = 2
    fz1 = 4
    fz2 = 6
    qtouch = 0
    vah = 4
    ywarm = 4
    sb = 0
    vpw = 0
    gapbar = 1
    qlate = 0
    lead = 4
    wtlb = 1
    gostep = 2
    qah = 4
    xsall = 1
    rot = 1
    qpace = 2
    chk = 2
    standin = 1
    nowait = 1
    nrep1 = 4
    nrep2 = 4
    qdepth = 5
    qstart = 0
    vstart = 64
    ppace = 0
    prio = 0
    bpos = 9
    vchk = 1
    selfpoll = 1
    nyx = 12
    tlb = 1
    xsb = 1
    pf = 3


def stamp(p, cfg, i):
    if cfg.stamps:
        p.e(f's_memtime s[{STAMP0 + 2 * i}:{STAMP0 + 2 * i + 1}]')


def nops(e, n):
    while n > 0:
        k = min(n, 16)
        e(f's_nop {k - 1}')
        n -= k


class VM:
    def __init__(self, e, cnt='vmcnt'):
        self.e, self.n, self.tag, self.cnt = e, 0, {}, cnt

    def issue(self, text, tag=None):
        self.e(text)
        self.n += 1
        if tag is not None:
            self.tag[tag] = self.n

    def wait(self, tag):
        self.e(f's_waitcnt {self.cnt}({self.n - self.tag[tag]})')


def team_barrier(p, w, vt, arrive=True, wait=True):
    e = p.e
    if arrive:
        e('s_waitcnt vmcnt(0) lgkmcnt(0)\ns_barrier')
    lp, done = p.label('TB'), p.label('TBD')
    e(f's_mov_b32 {sT0}, {WS_CNT + C_TB}')
    if w == 0 and arrive:
        e(f"""v_lshlrev_b32 {vt[0]}, 7, v0
        s_lshl_b32 {sT1}, {sIDX}, 2
        v_add_u32 {vt[0]}, {sT1}, {vt[0]}
        v_mov_b32 {vt[1]}, {OOB}
        v_cmp_gt_u32 vcc, 4, v0
        v_cndmask_b32 {vt[0]}, {vt[1]}, {vt[0]}, vcc
        s_add_u32 {sT1}, {sSLOW}, 1
        v_mov_b32 {vt[1]}, {sT1}
        buffer_store_dword {vt[1]}, {vt[0]}, {sWS}, {sT0} offen sc1""")
    if not wait:
        return
    if w == 0:
        e(f"""v_and_b32 {vt[0]}, 31, v0
        v_lshlrev_b32 {vt[0]}, 2, {vt[0]}
        s_and_b32 {sT1}, {sIDX}, 3
        s_lshl_b32 {sT1}, {sT1}, 7
        s_add_u32 {sT0}, {sT0}, {sT1}
        {lp}:
        buffer_load_dword {vt[2]}, {vt[0]}, {sWS}, {sT0} offen sc1
        s_sub_u32 {sTO}, {sTO}, 1
        s_cmp_gt_i32 {sTO}, 0
        s_cbranch_scc0 {done}
        s_waitcnt vmcnt(0)
        v_cmp_eq_u32 vcc, 0, {vt[2]}
        s_cbranch_vccz {done}
        s_sleep 4
        s_branch {lp}
        {done}:
        v_cmp_lt_u32 vcc, 1, {vt[2]}
        s_or_b32 {sSLOW}, vcc_lo, vcc_hi
        v_mov_b32 {vt[1]}, {sSLOW}
        v_mov_b32 {vt[0]}, {L_TB}
        ds_write_b32 {vt[0]}, {vt[1]}
        s_waitcnt lgkmcnt(0)""")
    e(f"""s_barrier
    v_mov_b32 {vt[0]}, {L_TB}
    ds_read_b32 {vt[1]}, {vt[0]}
    s_waitcnt lgkmcnt(0)
    v_readfirstlane_b32 {sSLOW}, {vt[1]}""")


def epilogue(p, w, cfg, vt):
    e = p.e
    if w == 0:
        tl(p, 3, 's100', WS_TL + 16384)
    if not cfg.diag:
        e('s_endpgm')
        return
    e(f"""s_memtime {sTIME2}
    s_waitcnt lgkmcnt(0) vmcnt(0)
    s_sub_u32 s46, s46, s44
    s_lshl_b32 {sT0}, {sIDX}, 2
    s_add_u32 {sT0}, {sT0}, {w}
    s_lshl_b32 {sT0}, {sT0}, 7
    s_add_u32 {sT0}, {sT0}, {WS_STAMP}
    v_mov_b32 {vt[0]}, 0
    v_mov_b32 {vt[1]}, s46
    buffer_store_dword {vt[1]}, {vt[0]}, {sWS}, {sT0} offen
    v_mov_b32 {vt[1]}, {sTO}
    buffer_store_dword {vt[1]}, {vt[0]}, {sWS}, {sT0} offen offset:4""")
    for i in range(NSTAMP):
        e(f"""v_mov_b32 {vt[1]}, s{STAMP0 + 2 * i}
        buffer_store_dword {vt[1]}, {vt[0]}, {sWS}, {sT0} offen offset:{64 + 4 * i}""")
    for i, c in enumerate(sCNT):
        e(f"""v_mov_b32 {vt[1]}, {c}
        buffer_store_dword {vt[1]}, {vt[0]}, {sWS}, {sT0} offen offset:{40 + 4 * i}""")
    if cfg.stamps:
        e(f's_mov_b32 {sT3}, 0')
        for i in range(24):
            e(f"""s_memrealtime s[44:45]
            s_memtime s[46:47]
            s_waitcnt lgkmcnt(0)
            s_mul_i32 s44, s44, 24
            s_sub_u32 s46, s46, s44""")
            if i == 0:
                e(f's_mov_b32 {sT2}, s46')
            e(f"""s_sub_u32 s46, s46, {sT2}
            s_min_i32 {sT3}, {sT3}, s46
            s_nop {i % 5}""")
        e(f"""s_add_u32 {sT2}, {sT2}, {sT3}
        v_mov_b32 {vt[1]}, {sT2}
        buffer_store_dword {vt[1]}, {vt[0]}, {sWS}, {sT0} offen offset:8""")
    e('s_endpgm')


def flag_store_off(e, dst, vLane, tmp, idx_sgpr, base):
    e(f'''v_mul_u32_u24 {dst}, {FLAG_STRIDE}, {vLane}
    s_lshl_b32 {sT1}, {idx_sgpr}, 2
    s_add_u32 {sT1}, {sT1}, {base}
    v_add_u32 {dst}, {sT1}, {dst}
    v_mov_b32 {tmp}, {OOB}
    v_cmp_gt_u32 vcc, {NREP[1 if base else 0]}, {vLane}
    v_cndmask_b32 {dst}, {tmp}, {dst}, vcc''')


def flag_poll_off(e, dst, vLane, base, last):
    e(f'''s_and_b32 {sT1}, {sIDX}, {NREP[1 if base else 0] - 1}
    s_mul_i32 {sT1}, {sT1}, {FLAG_STRIDE}
    s_add_u32 {sT1}, {sT1}, {base}
    v_min_u32 {dst}, {last}, {vLane}
    v_lshlrev_b32 {dst}, 2, {dst}
    v_add_u32 {dst}, {sT1}, {dst}''')


def engine_wave(p, w, cfg):
    e = p.e
    V = Alloc('v', 0, 64)
    vLane = V.get()
    vt = [V.get() for _ in range(5)]
    vL16, vL128, vFo, vFs, vD, vF = V.get(), V.get(), V.get(), V.get(), V.get(), V.get()
    mreg = V.get(8, 4)
    e(f'''v_and_b32 {vLane}, 63, v0
    v_lshlrev_b32 {vL16}, 4, {vLane}
    v_lshlrev_b32 {vL128}, 7, {vLane}
    s_mov_b32 {sFLG}, {WS_FLAGS}
    s_mov_b32 {sSTEP}, 0
    s_mov_b32 {sTO}, {TIMEOUT}''')
    for c in sCNT:
        e(f's_mov_b32 {c}, 0')
    flag_poll_off(e, vFo, vLane, FLAG2_OFF, NF2 - 1)
    e(f's_mov_b32 {sT2}, {NF2}')
    flag_store_off(e, vFs, vLane, vt[4], sT2, FLAG2_OFF)
    vL4, vOne = V.get(), V.get()
    sG, sCN = 's20', 's21'
    e(f"""v_lshlrev_b32 {vL4}, 2, {vLane}
    v_mov_b32 {vOne}, 1
    s_mov_b32 {sCN}, {WS_CNT}
    s_mov_b32 {sG}, {1000 if cfg.alone else -1}""")
    tail = []

    def gate(need, first):
        GL, GD = p.label('GL'), p.label('GD')
        if not first:
            e(f"""s_cmp_ge_i32 {sG}, 63
            s_cbranch_scc1 {GD}""")
        e(f'{GL}:')
        if not cfg.alone:
            e(f"""buffer_load_dword {vF}, {vL4}, {sWS}, {sCN} offen offset:{C_YX} sc1
            s_waitcnt vmcnt(0)
            v_cmp_gt_u32 vcc, 16, {vF}
            s_ff1_i32_b64 {sG}, vcc
            s_cmp_lt_i32 {sG}, 0
            s_cselect_b32 {sG}, 64, {sG}
            s_sub_u32 {sG}, {sG}, 1""")
        e(f"""s_max_i32 {sT1}, {sG}, 0
        v_mov_b32 {vt[0]}, {sT1}
        buffer_store_dword {vt[0]}, {vFs}, {sWS}, {sFLG} offen {'sc1' if first else ''}""")
        if not first:
            sl, bk = p.label('SL'), p.label('SB')
            e(f"""s_cmp_lg_u32 {sSLOW}, 0
            s_cbranch_scc1 {sl}
            {bk}:""")
            tail.extend([f'{sl}:', f'buffer_store_dword {vt[0]}, {vFs}, {sWS}, {sFLG} offen sc1', f's_branch {bk}'])
        e(f"""s_sub_u32 {sTO}, {sTO}, 1
        s_cmp_gt_i32 {sTO}, 0
        s_cbranch_scc0 {GD}
        s_cmp_lt_i32 {sG}, {need}
        s_cbranch_scc1 {GL}
        {GD}:""")
    if w == 1:
        sk = p.label('SK')
        e(f"""s_cmp_lg_u32 {sH}, 14
        s_cbranch_scc1 {sk}""")
        gate(-1, True)
        e(f'{sk}:')
    team_barrier(p, w, vt)
    if not cfg.alone:
        YL, YD = p.label('YL'), p.label('YD')
        e(f"""v_mov_b32 {vt[0]}, {C_YX}
        s_cmp_eq_u32 {sH}, 14
        s_cselect_b32 {sT2}, 16, {cfg.ywarm}
        {YL}:
        buffer_load_dword {vt[1]}, {vt[0]}, {sWS}, {sCN} offen sc1
        s_sub_u32 {sTO}, {sTO}, 1
        s_cmp_gt_i32 {sTO}, 0
        s_cbranch_scc0 {YD}
        s_waitcnt vmcnt(0)
        v_cmp_gt_u32 vcc, {sT2}, {vt[1]}
        s_cbranch_vccz {YD}
        s_sleep 16
        s_branch {YL}
        {YD}:""")
    if cfg.diag:
        e(f's_memtime {sTIME}')
    for i in range(cfg.pf):
        e(f"""s_mov_b32 {sT1}, {WS_XNB + i * 32768 + w * 8192}
        buffer_load_dword {vD}, {vL128}, {sWS}, {sT1} offen sc1""")
    e(f'''s_sub_u32 {sT2}, 15, {sH}
    s_lshl_b32 {sT2}, {sT2}, 15
    s_add_u32 {sT1}, {sT2}, {WS_MEMR + w * 8192}
    buffer_load_dword {vD}, {vL128}, {sWS}, {sT1} offen sc1
    s_add_u32 {sT1}, {sT2}, {WS_PR + w * 8192}
    buffer_load_dword {vD}, {vL128}, {sWS}, {sT1} offen sc1''')
    e(f'v_mov_b32 {vF}, 0')
    LOOP, END, PL, GO, E1, AR, NX = (p.label(x) for x in ('LOOP', 'END', 'PL', 'GO', 'E1', 'AR', 'NX'))
    nq = 16 * cfg.qtouch
    rest = list(range(nq, 56)) if cfg.qtouch else ([u for u in range(28, 56) if u & 1] + [u for u in range(28) if u & 1])[:cfg.nyx]
    n1 = min(len(rest), (len(rest) + 7 + 1) // 2)
    u1, u0 = rest[:n1], rest[n1:]
    clampn = lambda d, s_: f's_and_b32 {d}, {s_}, 1' if cfg.fake else f's_min_u32 {d}, {s_}, 63'
    e(f'''{LOOP}:
    s_add_u32 {sT3}, {sSTEP}, {cfg.pf}
    {clampn(sT3, sT3)}
    s_mul_i32 {sYXS}, {sT3}, {28 * 16384}
    s_add_u32 {sYXS}, {sYXS}, {WS_YX}
    s_lshl_b32 {sXS}, {sT3}, 15
    s_add_u32 {sXS}, {sXS}, {WS_XNB + w * 8192}
    s_lshl_b32 {sMEM}, {sSTEP}, 13
    s_add_u32 {sMEMW}, {sMEM}, {WS_MEMA + w * 2048}
    s_add_u32 {sMEM}, {sMEM}, {WS_MEMR + w * 2048}
    s_cmp_lg_u32 {sH}, 14
    s_cbranch_scc1 {E1}''')
    nch = 2 if w < 3 else 1
    e(f'{AR}:')
    for i in range(nch):
        e(f'buffer_load_dwordx4 {mreg[4 * i:4 * i + 4]}, {vL16}, {sWS}, {sMEM} offen offset:{1024 * i} sc1')
    e(f'''s_sub_u32 {sTO}, {sTO}, 1
    s_cmp_gt_i32 {sTO}, 0
    s_cbranch_scc0 {END}
    s_waitcnt vmcnt(0)
    v_max3_u32 {vt[0]}, {mreg[0]}, {mreg[1]}, {mreg[2]}
    v_max_u32 {vt[0]}, {vt[0]}, {mreg[3]}''')
    if nch == 2:
        e(f'''v_max3_u32 {vt[0]}, {vt[0]}, {mreg[4]}, {mreg[5]}
        v_max3_u32 {vt[0]}, {vt[0]}, {mreg[6]}, {mreg[7]}''')
    e(f'''v_cmp_eq_u32 vcc, -1, {vt[0]}
    s_cbranch_vccnz {AR}''')
    for i in range(nch):
        e(f'buffer_store_dwordx4 {mreg[4 * i:4 * i + 4]}, {vL16}, {sWS}, {sMEMW} offen offset:{1024 * i} sc1')
    if w == 2:
        gs = p.label('GS')
        e(f"""s_cmp_lg_u32 {sSTEP}, {cfg.gostep}
        s_cbranch_scc1 {gs}
        v_mov_b32 {vt[1]}, {OOB}
        v_cmp_gt_u32 vcc, 8, {vLane}
        v_cndmask_b32 {vt[1]}, {vt[1]}, {vL128}, vcc
        s_add_u32 {sT1}, {sCN}, {C_GO}
        buffer_store_dword {vOne}, {vt[1]}, {sWS}, {sT1} offen sc1
        {gs}:""")
    e(f"""s_cmp_ge_u32 {sSTEP}, {cfg.nsteps - 1}
    s_cbranch_scc1 {END}""")
    if w == 1:
        e(f's_add_u32 {sT2}, {sSTEP}, 1')
        e(f's_min_u32 {sT2}, {sT2}, 63')
        gate(sT2, False)
    odd = [u for u in range(56) if u & 1]
    mine = (odd[16:] + odd[:16] if cfg.qlate else odd)[:cfg.nyx][(3 - w)::4]
    nt = len(mine) + 2 + (1 if w == 0 else 0)
    SP = p.label('SP')
    tail += [f'{E1}:', f's_cmp_ge_u32 {sSTEP}, {cfg.nsteps - cfg.pf}', f's_cbranch_scc1 {END}']
    if w == 0:
        tail += [f's_add_u32 {sDA}, {sMEM}, {(cfg.pf + 2) * 8192}', f'buffer_load_dword {vD}, {vL128}, {sWS}, {sDA} offen sc1']
    tail += [f'buffer_load_dword {vD}, {vL128}, {sWS}, {sXS} offen sc1']
    for u in mine:
        tail += [f's_add_u32 {sDA}, {sYXS}, {u * 8192}', f'buffer_load_dword {vD}, {vL128}, {sWS}, {sDA} offen sc1']
    tail += [f's_add_u32 {sSTEP}, {sSTEP}, 1', f's_sub_u32 {sT2}, {sSTEP}, {cfg.lead - cfg.pf}', f's_max_i32 {sT2}, {sT2}, 0',
             f's_waitcnt vmcnt({nt - 1})', f'v_cmp_gt_u32 vcc, {sT2}, {vF}',
             f'buffer_load_dword {vF}, {vFo}, {sWS}, {sFLG} offen sc1', f's_cbranch_vccz {LOOP}',
             f'{SP}:', f's_sub_u32 {sTO}, {sTO}, 1', f's_cmp_gt_i32 {sTO}, 0', f's_cbranch_scc0 {END}', 's_waitcnt vmcnt(0)',
             f'v_cmp_gt_u32 vcc, {sT2}, {vF}', f's_cbranch_vccz {LOOP}', 's_sleep 4',
             f'buffer_load_dword {vF}, {vFo}, {sWS}, {sFLG} offen sc1', f's_branch {SP}']
    e(f'''{NX}:
    s_add_u32 {sSTEP}, {sSTEP}, 1''')
    if w == 0:
        e(f'''{PL}:
        buffer_load_dword {vF}, {vFo}, {sWS}, {sFLG} offen sc1
        s_sub_u32 {sTO}, {sTO}, 1
        s_cmp_gt_i32 {sTO}, 0
        s_cbranch_scc0 {GO}
        s_waitcnt vmcnt(0)
        v_cmp_gt_u32 vcc, {sSTEP}, {vF}
        s_cbranch_vccnz {PL}
        {GO}:''')
    e(f'''s_barrier
    s_branch {LOOP}
    {END}:''')
    epilogue(p, w, cfg, vt)
    for l in tail:
        e(l)


def team_wave(p, role, w, cfg):
    NREP[0], NREP[1] = cfg.nrep1, cfg.nrep2
    if role == 2:
        return engine_wave(p, w, cfg)
    qk = role == 0
    NT = 7 if qk else 8
    NR = 5 if qk else 6
    AH = cfg.qah if qk else cfg.vah
    fin = not qk and w < 2
    slots = (QK_SLOTS if qk else VO_SLOTS)[w]
    V = Alloc('v', 0, 254)
    A = Alloc('a', 0, 256)
    vLane = V.get()
    vG, vC = V.get(), V.get()
    vt = [V.get() for _ in range(5)]
    vIdx, vL16, vStep, vFo, vFs, vNeg1, vWL = (V.get() for _ in range(7))
    lds_tiles = [4] if qk else ([3, 4, 5] if fin else [4, 5])
    memA = V.get(28, 4)
    stg = V.get(16 * len(lds_tiles), 4)
    assert stg.base == memA.base + 28
    Tacc = V.get(4 * NT, 4)
    wl0 = L_W + (w if qk else [0, 3, 6, 8][w]) * 14336
    lds_rel = {t: i * 14336 for i, t in enumerate(lds_tiles)}
    if qk:
        Did = V.get(8, 4)
        AS = V.get(8, 4)
        xsB = V.get(32, 4)
        Alast = V.get(4, 4)
        Sx = V.get(8, 4)
        Sm = V.get(4, 4)
        Idn = V.get(4, 4)
        vSW, vSW2, vSR, vPo, vL128, vSZ = (V.get() for _ in range(6))
        if w == 3:
            Mx = V.get(4, 4)
        Fp = [Did[i] for i in range(8)]
        toucher = w >= 4 - cfg.qtouch
    else:
        Ym = V.get(8, 4)
        vYW, vFo2 = V.get(), V.get()
        Fp = [memA[20 + i] for i in range(8)]
        if fin:
            YX = V.get(64, 4)
            vMo, vMr = V.get(), V.get()
            Afin = R('v', memA.base, 40)
            BM = stg[16:32]
            Facc = stg[32:36]
            Bfin = [BM[0:8], BM[8:16]] + [YX[8 * i:8 * i + 8] for i in range(8)]
    poller = (qk and w == 0) or (not qk and w >= 2)
    frag = {}
    from prep import NBUILD, built_agpr
    built = qk and cfg.sb and not cfg.alone
    if built:
        A.get(48 * NBUILD, 4)
    for t in range(NT):
        if t in lds_tiles:
            continue
        for k in range(7):
            if built and slots[k] < NBUILD:
                frag[(t, k)] = R('a', built_agpr(t, slots[k]), 8)
            else:
                frag[(t, k)] = A.get(8, 4) if A.left() >= 8 else V.get(8, 4)
    e = p.e

    e(f'''v_and_b32 {vLane}, 63, v0
    v_lshrrev_b32 {vG}, 4, {vLane}
    v_and_b32 {vC}, 15, {vLane}
    v_lshlrev_b32 {vL16}, 4, {vLane}
    v_add_u32 {vWL}, {wl0}, {vL16}
    v_bfe_u32 {vt[0]}, {vC}, 1, 1          ; v(c)
    v_lshrrev_b32 {vt[1]}, 2, {vC}
    v_lshlrev_b32 {vt[1]}, 1, {vt[1]}
    v_and_b32 {vt[2]}, 1, {vC}
    v_add_u32 {vt[1]}, {vt[1]}, {vt[2]}    ; m(c)
    v_mul_u32_u24 {vIdx}, 0xaaaa, {vt[0]}
    v_add_u32 {vIdx}, 0x4444, {vIdx}
    v_mov_b32 {vNeg1}, -1
    s_mov_b32 {sFLG}, {WS_FLAGS}''')
    if qk:
        e(f'''v_lshlrev_b32 {vL128}, 7, {vLane}
        v_lshrrev_b32 {vt[2]}, 2, {vC}
        v_and_b32 {vt[3]}, 1, {vC}
        v_lshlrev_b32 {vt[3]}, 4, {vt[3]}
        v_mov_b32 {vt[4]}, 0x3f80
        v_lshlrev_b32 {vt[3]}, {vt[3]}, {vt[4]}
        v_cmp_eq_u32 vcc, {vt[2]}, {vG}
        v_cndmask_b32 {vt[3]}, 0, {vt[3]}, vcc
        v_cmp_eq_u32 vcc, 0, {vt[0]}
        v_cndmask_b32 {Idn[0]}, 0, {vt[3]}, vcc
        v_cndmask_b32 {Idn[1]}, 0, {vt[3]}, vcc
        v_cndmask_b32 {Idn[2]}, {vt[3]}, 0, vcc
        v_cndmask_b32 {Idn[3]}, {vt[3]}, 0, vcc
        s_mov_b64 {sV0}, vcc
        v_mul_u32_u24 {vt[2]}, 320, {vG}
        v_add_u32 {vt[2]}, {L_SP + w * 1296}, {vt[2]}
        v_and_b32 {vt[3]}, 12, {vC}
        v_add_u32 {vt[3]}, {vt[3]}, {vC}
        v_lshl_add_u32 {vSW}, {vt[3]}, 2, {vt[2]}
        v_lshl_add_u32 {vt[2]}, {vt[1]}, 2, {vt[2]}
        v_add_u32 {vt[2]}, 128, {vt[2]}
        v_lshlrev_b32 {vt[3]}, 2, {vC}
        v_add_u32 {vt[3]}, {L_DUMP}, {vt[3]}
        v_cndmask_b32 {vSW2}, {vt[3]}, {vt[2]}, vcc
        v_lshrrev_b32 {vt[0]}, 5, {vLane}
        v_and_b32 {vt[1]}, 31, {vLane}
        v_mul_u32_u24 {vt[2]}, 160, {vt[0]}
        v_lshl_add_u32 {vt[2]}, {vt[1]}, 3, {vt[2]}
        v_add_u32 {vt[2]}, {L_SP + 2 * w * 160}, {vt[2]}
        v_mov_b32 {vt[3]}, {L_SP + 1280}
        v_cmp_gt_u32 vcc, 20, {vt[1]}
        v_cndmask_b32 {vSR}, {vt[3]}, {vt[2]}, vcc
        v_mov_b32 {vt[3]}, {L_SP + 1288}
        v_cndmask_b32 {vSZ}, {vt[3]}, {vt[2]}, vcc
        v_and_b32 {vt[2]}, 1, {vt[1]}
        v_lshl_add_u32 {vt[2]}, {vt[2]}, 1, {vt[0]}
        v_lshlrev_b32 {vt[2]}, 4, {vt[2]}
        v_bfe_u32 {vt[3]}, {vt[1]}, 3, 1
        v_lshl_add_u32 {vt[3]}, {vt[3]}, 8, {vt[2]}
        v_bfe_u32 {vt[4]}, {vt[1]}, 1, 2
        v_lshl_add_u32 {vt[3]}, {vt[4]}, 2, {vt[3]}
        s_lshl_b32 {sT1}, {sH}, 9
        s_add_u32 {sT1}, {sT1}, {2048 + 64 * w}
        v_add_u32 {vt[3]}, {sT1}, {vt[3]}
        v_bfe_u32 {vt[2]}, {vt[1]}, 1, 1
        v_lshlrev_b32 {vt[2]}, 8, {vt[2]}
        v_lshl_add_u32 {vt[2]}, {vt[0]}, 4, {vt[2]}
        v_and_b32 {vt[4]}, 1, {vt[1]}
        v_lshl_add_u32 {vt[2]}, {vt[4]}, 3, {vt[2]}
        s_lshr_b32 {sT1}, {sH}, 2
        s_lshl_b32 {sT1}, {sT1}, 9
        s_and_b32 {sT2}, {sH}, 1
        s_lshl_b32 {sT2}, {sT2}, 5
        s_add_u32 {sT1}, {sT1}, {sT2}
        s_and_b32 {sT2}, {sH}, 2
        s_lshl_b32 {sT2}, {sT2}, 1
        s_add_u32 {sT1}, {sT1}, {sT2}
        s_add_u32 {sT1}, {sT1}, {64 * w}
        v_add_u32 {vt[2]}, {sT1}, {vt[2]}
        v_mov_b32 {vt[4]}, {OOB}
        v_cndmask_b32 {vt[2]}, {vt[4]}, {vt[2]}, vcc
        v_cmp_gt_u32 vcc, 16, {vt[1]}
        v_cndmask_b32 {vPo}, {vt[2]}, {vt[3]}, vcc''')
        for r in range(4):
            e(f'''s_mov_b32 {sT1}, {WS_PR + r * 16384}
            buffer_store_dword {vNeg1}, {vPo}, {sWS}, {sT1} offen sc1''')
        e(f"""v_mov_b32 {vt[2]}, {L_SP + w * 1296 + 1280}
        v_mov_b32 {vt[3]}, 0xf149f2ca
        ds_write2_b32 {vt[2]}, {vt[3]}, {vt[3]} offset0:0 offset1:1""")
        flag_store_off(e, vFs, vLane, vt[4], sH, 0)
        if w == 1:
            e(f'''v_mov_b32 {vt[4]}, 0
            buffer_store_dword {vt[4]}, {vFs}, {sWS}, {sFLG} offen sc1''')
        for i in range(4):
            e(f'v_mov_b32 {Alast[i]}, 0')
        if poller:
            flag_poll_off(e, vFo, vLane, FLAG2_OFF, NF2)
        e(f'''s_mul_i32 {sYX}, {sH}, {cfg.qtouch * 8192}
        s_add_u32 {sYX}, {sYX}, {WS_YX + (3 - w) * 8192}''')
    else:
        e(f'v_add_u32 {vYW}, {L_YM}, {vL16}')
        if fin:
            e(f'''s_add_u32 {sJ}, {sH}, {14 * w}
            v_lshrrev_b32 {vt[2]}, 3, {vC}
            v_lshlrev_b32 {vt[2]}, 5, {vt[2]}
            v_lshl_add_u32 {vt[2]}, {vG}, 6, {vt[2]}
            v_and_b32 {vt[3]}, 7, {vC}
            v_lshl_add_u32 {vt[2]}, {vt[3]}, 1, {vt[2]}
            s_lshl_b32 {sT1}, {sJ}, 8
            v_add_u32 {vMo}, {sT1}, {vt[2]}
            v_lshlrev_b32 {vt[2]}, 2, {vLane}
            v_add_u32 {vMr}, {sT1}, {vt[2]}
            s_lshl_b32 {sYX}, {sJ}, 14
            s_add_u32 {sYX}, {sYX}, {WS_YX}''')
            for g_ in range(4):
                e(f'''s_add_u32 {sRO[g_]}, {sJ if cfg.rot else 0}, {g_}
                s_and_b32 {sRO[g_]}, {sRO[g_]}, 3
                s_lshl_b32 {sRO[g_]}, {sRO[g_]}, 11''')
            e(f'''v_bfe_u32 {vt[2]}, {vLane}, 2, 1
            v_lshl_add_u32 {vt[2]}, {vG}, 1, {vt[2]}
            v_mul_u32_u24 {vt[2]}, 896, {vt[2]}
            v_bfe_u32 {vt[3]}, {vLane}, 3, 1
            v_lshl_add_u32 {vt[2]}, {vt[3]}, 6, {vt[2]}
            v_and_b32 {vt[3]}, 3, {vLane}
            v_lshl_add_u32 {vt[2]}, {vt[3]}, 2, {vt[2]}
            s_lshr_b32 {sT1}, {sJ}, 2
            s_lshl_b32 {sT1}, {sT1}, 7
            s_and_b32 {sT2}, {sJ}, 3
            s_lshl_b32 {sT2}, {sT2}, 4
            s_add_u32 {sT1}, {sT1}, {sT2}
            buffer_load_dword {vt[3]}, {vt[2]}, {sM0D}, {sT1} offen
            s_waitcnt vmcnt(0)
            s_mov_b32 {sT1}, {WS_MEMR}
            buffer_store_dword {vt[3]}, {vMr}, {sWS}, {sT1} offen sc1''')
            for r in range(1, 3):
                e(f'''s_mov_b32 {sT1}, {WS_MEMR + r * 8192}
                buffer_store_dword {vNeg1}, {vMr}, {sWS}, {sT1} offen sc1''')
            flag_store_off(e, vFs, vLane, vt[4], sH, FLAG2_OFF)
            if w == 0:
                e(f'''v_mov_b32 {vt[4]}, 0
                buffer_store_dword {vt[4]}, {vFs}, {sWS}, {sFLG} offen sc1''')
        if w == (0 if cfg.selfpoll else 2):
            flag_poll_off(e, vFo, vLane, 0, 15)
        if w == cfg.vpw:
            flag_poll_off(e, vFo2, vLane, FLAG2_OFF, NF2)

    def xs_bases(nxt):
        if cfg.xsall:
            return [f's_lshl_b32 {sXS}, {nxt}, 15', f's_add_u32 {sXS}, {sXS}, {WS_XNB + w * 8192}', f's_add_u32 {sXS2}, {sXS}, 4096']
        return [f's_add_u32 {sXS2}, {sXS}, 4096', f's_lshl_b32 {sXS}, {nxt}, 15', f's_add_u32 {sXS}, {sXS}, {WS_XNB + w * 8192}']

    def xs_loads():
        return [f'buffer_load_dwordx4 {xsB[4 * i:4 * i + 4]}, {vL16}, {sWS}, {sXS if i < 4 else sXS2} offen '
                f'offset:{(i & 3) * 1024} sc1' for i in range(8)]

    winA = []
    if qk:
        winA = xs_loads()[(0 if cfg.xsall else 4):]
        if toucher:
            winA += [f'buffer_load_dword {vt[3]}, {vL128}, {sWS}, {sYXS} offen sc1']
    elif fin:
        winA = [f'buffer_load_dwordx4 {YX[4 * i:4 * i + 4]}, {vL16}, {sWS}, {sYQ[i >> 2]} offen '
                 f'offset:{(i & 3) * 1024} sc1' for i in range(16)]
        yx_all = list(winA)

    e(f"""s_mov_b32 {sSTEP}, 0
    s_mov_b32 {sTO}, {TIMEOUT}""")
    for c in sCNT:
        e(f's_mov_b32 {c}, 0')
    if qk:
        for l in ([] if cfg.xsall else xs_bases(sSTEP)[1:] + xs_loads()[:4]):
            e(l)
        if cfg.nowait:
            e(f'v_mov_b32 {vt[0]}, -1\nv_mov_b32 {vt[1]}, -1')
            assert vt[1].base == vt[0].base + 1
            for i in range(4):
                e(f'ds_write2_b32 {vSZ}, {vNeg1}, {vNeg1} offset0:0 offset1:1' if i == 0 else
                  f'v_add_u32 {vt[2]}, {1296 * i}, {vSZ}\nds_write2_b32 {vt[2]}, {vNeg1}, {vNeg1} offset0:0 offset1:1')
    team_barrier(p, w, vt, True, False)
    if not cfg.alone:
        RL, RD = p.label('RL'), p.label('RD')
        e(f"""v_min_u32 {vt[0]}, {24 if qk else 27}, {vLane}
        v_lshlrev_b32 {vt[0]}, 14, {vt[0]}
        s_mul_i32 {sT0}, {sH}, {(28 if qk else 32) * 14336}
        s_add_u32 {sT0}, {sT0}, {WS_WQK if qk else WS_WVO}""")
        if cfg.wtlb:
            e(f'buffer_load_dword {vt[1]}, {vt[0]}, {sWS}, {sT0} offen sc1\ns_waitcnt vmcnt(0)')
        e(f"""v_min_u32 {vt[0]}, 13, {vC}
        v_lshlrev_b32 {vt[0]}, 2, {vt[0]}""")
        if qk:
            e(f"""s_lshl_b32 {sT1}, {sH}, 8
            s_add_u32 {sT1}, {sT1}, {C_MAT}
            v_add_u32 {vt[0]}, {sT1}, {vt[0]}""")
        else:
            e(f"""v_lshl_add_u32 {vt[0]}, {vG}, 8, {vt[0]}
            v_add_u32 {vt[0]}, {C_MAT + 128 + w * 1024}, {vt[0]}""")
        e(f"""s_mov_b32 {sT0}, {WS_CNT}
        {RL}:
        buffer_load_dword {vt[1]}, {vt[0]}, {sWS}, {sT0} offen sc1
        s_sub_u32 {sTO}, {sTO}, 1
        s_cmp_gt_i32 {sTO}, 0
        s_cbranch_scc0 {RD}
        s_waitcnt vmcnt(0)
        v_cmp_ne_u32 vcc, 1, {vt[1]}
        s_cbranch_vccz {RD}
        s_sleep 4
        s_branch {RL}
        {RD}:""")
        if w == 0:
            tl(p, 5, 's100', WS_TL + 16384)
    e(f's_mul_i32 {sT0}, {sH}, {28 * 14336 if qk else 32 * 14336}')
    n_out = 0
    for t in range(NT):
        for k in range(7):
            if qk:
                st_, pos = QK_TILES[w][t]
                T = 2 * set_quad(w, st_, pos & 1, pos >> 1) + (pos >> 1)
                off = WS_WQK + (T * 7 + slots[k]) * 2048
            else:
                off = WS_WVO + (((4 * w + (t & 3)) * 2 + (t >> 2)) * 7 + slots[k]) * 2048
            if built and t not in lds_tiles and slots[k] < NBUILD:
                continue
            e(f's_add_u32 {sT1}, {sT0}, {off}')
            if t in lds_tiles:
                e(f'''s_mov_b32 m0, {wl0 + lds_rel[t] + k * 2048}
                buffer_load_dwordx4 {vL16}, {sWS}, {sT1} offen sc1 lds
                buffer_load_dwordx4 {vL16}, {sWS}, {sT1} offen offset:1024 sc1 lds''')
            else:
                f = frag[(t, k)]
                e(f'''buffer_load_dwordx4 {f[0:4]}, {vL16}, {sWS}, {sT1} offen sc1
                buffer_load_dwordx4 {f[4:8]}, {vL16}, {sWS}, {sT1} offen offset:1024 sc1''')
            n_out += 2
            if n_out >= 60:
                e('s_waitcnt vmcnt(40)')
                n_out = 40
    team_barrier(p, w, vt, False, True)
    e('s_waitcnt vmcnt(0)')
    if w == 0:
        tl(p, 1, 's100', WS_TL + 16384)
        tl(p, 2, 's100', WS_TL + 16384)
    if cfg.diag:
        e(f's_memtime {sTIME}')

    LOOP, END = p.label('LOOP'), p.label('END')
    FAIL, JOIN = p.label('FAIL'), p.label('JOIN')
    tail = []
    vm = VM(e)
    lg = VM(e, 'lgkmcnt')

    def slow(texts):
        if cfg.dual:
            sl, bk = p.label('SL'), p.label('SB')
            e(f's_cmp_lg_u32 {sSLOW}, 0')
            e(f's_cbranch_scc1 {sl}')
            e(f'{bk}:')
            tail.extend([f'{sl}:'] + [t + ' sc1' for t in texts] + [f's_branch {bk}'])

    def st2(text):
        vm.issue(text)
        slow([text])

    nside = [0]

    def side(text):
        if 'store' in text:
            st2(text)
        else:
            nside[0] += 1
            vm.issue(text, ('side', nside[0]))

    def chunk_txt(k, fl):
        off = slots[k] * 1024
        so = sMEM if off < 4096 else sMEM2
        return f'buffer_load_dwordx4 {memA[4 * k:4 * k + 4]}, {vL16}, {sWS}, {so} offen offset:{off & 4095} {fl}'

    def chunk_load(k):
        vm.issue(chunk_txt(k, '' if k >= cfg.nsc else 'sc1'), ('c', k))

    def stg_read(k):
        o = []
        for i, t in enumerate(lds_tiles):
            r = stg[16 * i + 8 * (k & 1):16 * i + 8 * (k & 1) + 8]
            o.append(f'ds_read_b128 {r[0:4]}, {vWL} offset:{lds_rel[t] + k * 2048}')
            o.append(f'ds_read_b128 {r[4:8]}, {vWL} offset:{lds_rel[t] + k * 2048 + 1024}')
        return o

    def wfrag(t, k):
        if t in lds_tiles:
            i = lds_tiles.index(t)
            return stg[16 * i + 8 * (k & 1):16 * i + 8 * (k & 1) + 8]
        return frag[(t, k)]

    def smf_txt(t, k):
        return f'v_smfmac_f32_16x16x64_bf16 {Tacc[4 * t:4 * t + 4]}, {memA[4 * k:4 * k + 4]}, {wfrag(t, k)}, {vIdx}'

    def smf(t, k):
        e(smf_txt(t, k))

    def slot_calc():
        e(f"""s_lshl_b32 {sMEM}, {sSTEP}, 13
        s_add_u32 {sMEM}, {sMEM}, {WS_MEMR}
        s_add_u32 {sMEM2}, {sMEM}, 4096""")

    clampn = lambda d, s_: f's_and_b32 {d}, {s_}, 1' if cfg.fake else f's_min_u32 {d}, {s_}, 63'
    sal = [f's_add_u32 {sSTEP1}, {sSTEP}, 1', f's_mov_b64 {sCHK}, -1', f'v_mov_b32 {vStep}, {sSTEP1}',
           f's_and_b32 {sT0}, {sSTEP}, 3', f's_lshl_b32 {sP}, {sT0}, 14']
    if qk:
        sal += [f's_add_u32 {sP}, {sP}, {WS_PR}', f's_xor_b32 {sPRST}, {sP}, {2 << 14}', clampn(sT3, sSTEP if cfg.xsall else sSTEP1)] + xs_bases(sT3)
        if toucher:
            sal += [f's_add_u32 {sT3}, {sSTEP}, {cfg.pf}', clampn(sT3, sT3), f's_mul_i32 {sYXS}, {sT3}, {28 * 16384}',
                    f's_add_u32 {sYXS}, {sYXS}, {sYX}']
    elif fin:
        sal += [f's_add_u32 {sP}, {sP}, {WS_PR}',
                f's_add_u32 {sMEMW}, {sMEM}, 8192', f's_add_u32 {sMEMRST}, {sMEM}, 16384',
                clampn(sT3, sSTEP), f's_mul_i32 {sT3}, {sT3}, {28 * 16384}', f's_add_u32 {sT3}, {sT3}, {sYX}']
        sal += [f's_lshl1_add_u32 {sYQ[i]}, {sRO[i]}, {sT3}' for i in range(4)]
        sal += [f's_add_u32 {sPQ[i]}, {sP}, {sRO[i]}' for i in range(4)]
    assert (WS_PR & (3 << 14)) == 0
    zero_all = [f'v_mov_b32 {Tacc[i]}, 0' for i in range(4 * NT)]
    if qk:
        zero_all += [f'v_mov_b32 {Sx[i]}, 0' for i in range(8)]
    for l in zero_all:
        e(l)
    zq = list(zero_all)

    def fz(n):
        for _ in range(n):
            if zq:
                e(zq.pop(0))

    def poll_loop(nd, tgt=None, between=None, vo=None):
        PL, GO = p.label('PL'), p.label('GO')
        GL = GO
        if tgt:
            GO = tgt
        pl = lambda i: f'buffer_load_dword {Fp[i]}, {vo or vFo}, {sWS}, {sFLG} offen sc1'
        for i in range(nd):
            e(pl(i))
            if between:
                between(i)
            elif i < nd - 1:
                nops(e, cfg.pspace * cfg.pdepth // nd)
        e(f'{PL}:')
        for i in range(nd):
            e(f"""s_waitcnt vmcnt({nd - 1})
            v_cmp_gt_u32 vcc, {sSTEP1}, {Fp[i]}
            {pl(i)}
            s_cbranch_vccz {GO}""")
        e(f"""s_sub_u32 {sTO}, {sTO}, 1
        s_cmp_gt_i32 {sTO}, 0
        s_cbranch_scc1 {PL}
        {GL}:""")

    def loop_end(polls):
        e(f"""s_cmp_ge_u32 {sSTEP}, {cfg.nsteps}
        s_cbranch_scc1 {END}""")
        if polls:
            polls()
        e(f's_branch {LOOP}')

    slot_calc()
    if cfg.prio and fin and w == 0:
        e('s_setprio 2')
    e(f'{LOOP}:')
    if not fin:
        stamp(p, cfg, 7)
    e('s_barrier')
    stamp(p, cfg, 0)
    nops(e, cfg.delay if qk else cfg.vdelay)
    fill = stg_read(0) + stg_read(1) + sal
    per = (len(fill) + AH - 2) // (AH - 1)
    for k in range(AH):
        chunk_load(k)
        if k < AH - 1:
            part = fill[k * per:(k + 1) * per]
            for l in part:
                if l.startswith('ds_'):
                    lg.issue(l)
                else:
                    e(l)
            if cfg.gapbar:
                e('s_barrier')
            else:
                nops(e, cfg.gap - len(part))
    for i, t in enumerate(lds_tiles):
        lg.tag[('s', 0, t)] = lg.n - 4 * len(lds_tiles) + 2 * (i + 1)
        lg.tag[('s', 1, t)] = lg.n - 2 * len(lds_tiles) + 2 * (i + 1)
    stamp(p, cfg, 1)

    def retry(k):
        RT, BK = p.label('RT'), p.label('BK')
        nre = 2 if chk == 2 else AH + 1
        t = [f'{RT}:', f's_add_u32 {sCNT[3]}, {sCNT[3]}, 1'] + [chunk_txt(kk, 'sc1') for kk in range(k, min(7, k + nre))]
        t += [f's_sub_u32 {sTO}, {sTO}, 1', f's_cmp_gt_i32 {sTO}, 0', f's_cbranch_scc0 {END}']
        if k == 0:
            t += zero_all[:12]
        t += ['s_waitcnt vmcnt(0)', f'v_cmp_eq_u32 vcc, -1, {memA[4 * k]}', f's_cbranch_vccnz {RT}']
        if k == 0:
            t += [smf_txt(0, 0), smf_txt(1, 0), smf_txt(2, 0)]
        t += [f's_branch {BK}']
        tail.extend(t)
        e(f's_cbranch_vccnz {RT}')
        e(f'{BK}:')

    def cv_txt(t, i):
        a = Tacc[4 * t:4 * t + 4]
        if t == 6:
            dst = Alast[2 * (QK_TILES[w][6][1] & 1) + i]
        else:
            dst = Tacc[4 * (t & ~1) + 2 * (t & 1) + i]
        return f'v_cvt_pk_bf16_f32 {dst}, {a[2 * i]}, {a[2 * i + 1]}'
    late_v = [cv_txt(0, 0), cv_txt(0, 1), cv_txt(1, 0)] if qk else []
    chk = cfg.chk if qk else cfg.vchk

    vm.wait(('c', 0))
    stamp(p, cfg, 9)
    nslot = 0
    nxt_c = AH
    pace = cfg.qpace if qk else 2
    early = 1 if (qk and cfg.xsall) else 0
    for k in range(7):
        sr = stg_read(k + 1) if 1 <= k <= 5 else []
        for t in range(NR):
            smf(t, k)
            used = 0
            if k == 0 and t == 2 and chk:
                retry(0)
            if t == NR - 1 and k < 6 and chk == 2:
                retry(k + 1)
                used = 1
            if qk:
                if t == 0 and k + AH < 7:
                    chunk_load(k + AH)
                    used = 1
                elif k + AH + early >= 7 and nslot % pace == 0 and winA and not used:
                    side(winA.pop(0))
                    used = 1
                if k + AH + early >= 7:
                    nslot += 1
            else:
                if nxt_c < 7:
                    if t % 3 == 0:
                        chunk_load(nxt_c)
                        nxt_c += 1
                        used = 1
                elif winA and nslot % 2 == 0 and not used:
                    side(winA.pop(0))
                    used = 1
                nslot += 1
            if sr and (not used or (len(sr) > NR - 1 - t)):
                lg.issue(sr.pop(0), ('s', k + 1, lds_tiles[len(lds_tiles) - 1 - len(sr) // 2]))
            if t + 1 in lds_tiles:
                lg.wait(('s', k, t + 1))
            if k == 0 and t == 0 and chk:
                e(f'v_cmp_eq_u32 vcc, -1, {memA[0]}')
            if chk == 2:
                if t == NR - 3 and k < 6:
                    vm.wait(('c', k + 1))
                    e(f'v_cmp_eq_u32 vcc, -1, {memA[4 * k + 4]}')
            elif t == NR - 1 and k < 6:
                vm.wait(('c', k + 1))
            if qk and k == 6 and t >= 2:
                e(late_v[t - 2])
        assert not sr
    tail += [f'{FAIL}:', f's_add_u32 {sCNT[0]}, {sCNT[0]}, 1', f's_mov_b64 {sCHK}, 0', f'{FAIL}b:']
    tail += [chunk_txt(k, 'sc1') for k in range(7)]
    tail += [f's_sub_u32 {sTO}, {sTO}, 1', f's_cmp_gt_i32 {sTO}, 0', f's_cbranch_scc0 {END}']
    tail += zero_all[:4 * NT] + stg_read(0) + stg_read(1) + ['s_waitcnt vmcnt(0)']
    tail += [f'v_max3_u32 {vt[0]}, {memA[0]}, {memA[1]}, {memA[2]}']
    for i in range(3, 27, 2):
        tail += [f'v_max3_u32 {vt[0]}, {vt[0]}, {memA[i]}, {memA[i + 1]}']
    tail += [f'v_max_u32 {vt[0]}, {vt[0]}, {memA[27]}', f'v_cmp_eq_u32 vcc, -1, {vt[0]}', f's_cbranch_vccnz {FAIL}b']
    nl = 2 * len(lds_tiles)
    for k in range(7):
        tail += [f's_waitcnt lgkmcnt({nl if k < 6 else 0})'] + [smf_txt(t, k) for t in range(NR)]
        if k < 5:
            tail += stg_read(k + 2)
    tail += late_v + ['s_nop 7', f's_branch {JOIN}']
    e(f'{JOIN}:')
    stamp(p, cfg, 2)

    def check_branch():
        e(f's_and_b64 vcc, vcc, {sCHK}')
        e(f's_cbranch_scc1 {FAIL}')

    if qk:
        assert not winA

        def cv(t, i):
            e(cv_txt(t, i))

        def ident(pair, hi):
            src = Alast if pair == 3 else Tacc[8 * pair:8 * pair + 4]
            e(f'v_mfma_f32_16x16x32_bf16 {Did[4 * hi:4 * hi + 4]}, {src}, {Idn}, 0')

        def cv2(st, hi, i):
            d = Did[4 * hi:4 * hi + 4]
            e(f'v_cvt_pk_bf16_f32 {AS[4 * st + 2 * hi + i]}, {d[2 * i]}, {d[2 * i + 1]}')

        def sx(st, kt):
            e(f'v_smfmac_f32_16x16x64_bf16 {Sx[4 * kt:4 * kt + 4]}, {AS[4 * st:4 * st + 4]}, '
              f'{xsB[16 * st + 8 * kt:16 * st + 8 * kt + 8]}, {vIdx}')

        def mch(c_):
            k_ = slots.index(c_)
            return memA[4 * k_:4 * k_ + 4]

        def sm(st):
            b = Mx if (w == 3 and st == 1) else mch(w + 4 * st)
            e(f'v_mfma_f32_16x16x32_bf16 {Sm}, {AS[4 * st:4 * st + 4]}, {b}, {0 if st == 0 else Sm}')

        def flag(pos):
            if cfg.flagpos == pos and w == 1:
                vm.issue(f'buffer_store_dword {vStep}, {vFs}, {sWS}, {sFLG} offen')
                stamp(p, cfg, 8)

        if w == 3:
            zq[0:0] = [f'v_cndmask_b32 {Mx[0]}, {mch(5)[0]}, {mch(4)[0]}, {sV0}',
                       f'v_cndmask_b32 {Mx[1]}, {mch(5)[1]}, {mch(4)[1]}, {sV0}',
                       f'v_mov_b32 {Mx[2]}, {mch(6)[2]}', f'v_mov_b32 {Mx[3]}, {mch(6)[3]}']
        fh = QK_TILES[w][4][1] >> 1
        smf(5, 0); cv(1, 1)
        smf(5, 1); cv(2, 0)
        ident(0, 0); cv(2, 1); cv(3, 0)
        smf(5, 2); cv(3, 1)
        smf(5, 3); cv(4, 0)
        ident(1, 1); cv2(0, 0, 0); cv2(0, 0, 1)
        smf(5, 4); e(f'v_cmp_u_f32 vcc, {Did[0]}, {Did[1]}')
        smf(5, 5); cv(4, 1)
        smf(5, 6); cv2(0, 1, 0)
        smf(6, 0); cv2(0, 1, 1)
        smf(6, 1); check_branch()
        smf(6, 2); cv(5, 0)
        smf(6, 3); cv(5, 1)
        smf(6, 4); fz(1)
        smf(6, 5); fz(1)
        smf(6, 6); fz(1)
        ident(2, fh); fz(2)
        sm(0); cv(6, 0); cv(6, 1)
        fz(1); cv2(1, fh, 0)
        nx = 8 if cfg.xsall else 4
        ident(3, 1 - fh)
        if cfg.xsall:
            vm.wait(('side', 4))
        cv2(1, fh, 1); fz(1)
        sx(0, 0); fz(1)
        sx(0, 1)
        cv2(1, 1 - fh, 0); cv2(1, 1 - fh, 1)
        fz(1)
        vm.wait(('side', nx - 2))
        sx(1, 0)
        vm.wait(('side', nx))
        sx(1, 1)
        sm(1)
        flag(-3)
        stamp(p, cfg, 3)
        e(f"""v_add_f32 {Sx[0]}, {Sx[0]}, {Sx[2]}
        v_add_f32 {Sx[1]}, {Sx[1]}, {Sx[3]}
        ds_write2_b32 {vSW}, {Sx[0]}, {Sx[1]} offset0:0 offset1:40
        v_add_f32 {Sx[4]}, {Sx[4]}, {Sx[6]}
        v_add_f32 {Sx[5]}, {Sx[5]}, {Sx[7]}
        ds_write2_b32 {vSW}, {Sx[4]}, {Sx[5]} offset0:4 offset1:44
        v_add_f32_dpp {Sm[0]}, {Sm[2]}, {Sm[0]} quad_perm:[2,3,0,1] row_mask:0xf bank_mask:0xf
        v_add_f32_dpp {Sm[1]}, {Sm[3]}, {Sm[1]} quad_perm:[2,3,0,1] row_mask:0xf bank_mask:0xf
        ds_write2_b32 {vSW2}, {Sm[0]}, {Sm[1]} offset0:0 offset1:40""")
        flag(-2)
        fz(cfg.fz1 - 1)
        flag(-1)
        fz(1)
        assert len(zq) >= 8
        if not cfg.nowait:
            e('s_waitcnt lgkmcnt(0)')
        e('s_barrier')
        stamp(p, cfg, 4)
        dpps = ['quad_perm:[1,0,3,2]', 'quad_perm:[2,3,0,1]', 'row_half_mirror', 'row_mirror']
        x, y = vt[0], vt[1]
        r = R('v', memA.base, 12)
        warm = lambda n: [e(zq.pop(0)) if len(zq) > 8 else e(f'v_mov_b32 {vt[4]}, 0') for _ in range(n)]
        rd_txt = [f'ds_read_b64 {r[2 * i:2 * i + 2]}, {vSR} offset:{1296 * i}' for i in range(4)]
        for i in range(4):
            e(rd_txt[i])
            if i % 2 == 0:
                warm(1)
        warm(1)
        flag(0)
        warm(cfg.fz2 - 3)
        flag(1)
        warm(1)
        add_txt = f"""s_waitcnt lgkmcnt(2)
        v_add_f32 {r[0]}, {r[0]}, {r[2]}
        v_add_f32 {r[1]}, {r[1]}, {r[3]}
        s_waitcnt lgkmcnt(0)
        v_add_f32 {r[4]}, {r[4]}, {r[6]}
        v_add_f32 {r[5]}, {r[5]}, {r[7]}
        v_add_f32 {r[0]}, {r[0]}, {r[4]}
        v_add_f32 {r[1]}, {r[1]}, {r[5]}"""
        e(add_txt)

        def allred(op, em, main):
            for i, d in enumerate(dpps):
                pos_ = (2 if op == 'max' else 8) + i
                if main and cfg.flagpos == pos_ and w == 1:
                    flag(pos_)
                elif main:
                    fz(2)
                em(f'v_{op}_f32_dpp {x}, {x}, {x} {d} row_mask:0xf bank_mask:0xf')
            em(f'v_mov_b32 {y}, {x}')
            if op == 'max' and main:
                flag(6)
            em(f'v_permlane16_swap_b32 {x}, {y}')
            em(f'v_{op}_f32 {x}, {x}, {y}')

        pst_txt = f'buffer_store_dword {y}, {vPo}, {sWS}, {sP} offen'

        def softmax_true(em, main):
            em(f'v_max_f32 {x}, {r[0]}, {r[1]}')
            allred('max', em, main)
            for l in (f'v_sub_f32 {r[8]}, {r[0]}, {x}', f'v_sub_f32 {r[9]}, {r[1]}, {x}',
                      f'v_exp_f32 {r[8]}, {r[8]}', f'v_exp_f32 {r[9]}, {r[9]}'):
                em(l)
            if main:
                flag(7)
            em(f'v_add_f32 {x}, {r[8]}, {r[9]}')
            allred('add', em, main)
            for l in (f'v_rcp_f32 {r[10]}, {x}', f'v_subrev_u32 {x}, 0x21800000, {x}', f'v_mul_f32 {r[8]}, {r[8]}, {r[10]}',
                      f'v_mul_f32 {r[9]}, {r[9]}, {r[10]}', f'v_cvt_pk_bf16_f32 {y}, {r[8]}, {r[9]}'):
                em(l)
        if cfg.standin:
            e(f"""v_exp_f32 {r[8]}, {r[0]}
            v_exp_f32 {r[9]}, {r[1]}""")
            flag(7)
            e(f'v_add_f32 {x}, {r[8]}, {r[9]}')
            allred('add', e, True)
            e(f"""v_rcp_f32 {r[10]}, {x}
            v_subrev_u32 {x}, 0x21800000, {x}
            v_mul_f32 {r[8]}, {r[8]}, {r[10]}
            v_mul_f32 {r[9]}, {r[9]}, {r[10]}
            v_cvt_pk_bf16_f32 {y}, {r[8]}, {r[9]}""")
        else:
            softmax_true(e, True)
        if cfg.standin or cfg.nowait:
            FB, FD = p.label('FB'), p.label('FD')
            e(f'v_cmpx_gt_u32 vcc, 0x50000000, {x}')
            vm.issue(pst_txt)
            e(f"""s_mov_b64 exec, -1
            s_cmp_lg_u64 vcc, -1
            s_cbranch_scc1 {FB}
            {FD}:""")
            tail += [f'{FB}:', f's_add_u32 {sCNT[2]}, {sCNT[2]}, 1']
            if cfg.nowait:
                tail += rd_txt + [f's_sub_u32 {sTO}, {sTO}, 1', f's_cmp_gt_i32 {sTO}, 0', f's_cbranch_scc0 {FD}',
                                  's_waitcnt lgkmcnt(0)', f'v_max3_u32 {x}, {r[0]}, {r[1]}, {r[2]}',
                                  f'v_max3_u32 {x}, {x}, {r[3]}, {r[4]}', f'v_max3_u32 {x}, {x}, {r[5]}, {r[6]}',
                                  f'v_max_u32 {x}, {x}, {r[7]}', f'v_cmp_eq_u32 vcc, -1, {x}', f's_cbranch_vccnz {FB}']
                tail += [l.strip() for l in add_txt.split('\n')]
            softmax_true(tail.append, False)
            tail += [pst_txt, f's_branch {FD}']
        else:
            vm.issue(pst_txt)
        stamp(p, cfg, 5)
        slow([f'buffer_store_dword {y}, {vPo}, {sWS}, {sP} offen'] +
             ([f'buffer_store_dword {vStep}, {vFs}, {sWS}, {sFLG} offen'] if w == 1 else []))
        e('s_barrier')
        st2(f'buffer_store_dword {vNeg1}, {vPo}, {sWS}, {sPRST} offen')
        if cfg.qlate and w == 2:
            e(f"""s_add_u32 {sT3}, {sSTEP}, 2
            {clampn(sT3, sT3)}
            s_mul_i32 {sT3}, {sT3}, {28 * 16384}
            s_lshl_b32 {sT2}, {sH}, 14
            s_add_u32 {sT3}, {sT3}, {sT2}
            s_add_u32 {sT3}, {sT3}, {WS_YX + 8192}
            buffer_load_dword {vt[3]}, {vL128}, {sWS}, {sT3} offen sc1""")
        if cfg.tlb and w == 3:
            e(f"""v_mov_b32 {vt[2]}, {2 * 8192 + 7680}
            buffer_load_dword {vt[3]}, {vt[2]}, {sWS}, {sMEM} offen sc1
            v_mov_b32 {vt[2]}, {32768 if cfg.xsall else 65536}
            buffer_load_dword {vt[3]}, {vt[2]}, {sWS}, {sXS2} offen sc1""")
        for l in ([] if cfg.xsall else xs_loads()[:4]):
            e(l)
        if cfg.nowait:
            e(f'v_mov_b32 {r[0]}, -1\nv_mov_b32 {r[1]}, -1')
            for i in range(4):
                e(f'ds_write_b64 {vSZ}, {r[0:2]} offset:{1296 * i}')
            e('s_waitcnt lgkmcnt(0)')
        fz(40)
        if TL_ON[0] and w == 2:
            e(f"""s_memtime s[96:97]
            s_lshl_b32 s98, {sH}, 8
            s_lshl_b32 s99, {sSTEP}, 2
            s_add_u32 s98, s98, s99
            s_add_u32 s98, s98, {WS_TL + 0x8000}
            s_waitcnt lgkmcnt(0)
            v_mov_b32 v254, s96
            v_mov_b32 v255, 0
            buffer_store_dword v254, v255, {sWS}, s98 offen""")
        e(f's_add_u32 {sSTEP}, {sSTEP}, 1')
        slot_calc()

        def qpoll():
            e('s_waitcnt vmcnt(0)')
            stamp(p, cfg, 6)
            nops(e, cfg.qstart)
            poll_loop(cfg.qdepth, LOOP)
        loop_end(qpoll if poller else None)
    else:
        def pk(t):
            a = Tacc[4 * t:4 * t + 4]
            return [f'v_add_f32 {a[0]}, {a[0]}, {a[2]}', f'v_add_f32 {a[1]}, {a[1]}, {a[3]}',
                    f'v_cvt_pk_bf16_f32 {Ym[t]}, {a[0]}, {a[1]}']
        vq = pk(0)[:2] + [f'v_cmp_u_f32 vcc, {Tacc[0]}, {Tacc[1]}'] + pk(0)[2:]
        for t in range(1, 6):
            vq += pk(t)
        n = 0
        for t in (6, 7):
            for k in range(7):
                smf(t, k)
                if n == 4:
                    check_branch()
                elif winA:
                    side(winA.pop(0))
                if n == 10:
                    vq += pk(6)
                for _ in range(2 if n % 2 else 1):
                    if vq:
                        e(vq.pop(0))
                n += 1
        assert not winA
        for l in vq + pk(7):
            e(l)
        e(f"""ds_write_b128 {vYW}, {Ym[0:4]} offset:{w * 1024}
        ds_write_b128 {vYW}, {Ym[4:8]} offset:{4096 + w * 1024}""")
        if fin and not cfg.alone:
            Y0, YL, YD, YB = p.label('Y0'), p.label('YL'), p.label('YD'), p.label('YB')
            e(f's_cmp_eq_u32 {sSTEP}, 0\ns_cbranch_scc1 {Y0}\n{YB}:')
            tail += [f'{Y0}:', f'v_mov_b32 {vt[0]}, {C_YX}', f's_mov_b32 {sT0}, {WS_CNT}', f'{YL}:',
                     f'buffer_load_dword {vt[1]}, {vt[0]}, {sWS}, {sT0} offen sc1', f's_sub_u32 {sTO}, {sTO}, 1',
                     f's_cmp_gt_i32 {sTO}, 0', f's_cbranch_scc0 {YD}', 's_waitcnt vmcnt(0)', f'v_cmp_gt_u32 vcc, 16, {vt[1]}',
                     f's_cbranch_vccz {YD}', 's_sleep 6', f's_branch {YL}', f'{YD}:'] + yx_all + [f's_branch {YB}']
        if fin and cfg.selfpoll and w == 0:
            e(f'buffer_store_dword {vNeg1}, {vMr}, {sWS}, {sMEMRST} offen')
        stamp(p, cfg, 3)
        if cfg.tlb and w == 3:
            e(f"""v_mov_b32 {vt[2]}, {3 * 8192 + 7680}
            buffer_load_dword {vt[3]}, {vt[2]}, {sWS}, {sMEM} offen sc1""")
        sp0 = cfg.selfpoll and w == 0
        bm_rd = [f'ds_read_b128 {BM[4 * i:4 * i + 4]}, {vYW} offset:{w * 4096 + i * 1024}' for i in range(4)] if fin else []
        zf = [f'v_mov_b32 {Facc[i]}, 0' for i in range(4)] if fin else []

        def part(i):
            if i == 0:
                fz(0 if (w == 3 and cfg.vstart == 0) else 6)
                e(f's_add_u32 {sSTEP}, {sSTEP}, 1')
                slot_calc()
            elif i == 1:
                e('s_waitcnt lgkmcnt(0)\ns_barrier')
            elif i == 2:
                for l in bm_rd + zf:
                    e(l)
                if fin and not sp0:
                    e(f'buffer_store_dword {vNeg1}, {vMr}, {sWS}, {sMEMRST} offen')
            else:
                fz(6)
        if sp0:
            poll_loop(cfg.pdepth, None, part)
            stamp(p, cfg, 5)
            nops(e, cfg.pdelay)
        else:
            for i in range(3):
                part(i)
            if fin:
                stamp(p, cfg, 5)
            if not (w == 3 and cfg.vstart == 0):
                fz(32)
            if w == 2 and not cfg.selfpoll:
                poll_loop(cfg.pdepth)
                stamp(p, cfg, 5)
                nops(e, cfg.pdelay)
        if not sp0:
            e('s_barrier')
        stamp(p, cfg, 6)
        if fin:
            PD, PF, PR, PB = p.label('PD'), p.label('PF'), p.label('PR'), p.label('PB')

            def p_txt(i):
                so, of = (sP, i * 1024) if i < 2 else (sPQ[(i - 2) >> 1], 2048 + (i & 1) * 1024)
                return f'buffer_load_dwordx4 {Afin[4 * i:4 * i + 4]}, {vL16}, {sWS}, {so} offen offset:{of} sc1'

            def f_txt(i):
                return f'v_smfmac_f32_16x16x64_bf16 {Facc}, {Afin[4 * i:4 * i + 4]}, {Bfin[i]}, {vIdx}'
            if w == 1 and not cfg.selfpoll:
                nops(e, 4)
            f2 = f'buffer_store_dword {vStep}, {vFs}, {sWS}, {sFLG} offen'
            burst = []
            for i in range(10):
                vm.issue(p_txt(i), ('p', i))
                burst.append(p_txt(i))
                if (sp0 and -12 <= cfg.f2pos <= -2 and i == 11 + cfg.f2pos) or (w == 1 and i == cfg.f2pos - 20):
                    vm.issue(f2)
                    burst.append(f2)
                    stamp(p, cfg, 8)
                if sp0 and i == cfg.bpos:
                    e('s_barrier')
            stamp(p, cfg, 11)
            e(f'{PB}:')
            if cfg.f2pos == -1 and w == 0:
                vm.issue(f2)
                stamp(p, cfg, 8)
            fz(32)
            e('s_waitcnt lgkmcnt(0)')
            vm.wait(('p', 0))
            stamp(p, cfg, 4)
            for i in range(10):
                e(f_txt(i))
                if i == (max(cfg.f2pos, 2) if cfg.f2pos < 10 else 2):
                    e(f's_cbranch_vccnz {PR}')
                if i == cfg.f2pos and w == 0:
                    vm.issue(f2)
                    stamp(p, cfg, 8)
                if i < 9:
                    vm.wait(('p', i + 1))
                if i == 0:
                    e(f'v_max3_u32 {vt[0]}, {Afin[0]}, {Afin[1]}, {Afin[4]}')
                    e(f'v_max_u32 {vt[0]}, {vt[0]}, {Afin[5]}')
                if i == 1:
                    e(f'v_cmp_eq_u32 vcc, -1, {vt[0]}')
            tail += [f'{PR}:', f's_add_u32 {sCNT[1]}, {sCNT[1]}, 1'] + burst + zf
            tail += [f's_sub_u32 {sTO}, {sTO}, 1', f's_cmp_gt_i32 {sTO}, 0', f's_cbranch_scc1 {PB}', f's_branch {PD}']
            fsum = [f'v_add_f32 {Facc[0]}, {Facc[0]}, {Facc[2]}', f'v_add_f32 {Facc[1]}, {Facc[1]}, {Facc[3]}']
            stamp(p, cfg, 10)
            for i in range(7):
                e(f'v_mov_b32 {vt[4]}, 0')
            for l in fsum:
                e(l)
            st_txt = [f'buffer_store_short {vt[0]}, {vMo}, {sWS}, {sMEMW} offen',
                      f'buffer_store_short_d16_hi {vt[0]}, {vMo}, {sWS}, {sMEMW} offen offset:16']
            e(f"""v_cvt_pk_bf16_f32 {vt[0]}, {Facc[0]}, {Facc[1]}
            v_cmpx_o_f32 vcc, {Facc[0]}, {Facc[1]}""")
            for l in st_txt:
                e(l)
            stamp(p, cfg, 7)
            e(f"""s_mov_b64 exec, -1
            s_cmp_lg_u64 vcc, -1
            s_cbranch_scc1 {PF}
            {PD}:""")
            rst = f'buffer_store_dword {vNeg1}, {vMr}, {sWS}, {sMEMRST} offen'
            slow(st_txt + ([f2] if w == (1 if cfg.f2pos >= 20 else 0) else []) + [rst])
            tail += [f'{PF}:', f's_add_u32 {sCNT[1]}, {sCNT[1]}, 0x10000']
            tail += [p_txt(i) for i in range(10)]
            tail += [f's_sub_u32 {sTO}, {sTO}, 1', f's_cmp_gt_i32 {sTO}, 0', f's_cbranch_scc0 {PD}']
            tail += zf + ['s_waitcnt vmcnt(0)']
            tail += [f'v_max3_u32 {vt[0]}, {Afin[0]}, {Afin[1]}, {Afin[2]}']
            for i in range(3, 39, 2):
                tail += [f'v_max3_u32 {vt[0]}, {vt[0]}, {Afin[i]}, {Afin[i + 1]}']
            tail += [f'v_max_u32 {vt[0]}, {vt[0]}, {Afin[39]}', f'v_cmp_eq_u32 vcc, -1, {vt[0]}', f's_cbranch_vccnz {PF}']
            tail += [f_txt(i) for i in range(10)] + fsum + [f'v_cvt_pk_bf16_f32 {vt[0]}, {Facc[0]}, {Facc[1]}'] + st_txt
            tail += [f's_branch {PD}']

        fz(32)

        def vpoll():
            if w == 3:
                nops(e, cfg.vstart)
            poll_loop(cfg.vdepth, LOOP, None, vFo2)
        loop_end(vpoll if w == cfg.vpw else None)
    assert not zq
    e(f'{END}:')
    if fin:
        e(f's_add_u32 {sMEMW}, {sMEMW}, {WS_MEMA - WS_MEMR}')
        for l in st_txt:
            e(l + ' sc1')
    epilogue(p, w, cfg, vt)
    for l in tail:
        if not cfg.diag and any(l.startswith(f's_add_u32 {c},') for c in sCNT):
            continue
        e(l)


HEADER = '''; generated
; @launch grid=(256,1,1) block=(256,1,1) lds=%d
.amdgcn_target "amdgcn-amd-amdhsa--gfx950"
.text
.globl %s
.p2align 8
.type %s,@function
'''
FOOTER = '''.section .rodata,"a"
.p2align 6
.amdhsa_kernel %s
  .amdhsa_next_free_vgpr 512
  .amdhsa_next_free_sgpr 102
  .amdhsa_accum_offset 256
  .amdhsa_group_segment_fixed_size 0
  .amdhsa_kernarg_size 120
  .amdhsa_user_sgpr_count 2
  .amdhsa_user_sgpr_kernarg_segment_ptr 1
  .amdhsa_system_sgpr_workgroup_id_x 1
.end_amdhsa_kernel
'''


def wave_dispatch(e, nm):
    e(f'''s_cmp_eq_u32 {sWAVE}, 0
    s_cbranch_scc1 {nm}0
    s_cmp_eq_u32 {sWAVE}, 1
    s_cbranch_scc1 {nm}1
    s_cmp_eq_u32 {sWAVE}, 2
    s_cbranch_scc1 {nm}2
    s_branch {nm}3''')


def standalone(cfg, name='team_kernel'):
    TL_ON[0] = True
    p = Prog()
    e = p.e
    e(f'{name}:')
    e(f'''s_and_b32 s3, s2, 7
    s_cmp_lg_u32 s3, 0
    s_cbranch_scc1 EXIT
    s_cmp_ge_u32 s2, 256
    s_cbranch_scc1 EXIT
    s_lshr_b32 {sIDX}, s2, 3
    s_mov_b32 s100, {sIDX}
    s_mov_b32 {sSLOW}, 0
    s_load_dwordx2 s[4:5], s[0:1], 112
    s_load_dwordx2 s[12:13], s[0:1], 104
    s_load_dwordx2 s[16:17], s[0:1], 8
    v_lshrrev_b32 v1, 6, v0
    v_readfirstlane_b32 {sWAVE}, v1
    s_mov_b32 s6, {WS_BYTES}
    s_mov_b32 s7, 0x20000
    s_mov_b32 s14, 256
    s_mov_b32 s15, 0x20000
    s_mov_b32 s18, 7168
    s_mov_b32 s19, 0x20000
    s_and_b32 {sH}, {sIDX}, 15''')
    for i in range(NSTAMP):
        e(f's_mov_b32 s{STAMP0 + 2 * i}, 0')
    e(f'''s_waitcnt lgkmcnt(0)
    s_cmp_ge_u32 {sIDX}, 16
    s_cbranch_scc1 ROLE_VO''')
    wave_dispatch(e, 'QK')
    e(f'''ROLE_VO:
    s_cmp_ge_u32 {sH}, 14
    s_cbranch_scc1 ROLE_EN''')
    wave_dispatch(e, 'VO')
    e('ROLE_EN:')
    wave_dispatch(e, 'EN')
    e('EXIT:\ns_endpgm')
    for role, nm in ((0, 'QK'), (1, 'VO'), (2, 'EN')):
        for w in range(4):
            e(f'{nm}{w}:')
            team_wave(p, role, w, cfg)
    return HEADER % (L_END, name, name) + p.text() + FOOTER % name


if __name__ == '__main__':
    import sys
    cfg = Cfg()
    for a in sys.argv[2:]:
        k, v = a.split('=')
        assert hasattr(cfg, k), k
        setattr(cfg, k, int(v) if not isinstance(getattr(cfg, k), str) else v)
    open(sys.argv[1], 'w').write(standalone(cfg))
```

```python
from asmlib import *
from layout import *
from prep import srd

sWS = 's[4:7]'
sW = 's9'
sTO = 's38'
sCN = 's39'
TIMEOUT = 400000
OOB = 0x40000000
MALL = [1]
OSC = ['']
NRY = 3


def wait_ge(p, vaddr, vtmp, val, sleep=4):
    e = p.e
    L, D = p.label('WT'), p.label('WD')
    e(f'''{L}:
    buffer_load_dword {vtmp}, {vaddr}, {sWS}, {sCN} offen sc1
    s_sub_u32 {sTO}, {sTO}, 1
    s_cmp_gt_i32 {sTO}, 0
    s_cbranch_scc0 {D}
    s_waitcnt vmcnt(0)
    v_cmp_gt_u32 vcc, {val}, {vtmp}
    s_cbranch_vccz {D}
    s_sleep {sleep}
    s_branch {L}
    {D}:''')


def signal(p, vaddr, vtmp):
    e = p.e
    L = p.label('SG')
    e(f'''s_waitcnt vmcnt(0) lgkmcnt(0)
    s_barrier
    s_cmp_lg_u32 {sW}, 0
    s_cbranch_scc1 {L}
    v_mov_b32 {vtmp}, 1
    s_mov_b64 exec, 1
    buffer_atomic_add {vtmp}, {vaddr}, {sWS}, {sCN} offen
    s_mov_b64 exec, -1
    {L}:''')


def go_wait(p, vCA, t0, sA):
    L = p.label('GW')
    p.e(f"""s_cmp_lg_u32 {sW}, 0
    s_cbranch_scc1 {L}
    s_and_b32 {sA}, s8, 7
    s_lshl_b32 {sA}, {sA}, 7
    s_add_u32 {sA}, {sA}, {C_GO}
    v_mov_b32 {vCA}, {sA}""")
    wait_ge(p, vCA, t0, 1, 16)
    p.e(f'{L}:\ns_barrier')


def load_valid(p, loads, regs, vtmp, sleep):
    e = p.e
    L, D = p.label('LV'), p.label('LD')
    e(f'{L}:')
    for l in loads:
        e(l)
    e(f"""s_sub_u32 {sTO}, {sTO}, 1
    s_cmp_gt_i32 {sTO}, 0
    s_cbranch_scc0 {D}""")
    n = len(loads)
    per = len(regs) // n
    for i in range(n):
        e(f's_waitcnt vmcnt({n - 1 - i})')
        r = regs[per * i:per * i + per]
        if per == 1:
            e(f'v_mov_b32 {vtmp}, {r[0]}' if i == 0 else f'v_max_u32 {vtmp}, {vtmp}, {r[0]}')
        else:
            e(f'v_max_u32 {vtmp}, {r[0]}, {r[1]}' if i == 0 else f'v_max3_u32 {vtmp}, {vtmp}, {r[0]}, {r[1]}')
            e(f'v_max3_u32 {vtmp}, {vtmp}, {r[2]}, {r[3]}')
    e(f"""v_cmp_eq_u32 vcc, -1, {vtmp}
    s_cbranch_vccz {D}
    s_sleep {sleep}
    s_branch {L}
    {D}:
    s_waitcnt vmcnt(0)""")


def yt_worker(p, kind):
    e = p.e
    isY = kind == 0
    L_T, L_XA = 65536, 98304
    V = Alloc('v', 1, 254)
    A = Alloc('a', 0, 256)
    vL, vG, vC, t0, t1, t2, vL16, vXB, vCA = (V.get() for _ in range(9))
    x1, x2 = V.get(), V.get()
    if not isY:
        Sx = V.get(8, 4)
        Sm = V.get(8, 4)
    else:
        vIdx, vTo = V.get(), V.get()
    buf = V.get(32, 4)
    acc = V.get(56, 4)
    frag = {}
    for t in range(7):
        for k in range(7):
            frag[(t, k)] = A.get(8, 4) if A.left() >= 8 else V.get(8, 4)
    sS, sCur, sW7, sO, sA, sB, sPrev = 's12', 's13', 's14', 's15', 's16', 's17', 's18'
    TLB = WS_TL + 16384
    e(f"""v_and_b32 {vL}, 63, v0
    v_lshrrev_b32 {vG}, 4, {vL}
    v_and_b32 {vC}, 15, {vL}
    v_lshlrev_b32 {vL16}, 4, {vL}
    v_mov_b32 {vXB}, {vL16}
    s_mov_b32 {sTO}, {TIMEOUT}
    s_mov_b32 {sCN}, {WS_CNT}
    s_mov_b32 {sS}, s11
    s_mov_b32 {sCur}, 0
    s_mov_b32 {sPrev}, {OOB}
    s_mul_i32 {sW7}, {sW}, 7168""")

    def xb_dma(seg, lds):
        e(f"""s_lshl_b32 {sA}, {seg}, 15
        s_add_u32 {sA}, {sA}, {sW7}
        s_add_u32 {sA}, {sA}, {WS_XNB}
        s_add_u32 m0, {lds}, {sW7}""")
        for i in range(7):
            if i == 4:
                e(f's_add_u32 {sA}, {sA}, 4096\ns_add_u32 m0, m0, 4096')
            e(f'buffer_load_dwordx4 {vL16}, {sWS}, {sA} offen offset:{(i & 3) * 1024} sc1 lds')

    def mem_wait():
        e(f"""s_lshl_b32 {sA}, {sS}, 13
        s_add_u32 {sA}, {sA}, {WS_MEMA}
        s_add_u32 {sB}, {sA}, 4096""")
        load_valid(p, [f'buffer_load_dwordx4 {buf[4 * k:4 * k + 4]}, {vL16}, {sWS}, {sA if k < 4 else sB} offen '
                       f'offset:{(k & 3) * 1024} sc1' for k in range(7)], [buf[i] for i in range(28)], t0, 3)
    if not isY:
        go_wait(p, vCA, t0, sA)
    xb_dma(sS, sCur)
    if isY:
        e(f"""s_and_b32 {sA}, {sW}, 1
        s_mul_i32 {sB}, {sA}, {7 * 32}
        s_lshr_b32 {sA}, {sW}, 1
        s_add_u32 {sB}, {sB}, {sA}
        s_lshl_b32 {sA}, s10, 1
        s_add_u32 {sB}, {sB}, {sA}""")
    else:
        e(f"""s_mul_i32 {sB}, s10, 28
        s_mul_i32 {sA}, {sW}, 7
        s_add_u32 {sB}, {sB}, {sA}""")
    e(f"""s_mul_i32 {sB}, {sB}, 14336
    s_add_u32 {sB}, {sB}, {WS_WVO if isY else WS_WQK}""")
    if isY:
        e(f"""v_and_b32 {t0}, 7, {vL}
        v_min_u32 {t0}, 6, {t0}
        v_mul_u32_u24 {t0}, {32 * 14336}, {t0}
        v_bfe_u32 {t1}, {vL}, 3, 1
        v_mul_u32_u24 {t1}, 14332, {t1}
        v_add_u32 {t0}, {t0}, {t1}
        buffer_load_dword {t2}, {t0}, {sWS}, {sB} offen sc1""")
    n_out = 8
    for t in range(7):
        for k in range(7):
            f = frag[(t, k)]
            if k % 2 == 0:
                e(f's_add_u32 {sA}, {sB}, {(t * 7 * (32 if isY else 1) + k) * 2048}')
            o = (k & 1) * 2048
            e(f"""buffer_load_dwordx4 {f[0:4]}, {vL16}, {sWS}, {sA} offen offset:{o} sc1
            buffer_load_dwordx4 {f[4:8]}, {vL16}, {sWS}, {sA} offen offset:{o + 1024} sc1""")
            n_out += 2
            if n_out >= 60:
                e('s_waitcnt vmcnt(40)')
                n_out = 40
    if isY:
        e(f"""v_bfe_u32 {t0}, {vC}, 1, 1
        v_mul_u32_u24 {vIdx}, 0xaaaa, {t0}
        v_add_u32 {vIdx}, 0x4444, {vIdx}
        v_lshlrev_b32 {t0}, 12, {vG}
        v_lshl_add_u32 {t0}, {vC}, 4, {t0}
        s_mul_i32 {sA}, {sW}, {7 * 4096}
        s_lshl_b32 {sB}, s10, 8
        s_add_u32 {sA}, {sA}, {sB}
        v_add_u32 {x1}, {sA}, {t0}
        v_add_u32 {t0}, {4 * 4096}, {x1}
        v_mov_b32 {t1}, {OOB}
        v_cmp_gt_u32 vcc, 3, {vG}
        v_cndmask_b32 {x2}, {t1}, {t0}, vcc
        v_lshrrev_b32 {t0}, 3, {vL}
        v_min_u32 {t0}, 6, {t0}
        v_lshlrev_b32 {t0}, 14, {t0}
        v_and_b32 {t1}, 7, {vL}
        v_lshl_add_u32 {vTo}, {t1}, 7, {t0}
        s_mov_b32 {sO}, {WS_YX + 7 * 16384}""")
    else:
        for i, x in enumerate((x1, x2)):
            e(f"""s_mul_i32 {sA}, {sW}, 7
            s_add_u32 {sA}, {sA}, {i}
            s_lshr_b32 {sB}, {sA}, 1
            s_lshl_b32 {sB}, {sB}, 10
            s_and_b32 {sA}, {sA}, 1
            s_lshl_b32 {sA}, {sA}, 3
            s_add_u32 {sA}, {sA}, {sB}
            s_add_u32 {sA}, {sA}, {L_T}
            v_add_u32 {x}, {sA}, {vL16}""")
        e(f"""s_and_b32 {sA}, {sW}, 1
        s_lshl_b32 {sA}, {sA}, 4
        v_add_u32 {t0}, {sA}, {vC}
        v_lshlrev_b32 {t1}, 2, {vG}""")
        for i in range(8):
            e(f"""v_add_u32 {t2}, {16 * (i >> 2) + (i & 3)}, {t1}
            v_cmp_le_u32 s[{40 + 2 * i}:{41 + 2 * i}], {t2}, {t0}""")

    def init_marks():
        IL = p.label('IL')
        mk = buf[0:4]
        for i in range(4):
            e(f'v_mov_b32 {mk[i]}, -1')
        e(f's_mov_b32 {sO}, s11')
        if not isY:
            e(f"""v_lshlrev_b32 {t0}, 2, {vL}
            s_cmp_ge_u32 {sW}, 2
            s_cbranch_scc1 {IL}x""")
        e(f'{IL}:')
        if isY:
            e(f"""s_lshl_b32 {sA}, {sO}, 17
            s_add_u32 {sA}, {sA}, {WS_YMA}
            buffer_store_dwordx4 {mk}, {x1}, {sWS}, {sA} offen sc1
            buffer_store_dwordx4 {mk}, {x2}, {sWS}, {sA} offen sc1""")
        else:
            e(f"""s_lshl_b32 {sA}, {sO}, 1
            s_add_u32 {sA}, {sA}, {sW}
            s_lshl_b32 {sA}, {sA}, 4
            s_add_u32 {sA}, {sA}, s10
            s_lshl_b32 {sB}, {sA}, 10
            s_add_u32 {sB}, {sB}, {WS_PX}
            s_lshl_b32 {sA}, {sA}, 8
            s_add_u32 {sA}, {sA}, {WS_PM}
            buffer_store_dwordx4 {mk}, {vL16}, {sWS}, {sB} offen sc1
            buffer_store_dword {mk[0]}, {t0}, {sWS}, {sA} offen sc1""")
        e(f"""s_add_u32 {sO}, {sO}, {NRY}
        s_cmp_lt_u32 {sO}, 64
        s_cbranch_scc1 {IL}
        {IL}x:
        v_mov_b32 {vCA}, {C_INIT}""")
        signal(p, vCA, t0)
    e('s_waitcnt vmcnt(0)')
    if not isY:
        init_marks()
    tl(p, 1, 's100', TLB)
    JOB = p.label('JOB')
    nst = 7 if isY else 2
    ndma = 7 if isY else 14
    e(f"""{JOB}:
    s_waitcnt vmcnt({nst}) lgkmcnt(0)
    s_barrier""")

    def rd(q):
        return [f'ds_read_b128 {buf[16 * (q & 1) + 4 * i:16 * (q & 1) + 4 * i + 4]}, {vXB} offset:{xnb_blk(q) * 4096 + i * 1024}'
                for i in range(4)]
    for l in rd(0):
        e(l)
    if not isY:
        e(f"""s_lshl_b32 {sA}, {sS}, 15
        s_lshr_b32 {sB}, {sW}, 1
        s_lshl_b32 {sB}, {sB}, 11
        s_add_u32 {sA}, {sA}, {sB}
        s_add_u32 {sA}, {sA}, {sW7}
        s_add_u32 {sA}, {sA}, {WS_XNA}
        s_add_u32 m0, {sW7}, {L_XA}""")
        for i in range(7):
            if i == 4:
                e(f's_add_u32 {sA}, {sA}, 4096\ns_add_u32 m0, m0, 4096')
            e(f'buffer_load_dwordx4 {vL16}, {sWS}, {sA} offen offset:{(i & 3) * 1024} sc1 lds')
    e(f"""s_add_u32 {sB}, {sS}, {NRY}
    s_min_u32 {sB}, {sB}, 63
    s_xor_b32 {sCur}, {sCur}, 32768""")
    xb_dma(sB, sCur)
    for q in range(7):
        side = rd(q + 1) if q < 6 else []
        e('s_waitcnt lgkmcnt(0)')
        if q == 4 and isY:
            SG = p.label('SG')
            e(f's_waitcnt vmcnt({ndma})')
            if MALL[0]:
                e(f"""s_sub_u32 {sA}, {sO}, {7 * 16384}
                buffer_load_dword {t2}, {vTo}, {sWS}, {sA} offen sc1""")
            e(f"""s_barrier
            s_cmp_lg_u32 {sW}, 0
            s_cbranch_scc1 {SG}
            v_mov_b32 {t0}, 1
            v_mov_b32 {vCA}, {sPrev}
            s_mov_b64 exec, 1
            buffer_atomic_add {t0}, {vCA}, {sWS}, {sCN} offen
            s_mov_b64 exec, -1
            {SG}:""")
        n = 0
        for rh in range(2):
            for t in range(7):
                for kt in range(2):
                    d = acc[8 * t + 4 * kt:8 * t + 4 * kt + 4]
                    xa = buf[16 * (q & 1) + 8 * kt + 4 * rh:16 * (q & 1) + 8 * kt + 4 * rh + 4]
                    wf = frag[(t, q)][4 * rh:4 * rh + 4]
                    c = 0 if (q == 0 and rh == 0) else d
                    if isY:
                        e(f'v_mfma_f32_16x16x32_bf16 {d}, {xa}, {wf}, {c}')
                    else:
                        e(f'v_mfma_f32_16x16x32_bf16 {d}, {wf}, {xa}, {c}')
                    if side and n % 4 == 1:
                        e(side.pop(0))
                    n += 1
    e(f'v_xor_b32 {vXB}, 32768, {vXB}')
    if isY:
        e(f"""s_mul_i32 {sO}, {sS}, {28 * 16384}
        s_mul_i32 {sA}, {sW}, {7 * 16384}
        s_add_u32 {sO}, {sO}, {sA}
        s_lshl_b32 {sA}, s10, 10
        s_add_u32 {sO}, {sO}, {sA}
        s_add_u32 {sO}, {sO}, {WS_YX}""")
        for t in range(7):
            a = acc[8 * t:8 * t + 8]
            for i in range(4):
                e(f'v_cvt_pk_bf16_f32 {a[i]}, {a[2 * i]}, {a[2 * i + 1]}')
            e(f"""buffer_store_dwordx4 {a[0:4]}, {vL16}, {sWS}, {sO} offen sc1
            s_add_u32 {sO}, {sO}, 16384""")
        NF = p.label('NF')
        e(f"""s_lshl_b32 {sPrev}, {sS}, 2
        s_cmp_lg_u32 {sS}, s11
        s_cbranch_scc1 {NF}
        v_mov_b32 {vCA}, {sPrev}
        s_mov_b32 {sPrev}, {OOB}""")
        signal(p, vCA, t0)
        tl(p, 2, 's100', TLB)
        e(f"""{NF}:
        s_sub_u32 {sA}, {sS}, s11
        s_cmp_lg_u32 {sA}, {5 * NRY}
        s_cbranch_scc1 {NF}x
        v_and_b32 {vCA}, 31, {vL}
        v_lshlrev_b32 {vCA}, 2, {vCA}
        v_add_u32 {vCA}, {C_LN}, {vCA}""")
        wait_ge(p, vCA, t0, 1, 8)
        e(f"""{NF}x:
        s_add_u32 {sS}, {sS}, {NRY}
        s_cmp_lt_u32 {sS}, 64
        s_cbranch_scc1 {JOB}
        v_mov_b32 {vCA}, {sPrev}""")
        signal(p, vCA, t0)
        init_marks()
        tl(p, 3, 's100', TLB)
        MJ = p.label('MJ')
        e(f"""s_mov_b32 {sS}, s11
        {MJ}:""")
        for i in range(28):
            e(f'v_mov_b32 {acc[i]}, 0')
        mem_wait()
        for k in range(7):
            for t in range(7):
                e(f'v_smfmac_f32_16x16x64_bf16 {acc[4 * t:4 * t + 4]}, {buf[4 * k:4 * k + 4]}, {frag[(t, k)]}, {vIdx}')
        o = acc[32:40]
        for t in range(7):
            a = acc[4 * t:4 * t + 4]
            e(f"""v_add_f32 {a[0]}, {a[0]}, {a[2]}
            v_add_f32 {a[1]}, {a[1]}, {a[3]}
            v_cvt_pk_bf16_f32 {o[t]}, {a[0]}, {a[1]}""")
        e(f"""v_mov_b32 {o[7]}, 0
        s_lshl_b32 {sO}, {sS}, 17
        s_add_u32 {sO}, {sO}, {WS_YMA}""")
        for b in (0, 4):
            e(f"""v_permlane32_swap_b32 {o[b]}, {o[b + 2]}
            v_permlane32_swap_b32 {o[b + 1]}, {o[b + 3]}
            v_permlane16_swap_b32 {o[b]}, {o[b + 1]}
            v_permlane16_swap_b32 {o[b + 2]}, {o[b + 3]}
            buffer_store_dwordx4 {o[b:b + 4]}, {x1 if b == 0 else x2}, {sWS}, {sO} offen sc1""")
        e(f"""s_add_u32 {sS}, {sS}, {NRY}
        s_cmp_lt_u32 {sS}, 64
        s_cbranch_scc1 {MJ}""")
        tl(p, 4, 's100', TLB)
        e('s_endpgm')
        return
    for t in range(7):
        for qt in range(2):
            a = acc[8 * t + 4 * qt:8 * t + 4 * qt + 4]
            e(f"""v_cvt_pk_bf16_f32 {a[0]}, {a[0]}, {a[1]}
            v_cvt_pk_bf16_f32 {a[1]}, {a[2]}, {a[3]}
            ds_write_b64 {x2 if (t & 1) else x1}, {a[0:2]} offset:{(t >> 1) * 1024 + qt * 14336}""")
    SK = p.label('TSK')
    e(f"""s_waitcnt vmcnt(0) lgkmcnt(0)
    s_barrier
    s_cmp_ge_u32 {sW}, 2
    s_cbranch_scc1 {SK}
    s_mul_i32 {sA}, {sW}, 14336
    s_add_u32 {sA}, {sA}, {L_T}
    v_add_u32 {t0}, {sA}, {vL16}
    v_add_u32 {t2}, {L_XA}, {vL16}""")
    for th in range(14):
        e(f'ds_read_b128 {acc[4 * th:4 * th + 4]}, {t0} offset:{th * 1024}')
    e('s_waitcnt lgkmcnt(6)')

    def xa_rd(i):
        e(f'ds_read_b128 {buf[4 * (i & 7):4 * (i & 7) + 4]}, {t2} offset:{i * 1024}')
    for i in range(8):
        xa_rd(i)
    for i in range(28):
        kt, th = i // 14, i % 14
        e(f's_waitcnt lgkmcnt({min(7, 27 - i)})')
        d = Sx[4 * kt:4 * kt + 4]
        e(f'v_mfma_f32_16x16x32_bf16 {d}, {buf[4 * (i & 7):4 * (i & 7) + 4]}, {acc[4 * th:4 * th + 4]}, {0 if th == 0 else d}')
        if i + 8 < 28:
            xa_rd(i + 8)
    e(f'v_mov_b32 {t1}, 0xff800000')
    for i in range(8):
        e(f'v_cndmask_b32 {Sx[i]}, {t1}, {Sx[i]}, s[{40 + 2 * i}:{41 + 2 * i}]')
    e(f"""v_max3_f32 {t2}, {Sx[0]}, {Sx[1]}, {Sx[2]}
    v_max3_f32 {t2}, {t2}, {Sx[3]}, {Sx[4]}
    v_max3_f32 {t2}, {t2}, {Sx[5]}, {Sx[6]}
    v_max_f32 {t2}, {t2}, {Sx[7]}""")
    mem_wait()
    for k in range(7):
        for v in range(2):
            d = Sm[4 * v:4 * v + 4]
            e(f'v_mfma_f32_16x16x32_bf16 {d}, {buf[4 * k:4 * k + 4]}, {acc[4 * (2 * k + v):4 * (2 * k + v) + 4]}, {0 if k == 0 else d}')
    vals = [Sx[i] for i in range(8)] + [Sm[0], Sm[1]]

    def allred(op):
        e(f"""v_mov_b32 {t1}, {t0}
        v_permlane16_swap_b32 {t0}, {t1}
        v_{op}_f32 {t0}, {t0}, {t1}
        v_mov_b32 {t1}, {t0}
        v_permlane32_swap_b32 {t0}, {t1}
        v_{op}_f32 {t0}, {t0}, {t1}""")
    e(f"""s_lshl_b32 {sA}, {sS}, 1
    s_add_u32 {sA}, {sA}, {sW}
    s_lshl_b32 {sA}, {sA}, 4
    s_add_u32 {sA}, {sA}, s10            ; (s*2+qt)*16 + h
    s_lshl_b32 {sB}, {sA}, 10
    s_add_u32 {sB}, {sB}, {WS_PX}
    s_lshl_b32 {sA}, {sA}, 8
    s_add_u32 {sA}, {sA}, {WS_PM}
    v_add_f32 {Sm[0]}, {Sm[0]}, {Sm[6]}
    v_add_f32 {Sm[1]}, {Sm[1]}, {Sm[7]}
    v_max3_f32 {t0}, {t2}, {Sm[0]}, {Sm[1]}""")
    allred('max')
    for v in vals:
        e(f'v_sub_f32 {v}, {v}, {t0}')
    for v in vals:
        e(f'v_exp_f32 {v}, {v}')
    e(f'v_add_f32 {t0}, {vals[0]}, {vals[1]}')
    for v in vals[2:]:
        e(f'v_add_f32 {t0}, {t0}, {v}')
    allred('add')
    e(f'v_rcp_f32 {t0}, {t0}')
    for v in vals:
        e(f'v_mul_f32 {v}, {v}, {t0}')
    for i in range(4):
        e(f'v_cvt_pk_bf16_f32 {Sx[i]}, {Sx[2 * i]}, {Sx[2 * i + 1]}')
    e(f"""v_cvt_pk_bf16_f32 {Sm[0]}, {Sm[0]}, {Sm[1]}
    buffer_store_dwordx4 {Sx[0:4]}, {vL16}, {sWS}, {sB} offen sc1
    v_lshlrev_b32 {t0}, 4, {vC}
    v_lshl_add_u32 {t0}, {vG}, 2, {t0}
    buffer_store_dword {Sm[0]}, {t0}, {sWS}, {sA} offen sc1
    {SK}:
    s_add_u32 {sS}, {sS}, {NRY}
    s_cmp_lt_u32 {sS}, 64
    s_cbranch_scc1 {JOB}""")
    tl(p, 4, 's100', TLB)
    e('s_endpgm')


def f_worker(p):
    e = p.e
    V = Alloc('v', 1, 256)
    vL, vG, vC, t0, t1, t2, vL16, vCA, vB1 = (V.get() for _ in range(9))
    vQ = [V.get() for _ in range(7)]
    vRo = [V.get() for _ in range(4)]
    vGo = [V.get() for _ in range(4)]
    H = V.get(8, 4)
    Bs = V.get(4, 4)
    acc = V.get(112, 4)
    XF = V.get(56, 4)
    PA = V.get(40, 4)
    sS, sXx, sA, sB, sC, sI, sF1, sF2 = 's12', 's13', 's14', 's15', 's32', 's33', 's34', 's35'
    rW1, rW2, rB1, rB2 = 's[16:19]', 's[20:23]', 's[24:27]', 's[28:31]'
    rX, rO = 's[40:43]', 's[44:47]'
    srd(e, 16, 64, 448 * 1792 * 2)
    srd(e, 20, 80, 448 * 1792 * 2)
    srd(e, 24, 72, 1792 * 2)
    srd(e, 28, 88, 448 * 2)
    srd(e, 40, 0, S * D * 2)
    srd(e, 44, 96, S * D * 2)
    e(f'''v_and_b32 {vL}, 63, v0
    v_lshrrev_b32 {vG}, 4, {vL}
    v_and_b32 {vC}, 15, {vL}
    v_lshlrev_b32 {vL16}, 4, {vL}
    v_lshlrev_b32 {vB1}, 3, {vG}
    s_mov_b32 {sTO}, {TIMEOUT}
    s_mov_b32 {sCN}, {WS_CNT}
    s_lshr_b32 {sS}, s10, 1
    s_and_b32 {sXx}, s10, 1''')
    for q in range(7):
        e(f'v_add_u32 {vQ[q]}, {q * 4096}, {vL16}')
    go_wait(p, vCA, t0, sA)
    e(f'''v_mul_u32_u24 {t0}, {4 * 3584}, {vG}
    v_lshl_add_u32 {t0}, {vC}, 1, {t0}            ; w1 voffset
    v_mul_u32_u24 {t1}, {4 * 896}, {vG}
    v_and_b32 {t2}, 7, {vC}
    v_lshl_add_u32 {t1}, {t2}, 1, {t1}
    v_lshrrev_b32 {t2}, 3, {vC}
    v_lshl_add_u32 {t1}, {t2}, 6, {t1}            ; w2 voffset
    s_lshl_b32 {sI}, s10, 2
    s_add_u32 {sI}, {sI}, {sW}
    s_waitcnt lgkmcnt(0)''')
    C0 = p.label('CV')
    e(f'''{C0}:
    ; W1F id -> ft = id/14, rem = id%14 -> byte (64*chunk + 16*rh)*3584 + 32*ft
    s_mul_i32 {sA}, {sI}, 4682
    s_lshr_b32 {sA}, {sA}, 16
    s_mul_i32 {sB}, {sA}, 14
    s_sub_u32 {sB}, {sI}, {sB}
    s_lshl_b32 {sA}, {sA}, 5
    s_lshr_b32 {sC}, {sB}, 1
    s_mul_i32 {sC}, {sC}, {64 * 3584}
    s_add_u32 {sA}, {sA}, {sC}
    s_and_b32 {sB}, {sB}, 1
    s_mul_i32 {sB}, {sB}, {16 * 3584}
    s_add_u32 {sA}, {sA}, {sB}''')
    for el in range(8):
        rho, b = el >> 1, el & 1
        e(f'''s_add_u32 {sB}, {sA}, {(32 * (rho & 1) + 2 * (rho >> 1) + b) * 3584}
        buffer_load_ushort {acc[el]}, {t0}, {rW1}, {sB} offen''')
    e(f'''; W2F id -> F = id/28, j = id%28 -> byte 32F*896 + (64*(j>>2) + 8*(j&3))*2
    s_mul_i32 {sA}, {sI}, 2341
    s_lshr_b32 {sA}, {sA}, 16
    s_mul_i32 {sB}, {sA}, 28
    s_sub_u32 {sB}, {sI}, {sB}
    s_mul_i32 {sA}, {sA}, {32 * 896}
    s_lshr_b32 {sC}, {sB}, 2
    s_lshl_b32 {sC}, {sC}, 7
    s_add_u32 {sA}, {sA}, {sC}
    s_and_b32 {sB}, {sB}, 3
    s_lshl_b32 {sB}, {sB}, 4
    s_add_u32 {sA}, {sA}, {sB}
    s_add_u32 {sB}, {sA}, {16 * 896}''')
    for el in range(8):
        e(f'buffer_load_ushort {acc[8 + el]}, {t1}, {rW2}, {sA if el < 4 else sB} offen offset:{(el & 3) * 896}')
    e(f'''s_lshl_b32 {sA}, {sI}, 10
    s_add_u32 {sB}, {sA}, {WS_W2F}
    s_add_u32 {sA}, {sA}, {WS_W1F}
    s_waitcnt vmcnt(0)''')
    for i in range(8):
        e(f'v_lshl_or_b32 {acc[16 + i]}, {acc[2 * i + 1]}, 16, {acc[2 * i]}')
    e(f'''buffer_store_dwordx4 {acc[16:20]}, {vL16}, {sWS}, {sA} offen sc1
    buffer_store_dwordx4 {acc[20:24]}, {vL16}, {sWS}, {sB} offen sc1
    s_add_u32 {sI}, {sI}, 512
    s_cmp_lt_u32 {sI}, 1568
    s_cbranch_scc1 {C0}
    v_mov_b32 {vCA}, {C_WF}''')
    signal(p, vCA, t0)
    e(f'''s_lshl_b32 {sA}, {sS}, 15
    s_lshl_b32 {sB}, {sXx}, 11
    s_add_u32 {sA}, {sA}, {sB}
    s_add_u32 {sA}, {sA}, {WS_XNB}''')
    for k in range(7):
        for rh in range(2):
            e(f'buffer_load_dwordx4 {XF[8 * k + 4 * rh:8 * k + 4 * rh + 4]}, {vQ[xnb_blk(k)]}, {sWS}, {sA} offen offset:{rh * 1024} sc1')
    for i in range(112):
        e(f'v_mov_b32 {acc[i]}, 0')
    e(f's_mov_b32 {sA}, 128')
    wait_ge(p, vCA, t0, sA, 8)
    tl(p, 1, 's100', WS_TL + 16384)
    bA = R('a', 0, 112)
    bB = R('a', 112, 112)

    def blk_load(dst, so, i):
        return f'buffer_load_dwordx4 {dst[4 * i:4 * i + 4]}, {vQ[i >> 2]}, {sWS}, {so} offen offset:{(i & 3) * 1024} sc1'
    e(f'''s_mul_i32 {sF1}, {sW}, 28672
    s_add_u32 {sF2}, {sF1}, {WS_W2F}
    s_add_u32 {sF1}, {sF1}, {WS_W1F}
    s_lshl_b32 {sC}, {sW}, 6
    s_mov_b32 {sI}, 0''')
    for i in range(28):
        e(blk_load(bA, sF1, i))
    FL = p.label('FL')
    e(f'''{FL}:
    buffer_load_dwordx2 {Bs[0:2]}, {vB1}, {rB1}, {sC} offen
    buffer_load_dwordx2 {Bs[2:4]}, {vB1}, {rB1}, {sC} offen offset:32
    s_add_u32 {sF1}, {sF1}, {4 * 28672}''')
    for i in range(28):
        a, kk = i // 14, i % 14
        e(f's_waitcnt vmcnt({29})')
        d = H[4 * a:4 * a + 4]
        e(f'v_mfma_f32_16x16x32_bf16 {d}, {bA[4 * i:4 * i + 4]}, {XF[4 * kk:4 * kk + 4]}, {0 if kk == 0 else d}')
        e(blk_load(bB, sF2, i))
    e('s_waitcnt vmcnt(28)')
    for i in range(4):
        a, b = H[2 * i], H[2 * i + 1]
        e(f'''v_cvt_pk_bf16_f32 {t0}, {a}, {b}
        v_lshlrev_b32 {a}, 16, {t0}
        v_and_b32 {b}, 0xffff0000, {t0}
        v_lshlrev_b32 {t1}, 16, {Bs[i]}
        v_and_b32 {t2}, 0xffff0000, {Bs[i]}
        v_add_f32 {a}, {a}, {t1}
        v_add_f32 {b}, {b}, {t2}
        v_cvt_pk_bf16_f32 {t0}, {a}, {b}
        v_lshlrev_b32 {a}, 16, {t0}
        v_and_b32 {b}, 0xffff0000, {t0}
        v_max_f32 {a}, 0, {a}
        v_max_f32 {b}, 0, {b}
        v_mul_f32 {a}, {a}, {a}
        v_mul_f32 {b}, {b}, {b}
        v_cvt_pk_bf16_f32 {PA[i]}, {a}, {b}''')
    for i in range(28):
        e(f's_waitcnt vmcnt({27})')
        d = acc[4 * i:4 * i + 4]
        e(f'v_mfma_f32_16x16x32_bf16 {d}, {PA[0:4]}, {bB[4 * i:4 * i + 4]}, {d}')
        e(blk_load(bA, sF1, i))
    e(f'''s_add_u32 {sF2}, {sF2}, {4 * 28672}
    s_add_u32 {sC}, {sC}, 256
    s_add_u32 {sI}, {sI}, 1
    s_cmp_lt_u32 {sI}, 14
    s_cbranch_scc1 {FL}''')

    def reduce_write(ntile, nq, rowb):
        e(f'''v_mul_u32_u24 {t0}, {4 * rowb}, {vG}
        v_lshl_add_u32 {t0}, {vC}, 2, {t0}
        s_lshl_b32 {sA}, {sW}, 15
        v_add_u32 {t0}, {sA}, {t0}''')
        u = rowb // 256
        for tt in range(ntile):
            for qt in range(nq):
                a = acc[4 * (tt * nq + qt):4 * (tt * nq + qt) + 4]
                for r in (0, 2):
                    o = (16 * qt + r) * u
                    e(f'ds_write2st64_b32 {t0}, {a[r]}, {a[r + 1]} offset0:{o} offset1:{o + u}')
            e(f'v_add_u32 {t0}, 64, {t0}')
        e('s_waitcnt lgkmcnt(0)\ns_barrier')

    def reader_setup(nunit, rowb, jbase_sgpr, rowbase_sgpr):
        mul = {56: 1171, 28: 2341}[nunit]
        for rd in range(4):
            e(f'''v_add_u32 {t0}, {256 * rd}, v0
            v_mul_u32_u24 {t1}, {mul}, {t0}
            v_lshrrev_b32 {t1}, 16, {t1}                 ; token
            v_mul_u32_u24 {t2}, {nunit}, {t1}
            v_sub_u32 {t2}, {t0}, {t2}                   ; q
            v_mul_u32_u24 {vRo[rd]}, {rowb}, {t1}
            v_lshl_add_u32 {vRo[rd]}, {t2}, 5, {vRo[rd]}
            v_add_u32 {t1}, {rowbase_sgpr}, {t1}
            v_mul_u32_u24 {vGo[rd]}, 896, {t1}
            v_and_b32 {t1}, 1, {t2}
            v_lshl_add_u32 {vGo[rd]}, {t1}, 6, {vGo[rd]}
            v_lshrrev_b32 {t2}, 1, {t2}
            v_add_u32 {t2}, {jbase_sgpr}, {t2}           ; j
            v_lshrrev_b32 {t1}, 2, {t2}
            v_lshl_add_u32 {vGo[rd]}, {t1}, 7, {vGo[rd]}
            v_and_b32 {t1}, 3, {t2}
            v_lshl_add_u32 {vGo[rd]}, {t1}, 4, {vGo[rd]}''')
        e(f'''v_cmp_gt_u32 vcc, 128, v0
        v_mov_b32 {t0}, {OOB}
        v_cndmask_b32 {vGo[3]}, {t0}, {vGo[3]}, vcc
        v_cndmask_b32 {vRo[3]}, 0, {vRo[3]}, vcc''')

    def reduce_read(rd, dst):
        e(f'v_add_u32 {t0}, 65536, {vRo[rd]}')
        for ww in range(4):
            ad = vRo[rd] if ww < 2 else t0
            for hh in range(2):
                e(f'ds_read_b128 {dst[8 * ww + 4 * hh:8 * ww + 4 * hh + 4]}, {ad} offset:{(ww & 1) * 32768 + hh * 16}')
        e('s_waitcnt lgkmcnt(0)')
        for i in range(8):
            e(f'''v_add_f32 {dst[i]}, {dst[i]}, {dst[8 + i]}
            v_add_f32 {dst[16 + i]}, {dst[16 + i]}, {dst[24 + i]}
            v_add_f32 {dst[i]}, {dst[i]}, {dst[16 + i]}''')

    def add_packed(vals, pk):
        for i in range(4):
            a, b = vals[2 * i], vals[2 * i + 1]
            e(f'''v_cvt_pk_bf16_f32 {t0}, {a}, {b}
            v_lshlrev_b32 {a}, 16, {t0}
            v_and_b32 {b}, 0xffff0000, {t0}
            v_lshlrev_b32 {t1}, 16, {pk[i]}
            v_and_b32 {t2}, 0xffff0000, {pk[i]}
            v_add_f32 {a}, {a}, {t1}
            v_add_f32 {b}, {b}, {t2}''')

    e('s_waitcnt vmcnt(0)')
    reduce_write(28, 1, 2048)
    e(f'''s_mov_b32 {sA}, 0
    s_mov_b32 {sB}, 0''')
    reader_setup(56, 2048, sA, sB)
    e(f'''s_lshl_b32 {sB}, s10, 4
    s_mul_i32 {sB}, {sB}, 896
    s_add_u32 {sB}, {sB}, {WS_BASE}''')
    for rd in range(4):
        e(f'''v_lshrrev_b32 {t1}, 11, {vRo[rd]}
        v_mul_u32_u24 {t1}, 896, {t1}
        v_sub_u32 {t1}, {vGo[rd]}, {t1}
        buffer_load_dwordx4 {PA[4 * rd:4 * rd + 4]}, {t1}, {rB2}, 0 offen''')
    for rd in range(4):
        d = XF[0:32]
        reduce_read(rd, d)
        e(f's_waitcnt vmcnt({3})' if False else 's_waitcnt vmcnt(0)')
        add_packed(d, PA[4 * rd:4 * rd + 4])
        o = XF[32 + 4 * rd:36 + 4 * rd]
        for i in range(4):
            e(f'v_cvt_pk_bf16_f32 {o[i]}, {d[2 * i]}, {d[2 * i + 1]}')
    for rd in range(4):
        e(f'buffer_store_dwordx4 {XF[32 + 4 * rd:36 + 4 * rd]}, {vGo[rd]}, {sWS}, {sB} offen sc1')
    e(f'''s_lshl_b32 {sA}, {sS}, 7
    s_add_u32 {sA}, {sA}, {C_PY}
    v_mov_b32 {vCA}, {sA}''')
    signal(p, vCA, t0)
    tl(p, 2, 's100', WS_TL + 16384)
    sCG = 's36'
    e(f"""s_cmp_ge_u32 s10, 126
    s_cbranch_scc1 EXIT
    s_mul_i32 {sS}, s10, 147
    s_lshr_b32 {sS}, {sS}, 10
    s_mul_i32 {sCG}, {sS}, 7
    s_sub_u32 {sCG}, s10, {sCG}
    v_mov_b32 {vCA}, {C_INIT}
    s_mov_b32 {sA}, {32 * NRY}""")
    wait_ge(p, vCA, t0, sA, 16)
    YB = R('a', 0, 64)
    XR, BR = XF[16:20], XF[20:24]
    YM = XF[0:16]
    vWr, vRd, vG2 = vRo[0], vRo[1], vGo[0]
    e(f"""; LDS write: w*8192 + 4g*256 + ((n&7) + 32*(n>>3))*4
    v_lshlrev_b32 {vWr}, 10, {vG}
    v_and_b32 {t0}, 7, {vC}
    v_lshl_add_u32 {vWr}, {t0}, 2, {vWr}
    v_lshrrev_b32 {t0}, 3, {vC}
    v_lshl_add_u32 {vWr}, {t0}, 7, {vWr}
    s_lshl_b32 {sA}, {sW}, 13
    v_add_u32 {vWr}, {sA}, {vWr}
    v_lshlrev_b32 {vRd}, 5, v0
    v_lshrrev_b32 {t0}, 3, v0
    v_mul_u32_u24 {vG2}, 896, {t0}
    v_and_b32 {t0}, 7, v0
    v_lshl_add_u32 {vG2}, {t0}, 4, {vG2}
    s_lshl_b32 {sA}, {sCG}, 7
    v_add_u32 {vG2}, {sA}, {vG2}""")
    J2 = p.label('J2')
    e(f"""{J2}:
    s_lshl_b32 {sA}, {sS}, 2
    v_mov_b32 {vCA}, {sA}
    s_mov_b32 {sA}, 16""")
    wait_ge(p, vCA, t0, sA, 8)
    e(f"""s_lshl_b32 {sA}, {sS}, 7
    s_add_u32 {sA}, {sA}, {C_PY}
    v_mov_b32 {vCA}, {sA}
    s_mov_b32 {sA}, 2""")
    wait_ge(p, vCA, t0, sA, 8)
    e(f"""s_mul_i32 {sA}, {sS}, {28 * 16384}
    s_lshl_b32 {sB}, {sCG}, 16
    s_add_u32 {sA}, {sA}, {sB}
    s_lshl_b32 {sB}, {sW}, 12
    s_add_u32 {sA}, {sA}, {sB}
    s_add_u32 {sA}, {sA}, {WS_YX}""")
    for tt in range(4):
        for hh in range(4):
            e(f'buffer_load_dwordx4 {YB[16 * tt + 4 * hh:16 * tt + 4 * hh + 4]}, {vL16}, {sWS}, {sA} offen offset:{hh * 1024} sc1')
        e(f's_add_u32 {sA}, {sA}, 16384')
    e(f"""s_mul_i32 {sI}, {sS}, {32 * 896}
    s_add_u32 {sB}, {sI}, {WS_BASE}
    buffer_load_dwordx4 {XR}, {vG2}, {rX}, {sI} offen
    buffer_load_dwordx4 {BR}, {vG2}, {sWS}, {sB} offen sc1
    s_lshl_b32 {sA}, {sS}, 13
    s_add_u32 {sA}, {sA}, {WS_MEMA}
    v_mov_b32 {t1}, 0""")
    load_valid(p, [f'buffer_load_dword {t2}, {t1}, {sWS}, {sA} offen sc1'], [t2], t0, 8)
    tl(p, 3, 's100', WS_TL + 16384)
    e(f"""s_lshl_b32 {sA}, {sS}, 15
    s_lshl_b32 {sB}, {sW}, 12
    s_add_u32 {sA}, {sA}, {sB}
    s_add_u32 {sA}, {sA}, {WS_PX}
    s_lshl_b32 {sF1}, {sS}, 13
    s_lshl_b32 {sB}, {sW}, 10
    s_add_u32 {sF1}, {sF1}, {sB}
    s_add_u32 {sF1}, {sF1}, {WS_PM}
    s_lshl_b32 {sF2}, {sS}, 17
    s_add_u32 {sF2}, {sF2}, {sB}
    s_lshl_b32 {sB}, {sCG}, 14
    s_add_u32 {sF2}, {sF2}, {sB}
    s_add_u32 {sF2}, {sF2}, {WS_YMA}""")
    lds_ = []
    for hh in range(4):
        for qt in range(2):
            lds_.append(f'buffer_load_dwordx4 {PA[8 * hh + 4 * qt:8 * hh + 4 * qt + 4]}, {vQ[4 * qt]}, {sWS}, {sA} offen offset:{hh * 1024} sc1')
    lds_ += [f'buffer_load_dwordx4 {PA[32 + 4 * qt:36 + 4 * qt]}, {vQ[qt]}, {sWS}, {sF1} offen sc1' for qt in range(2)]
    lds_ += [f'buffer_load_dwordx4 {YM[4 * tt:4 * tt + 4]}, {vQ[tt]}, {sWS}, {sF2} offen sc1' for tt in range(4)]
    load_valid(p, lds_, [PA[i] for i in range(40)] + [YM[i] for i in range(16)], t0, 1)
    for hh in range(5):
        for tt in range(4):
            for qt in range(2):
                d = acc[4 * (2 * tt + qt):4 * (2 * tt + qt) + 4]
                bb = YB[16 * tt + 4 * hh:16 * tt + 4 * hh + 4] if hh < 4 else YM[4 * tt:4 * tt + 4]
                e(f'v_mfma_f32_16x16x32_bf16 {d}, {PA[8 * hh + 4 * qt:8 * hh + 4 * qt + 4]}, {bb}, {0 if hh == 0 else d}')
    for tt in range(4):
        if tt:
            e(f'v_add_u32 {t0}, {32 * tt}, {vWr}')
        for qt in range(2):
            a_ = acc[4 * (2 * tt + qt):4 * (2 * tt + qt) + 4]
            for r in (0, 2):
                e(f'ds_write2st64_b32 {t0 if tt else vWr}, {a_[r]}, {a_[r + 1]} offset0:{16 * qt + r} offset1:{16 * qt + r + 1}')
    e('s_waitcnt lgkmcnt(0)\ns_barrier')
    d = acc[32:64]
    for ww in range(4):
        for hh in range(2):
            e(f'ds_read_b128 {d[8 * ww + 4 * hh:8 * ww + 4 * hh + 4]}, {vRd} offset:{ww * 8192 + hh * 16}')
    e('s_waitcnt lgkmcnt(0)\ns_barrier')
    for i in range(8):
        e(f"""v_add_f32 {d[i]}, {d[i]}, {d[8 + i]}
        v_add_f32 {d[16 + i]}, {d[16 + i]}, {d[24 + i]}
        v_add_f32 {d[i]}, {d[i]}, {d[16 + i]}""")
    add_packed(d, XR)
    add_packed(d, BR)
    o = acc[64:68]
    for i in range(4):
        e(f'v_cvt_pk_bf16_f32 {o[i]}, {d[2 * i]}, {d[2 * i + 1]}')
    e(f"""buffer_store_dwordx4 {o}, {vG2}, {rO}, {sI} offen {OSC[0]}
    s_add_u32 {sS}, {sS}, 18
    s_cmp_lt_u32 {sS}, 64
    s_cbranch_scc1 {J2}""")
    if TL_ON[0]:
        e('s_waitcnt vmcnt(0)')
    tl(p, 4, 's100', WS_TL + 16384)
    e('s_endpgm')
```

```python
import sys
from asmlib import *
from layout import *
import team, workers, prep
from team import *

NAME = 'parallel_sum__memory_aug_recurrent_mem_tr__dense_activation_squared_relu__prompt'
MAIN_LDS = 131072


def ready_wait(p, kind, lnmask=31):
    e = p.e
    L, W = p.label('RW'), p.label('RB')
    e(f"""s_cmp_lg_u32 {sWAVE}, 0
    s_cbranch_scc1 {W}
    s_mov_b32 s23, {WS_CNT}
    s_and_b32 s22, {sIDX}, 7
    s_lshl_b32 s22, s22, 7
    s_add_u32 s22, s22, {C_LN}
    v_and_b32 v1, {lnmask}, v0
    v_lshlrev_b32 v1, 2, v1
    v_add_u32 v1, s22, v1
    v_and_b32 v3, 15, v0
    v_min_u32 v3, 13, v3
    v_lshlrev_b32 v3, 2, v3""")
    if kind == 'one':
        e(f"""s_lshl_b32 s21, s21, 7
        s_add_u32 s21, s21, {C_MAT}
        v_add_u32 v3, s21, v3
        v_cmp_gt_u32 vcc, 32, v0
        v_cndmask_b32 v1, v3, v1, vcc""")
    if kind == 'vo':
        e(f"""v_lshrrev_b32 v2, 4, v0
        v_lshl_add_u32 v2, v2, 8, v3
        v_add_u32 v2, {C_MAT + 128}, v2""")
    e(f"""s_mov_b32 s22, 200000
    {L}:
    buffer_load_dword v3, v1, s[4:7], s23 offen sc1""")
    if kind == 'vo':
        e("""buffer_load_dword v5, v2, s[4:7], s23 offen sc1
        buffer_load_dword v6, v2, s[4:7], s23 offen offset:1024 sc1
        buffer_load_dword v7, v2, s[4:7], s23 offen offset:2048 sc1
        buffer_load_dword v8, v2, s[4:7], s23 offen offset:3072 sc1""")
    e(f"""s_sub_u32 s22, s22, 1
    s_cmp_gt_i32 s22, 0
    s_cbranch_scc0 {W}
    s_waitcnt vmcnt(0)""")
    if kind == 'vo':
        e('v_min3_u32 v3, v3, v5, v6\nv_min3_u32 v3, v3, v7, v8')
    e(f"""v_cmp_ne_u32 vcc, 1, v3
    s_cbranch_vccz {W}
    s_sleep 4
    s_branch {L}
    {W}:
    s_barrier""")


def done_flag(p, off_sgpr, nrep, sh=7):
    e = p.e
    W, L, K = p.label('DW'), p.label('DL'), p.label('DK')
    e(f"""s_cmp_lg_u32 {sWAVE}, 0
    s_cbranch_scc1 {W}
    s_mov_b32 s91, 200000
    {L}:
    v_readfirstlane_b32 s92, v253
    s_cmp_eq_u32 s92, 1
    s_cbranch_scc1 {K}
    buffer_load_dword v253, v252, s[84:87], 0 offen sc1
    s_sub_u32 s91, s91, 1
    s_cmp_gt_i32 s91, 0
    s_waitcnt vmcnt(0)
    s_cbranch_scc1 {L}
    {K}:
    v_lshlrev_b32 v250, {sh}, v0
    v_add_u32 v250, {off_sgpr}, v250
    v_mov_b32 v251, {OOB}
    v_cmp_gt_u32 vcc, {nrep}, v0
    v_cndmask_b32 v250, v251, v250, vcc
    v_mov_b32 v251, 1
    s_mov_b32 s92, {WS_CNT}
    buffer_store_dword v251, v250, s[4:7], s92 offen sc1
    {W}:""")


def main_kernel(p, name, cfg):
    e = p.e
    srd = prep.srd
    WB = 448 * 8192
    e(f'{name}:')
    e(f"""s_cmp_ge_u32 s2, 256
    s_cbranch_scc1 EXIT""")
    srd(e, 84, 104, 256)
    srd(e, 4, 112, WS_BYTES)
    srd(e, 12, 32, WB)
    srd(e, 16, 40, WB)
    srd(e, 40, 16, WB)
    srd(e, 44, 24, WB)
    srd(e, 48, 0, S * D * 2)
    e(f"""v_lshrrev_b32 v1, 6, v0
    v_readfirstlane_b32 s9, v1
    s_getreg_b32 s88, hwreg(HW_REG_XCC_ID)
    s_and_b32 s88, s88, 7""")
    if cfg.fb:
        e("""s_bfe_u32 s20, s2, 0x10003
        s_cmp_eq_u32 s88, 0
        s_cselect_b32 s88, s20, s88""")
    e(f"""; optimistic slot (die, s2>>3); the claim is checked after the first jobs
    s_lshr_b32 s21, s2, 3
    s_mov_b32 {sSLOW}, 0
    s_lshl_b32 s20, s88, 2
    s_add_u32 s20, s20, 160
    s_lshl_b32 s93, 1, s21
    v_mov_b32 v249, s93
    v_mov_b32 v248, {OOB}
    v_mov_b32 v247, s20
    v_cmp_eq_u32 vcc, 0, v0
    v_cndmask_b32 v248, v248, v247, vcc
    v_mov_b32 v252, 16
    v_mov_b32 v253, 0
    s_waitcnt lgkmcnt(0)""")
    tl(p, 0, 's2', WS_TL)
    if cfg.exit0:
        e('s_endpgm')
    e(f"""s_cmp_lg_u32 s2, 248
    s_cbranch_scc1 NO_INIT
    ; one workgroup clears the hand-off words, then says so in d_debug
    v_lshlrev_b32 v1, 4, v0
    v_mov_b32 v4, 0
    v_mov_b32 v5, 0
    v_mov_b32 v6, 0
    v_mov_b32 v7, 0""")
    for i in range(6):
        e(f"""s_mov_b32 s20, {WS_CNT + i * 4096}
        buffer_store_dwordx4 v[4:7], v1, s[4:7], s20 offen sc1""")
    e("""s_waitcnt vmcnt(0)
    s_barrier
    v_mov_b32 v2, 1
    buffer_store_dword v2, v252, s[84:87], 0 offen sc1
    NO_INIT:""")
    claim = 'buffer_atomic_or v249, v248, s[84:87], 0 offen sc0'
    e(f"""SLOT:
    s_sub_u32 s22, s88, {cfg.xcc + 1}
    s_and_b32 s22, s22, 7
    s_cmp_eq_u32 s22, 7
    s_cbranch_scc1 PREP_LN
    s_mov_b32 s94, s21
    s_mul_i32 s100, s21, 7
    s_add_u32 s100, s100, s22
    s_add_u32 s100, s100, 32
    s_lshl_b32 s20, s22, 5
    s_add_u32 s20, s20, s21             ; job
    s_mul_i32 s10, s20, 4682
    s_lshr_b32 s10, s10, 16             ; head
    s_mul_i32 s21, s10, 14
    s_sub_u32 s20, s20, s21
    s_lshr_b32 s11, s20, 1              ; chunk
    s_and_b32 s33, s20, 1
    s_lshl_b32 s89, s10, 8
    s_lshl_b32 s20, s20, 2
    s_add_u32 s89, s89, s20
    s_add_u32 s89, s89, {C_MAT}
    s_add_u32 s90, s89, 128""")
    tl(p, 0, 's100', WS_TL + 16384)

    if cfg.sb:
        assert prep.NBUILD == 4
        e(f"""s_mul_i32 s39, s22, 14
        s_add_u32 s39, s39, s94
        s_sub_u32 s39, s39, 18
        s_cmp_lt_u32 s94, 18
        s_cselect_b32 s39, 96, s39
        s_mul_i32 s36, s39, 43
        s_lshr_b32 s36, s36, 8
        s_mul_i32 s37, s36, 6
        s_sub_u32 s39, s39, s37
        s_lshr_b32 s37, s39, 1
        s_add_u32 s37, s37, {prep.NBUILD}
        s_and_b32 s38, s39, 1
        s_lshl_b32 s89, s39, 2
        s_lshl_b32 s39, s36, 8
        s_add_u32 s89, s89, s39
        s_add_u32 s89, s89, {C_MAT + 8 * prep.NBUILD}""")

        def tn(t0, t1, vL):
            return [f'v_lshrrev_b32 {t0}, 2, {vL}', f'v_lshlrev_b32 {t0}, 13, {t0}', f'v_and_b32 {t1}, 3, {vL}',
                    f'v_lshl_add_u32 {t0}, {t1}, 7, {t0}', 's_lshl_b32 s31, s37, 19', 's_lshl_b32 s32, s9, 17',
                    's_add_u32 s31, s31, s32', 's_lshl_b32 s32, s36, 9', 's_add_u32 s31, s31, s32',
                    's_cmp_ge_u32 s36, 16', f's_cselect_b32 s31, {OOB}, s31']
        tn.rA, tn.rB = 's[40:43]', 's[40:43]'
    else:
        def tn(t0, t1, vL):
            return [f'v_bfe_u32 {t0}, {vL}, 2, 3', f'v_lshlrev_b32 {t0}, 13, {t0}', f'v_and_b32 {t1}, 3, {vL}',
                    f'v_lshl_add_u32 {t0}, {t1}, 7, {t0}', 's_lshl_b32 s31, s11, 19', 's_lshl_b32 s32, s33, 18',
                    's_add_u32 s31, s31, s32', 's_lshl_b32 s32, s9, 16', 's_add_u32 s31, s31, s32', 's_add_u32 s31, s31, s21']
        tn.rA, tn.rB = 's[40:43]', 's[44:47]'
    prep.gemm_half(p, 1, 's[12:15]', 's[16:19]', tn, 2)
    e('buffer_load_dword v253, v252, s[84:87], 0 offen sc1')

    def sig1(n):
        e(f's_waitcnt vmcnt({n})\ns_barrier')
        done_flag(p, 's90', 1)
        if TL_ON[0]:
            e('s_memrealtime s[76:77]')
    if cfg.sb:
        e(claim)
        sig1(1)
        e("""s_cmp_ge_u32 s36, 16
        s_cbranch_scc1 JOB2_SKIP
        s_mov_b32 s10, s36
        s_mov_b32 s11, s37
        s_mov_b32 s33, s38""")
        prep.gemm_half(p, 0, 's[40:43]', 's[44:47]', None, 5)
    else:
        if cfg.dele:
            e("""s_cmp_eq_u32 s94, 0
        s_cbranch_scc1 JOB2_OFF
        s_cmp_eq_u32 s94, 3
        s_cbranch_scc1 JOB2_OFF
        s_cmp_eq_u32 s100, 74
        s_cbranch_scc1 JOB2_OFF
        s_cmp_lg_u32 s100, 77
        s_cbranch_scc1 JOB2
        JOB2_OFF:""")
            e(claim)
            sig1(1)
            e('s_branch JOB2_SKIP\nJOB2:')
        prep.gemm_half(p, 0, 's[40:43]', 's[44:47]', None, 5, sig1, claim)
    e('s_waitcnt vmcnt(0)\ns_barrier')
    done_flag(p, 's89', 1)
    e('JOB2_SKIP:\ns_waitcnt vmcnt(0)')
    if TL_ON[0]:
        e(f's_lshl_b32 s98, s2, 6\ns_add_u32 s98, s98, {WS_TL}\nv_mov_b32 v255, 0\ns_waitcnt lgkmcnt(0)')
        for i in range(2, 7):
            e(f'v_mov_b32 v254, s{68 + 2 * i}\nbuffer_store_dword v254, v255, s[4:7], s98 offen offset:{4 * i}')
    e('s_branch PREP_DONE\nPREP_LN:')
    e('s_mov_b32 s100, s21')
    tl(p, 0, 's100', WS_TL + 16384)
    if cfg.dele:
        e(f"""s_cmp_lt_u32 s21, 16
        s_cbranch_scc1 LN_A
        s_sub_u32 s20, s21, 16
        s_cmp_ge_u32 s20, 7
        s_cselect_b32 s22, {7 * 32 - 3}, 0
        s_lshl_b32 s20, s20, 5
        s_sub_u32 s20, s20, s22
        s_cmp_eq_u32 s21, 30
        s_cselect_b32 s20, 6, s20
        s_cmp_eq_u32 s21, 31
        s_cselect_b32 s20, 102, s20
        s_mul_i32 s10, s20, 4682
        s_lshr_b32 s10, s10, 16
        s_mul_i32 s21, s10, 14
        s_sub_u32 s20, s20, s21
        s_lshr_b32 s11, s20, 1
        s_and_b32 s33, s20, 1
        s_lshl_b32 s89, s10, 8
        s_lshl_b32 s20, s20, 2
        s_add_u32 s89, s89, s20
        s_add_u32 s89, s89, {C_MAT}
        s_mov_b32 s90, {OOB}
        s_branch JOB2
        LN_A:""")
    e(claim)
    if cfg.sb:
        e("""s_cmp_ge_u32 s21, 16
        s_cbranch_scc1 LN_A
        s_mov_b32 s10, s21""")
        prep.qk_build(p, 's[40:43]', 's[44:47]')
        e(f"""buffer_load_dword v253, v252, s[84:87], 0 offen sc1
        s_lshl_b32 s89, s10, 8
        s_add_u32 s89, s89, {C_MAT}
        s_waitcnt vmcnt(0) lgkmcnt(0)
        s_barrier""")
        done_flag(p, 's89', 2 * prep.NBUILD, 2)
        e("""s_branch PREP_DONE
        LN_A:
        s_sub_u32 s21, s21, 16""")
    e(f"""s_lshl_b32 s89, s21, 2
    s_add_u32 s89, s89, {C_LN}
    s_lshl_b32 s10, s21, 2
    s_add_u32 s10, s10, s9
    s_cmp_ge_u32 s21, 16
    s_cselect_b32 s90, 0, 8
    s_cselect_b32 s10, 0, s10
    s_cbranch_scc1 LN_END
    LN_LOOP:""")
    mk = f"""
    v_and_b32 v250, 63, v0
    v_lshlrev_b32 v250, 4, v250
    v_mov_b32 v244, -1
    v_mov_b32 v245, -1
    v_mov_b32 v246, -1
    v_mov_b32 v247, -1
    s_lshl_b32 s20, s10, 12
    s_add_u32 s20, s20, {WS_MEMA}
    """ + '\n'.join(f'buffer_store_dwordx4 v[244:247], v250, s[4:7], s20 offen offset:{1024 * i} sc1' for i in range(4))
    prep.ln_job(p, 'sc1', ([], mk))
    e('LN_END:\nbuffer_load_dword v253, v252, s[84:87], 0 offen sc1\ns_waitcnt vmcnt(0)\ns_barrier')
    done_flag(p, 's89', 's90')
    e('s_cmp_ge_u32 s10, 64\ns_cbranch_scc1 F_CONT')
    e(f"""PREP_DONE:
    v_mov_b32 v4, 0
    s_cmp_lg_u32 s9, 0
    s_cbranch_scc1 EL_WAIT
    v_readfirstlane_b32 s20, v249
    s_and_b32 s20, s20, s93
    s_mov_b32 s21, -1
    s_cbranch_scc0 EL_PUB
    s_lshl_b32 s20, s88, 2
    s_add_u32 s20, s20, 192
    v_mov_b32 v1, 1
    v_mov_b32 v2, s20
    s_mov_b64 exec, 1
    buffer_atomic_add v1, v2, s[84:87], 0 offen sc0
    s_waitcnt vmcnt(0)
    s_mov_b64 exec, -1
    v_readfirstlane_b32 s94, v1
    v_and_b32 v1, 15, v0
    v_lshlrev_b32 v1, 2, v1
    s_mov_b32 s22, 200000
    EL_SUM:
    buffer_load_dword v3, v1, s[84:87], 0 offen offset:160 sc1
    s_waitcnt vmcnt(0)
    s_mov_b32 s23, 0""")
    for i in range(16):
        e(f'v_readlane_b32 s{24 + i}, v3, {i}')
    for i in range(8):
        e(f's_bcnt1_i32_b32 s20, s{24 + i}\ns_add_u32 s23, s23, s20\ns_add_u32 s23, s23, s{32 + i}')
    e(f"""s_sub_u32 s22, s22, 1
    s_cmp_gt_i32 s22, 0
    s_cbranch_scc0 EL_BAD
    s_cmp_lt_u32 s23, 256
    s_cbranch_scc1 EL_SUM
    v_readlane_b32 s95, v3, s88
    s_mov_b32 s21, 0
    s_bcnt0_i32_b32 s20, s95
    s_cmp_lt_u32 s94, s20
    s_cbranch_scc1 EL_BIT
    v_mov_b32 v1, 1
    v_mov_b32 v2, 4
    s_mov_b64 exec, 1
    buffer_atomic_add v1, v2, s[84:87], 0 offen sc0
    s_waitcnt vmcnt(0)
    s_mov_b64 exec, -1
    v_readfirstlane_b32 s22, v1
    s_mov_b32 s21, 256""")
    for i in range(8):
        e(f"""s_bcnt0_i32_b32 s20, s{24 + i}
        s_min_u32 s23, s20, s{32 + i}
        s_sub_u32 s20, s20, s23
        s_add_u32 s94, s23, s22
        s_mov_b32 s95, s{24 + i}
        s_mov_b32 s88, {i}
        s_cmp_lt_u32 s22, s20
        s_cbranch_scc1 EL_BIT
        s_sub_u32 s22, s22, s20""")
    e(f"""EL_BAD:
    s_mov_b32 s21, -2
    s_branch EL_PUB
    EL_BIT:
    s_ff0_i32_b32 s20, s95
    s_bitset1_b32 s95, s20
    s_sub_u32 s94, s94, 1
    s_cbranch_scc0 EL_BIT
    s_and_b32 s20, s20, 31
    s_add_u32 s21, s21, s20
    s_lshl_b32 s20, s88, 16
    s_add_u32 s21, s21, s20
    EL_PUB:
    v_mov_b32 v1, s21
    ds_write_b32 v4, v1
    s_waitcnt lgkmcnt(0)
    EL_WAIT:
    s_barrier
    ds_read_b32 v1, v4
    s_waitcnt lgkmcnt(0)
    v_readfirstlane_b32 s21, v1
    s_cmp_eq_u32 s21, -1
    s_cbranch_scc1 EL_OK
    s_cmp_eq_u32 s21, -2
    s_cbranch_scc1 EXIT
    s_barrier
    s_bfe_u32 {sSLOW}, s21, 0x10008
    s_bfe_u32 s88, s21, 0x30010
    s_and_b32 s21, s21, 31
    s_mov_b32 s93, 0
    v_mov_b32 v248, {OOB}
    s_branch SLOT
    EL_OK:""")
    tl(p, 1, 's2', WS_TL)
    srd(e, 16, 8, 7168)
    e(f's_mov_b32 {sIDX}, s100\ns_waitcnt lgkmcnt(0)')
    e(f"""s_cmp_ge_u32 {sIDX}, 32
    s_cbranch_scc1 WORKER
    s_and_b32 {sH}, {sIDX}, 15""")
    if cfg.diag:
        for i in range(NSTAMP):
            e(f's_mov_b32 s{STAMP0 + 2 * i}, 0')
    e(f"""s_cmp_ge_u32 {sIDX}, 16
    s_cbranch_scc1 ROLE_VO
    s_barrier""")
    wave_dispatch(e, 'QK')
    e(f"""ROLE_VO:
    s_cmp_ge_u32 {sH}, 14
    s_cbranch_scc1 ROLE_EN""")
    e('s_barrier')
    wave_dispatch(e, 'VO')
    e(f"""ROLE_EN:
    v_lshlrev_b32 v1, 7, v0
    s_and_b32 s20, {sH}, 1
    s_mul_i32 s20, s20, {9 * 32768}
    s_add_u32 s20, s20, {WS_MEMR}""")
    for i in range(9):
        e(f'buffer_load_dword v9, v1, s[4:7], s20 offen sc1\ns_add_u32 s20, s20, 32768')
    e('s_waitcnt vmcnt(0)')
    ready_wait(p, 'ln', 15)
    wave_dispatch(e, 'EN')
    e(f"""WORKER:
    s_sub_u32 s8, s8, 32
    s_cmp_ge_u32 s8, 96
    s_cbranch_scc1 ROLE_F
    s_cmp_ge_u32 s8, 48
    s_cselect_b32 s20, 48, 0
    s_sub_u32 s20, s8, s20            ; y
    s_cmp_ge_u32 s20, 42
    s_cbranch_scc1 WK_HI
    s_cmp_ge_u32 s20, 21
    s_cselect_b32 s21, 21, 0
    s_cselect_b32 s10, 7, 0
    s_sub_u32 s20, s20, s21
    s_mul_i32 s11, s20, 37
    s_lshr_b32 s11, s11, 8            ; replica
    s_mul_i32 s21, s11, 7
    s_sub_u32 s20, s20, s21
    s_add_u32 s10, s10, s20           ; head
    s_branch WK_GO
    WK_HI:
    s_cmp_ge_u32 s20, 45
    s_cselect_b32 s10, 15, 14
    s_cselect_b32 s21, 45, 42
    s_sub_u32 s11, s20, s21
    WK_GO:
    s_lshl_b32 s21, s10, 1
    s_cmp_ge_u32 s8, 48
    s_cbranch_scc1 ROLE_T
    s_add_u32 s21, s21, 1""")
    ready_wait(p, 'one', 15)
    tl(p, 5, 's100', WS_TL + 16384)
    workers.yt_worker(p, 0)
    e('EXIT:\ns_endpgm')
    e('ROLE_T:')
    ready_wait(p, 'one')
    workers.yt_worker(p, 1)
    e(f"""ROLE_F:
    s_cmp_ge_u32 s8, 112
    s_cbranch_scc1 F_CONT
    s_sub_u32 s10, s8, 80
    s_lshl_b32 s89, s10, 2
    s_add_u32 s89, s89, {C_LN}
    s_mov_b32 s90, 8
    s_lshl_b32 s10, s10, 2
    s_add_u32 s10, s10, s9
    s_branch LN_LOOP
    F_CONT:""")
    ready_wait(p, 'ln')
    e('s_sub_u32 s10, s8, 96')
    workers.f_worker(p)
    for role, nm in ((0, 'QK'), (1, 'VO'), (2, 'EN')):
        for w in range(4):
            e(f'{nm}{w}:')
            team_wave(p, role, w, cfg)


def build(cfg):
    TL_ON[0] = bool(cfg.tl)
    workers.MALL[0] = cfg.mall
    workers.OSC[0] = ['', 'sc1', 'nt', 'sc0 sc1'][cfg.osc]
    hdr = open('cdna_kernels/%s.s.ref' % NAME).read().split('; Override launch')[0]
    hdr += '; @launch grid=(256,1,1) block=(256,1,1) lds=%d\n' % max(prep.H_LDS, prep.P_LDS, L_END, MAIN_LDS)
    hdr += '.amdgcn_target "amdgcn-amd-amdhsa--gfx950"\n.text\n'
    out = hdr
    p = Prog()
    main_kernel(p, NAME + '_kernel', cfg)
    out += '.globl %s_kernel\n.p2align 8\n.type %s_kernel,@function\n' % (NAME, NAME) + p.text()
    out += prep.KD % (NAME + '_kernel', 512)
    out = out.replace('\n    ', '\n')
    return out


def parse(args):
    cfg = Cfg()
    cfg.xcc = 0
    cfg.tl = 0
    cfg.fb = 0
    cfg.dele = 0
    cfg.exit0 = 0
    cfg.osc = 0
    cfg.mall = 0
    for a in args:
        k, v = a.split('=')
        assert hasattr(cfg, k), k
        setattr(cfg, k, int(v))
    return cfg


if __name__ == '__main__':
    open(sys.argv[1], 'w').write(build(parse(sys.argv[2:])))
```

```python
from asmlib import *
from layout import *

sWS = 's[4:7]'
sIDX, sWAVE, sSTEP = 's8', 's9', 's10'
sH = 's11'
sDBG = 's[12:15]'
sM0D = 's[16:19]'
sJ = 's24'
sMEM, sMEM2 = 's26', 's27'
sP, sPRST = 's28', 's29'
sMEMW, sMEMRST = 's32', 's33'
sT0, sT1, sT2, sT3 = 's34', 's35', 's36', 's37'
sTO = 's38'
sSTEP1 = 's39'
sYX = 's40'
sDA = 's41'
sFLG = 's43'
sTIME = 's[44:45]'
sTIME2 = 's[46:47]'
sV0 = 's[48:49]'
sCHK = 's[50:51]'
sXS, sXS2 = 's52', 's53'
sYXS, sYXS2 = 's64', 's65'
sYQ = ['s64', 's65', 's54', 's55']
sPQ = ['s20', 's21', 's22', 's23']
sRO = ['s56', 's57', 's58', 's59']
sSLOW = 's66'
sCNT = ['s68', 's69', 's70', 's71']
NSTAMP = 12
STAMP0 = 72

L_W = 0
L_SP = 4 * 14336
L_DUMP = L_SP + 4 * 1296
L_YM = 10 * 14336
L_TB = L_YM + 8192
L_END = L_TB + 64
NF2 = 14
OOB = 0x40000000
TIMEOUT = 200000
FLAG_STRIDE = 640
FLAG2_OFF = 4096 + 128
NREP = [4, 8]


class Cfg:
    stamps = 0
    dual = 1
    alone = 0
    diag = 1
    nsteps = 63
    fake = 0
    delay = 0
    vdelay = 0
    flagpos = 1
    pdelay = 0
    f2pos = 2
    nsc = 1
    gap = 14
    pdepth = 7
    pspace = 0
    vdepth = 2
    fz1 = 4
    fz2 = 6
    qtouch = 0
    vah = 4
    ywarm = 4
    sb = 0
    vpw = 0
    gapbar = 1
    qlate = 0
    lead = 4
    wtlb = 1
    gostep = 1
    gostep2 = 6
    qah = 4
    xsall = 1
    rot = 1
    qpace = 2
    chk = 2
    standin = 1
    nowait = 1
    nrep1 = 4
    nrep2 = 4
    qdepth = 5
    qstart = 0
    vstart = 64
    ppace = 0
    prio = 0
    bpos = 9
    vchk = 1
    selfpoll = 1
    nyx = 12
    tlb = 1
    xsb = 1
    pf = 3


def stamp(p, cfg, i):
    if cfg.stamps:
        p.e(f's_memtime s[{STAMP0 + 2 * i}:{STAMP0 + 2 * i + 1}]')


def nops(e, n):
    while n > 0:
        k = min(n, 16)
        e(f's_nop {k - 1}')
        n -= k


class VM:
    def __init__(self, e, cnt='vmcnt'):
        self.e, self.n, self.tag, self.cnt = e, 0, {}, cnt

    def issue(self, text, tag=None):
        self.e(text)
        self.n += 1
        if tag is not None:
            self.tag[tag] = self.n

    def wait(self, tag):
        self.e(f's_waitcnt {self.cnt}({self.n - self.tag[tag]})')


def team_barrier(p, w, vt, arrive=True, wait=True):
    e = p.e
    if arrive:
        e('s_waitcnt vmcnt(0) lgkmcnt(0)\ns_barrier')
    lp, done = p.label('TB'), p.label('TBD')
    e(f's_mov_b32 {sT0}, {WS_CNT + C_TB}')
    if w == 0 and arrive:
        e(f"""v_lshlrev_b32 {vt[0]}, 7, v0
        s_lshl_b32 {sT1}, {sIDX}, 2
        v_add_u32 {vt[0]}, {sT1}, {vt[0]}
        v_mov_b32 {vt[1]}, {OOB}
        v_cmp_gt_u32 vcc, 4, v0
        v_cndmask_b32 {vt[0]}, {vt[1]}, {vt[0]}, vcc
        s_add_u32 {sT1}, {sSLOW}, 1
        v_mov_b32 {vt[1]}, {sT1}
        buffer_store_dword {vt[1]}, {vt[0]}, {sWS}, {sT0} offen sc1""")
    if not wait:
        return
    if w == 0:
        e(f"""v_and_b32 {vt[0]}, 31, v0
        v_lshlrev_b32 {vt[0]}, 2, {vt[0]}
        s_and_b32 {sT1}, {sIDX}, 3
        s_lshl_b32 {sT1}, {sT1}, 7
        s_add_u32 {sT0}, {sT0}, {sT1}
        {lp}:
        buffer_load_dword {vt[2]}, {vt[0]}, {sWS}, {sT0} offen sc1
        s_sub_u32 {sTO}, {sTO}, 1
        s_cmp_gt_i32 {sTO}, 0
        s_cbranch_scc0 {done}
        s_waitcnt vmcnt(0)
        v_cmp_eq_u32 vcc, 0, {vt[2]}
        s_cbranch_vccz {done}
        s_sleep 4
        s_branch {lp}
        {done}:
        v_cmp_lt_u32 vcc, 1, {vt[2]}
        s_or_b32 {sSLOW}, vcc_lo, vcc_hi
        v_mov_b32 {vt[1]}, {sSLOW}
        v_mov_b32 {vt[0]}, {L_TB}
        ds_write_b32 {vt[0]}, {vt[1]}
        s_waitcnt lgkmcnt(0)""")
    e(f"""s_barrier
    v_mov_b32 {vt[0]}, {L_TB}
    ds_read_b32 {vt[1]}, {vt[0]}
    s_waitcnt lgkmcnt(0)
    v_readfirstlane_b32 {sSLOW}, {vt[1]}""")


def epilogue(p, w, cfg, vt):
    e = p.e
    if w == 0:
        tl(p, 3, 's100', WS_TL + 16384)
    if not cfg.diag:
        e('s_endpgm')
        return
    e(f"""s_memtime {sTIME2}
    s_waitcnt lgkmcnt(0) vmcnt(0)
    s_sub_u32 s46, s46, s44
    s_lshl_b32 {sT0}, {sIDX}, 2
    s_add_u32 {sT0}, {sT0}, {w}
    s_lshl_b32 {sT0}, {sT0}, 7
    s_add_u32 {sT0}, {sT0}, {WS_STAMP}
    v_mov_b32 {vt[0]}, 0
    v_mov_b32 {vt[1]}, s46
    buffer_store_dword {vt[1]}, {vt[0]}, {sWS}, {sT0} offen
    v_mov_b32 {vt[1]}, {sTO}
    buffer_store_dword {vt[1]}, {vt[0]}, {sWS}, {sT0} offen offset:4""")
    for i in range(NSTAMP):
        e(f"""v_mov_b32 {vt[1]}, s{STAMP0 + 2 * i}
        buffer_store_dword {vt[1]}, {vt[0]}, {sWS}, {sT0} offen offset:{64 + 4 * i}""")
    for i, c in enumerate(sCNT):
        e(f"""v_mov_b32 {vt[1]}, {c}
        buffer_store_dword {vt[1]}, {vt[0]}, {sWS}, {sT0} offen offset:{40 + 4 * i}""")
    if cfg.stamps:
        e(f's_mov_b32 {sT3}, 0')
        for i in range(24):
            e(f"""s_memrealtime s[44:45]
            s_memtime s[46:47]
            s_waitcnt lgkmcnt(0)
            s_mul_i32 s44, s44, 24
            s_sub_u32 s46, s46, s44""")
            if i == 0:
                e(f's_mov_b32 {sT2}, s46')
            e(f"""s_sub_u32 s46, s46, {sT2}
            s_min_i32 {sT3}, {sT3}, s46
            s_nop {i % 5}""")
        e(f"""s_add_u32 {sT2}, {sT2}, {sT3}
        v_mov_b32 {vt[1]}, {sT2}
        buffer_store_dword {vt[1]}, {vt[0]}, {sWS}, {sT0} offen offset:8""")
    e('s_endpgm')


def flag_store_off(e, dst, vLane, tmp, idx_sgpr, base):
    e(f'''v_mul_u32_u24 {dst}, {FLAG_STRIDE}, {vLane}
    s_lshl_b32 {sT1}, {idx_sgpr}, 2
    s_add_u32 {sT1}, {sT1}, {base}
    v_add_u32 {dst}, {sT1}, {dst}
    v_mov_b32 {tmp}, {OOB}
    v_cmp_gt_u32 vcc, {NREP[1 if base else 0]}, {vLane}
    v_cndmask_b32 {dst}, {tmp}, {dst}, vcc''')


def flag_poll_off(e, dst, vLane, base, last):
    e(f'''s_and_b32 {sT1}, {sIDX}, {NREP[1 if base else 0] - 1}
    s_mul_i32 {sT1}, {sT1}, {FLAG_STRIDE}
    s_add_u32 {sT1}, {sT1}, {base}
    v_min_u32 {dst}, {last}, {vLane}
    v_lshlrev_b32 {dst}, 2, {dst}
    v_add_u32 {dst}, {sT1}, {dst}''')


def engine_wave(p, w, cfg):
    e = p.e
    V = Alloc('v', 0, 64)
    vLane = V.get()
    vt = [V.get() for _ in range(5)]
    vL16, vL128, vFo, vFs, vD, vF = V.get(), V.get(), V.get(), V.get(), V.get(), V.get()
    mreg = V.get(8, 4)
    e(f'''v_and_b32 {vLane}, 63, v0
    v_lshlrev_b32 {vL16}, 4, {vLane}
    v_lshlrev_b32 {vL128}, 7, {vLane}
    s_mov_b32 {sFLG}, {WS_FLAGS}
    s_mov_b32 {sSTEP}, 0
    s_mov_b32 {sTO}, {TIMEOUT}''')
    for c in sCNT:
        e(f's_mov_b32 {c}, 0')
    flag_poll_off(e, vFo, vLane, FLAG2_OFF, NF2 - 1)
    e(f's_mov_b32 {sT2}, {NF2}')
    flag_store_off(e, vFs, vLane, vt[4], sT2, FLAG2_OFF)
    vL4, vOne = V.get(), V.get()
    sG, sCN = 's20', 's21'
    e(f"""v_lshlrev_b32 {vL4}, 2, {vLane}
    v_mov_b32 {vOne}, 1
    s_mov_b32 {sCN}, {WS_CNT}
    s_mov_b32 {sG}, {1000 if cfg.alone else -1}""")
    tail = []

    def gate(need, first):
        GL, GD = p.label('GL'), p.label('GD')
        if not first:
            e(f"""s_cmp_ge_i32 {sG}, 63
            s_cbranch_scc1 {GD}""")
        e(f'{GL}:')
        if not cfg.alone:
            e(f"""buffer_load_dword {vF}, {vL4}, {sWS}, {sCN} offen offset:{C_YX} sc1
            s_waitcnt vmcnt(0)
            v_cmp_gt_u32 vcc, 16, {vF}
            s_ff1_i32_b64 {sG}, vcc
            s_cmp_lt_i32 {sG}, 0
            s_cselect_b32 {sG}, 64, {sG}
            s_sub_u32 {sG}, {sG}, 1""")
        e(f"""s_max_i32 {sT1}, {sG}, 0
        v_mov_b32 {vt[0]}, {sT1}
        buffer_store_dword {vt[0]}, {vFs}, {sWS}, {sFLG} offen {'sc1' if first else ''}""")
        if not first:
            sl, bk = p.label('SL'), p.label('SB')
            e(f"""s_cmp_lg_u32 {sSLOW}, 0
            s_cbranch_scc1 {sl}
            {bk}:""")
            tail.extend([f'{sl}:', f'buffer_store_dword {vt[0]}, {vFs}, {sWS}, {sFLG} offen sc1', f's_branch {bk}'])
        e(f"""s_sub_u32 {sTO}, {sTO}, 1
        s_cmp_gt_i32 {sTO}, 0
        s_cbranch_scc0 {GD}
        s_cmp_lt_i32 {sG}, {need}
        s_cbranch_scc1 {GL}
        {GD}:""")
    if w == 1:
        sk = p.label('SK')
        e(f"""s_cmp_lg_u32 {sH}, 14
        s_cbranch_scc1 {sk}""")
        gate(-1, True)
        e(f'{sk}:')
    team_barrier(p, w, vt)
    if not cfg.alone:
        YL, YD = p.label('YL'), p.label('YD')
        e(f"""v_mov_b32 {vt[0]}, {C_YX}
        s_cmp_eq_u32 {sH}, 14
        s_cselect_b32 {sT2}, 16, {cfg.ywarm}
        {YL}:
        buffer_load_dword {vt[1]}, {vt[0]}, {sWS}, {sCN} offen sc1
        s_sub_u32 {sTO}, {sTO}, 1
        s_cmp_gt_i32 {sTO}, 0
        s_cbranch_scc0 {YD}
        s_waitcnt vmcnt(0)
        v_cmp_gt_u32 vcc, {sT2}, {vt[1]}
        s_cbranch_vccz {YD}
        s_sleep 16
        s_branch {YL}
        {YD}:""")
    if cfg.diag:
        e(f's_memtime {sTIME}')
    for i in range(cfg.pf):
        e(f"""s_mov_b32 {sT1}, {WS_XNB + i * 32768 + w * 8192}
        buffer_load_dword {vD}, {vL128}, {sWS}, {sT1} offen sc1""")
    e(f'''s_sub_u32 {sT2}, 15, {sH}
    s_lshl_b32 {sT2}, {sT2}, 15
    s_add_u32 {sT1}, {sT2}, {WS_MEMR + w * 8192}
    buffer_load_dword {vD}, {vL128}, {sWS}, {sT1} offen sc1
    s_add_u32 {sT1}, {sT2}, {WS_PR + w * 8192}
    buffer_load_dword {vD}, {vL128}, {sWS}, {sT1} offen sc1''')
    e(f'v_mov_b32 {vF}, 0')
    LOOP, END, PL, GO, E1, AR, NX = (p.label(x) for x in ('LOOP', 'END', 'PL', 'GO', 'E1', 'AR', 'NX'))
    nq = 16 * cfg.qtouch
    rest = list(range(nq, 56)) if cfg.qtouch else ([u for u in range(28, 56) if u & 1] + [u for u in range(28) if u & 1])[:cfg.nyx]
    n1 = min(len(rest), (len(rest) + 7 + 1) // 2)
    u1, u0 = rest[:n1], rest[n1:]
    clampn = lambda d, s_: f's_and_b32 {d}, {s_}, 1' if cfg.fake else f's_min_u32 {d}, {s_}, 63'
    e(f'''{LOOP}:
    s_add_u32 {sT3}, {sSTEP}, {cfg.pf}
    {clampn(sT3, sT3)}
    s_mul_i32 {sYXS}, {sT3}, {28 * 16384}
    s_add_u32 {sYXS}, {sYXS}, {WS_YX}
    s_lshl_b32 {sXS}, {sT3}, 15
    s_add_u32 {sXS}, {sXS}, {WS_XNB + w * 8192}
    s_lshl_b32 {sMEM}, {sSTEP}, 13
    s_add_u32 {sMEMW}, {sMEM}, {WS_MEMA + w * 2048}
    s_add_u32 {sMEM}, {sMEM}, {WS_MEMR + w * 2048}
    s_cmp_lg_u32 {sH}, 14
    s_cbranch_scc1 {E1}''')
    nch = 2 if w < 3 else 1
    e(f'{AR}:')
    for i in range(nch):
        e(f'buffer_load_dwordx4 {mreg[4 * i:4 * i + 4]}, {vL16}, {sWS}, {sMEM} offen offset:{1024 * i} sc1')
    e(f'''s_sub_u32 {sTO}, {sTO}, 1
    s_cmp_gt_i32 {sTO}, 0
    s_cbranch_scc0 {END}
    s_waitcnt vmcnt(0)
    v_max3_u32 {vt[0]}, {mreg[0]}, {mreg[1]}, {mreg[2]}
    v_max_u32 {vt[0]}, {vt[0]}, {mreg[3]}''')
    if nch == 2:
        e(f'''v_max3_u32 {vt[0]}, {vt[0]}, {mreg[4]}, {mreg[5]}
        v_max3_u32 {vt[0]}, {vt[0]}, {mreg[6]}, {mreg[7]}''')
    e(f'''v_cmp_eq_u32 vcc, -1, {vt[0]}
    s_cbranch_vccnz {AR}''')
    for i in range(nch):
        e(f'buffer_store_dwordx4 {mreg[4 * i:4 * i + 4]}, {vL16}, {sWS}, {sMEMW} offen offset:{1024 * i} sc1')
    if w == 2:
        gs = p.label('GS')
        e(f"""s_cmp_gt_u32 {sSTEP}, {cfg.gostep2}
        s_cbranch_scc1 {gs}
        v_mov_b32 {vt[1]}, {OOB}
        v_cmp_gt_u32 vcc, 8, {vLane}
        v_cndmask_b32 {vt[1]}, {vt[1]}, {vL128}, vcc
        s_add_u32 {sT1}, {sSTEP}, 1
        v_mov_b32 {vt[2]}, {sT1}
        s_add_u32 {sT1}, {sCN}, {C_GO}
        buffer_store_dword {vt[2]}, {vt[1]}, {sWS}, {sT1} offen sc1
        {gs}:""")
    e(f"""s_cmp_ge_u32 {sSTEP}, {cfg.nsteps - 1}
    s_cbranch_scc1 {END}""")
    if w == 1:
        e(f's_add_u32 {sT2}, {sSTEP}, 1')
        e(f's_min_u32 {sT2}, {sT2}, 63')
        gate(sT2, False)
    odd = [u for u in range(56) if u & 1]
    mine = (odd[16:] + odd[:16] if cfg.qlate else odd)[:cfg.nyx][(3 - w)::4]
    nt = len(mine) + 2 + (1 if w == 0 else 0)
    SP = p.label('SP')
    tail += [f'{E1}:', f's_cmp_ge_u32 {sSTEP}, {cfg.nsteps - cfg.pf}', f's_cbranch_scc1 {END}']
    if w == 0:
        tail += [f's_add_u32 {sDA}, {sMEM}, {(cfg.pf + 2) * 8192}', f'buffer_load_dword {vD}, {vL128}, {sWS}, {sDA} offen sc1']
    tail += [f'buffer_load_dword {vD}, {vL128}, {sWS}, {sXS} offen sc1']
    for u in mine:
        tail += [f's_add_u32 {sDA}, {sYXS}, {u * 8192}', f'buffer_load_dword {vD}, {vL128}, {sWS}, {sDA} offen sc1']
    tail += [f's_add_u32 {sSTEP}, {sSTEP}, 1', f's_sub_u32 {sT2}, {sSTEP}, {cfg.lead - cfg.pf}', f's_max_i32 {sT2}, {sT2}, 0',
             f's_waitcnt vmcnt({nt - 1})', f'v_cmp_gt_u32 vcc, {sT2}, {vF}',
             f'buffer_load_dword {vF}, {vFo}, {sWS}, {sFLG} offen sc1', f's_cbranch_vccz {LOOP}',
             f'{SP}:', f's_sub_u32 {sTO}, {sTO}, 1', f's_cmp_gt_i32 {sTO}, 0', f's_cbranch_scc0 {END}', 's_waitcnt vmcnt(0)',
             f'v_cmp_gt_u32 vcc, {sT2}, {vF}', f's_cbranch_vccz {LOOP}', 's_sleep 4',
             f'buffer_load_dword {vF}, {vFo}, {sWS}, {sFLG} offen sc1', f's_branch {SP}']
    e(f'''{NX}:
    s_add_u32 {sSTEP}, {sSTEP}, 1''')
    if w == 0:
        e(f'''{PL}:
        buffer_load_dword {vF}, {vFo}, {sWS}, {sFLG} offen sc1
        s_sub_u32 {sTO}, {sTO}, 1
        s_cmp_gt_i32 {sTO}, 0
        s_cbranch_scc0 {GO}
        s_waitcnt vmcnt(0)
        v_cmp_gt_u32 vcc, {sSTEP}, {vF}
        s_cbranch_vccnz {PL}
        {GO}:''')
    e(f'''s_barrier
    s_branch {LOOP}
    {END}:''')
    epilogue(p, w, cfg, vt)
    for l in tail:
        e(l)


def team_wave(p, role, w, cfg):
    NREP[0], NREP[1] = cfg.nrep1, cfg.nrep2
    if role == 2:
        return engine_wave(p, w, cfg)
    qk = role == 0
    NT = 7 if qk else 8
    NR = 5 if qk else 6
    AH = cfg.qah if qk else cfg.vah
    fin = not qk and w < 2
    slots = (QK_SLOTS if qk else VO_SLOTS)[w]
    V = Alloc('v', 0, 254)
    A = Alloc('a', 0, 256)
    vLane = V.get()
    vG, vC = V.get(), V.get()
    vt = [V.get() for _ in range(5)]
    vIdx, vL16, vStep, vFo, vFs, vNeg1, vWL = (V.get() for _ in range(7))
    lds_tiles = [4] if qk else ([3, 4, 5] if fin else [4, 5])
    memA = V.get(28, 4)
    stg = V.get(16 * len(lds_tiles), 4)
    assert stg.base == memA.base + 28
    Tacc = V.get(4 * NT, 4)
    wl0 = L_W + (w if qk else [0, 3, 6, 8][w]) * 14336
    lds_rel = {t: i * 14336 for i, t in enumerate(lds_tiles)}
    if qk:
        Did = V.get(8, 4)
        AS = V.get(8, 4)
        xsB = V.get(32, 4)
        Alast = V.get(4, 4)
        Sx = V.get(8, 4)
        Sm = V.get(4, 4)
        Idn = V.get(4, 4)
        vSW, vSW2, vSR, vPo, vL128, vSZ = (V.get() for _ in range(6))
        if w == 3:
            Mx = V.get(4, 4)
        Fp = [Did[i] for i in range(8)]
        toucher = w >= 4 - cfg.qtouch
    else:
        Ym = V.get(8, 4)
        vYW, vFo2 = V.get(), V.get()
        Fp = [memA[20 + i] for i in range(8)]
        if fin:
            YX = V.get(64, 4)
            vMo, vMr = V.get(), V.get()
            Afin = R('v', memA.base, 40)
            BM = stg[16:32]
            Facc = stg[32:36]
            Bfin = [BM[0:8], BM[8:16]] + [YX[8 * i:8 * i + 8] for i in range(8)]
    poller = (qk and w == 0) or (not qk and w >= 2)
    frag = {}
    from prep import NBUILD, built_agpr
    built = qk and cfg.sb and not cfg.alone
    if built:
        A.get(48 * NBUILD, 4)
    for t in range(NT):
        if t in lds_tiles:
            continue
        for k in range(7):
            if built and slots[k] < NBUILD:
                frag[(t, k)] = R('a', built_agpr(t, slots[k]), 8)
            else:
                frag[(t, k)] = A.get(8, 4) if A.left() >= 8 else V.get(8, 4)
    e = p.e

    e(f'''v_and_b32 {vLane}, 63, v0
    v_lshrrev_b32 {vG}, 4, {vLane}
    v_and_b32 {vC}, 15, {vLane}
    v_lshlrev_b32 {vL16}, 4, {vLane}
    v_add_u32 {vWL}, {wl0}, {vL16}
    v_bfe_u32 {vt[0]}, {vC}, 1, 1          ; v(c)
    v_lshrrev_b32 {vt[1]}, 2, {vC}
    v_lshlrev_b32 {vt[1]}, 1, {vt[1]}
    v_and_b32 {vt[2]}, 1, {vC}
    v_add_u32 {vt[1]}, {vt[1]}, {vt[2]}    ; m(c)
    v_mul_u32_u24 {vIdx}, 0xaaaa, {vt[0]}
    v_add_u32 {vIdx}, 0x4444, {vIdx}
    v_mov_b32 {vNeg1}, -1
    s_mov_b32 {sFLG}, {WS_FLAGS}''')
    if qk:
        e(f'''v_lshlrev_b32 {vL128}, 7, {vLane}
        v_lshrrev_b32 {vt[2]}, 2, {vC}
        v_and_b32 {vt[3]}, 1, {vC}
        v_lshlrev_b32 {vt[3]}, 4, {vt[3]}
        v_mov_b32 {vt[4]}, 0x3f80
        v_lshlrev_b32 {vt[3]}, {vt[3]}, {vt[4]}
        v_cmp_eq_u32 vcc, {vt[2]}, {vG}
        v_cndmask_b32 {vt[3]}, 0, {vt[3]}, vcc
        v_cmp_eq_u32 vcc, 0, {vt[0]}
        v_cndmask_b32 {Idn[0]}, 0, {vt[3]}, vcc
        v_cndmask_b32 {Idn[1]}, 0, {vt[3]}, vcc
        v_cndmask_b32 {Idn[2]}, {vt[3]}, 0, vcc
        v_cndmask_b32 {Idn[3]}, {vt[3]}, 0, vcc
        s_mov_b64 {sV0}, vcc
        v_mul_u32_u24 {vt[2]}, 320, {vG}
        v_add_u32 {vt[2]}, {L_SP + w * 1296}, {vt[2]}
        v_and_b32 {vt[3]}, 12, {vC}
        v_add_u32 {vt[3]}, {vt[3]}, {vC}
        v_lshl_add_u32 {vSW}, {vt[3]}, 2, {vt[2]}
        v_lshl_add_u32 {vt[2]}, {vt[1]}, 2, {vt[2]}
        v_add_u32 {vt[2]}, 128, {vt[2]}
        v_lshlrev_b32 {vt[3]}, 2, {vC}
        v_add_u32 {vt[3]}, {L_DUMP}, {vt[3]}
        v_cndmask_b32 {vSW2}, {vt[3]}, {vt[2]}, vcc
        v_lshrrev_b32 {vt[0]}, 5, {vLane}
        v_and_b32 {vt[1]}, 31, {vLane}
        v_mul_u32_u24 {vt[2]}, 160, {vt[0]}
        v_lshl_add_u32 {vt[2]}, {vt[1]}, 3, {vt[2]}
        v_add_u32 {vt[2]}, {L_SP + 2 * w * 160}, {vt[2]}
        v_mov_b32 {vt[3]}, {L_SP + 1280}
        v_cmp_gt_u32 vcc, 20, {vt[1]}
        v_cndmask_b32 {vSR}, {vt[3]}, {vt[2]}, vcc
        v_mov_b32 {vt[3]}, {L_SP + 1288}
        v_cndmask_b32 {vSZ}, {vt[3]}, {vt[2]}, vcc
        v_and_b32 {vt[2]}, 1, {vt[1]}
        v_lshl_add_u32 {vt[2]}, {vt[2]}, 1, {vt[0]}
        v_lshlrev_b32 {vt[2]}, 4, {vt[2]}
        v_bfe_u32 {vt[3]}, {vt[1]}, 3, 1
        v_lshl_add_u32 {vt[3]}, {vt[3]}, 8, {vt[2]}
        v_bfe_u32 {vt[4]}, {vt[1]}, 1, 2
        v_lshl_add_u32 {vt[3]}, {vt[4]}, 2, {vt[3]}
        s_lshl_b32 {sT1}, {sH}, 9
        s_add_u32 {sT1}, {sT1}, {2048 + 64 * w}
        v_add_u32 {vt[3]}, {sT1}, {vt[3]}
        v_bfe_u32 {vt[2]}, {vt[1]}, 1, 1
        v_lshlrev_b32 {vt[2]}, 8, {vt[2]}
        v_lshl_add_u32 {vt[2]}, {vt[0]}, 4, {vt[2]}
        v_and_b32 {vt[4]}, 1, {vt[1]}
        v_lshl_add_u32 {vt[2]}, {vt[4]}, 3, {vt[2]}
        s_lshr_b32 {sT1}, {sH}, 2
        s_lshl_b32 {sT1}, {sT1}, 9
        s_and_b32 {sT2}, {sH}, 1
        s_lshl_b32 {sT2}, {sT2}, 5
        s_add_u32 {sT1}, {sT1}, {sT2}
        s_and_b32 {sT2}, {sH}, 2
        s_lshl_b32 {sT2}, {sT2}, 1
        s_add_u32 {sT1}, {sT1}, {sT2}
        s_add_u32 {sT1}, {sT1}, {64 * w}
        v_add_u32 {vt[2]}, {sT1}, {vt[2]}
        v_mov_b32 {vt[4]}, {OOB}
        v_cndmask_b32 {vt[2]}, {vt[4]}, {vt[2]}, vcc
        v_cmp_gt_u32 vcc, 16, {vt[1]}
        v_cndmask_b32 {vPo}, {vt[2]}, {vt[3]}, vcc''')
        for r in range(4):
            e(f'''s_mov_b32 {sT1}, {WS_PR + r * 16384}
            buffer_store_dword {vNeg1}, {vPo}, {sWS}, {sT1} offen sc1''')
        e(f"""v_mov_b32 {vt[2]}, {L_SP + w * 1296 + 1280}
        v_mov_b32 {vt[3]}, 0xf149f2ca
        ds_write2_b32 {vt[2]}, {vt[3]}, {vt[3]} offset0:0 offset1:1""")
        flag_store_off(e, vFs, vLane, vt[4], sH, 0)
        if w == 1:
            e(f'''v_mov_b32 {vt[4]}, 0
            buffer_store_dword {vt[4]}, {vFs}, {sWS}, {sFLG} offen sc1''')
        for i in range(4):
            e(f'v_mov_b32 {Alast[i]}, 0')
        if poller:
            flag_poll_off(e, vFo, vLane, FLAG2_OFF, NF2)
        e(f'''s_mul_i32 {sYX}, {sH}, {cfg.qtouch * 8192}
        s_add_u32 {sYX}, {sYX}, {WS_YX + (3 - w) * 8192}''')
    else:
        e(f'v_add_u32 {vYW}, {L_YM}, {vL16}')
        if fin:
            e(f'''s_add_u32 {sJ}, {sH}, {14 * w}
            v_lshrrev_b32 {vt[2]}, 3, {vC}
            v_lshlrev_b32 {vt[2]}, 5, {vt[2]}
            v_lshl_add_u32 {vt[2]}, {vG}, 6, {vt[2]}
            v_and_b32 {vt[3]}, 7, {vC}
            v_lshl_add_u32 {vt[2]}, {vt[3]}, 1, {vt[2]}
            s_lshl_b32 {sT1}, {sJ}, 8
            v_add_u32 {vMo}, {sT1}, {vt[2]}
            v_lshlrev_b32 {vt[2]}, 2, {vLane}
            v_add_u32 {vMr}, {sT1}, {vt[2]}
            s_lshl_b32 {sYX}, {sJ}, 14
            s_add_u32 {sYX}, {sYX}, {WS_YX}''')
            for g_ in range(4):
                e(f'''s_add_u32 {sRO[g_]}, {sJ if cfg.rot else 0}, {g_}
                s_and_b32 {sRO[g_]}, {sRO[g_]}, 3
                s_lshl_b32 {sRO[g_]}, {sRO[g_]}, 11''')
            e(f'''v_bfe_u32 {vt[2]}, {vLane}, 2, 1
            v_lshl_add_u32 {vt[2]}, {vG}, 1, {vt[2]}
            v_mul_u32_u24 {vt[2]}, 896, {vt[2]}
            v_bfe_u32 {vt[3]}, {vLane}, 3, 1
            v_lshl_add_u32 {vt[2]}, {vt[3]}, 6, {vt[2]}
            v_and_b32 {vt[3]}, 3, {vLane}
            v_lshl_add_u32 {vt[2]}, {vt[3]}, 2, {vt[2]}
            s_lshr_b32 {sT1}, {sJ}, 2
            s_lshl_b32 {sT1}, {sT1}, 7
            s_and_b32 {sT2}, {sJ}, 3
            s_lshl_b32 {sT2}, {sT2}, 4
            s_add_u32 {sT1}, {sT1}, {sT2}
            buffer_load_dword {vt[3]}, {vt[2]}, {sM0D}, {sT1} offen
            s_waitcnt vmcnt(0)
            s_mov_b32 {sT1}, {WS_MEMR}
            buffer_store_dword {vt[3]}, {vMr}, {sWS}, {sT1} offen sc1''')
            for r in range(1, 3):
                e(f'''s_mov_b32 {sT1}, {WS_MEMR + r * 8192}
                buffer_store_dword {vNeg1}, {vMr}, {sWS}, {sT1} offen sc1''')
            flag_store_off(e, vFs, vLane, vt[4], sH, FLAG2_OFF)
            if w == 0:
                e(f'''v_mov_b32 {vt[4]}, 0
                buffer_store_dword {vt[4]}, {vFs}, {sWS}, {sFLG} offen sc1''')
        if w == (0 if cfg.selfpoll else 2):
            flag_poll_off(e, vFo, vLane, 0, 15)
        if w == cfg.vpw:
            flag_poll_off(e, vFo2, vLane, FLAG2_OFF, NF2)

    def xs_bases(nxt):
        if cfg.xsall:
            return [f's_lshl_b32 {sXS}, {nxt}, 15', f's_add_u32 {sXS}, {sXS}, {WS_XNB + w * 8192}', f's_add_u32 {sXS2}, {sXS}, 4096']
        return [f's_add_u32 {sXS2}, {sXS}, 4096', f's_lshl_b32 {sXS}, {nxt}, 15', f's_add_u32 {sXS}, {sXS}, {WS_XNB + w * 8192}']

    def xs_loads():
        return [f'buffer_load_dwordx4 {xsB[4 * i:4 * i + 4]}, {vL16}, {sWS}, {sXS if i < 4 else sXS2} offen '
                f'offset:{(i & 3) * 1024} sc1' for i in range(8)]

    winA = []
    if qk:
        winA = xs_loads()[(0 if cfg.xsall else 4):]
        if toucher:
            winA += [f'buffer_load_dword {vt[3]}, {vL128}, {sWS}, {sYXS} offen sc1']
    elif fin:
        winA = [f'buffer_load_dwordx4 {YX[4 * i:4 * i + 4]}, {vL16}, {sWS}, {sYQ[i >> 2]} offen '
                 f'offset:{(i & 3) * 1024} sc1' for i in range(16)]
        yx_all = list(winA)

    e(f"""s_mov_b32 {sSTEP}, 0
    s_mov_b32 {sTO}, {TIMEOUT}""")
    for c in sCNT:
        e(f's_mov_b32 {c}, 0')
    if qk:
        for l in ([] if cfg.xsall else xs_bases(sSTEP)[1:] + xs_loads()[:4]):
            e(l)
        if cfg.nowait:
            e(f'v_mov_b32 {vt[0]}, -1\nv_mov_b32 {vt[1]}, -1')
            assert vt[1].base == vt[0].base + 1
            for i in range(4):
                e(f'ds_write2_b32 {vSZ}, {vNeg1}, {vNeg1} offset0:0 offset1:1' if i == 0 else
                  f'v_add_u32 {vt[2]}, {1296 * i}, {vSZ}\nds_write2_b32 {vt[2]}, {vNeg1}, {vNeg1} offset0:0 offset1:1')
    team_barrier(p, w, vt, True, False)
    if not cfg.alone:
        RL, RD = p.label('RL'), p.label('RD')
        e(f"""v_min_u32 {vt[0]}, {24 if qk else 27}, {vLane}
        v_lshlrev_b32 {vt[0]}, 14, {vt[0]}
        s_mul_i32 {sT0}, {sH}, {(28 if qk else 32) * 14336}
        s_add_u32 {sT0}, {sT0}, {WS_WQK if qk else WS_WVO}""")
        if cfg.wtlb:
            e(f'buffer_load_dword {vt[1]}, {vt[0]}, {sWS}, {sT0} offen sc1\ns_waitcnt vmcnt(0)')
        e(f"""v_min_u32 {vt[0]}, 13, {vC}
        v_lshlrev_b32 {vt[0]}, 2, {vt[0]}""")
        if qk:
            e(f"""s_lshl_b32 {sT1}, {sH}, 8
            s_add_u32 {sT1}, {sT1}, {C_MAT}
            v_add_u32 {vt[0]}, {sT1}, {vt[0]}""")
        else:
            e(f"""v_lshl_add_u32 {vt[0]}, {vG}, 8, {vt[0]}
            v_add_u32 {vt[0]}, {C_MAT + 128 + w * 1024}, {vt[0]}""")
        e(f"""s_mov_b32 {sT0}, {WS_CNT}
        {RL}:
        buffer_load_dword {vt[1]}, {vt[0]}, {sWS}, {sT0} offen sc1
        s_sub_u32 {sTO}, {sTO}, 1
        s_cmp_gt_i32 {sTO}, 0
        s_cbranch_scc0 {RD}
        s_waitcnt vmcnt(0)
        v_cmp_ne_u32 vcc, 1, {vt[1]}
        s_cbranch_vccz {RD}
        s_sleep 4
        s_branch {RL}
        {RD}:""")
        if w == 0:
            tl(p, 5, 's100', WS_TL + 16384)
    e(f's_mul_i32 {sT0}, {sH}, {28 * 14336 if qk else 32 * 14336}')
    n_out = 0
    for t in range(NT):
        for k in range(7):
            if qk:
                st_, pos = QK_TILES[w][t]
                T = 2 * set_quad(w, st_, pos & 1, pos >> 1) + (pos >> 1)
                off = WS_WQK + (T * 7 + slots[k]) * 2048
            else:
                off = WS_WVO + (((4 * w + (t & 3)) * 2 + (t >> 2)) * 7 + slots[k]) * 2048
            if built and t not in lds_tiles and slots[k] < NBUILD:
                continue
            e(f's_add_u32 {sT1}, {sT0}, {off}')
            if t in lds_tiles:
                e(f'''s_mov_b32 m0, {wl0 + lds_rel[t] + k * 2048}
                buffer_load_dwordx4 {vL16}, {sWS}, {sT1} offen sc1 lds
                buffer_load_dwordx4 {vL16}, {sWS}, {sT1} offen offset:1024 sc1 lds''')
            else:
                f = frag[(t, k)]
                e(f'''buffer_load_dwordx4 {f[0:4]}, {vL16}, {sWS}, {sT1} offen sc1
                buffer_load_dwordx4 {f[4:8]}, {vL16}, {sWS}, {sT1} offen offset:1024 sc1''')
            n_out += 2
            if n_out >= 60:
                e('s_waitcnt vmcnt(40)')
                n_out = 40
    team_barrier(p, w, vt, False, True)
    e('s_waitcnt vmcnt(0)')
    if w == 0:
        tl(p, 1, 's100', WS_TL + 16384)
        tl(p, 2, 's100', WS_TL + 16384)
    if cfg.diag:
        e(f's_memtime {sTIME}')

    LOOP, END = p.label('LOOP'), p.label('END')
    FAIL, JOIN = p.label('FAIL'), p.label('JOIN')
    tail = []
    vm = VM(e)
    lg = VM(e, 'lgkmcnt')

    def slow(texts):
        if cfg.dual:
            sl, bk = p.label('SL'), p.label('SB')
            e(f's_cmp_lg_u32 {sSLOW}, 0')
            e(f's_cbranch_scc1 {sl}')
            e(f'{bk}:')
            tail.extend([f'{sl}:'] + [t + ' sc1' for t in texts] + [f's_branch {bk}'])

    def st2(text):
        vm.issue(text)
        slow([text])

    nside = [0]

    def side(text):
        if 'store' in text:
            st2(text)
        else:
            nside[0] += 1
            vm.issue(text, ('side', nside[0]))

    def chunk_txt(k, fl):
        off = slots[k] * 1024
        so = sMEM if off < 4096 else sMEM2
        return f'buffer_load_dwordx4 {memA[4 * k:4 * k + 4]}, {vL16}, {sWS}, {so} offen offset:{off & 4095} {fl}'

    def chunk_load(k):
        vm.issue(chunk_txt(k, '' if k >= cfg.nsc else 'sc1'), ('c', k))

    def stg_read(k):
        o = []
        for i, t in enumerate(lds_tiles):
            r = stg[16 * i + 8 * (k & 1):16 * i + 8 * (k & 1) + 8]
            o.append(f'ds_read_b128 {r[0:4]}, {vWL} offset:{lds_rel[t] + k * 2048}')
            o.append(f'ds_read_b128 {r[4:8]}, {vWL} offset:{lds_rel[t] + k * 2048 + 1024}')
        return o

    def wfrag(t, k):
        if t in lds_tiles:
            i = lds_tiles.index(t)
            return stg[16 * i + 8 * (k & 1):16 * i + 8 * (k & 1) + 8]
        return frag[(t, k)]

    def smf_txt(t, k):
        return f'v_smfmac_f32_16x16x64_bf16 {Tacc[4 * t:4 * t + 4]}, {memA[4 * k:4 * k + 4]}, {wfrag(t, k)}, {vIdx}'

    def smf(t, k):
        e(smf_txt(t, k))

    def slot_calc():
        e(f"""s_lshl_b32 {sMEM}, {sSTEP}, 13
        s_add_u32 {sMEM}, {sMEM}, {WS_MEMR}
        s_add_u32 {sMEM2}, {sMEM}, 4096""")

    clampn = lambda d, s_: f's_and_b32 {d}, {s_}, 1' if cfg.fake else f's_min_u32 {d}, {s_}, 63'
    sal = [f's_add_u32 {sSTEP1}, {sSTEP}, 1', f's_mov_b64 {sCHK}, -1', f'v_mov_b32 {vStep}, {sSTEP1}',
           f's_and_b32 {sT0}, {sSTEP}, 3', f's_lshl_b32 {sP}, {sT0}, 14']
    if qk:
        sal += [f's_add_u32 {sP}, {sP}, {WS_PR}', f's_xor_b32 {sPRST}, {sP}, {2 << 14}', clampn(sT3, sSTEP if cfg.xsall else sSTEP1)] + xs_bases(sT3)
        if toucher:
            sal += [f's_add_u32 {sT3}, {sSTEP}, {cfg.pf}', clampn(sT3, sT3), f's_mul_i32 {sYXS}, {sT3}, {28 * 16384}',
                    f's_add_u32 {sYXS}, {sYXS}, {sYX}']
    elif fin:
        sal += [f's_add_u32 {sP}, {sP}, {WS_PR}',
                f's_add_u32 {sMEMW}, {sMEM}, 8192', f's_add_u32 {sMEMRST}, {sMEM}, 16384',
                clampn(sT3, sSTEP), f's_mul_i32 {sT3}, {sT3}, {28 * 16384}', f's_add_u32 {sT3}, {sT3}, {sYX}']
        sal += [f's_lshl1_add_u32 {sYQ[i]}, {sRO[i]}, {sT3}' for i in range(4)]
        sal += [f's_add_u32 {sPQ[i]}, {sP}, {sRO[i]}' for i in range(4)]
    assert (WS_PR & (3 << 14)) == 0
    zero_all = [f'v_mov_b32 {Tacc[i]}, 0' for i in range(4 * NT)]
    if qk:
        zero_all += [f'v_mov_b32 {Sx[i]}, 0' for i in range(8)]
    for l in zero_all:
        e(l)
    zq = list(zero_all)

    def fz(n):
        for _ in range(n):
            if zq:
                e(zq.pop(0))

    def poll_loop(nd, tgt=None, between=None, vo=None):
        PL, GO = p.label('PL'), p.label('GO')
        GL = GO
        if tgt:
            GO = tgt
        pl = lambda i: f'buffer_load_dword {Fp[i]}, {vo or vFo}, {sWS}, {sFLG} offen sc1'
        for i in range(nd):
            e(pl(i))
            if between:
                between(i)
            elif i < nd - 1:
                nops(e, cfg.pspace * cfg.pdepth // nd)
        e(f'{PL}:')
        for i in range(nd):
            e(f"""s_waitcnt vmcnt({nd - 1})
            v_cmp_gt_u32 vcc, {sSTEP1}, {Fp[i]}
            {pl(i)}
            s_cbranch_vccz {GO}""")
        e(f"""s_sub_u32 {sTO}, {sTO}, 1
        s_cmp_gt_i32 {sTO}, 0
        s_cbranch_scc1 {PL}
        {GL}:""")

    def loop_end(polls):
        e(f"""s_cmp_ge_u32 {sSTEP}, {cfg.nsteps}
        s_cbranch_scc1 {END}""")
        if polls:
            polls()
        e(f's_branch {LOOP}')

    slot_calc()
    if cfg.prio and fin and w == 0:
        e('s_setprio 2')
    e(f'{LOOP}:')
    if not fin:
        stamp(p, cfg, 7)
    e('s_barrier')
    stamp(p, cfg, 0)
    nops(e, cfg.delay if qk else cfg.vdelay)
    fill = stg_read(0) + stg_read(1) + sal
    per = (len(fill) + AH - 2) // (AH - 1)
    for k in range(AH):
        chunk_load(k)
        if k < AH - 1:
            part = fill[k * per:(k + 1) * per]
            for l in part:
                if l.startswith('ds_'):
                    lg.issue(l)
                else:
                    e(l)
            if cfg.gapbar:
                e('s_barrier')
            else:
                nops(e, cfg.gap - len(part))
    for i, t in enumerate(lds_tiles):
        lg.tag[('s', 0, t)] = lg.n - 4 * len(lds_tiles) + 2 * (i + 1)
        lg.tag[('s', 1, t)] = lg.n - 2 * len(lds_tiles) + 2 * (i + 1)
    stamp(p, cfg, 1)

    def retry(k):
        RT, BK = p.label('RT'), p.label('BK')
        nre = 2 if chk == 2 else AH + 1
        t = [f'{RT}:', f's_add_u32 {sCNT[3]}, {sCNT[3]}, 1'] + [chunk_txt(kk, 'sc1') for kk in range(k, min(7, k + nre))]
        t += [f's_sub_u32 {sTO}, {sTO}, 1', f's_cmp_gt_i32 {sTO}, 0', f's_cbranch_scc0 {END}']
        if k == 0:
            t += zero_all[:12]
        t += ['s_waitcnt vmcnt(0)', f'v_cmp_eq_u32 vcc, -1, {memA[4 * k]}', f's_cbranch_vccnz {RT}']
        if k == 0:
            t += [smf_txt(0, 0), smf_txt(1, 0), smf_txt(2, 0)]
        t += [f's_branch {BK}']
        tail.extend(t)
        e(f's_cbranch_vccnz {RT}')
        e(f'{BK}:')

    def cv_txt(t, i):
        a = Tacc[4 * t:4 * t + 4]
        if t == 6:
            dst = Alast[2 * (QK_TILES[w][6][1] & 1) + i]
        else:
            dst = Tacc[4 * (t & ~1) + 2 * (t & 1) + i]
        return f'v_cvt_pk_bf16_f32 {dst}, {a[2 * i]}, {a[2 * i + 1]}'
    late_v = [cv_txt(0, 0), cv_txt(0, 1), cv_txt(1, 0)] if qk else []
    chk = cfg.chk if qk else cfg.vchk

    vm.wait(('c', 0))
    stamp(p, cfg, 9)
    nslot = 0
    nxt_c = AH
    pace = cfg.qpace if qk else 2
    early = 1 if (qk and cfg.xsall) else 0
    for k in range(7):
        sr = stg_read(k + 1) if 1 <= k <= 5 else []
        for t in range(NR):
            smf(t, k)
            used = 0
            if k == 0 and t == 2 and chk:
                retry(0)
            if t == NR - 1 and k < 6 and chk == 2:
                retry(k + 1)
                used = 1
            if qk:
                if t == 0 and k + AH < 7:
                    chunk_load(k + AH)
                    used = 1
                elif k + AH + early >= 7 and nslot % pace == 0 and winA and not used:
                    side(winA.pop(0))
                    used = 1
                if k + AH + early >= 7:
                    nslot += 1
            else:
                if nxt_c < 7:
                    if t % 3 == 0:
                        chunk_load(nxt_c)
                        nxt_c += 1
                        used = 1
                elif winA and nslot % 2 == 0 and not used:
                    side(winA.pop(0))
                    used = 1
                nslot += 1
            if sr and (not used or (len(sr) > NR - 1 - t)):
                lg.issue(sr.pop(0), ('s', k + 1, lds_tiles[len(lds_tiles) - 1 - len(sr) // 2]))
            if t + 1 in lds_tiles:
                lg.wait(('s', k, t + 1))
            if k == 0 and t == 0 and chk:
                e(f'v_cmp_eq_u32 vcc, -1, {memA[0]}')
            if chk == 2:
                if t == NR - 3 and k < 6:
                    vm.wait(('c', k + 1))
                    e(f'v_cmp_eq_u32 vcc, -1, {memA[4 * k + 4]}')
            elif t == NR - 1 and k < 6:
                vm.wait(('c', k + 1))
            if qk and k == 6 and t >= 2:
                e(late_v[t - 2])
        assert not sr
    tail += [f'{FAIL}:', f's_add_u32 {sCNT[0]}, {sCNT[0]}, 1', f's_mov_b64 {sCHK}, 0', f'{FAIL}b:']
    tail += [chunk_txt(k, 'sc1') for k in range(7)]
    tail += [f's_sub_u32 {sTO}, {sTO}, 1', f's_cmp_gt_i32 {sTO}, 0', f's_cbranch_scc0 {END}']
    tail += zero_all[:4 * NT] + stg_read(0) + stg_read(1) + ['s_waitcnt vmcnt(0)']
    tail += [f'v_max3_u32 {vt[0]}, {memA[0]}, {memA[1]}, {memA[2]}']
    for i in range(3, 27, 2):
        tail += [f'v_max3_u32 {vt[0]}, {vt[0]}, {memA[i]}, {memA[i + 1]}']
    tail += [f'v_max_u32 {vt[0]}, {vt[0]}, {memA[27]}', f'v_cmp_eq_u32 vcc, -1, {vt[0]}', f's_cbranch_vccnz {FAIL}b']
    nl = 2 * len(lds_tiles)
    for k in range(7):
        tail += [f's_waitcnt lgkmcnt({nl if k < 6 else 0})'] + [smf_txt(t, k) for t in range(NR)]
        if k < 5:
            tail += stg_read(k + 2)
    tail += late_v + ['s_nop 7', f's_branch {JOIN}']
    e(f'{JOIN}:')
    stamp(p, cfg, 2)

    def check_branch():
        e(f's_and_b64 vcc, vcc, {sCHK}')
        e(f's_cbranch_scc1 {FAIL}')

    if qk:
        assert not winA

        def cv(t, i):
            e(cv_txt(t, i))

        def ident(pair, hi):
            src = Alast if pair == 3 else Tacc[8 * pair:8 * pair + 4]
            e(f'v_mfma_f32_16x16x32_bf16 {Did[4 * hi:4 * hi + 4]}, {src}, {Idn}, 0')

        def cv2(st, hi, i):
            d = Did[4 * hi:4 * hi + 4]
            e(f'v_cvt_pk_bf16_f32 {AS[4 * st + 2 * hi + i]}, {d[2 * i]}, {d[2 * i + 1]}')

        def sx(st, kt):
            e(f'v_smfmac_f32_16x16x64_bf16 {Sx[4 * kt:4 * kt + 4]}, {AS[4 * st:4 * st + 4]}, '
              f'{xsB[16 * st + 8 * kt:16 * st + 8 * kt + 8]}, {vIdx}')

        def mch(c_):
            k_ = slots.index(c_)
            return memA[4 * k_:4 * k_ + 4]

        def sm(st):
            b = Mx if (w == 3 and st == 1) else mch(w + 4 * st)
            e(f'v_mfma_f32_16x16x32_bf16 {Sm}, {AS[4 * st:4 * st + 4]}, {b}, {0 if st == 0 else Sm}')

        def flag(pos):
            if cfg.flagpos == pos and w == 1:
                vm.issue(f'buffer_store_dword {vStep}, {vFs}, {sWS}, {sFLG} offen')
                stamp(p, cfg, 8)

        if w == 3:
            zq[0:0] = [f'v_cndmask_b32 {Mx[0]}, {mch(5)[0]}, {mch(4)[0]}, {sV0}',
                       f'v_cndmask_b32 {Mx[1]}, {mch(5)[1]}, {mch(4)[1]}, {sV0}',
                       f'v_mov_b32 {Mx[2]}, {mch(6)[2]}', f'v_mov_b32 {Mx[3]}, {mch(6)[3]}']
        fh = QK_TILES[w][4][1] >> 1
        smf(5, 0); cv(1, 1)
        smf(5, 1); cv(2, 0)
        ident(0, 0); cv(2, 1); cv(3, 0)
        smf(5, 2); cv(3, 1)
        smf(5, 3); cv(4, 0)
        ident(1, 1); cv2(0, 0, 0); cv2(0, 0, 1)
        smf(5, 4); e(f'v_cmp_u_f32 vcc, {Did[0]}, {Did[1]}')
        smf(5, 5); cv(4, 1)
        smf(5, 6); cv2(0, 1, 0)
        smf(6, 0); cv2(0, 1, 1)
        smf(6, 1); check_branch()
        smf(6, 2); cv(5, 0)
        smf(6, 3); cv(5, 1)
        smf(6, 4); fz(1)
        smf(6, 5); fz(1)
        smf(6, 6); fz(1)
        ident(2, fh); fz(2)
        sm(0); cv(6, 0); cv(6, 1)
        fz(1); cv2(1, fh, 0)
        nx = 8 if cfg.xsall else 4
        ident(3, 1 - fh)
        if cfg.xsall:
            vm.wait(('side', 4))
        cv2(1, fh, 1); fz(1)
        sx(0, 0); fz(1)
        sx(0, 1)
        cv2(1, 1 - fh, 0); cv2(1, 1 - fh, 1)
        fz(1)
        vm.wait(('side', nx - 2))
        sx(1, 0)
        vm.wait(('side', nx))
        sx(1, 1)
        sm(1)
        flag(-3)
        stamp(p, cfg, 3)
        e(f"""v_add_f32 {Sx[0]}, {Sx[0]}, {Sx[2]}
        v_add_f32 {Sx[1]}, {Sx[1]}, {Sx[3]}
        ds_write2_b32 {vSW}, {Sx[0]}, {Sx[1]} offset0:0 offset1:40
        v_add_f32 {Sx[4]}, {Sx[4]}, {Sx[6]}
        v_add_f32 {Sx[5]}, {Sx[5]}, {Sx[7]}
        ds_write2_b32 {vSW}, {Sx[4]}, {Sx[5]} offset0:4 offset1:44
        v_add_f32_dpp {Sm[0]}, {Sm[2]}, {Sm[0]} quad_perm:[2,3,0,1] row_mask:0xf bank_mask:0xf
        v_add_f32_dpp {Sm[1]}, {Sm[3]}, {Sm[1]} quad_perm:[2,3,0,1] row_mask:0xf bank_mask:0xf
        ds_write2_b32 {vSW2}, {Sm[0]}, {Sm[1]} offset0:0 offset1:40""")
        flag(-2)
        fz(cfg.fz1 - 1)
        flag(-1)
        fz(1)
        assert len(zq) >= 8
        if not cfg.nowait:
            e('s_waitcnt lgkmcnt(0)')
        e('s_barrier')
        stamp(p, cfg, 4)
        dpps = ['quad_perm:[1,0,3,2]', 'quad_perm:[2,3,0,1]', 'row_half_mirror', 'row_mirror']
        x, y = vt[0], vt[1]
        r = R('v', memA.base, 12)
        warm = lambda n: [e(zq.pop(0)) if len(zq) > 8 else e(f'v_mov_b32 {vt[4]}, 0') for _ in range(n)]
        rd_txt = [f'ds_read_b64 {r[2 * i:2 * i + 2]}, {vSR} offset:{1296 * i}' for i in range(4)]
        for i in range(4):
            e(rd_txt[i])
            if i % 2 == 0:
                warm(1)
        warm(1)
        flag(0)
        warm(cfg.fz2 - 3)
        flag(1)
        warm(1)
        add_txt = f"""s_waitcnt lgkmcnt(2)
        v_add_f32 {r[0]}, {r[0]}, {r[2]}
        v_add_f32 {r[1]}, {r[1]}, {r[3]}
        s_waitcnt lgkmcnt(0)
        v_add_f32 {r[4]}, {r[4]}, {r[6]}
        v_add_f32 {r[5]}, {r[5]}, {r[7]}
        v_add_f32 {r[0]}, {r[0]}, {r[4]}
        v_add_f32 {r[1]}, {r[1]}, {r[5]}"""
        e(add_txt)

        def allred(op, em, main):
            for i, d in enumerate(dpps):
                pos_ = (2 if op == 'max' else 8) + i
                if main and cfg.flagpos == pos_ and w == 1:
                    flag(pos_)
                elif main:
                    fz(2)
                em(f'v_{op}_f32_dpp {x}, {x}, {x} {d} row_mask:0xf bank_mask:0xf')
            em(f'v_mov_b32 {y}, {x}')
            if op == 'max' and main:
                flag(6)
            em(f'v_permlane16_swap_b32 {x}, {y}')
            em(f'v_{op}_f32 {x}, {x}, {y}')

        pst_txt = f'buffer_store_dword {y}, {vPo}, {sWS}, {sP} offen'

        def softmax_true(em, main):
            em(f'v_max_f32 {x}, {r[0]}, {r[1]}')
            allred('max', em, main)
            for l in (f'v_sub_f32 {r[8]}, {r[0]}, {x}', f'v_sub_f32 {r[9]}, {r[1]}, {x}',
                      f'v_exp_f32 {r[8]}, {r[8]}', f'v_exp_f32 {r[9]}, {r[9]}'):
                em(l)
            if main:
                flag(7)
            em(f'v_add_f32 {x}, {r[8]}, {r[9]}')
            allred('add', em, main)
            for l in (f'v_rcp_f32 {r[10]}, {x}', f'v_subrev_u32 {x}, 0x21800000, {x}', f'v_mul_f32 {r[8]}, {r[8]}, {r[10]}',
                      f'v_mul_f32 {r[9]}, {r[9]}, {r[10]}', f'v_cvt_pk_bf16_f32 {y}, {r[8]}, {r[9]}'):
                em(l)
        if cfg.standin:
            e(f"""v_exp_f32 {r[8]}, {r[0]}
            v_exp_f32 {r[9]}, {r[1]}""")
            flag(7)
            e(f'v_add_f32 {x}, {r[8]}, {r[9]}')
            allred('add', e, True)
            e(f"""v_rcp_f32 {r[10]}, {x}
            v_subrev_u32 {x}, 0x21800000, {x}
            v_mul_f32 {r[8]}, {r[8]}, {r[10]}
            v_mul_f32 {r[9]}, {r[9]}, {r[10]}
            v_cvt_pk_bf16_f32 {y}, {r[8]}, {r[9]}""")
        else:
            softmax_true(e, True)
        if cfg.standin or cfg.nowait:
            FB, FD = p.label('FB'), p.label('FD')
            e(f'v_cmpx_gt_u32 vcc, 0x50000000, {x}')
            vm.issue(pst_txt)
            e(f"""s_mov_b64 exec, -1
            s_cmp_lg_u64 vcc, -1
            s_cbranch_scc1 {FB}
            {FD}:""")
            tail += [f'{FB}:', f's_add_u32 {sCNT[2]}, {sCNT[2]}, 1']
            if cfg.nowait:
                tail += rd_txt + [f's_sub_u32 {sTO}, {sTO}, 1', f's_cmp_gt_i32 {sTO}, 0', f's_cbranch_scc0 {FD}',
                                  's_waitcnt lgkmcnt(0)', f'v_max3_u32 {x}, {r[0]}, {r[1]}, {r[2]}',
                                  f'v_max3_u32 {x}, {x}, {r[3]}, {r[4]}', f'v_max3_u32 {x}, {x}, {r[5]}, {r[6]}',
                                  f'v_max_u32 {x}, {x}, {r[7]}', f'v_cmp_eq_u32 vcc, -1, {x}', f's_cbranch_vccnz {FB}']
                tail += [l.strip() for l in add_txt.split('\n')]
            softmax_true(tail.append, False)
            tail += [pst_txt, f's_branch {FD}']
        else:
            vm.issue(pst_txt)
        stamp(p, cfg, 5)
        slow([f'buffer_store_dword {y}, {vPo}, {sWS}, {sP} offen'] +
             ([f'buffer_store_dword {vStep}, {vFs}, {sWS}, {sFLG} offen'] if w == 1 else []))
        e('s_barrier')
        st2(f'buffer_store_dword {vNeg1}, {vPo}, {sWS}, {sPRST} offen')
        if cfg.qlate and w == 2:
            e(f"""s_add_u32 {sT3}, {sSTEP}, 2
            {clampn(sT3, sT3)}
            s_mul_i32 {sT3}, {sT3}, {28 * 16384}
            s_lshl_b32 {sT2}, {sH}, 14
            s_add_u32 {sT3}, {sT3}, {sT2}
            s_add_u32 {sT3}, {sT3}, {WS_YX + 8192}
            buffer_load_dword {vt[3]}, {vL128}, {sWS}, {sT3} offen sc1""")
        if cfg.tlb and w == 3:
            e(f"""v_mov_b32 {vt[2]}, {2 * 8192 + 7680}
            buffer_load_dword {vt[3]}, {vt[2]}, {sWS}, {sMEM} offen sc1
            v_mov_b32 {vt[2]}, {32768 if cfg.xsall else 65536}
            buffer_load_dword {vt[3]}, {vt[2]}, {sWS}, {sXS2} offen sc1""")
        for l in ([] if cfg.xsall else xs_loads()[:4]):
            e(l)
        if cfg.nowait:
            e(f'v_mov_b32 {r[0]}, -1\nv_mov_b32 {r[1]}, -1')
            for i in range(4):
                e(f'ds_write_b64 {vSZ}, {r[0:2]} offset:{1296 * i}')
            e('s_waitcnt lgkmcnt(0)')
        fz(40)
        if TL_ON[0] and w == 2:
            e(f"""s_memtime s[96:97]
            s_lshl_b32 s98, {sH}, 8
            s_lshl_b32 s99, {sSTEP}, 2
            s_add_u32 s98, s98, s99
            s_add_u32 s98, s98, {WS_TL + 0x8000}
            s_waitcnt lgkmcnt(0)
            v_mov_b32 v254, s96
            v_mov_b32 v255, 0
            buffer_store_dword v254, v255, {sWS}, s98 offen""")
        e(f's_add_u32 {sSTEP}, {sSTEP}, 1')
        slot_calc()

        def qpoll():
            e('s_waitcnt vmcnt(0)')
            stamp(p, cfg, 6)
            nops(e, cfg.qstart)
            poll_loop(cfg.qdepth, LOOP)
        loop_end(qpoll if poller else None)
    else:
        def pk(t):
            a = Tacc[4 * t:4 * t + 4]
            return [f'v_add_f32 {a[0]}, {a[0]}, {a[2]}', f'v_add_f32 {a[1]}, {a[1]}, {a[3]}',
                    f'v_cvt_pk_bf16_f32 {Ym[t]}, {a[0]}, {a[1]}']
        vq = pk(0)[:2] + [f'v_cmp_u_f32 vcc, {Tacc[0]}, {Tacc[1]}'] + pk(0)[2:]
        for t in range(1, 6):
            vq += pk(t)
        n = 0
        for t in (6, 7):
            for k in range(7):
                smf(t, k)
                if n == 4:
                    check_branch()
                elif winA:
                    side(winA.pop(0))
                if n == 10:
                    vq += pk(6)
                for _ in range(2 if n % 2 else 1):
                    if vq:
                        e(vq.pop(0))
                n += 1
        assert not winA
        for l in vq + pk(7):
            e(l)
        e(f"""ds_write_b128 {vYW}, {Ym[0:4]} offset:{w * 1024}
        ds_write_b128 {vYW}, {Ym[4:8]} offset:{4096 + w * 1024}""")
        if fin and not cfg.alone:
            Y0, YL, YD, YB = p.label('Y0'), p.label('YL'), p.label('YD'), p.label('YB')
            e(f's_cmp_eq_u32 {sSTEP}, 0\ns_cbranch_scc1 {Y0}\n{YB}:')
            tail += [f'{Y0}:', f'v_mov_b32 {vt[0]}, {C_YX}', f's_mov_b32 {sT0}, {WS_CNT}', f'{YL}:',
                     f'buffer_load_dword {vt[1]}, {vt[0]}, {sWS}, {sT0} offen sc1', f's_sub_u32 {sTO}, {sTO}, 1',
                     f's_cmp_gt_i32 {sTO}, 0', f's_cbranch_scc0 {YD}', 's_waitcnt vmcnt(0)', f'v_cmp_gt_u32 vcc, 16, {vt[1]}',
                     f's_cbranch_vccz {YD}', 's_sleep 6', f's_branch {YL}', f'{YD}:'] + yx_all + [f's_branch {YB}']
        if fin and cfg.selfpoll and w == 0:
            e(f'buffer_store_dword {vNeg1}, {vMr}, {sWS}, {sMEMRST} offen')
        stamp(p, cfg, 3)
        if cfg.tlb and w == 3:
            e(f"""v_mov_b32 {vt[2]}, {3 * 8192 + 7680}
            buffer_load_dword {vt[3]}, {vt[2]}, {sWS}, {sMEM} offen sc1""")
        sp0 = cfg.selfpoll and w == 0
        bm_rd = [f'ds_read_b128 {BM[4 * i:4 * i + 4]}, {vYW} offset:{w * 4096 + i * 1024}' for i in range(4)] if fin else []
        zf = [f'v_mov_b32 {Facc[i]}, 0' for i in range(4)] if fin else []

        def part(i):
            if i == 0:
                fz(0 if (w == 3 and cfg.vstart == 0) else 6)
                e(f's_add_u32 {sSTEP}, {sSTEP}, 1')
                slot_calc()
            elif i == 1:
                e('s_waitcnt lgkmcnt(0)\ns_barrier')
            elif i == 2:
                for l in bm_rd + zf:
                    e(l)
                if fin and not sp0:
                    e(f'buffer_store_dword {vNeg1}, {vMr}, {sWS}, {sMEMRST} offen')
            else:
                fz(6)
        if sp0:
            poll_loop(cfg.pdepth, None, part)
            stamp(p, cfg, 5)
            nops(e, cfg.pdelay)
        else:
            for i in range(3):
                part(i)
            if fin:
                stamp(p, cfg, 5)
            if not (w == 3 and cfg.vstart == 0):
                fz(32)
            if w == 2 and not cfg.selfpoll:
                poll_loop(cfg.pdepth)
                stamp(p, cfg, 5)
                nops(e, cfg.pdelay)
        if not sp0:
            e('s_barrier')
        stamp(p, cfg, 6)
        if fin:
            PD, PF, PR, PB = p.label('PD'), p.label('PF'), p.label('PR'), p.label('PB')

            def p_txt(i):
                so, of = (sP, i * 1024) if i < 2 else (sPQ[(i - 2) >> 1], 2048 + (i & 1) * 1024)
                return f'buffer_load_dwordx4 {Afin[4 * i:4 * i + 4]}, {vL16}, {sWS}, {so} offen offset:{of} sc1'

            def f_txt(i):
                return f'v_smfmac_f32_16x16x64_bf16 {Facc}, {Afin[4 * i:4 * i + 4]}, {Bfin[i]}, {vIdx}'
            if w == 1 and not cfg.selfpoll:
                nops(e, 4)
            f2 = f'buffer_store_dword {vStep}, {vFs}, {sWS}, {sFLG} offen'
            burst = []
            for i in range(10):
                vm.issue(p_txt(i), ('p', i))
                burst.append(p_txt(i))
                if (sp0 and -12 <= cfg.f2pos <= -2 and i == 11 + cfg.f2pos) or (w == 1 and i == cfg.f2pos - 20):
                    vm.issue(f2)
                    burst.append(f2)
                    stamp(p, cfg, 8)
                if sp0 and i == cfg.bpos:
                    e('s_barrier')
            stamp(p, cfg, 11)
            e(f'{PB}:')
            if cfg.f2pos == -1 and w == 0:
                vm.issue(f2)
                stamp(p, cfg, 8)
            fz(32)
            e('s_waitcnt lgkmcnt(0)')
            vm.wait(('p', 0))
            stamp(p, cfg, 4)
            for i in range(10):
                e(f_txt(i))
                if i == (max(cfg.f2pos, 2) if cfg.f2pos < 10 else 2):
                    e(f's_cbranch_vccnz {PR}')
                if i == cfg.f2pos and w == 0:
                    vm.issue(f2)
                    stamp(p, cfg, 8)
                if i < 9:
                    vm.wait(('p', i + 1))
                if i == 0:
                    e(f'v_max3_u32 {vt[0]}, {Afin[0]}, {Afin[1]}, {Afin[4]}')
                    e(f'v_max_u32 {vt[0]}, {vt[0]}, {Afin[5]}')
                if i == 1:
                    e(f'v_cmp_eq_u32 vcc, -1, {vt[0]}')
            tail += [f'{PR}:', f's_add_u32 {sCNT[1]}, {sCNT[1]}, 1'] + burst + zf
            tail += [f's_sub_u32 {sTO}, {sTO}, 1', f's_cmp_gt_i32 {sTO}, 0', f's_cbranch_scc1 {PB}', f's_branch {PD}']
            fsum = [f'v_add_f32 {Facc[0]}, {Facc[0]}, {Facc[2]}', f'v_add_f32 {Facc[1]}, {Facc[1]}, {Facc[3]}']
            stamp(p, cfg, 10)
            for i in range(7):
                e(f'v_mov_b32 {vt[4]}, 0')
            for l in fsum:
                e(l)
            st_txt = [f'buffer_store_short {vt[0]}, {vMo}, {sWS}, {sMEMW} offen',
                      f'buffer_store_short_d16_hi {vt[0]}, {vMo}, {sWS}, {sMEMW} offen offset:16']
            e(f"""v_cvt_pk_bf16_f32 {vt[0]}, {Facc[0]}, {Facc[1]}
            v_cmpx_o_f32 vcc, {Facc[0]}, {Facc[1]}""")
            for l in st_txt:
                e(l)
            stamp(p, cfg, 7)
            e(f"""s_mov_b64 exec, -1
            s_cmp_lg_u64 vcc, -1
            s_cbranch_scc1 {PF}
            {PD}:""")
            rst = f'buffer_store_dword {vNeg1}, {vMr}, {sWS}, {sMEMRST} offen'
            slow(st_txt + ([f2] if w == (1 if cfg.f2pos >= 20 else 0) else []) + [rst])
            tail += [f'{PF}:', f's_add_u32 {sCNT[1]}, {sCNT[1]}, 0x10000']
            tail += [p_txt(i) for i in range(10)]
            tail += [f's_sub_u32 {sTO}, {sTO}, 1', f's_cmp_gt_i32 {sTO}, 0', f's_cbranch_scc0 {PD}']
            tail += zf + ['s_waitcnt vmcnt(0)']
            tail += [f'v_max3_u32 {vt[0]}, {Afin[0]}, {Afin[1]}, {Afin[2]}']
            for i in range(3, 39, 2):
                tail += [f'v_max3_u32 {vt[0]}, {vt[0]}, {Afin[i]}, {Afin[i + 1]}']
            tail += [f'v_max_u32 {vt[0]}, {vt[0]}, {Afin[39]}', f'v_cmp_eq_u32 vcc, -1, {vt[0]}', f's_cbranch_vccnz {PF}']
            tail += [f_txt(i) for i in range(10)] + fsum + [f'v_cvt_pk_bf16_f32 {vt[0]}, {Facc[0]}, {Facc[1]}'] + st_txt
            tail += [f's_branch {PD}']

        fz(32)

        def vpoll():
            if w == 3:
                nops(e, cfg.vstart)
            poll_loop(cfg.vdepth, LOOP, None, vFo2)
        loop_end(vpoll if w == cfg.vpw else None)
    assert not zq
    e(f'{END}:')
    if fin:
        e(f's_add_u32 {sMEMW}, {sMEMW}, {WS_MEMA - WS_MEMR}')
        for l in st_txt:
            e(l + ' sc1')
    epilogue(p, w, cfg, vt)
    for l in tail:
        if not cfg.diag and any(l.startswith(f's_add_u32 {c},') for c in sCNT):
            continue
        e(l)


HEADER = '''; generated
; @launch grid=(256,1,1) block=(256,1,1) lds=%d
.amdgcn_target "amdgcn-amd-amdhsa--gfx950"
.text
.globl %s
.p2align 8
.type %s,@function
'''
FOOTER = '''.section .rodata,"a"
.p2align 6
.amdhsa_kernel %s
  .amdhsa_next_free_vgpr 512
  .amdhsa_next_free_sgpr 102
  .amdhsa_accum_offset 256
  .amdhsa_group_segment_fixed_size 0
  .amdhsa_kernarg_size 120
  .amdhsa_user_sgpr_count 2
  .amdhsa_user_sgpr_kernarg_segment_ptr 1
  .amdhsa_system_sgpr_workgroup_id_x 1
.end_amdhsa_kernel
'''


def wave_dispatch(e, nm):
    e(f'''s_cmp_eq_u32 {sWAVE}, 0
    s_cbranch_scc1 {nm}0
    s_cmp_eq_u32 {sWAVE}, 1
    s_cbranch_scc1 {nm}1
    s_cmp_eq_u32 {sWAVE}, 2
    s_cbranch_scc1 {nm}2
    s_branch {nm}3''')


def standalone(cfg, name='team_kernel'):
    TL_ON[0] = True
    p = Prog()
    e = p.e
    e(f'{name}:')
    e(f'''s_and_b32 s3, s2, 7
    s_cmp_lg_u32 s3, 0
    s_cbranch_scc1 EXIT
    s_cmp_ge_u32 s2, 256
    s_cbranch_scc1 EXIT
    s_lshr_b32 {sIDX}, s2, 3
    s_mov_b32 s100, {sIDX}
    s_mov_b32 {sSLOW}, 0
    s_load_dwordx2 s[4:5], s[0:1], 112
    s_load_dwordx2 s[12:13], s[0:1], 104
    s_load_dwordx2 s[16:17], s[0:1], 8
    v_lshrrev_b32 v1, 6, v0
    v_readfirstlane_b32 {sWAVE}, v1
    s_mov_b32 s6, {WS_BYTES}
    s_mov_b32 s7, 0x20000
    s_mov_b32 s14, 256
    s_mov_b32 s15, 0x20000
    s_mov_b32 s18, 7168
    s_mov_b32 s19, 0x20000
    s_and_b32 {sH}, {sIDX}, 15''')
    for i in range(NSTAMP):
        e(f's_mov_b32 s{STAMP0 + 2 * i}, 0')
    e(f'''s_waitcnt lgkmcnt(0)
    s_cmp_ge_u32 {sIDX}, 16
    s_cbranch_scc1 ROLE_VO''')
    wave_dispatch(e, 'QK')
    e(f'''ROLE_VO:
    s_cmp_ge_u32 {sH}, 14
    s_cbranch_scc1 ROLE_EN''')
    wave_dispatch(e, 'VO')
    e('ROLE_EN:')
    wave_dispatch(e, 'EN')
    e('EXIT:\ns_endpgm')
    for role, nm in ((0, 'QK'), (1, 'VO'), (2, 'EN')):
        for w in range(4):
            e(f'{nm}{w}:')
            team_wave(p, role, w, cfg)
    return HEADER % (L_END, name, name) + p.text() + FOOTER % name


if __name__ == '__main__':
    import sys
    cfg = Cfg()
    for a in sys.argv[2:]:
        k, v = a.split('=')
        assert hasattr(cfg, k), k
        setattr(cfg, k, int(v) if not isinstance(getattr(cfg, k), str) else v)
    open(sys.argv[1], 'w').write(standalone(cfg))
```

```python
from asmlib import *
from layout import *
from prep import srd

sWS = 's[4:7]'
sW = 's9'
sTO = 's38'
sCN = 's39'
TIMEOUT = 400000
OOB = 0x40000000
MALL = [1]
OSC = ['']
NRY = 3


def wait_ge(p, vaddr, vtmp, val, sleep=4):
    e = p.e
    L, D = p.label('WT'), p.label('WD')
    e(f'''{L}:
    buffer_load_dword {vtmp}, {vaddr}, {sWS}, {sCN} offen sc1
    s_sub_u32 {sTO}, {sTO}, 1
    s_cmp_gt_i32 {sTO}, 0
    s_cbranch_scc0 {D}
    s_waitcnt vmcnt(0)
    v_cmp_gt_u32 vcc, {val}, {vtmp}
    s_cbranch_vccz {D}
    s_sleep {sleep}
    s_branch {L}
    {D}:''')


def signal(p, vaddr, vtmp):
    e = p.e
    L = p.label('SG')
    e(f'''s_waitcnt vmcnt(0) lgkmcnt(0)
    s_barrier
    s_cmp_lg_u32 {sW}, 0
    s_cbranch_scc1 {L}
    v_mov_b32 {vtmp}, 1
    s_mov_b64 exec, 1
    buffer_atomic_add {vtmp}, {vaddr}, {sWS}, {sCN} offen
    s_mov_b64 exec, -1
    {L}:''')


GOV = [2, 6]


def go_wait(p, vCA, t0, sA, val):
    L = p.label('GW')
    p.e(f"""s_cmp_lg_u32 {sW}, 0
    s_cbranch_scc1 {L}
    s_and_b32 {sA}, s8, 7
    s_lshl_b32 {sA}, {sA}, 7
    s_add_u32 {sA}, {sA}, {C_GO}
    v_mov_b32 {vCA}, {sA}""")
    wait_ge(p, vCA, t0, val, 16)
    p.e(f'{L}:\ns_barrier')


def load_valid(p, loads, regs, vtmp, sleep):
    e = p.e
    L, D = p.label('LV'), p.label('LD')
    e(f'{L}:')
    for l in loads:
        e(l)
    e(f"""s_sub_u32 {sTO}, {sTO}, 1
    s_cmp_gt_i32 {sTO}, 0
    s_cbranch_scc0 {D}""")
    n = len(loads)
    per = len(regs) // n
    for i in range(n):
        e(f's_waitcnt vmcnt({n - 1 - i})')
        r = regs[per * i:per * i + per]
        if per == 1:
            e(f'v_mov_b32 {vtmp}, {r[0]}' if i == 0 else f'v_max_u32 {vtmp}, {vtmp}, {r[0]}')
        else:
            e(f'v_max_u32 {vtmp}, {r[0]}, {r[1]}' if i == 0 else f'v_max3_u32 {vtmp}, {vtmp}, {r[0]}, {r[1]}')
            e(f'v_max3_u32 {vtmp}, {vtmp}, {r[2]}, {r[3]}')
    e(f"""v_cmp_eq_u32 vcc, -1, {vtmp}
    s_cbranch_vccz {D}
    s_sleep {sleep}
    s_branch {L}
    {D}:
    s_waitcnt vmcnt(0)""")


def yt_worker(p, kind):
    e = p.e
    isY = kind == 0
    L_T, L_XA = 65536, 98304
    V = Alloc('v', 1, 254)
    A = Alloc('a', 0, 256)
    vL, vG, vC, t0, t1, t2, vL16, vXB, vCA = (V.get() for _ in range(9))
    x1, x2 = V.get(), V.get()
    if not isY:
        Sx = V.get(8, 4)
        Sm = V.get(8, 4)
    else:
        vIdx, vTo = V.get(), V.get()
    buf = V.get(32, 4)
    acc = V.get(56, 4)
    frag = {}
    for t in range(7):
        for k in range(7):
            frag[(t, k)] = A.get(8, 4) if A.left() >= 8 else V.get(8, 4)
    sS, sCur, sW7, sO, sA, sB, sPrev = 's12', 's13', 's14', 's15', 's16', 's17', 's18'
    TLB = WS_TL + 16384
    e(f"""v_and_b32 {vL}, 63, v0
    v_lshrrev_b32 {vG}, 4, {vL}
    v_and_b32 {vC}, 15, {vL}
    v_lshlrev_b32 {vL16}, 4, {vL}
    v_mov_b32 {vXB}, {vL16}
    s_mov_b32 {sTO}, {TIMEOUT}
    s_mov_b32 {sCN}, {WS_CNT}
    s_mov_b32 {sS}, s11
    s_mov_b32 {sCur}, 0
    s_mov_b32 {sPrev}, {OOB}
    s_mul_i32 {sW7}, {sW}, 7168""")

    def xb_dma(seg, lds):
        e(f"""s_lshl_b32 {sA}, {seg}, 15
        s_add_u32 {sA}, {sA}, {sW7}
        s_add_u32 {sA}, {sA}, {WS_XNB}
        s_add_u32 m0, {lds}, {sW7}""")
        for i in range(7):
            if i == 4:
                e(f's_add_u32 {sA}, {sA}, 4096\ns_add_u32 m0, m0, 4096')
            e(f'buffer_load_dwordx4 {vL16}, {sWS}, {sA} offen offset:{(i & 3) * 1024} sc1 lds')

    def mem_wait():
        e(f"""s_lshl_b32 {sA}, {sS}, 13
        s_add_u32 {sA}, {sA}, {WS_MEMA}
        s_add_u32 {sB}, {sA}, 4096""")
        load_valid(p, [f'buffer_load_dwordx4 {buf[4 * k:4 * k + 4]}, {vL16}, {sWS}, {sA if k < 4 else sB} offen '
                       f'offset:{(k & 3) * 1024} sc1' for k in range(7)], [buf[i] for i in range(28)], t0, 3)
    if not isY:
        go_wait(p, vCA, t0, sA, GOV[0])
    xb_dma(sS, sCur)
    if isY:
        e(f"""s_and_b32 {sA}, {sW}, 1
        s_mul_i32 {sB}, {sA}, {7 * 32}
        s_lshr_b32 {sA}, {sW}, 1
        s_add_u32 {sB}, {sB}, {sA}
        s_lshl_b32 {sA}, s10, 1
        s_add_u32 {sB}, {sB}, {sA}""")
    else:
        e(f"""s_mul_i32 {sB}, s10, 28
        s_mul_i32 {sA}, {sW}, 7
        s_add_u32 {sB}, {sB}, {sA}""")
    e(f"""s_mul_i32 {sB}, {sB}, 14336
    s_add_u32 {sB}, {sB}, {WS_WVO if isY else WS_WQK}""")
    if isY:
        e(f"""v_and_b32 {t0}, 7, {vL}
        v_min_u32 {t0}, 6, {t0}
        v_mul_u32_u24 {t0}, {32 * 14336}, {t0}
        v_bfe_u32 {t1}, {vL}, 3, 1
        v_mul_u32_u24 {t1}, 14332, {t1}
        v_add_u32 {t0}, {t0}, {t1}
        buffer_load_dword {t2}, {t0}, {sWS}, {sB} offen sc1""")
    n_out = 8
    for t in range(7):
        for k in range(7):
            f = frag[(t, k)]
            if k % 2 == 0:
                e(f's_add_u32 {sA}, {sB}, {(t * 7 * (32 if isY else 1) + k) * 2048}')
            o = (k & 1) * 2048
            e(f"""buffer_load_dwordx4 {f[0:4]}, {vL16}, {sWS}, {sA} offen offset:{o} sc1
            buffer_load_dwordx4 {f[4:8]}, {vL16}, {sWS}, {sA} offen offset:{o + 1024} sc1""")
            n_out += 2
            if n_out >= 60:
                e('s_waitcnt vmcnt(40)')
                n_out = 40
    if isY:
        e(f"""v_bfe_u32 {t0}, {vC}, 1, 1
        v_mul_u32_u24 {vIdx}, 0xaaaa, {t0}
        v_add_u32 {vIdx}, 0x4444, {vIdx}
        v_lshlrev_b32 {t0}, 12, {vG}
        v_lshl_add_u32 {t0}, {vC}, 4, {t0}
        s_mul_i32 {sA}, {sW}, {7 * 4096}
        s_lshl_b32 {sB}, s10, 8
        s_add_u32 {sA}, {sA}, {sB}
        v_add_u32 {x1}, {sA}, {t0}
        v_add_u32 {t0}, {4 * 4096}, {x1}
        v_mov_b32 {t1}, {OOB}
        v_cmp_gt_u32 vcc, 3, {vG}
        v_cndmask_b32 {x2}, {t1}, {t0}, vcc
        v_lshrrev_b32 {t0}, 3, {vL}
        v_min_u32 {t0}, 6, {t0}
        v_lshlrev_b32 {t0}, 14, {t0}
        v_and_b32 {t1}, 7, {vL}
        v_lshl_add_u32 {vTo}, {t1}, 7, {t0}
        s_mov_b32 {sO}, {WS_YX + 7 * 16384}""")
    else:
        for i, x in enumerate((x1, x2)):
            e(f"""s_mul_i32 {sA}, {sW}, 7
            s_add_u32 {sA}, {sA}, {i}
            s_lshr_b32 {sB}, {sA}, 1
            s_lshl_b32 {sB}, {sB}, 10
            s_and_b32 {sA}, {sA}, 1
            s_lshl_b32 {sA}, {sA}, 3
            s_add_u32 {sA}, {sA}, {sB}
            s_add_u32 {sA}, {sA}, {L_T}
            v_add_u32 {x}, {sA}, {vL16}""")
        e(f"""s_and_b32 {sA}, {sW}, 1
        s_lshl_b32 {sA}, {sA}, 4
        v_add_u32 {t0}, {sA}, {vC}
        v_lshlrev_b32 {t1}, 2, {vG}""")
        for i in range(8):
            e(f"""v_add_u32 {t2}, {16 * (i >> 2) + (i & 3)}, {t1}
            v_cmp_le_u32 s[{40 + 2 * i}:{41 + 2 * i}], {t2}, {t0}""")

    def init_marks():
        IL = p.label('IL')
        mk = buf[0:4]
        for i in range(4):
            e(f'v_mov_b32 {mk[i]}, -1')
        e(f's_mov_b32 {sO}, s11')
        if not isY:
            e(f"""v_lshlrev_b32 {t0}, 2, {vL}
            s_cmp_ge_u32 {sW}, 2
            s_cbranch_scc1 {IL}x""")
        e(f'{IL}:')
        if isY:
            e(f"""s_lshl_b32 {sA}, {sO}, 17
            s_add_u32 {sA}, {sA}, {WS_YMA}
            buffer_store_dwordx4 {mk}, {x1}, {sWS}, {sA} offen sc1
            buffer_store_dwordx4 {mk}, {x2}, {sWS}, {sA} offen sc1""")
        else:
            e(f"""s_lshl_b32 {sA}, {sO}, 1
            s_add_u32 {sA}, {sA}, {sW}
            s_lshl_b32 {sA}, {sA}, 4
            s_add_u32 {sA}, {sA}, s10
            s_lshl_b32 {sB}, {sA}, 10
            s_add_u32 {sB}, {sB}, {WS_PX}
            s_lshl_b32 {sA}, {sA}, 8
            s_add_u32 {sA}, {sA}, {WS_PM}
            buffer_store_dwordx4 {mk}, {vL16}, {sWS}, {sB} offen sc1
            buffer_store_dword {mk[0]}, {t0}, {sWS}, {sA} offen sc1""")
        e(f"""s_add_u32 {sO}, {sO}, {NRY}
        s_cmp_lt_u32 {sO}, 64
        s_cbranch_scc1 {IL}
        {IL}x:
        v_mov_b32 {vCA}, {C_INIT}""")
        signal(p, vCA, t0)
    e('s_waitcnt vmcnt(0)')
    if not isY:
        init_marks()
    tl(p, 1, 's100', TLB)
    JOB = p.label('JOB')
    nst = 7 if isY else 2
    ndma = 7 if isY else 14
    e(f"""{JOB}:
    s_waitcnt vmcnt({nst}) lgkmcnt(0)
    s_barrier""")

    def rd(q):
        return [f'ds_read_b128 {buf[16 * (q & 1) + 4 * i:16 * (q & 1) + 4 * i + 4]}, {vXB} offset:{xnb_blk(q) * 4096 + i * 1024}'
                for i in range(4)]
    for l in rd(0):
        e(l)
    if not isY:
        e(f"""s_lshl_b32 {sA}, {sS}, 15
        s_lshr_b32 {sB}, {sW}, 1
        s_lshl_b32 {sB}, {sB}, 11
        s_add_u32 {sA}, {sA}, {sB}
        s_add_u32 {sA}, {sA}, {sW7}
        s_add_u32 {sA}, {sA}, {WS_XNA}
        s_add_u32 m0, {sW7}, {L_XA}""")
        for i in range(7):
            if i == 4:
                e(f's_add_u32 {sA}, {sA}, 4096\ns_add_u32 m0, m0, 4096')
            e(f'buffer_load_dwordx4 {vL16}, {sWS}, {sA} offen offset:{(i & 3) * 1024} sc1 lds')
    e(f"""s_add_u32 {sB}, {sS}, {NRY}
    s_min_u32 {sB}, {sB}, 63
    s_xor_b32 {sCur}, {sCur}, 32768""")
    xb_dma(sB, sCur)
    for q in range(7):
        side = rd(q + 1) if q < 6 else []
        e('s_waitcnt lgkmcnt(0)')
        if q == 4 and isY:
            SG = p.label('SG')
            e(f's_waitcnt vmcnt({ndma})')
            if MALL[0]:
                e(f"""s_sub_u32 {sA}, {sO}, {7 * 16384}
                buffer_load_dword {t2}, {vTo}, {sWS}, {sA} offen sc1""")
            e(f"""s_barrier
            s_cmp_lg_u32 {sW}, 0
            s_cbranch_scc1 {SG}
            v_mov_b32 {t0}, 1
            v_mov_b32 {vCA}, {sPrev}
            s_mov_b64 exec, 1
            buffer_atomic_add {t0}, {vCA}, {sWS}, {sCN} offen
            s_mov_b64 exec, -1
            {SG}:""")
        n = 0
        for rh in range(2):
            for t in range(7):
                for kt in range(2):
                    d = acc[8 * t + 4 * kt:8 * t + 4 * kt + 4]
                    xa = buf[16 * (q & 1) + 8 * kt + 4 * rh:16 * (q & 1) + 8 * kt + 4 * rh + 4]
                    wf = frag[(t, q)][4 * rh:4 * rh + 4]
                    c = 0 if (q == 0 and rh == 0) else d
                    if isY:
                        e(f'v_mfma_f32_16x16x32_bf16 {d}, {xa}, {wf}, {c}')
                    else:
                        e(f'v_mfma_f32_16x16x32_bf16 {d}, {wf}, {xa}, {c}')
                    if side and n % 4 == 1:
                        e(side.pop(0))
                    n += 1
    e(f'v_xor_b32 {vXB}, 32768, {vXB}')
    if isY:
        e(f"""s_mul_i32 {sO}, {sS}, {28 * 16384}
        s_mul_i32 {sA}, {sW}, {7 * 16384}
        s_add_u32 {sO}, {sO}, {sA}
        s_lshl_b32 {sA}, s10, 10
        s_add_u32 {sO}, {sO}, {sA}
        s_add_u32 {sO}, {sO}, {WS_YX}""")
        for t in range(7):
            a = acc[8 * t:8 * t + 8]
            for i in range(4):
                e(f'v_cvt_pk_bf16_f32 {a[i]}, {a[2 * i]}, {a[2 * i + 1]}')
            e(f"""buffer_store_dwordx4 {a[0:4]}, {vL16}, {sWS}, {sO} offen sc1
            s_add_u32 {sO}, {sO}, 16384""")
        NF = p.label('NF')
        e(f"""s_lshl_b32 {sPrev}, {sS}, 2
        s_cmp_lg_u32 {sS}, s11
        s_cbranch_scc1 {NF}
        v_mov_b32 {vCA}, {sPrev}
        s_mov_b32 {sPrev}, {OOB}""")
        signal(p, vCA, t0)
        tl(p, 2, 's100', TLB)
        e(f"""{NF}:
        s_sub_u32 {sA}, {sS}, s11
        s_cmp_lg_u32 {sA}, {5 * NRY}
        s_cbranch_scc1 {NF}x
        v_and_b32 {vCA}, 31, {vL}
        v_lshlrev_b32 {vCA}, 2, {vCA}
        v_add_u32 {vCA}, {C_LN}, {vCA}""")
        wait_ge(p, vCA, t0, 1, 8)
        e(f"""{NF}x:
        s_add_u32 {sS}, {sS}, {NRY}
        s_cmp_lt_u32 {sS}, 64
        s_cbranch_scc1 {JOB}
        v_mov_b32 {vCA}, {sPrev}""")
        signal(p, vCA, t0)
        init_marks()
        tl(p, 3, 's100', TLB)
        MJ = p.label('MJ')
        e(f"""s_mov_b32 {sS}, s11
        {MJ}:""")
        for i in range(28):
            e(f'v_mov_b32 {acc[i]}, 0')
        mem_wait()
        for k in range(7):
            for t in range(7):
                e(f'v_smfmac_f32_16x16x64_bf16 {acc[4 * t:4 * t + 4]}, {buf[4 * k:4 * k + 4]}, {frag[(t, k)]}, {vIdx}')
        o = acc[32:40]
        for t in range(7):
            a = acc[4 * t:4 * t + 4]
            e(f"""v_add_f32 {a[0]}, {a[0]}, {a[2]}
            v_add_f32 {a[1]}, {a[1]}, {a[3]}
            v_cvt_pk_bf16_f32 {o[t]}, {a[0]}, {a[1]}""")
        e(f"""v_mov_b32 {o[7]}, 0
        s_lshl_b32 {sO}, {sS}, 17
        s_add_u32 {sO}, {sO}, {WS_YMA}""")
        for b in (0, 4):
            e(f"""v_permlane32_swap_b32 {o[b]}, {o[b + 2]}
            v_permlane32_swap_b32 {o[b + 1]}, {o[b + 3]}
            v_permlane16_swap_b32 {o[b]}, {o[b + 1]}
            v_permlane16_swap_b32 {o[b + 2]}, {o[b + 3]}
            buffer_store_dwordx4 {o[b:b + 4]}, {x1 if b == 0 else x2}, {sWS}, {sO} offen sc1""")
        e(f"""s_add_u32 {sS}, {sS}, {NRY}
        s_cmp_lt_u32 {sS}, 64
        s_cbranch_scc1 {MJ}""")
        tl(p, 4, 's100', TLB)
        e('s_endpgm')
        return
    for t in range(7):
        for qt in range(2):
            a = acc[8 * t + 4 * qt:8 * t + 4 * qt + 4]
            e(f"""v_cvt_pk_bf16_f32 {a[0]}, {a[0]}, {a[1]}
            v_cvt_pk_bf16_f32 {a[1]}, {a[2]}, {a[3]}
            ds_write_b64 {x2 if (t & 1) else x1}, {a[0:2]} offset:{(t >> 1) * 1024 + qt * 14336}""")
    SK, SM = p.label('TSK'), p.label('TSM')
    L_SX = 28672
    e(f"""s_waitcnt vmcnt(0) lgkmcnt(0)
    s_barrier
    s_and_b32 {sB}, {sW}, 1
    s_mul_i32 {sA}, {sB}, 14336
    s_add_u32 {sA}, {sA}, {L_T}
    v_add_u32 {t0}, {sA}, {vL16}
    v_add_u32 {t2}, {L_XA}, {vL16}
    s_lshl_b32 {sB}, {sB}, 11
    v_add_u32 {vCA}, {sB}, {vL16}""")
    for th in range(14):
        e(f'ds_read_b128 {acc[4 * th:4 * th + 4]}, {t0} offset:{th * 1024}')
    e(f"""s_cmp_lt_u32 {sW}, 2
    s_cbranch_scc1 {SM}
    s_waitcnt lgkmcnt(6)""")

    def xa_rd(i):
        e(f'ds_read_b128 {buf[4 * (i & 7):4 * (i & 7) + 4]}, {t2} offset:{i * 1024}')
    for i in range(8):
        xa_rd(i)
    for i in range(28):
        kt, th = i // 14, i % 14
        e(f's_waitcnt lgkmcnt({min(7, 27 - i)})')
        d = Sx[4 * kt:4 * kt + 4]
        e(f'v_mfma_f32_16x16x32_bf16 {d}, {buf[4 * (i & 7):4 * (i & 7) + 4]}, {acc[4 * th:4 * th + 4]}, {0 if th == 0 else d}')
        if i + 8 < 28:
            xa_rd(i + 8)
    e(f'v_mov_b32 {t1}, 0xff800000')
    for i in range(8):
        e(f'v_cndmask_b32 {Sx[i]}, {t1}, {Sx[i]}, s[{40 + 2 * i}:{41 + 2 * i}]')
    e(f"""ds_write_b128 {vCA}, {Sx[0:4]} offset:{L_SX}
    ds_write_b128 {vCA}, {Sx[4:8]} offset:{L_SX + 1024}
    s_waitcnt lgkmcnt(0)
    s_barrier
    s_branch {SK}
    {SM}:""")
    mem_wait()
    e(f"""s_waitcnt lgkmcnt(0)
    s_barrier
    ds_read_b128 {Sx[0:4]}, {vCA} offset:{L_SX}
    ds_read_b128 {Sx[4:8]}, {vCA} offset:{L_SX + 1024}""")
    for k in range(7):
        for v in range(2):
            d = Sm[4 * v:4 * v + 4]
            e(f'v_mfma_f32_16x16x32_bf16 {d}, {buf[4 * k:4 * k + 4]}, {acc[4 * (2 * k + v):4 * (2 * k + v) + 4]}, {0 if k == 0 else d}')
    e(f"""s_waitcnt lgkmcnt(0)
    v_max3_f32 {t2}, {Sx[0]}, {Sx[1]}, {Sx[2]}
    v_max3_f32 {t2}, {t2}, {Sx[3]}, {Sx[4]}
    v_max3_f32 {t2}, {t2}, {Sx[5]}, {Sx[6]}
    v_max_f32 {t2}, {t2}, {Sx[7]}""")
    vals = [Sx[i] for i in range(8)] + [Sm[0], Sm[1]]

    def allred(op):
        e(f"""v_mov_b32 {t1}, {t0}
        v_permlane16_swap_b32 {t0}, {t1}
        v_{op}_f32 {t0}, {t0}, {t1}
        v_mov_b32 {t1}, {t0}
        v_permlane32_swap_b32 {t0}, {t1}
        v_{op}_f32 {t0}, {t0}, {t1}""")
    e(f"""s_lshl_b32 {sA}, {sS}, 1
    s_add_u32 {sA}, {sA}, {sW}
    s_lshl_b32 {sA}, {sA}, 4
    s_add_u32 {sA}, {sA}, s10            ; (s*2+qt)*16 + h
    s_lshl_b32 {sB}, {sA}, 10
    s_add_u32 {sB}, {sB}, {WS_PX}
    s_lshl_b32 {sA}, {sA}, 8
    s_add_u32 {sA}, {sA}, {WS_PM}
    v_add_f32 {Sm[0]}, {Sm[0]}, {Sm[6]}
    v_add_f32 {Sm[1]}, {Sm[1]}, {Sm[7]}
    v_max3_f32 {t0}, {t2}, {Sm[0]}, {Sm[1]}""")
    allred('max')
    for v in vals:
        e(f'v_sub_f32 {v}, {v}, {t0}')
    for v in vals:
        e(f'v_exp_f32 {v}, {v}')
    e(f'v_add_f32 {t0}, {vals[0]}, {vals[1]}')
    for v in vals[2:]:
        e(f'v_add_f32 {t0}, {t0}, {v}')
    allred('add')
    e(f'v_rcp_f32 {t0}, {t0}')
    for v in vals:
        e(f'v_mul_f32 {v}, {v}, {t0}')
    for i in range(4):
        e(f'v_cvt_pk_bf16_f32 {Sx[i]}, {Sx[2 * i]}, {Sx[2 * i + 1]}')
    e(f"""v_cvt_pk_bf16_f32 {Sm[0]}, {Sm[0]}, {Sm[1]}
    buffer_store_dwordx4 {Sx[0:4]}, {vL16}, {sWS}, {sB} offen sc1
    v_lshlrev_b32 {t0}, 4, {vC}
    v_lshl_add_u32 {t0}, {vG}, 2, {t0}
    buffer_store_dword {Sm[0]}, {t0}, {sWS}, {sA} offen sc1
    {SK}:
    s_add_u32 {sS}, {sS}, {NRY}
    s_cmp_lt_u32 {sS}, 64
    s_cbranch_scc1 {JOB}""")
    tl(p, 4, 's100', TLB)
    e('s_endpgm')


def f_worker(p):
    e = p.e
    V = Alloc('v', 1, 256)
    vL, vG, vC, t0, t1, t2, vL16, vCA, vB1 = (V.get() for _ in range(9))
    vQ = [V.get() for _ in range(7)]
    vRo = [V.get() for _ in range(4)]
    vGo = [V.get() for _ in range(4)]
    H = V.get(8, 4)
    Bs = V.get(4, 4)
    acc = V.get(112, 4)
    XF = V.get(56, 4)
    PA = V.get(40, 4)
    sS, sXx, sA, sB, sC, sI, sF1, sF2 = 's12', 's13', 's14', 's15', 's32', 's33', 's34', 's35'
    rW1, rW2, rB1, rB2 = 's[16:19]', 's[20:23]', 's[24:27]', 's[28:31]'
    rX, rO = 's[40:43]', 's[44:47]'
    srd(e, 16, 64, 448 * 1792 * 2)
    srd(e, 20, 80, 448 * 1792 * 2)
    srd(e, 24, 72, 1792 * 2)
    srd(e, 28, 88, 448 * 2)
    srd(e, 40, 0, S * D * 2)
    srd(e, 44, 96, S * D * 2)
    e(f'''v_and_b32 {vL}, 63, v0
    v_lshrrev_b32 {vG}, 4, {vL}
    v_and_b32 {vC}, 15, {vL}
    v_lshlrev_b32 {vL16}, 4, {vL}
    v_lshlrev_b32 {vB1}, 3, {vG}
    s_mov_b32 {sTO}, {TIMEOUT}
    s_mov_b32 {sCN}, {WS_CNT}
    s_lshr_b32 {sS}, s10, 1
    s_and_b32 {sXx}, s10, 1''')
    for q in range(7):
        e(f'v_add_u32 {vQ[q]}, {q * 4096}, {vL16}')
    go_wait(p, vCA, t0, sA, GOV[1])
    e(f'''v_mul_u32_u24 {t0}, {4 * 3584}, {vG}
    v_lshl_add_u32 {t0}, {vC}, 1, {t0}            ; w1 voffset
    v_mul_u32_u24 {t1}, {4 * 896}, {vG}
    v_and_b32 {t2}, 7, {vC}
    v_lshl_add_u32 {t1}, {t2}, 1, {t1}
    v_lshrrev_b32 {t2}, 3, {vC}
    v_lshl_add_u32 {t1}, {t2}, 6, {t1}            ; w2 voffset
    s_lshl_b32 {sI}, s10, 2
    s_add_u32 {sI}, {sI}, {sW}
    s_waitcnt lgkmcnt(0)''')
    C0 = p.label('CV')
    e(f'''{C0}:
    ; W1F id -> ft = id/14, rem = id%14 -> byte (64*chunk + 16*rh)*3584 + 32*ft
    s_mul_i32 {sA}, {sI}, 4682
    s_lshr_b32 {sA}, {sA}, 16
    s_mul_i32 {sB}, {sA}, 14
    s_sub_u32 {sB}, {sI}, {sB}
    s_lshl_b32 {sA}, {sA}, 5
    s_lshr_b32 {sC}, {sB}, 1
    s_mul_i32 {sC}, {sC}, {64 * 3584}
    s_add_u32 {sA}, {sA}, {sC}
    s_and_b32 {sB}, {sB}, 1
    s_mul_i32 {sB}, {sB}, {16 * 3584}
    s_add_u32 {sA}, {sA}, {sB}''')
    for el in range(8):
        rho, b = el >> 1, el & 1
        e(f'''s_add_u32 {sB}, {sA}, {(32 * (rho & 1) + 2 * (rho >> 1) + b) * 3584}
        buffer_load_ushort {acc[el]}, {t0}, {rW1}, {sB} offen''')
    e(f'''; W2F id -> F = id/28, j = id%28 -> byte 32F*896 + (64*(j>>2) + 8*(j&3))*2
    s_mul_i32 {sA}, {sI}, 2341
    s_lshr_b32 {sA}, {sA}, 16
    s_mul_i32 {sB}, {sA}, 28
    s_sub_u32 {sB}, {sI}, {sB}
    s_mul_i32 {sA}, {sA}, {32 * 896}
    s_lshr_b32 {sC}, {sB}, 2
    s_lshl_b32 {sC}, {sC}, 7
    s_add_u32 {sA}, {sA}, {sC}
    s_and_b32 {sB}, {sB}, 3
    s_lshl_b32 {sB}, {sB}, 4
    s_add_u32 {sA}, {sA}, {sB}
    s_add_u32 {sB}, {sA}, {16 * 896}''')
    for el in range(8):
        e(f'buffer_load_ushort {acc[8 + el]}, {t1}, {rW2}, {sA if el < 4 else sB} offen offset:{(el & 3) * 896}')
    e(f'''s_lshl_b32 {sA}, {sI}, 10
    s_add_u32 {sB}, {sA}, {WS_W2F}
    s_add_u32 {sA}, {sA}, {WS_W1F}
    s_waitcnt vmcnt(0)''')
    for i in range(8):
        e(f'v_lshl_or_b32 {acc[16 + i]}, {acc[2 * i + 1]}, 16, {acc[2 * i]}')
    e(f'''buffer_store_dwordx4 {acc[16:20]}, {vL16}, {sWS}, {sA} offen sc1
    buffer_store_dwordx4 {acc[20:24]}, {vL16}, {sWS}, {sB} offen sc1
    s_add_u32 {sI}, {sI}, 512
    s_cmp_lt_u32 {sI}, 1568
    s_cbranch_scc1 {C0}
    v_mov_b32 {vCA}, {C_WF}''')
    signal(p, vCA, t0)
    e(f'''s_lshl_b32 {sA}, {sS}, 15
    s_lshl_b32 {sB}, {sXx}, 11
    s_add_u32 {sA}, {sA}, {sB}
    s_add_u32 {sA}, {sA}, {WS_XNB}''')
    for k in range(7):
        for rh in range(2):
            e(f'buffer_load_dwordx4 {XF[8 * k + 4 * rh:8 * k + 4 * rh + 4]}, {vQ[xnb_blk(k)]}, {sWS}, {sA} offen offset:{rh * 1024} sc1')
    for i in range(112):
        e(f'v_mov_b32 {acc[i]}, 0')
    e(f's_mov_b32 {sA}, 128')
    wait_ge(p, vCA, t0, sA, 8)
    tl(p, 1, 's100', WS_TL + 16384)
    bA = R('a', 0, 112)
    bB = R('a', 112, 112)

    def blk_load(dst, so, i):
        return f'buffer_load_dwordx4 {dst[4 * i:4 * i + 4]}, {vQ[i >> 2]}, {sWS}, {so} offen offset:{(i & 3) * 1024} sc1'
    e(f'''s_mul_i32 {sF1}, {sW}, 28672
    s_add_u32 {sF2}, {sF1}, {WS_W2F}
    s_add_u32 {sF1}, {sF1}, {WS_W1F}
    s_lshl_b32 {sC}, {sW}, 6
    s_mov_b32 {sI}, 0''')
    for i in range(28):
        e(blk_load(bA, sF1, i))
    FL = p.label('FL')
    e(f'''{FL}:
    buffer_load_dwordx2 {Bs[0:2]}, {vB1}, {rB1}, {sC} offen
    buffer_load_dwordx2 {Bs[2:4]}, {vB1}, {rB1}, {sC} offen offset:32
    s_add_u32 {sF1}, {sF1}, {4 * 28672}''')
    for i in range(28):
        a, kk = i // 14, i % 14
        e(f's_waitcnt vmcnt({29})')
        d = H[4 * a:4 * a + 4]
        e(f'v_mfma_f32_16x16x32_bf16 {d}, {bA[4 * i:4 * i + 4]}, {XF[4 * kk:4 * kk + 4]}, {0 if kk == 0 else d}')
        e(blk_load(bB, sF2, i))
    e('s_waitcnt vmcnt(28)')
    for i in range(4):
        a, b = H[2 * i], H[2 * i + 1]
        e(f'''v_cvt_pk_bf16_f32 {t0}, {a}, {b}
        v_lshlrev_b32 {a}, 16, {t0}
        v_and_b32 {b}, 0xffff0000, {t0}
        v_lshlrev_b32 {t1}, 16, {Bs[i]}
        v_and_b32 {t2}, 0xffff0000, {Bs[i]}
        v_add_f32 {a}, {a}, {t1}
        v_add_f32 {b}, {b}, {t2}
        v_cvt_pk_bf16_f32 {t0}, {a}, {b}
        v_lshlrev_b32 {a}, 16, {t0}
        v_and_b32 {b}, 0xffff0000, {t0}
        v_max_f32 {a}, 0, {a}
        v_max_f32 {b}, 0, {b}
        v_mul_f32 {a}, {a}, {a}
        v_mul_f32 {b}, {b}, {b}
        v_cvt_pk_bf16_f32 {PA[i]}, {a}, {b}''')
    for i in range(28):
        e(f's_waitcnt vmcnt({27})')
        d = acc[4 * i:4 * i + 4]
        e(f'v_mfma_f32_16x16x32_bf16 {d}, {PA[0:4]}, {bB[4 * i:4 * i + 4]}, {d}')
        e(blk_load(bA, sF1, i))
    e(f'''s_add_u32 {sF2}, {sF2}, {4 * 28672}
    s_add_u32 {sC}, {sC}, 256
    s_add_u32 {sI}, {sI}, 1
    s_cmp_lt_u32 {sI}, 14
    s_cbranch_scc1 {FL}''')

    def reduce_write(ntile, nq, rowb):
        e(f'''v_mul_u32_u24 {t0}, {4 * rowb}, {vG}
        v_lshl_add_u32 {t0}, {vC}, 2, {t0}
        s_lshl_b32 {sA}, {sW}, 15
        v_add_u32 {t0}, {sA}, {t0}''')
        u = rowb // 256
        for tt in range(ntile):
            for qt in range(nq):
                a = acc[4 * (tt * nq + qt):4 * (tt * nq + qt) + 4]
                for r in (0, 2):
                    o = (16 * qt + r) * u
                    e(f'ds_write2st64_b32 {t0}, {a[r]}, {a[r + 1]} offset0:{o} offset1:{o + u}')
            e(f'v_add_u32 {t0}, 64, {t0}')
        e('s_waitcnt lgkmcnt(0)\ns_barrier')

    def reader_setup(nunit, rowb, jbase_sgpr, rowbase_sgpr):
        mul = {56: 1171, 28: 2341}[nunit]
        for rd in range(4):
            e(f'''v_add_u32 {t0}, {256 * rd}, v0
            v_mul_u32_u24 {t1}, {mul}, {t0}
            v_lshrrev_b32 {t1}, 16, {t1}                 ; token
            v_mul_u32_u24 {t2}, {nunit}, {t1}
            v_sub_u32 {t2}, {t0}, {t2}                   ; q
            v_mul_u32_u24 {vRo[rd]}, {rowb}, {t1}
            v_lshl_add_u32 {vRo[rd]}, {t2}, 5, {vRo[rd]}
            v_add_u32 {t1}, {rowbase_sgpr}, {t1}
            v_mul_u32_u24 {vGo[rd]}, 896, {t1}
            v_and_b32 {t1}, 1, {t2}
            v_lshl_add_u32 {vGo[rd]}, {t1}, 6, {vGo[rd]}
            v_lshrrev_b32 {t2}, 1, {t2}
            v_add_u32 {t2}, {jbase_sgpr}, {t2}           ; j
            v_lshrrev_b32 {t1}, 2, {t2}
            v_lshl_add_u32 {vGo[rd]}, {t1}, 7, {vGo[rd]}
            v_and_b32 {t1}, 3, {t2}
            v_lshl_add_u32 {vGo[rd]}, {t1}, 4, {vGo[rd]}''')
        e(f'''v_cmp_gt_u32 vcc, 128, v0
        v_mov_b32 {t0}, {OOB}
        v_cndmask_b32 {vGo[3]}, {t0}, {vGo[3]}, vcc
        v_cndmask_b32 {vRo[3]}, 0, {vRo[3]}, vcc''')

    def reduce_read(rd, dst):
        e(f'v_add_u32 {t0}, 65536, {vRo[rd]}')
        for ww in range(4):
            ad = vRo[rd] if ww < 2 else t0
            for hh in range(2):
                e(f'ds_read_b128 {dst[8 * ww + 4 * hh:8 * ww + 4 * hh + 4]}, {ad} offset:{(ww & 1) * 32768 + hh * 16}')
        e('s_waitcnt lgkmcnt(0)')
        for i in range(8):
            e(f'''v_add_f32 {dst[i]}, {dst[i]}, {dst[8 + i]}
            v_add_f32 {dst[16 + i]}, {dst[16 + i]}, {dst[24 + i]}
            v_add_f32 {dst[i]}, {dst[i]}, {dst[16 + i]}''')

    def add_packed(vals, pk):
        for i in range(4):
            a, b = vals[2 * i], vals[2 * i + 1]
            e(f'''v_cvt_pk_bf16_f32 {t0}, {a}, {b}
            v_lshlrev_b32 {a}, 16, {t0}
            v_and_b32 {b}, 0xffff0000, {t0}
            v_lshlrev_b32 {t1}, 16, {pk[i]}
            v_and_b32 {t2}, 0xffff0000, {pk[i]}
            v_add_f32 {a}, {a}, {t1}
            v_add_f32 {b}, {b}, {t2}''')

    e('s_waitcnt vmcnt(0)')
    reduce_write(28, 1, 2048)
    e(f'''s_mov_b32 {sA}, 0
    s_mov_b32 {sB}, 0''')
    reader_setup(56, 2048, sA, sB)
    e(f'''s_lshl_b32 {sB}, s10, 4
    s_mul_i32 {sB}, {sB}, 896
    s_add_u32 {sB}, {sB}, {WS_BASE}''')
    for rd in range(4):
        e(f'''v_lshrrev_b32 {t1}, 11, {vRo[rd]}
        v_mul_u32_u24 {t1}, 896, {t1}
        v_sub_u32 {t1}, {vGo[rd]}, {t1}
        buffer_load_dwordx4 {PA[4 * rd:4 * rd + 4]}, {t1}, {rB2}, 0 offen''')
    for rd in range(4):
        d = XF[0:32]
        reduce_read(rd, d)
        e(f's_waitcnt vmcnt({3})' if False else 's_waitcnt vmcnt(0)')
        add_packed(d, PA[4 * rd:4 * rd + 4])
        o = XF[32 + 4 * rd:36 + 4 * rd]
        for i in range(4):
            e(f'v_cvt_pk_bf16_f32 {o[i]}, {d[2 * i]}, {d[2 * i + 1]}')
    for rd in range(4):
        e(f'buffer_store_dwordx4 {XF[32 + 4 * rd:36 + 4 * rd]}, {vGo[rd]}, {sWS}, {sB} offen sc1')
    e(f'''s_lshl_b32 {sA}, {sS}, 7
    s_add_u32 {sA}, {sA}, {C_PY}
    v_mov_b32 {vCA}, {sA}''')
    signal(p, vCA, t0)
    tl(p, 2, 's100', WS_TL + 16384)
    sCG = 's36'
    e(f"""s_cmp_ge_u32 s10, 126
    s_cbranch_scc1 EXIT
    s_mul_i32 {sS}, s10, 147
    s_lshr_b32 {sS}, {sS}, 10
    s_mul_i32 {sCG}, {sS}, 7
    s_sub_u32 {sCG}, s10, {sCG}
    v_mov_b32 {vCA}, {C_INIT}
    s_mov_b32 {sA}, {32 * NRY}""")
    wait_ge(p, vCA, t0, sA, 16)
    YB = R('a', 0, 64)
    XR, BR = XF[16:20], XF[20:24]
    YM = XF[0:16]
    vWr, vRd, vG2 = vRo[0], vRo[1], vGo[0]
    e(f"""; LDS write: w*8192 + 4g*256 + ((n&7) + 32*(n>>3))*4
    v_lshlrev_b32 {vWr}, 10, {vG}
    v_and_b32 {t0}, 7, {vC}
    v_lshl_add_u32 {vWr}, {t0}, 2, {vWr}
    v_lshrrev_b32 {t0}, 3, {vC}
    v_lshl_add_u32 {vWr}, {t0}, 7, {vWr}
    s_lshl_b32 {sA}, {sW}, 13
    v_add_u32 {vWr}, {sA}, {vWr}
    v_lshlrev_b32 {vRd}, 5, v0
    v_lshrrev_b32 {t0}, 3, v0
    v_mul_u32_u24 {vG2}, 896, {t0}
    v_and_b32 {t0}, 7, v0
    v_lshl_add_u32 {vG2}, {t0}, 4, {vG2}
    s_lshl_b32 {sA}, {sCG}, 7
    v_add_u32 {vG2}, {sA}, {vG2}""")
    J2 = p.label('J2')
    e(f"""{J2}:
    s_lshl_b32 {sA}, {sS}, 2
    v_mov_b32 {vCA}, {sA}
    s_mov_b32 {sA}, 16""")
    wait_ge(p, vCA, t0, sA, 8)
    e(f"""s_lshl_b32 {sA}, {sS}, 7
    s_add_u32 {sA}, {sA}, {C_PY}
    v_mov_b32 {vCA}, {sA}
    s_mov_b32 {sA}, 2""")
    wait_ge(p, vCA, t0, sA, 8)
    e(f"""s_mul_i32 {sA}, {sS}, {28 * 16384}
    s_lshl_b32 {sB}, {sCG}, 16
    s_add_u32 {sA}, {sA}, {sB}
    s_lshl_b32 {sB}, {sW}, 12
    s_add_u32 {sA}, {sA}, {sB}
    s_add_u32 {sA}, {sA}, {WS_YX}""")
    for tt in range(4):
        for hh in range(4):
            e(f'buffer_load_dwordx4 {YB[16 * tt + 4 * hh:16 * tt + 4 * hh + 4]}, {vL16}, {sWS}, {sA} offen offset:{hh * 1024} sc1')
        e(f's_add_u32 {sA}, {sA}, 16384')
    e(f"""s_mul_i32 {sI}, {sS}, {32 * 896}
    s_add_u32 {sB}, {sI}, {WS_BASE}
    buffer_load_dwordx4 {XR}, {vG2}, {rX}, {sI} offen
    buffer_load_dwordx4 {BR}, {vG2}, {sWS}, {sB} offen sc1
    s_lshl_b32 {sA}, {sS}, 13
    s_add_u32 {sA}, {sA}, {WS_MEMA}
    v_mov_b32 {t1}, 0""")
    load_valid(p, [f'buffer_load_dword {t2}, {t1}, {sWS}, {sA} offen sc1'], [t2], t0, 8)
    tl(p, 3, 's100', WS_TL + 16384)
    e(f"""s_lshl_b32 {sA}, {sS}, 15
    s_lshl_b32 {sB}, {sW}, 12
    s_add_u32 {sA}, {sA}, {sB}
    s_add_u32 {sA}, {sA}, {WS_PX}
    s_lshl_b32 {sF1}, {sS}, 13
    s_lshl_b32 {sB}, {sW}, 10
    s_add_u32 {sF1}, {sF1}, {sB}
    s_add_u32 {sF1}, {sF1}, {WS_PM}
    s_lshl_b32 {sF2}, {sS}, 17
    s_add_u32 {sF2}, {sF2}, {sB}
    s_lshl_b32 {sB}, {sCG}, 14
    s_add_u32 {sF2}, {sF2}, {sB}
    s_add_u32 {sF2}, {sF2}, {WS_YMA}""")
    lds_ = []
    for hh in range(4):
        for qt in range(2):
            lds_.append(f'buffer_load_dwordx4 {PA[8 * hh + 4 * qt:8 * hh + 4 * qt + 4]}, {vQ[4 * qt]}, {sWS}, {sA} offen offset:{hh * 1024} sc1')
    lds_ += [f'buffer_load_dwordx4 {PA[32 + 4 * qt:36 + 4 * qt]}, {vQ[qt]}, {sWS}, {sF1} offen sc1' for qt in range(2)]
    lds_ += [f'buffer_load_dwordx4 {YM[4 * tt:4 * tt + 4]}, {vQ[tt]}, {sWS}, {sF2} offen sc1' for tt in range(4)]
    load_valid(p, lds_, [PA[i] for i in range(40)] + [YM[i] for i in range(16)], t0, 1)
    for hh in range(5):
        for tt in range(4):
            for qt in range(2):
                d = acc[4 * (2 * tt + qt):4 * (2 * tt + qt) + 4]
                bb = YB[16 * tt + 4 * hh:16 * tt + 4 * hh + 4] if hh < 4 else YM[4 * tt:4 * tt + 4]
                e(f'v_mfma_f32_16x16x32_bf16 {d}, {PA[8 * hh + 4 * qt:8 * hh + 4 * qt + 4]}, {bb}, {0 if hh == 0 else d}')
    for tt in range(4):
        if tt:
            e(f'v_add_u32 {t0}, {32 * tt}, {vWr}')
        for qt in range(2):
            a_ = acc[4 * (2 * tt + qt):4 * (2 * tt + qt) + 4]
            for r in (0, 2):
                e(f'ds_write2st64_b32 {t0 if tt else vWr}, {a_[r]}, {a_[r + 1]} offset0:{16 * qt + r} offset1:{16 * qt + r + 1}')
    e('s_waitcnt lgkmcnt(0)\ns_barrier')
    d = acc[32:64]
    for ww in range(4):
        for hh in range(2):
            e(f'ds_read_b128 {d[8 * ww + 4 * hh:8 * ww + 4 * hh + 4]}, {vRd} offset:{ww * 8192 + hh * 16}')
    e('s_waitcnt lgkmcnt(0)\ns_barrier')
    for i in range(8):
        e(f"""v_add_f32 {d[i]}, {d[i]}, {d[8 + i]}
        v_add_f32 {d[16 + i]}, {d[16 + i]}, {d[24 + i]}
        v_add_f32 {d[i]}, {d[i]}, {d[16 + i]}""")
    add_packed(d, XR)
    add_packed(d, BR)
    o = acc[64:68]
    for i in range(4):
        e(f'v_cvt_pk_bf16_f32 {o[i]}, {d[2 * i]}, {d[2 * i + 1]}')
    e(f"""buffer_store_dwordx4 {o}, {vG2}, {rO}, {sI} offen {OSC[0]}
    s_add_u32 {sS}, {sS}, 18
    s_cmp_lt_u32 {sS}, 64
    s_cbranch_scc1 {J2}""")
    if TL_ON[0]:
        e('s_waitcnt vmcnt(0)')
    tl(p, 4, 's100', WS_TL + 16384)
    e('s_endpgm')
```

```python
import sys
from asmlib import *
from layout import *
import team, workers, prep
from team import *

NAME = 'parallel_sum__memory_aug_recurrent_mem_tr__dense_activation_squared_relu__prompt'
MAIN_LDS = 131072


def ready_wait(p, kind, lnmask=31):
    e = p.e
    L, W = p.label('RW'), p.label('RB')
    e(f"""s_cmp_lg_u32 {sWAVE}, 0
    s_cbranch_scc1 {W}
    s_mov_b32 s23, {WS_CNT}
    s_and_b32 s22, {sIDX}, 7
    s_lshl_b32 s22, s22, 7
    s_add_u32 s22, s22, {C_LN}
    v_and_b32 v1, {lnmask}, v0
    v_lshlrev_b32 v1, 2, v1
    v_add_u32 v1, s22, v1
    v_and_b32 v3, 15, v0
    v_min_u32 v3, 13, v3
    v_lshlrev_b32 v3, 2, v3""")
    if kind == 'one':
        e(f"""s_lshl_b32 s21, s21, 7
        s_add_u32 s21, s21, {C_MAT}
        v_add_u32 v3, s21, v3
        v_cmp_gt_u32 vcc, 32, v0
        v_cndmask_b32 v1, v3, v1, vcc""")
    if kind == 'vo':
        e(f"""v_lshrrev_b32 v2, 4, v0
        v_lshl_add_u32 v2, v2, 8, v3
        v_add_u32 v2, {C_MAT + 128}, v2""")
    e(f"""s_mov_b32 s22, 200000
    {L}:
    buffer_load_dword v3, v1, s[4:7], s23 offen sc1""")
    if kind == 'vo':
        e("""buffer_load_dword v5, v2, s[4:7], s23 offen sc1
        buffer_load_dword v6, v2, s[4:7], s23 offen offset:1024 sc1
        buffer_load_dword v7, v2, s[4:7], s23 offen offset:2048 sc1
        buffer_load_dword v8, v2, s[4:7], s23 offen offset:3072 sc1""")
    e(f"""s_sub_u32 s22, s22, 1
    s_cmp_gt_i32 s22, 0
    s_cbranch_scc0 {W}
    s_waitcnt vmcnt(0)""")
    if kind == 'vo':
        e('v_min3_u32 v3, v3, v5, v6\nv_min3_u32 v3, v3, v7, v8')
    e(f"""v_cmp_ne_u32 vcc, 1, v3
    s_cbranch_vccz {W}
    s_sleep 4
    s_branch {L}
    {W}:
    s_barrier""")


def done_flag(p, off_sgpr, nrep, sh=7):
    e = p.e
    W, L, K, Z = p.label('DW'), p.label('DL'), p.label('DK'), p.label('DZ')
    e(f"""s_cmp_lg_u32 {sWAVE}, 0
    s_cbranch_scc1 {W}
    v_readfirstlane_b32 s92, v253
    s_cmp_eq_u32 s92, 1
    s_cbranch_scc1 {K}
    v_mov_b32 v250, 1
    v_mov_b32 v251, 20
    s_mov_b64 exec, 1
    buffer_atomic_add v250, v251, s[84:87], 0 offen sc0
    s_mov_b64 exec, -1
    s_mov_b32 s91, 200000
    s_waitcnt vmcnt(0)
    v_readfirstlane_b32 s92, v250
    s_cmp_lg_u32 s92, 0
    s_cbranch_scc1 {L}
    v_lshlrev_b32 v250, 4, v0
    v_mov_b32 v244, 0
    v_mov_b32 v245, 0
    v_mov_b32 v246, 0
    v_mov_b32 v247, 0
    s_mov_b32 s92, {WS_CNT}
    {Z}:
    buffer_store_dwordx4 v[244:247], v250, s[4:7], s92 offen sc1
    s_add_u32 s92, s92, 1024
    s_cmp_lt_u32 s92, {WS_CNT + CNT_BYTES}
    s_cbranch_scc1 {Z}
    v_mov_b32 v253, 1
    s_waitcnt vmcnt(0)
    buffer_store_dword v253, v252, s[84:87], 0 offen sc1
    s_branch {K}
    {L}:
    s_sleep 4
    buffer_load_dword v253, v252, s[84:87], 0 offen sc1
    s_sub_u32 s91, s91, 1
    s_waitcnt vmcnt(0)
    v_readfirstlane_b32 s92, v253
    s_cmp_eq_u32 s92, 1
    s_cbranch_scc1 {K}
    s_cmp_gt_i32 s91, 0
    s_cbranch_scc1 {L}
    {K}:
    v_lshlrev_b32 v250, {sh}, v0
    v_add_u32 v250, {off_sgpr}, v250
    v_mov_b32 v251, {OOB}
    v_cmp_gt_u32 vcc, {nrep}, v0
    v_cndmask_b32 v250, v251, v250, vcc
    v_mov_b32 v251, 1
    s_mov_b32 s92, {WS_CNT}
    buffer_store_dword v251, v250, s[4:7], s92 offen sc1
    {W}:""")


def main_kernel(p, name, cfg):
    e = p.e
    srd = prep.srd
    WB = 448 * 8192
    e(f'{name}:')
    e(f"""s_cmp_ge_u32 s2, 256
    s_cbranch_scc1 EXIT""")
    srd(e, 84, 104, 256)
    srd(e, 4, 112, WS_BYTES)
    srd(e, 12, 32, WB)
    srd(e, 16, 40, WB)
    srd(e, 40, 16, WB)
    srd(e, 44, 24, WB)
    srd(e, 48, 0, S * D * 2)
    e(f"""v_lshrrev_b32 v1, 6, v0
    v_readfirstlane_b32 s9, v1
    s_getreg_b32 s88, hwreg(HW_REG_XCC_ID)
    s_and_b32 s88, s88, 7""")
    if cfg.fb:
        e("""s_bfe_u32 s20, s2, 0x10003
        s_sub_u32 s20, 7, s20
        s_cmp_eq_u32 s88, 7
        s_cselect_b32 s88, s20, s88""")
    e(f"""; optimistic slot (die, s2>>3); the claim is checked after the first jobs
    s_lshr_b32 s21, s2, 3
    s_mov_b32 {sSLOW}, 0
    s_lshl_b32 s20, s88, 2
    s_add_u32 s20, s20, 160
    s_lshl_b32 s93, 1, s21
    v_mov_b32 v249, s93
    v_mov_b32 v248, {OOB}
    v_mov_b32 v247, s20
    v_cmp_eq_u32 vcc, 0, v0
    v_cndmask_b32 v248, v248, v247, vcc
    v_mov_b32 v252, 16
    v_mov_b32 v253, 0
    s_waitcnt lgkmcnt(0)""")
    tl(p, 0, 's2', WS_TL)
    claim = 'buffer_atomic_or v249, v248, s[84:87], 0 offen sc0'
    e(f"""SLOT:
    s_sub_u32 s22, s88, {cfg.xcc + 1}
    s_and_b32 s22, s22, 7
    s_cmp_eq_u32 s22, 7
    s_cbranch_scc1 PREP_LN
    s_mov_b32 s94, s21
    s_mul_i32 s100, s21, 7
    s_add_u32 s100, s100, s22
    s_add_u32 s100, s100, 32
    s_lshl_b32 s20, s22, 5
    s_add_u32 s20, s20, s21             ; job
    s_mul_i32 s10, s20, 4682
    s_lshr_b32 s10, s10, 16             ; head
    s_mul_i32 s21, s10, 14
    s_sub_u32 s20, s20, s21
    s_lshr_b32 s11, s20, 1              ; chunk
    s_and_b32 s33, s20, 1
    s_lshl_b32 s89, s10, 8
    s_lshl_b32 s20, s20, 2
    s_add_u32 s89, s89, s20
    s_add_u32 s89, s89, {C_MAT}
    s_add_u32 s90, s89, 128""")
    tl(p, 0, 's100', WS_TL + 16384)

    if cfg.sb:
        assert prep.NBUILD == 4
        e(f"""s_mul_i32 s39, s22, 14
        s_add_u32 s39, s39, s94
        s_sub_u32 s39, s39, 18
        s_cmp_lt_u32 s94, 18
        s_cselect_b32 s39, 96, s39
        s_mul_i32 s36, s39, 43
        s_lshr_b32 s36, s36, 8
        s_mul_i32 s37, s36, 6
        s_sub_u32 s39, s39, s37
        s_lshr_b32 s37, s39, 1
        s_add_u32 s37, s37, {prep.NBUILD}
        s_and_b32 s38, s39, 1
        s_lshl_b32 s89, s39, 2
        s_lshl_b32 s39, s36, 8
        s_add_u32 s89, s89, s39
        s_add_u32 s89, s89, {C_MAT + 8 * prep.NBUILD}""")

        def tn(t0, t1, vL):
            return [f'v_lshrrev_b32 {t0}, 2, {vL}', f'v_lshlrev_b32 {t0}, 13, {t0}', f'v_and_b32 {t1}, 3, {vL}',
                    f'v_lshl_add_u32 {t0}, {t1}, 7, {t0}', 's_lshl_b32 s31, s37, 19', 's_lshl_b32 s32, s9, 17',
                    's_add_u32 s31, s31, s32', 's_lshl_b32 s32, s36, 9', 's_add_u32 s31, s31, s32',
                    's_cmp_ge_u32 s36, 16', f's_cselect_b32 s31, {OOB}, s31']
        tn.rA, tn.rB = 's[40:43]', 's[40:43]'
    else:
        def tn(t0, t1, vL):
            return [f'v_bfe_u32 {t0}, {vL}, 2, 3', f'v_lshlrev_b32 {t0}, 13, {t0}', f'v_and_b32 {t1}, 3, {vL}',
                    f'v_lshl_add_u32 {t0}, {t1}, 7, {t0}', 's_lshl_b32 s31, s11, 19', 's_lshl_b32 s32, s33, 18',
                    's_add_u32 s31, s31, s32', 's_lshl_b32 s32, s9, 16', 's_add_u32 s31, s31, s32', 's_add_u32 s31, s31, s21']
        tn.rA, tn.rB = 's[40:43]', 's[44:47]'
    prep.gemm_half(p, 1, 's[12:15]', 's[16:19]', tn, 2)
    e('buffer_load_dword v253, v252, s[84:87], 0 offen sc1')

    def sig1(n):
        e(f's_waitcnt vmcnt({n})\ns_barrier')
        done_flag(p, 's90', 1)
        if TL_ON[0]:
            e('s_memrealtime s[76:77]')
    if cfg.sb:
        e(claim)
        sig1(1)
        e("""s_cmp_ge_u32 s36, 16
        s_cbranch_scc1 JOB2_SKIP
        s_mov_b32 s10, s36
        s_mov_b32 s11, s37
        s_mov_b32 s33, s38""")
        prep.gemm_half(p, 0, 's[40:43]', 's[44:47]', None, 5)
    else:
        if cfg.dele:
            e("""s_cmp_eq_u32 s94, 0
        s_cbranch_scc1 JOB2_OFF
        s_cmp_eq_u32 s94, 3
        s_cbranch_scc1 JOB2_OFF
        s_cmp_eq_u32 s100, 74
        s_cbranch_scc1 JOB2_OFF
        s_cmp_lg_u32 s100, 77
        s_cbranch_scc1 JOB2
        JOB2_OFF:""")
            e(claim)
            sig1(1)
            e('s_branch JOB2_SKIP\nJOB2:')
        prep.gemm_half(p, 0, 's[40:43]', 's[44:47]', None, 5, sig1, claim)
    e('s_waitcnt vmcnt(0)\ns_barrier')
    done_flag(p, 's89', 1)
    e('JOB2_SKIP:\ns_waitcnt vmcnt(0)')
    if TL_ON[0]:
        e(f's_lshl_b32 s98, s2, 6\ns_add_u32 s98, s98, {WS_TL}\nv_mov_b32 v255, 0\ns_waitcnt lgkmcnt(0)')
        for i in range(2, 7):
            e(f'v_mov_b32 v254, s{68 + 2 * i}\nbuffer_store_dword v254, v255, s[4:7], s98 offen offset:{4 * i}')
    e('s_branch PREP_DONE\nPREP_LN:')
    e('s_mov_b32 s100, s21')
    tl(p, 0, 's100', WS_TL + 16384)
    if cfg.dele:
        e(f"""s_cmp_lt_u32 s21, 16
        s_cbranch_scc1 LN_A
        s_sub_u32 s20, s21, 16
        s_cmp_ge_u32 s20, 7
        s_cselect_b32 s22, {7 * 32 - 3}, 0
        s_lshl_b32 s20, s20, 5
        s_sub_u32 s20, s20, s22
        s_cmp_eq_u32 s21, 30
        s_cselect_b32 s20, 6, s20
        s_cmp_eq_u32 s21, 31
        s_cselect_b32 s20, 102, s20
        s_mul_i32 s10, s20, 4682
        s_lshr_b32 s10, s10, 16
        s_mul_i32 s21, s10, 14
        s_sub_u32 s20, s20, s21
        s_lshr_b32 s11, s20, 1
        s_and_b32 s33, s20, 1
        s_lshl_b32 s89, s10, 8
        s_lshl_b32 s20, s20, 2
        s_add_u32 s89, s89, s20
        s_add_u32 s89, s89, {C_MAT}
        s_mov_b32 s90, {OOB}
        s_branch JOB2
        LN_A:""")
    e(claim)
    if cfg.sb:
        e("""s_cmp_ge_u32 s21, 16
        s_cbranch_scc1 LN_A
        s_mov_b32 s10, s21""")
        prep.qk_build(p, 's[40:43]', 's[44:47]')
        e(f"""buffer_load_dword v253, v252, s[84:87], 0 offen sc1
        s_lshl_b32 s89, s10, 8
        s_add_u32 s89, s89, {C_MAT}
        s_waitcnt vmcnt(0) lgkmcnt(0)
        s_barrier""")
        done_flag(p, 's89', 2 * prep.NBUILD, 2)
        e("""s_branch PREP_DONE
        LN_A:
        s_sub_u32 s21, s21, 16""")
    e(f"""s_lshl_b32 s89, s21, 2
    s_add_u32 s89, s89, {C_LN}
    s_lshl_b32 s10, s21, 2
    s_add_u32 s10, s10, s9
    s_cmp_ge_u32 s21, 16
    s_cselect_b32 s90, 0, 8
    s_cselect_b32 s10, 0, s10
    s_cbranch_scc1 LN_END
    LN_LOOP:""")
    mk = f"""
    v_and_b32 v250, 63, v0
    v_lshlrev_b32 v250, 4, v250
    v_mov_b32 v244, -1
    v_mov_b32 v245, -1
    v_mov_b32 v246, -1
    v_mov_b32 v247, -1
    s_lshl_b32 s20, s10, 12
    s_add_u32 s20, s20, {WS_MEMA}
    """ + '\n'.join(f'buffer_store_dwordx4 v[244:247], v250, s[4:7], s20 offen offset:{1024 * i} sc1' for i in range(4))
    prep.ln_job(p, 'sc1', ([], mk))
    e('LN_END:\nbuffer_load_dword v253, v252, s[84:87], 0 offen sc1\ns_waitcnt vmcnt(0)\ns_barrier')
    done_flag(p, 's89', 's90')
    e('s_cmp_ge_u32 s10, 64\ns_cbranch_scc1 F_CONT')
    e(f"""PREP_DONE:
    v_mov_b32 v4, 0
    s_cmp_lg_u32 s9, 0
    s_cbranch_scc1 EL_WAIT
    v_readfirstlane_b32 s20, v249
    s_and_b32 s20, s20, s93
    s_mov_b32 s21, -1
    s_cbranch_scc0 EL_PUB
    s_lshl_b32 s20, s88, 2
    s_add_u32 s20, s20, 192
    v_mov_b32 v1, 1
    v_mov_b32 v2, s20
    s_mov_b64 exec, 1
    buffer_atomic_add v1, v2, s[84:87], 0 offen sc0
    s_waitcnt vmcnt(0)
    s_mov_b64 exec, -1
    v_readfirstlane_b32 s94, v1
    v_and_b32 v1, 15, v0
    v_lshlrev_b32 v1, 2, v1
    s_mov_b32 s22, 200000
    EL_SUM:
    buffer_load_dword v3, v1, s[84:87], 0 offen offset:160 sc1
    s_waitcnt vmcnt(0)
    s_mov_b32 s23, 0""")
    for i in range(16):
        e(f'v_readlane_b32 s{24 + i}, v3, {i}')
    for i in range(8):
        e(f's_bcnt1_i32_b32 s20, s{24 + i}\ns_add_u32 s23, s23, s20\ns_add_u32 s23, s23, s{32 + i}')
    e(f"""s_sub_u32 s22, s22, 1
    s_cmp_gt_i32 s22, 0
    s_cbranch_scc0 EL_BAD
    s_cmp_lt_u32 s23, 256
    s_cbranch_scc1 EL_SUM
    v_readlane_b32 s95, v3, s88
    s_mov_b32 s21, 0
    s_bcnt0_i32_b32 s20, s95
    s_cmp_lt_u32 s94, s20
    s_cbranch_scc1 EL_BIT
    v_mov_b32 v1, 1
    v_mov_b32 v2, 4
    s_mov_b64 exec, 1
    buffer_atomic_add v1, v2, s[84:87], 0 offen sc0
    s_waitcnt vmcnt(0)
    s_mov_b64 exec, -1
    v_readfirstlane_b32 s22, v1
    s_mov_b32 s21, 256""")
    for i in range(8):
        e(f"""s_bcnt0_i32_b32 s20, s{24 + i}
        s_min_u32 s23, s20, s{32 + i}
        s_sub_u32 s20, s20, s23
        s_add_u32 s94, s23, s22
        s_mov_b32 s95, s{24 + i}
        s_mov_b32 s88, {i}
        s_cmp_lt_u32 s22, s20
        s_cbranch_scc1 EL_BIT
        s_sub_u32 s22, s22, s20""")
    e(f"""EL_BAD:
    s_mov_b32 s21, -2
    s_branch EL_PUB
    EL_BIT:
    s_ff0_i32_b32 s20, s95
    s_bitset1_b32 s95, s20
    s_sub_u32 s94, s94, 1
    s_cbranch_scc0 EL_BIT
    s_and_b32 s20, s20, 31
    s_add_u32 s21, s21, s20
    s_lshl_b32 s20, s88, 16
    s_add_u32 s21, s21, s20
    EL_PUB:
    v_mov_b32 v1, s21
    ds_write_b32 v4, v1
    s_waitcnt lgkmcnt(0)
    EL_WAIT:
    s_barrier
    ds_read_b32 v1, v4
    s_waitcnt lgkmcnt(0)
    v_readfirstlane_b32 s21, v1
    s_cmp_eq_u32 s21, -1
    s_cbranch_scc1 EL_OK
    s_cmp_eq_u32 s21, -2
    s_cbranch_scc1 EXIT
    s_barrier
    s_bfe_u32 {sSLOW}, s21, 0x10008
    s_bfe_u32 s88, s21, 0x30010
    s_and_b32 s21, s21, 31
    s_mov_b32 s93, 0
    v_mov_b32 v248, {OOB}
    s_branch SLOT
    EL_OK:""")
    tl(p, 1, 's2', WS_TL)
    srd(e, 16, 8, 7168)
    e(f's_mov_b32 {sIDX}, s100\ns_waitcnt lgkmcnt(0)')
    e(f"""s_cmp_ge_u32 {sIDX}, 32
    s_cbranch_scc1 WORKER
    s_and_b32 {sH}, {sIDX}, 15""")
    if cfg.diag:
        for i in range(NSTAMP):
            e(f's_mov_b32 s{STAMP0 + 2 * i}, 0')
    e(f"""s_cmp_ge_u32 {sIDX}, 16
    s_cbranch_scc1 ROLE_VO
    s_barrier""")
    wave_dispatch(e, 'QK')
    e(f"""ROLE_VO:
    s_cmp_ge_u32 {sH}, 14
    s_cbranch_scc1 ROLE_EN""")
    e('s_barrier')
    wave_dispatch(e, 'VO')
    e(f"""ROLE_EN:
    v_lshlrev_b32 v1, 7, v0
    s_and_b32 s20, {sH}, 1
    s_mul_i32 s20, s20, {9 * 32768}
    s_add_u32 s20, s20, {WS_MEMR}""")
    for i in range(9):
        e(f'buffer_load_dword v9, v1, s[4:7], s20 offen sc1\ns_add_u32 s20, s20, 32768')
    e('s_waitcnt vmcnt(0)')
    ready_wait(p, 'ln', 15)
    wave_dispatch(e, 'EN')
    e(f"""WORKER:
    s_sub_u32 s8, s8, 32
    s_cmp_ge_u32 s8, 96
    s_cbranch_scc1 ROLE_F
    s_cmp_ge_u32 s8, 48
    s_cselect_b32 s20, 48, 0
    s_sub_u32 s20, s8, s20            ; y
    s_cmp_ge_u32 s20, 42
    s_cbranch_scc1 WK_HI
    s_cmp_ge_u32 s20, 21
    s_cselect_b32 s21, 21, 0
    s_cselect_b32 s10, 7, 0
    s_sub_u32 s20, s20, s21
    s_mul_i32 s11, s20, 37
    s_lshr_b32 s11, s11, 8            ; replica
    s_mul_i32 s21, s11, 7
    s_sub_u32 s20, s20, s21
    s_add_u32 s10, s10, s20           ; head
    s_branch WK_GO
    WK_HI:
    s_cmp_ge_u32 s20, 45
    s_cselect_b32 s10, 15, 14
    s_cselect_b32 s21, 45, 42
    s_sub_u32 s11, s20, s21
    WK_GO:
    s_lshl_b32 s21, s10, 1
    s_cmp_ge_u32 s8, 48
    s_cbranch_scc1 ROLE_T
    s_add_u32 s21, s21, 1""")
    ready_wait(p, 'one', 15)
    tl(p, 5, 's100', WS_TL + 16384)
    workers.yt_worker(p, 0)
    e('EXIT:\ns_endpgm')
    e('ROLE_T:')
    ready_wait(p, 'one')
    workers.yt_worker(p, 1)
    e(f"""ROLE_F:
    s_cmp_ge_u32 s8, 112
    s_cbranch_scc1 F_CONT
    s_sub_u32 s10, s8, 80
    s_lshl_b32 s89, s10, 2
    s_add_u32 s89, s89, {C_LN}
    s_mov_b32 s90, 8
    s_lshl_b32 s10, s10, 2
    s_add_u32 s10, s10, s9
    s_branch LN_LOOP
    F_CONT:""")
    ready_wait(p, 'ln')
    e('s_sub_u32 s10, s8, 96')
    workers.f_worker(p)
    for role, nm in ((0, 'QK'), (1, 'VO'), (2, 'EN')):
        for w in range(4):
            e(f'{nm}{w}:')
            team_wave(p, role, w, cfg)


def build(cfg):
    TL_ON[0] = bool(cfg.tl)
    DBG_TL[0] = [(0, 0, 6), (16, 5, 7), (0, 5, 8), (16, 1, 9), (0, 1, 10), (9, 1, 11), (32, 2, 12), (16, 3, 13), (80, 4, 14), (191, 4, 15)] if cfg.dtl else None
    workers.MALL[0] = cfg.mall
    workers.GOV[:] = [cfg.gostep + 1, cfg.gostep2 + 1]
    workers.OSC[0] = ['', 'sc1', 'nt', 'sc0 sc1'][cfg.osc]
    hdr = open('cdna_kernels/%s.s.ref' % NAME).read().split('; Override launch')[0]
    hdr += '; @launch grid=(256,1,1) block=(256,1,1) lds=%d\n' % max(prep.H_LDS, prep.P_LDS, L_END, MAIN_LDS)
    hdr += '.amdgcn_target "amdgcn-amd-amdhsa--gfx950"\n.text\n'
    out = hdr
    p = Prog()
    main_kernel(p, NAME + '_kernel', cfg)
    out += '.globl %s_kernel\n.p2align 8\n.type %s_kernel,@function\n' % (NAME, NAME) + p.text()
    out += prep.KD % (NAME + '_kernel', 512)
    out = out.replace('\n    ', '\n')
    return out


def parse(args):
    cfg = Cfg()
    cfg.xcc = 7
    cfg.tl = 0
    cfg.fb = 0
    cfg.dtl = 0
    cfg.dele = 0
    cfg.exit0 = 0
    cfg.osc = 0
    cfg.mall = 0
    for a in args:
        k, v = a.split('=')
        assert hasattr(cfg, k), k
        setattr(cfg, k, int(v))
    return cfg


if __name__ == '__main__':
    open(sys.argv[1], 'w').write(build(parse(sys.argv[2:])))
```

```python
import re

TRANS = ('v_exp_f32', 'v_log_f32', 'v_rcp_f32', 'v_rsq_f32', 'v_sqrt_f32', 'v_sin_f32', 'v_cos_f32',
         'v_rcp_iflag_f32')


def _regs(tok):
    tok = tok.strip()
    tok = tok.lstrip('-')
    m = re.fullmatch(r'abs\((.*)\)', tok) or re.fullmatch(r'\|(.*)\|', tok)
    if m:
        tok = m.group(1)
    m = re.fullmatch(r'([vas])(\d+)', tok)
    if m:
        k, n = m.group(1), int(m.group(2))
        return [(k, n)]
    m = re.fullmatch(r'([vas])\[(\d+):(\d+)\]', tok)
    if m:
        k = m.group(1)
        return [(k, i) for i in range(int(m.group(2)), int(m.group(3)) + 1)]
    if tok in ('vcc', 'vcc_lo', 'vcc_hi'):
        return [('s', 'vcc')]
    if tok in ('exec', 'exec_lo', 'exec_hi'):
        return [('s', 'exec')]
    if tok == 'm0':
        return [('s', 'm0')]
    return []


def _split_ops(s):
    out, depth, cur = [], 0, ''
    for ch in s:
        if ch in '[(':
            depth += 1
        if ch in '])':
            depth -= 1
        if ch == ',' and depth == 0:
            out.append(cur)
            cur = ''
        else:
            cur += ch
    if cur.strip():
        out.append(cur)
    return out


class Ins:
    __slots__ = ('text', 'op', 'dst', 'src', 'cls', 'passes', 'dpp', 'srcC', 'srcAB', 'wide_store', 'sdata',
                 'nop', 'label', 'target', 'lds')

    def __init__(self, text):
        self.text = text
        t = text.split(';')[0].strip()
        self.label = None
        self.target = None
        self.op = ''
        self.dst, self.src = [], []
        self.cls = 'other'
        self.passes = 0
        self.dpp = False
        self.srcC, self.srcAB = [], []
        self.wide_store = False
        self.sdata = []
        self.nop = 1
        self.lds = False
        if not t:
            self.cls = 'none'
            return
        if t.endswith(':'):
            self.cls = 'label'
            self.label = t[:-1]
            return
        if t.startswith('.'):
            self.cls = 'none'
            return
        parts = t.split(None, 1)
        op = parts[0]
        rest = parts[1] if len(parts) > 1 else ''
        self.op = op
        ops = _split_ops(rest)
        mods = ''
        if ops:
            last = ops[-1].strip().split(None, 1)
            ops[-1] = last[0] if last else ''
            mods = last[1] if len(last) > 1 else ''
        R = [_regs(o) for o in ops]
        flat = lambda l: [x for y in l for x in y]
        base = re.sub(r'_(e32|e64|dpp|sdwa)$', '', op)
        if op == 's_nop':
            self.cls = 'nop'
            self.nop = int(ops[0], 0) + 1
        elif op.startswith('s_cbranch') or op == 's_branch':
            self.cls = 'branch'
            self.target = ops[0].strip()
            if 'vcc' in op:
                self.src = [('s', 'vcc')]
        elif op.startswith('v_mfma') or op.startswith('v_smfmac'):
            self.cls = 'mfma'
            self.passes = 8 if '32x32' in op else 4
            self.dst = R[0]
            if op.startswith('v_smfmac'):
                self.srcAB = R[1] + R[2] + R[3]
                self.srcC = R[0]
            else:
                self.srcAB = R[1] + R[2]
                self.srcC = R[3]
            self.src = self.srcAB + self.srcC
        elif op.startswith('v_'):
            self.cls = 'trans' if base in TRANS else 'valu'
            self.dpp = ('quad_perm' in mods or 'row_' in mods or op.endswith('_dpp'))
            if base.startswith('v_cmpx'):
                self.dst = R[0] + [('s', 'exec')]
                self.src = flat(R[1:])
            elif base in ('v_permlane16_swap_b32', 'v_permlane32_swap_b32', 'v_swap_b32'):
                self.dst = R[0] + R[1]
                self.src = R[0] + R[1]
                if 'permlane' in base:
                    self.cls = 'permlane'
            elif base in ('v_add_co_u32', 'v_sub_co_u32', 'v_addc_co_u32', 'v_subb_co_u32', 'v_subrev_co_u32'):
                self.dst = R[0] + R[1]
                self.src = flat(R[2:])
            else:
                self.dst = R[0]
                self.src = flat(R[1:])
                if base.startswith('v_fmac') or base.startswith('v_pk_fmac') or base.startswith('v_dot2c') or self.dpp \
                        or base == 'v_writelane_b32':
                    self.src = self.src + R[0]
                if base in ('v_readfirstlane_b32', 'v_readlane_b32'):
                    self.cls = 'readlane'
        elif op.startswith('buffer_') or op.startswith('global_'):
            self.cls = 'vmem'
            allm = ' ' + mods + ' '
            self.lds = ' lds ' in allm or '_lds_' in op
            if op in ('buffer_wbl2', 'buffer_inv'):
                pass
            elif 'store' in op:
                self.src = flat(R)
                self.sdata = R[0] if op.startswith('buffer_') else R[1]
                self.wide_store = op.endswith('x4') or op.endswith('x3')
            elif 'atomic' in op:
                self.src = flat(R)
                if ' sc0 ' in allm:
                    self.dst = R[0]
            elif self.lds:
                self.src = flat(R) + [('s', 'm0')]
            else:
                self.dst = R[0]
                self.src = flat(R[1:])
                if 'd16' in op:
                    self.src += R[0]
        elif op.startswith('ds_'):
            self.cls = 'ds'
            if op.startswith('ds_read') or 'permute' in op or 'swizzle' in op or op.endswith('_rtn_u32') or op.endswith('_rtn_f32'):
                self.dst = R[0]
                self.src = flat(R[1:])
            else:
                self.src = flat(R)
        elif op.startswith('s_'):
            self.cls = 'salu'
            if op.startswith('s_cmp') or op.startswith('s_bitcmp') or op in ('s_waitcnt', 's_barrier', 's_endpgm',
                                                                               's_sleep', 's_setprio'):
                self.src = flat(R)
            else:
                self.dst = R[0] if R else []
                self.src = flat(R[1:])
                if 'saveexec' in op:
                    self.dst = self.dst + [('s', 'exec')]


def _isv(r):
    return r[0] in 'va'


def required(p, c):
    need = 0
    pd = set(p.dst)
    valu_like = ('valu', 'trans', 'permlane', 'readlane')
    if p.cls in valu_like:
        pv = {r for r in pd if _isv(r)}
        ps = {r for r in pd if r[0] == 's'}
        if c.cls == 'mfma' and pv & set(c.src):
            need = max(need, 2)
        if c.cls in valu_like and c.dpp and pv & set(c.src):
            need = max(need, 2)
        if c.cls == 'permlane' and pv & set(c.src):
            need = max(need, 2)
        if c.cls == 'readlane' and pv & set(c.src):
            need = max(need, 1)
        if p.cls == 'trans' and c.cls in valu_like + ('mfma',) and c.cls != 'trans' and pv & set(c.src):
            need = max(need, 1)
        if ps:
            if c.cls == 'vmem' and ps & set(c.src):
                need = max(need, 5)
            if c.cls in valu_like and ps & set(c.src):
                need = max(need, 4 if c.cls == 'readlane' else 2)
            if ('s', 'exec') in ps:
                if c.cls == 'mfma' or c.cls in ('readlane', 'permlane'):
                    need = max(need, 4)
                if c.dpp:
                    need = max(need, 5)
            if c.cls == 'salu' and ps & set(c.src):
                need = max(need, 1)
    if p.cls == 'mfma':
        big = {4: 8, 8: 12}[p.passes]
        part = {4: 6, 8: 10}[p.passes]
        war = {4: 3, 8: 7}[p.passes]
        if c.cls == 'mfma':
            if pd & set(c.srcAB):
                need = max(need, big)
            if pd & set(c.srcC):
                if not (c.srcC == p.dst and c.passes == p.passes):
                    need = max(need, part)
            elif pd & set(c.dst):
                need = max(need, part)
        elif c.cls in valu_like + ('vmem', 'ds'):
            if pd & (set(c.src) | set(c.dst)):
                need = max(need, big)
            if c.cls in valu_like and set(p.srcC) & set(c.dst):
                need = max(need, war)
    if p.cls == 'vmem' and p.wide_store and set(p.sdata) & set(c.dst):
        need = max(need, 2)
    if p.cls == 'salu' and ('s', 'm0') in pd and c.cls == 'vmem' and c.lds:
        need = max(need, 1)
    if p.cls == 'salu' and ('s', 'exec') in pd and c.dpp:
        need = max(need, 0)
    return need


WINDOW = 14


def _gap_need(hist, c):
    miss = 0
    seq = hist + [c]
    n = len(hist)
    for i in range(n - 1, -1, -1):
        need = required(seq[i], c)
        if not need:
            continue
        t, last_m = 0, (0, seq[i].passes) if seq[i].cls == 'mfma' else None
        prev = seq[i]
        for q in seq[i + 1:]:
            t += prev.nop
            if q.cls == 'mfma':
                if last_m is not None and TIME_MODEL[0]:
                    t = max(t, last_m[0] + last_m[1])
                last_m = (t, q.passes)
            prev = q
        if t - 1 < need:
            t2, last_m = 0, (0, seq[i].passes) if seq[i].cls == 'mfma' else None
            prev = seq[i]
            for q in seq[i + 1:-1]:
                t2 += prev.nop
                if q.cls == 'mfma':
                    if last_m is not None and TIME_MODEL[0]:
                        t2 = max(t2, last_m[0] + last_m[1])
                    last_m = (t2, q.passes)
                prev = q
            t2 += prev.nop
            miss = max(miss, need - (t2 - 1))
    return miss


TIME_MODEL = [True]


def hazard_pass(lines):
    ins = [Ins(l) for l in lines]
    out = []
    hist = []
    for i in ins:
        if i.cls in ('none', 'label'):
            out.append(i)
            continue
        miss = _gap_need(hist, i)
        if miss:
            n = Ins('    s_nop %d' % (miss - 1))
            out.append(n)
            hist.append(n)
        out.append(i)
        hist.append(i)
        if i.op in ('s_branch', 's_endpgm'):
            hist = []
        hist = hist[-WINDOW:]
    changed = True
    rounds = 0
    while changed and rounds < 5000:
        changed = False
        rounds += 1
        labels = {x.label: k for k, x in enumerate(out) if x.cls == 'label'}
        for k, x in enumerate(out):
            if x.cls != 'branch' or x.target not in labels:
                continue
            h = []
            j = k
            while j >= 0 and len(h) < WINDOW:
                y = out[j]
                if y.cls not in ('none', 'label'):
                    if j != k and y.op in ('s_branch', 's_endpgm'):
                        break
                    h.insert(0, y)
                j -= 1
            q = labels[x.target] + 1
            cnt = 0
            worst = 0
            hh = list(h)
            while q < len(out) and cnt < WINDOW:
                y = out[q]
                if y.cls not in ('none', 'label'):
                    worst = max(worst, _gap_need(hh, y))
                    hh.append(y)
                    cnt += y.nop
                    if y.op in ('s_branch', 's_endpgm'):
                        break
                q += 1
            if worst:
                out.insert(labels[x.target] + 1, Ins('    s_nop %d ; branch-target pad' % (worst - 1)))
                changed = True
                break
    return [x.text for x in out]


class Prog:
    def __init__(self):
        self.lines = []
        self._lab = 0

    def e(self, s):
        for l in s.split('\n'):
            l = l.strip()
            if not l:
                continue
            if l.endswith(':') or l.startswith('.') or l.startswith(';'):
                self.lines.append(l)
            else:
                self.lines.append('    ' + l)

    def label(self, stem='L'):
        self._lab += 1
        return '%s_%d' % (stem, self._lab)

    def text(self):
        out = []
        for l in self.lines:
            t = l.strip()
            if t.startswith('s_waitcnt') and out and out[-1].strip().startswith('s_waitcnt'):
                c = dict(re.findall(r'(vmcnt|lgkmcnt)\((\d+)\)', out[-1]))
                for k, v in re.findall(r'(vmcnt|lgkmcnt)\((\d+)\)', t):
                    c[k] = str(min(int(v), int(c.get(k, 99))))
                out[-1] = '    s_waitcnt ' + ' '.join('%s(%s)' % kv for kv in sorted(c.items(), reverse=True))
            else:
                out.append(l)
        return '\n'.join(hazard_pass(out)) + '\n'


def vr(k, base, n=1):
    return '%s%d' % (k, base) if n == 1 else '%s[%d:%d]' % (k, base, base + n - 1)


class R:
    def __init__(self, kind, base, n):
        self.kind, self.base, self.n = kind, base, n

    def __str__(self):
        return vr(self.kind, self.base, self.n)

    def __getitem__(self, i):
        if isinstance(i, slice):
            a = i.start or 0
            b = self.n if i.stop is None else i.stop
            assert 0 <= a < b <= self.n, (a, b, self.n)
            return R(self.kind, self.base + a, b - a)
        assert 0 <= i < self.n
        return R(self.kind, self.base + i, 1)


class Alloc:
    def __init__(self, kind, lo, hi):
        self.kind, self.next, self.hi = kind, lo, hi

    def get(self, n=1, align=1):
        if n >= 2 and align < 2:
            align = 2
        b = (self.next + align - 1) // align * align
        assert b + n <= self.hi, 'out of %s regs (need %d at %d, limit %d)' % (self.kind, n, b, self.hi)
        self.next = b + n
        return R(self.kind, b, n)

    def left(self):
        return self.hi - self.next


TL_ON = [False]
DBG_TL = [None]


def tl(p, slot, idx_sgpr, base, va='v254', vb='v255', save=True):
    if DBG_TL[0] and idx_sgpr == 's100':
        for idx, sl, word in DBG_TL[0]:
            if sl == slot:
                l = p.label('DT')
                p.e(f"""s_cmp_lg_u32 s100, {idx}
                s_cbranch_scc1 {l}
                s_memrealtime s[96:97]
                s_waitcnt lgkmcnt(0)
                v_mov_b32 {va}, s96
                v_mov_b32 {vb}, {4 * word}
                buffer_store_dword {va}, {vb}, s[84:87], 0 offen sc1
                {l}:""")
    if not TL_ON[0]:
        return
    p.e(f"""s_memrealtime s[96:97]
    s_lshl_b32 s98, {idx_sgpr}, 6
    s_add_u32 s98, s98, {base + 4 * slot}
    s_waitcnt lgkmcnt(0)
    v_mov_b32 {va}, s96
    v_mov_b32 {vb}, 0
    buffer_store_dword {va}, {vb}, s[4:7], s98 offen""")
```

```python
from asmlib import *
from layout import *

sWS = 's[4:7]'
sIDX, sWAVE, sSTEP = 's8', 's9', 's10'
sH = 's11'
sDBG = 's[12:15]'
sM0D = 's[16:19]'
sJ = 's24'
sMEM, sMEM2 = 's26', 's27'
sP, sPRST = 's28', 's29'
sMEMW, sMEMRST = 's32', 's33'
sT0, sT1, sT2, sT3 = 's34', 's35', 's36', 's37'
sTO = 's38'
sSTEP1 = 's39'
sYX = 's40'
sDA = 's41'
sFLG = 's43'
sTIME = 's[44:45]'
sTIME2 = 's[46:47]'
sV0 = 's[48:49]'
sCHK = 's[50:51]'
sXS, sXS2 = 's52', 's53'
sYXS, sYXS2 = 's64', 's65'
sYQ = ['s64', 's65', 's54', 's55']
sPQ = ['s20', 's21', 's22', 's23']
sRO = ['s56', 's57', 's58', 's59']
sSLOW = 's66'
sCNT = ['s68', 's69', 's70', 's71']
NSTAMP = 12
STAMP0 = 72

L_W = 0
L_SP = 4 * 14336
L_DUMP = L_SP + 4 * 1296
L_YM = 10 * 14336
L_TB = L_YM + 8192
L_END = L_TB + 64
NF2 = 14
OOB = 0x40000000
TIMEOUT = 200000
FLAG_STRIDE = 640
FLAG2_OFF = 4096 + 128
NREP = [4, 8]


class Cfg:
    stamps = 0
    dual = 1
    alone = 0
    diag = 1
    nsteps = 63
    fake = 0
    delay = 0
    vdelay = 0
    flagpos = 1
    pdelay = 0
    f2pos = 4
    nsc = 1
    gap = 14
    pdepth = 7
    pspace = 0
    vdepth = 2
    fz1 = 4
    fz2 = 6
    qtouch = 0
    vah = 4
    noby = 1
    perhead = 0
    vrev = 0
    warm0 = 0
    pearly = 1
    ywarm = 4
    sb = 0
    vpw = 0
    gapbar = 1
    qlate = 0
    lead = 4
    wtlb = 1
    gostep = 1
    gostep2 = 6
    qah = 4
    xsall = 0
    rot = 1
    qpace = 4
    chk = 1
    standin = 1
    nowait = 1
    nrep1 = 4
    nrep2 = 4
    qdepth = 4
    qstart = 0
    vstart = 64
    ppace = 0
    prio = 0
    bpos = 9
    vchk = 1
    selfpoll = 1
    nyx = 12
    tlb = 1
    xsb = 1
    pf = 3


def stamp(p, cfg, i):
    if cfg.stamps:
        p.e(f's_memtime s[{STAMP0 + 2 * i}:{STAMP0 + 2 * i + 1}]')


def nops(e, n):
    while n > 0:
        k = min(n, 16)
        e(f's_nop {k - 1}')
        n -= k


class VM:
    def __init__(self, e, cnt='vmcnt'):
        self.e, self.n, self.tag, self.cnt = e, 0, {}, cnt

    def issue(self, text, tag=None):
        self.e(text)
        self.n += 1
        if tag is not None:
            self.tag[tag] = self.n

    def wait(self, tag):
        self.e(f's_waitcnt {self.cnt}({self.n - self.tag[tag]})')


def team_barrier(p, w, vt, arrive=True, wait=True):
    e = p.e
    if arrive:
        e('s_waitcnt vmcnt(0) lgkmcnt(0)\ns_barrier')
    lp, done = p.label('TB'), p.label('TBD')
    e(f's_mov_b32 {sT0}, {WS_CNT + C_TB}')
    if w == 0 and arrive:
        e(f"""v_lshlrev_b32 {vt[0]}, 7, v0
        s_lshl_b32 {sT1}, {sIDX}, 2
        v_add_u32 {vt[0]}, {sT1}, {vt[0]}
        v_mov_b32 {vt[1]}, {OOB}
        v_cmp_gt_u32 vcc, 4, v0
        v_cndmask_b32 {vt[0]}, {vt[1]}, {vt[0]}, vcc
        s_add_u32 {sT1}, {sSLOW}, 1
        v_mov_b32 {vt[1]}, {sT1}
        buffer_store_dword {vt[1]}, {vt[0]}, {sWS}, {sT0} offen sc1""")
    if not wait:
        return
    if w == 0:
        e(f"""v_and_b32 {vt[0]}, 31, v0
        v_lshlrev_b32 {vt[0]}, 2, {vt[0]}
        s_and_b32 {sT1}, {sIDX}, 3
        s_lshl_b32 {sT1}, {sT1}, 7
        s_add_u32 {sT0}, {sT0}, {sT1}
        {lp}:
        buffer_load_dword {vt[2]}, {vt[0]}, {sWS}, {sT0} offen sc1
        s_sub_u32 {sTO}, {sTO}, 1
        s_cmp_gt_i32 {sTO}, 0
        s_cbranch_scc0 {done}
        s_waitcnt vmcnt(0)
        v_cmp_eq_u32 vcc, 0, {vt[2]}
        s_cbranch_vccz {done}
        s_sleep 4
        s_branch {lp}
        {done}:
        v_cmp_lt_u32 vcc, 1, {vt[2]}
        s_or_b32 {sSLOW}, vcc_lo, vcc_hi
        v_mov_b32 {vt[1]}, {sSLOW}
        v_mov_b32 {vt[0]}, {L_TB}
        ds_write_b32 {vt[0]}, {vt[1]}
        s_waitcnt lgkmcnt(0)""")
    e(f"""s_barrier
    v_mov_b32 {vt[0]}, {L_TB}
    ds_read_b32 {vt[1]}, {vt[0]}
    s_waitcnt lgkmcnt(0)
    v_readfirstlane_b32 {sSLOW}, {vt[1]}""")


def epilogue(p, w, cfg, vt):
    e = p.e
    if w == 0:
        tl(p, 3, 's100', WS_TL + 16384)
    if not cfg.diag:
        e('s_endpgm')
        return
    e(f"""s_memtime {sTIME2}
    s_waitcnt lgkmcnt(0) vmcnt(0)
    s_sub_u32 s46, s46, s44
    s_lshl_b32 {sT0}, {sIDX}, 2
    s_add_u32 {sT0}, {sT0}, {w}
    s_lshl_b32 {sT0}, {sT0}, 7
    s_add_u32 {sT0}, {sT0}, {WS_STAMP}
    v_mov_b32 {vt[0]}, 0
    v_mov_b32 {vt[1]}, s46
    buffer_store_dword {vt[1]}, {vt[0]}, {sWS}, {sT0} offen
    v_mov_b32 {vt[1]}, {sTO}
    buffer_store_dword {vt[1]}, {vt[0]}, {sWS}, {sT0} offen offset:4""")
    for i in range(NSTAMP):
        e(f"""v_mov_b32 {vt[1]}, s{STAMP0 + 2 * i}
        buffer_store_dword {vt[1]}, {vt[0]}, {sWS}, {sT0} offen offset:{64 + 4 * i}""")
    for i, c in enumerate(sCNT):
        e(f"""v_mov_b32 {vt[1]}, {c}
        buffer_store_dword {vt[1]}, {vt[0]}, {sWS}, {sT0} offen offset:{40 + 4 * i}""")
    if cfg.stamps:
        e(f's_mov_b32 {sT3}, 0')
        for i in range(24):
            e(f"""s_memrealtime s[44:45]
            s_memtime s[46:47]
            s_waitcnt lgkmcnt(0)
            s_mul_i32 s44, s44, 24
            s_sub_u32 s46, s46, s44""")
            if i == 0:
                e(f's_mov_b32 {sT2}, s46')
            e(f"""s_sub_u32 s46, s46, {sT2}
            s_min_i32 {sT3}, {sT3}, s46
            s_nop {i % 5}""")
        e(f"""s_add_u32 {sT2}, {sT2}, {sT3}
        v_mov_b32 {vt[1]}, {sT2}
        buffer_store_dword {vt[1]}, {vt[0]}, {sWS}, {sT0} offen offset:8""")
    e('s_endpgm')


def flag_store_off(e, dst, vLane, tmp, idx_sgpr, base):
    e(f'''v_mul_u32_u24 {dst}, {FLAG_STRIDE}, {vLane}
    s_lshl_b32 {sT1}, {idx_sgpr}, 2
    s_add_u32 {sT1}, {sT1}, {base}
    v_add_u32 {dst}, {sT1}, {dst}
    v_mov_b32 {tmp}, {OOB}
    v_cmp_gt_u32 vcc, {NREP[1 if base else 0]}, {vLane}
    v_cndmask_b32 {dst}, {tmp}, {dst}, vcc''')


def flag_poll_off(e, dst, vLane, base, last):
    e(f'''s_and_b32 {sT1}, {sIDX}, {NREP[1 if base else 0] - 1}
    s_mul_i32 {sT1}, {sT1}, {FLAG_STRIDE}
    s_add_u32 {sT1}, {sT1}, {base}
    v_min_u32 {dst}, {last}, {vLane}
    v_lshlrev_b32 {dst}, 2, {dst}
    v_add_u32 {dst}, {sT1}, {dst}''')


def engine_wave(p, w, cfg):
    e = p.e
    V = Alloc('v', 0, 64)
    vLane = V.get()
    vt = [V.get() for _ in range(5)]
    vL16, vL128, vFo, vFs, vD, vF = V.get(), V.get(), V.get(), V.get(), V.get(), V.get()
    mreg = V.get(8, 4)
    e(f'''v_and_b32 {vLane}, 63, v0
    v_lshlrev_b32 {vL16}, 4, {vLane}
    v_lshlrev_b32 {vL128}, 7, {vLane}
    s_mov_b32 {sFLG}, {WS_FLAGS}
    s_mov_b32 {sSTEP}, 0
    s_mov_b32 {sTO}, {TIMEOUT}''')
    for c in sCNT:
        e(f's_mov_b32 {c}, 0')
    flag_poll_off(e, vFo, vLane, FLAG2_OFF, NF2 - 1)
    e(f's_mov_b32 {sT2}, {NF2}')
    flag_store_off(e, vFs, vLane, vt[4], sT2, FLAG2_OFF)
    vL4, vOne = V.get(), V.get()
    sG, sCN = 's20', 's21'
    e(f"""v_lshlrev_b32 {vL4}, 2, {vLane}
    v_mov_b32 {vOne}, 1
    s_mov_b32 {sCN}, {WS_CNT}
    s_mov_b32 {sG}, {1000 if cfg.alone else -1}""")
    tail = []

    def gate(need, first):
        GL, GD = p.label('GL'), p.label('GD')
        if not first:
            e(f"""s_cmp_ge_i32 {sG}, 63
            s_cbranch_scc1 {GD}""")
        e(f'{GL}:')
        if not cfg.alone:
            e(f"""buffer_load_dword {vF}, {vL4}, {sWS}, {sCN} offen offset:{C_YX} sc1
            s_waitcnt vmcnt(0)
            v_cmp_gt_u32 vcc, 16, {vF}
            s_ff1_i32_b64 {sG}, vcc
            s_cmp_lt_i32 {sG}, 0
            s_cselect_b32 {sG}, 64, {sG}
            s_sub_u32 {sG}, {sG}, 1""")
        e(f"""s_max_i32 {sT1}, {sG}, 0
        v_mov_b32 {vt[0]}, {sT1}
        buffer_store_dword {vt[0]}, {vFs}, {sWS}, {sFLG} offen {'sc1' if first else ''}""")
        if not first:
            sl, bk = p.label('SL'), p.label('SB')
            e(f"""s_cmp_lg_u32 {sSLOW}, 0
            s_cbranch_scc1 {sl}
            {bk}:""")
            tail.extend([f'{sl}:', f'buffer_store_dword {vt[0]}, {vFs}, {sWS}, {sFLG} offen sc1', f's_branch {bk}'])
        e(f"""s_sub_u32 {sTO}, {sTO}, 1
        s_cmp_gt_i32 {sTO}, 0
        s_cbranch_scc0 {GD}
        s_cmp_lt_i32 {sG}, {need}
        s_cbranch_scc1 {GL}
        {GD}:""")
    if w == 1:
        sk = p.label('SK')
        e(f"""s_cmp_lg_u32 {sH}, 14
        s_cbranch_scc1 {sk}""")
        gate(-1, True)
        e(f'{sk}:')
    team_barrier(p, w, vt)
    if not cfg.alone:
        YL, YD = p.label('YL'), p.label('YD')
        e(f"""v_mov_b32 {vt[0]}, {C_YX}
        s_cmp_eq_u32 {sH}, 14
        s_cselect_b32 {sT2}, 16, {cfg.ywarm}
        {YL}:
        buffer_load_dword {vt[1]}, {vt[0]}, {sWS}, {sCN} offen sc1
        s_sub_u32 {sTO}, {sTO}, 1
        s_cmp_gt_i32 {sTO}, 0
        s_cbranch_scc0 {YD}
        s_waitcnt vmcnt(0)
        v_cmp_gt_u32 vcc, {sT2}, {vt[1]}
        s_cbranch_vccz {YD}
        s_sleep 16
        s_branch {YL}
        {YD}:""")
    if cfg.diag:
        e(f's_memtime {sTIME}')
    for i in range(cfg.pf):
        e(f"""s_mov_b32 {sT1}, {WS_XNB + i * 32768 + w * 8192}
        buffer_load_dword {vD}, {vL128}, {sWS}, {sT1} offen sc1""")
    e(f'''s_sub_u32 {sT2}, 15, {sH}
    s_lshl_b32 {sT2}, {sT2}, 15
    s_add_u32 {sT1}, {sT2}, {WS_MEMR + w * 8192}
    buffer_load_dword {vD}, {vL128}, {sWS}, {sT1} offen sc1
    s_add_u32 {sT1}, {sT2}, {WS_PR + w * 8192}
    buffer_load_dword {vD}, {vL128}, {sWS}, {sT1} offen sc1''')
    e(f'v_mov_b32 {vF}, 0')
    LOOP, END, PL, GO, E1, AR, NX = (p.label(x) for x in ('LOOP', 'END', 'PL', 'GO', 'E1', 'AR', 'NX'))
    nq = 16 * cfg.qtouch
    rest = list(range(nq, 56)) if cfg.qtouch else ([u for u in range(28, 56) if u & 1] + [u for u in range(28) if u & 1])[:cfg.nyx]
    n1 = min(len(rest), (len(rest) + 7 + 1) // 2)
    u1, u0 = rest[:n1], rest[n1:]
    clampn = lambda d, s_: f's_and_b32 {d}, {s_}, 1' if cfg.fake else f's_min_u32 {d}, {s_}, 63'
    e(f'''{LOOP}:
    s_add_u32 {sT3}, {sSTEP}, {cfg.pf}
    {clampn(sT3, sT3)}
    s_mul_i32 {sYXS}, {sT3}, {28 * 16384}
    s_add_u32 {sYXS}, {sYXS}, {WS_YX}
    s_lshl_b32 {sXS}, {sT3}, 15
    s_add_u32 {sXS}, {sXS}, {WS_XNB + w * 8192}
    s_lshl_b32 {sMEM}, {sSTEP}, 13
    s_add_u32 {sMEMW}, {sMEM}, {WS_MEMA + w * 2048}
    s_add_u32 {sMEM}, {sMEM}, {WS_MEMR + w * 2048}
    s_cmp_lg_u32 {sH}, 14
    s_cbranch_scc1 {E1}''')
    nch = 2 if w < 3 else 1
    e(f'{AR}:')
    for i in range(nch):
        e(f'buffer_load_dwordx4 {mreg[4 * i:4 * i + 4]}, {vL16}, {sWS}, {sMEM} offen offset:{1024 * i} sc1')
    e(f'''s_sub_u32 {sTO}, {sTO}, 1
    s_cmp_gt_i32 {sTO}, 0
    s_cbranch_scc0 {END}
    s_waitcnt vmcnt(0)
    v_max3_u32 {vt[0]}, {mreg[0]}, {mreg[1]}, {mreg[2]}
    v_max_u32 {vt[0]}, {vt[0]}, {mreg[3]}''')
    if nch == 2:
        e(f'''v_max3_u32 {vt[0]}, {vt[0]}, {mreg[4]}, {mreg[5]}
        v_max3_u32 {vt[0]}, {vt[0]}, {mreg[6]}, {mreg[7]}''')
    e(f'''v_cmp_eq_u32 vcc, -1, {vt[0]}
    s_cbranch_vccnz {AR}''')
    for i in range(nch):
        e(f'buffer_store_dwordx4 {mreg[4 * i:4 * i + 4]}, {vL16}, {sWS}, {sMEMW} offen offset:{1024 * i} sc1')
    if w == 2:
        gs = p.label('GS')
        e(f"""s_cmp_gt_u32 {sSTEP}, {cfg.gostep2}
        s_cbranch_scc1 {gs}
        v_mov_b32 {vt[1]}, {OOB}
        v_cmp_gt_u32 vcc, 8, {vLane}
        v_cndmask_b32 {vt[1]}, {vt[1]}, {vL128}, vcc
        s_add_u32 {sT1}, {sSTEP}, 1
        v_mov_b32 {vt[2]}, {sT1}
        s_add_u32 {sT1}, {sCN}, {C_GO}
        buffer_store_dword {vt[2]}, {vt[1]}, {sWS}, {sT1} offen sc1
        {gs}:""")
    e(f"""s_cmp_ge_u32 {sSTEP}, {cfg.nsteps - 1}
    s_cbranch_scc1 {END}""")
    if w == 1:
        e(f's_add_u32 {sT2}, {sSTEP}, 1')
        e(f's_min_u32 {sT2}, {sT2}, 63')
        gate(sT2, False)
    odd = [u for u in range(56) if u & 1]
    mine = (odd[16:] + odd[:16] if cfg.qlate else odd)[:cfg.nyx][(3 - w)::4]
    nt = len(mine) + 2 + (1 if w == 0 else 0)
    SP = p.label('SP')
    tail += [f'{E1}:', f's_cmp_ge_u32 {sSTEP}, {cfg.nsteps - cfg.pf}', f's_cbranch_scc1 {END}']
    if w == 0:
        tail += [f's_add_u32 {sDA}, {sMEM}, {(cfg.pf + 2) * 8192}', f'buffer_load_dword {vD}, {vL128}, {sWS}, {sDA} offen sc1']
    tail += [f'buffer_load_dword {vD}, {vL128}, {sWS}, {sXS} offen sc1']
    for u in mine:
        tail += [f's_add_u32 {sDA}, {sYXS}, {u * 8192}', f'buffer_load_dword {vD}, {vL128}, {sWS}, {sDA} offen sc1']
    tail += [f's_add_u32 {sSTEP}, {sSTEP}, 1', f's_sub_u32 {sT2}, {sSTEP}, {cfg.lead - cfg.pf}', f's_max_i32 {sT2}, {sT2}, 0',
             f's_waitcnt vmcnt({nt - 1})', f'v_cmp_gt_u32 vcc, {sT2}, {vF}',
             f'buffer_load_dword {vF}, {vFo}, {sWS}, {sFLG} offen sc1', f's_cbranch_vccz {LOOP}',
             f'{SP}:', f's_sub_u32 {sTO}, {sTO}, 1', f's_cmp_gt_i32 {sTO}, 0', f's_cbranch_scc0 {END}', 's_waitcnt vmcnt(0)',
             f'v_cmp_gt_u32 vcc, {sT2}, {vF}', f's_cbranch_vccz {LOOP}', 's_sleep 4',
             f'buffer_load_dword {vF}, {vFo}, {sWS}, {sFLG} offen sc1', f's_branch {SP}']
    e(f'''{NX}:
    s_add_u32 {sSTEP}, {sSTEP}, 1''')
    if w == 0:
        e(f'''{PL}:
        buffer_load_dword {vF}, {vFo}, {sWS}, {sFLG} offen sc1
        s_sub_u32 {sTO}, {sTO}, 1
        s_cmp_gt_i32 {sTO}, 0
        s_cbranch_scc0 {GO}
        s_waitcnt vmcnt(0)
        v_cmp_gt_u32 vcc, {sSTEP}, {vF}
        s_cbranch_vccnz {PL}
        {GO}:''')
    e(f'''s_barrier
    s_branch {LOOP}
    {END}:''')
    epilogue(p, w, cfg, vt)
    for l in tail:
        e(l)


def team_wave(p, role, w, cfg):
    NREP[0], NREP[1] = cfg.nrep1, cfg.nrep2
    if role == 2:
        return engine_wave(p, w, cfg)
    qk = role == 0
    NT = 7 if qk else 8
    NR = 5 if qk else 6
    AH = cfg.qah if qk else cfg.vah
    fin = not qk and w < 2
    slots = (QK_SLOTS if qk else VO_SLOTS)[w]
    if not qk and cfg.vrev:
        slots = [[3, 4, 5, 6, 0, 1, 2], [4, 5, 6, 3, 1, 2, 0], [5, 6, 3, 4, 2, 0, 1], [6, 3, 4, 5, 0, 2, 1]][w]
    V = Alloc('v', 0, 254)
    A = Alloc('a', 0, 256)
    vLane = V.get()
    vG, vC = V.get(), V.get()
    vt = [V.get() for _ in range(5)]
    vIdx, vL16, vStep, vFo, vFs, vNeg1, vWL = (V.get() for _ in range(7))
    lds_tiles = [4] if qk else ([3, 4, 5] if fin else [4, 5])
    memA = V.get(28, 4)
    stg = V.get(16 * len(lds_tiles), 4)
    assert stg.base == memA.base + 28
    Tacc = V.get(4 * NT, 4)
    wl0 = L_W + (w if qk else [0, 3, 6, 8][w]) * 14336
    lds_rel = {t: i * 14336 for i, t in enumerate(lds_tiles)}
    if qk:
        Did = V.get(8, 4)
        AS = V.get(8, 4)
        xsB = V.get(32, 4)
        Alast = V.get(4, 4)
        Sx = V.get(8, 4)
        Sm = V.get(4, 4)
        Idn = V.get(4, 4)
        vSW, vSW2, vSR, vPo, vL128, vSZ = (V.get() for _ in range(6))
        if w == 3:
            Mx = V.get(4, 4)
        Fp = [Did[i] for i in range(8)]
        toucher = w >= 4 - cfg.qtouch
    else:
        Ym = V.get(8, 4)
        vYW, vFo2 = V.get(), V.get()
        Fp = [memA[20 + i] for i in range(8)]
        if fin:
            YX = V.get(64, 4)
            vMo, vMr = V.get(), V.get()
            Afin = R('v', memA.base, 40)
            BM = stg[16:32]
            Facc = stg[32:36]
            Bfin = [BM[0:8], BM[8:16]] + [YX[8 * i:8 * i + 8] for i in range(8)]
    poller = (qk and w == 0) or (not qk and w >= 2)
    frag = {}
    from prep import NBUILD, built_agpr
    built = qk and cfg.sb and not cfg.alone
    if built:
        A.get(48 * NBUILD, 4)
    for t in range(NT):
        if t in lds_tiles:
            continue
        for k in range(7):
            if built and slots[k] < NBUILD:
                frag[(t, k)] = R('a', built_agpr(t, slots[k]), 8)
            else:
                frag[(t, k)] = A.get(8, 4) if A.left() >= 8 else V.get(8, 4)
    e = p.e

    e(f'''v_and_b32 {vLane}, 63, v0
    v_lshrrev_b32 {vG}, 4, {vLane}
    v_and_b32 {vC}, 15, {vLane}
    v_lshlrev_b32 {vL16}, 4, {vLane}
    v_add_u32 {vWL}, {wl0}, {vL16}
    v_bfe_u32 {vt[0]}, {vC}, 1, 1          ; v(c)
    v_lshrrev_b32 {vt[1]}, 2, {vC}
    v_lshlrev_b32 {vt[1]}, 1, {vt[1]}
    v_and_b32 {vt[2]}, 1, {vC}
    v_add_u32 {vt[1]}, {vt[1]}, {vt[2]}    ; m(c)
    v_mul_u32_u24 {vIdx}, 0xaaaa, {vt[0]}
    v_add_u32 {vIdx}, 0x4444, {vIdx}
    v_mov_b32 {vNeg1}, -1
    s_mov_b32 {sFLG}, {WS_FLAGS}''')
    if qk:
        e(f'''v_lshlrev_b32 {vL128}, 7, {vLane}
        v_lshrrev_b32 {vt[2]}, 2, {vC}
        v_and_b32 {vt[3]}, 1, {vC}
        v_lshlrev_b32 {vt[3]}, 4, {vt[3]}
        v_mov_b32 {vt[4]}, 0x3f80
        v_lshlrev_b32 {vt[3]}, {vt[3]}, {vt[4]}
        v_cmp_eq_u32 vcc, {vt[2]}, {vG}
        v_cndmask_b32 {vt[3]}, 0, {vt[3]}, vcc
        v_cmp_eq_u32 vcc, 0, {vt[0]}
        v_cndmask_b32 {Idn[0]}, 0, {vt[3]}, vcc
        v_cndmask_b32 {Idn[1]}, 0, {vt[3]}, vcc
        v_cndmask_b32 {Idn[2]}, {vt[3]}, 0, vcc
        v_cndmask_b32 {Idn[3]}, {vt[3]}, 0, vcc
        s_mov_b64 {sV0}, vcc
        v_mul_u32_u24 {vt[2]}, 320, {vG}
        v_add_u32 {vt[2]}, {L_SP + w * 1296}, {vt[2]}
        v_and_b32 {vt[3]}, 12, {vC}
        v_add_u32 {vt[3]}, {vt[3]}, {vC}
        v_lshl_add_u32 {vSW}, {vt[3]}, 2, {vt[2]}
        v_lshl_add_u32 {vt[2]}, {vt[1]}, 2, {vt[2]}
        v_add_u32 {vt[2]}, 128, {vt[2]}
        v_lshlrev_b32 {vt[3]}, 2, {vC}
        v_add_u32 {vt[3]}, {L_DUMP}, {vt[3]}
        v_cndmask_b32 {vSW2}, {vt[3]}, {vt[2]}, vcc
        v_lshrrev_b32 {vt[0]}, 5, {vLane}
        v_and_b32 {vt[1]}, 31, {vLane}
        v_mul_u32_u24 {vt[2]}, 160, {vt[0]}
        v_lshl_add_u32 {vt[2]}, {vt[1]}, 3, {vt[2]}
        v_add_u32 {vt[2]}, {L_SP + 2 * w * 160}, {vt[2]}
        v_mov_b32 {vt[3]}, {L_SP + 1280}
        v_cmp_gt_u32 vcc, 20, {vt[1]}
        v_cndmask_b32 {vSR}, {vt[3]}, {vt[2]}, vcc
        v_mov_b32 {vt[3]}, {L_SP + 1288}
        v_cndmask_b32 {vSZ}, {vt[3]}, {vt[2]}, vcc
        v_and_b32 {vt[2]}, 1, {vt[1]}
        v_lshl_add_u32 {vt[2]}, {vt[2]}, 1, {vt[0]}
        v_lshlrev_b32 {vt[2]}, 4, {vt[2]}
        v_bfe_u32 {vt[3]}, {vt[1]}, 3, 1
        v_lshl_add_u32 {vt[3]}, {vt[3]}, 8, {vt[2]}
        v_bfe_u32 {vt[4]}, {vt[1]}, 1, 2
        v_lshl_add_u32 {vt[3]}, {vt[4]}, 2, {vt[3]}
        s_lshl_b32 {sT1}, {sH}, 9
        s_add_u32 {sT1}, {sT1}, {2048 + 64 * w}
        v_add_u32 {vt[3]}, {sT1}, {vt[3]}
        v_bfe_u32 {vt[2]}, {vt[1]}, 1, 1
        v_lshlrev_b32 {vt[2]}, 8, {vt[2]}
        v_lshl_add_u32 {vt[2]}, {vt[0]}, 4, {vt[2]}
        v_and_b32 {vt[4]}, 1, {vt[1]}
        v_lshl_add_u32 {vt[2]}, {vt[4]}, 3, {vt[2]}
        s_lshr_b32 {sT1}, {sH}, 2
        s_lshl_b32 {sT1}, {sT1}, 9
        s_and_b32 {sT2}, {sH}, 1
        s_lshl_b32 {sT2}, {sT2}, 5
        s_add_u32 {sT1}, {sT1}, {sT2}
        s_and_b32 {sT2}, {sH}, 2
        s_lshl_b32 {sT2}, {sT2}, 1
        s_add_u32 {sT1}, {sT1}, {sT2}
        s_add_u32 {sT1}, {sT1}, {64 * w}
        v_add_u32 {vt[2]}, {sT1}, {vt[2]}
        v_mov_b32 {vt[4]}, {OOB}
        v_cndmask_b32 {vt[2]}, {vt[4]}, {vt[2]}, vcc
        v_cmp_gt_u32 vcc, 16, {vt[1]}
        v_cndmask_b32 {vPo}, {vt[2]}, {vt[3]}, vcc''')
        for r in range(4):
            e(f'''s_mov_b32 {sT1}, {WS_PR + r * 16384}
            buffer_store_dword {vNeg1}, {vPo}, {sWS}, {sT1} offen sc1''')
        e(f"""v_mov_b32 {vt[2]}, {L_SP + w * 1296 + 1280}
        v_mov_b32 {vt[3]}, 0xf149f2ca
        ds_write2_b32 {vt[2]}, {vt[3]}, {vt[3]} offset0:0 offset1:1""")
        flag_store_off(e, vFs, vLane, vt[4], sH, 0)
        if w == 1:
            e(f'''v_mov_b32 {vt[4]}, 0
            buffer_store_dword {vt[4]}, {vFs}, {sWS}, {sFLG} offen sc1''')
        for i in range(4):
            e(f'v_mov_b32 {Alast[i]}, 0')
        if poller:
            flag_poll_off(e, vFo, vLane, FLAG2_OFF, NF2)
        e(f'''s_mul_i32 {sYX}, {sH}, {cfg.qtouch * 8192}
        s_add_u32 {sYX}, {sYX}, {WS_YX + (3 - w) * 8192}''')
    else:
        e(f'v_add_u32 {vYW}, {L_YM}, {vL16}')
        if fin:
            e(f'''s_add_u32 {sJ}, {sH}, {14 * w}
            v_lshrrev_b32 {vt[2]}, 3, {vC}
            v_lshlrev_b32 {vt[2]}, 5, {vt[2]}
            v_lshl_add_u32 {vt[2]}, {vG}, 6, {vt[2]}
            v_and_b32 {vt[3]}, 7, {vC}
            v_lshl_add_u32 {vt[2]}, {vt[3]}, 1, {vt[2]}
            s_lshl_b32 {sT1}, {sJ}, 8
            v_add_u32 {vMo}, {sT1}, {vt[2]}
            v_lshlrev_b32 {vt[2]}, 2, {vLane}
            v_add_u32 {vMr}, {sT1}, {vt[2]}
            s_lshl_b32 {sYX}, {sJ}, 14
            s_add_u32 {sYX}, {sYX}, {WS_YX}''')
            for g_ in range(4):
                e(f'''s_add_u32 {sRO[g_]}, {sJ if cfg.rot else 0}, {g_}
                s_and_b32 {sRO[g_]}, {sRO[g_]}, 3
                s_lshl_b32 {sRO[g_]}, {sRO[g_]}, 11''')
            e(f'''v_bfe_u32 {vt[2]}, {vLane}, 2, 1
            v_lshl_add_u32 {vt[2]}, {vG}, 1, {vt[2]}
            v_mul_u32_u24 {vt[2]}, 896, {vt[2]}
            v_bfe_u32 {vt[3]}, {vLane}, 3, 1
            v_lshl_add_u32 {vt[2]}, {vt[3]}, 6, {vt[2]}
            v_and_b32 {vt[3]}, 3, {vLane}
            v_lshl_add_u32 {vt[2]}, {vt[3]}, 2, {vt[2]}
            s_lshr_b32 {sT1}, {sJ}, 2
            s_lshl_b32 {sT1}, {sT1}, 7
            s_and_b32 {sT2}, {sJ}, 3
            s_lshl_b32 {sT2}, {sT2}, 4
            s_add_u32 {sT1}, {sT1}, {sT2}
            buffer_load_dword {vt[3]}, {vt[2]}, {sM0D}, {sT1} offen
            s_waitcnt vmcnt(0)
            s_mov_b32 {sT1}, {WS_MEMR}
            buffer_store_dword {vt[3]}, {vMr}, {sWS}, {sT1} offen sc1''')
            for r in range(1, 3):
                e(f'''s_mov_b32 {sT1}, {WS_MEMR + r * 8192}
                buffer_store_dword {vNeg1}, {vMr}, {sWS}, {sT1} offen sc1''')
            flag_store_off(e, vFs, vLane, vt[4], sH, FLAG2_OFF)
            if w == 0:
                e(f'''v_mov_b32 {vt[4]}, 0
                buffer_store_dword {vt[4]}, {vFs}, {sWS}, {sFLG} offen sc1''')
        if w == (0 if cfg.selfpoll else 2):
            flag_poll_off(e, vFo, vLane, 0, 15)
        if w == cfg.vpw:
            flag_poll_off(e, vFo2, vLane, FLAG2_OFF, NF2)

    def xs_bases(nxt):
        if cfg.xsall:
            return [f's_lshl_b32 {sXS}, {nxt}, 15', f's_add_u32 {sXS}, {sXS}, {WS_XNB + w * 8192}', f's_add_u32 {sXS2}, {sXS}, 4096']
        return [f's_add_u32 {sXS2}, {sXS}, 4096', f's_lshl_b32 {sXS}, {nxt}, 15', f's_add_u32 {sXS}, {sXS}, {WS_XNB + w * 8192}']

    def xs_loads():
        return [f'buffer_load_dwordx4 {xsB[4 * i:4 * i + 4]}, {vL16}, {sWS}, {sXS if i < 4 else sXS2} offen '
                f'offset:{(i & 3) * 1024} sc1' for i in range(8)]

    winA = []
    if qk:
        winA = xs_loads()[(0 if cfg.xsall else 4):]
        if toucher:
            winA += [f'buffer_load_dword {vt[3]}, {vL128}, {sWS}, {sYXS} offen sc1']
    elif fin:
        winA = [f'buffer_load_dwordx4 {YX[4 * i:4 * i + 4]}, {vL16}, {sWS}, {sYQ[i >> 2]} offen '
                 f'offset:{(i & 3) * 1024} sc1' for i in range(16)]
        yx_all = list(winA)

    e(f"""s_mov_b32 {sSTEP}, 0
    s_mov_b32 {sTO}, {TIMEOUT}""")
    for c in sCNT:
        e(f's_mov_b32 {c}, 0')
    if qk:
        if cfg.nowait:
            e(f'v_mov_b32 {vt[0]}, -1\nv_mov_b32 {vt[1]}, -1')
            assert vt[1].base == vt[0].base + 1
            for i in range(4):
                e(f'ds_write2_b32 {vSZ}, {vNeg1}, {vNeg1} offset0:0 offset1:1' if i == 0 else
                  f'v_add_u32 {vt[2]}, {1296 * i}, {vSZ}\nds_write2_b32 {vt[2]}, {vNeg1}, {vNeg1} offset0:0 offset1:1')
    team_barrier(p, w, vt, True, False)
    if not cfg.alone:
        e(f"""v_min_u32 {vt[0]}, {24 if qk else 27}, {vLane}
        v_lshlrev_b32 {vt[0]}, 14, {vt[0]}
        s_mul_i32 {sT0}, {sH}, {(28 if qk else 32) * 14336}
        s_add_u32 {sT0}, {sT0}, {WS_WQK if qk else WS_WVO}""")
        if cfg.wtlb:
            e(f'buffer_load_dword {vt[1]}, {vt[0]}, {sWS}, {sT0} offen sc1\ns_waitcnt vmcnt(0)')
        e(f"""v_min_u32 {vt[0]}, 13, {vC}
        v_lshlrev_b32 {vt[0]}, 2, {vt[0]}""")
        if qk:
            e(f"""s_lshl_b32 {sT1}, {sH}, 8
            s_add_u32 {sT1}, {sT1}, {C_MAT}
            v_add_u32 {vt[0]}, {sT1}, {vt[0]}""")
        else:
            e(f"""v_lshl_add_u32 {vt[0]}, {vG}, 8, {vt[0]}
            v_add_u32 {vt[0]}, {C_MAT + 128 + w * 1024}, {vt[0]}""")
        e(f's_mov_b32 {sDA}, {WS_CNT}\ns_mov_b64 vcc, -1')

    def need(mask_lo, mask_hi):
        if cfg.alone:
            return
        RL, RD = p.label('RL'), p.label('RD')
        tst = f's_and_b32 {sT2}, vcc_lo, {mask_lo}' if mask_lo else f's_and_b32 {sT2}, vcc_hi, {mask_hi}'
        e(f"""{tst}
        s_cbranch_scc0 {RD}
        {RL}:
        buffer_load_dword {vt[1]}, {vt[0]}, {sWS}, {sDA} offen sc1
        s_sub_u32 {sTO}, {sTO}, 1
        s_cmp_gt_i32 {sTO}, 0
        s_cbranch_scc0 {RD}
        s_waitcnt vmcnt(0)
        v_cmp_ne_u32 vcc, 1, {vt[1]}
        {tst}
        s_cbranch_scc0 {RD}
        s_sleep 2
        s_branch {RL}
        {RD}:""")
    e(f's_mul_i32 {sT0}, {sH}, {28 * 14336 if qk else 32 * 14336}')
    n_out = 0
    order = list(range(NT)) if qk else [0, 4, 1, 5, 2, 6, 3, 7]
    for ti, t in enumerate(order):
        if qk and ti == 0:
            need(0xffff, 0)
        if not qk and ti % 2 == 0:
            if cfg.perhead:
                need(*[(0xffff, 0), (0xffff0000, 0), (0, 0xffff), (0, 0xffff0000)][ti // 2])
            elif ti == 0:
                need(0xffffffff, 0)
                need(0, 0xffffffff)
        if ti == 0 and w == 0:
            tl(p, 5, 's100', WS_TL + 16384)
        for k in range(7):
            if qk:
                st_, pos = QK_TILES[w][t]
                T = 2 * set_quad(w, st_, pos & 1, pos >> 1) + (pos >> 1)
                off = WS_WQK + (T * 7 + slots[k]) * 2048
            else:
                off = WS_WVO + (((4 * w + (t & 3)) * 2 + (t >> 2)) * 7 + slots[k]) * 2048
            if built and t not in lds_tiles and slots[k] < NBUILD:
                continue
            e(f's_add_u32 {sT1}, {sT0}, {off}')
            if t in lds_tiles:
                e(f'''s_mov_b32 m0, {wl0 + lds_rel[t] + k * 2048}
                buffer_load_dwordx4 {vL16}, {sWS}, {sT1} offen sc1 lds
                buffer_load_dwordx4 {vL16}, {sWS}, {sT1} offen offset:1024 sc1 lds''')
            else:
                f = frag[(t, k)]
                e(f'''buffer_load_dwordx4 {f[0:4]}, {vL16}, {sWS}, {sT1} offen sc1
                buffer_load_dwordx4 {f[4:8]}, {vL16}, {sWS}, {sT1} offen offset:1024 sc1''')
            n_out += 2
            if n_out >= 60:
                e('s_waitcnt vmcnt(40)')
                n_out = 40
    team_barrier(p, w, vt, False, True)
    if qk and not cfg.xsall:
        for l in xs_bases(sSTEP)[1:] + xs_loads()[:4]:
            e(l)
    e(f's_waitcnt vmcnt({4 if (qk and not cfg.xsall) else 0})')
    if w == 0:
        tl(p, 1, 's100', WS_TL + 16384)
        tl(p, 2, 's100', WS_TL + 16384)
    if cfg.diag:
        e(f's_memtime {sTIME}')

    LOOP, END = p.label('LOOP'), p.label('END')
    FAIL, JOIN = p.label('FAIL'), p.label('JOIN')
    tail = []
    vm = VM(e)
    lg = VM(e, 'lgkmcnt')

    def slow(texts):
        if cfg.dual:
            sl, bk = p.label('SL'), p.label('SB')
            e(f's_cmp_lg_u32 {sSLOW}, 0')
            e(f's_cbranch_scc1 {sl}')
            e(f'{bk}:')
            tail.extend([f'{sl}:'] + [t + ' sc1' for t in texts] + [f's_branch {bk}'])

    def st2(text):
        vm.issue(text)
        slow([text])

    nside = [0]

    def side(text):
        if 'store' in text:
            st2(text)
        else:
            nside[0] += 1
            vm.issue(text, ('side', nside[0]))

    def chunk_txt(k, fl):
        off = slots[k] * 1024
        so = sMEM if off < 4096 else sMEM2
        return f'buffer_load_dwordx4 {memA[4 * k:4 * k + 4]}, {vL16}, {sWS}, {so} offen offset:{off & 4095} {fl}'

    def chunk_load(k):
        vm.issue(chunk_txt(k, '' if k >= cfg.nsc else 'sc1'), ('c', k))

    def stg_read(k):
        o = []
        for i, t in enumerate(lds_tiles):
            r = stg[16 * i + 8 * (k & 1):16 * i + 8 * (k & 1) + 8]
            o.append(f'ds_read_b128 {r[0:4]}, {vWL} offset:{lds_rel[t] + k * 2048}')
            o.append(f'ds_read_b128 {r[4:8]}, {vWL} offset:{lds_rel[t] + k * 2048 + 1024}')
        return o

    def wfrag(t, k):
        if t in lds_tiles:
            i = lds_tiles.index(t)
            return stg[16 * i + 8 * (k & 1):16 * i + 8 * (k & 1) + 8]
        return frag[(t, k)]

    def smf_txt(t, k):
        return f'v_smfmac_f32_16x16x64_bf16 {Tacc[4 * t:4 * t + 4]}, {memA[4 * k:4 * k + 4]}, {wfrag(t, k)}, {vIdx}'

    def smf(t, k):
        e(smf_txt(t, k))

    def slot_calc():
        e(f"""s_lshl_b32 {sMEM}, {sSTEP}, 13
        s_add_u32 {sMEM}, {sMEM}, {WS_MEMR}
        s_add_u32 {sMEM2}, {sMEM}, 4096""")

    clampn = lambda d, s_: f's_and_b32 {d}, {s_}, 1' if cfg.fake else f's_min_u32 {d}, {s_}, 63'
    sal = [f's_add_u32 {sSTEP1}, {sSTEP}, 1', f's_mov_b64 {sCHK}, -1', f'v_mov_b32 {vStep}, {sSTEP1}',
           f's_and_b32 {sT0}, {sSTEP}, 3', f's_lshl_b32 {sP}, {sT0}, 14']
    if qk:
        sal += [f's_add_u32 {sP}, {sP}, {WS_PR}', f's_xor_b32 {sPRST}, {sP}, {2 << 14}', clampn(sT3, sSTEP if cfg.xsall else sSTEP1)] + xs_bases(sT3)
        if toucher:
            sal += [f's_add_u32 {sT3}, {sSTEP}, {cfg.pf}', clampn(sT3, sT3), f's_mul_i32 {sYXS}, {sT3}, {28 * 16384}',
                    f's_add_u32 {sYXS}, {sYXS}, {sYX}']
    elif fin:
        sal += [f's_add_u32 {sP}, {sP}, {WS_PR}',
                f's_add_u32 {sMEMW}, {sMEM}, 8192', f's_add_u32 {sMEMRST}, {sMEM}, 16384',
                clampn(sT3, sSTEP), f's_mul_i32 {sT3}, {sT3}, {28 * 16384}', f's_add_u32 {sT3}, {sT3}, {sYX}']
        sal += [f's_lshl1_add_u32 {sYQ[i]}, {sRO[i]}, {sT3}' for i in range(4)]
        sal += [f's_add_u32 {sPQ[i]}, {sP}, {sRO[i]}' for i in range(4)]
    assert (WS_PR & (3 << 14)) == 0
    zero_all = [f'v_mov_b32 {Tacc[i]}, 0' for i in range(4 * NT)]
    if qk:
        zero_all += [f'v_mov_b32 {Sx[i]}, 0' for i in range(8)]
    for l in zero_all:
        e(l)
    zq = list(zero_all)
    pre_z = []
    if qk and cfg.warm0:
        pre_z = zq[-cfg.warm0:]
        zq = zq[:-cfg.warm0] + [f'v_mov_b32 {vt[4]}, 0'] * cfg.warm0

    def fz(n):
        for _ in range(n):
            if zq:
                e(zq.pop(0))

    def poll_loop(nd, tgt=None, between=None, vo=None):
        PL, GO = p.label('PL'), p.label('GO')
        GL = GO
        if tgt:
            GO = tgt
        pl = lambda i: f'buffer_load_dword {Fp[i]}, {vo or vFo}, {sWS}, {sFLG} offen sc1'
        for i in range(nd):
            e(pl(i))
            if between:
                between(i)
            elif i < nd - 1:
                nops(e, cfg.pspace * cfg.pdepth // nd)
        e(f'{PL}:')
        for i in range(nd):
            e(f"""s_waitcnt vmcnt({nd - 1})
            v_cmp_gt_u32 vcc, {sSTEP1}, {Fp[i]}
            {pl(i)}
            s_cbranch_vccz {GO}""")
        e(f"""s_sub_u32 {sTO}, {sTO}, 1
        s_cmp_gt_i32 {sTO}, 0
        s_cbranch_scc1 {PL}
        {GL}:""")

    def loop_end(polls):
        e(f"""s_cmp_ge_u32 {sSTEP}, {cfg.nsteps}
        s_cbranch_scc1 {END}""")
        if polls:
            polls()
        e(f's_branch {LOOP}')

    slot_calc()
    if cfg.prio and fin and w == 0:
        e('s_setprio 2')
    e(f'{LOOP}:')
    if not fin and cfg.stamps != 2:
        stamp(p, cfg, 7)
    first_early = cfg.pearly and ((qk and poller) or (not qk and False))
    if first_early:
        chunk_load(0)
    e('s_barrier')
    stamp(p, cfg, 0)
    nops(e, cfg.delay if qk else cfg.vdelay)
    fill = stg_read(0) + stg_read(1) + sal
    per = (len(fill) + AH - 2) // (AH - 1)
    for k in range(AH):
        if not (k == 0 and first_early):
            chunk_load(k)
        if k < AH - 1:
            part = fill[k * per:(k + 1) * per]
            for l in part:
                if l.startswith('ds_'):
                    lg.issue(l)
                else:
                    e(l)
            if cfg.gapbar:
                e('s_barrier')
            else:
                nops(e, cfg.gap - len(part))
    for i, t in enumerate(lds_tiles):
        lg.tag[('s', 0, t)] = lg.n - 4 * len(lds_tiles) + 2 * (i + 1)
        lg.tag[('s', 1, t)] = lg.n - 2 * len(lds_tiles) + 2 * (i + 1)
    stamp(p, cfg, 1)

    def retry(k):
        RT, BK = p.label('RT'), p.label('BK')
        nre = 2 if chk == 2 else AH + 1
        t = [f'{RT}:', f's_add_u32 {sCNT[3]}, {sCNT[3]}, {1 if k < 3 else (0x10000 if k == 3 else 0x1000000)}'] + [chunk_txt(kk, 'sc1') for kk in range(k, min(7, k + nre))]
        t += [f's_sub_u32 {sTO}, {sTO}, 1', f's_cmp_gt_i32 {sTO}, 0', f's_cbranch_scc0 {END}']
        if k == 0:
            t += zero_all[:12]
        t += ['s_waitcnt vmcnt(0)', f'v_cmp_eq_u32 vcc, -1, {memA[4 * k]}', f's_cbranch_vccnz {RT}']
        if k == 0:
            t += [smf_txt(0, 0), smf_txt(1, 0), smf_txt(2, 0)]
        t += [f's_branch {BK}']
        tail.extend(t)
        e(f's_cbranch_vccnz {RT}')
        e(f'{BK}:')

    def cv_txt(t, i):
        a = Tacc[4 * t:4 * t + 4]
        if t == 6:
            dst = Alast[2 * (QK_TILES[w][6][1] & 1) + i]
        else:
            dst = Tacc[4 * (t & ~1) + 2 * (t & 1) + i]
        return f'v_cvt_pk_bf16_f32 {dst}, {a[2 * i]}, {a[2 * i + 1]}'
    late_v = [cv_txt(0, 0), cv_txt(0, 1), cv_txt(1, 0)] if qk else []
    chk = cfg.chk if qk else cfg.vchk

    for l in pre_z:
        e(l)
    vm.wait(('c', 0))
    stamp(p, cfg, 9)
    nslot = 0
    nxt_c = AH
    pace = cfg.qpace if qk else 2
    early = 1 if (qk and cfg.xsall) else 0
    for k in range(7):
        sr = stg_read(k + 1) if 1 <= k <= 5 else []
        for t in range(NR):
            smf(t, k)
            if cfg.stamps == 2 and qk and t == 1 and k in (0, 1, 2, 3, 5):
                stamp(p, cfg, {0: 1, 1: 7, 2: 10, 3: 11, 5: 8}[k])
            used = 0
            if k == 0 and t == 2 and chk:
                retry(0)
            if t == NR - 1 and k < 6 and chk == 2:
                retry(k + 1)
                used = 1
            if qk:
                if t == 0 and k + AH < 7:
                    chunk_load(k + AH)
                    used = 1
                    nslot = 0
                elif k + AH + early >= 7 and nslot >= pace - 1 and winA and not used and not (chk == 2 and t == NR - 3 and k < 6):
                    side(winA.pop(0))
                    used = 1
                    nslot = 0
                else:
                    nslot += 1
            else:
                if nxt_c < 7:
                    if t % 3 == 0:
                        chunk_load(nxt_c)
                        nxt_c += 1
                        used = 1
                elif winA and nslot % 2 == 0 and not used:
                    side(winA.pop(0))
                    used = 1
                nslot += 1
            if sr and (not used or (len(sr) > NR - 1 - t)):
                lg.issue(sr.pop(0), ('s', k + 1, lds_tiles[len(lds_tiles) - 1 - len(sr) // 2]))
            if t + 1 in lds_tiles:
                lg.wait(('s', k, t + 1))
            if k == 0 and t == 0 and chk:
                e(f'v_cmp_eq_u32 vcc, -1, {memA[0]}')
            if chk == 2:
                if t == NR - 3 and k < 6:
                    vm.wait(('c', k + 1))
                    e(f'v_cmp_eq_u32 vcc, -1, {memA[4 * k + 4]}')
            elif t == NR - 1 and k < 6:
                vm.wait(('c', k + 1))
            if qk and k == 6 and t >= 2:
                e(late_v[t - 2])
        assert not sr
    tail += [f'{FAIL}:', f's_add_u32 {sCNT[0]}, {sCNT[0]}, 1', f's_mov_b64 {sCHK}, 0', f'{FAIL}b:']
    tail += [chunk_txt(k, 'sc1') for k in range(7)]
    tail += [f's_sub_u32 {sTO}, {sTO}, 1', f's_cmp_gt_i32 {sTO}, 0', f's_cbranch_scc0 {END}']
    tail += zero_all[:4 * NT] + stg_read(0) + stg_read(1) + ['s_waitcnt vmcnt(0)']
    tail += [f'v_max3_u32 {vt[0]}, {memA[0]}, {memA[1]}, {memA[2]}']
    for i in range(3, 27, 2):
        tail += [f'v_max3_u32 {vt[0]}, {vt[0]}, {memA[i]}, {memA[i + 1]}']
    tail += [f'v_max_u32 {vt[0]}, {vt[0]}, {memA[27]}', f'v_cmp_eq_u32 vcc, -1, {vt[0]}', f's_cbranch_vccnz {FAIL}b']
    nl = 2 * len(lds_tiles)
    for k in range(7):
        tail += [f's_waitcnt lgkmcnt({nl if k < 6 else 0})'] + [smf_txt(t, k) for t in range(NR)]
        if k < 5:
            tail += stg_read(k + 2)
    tail += late_v + ['s_nop 7', f's_branch {JOIN}']
    e(f'{JOIN}:')
    stamp(p, cfg, 2)

    def check_branch():
        e(f's_and_b64 vcc, vcc, {sCHK}')
        e(f's_cbranch_scc1 {FAIL}')

    if qk:
        ns = [nslot]
        smf0 = smf

        def smf(t, k):
            smf0(t, k)
            if winA and ns[0] >= pace - 1 and (t, k) != (6, 1):
                side(winA.pop(0))
                ns[0] = 0
            else:
                ns[0] += 1

        def cv(t, i):
            e(cv_txt(t, i))

        def ident(pair, hi):
            src = Alast if pair == 3 else Tacc[8 * pair:8 * pair + 4]
            e(f'v_mfma_f32_16x16x32_bf16 {Did[4 * hi:4 * hi + 4]}, {src}, {Idn}, 0')

        def cv2(st, hi, i):
            d = Did[4 * hi:4 * hi + 4]
            e(f'v_cvt_pk_bf16_f32 {AS[4 * st + 2 * hi + i]}, {d[2 * i]}, {d[2 * i + 1]}')

        def sx(st, kt):
            e(f'v_smfmac_f32_16x16x64_bf16 {Sx[4 * kt:4 * kt + 4]}, {AS[4 * st:4 * st + 4]}, '
              f'{xsB[16 * st + 8 * kt:16 * st + 8 * kt + 8]}, {vIdx}')

        def mch(c_):
            k_ = slots.index(c_)
            return memA[4 * k_:4 * k_ + 4]

        def sm(st):
            b = Mx if (w == 3 and st == 1) else mch(w + 4 * st)
            e(f'v_mfma_f32_16x16x32_bf16 {Sm}, {AS[4 * st:4 * st + 4]}, {b}, {0 if st == 0 else Sm}')

        def flag(pos):
            if cfg.flagpos == pos and w == 1:
                vm.issue(f'buffer_store_dword {vStep}, {vFs}, {sWS}, {sFLG} offen')
                if cfg.stamps != 2:
                    stamp(p, cfg, 8)

        if w == 3:
            zq[0:0] = [f'v_cndmask_b32 {Mx[0]}, {mch(5)[0]}, {mch(4)[0]}, {sV0}',
                       f'v_cndmask_b32 {Mx[1]}, {mch(5)[1]}, {mch(4)[1]}, {sV0}',
                       f'v_mov_b32 {Mx[2]}, {mch(6)[2]}', f'v_mov_b32 {Mx[3]}, {mch(6)[3]}']
        fh = QK_TILES[w][4][1] >> 1
        smf(5, 0); cv(1, 1)
        smf(5, 1); cv(2, 0)
        ident(0, 0); cv(2, 1); cv(3, 0)
        smf(5, 2); cv(3, 1)
        smf(5, 3); cv(4, 0)
        ident(1, 1); cv2(0, 0, 0); cv2(0, 0, 1)
        smf(5, 4); e(f'v_cmp_u_f32 vcc, {Did[0]}, {Did[1]}')
        smf(5, 5); cv(4, 1)
        smf(5, 6); cv2(0, 1, 0)
        smf(6, 0); cv2(0, 1, 1)
        smf(6, 1); check_branch()
        smf(6, 2); cv(5, 0)
        smf(6, 3); cv(5, 1)
        smf(6, 4); fz(1)
        smf(6, 5); fz(1)
        smf(6, 6); fz(1)
        assert not winA
        ident(2, fh); fz(2)
        sm(0); cv(6, 0); cv(6, 1)
        fz(1); cv2(1, fh, 0)
        nx = 8 if cfg.xsall else 4
        ident(3, 1 - fh)
        if cfg.xsall:
            vm.wait(('side', 4))
        cv2(1, fh, 1); fz(1)
        sx(0, 0); fz(1)
        sx(0, 1)
        cv2(1, 1 - fh, 0); cv2(1, 1 - fh, 1)
        fz(1)
        vm.wait(('side', nx - 2))
        sx(1, 0)
        vm.wait(('side', nx))
        sx(1, 1)
        sm(1)
        flag(-3)
        stamp(p, cfg, 3)
        e(f"""v_add_f32 {Sx[0]}, {Sx[0]}, {Sx[2]}
        v_add_f32 {Sx[1]}, {Sx[1]}, {Sx[3]}
        ds_write2_b32 {vSW}, {Sx[0]}, {Sx[1]} offset0:0 offset1:40
        v_add_f32 {Sx[4]}, {Sx[4]}, {Sx[6]}
        v_add_f32 {Sx[5]}, {Sx[5]}, {Sx[7]}
        ds_write2_b32 {vSW}, {Sx[4]}, {Sx[5]} offset0:4 offset1:44
        v_add_f32_dpp {Sm[0]}, {Sm[2]}, {Sm[0]} quad_perm:[2,3,0,1] row_mask:0xf bank_mask:0xf
        v_add_f32_dpp {Sm[1]}, {Sm[3]}, {Sm[1]} quad_perm:[2,3,0,1] row_mask:0xf bank_mask:0xf
        ds_write2_b32 {vSW2}, {Sm[0]}, {Sm[1]} offset0:0 offset1:40""")
        flag(-2)
        fz(cfg.fz1 - 1)
        flag(-1)
        fz(1)
        assert len(zq) >= 8
        if not cfg.nowait:
            e('s_waitcnt lgkmcnt(0)')
        e('s_barrier')
        stamp(p, cfg, 4)
        dpps = ['quad_perm:[1,0,3,2]', 'quad_perm:[2,3,0,1]', 'row_half_mirror', 'row_mirror']
        x, y = vt[0], vt[1]
        r = R('v', memA.base, 12)
        warm = lambda n: [e(zq.pop(0)) if len(zq) > 8 else e(f'v_mov_b32 {vt[4]}, 0') for _ in range(n)]
        rd_txt = [f'ds_read_b64 {r[2 * i:2 * i + 2]}, {vSR} offset:{1296 * i}' for i in range(4)]
        for i in range(4):
            e(rd_txt[i])
            if i % 2 == 0:
                warm(1)
        warm(1)
        flag(0)
        warm(cfg.fz2 - 3)
        flag(1)
        warm(1)
        add_txt = f"""s_waitcnt lgkmcnt(2)
        v_add_f32 {r[0]}, {r[0]}, {r[2]}
        v_add_f32 {r[1]}, {r[1]}, {r[3]}
        s_waitcnt lgkmcnt(0)
        v_add_f32 {r[4]}, {r[4]}, {r[6]}
        v_add_f32 {r[5]}, {r[5]}, {r[7]}
        v_add_f32 {r[0]}, {r[0]}, {r[4]}
        v_add_f32 {r[1]}, {r[1]}, {r[5]}"""
        e(add_txt)

        def allred(op, em, main):
            for i, d in enumerate(dpps):
                pos_ = (2 if op == 'max' else 8) + i
                if main and cfg.flagpos == pos_ and w == 1:
                    flag(pos_)
                elif main:
                    fz(2)
                em(f'v_{op}_f32_dpp {x}, {x}, {x} {d} row_mask:0xf bank_mask:0xf')
            em(f'v_mov_b32 {y}, {x}')
            if op == 'max' and main:
                flag(6)
            em(f'v_permlane16_swap_b32 {x}, {y}')
            em(f'v_{op}_f32 {x}, {x}, {y}')

        pst_txt = f'buffer_store_dword {y}, {vPo}, {sWS}, {sP} offen'

        def softmax_true(em, main):
            em(f'v_max_f32 {x}, {r[0]}, {r[1]}')
            allred('max', em, main)
            for l in (f'v_sub_f32 {r[8]}, {r[0]}, {x}', f'v_sub_f32 {r[9]}, {r[1]}, {x}',
                      f'v_exp_f32 {r[8]}, {r[8]}', f'v_exp_f32 {r[9]}, {r[9]}'):
                em(l)
            if main:
                flag(7)
            em(f'v_add_f32 {x}, {r[8]}, {r[9]}')
            allred('add', em, main)
            for l in (f'v_rcp_f32 {r[10]}, {x}', f'v_subrev_u32 {x}, 0x21800000, {x}', f'v_mul_f32 {r[8]}, {r[8]}, {r[10]}',
                      f'v_mul_f32 {r[9]}, {r[9]}, {r[10]}', f'v_cvt_pk_bf16_f32 {y}, {r[8]}, {r[9]}'):
                em(l)
        if cfg.standin:
            e(f"""v_exp_f32 {r[8]}, {r[0]}
            v_exp_f32 {r[9]}, {r[1]}""")
            flag(7)
            e(f'v_add_f32 {x}, {r[8]}, {r[9]}')
            allred('add', e, True)
            e(f"""v_rcp_f32 {r[10]}, {x}
            v_subrev_u32 {x}, 0x21800000, {x}
            v_mul_f32 {r[8]}, {r[8]}, {r[10]}
            v_mul_f32 {r[9]}, {r[9]}, {r[10]}
            v_cvt_pk_bf16_f32 {y}, {r[8]}, {r[9]}""")
        else:
            softmax_true(e, True)
        if cfg.standin or cfg.nowait:
            FB, FD = p.label('FB'), p.label('FD')
            e(f'v_cmpx_gt_u32 vcc, 0x50000000, {x}')
            vm.issue(pst_txt)
            e(f"""s_mov_b64 exec, -1
            s_cmp_lg_u64 vcc, -1
            s_cbranch_scc1 {FB}
            {FD}:""")
            tail += [f'{FB}:', f's_add_u32 {sCNT[2]}, {sCNT[2]}, 1']
            if cfg.nowait:
                tail += rd_txt + [f's_sub_u32 {sTO}, {sTO}, 1', f's_cmp_gt_i32 {sTO}, 0', f's_cbranch_scc0 {FD}',
                                  's_waitcnt lgkmcnt(0)', f'v_max3_u32 {x}, {r[0]}, {r[1]}, {r[2]}',
                                  f'v_max3_u32 {x}, {x}, {r[3]}, {r[4]}', f'v_max3_u32 {x}, {x}, {r[5]}, {r[6]}',
                                  f'v_max_u32 {x}, {x}, {r[7]}', f'v_cmp_eq_u32 vcc, -1, {x}', f's_cbranch_vccnz {FB}']
                tail += [l.strip() for l in add_txt.split('\n')]
            softmax_true(tail.append, False)
            tail += [pst_txt, f's_branch {FD}']
        else:
            vm.issue(pst_txt)
        stamp(p, cfg, 5)
        slow([f'buffer_store_dword {y}, {vPo}, {sWS}, {sP} offen'] +
             ([f'buffer_store_dword {vStep}, {vFs}, {sWS}, {sFLG} offen'] if w == 1 else []))
        e('s_barrier')
        st2(f'buffer_store_dword {vNeg1}, {vPo}, {sWS}, {sPRST} offen')
        if cfg.qlate and w == 2:
            e(f"""s_add_u32 {sT3}, {sSTEP}, 2
            {clampn(sT3, sT3)}
            s_mul_i32 {sT3}, {sT3}, {28 * 16384}
            s_lshl_b32 {sT2}, {sH}, 14
            s_add_u32 {sT3}, {sT3}, {sT2}
            s_add_u32 {sT3}, {sT3}, {WS_YX + 8192}
            buffer_load_dword {vt[3]}, {vL128}, {sWS}, {sT3} offen sc1""")
        if cfg.tlb and w == 3:
            e(f"""v_mov_b32 {vt[2]}, {2 * 8192 + 7680}
            buffer_load_dword {vt[3]}, {vt[2]}, {sWS}, {sMEM} offen sc1
            v_mov_b32 {vt[2]}, {32768 if cfg.xsall else 65536}
            buffer_load_dword {vt[3]}, {vt[2]}, {sWS}, {sXS2} offen sc1""")
        for l in ([] if cfg.xsall else xs_loads()[:4]):
            e(l)
        if cfg.nowait:
            e(f'v_mov_b32 {r[0]}, -1\nv_mov_b32 {r[1]}, -1')
            for i in range(4):
                e(f'ds_write_b64 {vSZ}, {r[0:2]} offset:{1296 * i}')
            e('s_waitcnt lgkmcnt(0)')
        zq[:] = [z for z in zq if z != f'v_mov_b32 {vt[4]}, 0']
        fz(40)
        if TL_ON[0] and w in (1, 2):
            e(f"""{'s_memtime' if w == 2 else 's_memrealtime'} s[96:97]
            s_lshl_b32 s98, {sH}, 8
            s_lshl_b32 s99, {sSTEP}, 2
            s_add_u32 s98, s98, s99
            s_add_u32 s98, s98, {WS_TL + 0x8000 + (0 if w == 2 else 0x1000)}
            s_waitcnt lgkmcnt(0)
            v_mov_b32 v254, s96
            v_mov_b32 v255, 0
            buffer_store_dword v254, v255, {sWS}, s98 offen""")
        e(f's_add_u32 {sSTEP}, {sSTEP}, 1')
        slot_calc()

        def qpoll():
            e('s_waitcnt vmcnt(0)')
            stamp(p, cfg, 6)
            nops(e, cfg.qstart)
            poll_loop(cfg.qdepth, LOOP)
        loop_end(qpoll if poller else None)
    else:
        def pk(t):
            a = Tacc[4 * t:4 * t + 4]
            return [f'v_add_f32 {a[0]}, {a[0]}, {a[2]}', f'v_add_f32 {a[1]}, {a[1]}, {a[3]}',
                    f'v_cvt_pk_bf16_f32 {Ym[t]}, {a[0]}, {a[1]}']
        vq = pk(0)[:2] + [f'v_cmp_u_f32 vcc, {Tacc[0]}, {Tacc[1]}'] + pk(0)[2:]
        for t in range(1, 6):
            vq += pk(t)
        n = 0
        for t in (6, 7):
            for k in range(7):
                smf(t, k)
                if n == 4:
                    check_branch()
                elif winA:
                    side(winA.pop(0))
                if n == 10:
                    vq += pk(6)
                for _ in range(2 if n % 2 else 1):
                    if vq:
                        e(vq.pop(0))
                n += 1
        assert not winA
        for l in vq + pk(7):
            e(l)
        e(f"""ds_write_b128 {vYW}, {Ym[0:4]} offset:{w * 1024}
        ds_write_b128 {vYW}, {Ym[4:8]} offset:{4096 + w * 1024}""")
        if fin and not cfg.alone:
            Y0, YL, YD, YB = p.label('Y0'), p.label('YL'), p.label('YD'), p.label('YB')
            e(f's_cmp_eq_u32 {sSTEP}, 0\ns_cbranch_scc1 {Y0}\n{YB}:')
            tail += [f'{Y0}:', f'v_mov_b32 {vt[0]}, {C_YX}', f's_mov_b32 {sT0}, {WS_CNT}', f'{YL}:',
                     f'buffer_load_dword {vt[1]}, {vt[0]}, {sWS}, {sT0} offen sc1', f's_sub_u32 {sTO}, {sTO}, 1',
                     f's_cmp_gt_i32 {sTO}, 0', f's_cbranch_scc0 {YD}', 's_waitcnt vmcnt(0)', f'v_cmp_gt_u32 vcc, 16, {vt[1]}',
                     f's_cbranch_vccz {YD}', 's_sleep 6', f's_branch {YL}', f'{YD}:'] + yx_all + [f's_branch {YB}']
        if fin and cfg.selfpoll and w == 0:
            e(f'buffer_store_dword {vNeg1}, {vMr}, {sWS}, {sMEMRST} offen')
        stamp(p, cfg, 3)
        if cfg.tlb and w == 3:
            e(f"""v_mov_b32 {vt[2]}, {3 * 8192 + 7680}
            buffer_load_dword {vt[3]}, {vt[2]}, {sWS}, {sMEM} offen sc1""")
        sp0 = cfg.selfpoll and w == 0
        bm_rd = [f'ds_read_b128 {BM[4 * i:4 * i + 4]}, {vYW} offset:{w * 4096 + i * 1024}' for i in range(4)] if fin else []
        zf = [f'v_mov_b32 {Facc[i]}, 0' for i in range(4)] if fin else []

        def part(i):
            if i == 0:
                fz(0 if (w == 3 and cfg.vstart == 0) else 6)
                e(f's_add_u32 {sSTEP}, {sSTEP}, 1')
                slot_calc()
            elif i == 1:
                e('s_waitcnt lgkmcnt(0)')
                if not cfg.noby:
                    e('s_barrier')
            elif i == 2:
                for l in ([] if cfg.noby else bm_rd) + zf:
                    e(l)
                if fin and not sp0:
                    e(f'buffer_store_dword {vNeg1}, {vMr}, {sWS}, {sMEMRST} offen')
            else:
                fz(6)
        if sp0:
            poll_loop(cfg.pdepth, None, part)
            stamp(p, cfg, 5)
            nops(e, cfg.pdelay)
        else:
            for i in range(3):
                part(i)
            if fin:
                stamp(p, cfg, 5)
            if not (w == 3 and cfg.vstart == 0):
                fz(32)
            if w == 2 and not cfg.selfpoll:
                poll_loop(cfg.pdepth)
                stamp(p, cfg, 5)
                nops(e, cfg.pdelay)
        if not sp0:
            e('s_barrier')
        stamp(p, cfg, 6)
        if fin:
            PD, PF, PR, PB = p.label('PD'), p.label('PF'), p.label('PR'), p.label('PB')

            def p_txt(i):
                so, of = (sP, i * 1024) if i < 2 else (sPQ[(i - 2) >> 1], 2048 + (i & 1) * 1024)
                return f'buffer_load_dwordx4 {Afin[4 * i:4 * i + 4]}, {vL16}, {sWS}, {so} offen offset:{of} sc1'

            def f_txt(i):
                return f'v_smfmac_f32_16x16x64_bf16 {Facc}, {Afin[4 * i:4 * i + 4]}, {Bfin[i]}, {vIdx}'
            if w == 1 and not cfg.selfpoll:
                nops(e, 4)
            f2 = f'buffer_store_dword {vStep}, {vFs}, {sWS}, {sFLG} offen'
            burst = []
            for i in range(10):
                vm.issue(p_txt(i), ('p', i))
                burst.append(p_txt(i))
                if (sp0 and -12 <= cfg.f2pos <= -2 and i == 11 + cfg.f2pos) or (w == 1 and i == cfg.f2pos - 20):
                    vm.issue(f2)
                    burst.append(f2)
                    stamp(p, cfg, 8)
                if sp0 and i == cfg.bpos:
                    e('s_barrier')
            stamp(p, cfg, 11)
            if cfg.noby:
                for l in bm_rd:
                    e(l)
            e(f'{PB}:')
            if cfg.f2pos == -1 and w == 0:
                vm.issue(f2)
                stamp(p, cfg, 8)
            fz(32)
            e('s_waitcnt lgkmcnt(0)')
            vm.wait(('p', 0))
            stamp(p, cfg, 4)
            for i in range(10):
                e(f_txt(i))
                if i == (max(cfg.f2pos, 2) if cfg.f2pos < 10 else 2):
                    e(f's_cbranch_vccnz {PR}')
                if i == cfg.f2pos and w == 0:
                    vm.issue(f2)
                    stamp(p, cfg, 8)
                if i < 9:
                    vm.wait(('p', i + 1))
                if i == 0:
                    e(f'v_max3_u32 {vt[0]}, {Afin[0]}, {Afin[1]}, {Afin[4]}')
                    e(f'v_max_u32 {vt[0]}, {vt[0]}, {Afin[5]}')
                if i == 1:
                    e(f'v_cmp_eq_u32 vcc, -1, {vt[0]}')
            tail += [f'{PR}:', f's_add_u32 {sCNT[1]}, {sCNT[1]}, 1'] + burst + zf
            tail += [f's_sub_u32 {sTO}, {sTO}, 1', f's_cmp_gt_i32 {sTO}, 0', f's_cbranch_scc1 {PB}', f's_branch {PD}']
            fsum = [f'v_add_f32 {Facc[0]}, {Facc[0]}, {Facc[2]}', f'v_add_f32 {Facc[1]}, {Facc[1]}, {Facc[3]}']
            stamp(p, cfg, 10)
            for i in range(7):
                e(f'v_mov_b32 {vt[4]}, 0')
            for l in fsum:
                e(l)
            st_txt = [f'buffer_store_short {vt[0]}, {vMo}, {sWS}, {sMEMW} offen',
                      f'buffer_store_short_d16_hi {vt[0]}, {vMo}, {sWS}, {sMEMW} offen offset:16']
            e(f"""v_cvt_pk_bf16_f32 {vt[0]}, {Facc[0]}, {Facc[1]}
            v_cmpx_o_f32 vcc, {Facc[0]}, {Facc[1]}""")
            for l in st_txt:
                e(l)
            stamp(p, cfg, 7)
            e(f"""s_mov_b64 exec, -1
            s_cmp_lg_u64 vcc, -1
            s_cbranch_scc1 {PF}
            {PD}:""")
            rst = f'buffer_store_dword {vNeg1}, {vMr}, {sWS}, {sMEMRST} offen'
            slow(st_txt + ([f2] if w == (1 if cfg.f2pos >= 20 else 0) else []) + [rst])
            tail += [f'{PF}:', f's_add_u32 {sCNT[1]}, {sCNT[1]}, 0x10000']
            tail += [p_txt(i) for i in range(10)]
            tail += [f's_sub_u32 {sTO}, {sTO}, 1', f's_cmp_gt_i32 {sTO}, 0', f's_cbranch_scc0 {PD}']
            tail += zf + ['s_waitcnt vmcnt(0)']
            tail += [f'v_max3_u32 {vt[0]}, {Afin[0]}, {Afin[1]}, {Afin[2]}']
            for i in range(3, 39, 2):
                tail += [f'v_max3_u32 {vt[0]}, {vt[0]}, {Afin[i]}, {Afin[i + 1]}']
            tail += [f'v_max_u32 {vt[0]}, {vt[0]}, {Afin[39]}', f'v_cmp_eq_u32 vcc, -1, {vt[0]}', f's_cbranch_vccnz {PF}']
            tail += [f_txt(i) for i in range(10)] + fsum + [f'v_cvt_pk_bf16_f32 {vt[0]}, {Facc[0]}, {Facc[1]}'] + st_txt
            tail += [f's_branch {PD}']

        fz(32)

        def vpoll():
            if w == 3:
                nops(e, cfg.vstart)
            poll_loop(cfg.vdepth, LOOP, None, vFo2)
        loop_end(vpoll if w == cfg.vpw else None)
    assert not zq
    e(f'{END}:')
    if fin:
        e(f's_add_u32 {sMEMW}, {sMEMW}, {WS_MEMA - WS_MEMR}')
        for l in st_txt:
            e(l + ' sc1')
    epilogue(p, w, cfg, vt)
    for l in tail:
        if not cfg.diag and any(l.startswith(f's_add_u32 {c},') for c in sCNT):
            continue
        e(l)


HEADER = '''; generated
; @launch grid=(256,1,1) block=(256,1,1) lds=%d
.amdgcn_target "amdgcn-amd-amdhsa--gfx950"
.text
.globl %s
.p2align 8
.type %s,@function
'''
FOOTER = '''.section .rodata,"a"
.p2align 6
.amdhsa_kernel %s
  .amdhsa_next_free_vgpr 512
  .amdhsa_next_free_sgpr 102
  .amdhsa_accum_offset 256
  .amdhsa_group_segment_fixed_size 0
  .amdhsa_kernarg_size 120
  .amdhsa_user_sgpr_count 2
  .amdhsa_user_sgpr_kernarg_segment_ptr 1
  .amdhsa_system_sgpr_workgroup_id_x 1
.end_amdhsa_kernel
'''


def wave_dispatch(e, nm):
    e(f'''s_cmp_eq_u32 {sWAVE}, 0
    s_cbranch_scc1 {nm}0
    s_cmp_eq_u32 {sWAVE}, 1
    s_cbranch_scc1 {nm}1
    s_cmp_eq_u32 {sWAVE}, 2
    s_cbranch_scc1 {nm}2
    s_branch {nm}3''')


def standalone(cfg, name='team_kernel'):
    TL_ON[0] = True
    p = Prog()
    e = p.e
    e(f'{name}:')
    e(f'''s_and_b32 s3, s2, 7
    s_cmp_lg_u32 s3, 0
    s_cbranch_scc1 EXIT
    s_cmp_ge_u32 s2, 256
    s_cbranch_scc1 EXIT
    s_lshr_b32 {sIDX}, s2, 3
    s_mov_b32 s100, {sIDX}
    s_mov_b32 {sSLOW}, 0
    s_load_dwordx2 s[4:5], s[0:1], 112
    s_load_dwordx2 s[12:13], s[0:1], 104
    s_load_dwordx2 s[16:17], s[0:1], 8
    v_lshrrev_b32 v1, 6, v0
    v_readfirstlane_b32 {sWAVE}, v1
    s_mov_b32 s6, {WS_BYTES}
    s_mov_b32 s7, 0x20000
    s_mov_b32 s14, 256
    s_mov_b32 s15, 0x20000
    s_mov_b32 s18, 7168
    s_mov_b32 s19, 0x20000
    s_and_b32 {sH}, {sIDX}, 15''')
    for i in range(NSTAMP):
        e(f's_mov_b32 s{STAMP0 + 2 * i}, 0')
    e(f'''s_waitcnt lgkmcnt(0)
    s_cmp_ge_u32 {sIDX}, 16
    s_cbranch_scc1 ROLE_VO''')
    wave_dispatch(e, 'QK')
    e(f'''ROLE_VO:
    s_cmp_ge_u32 {sH}, 14
    s_cbranch_scc1 ROLE_EN''')
    wave_dispatch(e, 'VO')
    e('ROLE_EN:')
    wave_dispatch(e, 'EN')
    e('EXIT:\ns_endpgm')
    for role, nm in ((0, 'QK'), (1, 'VO'), (2, 'EN')):
        for w in range(4):
            e(f'{nm}{w}:')
            team_wave(p, role, w, cfg)
    return HEADER % (L_END, name, name) + p.text() + FOOTER % name


if __name__ == '__main__':
    import sys
    cfg = Cfg()
    for a in sys.argv[2:]:
        k, v = a.split('=')
        assert hasattr(cfg, k), k
        setattr(cfg, k, int(v) if not isinstance(getattr(cfg, k), str) else v)
    open(sys.argv[1], 'w').write(standalone(cfg))
```

```python
import sys
from asmlib import *
from layout import *
import team, workers, prep
from team import *

NAME = 'parallel_sum__memory_aug_recurrent_mem_tr__dense_activation_squared_relu__prompt'
MAIN_LDS = 131072


def ready_wait(p, kind, lnmask=31):
    e = p.e
    L, W = p.label('RW'), p.label('RB')
    e(f"""s_cmp_lg_u32 {sWAVE}, 0
    s_cbranch_scc1 {W}
    s_mov_b32 s23, {WS_CNT}
    s_and_b32 s22, {sIDX}, 7
    s_lshl_b32 s22, s22, 7
    s_add_u32 s22, s22, {C_LN}
    v_and_b32 v1, {lnmask}, v0
    v_lshlrev_b32 v1, 2, v1
    v_add_u32 v1, s22, v1
    v_and_b32 v3, 15, v0
    v_min_u32 v3, 13, v3
    v_lshlrev_b32 v3, 2, v3""")
    if kind == 'one':
        e(f"""s_lshl_b32 s21, s21, 7
        s_add_u32 s21, s21, {C_MAT}
        v_add_u32 v3, s21, v3
        v_cmp_gt_u32 vcc, 32, v0
        v_cndmask_b32 v1, v3, v1, vcc""")
    if kind == 'vo':
        e(f"""v_lshrrev_b32 v2, 4, v0
        v_lshl_add_u32 v2, v2, 8, v3
        v_add_u32 v2, {C_MAT + 128}, v2""")
    e(f"""s_mov_b32 s22, 200000
    {L}:
    buffer_load_dword v3, v1, s[4:7], s23 offen sc1""")
    if kind == 'vo':
        e("""buffer_load_dword v5, v2, s[4:7], s23 offen sc1
        buffer_load_dword v6, v2, s[4:7], s23 offen offset:1024 sc1
        buffer_load_dword v7, v2, s[4:7], s23 offen offset:2048 sc1
        buffer_load_dword v8, v2, s[4:7], s23 offen offset:3072 sc1""")
    e(f"""s_sub_u32 s22, s22, 1
    s_cmp_gt_i32 s22, 0
    s_cbranch_scc0 {W}
    s_waitcnt vmcnt(0)""")
    if kind == 'vo':
        e('v_min3_u32 v3, v3, v5, v6\nv_min3_u32 v3, v3, v7, v8')
    e(f"""v_cmp_ne_u32 vcc, 1, v3
    s_cbranch_vccz {W}
    s_sleep 4
    s_branch {L}
    {W}:
    s_barrier""")


def done_flag(p, off_sgpr, nrep, sh=7):
    e = p.e
    W, L, K, Z = p.label('DW'), p.label('DL'), p.label('DK'), p.label('DZ')
    e(f"""s_cmp_lg_u32 {sWAVE}, 0
    s_cbranch_scc1 {W}
    v_readfirstlane_b32 s92, v253
    s_cmp_eq_u32 s92, 1
    s_cbranch_scc1 {K}
    v_mov_b32 v250, 1
    v_mov_b32 v251, 20
    s_mov_b64 exec, 1
    buffer_atomic_add v250, v251, s[84:87], 0 offen sc0
    s_mov_b64 exec, -1
    s_mov_b32 s91, 200000
    s_waitcnt vmcnt(0)
    v_readfirstlane_b32 s92, v250
    s_cmp_lg_u32 s92, 0
    s_cbranch_scc1 {L}
    v_lshlrev_b32 v250, 4, v0
    v_mov_b32 v244, 0
    v_mov_b32 v245, 0
    v_mov_b32 v246, 0
    v_mov_b32 v247, 0
    s_mov_b32 s92, {WS_CNT}
    {Z}:
    buffer_store_dwordx4 v[244:247], v250, s[4:7], s92 offen sc1
    s_add_u32 s92, s92, 1024
    s_cmp_lt_u32 s92, {WS_CNT + CNT_BYTES}
    s_cbranch_scc1 {Z}
    v_mov_b32 v253, 1
    s_waitcnt vmcnt(0)
    buffer_store_dword v253, v252, s[84:87], 0 offen sc1
    s_branch {K}
    {L}:
    s_sleep 4
    buffer_load_dword v253, v252, s[84:87], 0 offen sc1
    s_sub_u32 s91, s91, 1
    s_waitcnt vmcnt(0)
    v_readfirstlane_b32 s92, v253
    s_cmp_eq_u32 s92, 1
    s_cbranch_scc1 {K}
    s_cmp_gt_i32 s91, 0
    s_cbranch_scc1 {L}
    {K}:
    v_lshlrev_b32 v250, {sh}, v0
    v_add_u32 v250, {off_sgpr}, v250
    v_mov_b32 v251, {OOB}
    v_cmp_gt_u32 vcc, {nrep}, v0
    v_cndmask_b32 v250, v251, v250, vcc
    v_mov_b32 v251, 1
    s_mov_b32 s92, {WS_CNT}
    buffer_store_dword v251, v250, s[4:7], s92 offen sc1
    {W}:""")


def main_kernel(p, name, cfg):
    e = p.e
    srd = prep.srd
    WB = 448 * 8192
    e(f'{name}:')
    e(f"""s_cmp_ge_u32 s2, 256
    s_cbranch_scc1 EXIT""")
    srd(e, 84, 104, 256)
    srd(e, 4, 112, WS_BYTES)
    srd(e, 12, 32, WB)
    srd(e, 16, 40, WB)
    srd(e, 40, 16, WB)
    srd(e, 44, 24, WB)
    srd(e, 48, 0, S * D * 2)
    e(f"""v_lshrrev_b32 v1, 6, v0
    v_readfirstlane_b32 s9, v1
    s_getreg_b32 s88, hwreg(HW_REG_XCC_ID)
    s_and_b32 s88, s88, 7""")
    if cfg.fb:
        e("""s_bfe_u32 s20, s2, 0x10003
        s_sub_u32 s20, 7, s20
        s_cmp_eq_u32 s88, 7
        s_cselect_b32 s88, s20, s88""")
    e(f"""; optimistic slot (die, s2>>3); the claim is checked after the first jobs
    s_lshr_b32 s21, s2, 3
    s_mov_b32 {sSLOW}, 0
    s_lshl_b32 s20, s88, 2
    s_add_u32 s20, s20, 160
    s_lshl_b32 s93, 1, s21
    v_mov_b32 v249, s93
    v_mov_b32 v248, {OOB}
    v_mov_b32 v247, s20
    v_cmp_eq_u32 vcc, 0, v0
    v_cndmask_b32 v248, v248, v247, vcc
    v_mov_b32 v252, 16
    v_mov_b32 v253, 0
    s_waitcnt lgkmcnt(0)""")
    tl(p, 0, 's2', WS_TL)
    claim = 'buffer_atomic_or v249, v248, s[84:87], 0 offen sc0'
    e(f"""SLOT:
    s_sub_u32 s22, s88, {cfg.xcc + 1}
    s_and_b32 s22, s22, 7
    s_cmp_eq_u32 s22, 7
    s_cbranch_scc1 PREP_LN
    s_mov_b32 s94, s21
    s_mul_i32 s100, s21, 7
    s_add_u32 s100, s100, s22
    s_add_u32 s100, s100, 32
    s_lshl_b32 s20, s22, 5
    s_add_u32 s20, s20, s21             ; job
    s_mul_i32 s10, s20, 4682
    s_lshr_b32 s10, s10, 16             ; head
    s_mul_i32 s21, s10, 14
    s_sub_u32 s20, s20, s21
    s_lshr_b32 s11, s20, 1              ; chunk
    s_and_b32 s33, s20, 1
    s_lshl_b32 s89, s10, 8
    s_lshl_b32 s20, s20, 2
    s_add_u32 s89, s89, s20
    s_add_u32 s89, s89, {C_MAT}
    s_add_u32 s90, s89, 128""")
    tl(p, 0, 's100', WS_TL + 16384)
    if cfg.etouch:
        e(f"""v_lshlrev_b32 v1, 7, v0
        s_mul_i32 s21, s10, 229376
        s_lshl_b32 s23, s20, 12
        s_add_u32 s21, s21, s23
        v_bfe_u32 v2, v0, 2, 5
        v_lshlrev_b32 v2, 13, v2
        v_and_b32 v3, 3, v0
        v_lshl_add_u32 v2, v3, 7, v2
        s_lshl_b32 s23, s20, 16
        s_lshl_b32 s24, s10, 9
        s_add_u32 s23, s23, s24
        s_cmp_ge_u32 s9, 2
        s_cbranch_scc1 ET_A
        buffer_load_dword v246, v1, s[16:19], s21 offen
        s_branch ET_D
        ET_A:
        buffer_load_dword v246, v2, s[12:15], s23 offen
        ET_D:""")

    if cfg.sb:
        assert prep.NBUILD == 4
        e(f"""s_mul_i32 s39, s22, 14
        s_add_u32 s39, s39, s94
        s_sub_u32 s39, s39, 18
        s_cmp_lt_u32 s94, 18
        s_cselect_b32 s39, 96, s39
        s_mul_i32 s36, s39, 43
        s_lshr_b32 s36, s36, 8
        s_mul_i32 s37, s36, 6
        s_sub_u32 s39, s39, s37
        s_lshr_b32 s37, s39, 1
        s_add_u32 s37, s37, {prep.NBUILD}
        s_and_b32 s38, s39, 1
        s_lshl_b32 s89, s39, 2
        s_lshl_b32 s39, s36, 8
        s_add_u32 s89, s89, s39
        s_add_u32 s89, s89, {C_MAT + 8 * prep.NBUILD}""")

        def tn(t0, t1, vL):
            return [f'v_lshrrev_b32 {t0}, 2, {vL}', f'v_lshlrev_b32 {t0}, 13, {t0}', f'v_and_b32 {t1}, 3, {vL}',
                    f'v_lshl_add_u32 {t0}, {t1}, 7, {t0}', 's_lshl_b32 s31, s37, 19', 's_lshl_b32 s32, s9, 17',
                    's_add_u32 s31, s31, s32', 's_lshl_b32 s32, s36, 9', 's_add_u32 s31, s31, s32',
                    's_cmp_ge_u32 s36, 16', f's_cselect_b32 s31, {OOB}, s31']
        tn.rA, tn.rB = 's[40:43]', 's[40:43]'
    else:
        def tn(t0, t1, vL):
            return [f'v_bfe_u32 {t0}, {vL}, 2, 3', f'v_lshlrev_b32 {t0}, 13, {t0}', f'v_and_b32 {t1}, 3, {vL}',
                    f'v_lshl_add_u32 {t0}, {t1}, 7, {t0}', 's_lshl_b32 s31, s11, 19', 's_lshl_b32 s32, s33, 18',
                    's_add_u32 s31, s31, s32', 's_lshl_b32 s32, s9, 16', 's_add_u32 s31, s31, s32', 's_add_u32 s31, s31, s21']
        tn.rA, tn.rB = 's[40:43]', 's[44:47]'
    prep.gemm_half(p, 1, 's[12:15]', 's[16:19]', tn, 2)
    e('buffer_load_dword v253, v252, s[84:87], 0 offen sc1')

    def sig1(n):
        e(f's_waitcnt vmcnt({n})\ns_barrier')
        done_flag(p, 's90', 1)
        if TL_ON[0]:
            e('s_memrealtime s[76:77]')
    if cfg.sb:
        e(claim)
        sig1(1)
        e("""s_cmp_ge_u32 s36, 16
        s_cbranch_scc1 JOB2_SKIP
        s_mov_b32 s10, s36
        s_mov_b32 s11, s37
        s_mov_b32 s33, s38""")
        prep.gemm_half(p, 0, 's[40:43]', 's[44:47]', None, 5)
    else:
        if cfg.dele:
            e("""s_cmp_eq_u32 s94, 0
        s_cbranch_scc1 JOB2_OFF
        s_cmp_eq_u32 s94, 3
        s_cbranch_scc1 JOB2_OFF
        s_cmp_eq_u32 s100, 74
        s_cbranch_scc1 JOB2_OFF
        s_cmp_lg_u32 s100, 77
        s_cbranch_scc1 JOB2
        JOB2_OFF:""")
            e(claim)
            sig1(1)
            e('s_branch JOB2_SKIP\nJOB2:')
        if cfg.isig:
            sig1(0)
        prep.gemm_half(p, 0, 's[40:43]', 's[44:47]', None, 5, None if cfg.isig else sig1, claim)
    e('s_waitcnt vmcnt(0)\ns_barrier')
    done_flag(p, 's89', 1)
    e('JOB2_SKIP:\ns_waitcnt vmcnt(0)')
    if TL_ON[0]:
        e(f's_lshl_b32 s98, s2, 6\ns_add_u32 s98, s98, {WS_TL}\nv_mov_b32 v255, 0\ns_waitcnt lgkmcnt(0)')
        for i in range(2, 7):
            e(f'v_mov_b32 v254, s{68 + 2 * i}\nbuffer_store_dword v254, v255, s[4:7], s98 offen offset:{4 * i}')
    e('s_branch PREP_DONE\nPREP_LN:')
    e('s_mov_b32 s100, s21')
    tl(p, 0, 's100', WS_TL + 16384)
    if cfg.dele:
        e(f"""s_cmp_lt_u32 s21, 16
        s_cbranch_scc1 LN_A
        s_sub_u32 s20, s21, 16
        s_cmp_ge_u32 s20, 7
        s_cselect_b32 s22, {7 * 32 - 3}, 0
        s_lshl_b32 s20, s20, 5
        s_sub_u32 s20, s20, s22
        s_cmp_eq_u32 s21, 30
        s_cselect_b32 s20, 6, s20
        s_cmp_eq_u32 s21, 31
        s_cselect_b32 s20, 102, s20
        s_mul_i32 s10, s20, 4682
        s_lshr_b32 s10, s10, 16
        s_mul_i32 s21, s10, 14
        s_sub_u32 s20, s20, s21
        s_lshr_b32 s11, s20, 1
        s_and_b32 s33, s20, 1
        s_lshl_b32 s89, s10, 8
        s_lshl_b32 s20, s20, 2
        s_add_u32 s89, s89, s20
        s_add_u32 s89, s89, {C_MAT}
        s_mov_b32 s90, {OOB}
        s_branch JOB2
        LN_A:""")
    e(claim)
    if cfg.sb:
        e("""s_cmp_ge_u32 s21, 16
        s_cbranch_scc1 LN_A
        s_mov_b32 s10, s21""")
        prep.qk_build(p, 's[40:43]', 's[44:47]')
        e(f"""buffer_load_dword v253, v252, s[84:87], 0 offen sc1
        s_lshl_b32 s89, s10, 8
        s_add_u32 s89, s89, {C_MAT}
        s_waitcnt vmcnt(0) lgkmcnt(0)
        s_barrier""")
        done_flag(p, 's89', 2 * prep.NBUILD, 2)
        e("""s_branch PREP_DONE
        LN_A:
        s_sub_u32 s21, s21, 16""")
    e(f"""s_lshl_b32 s89, s21, 2
    s_add_u32 s89, s89, {C_LN}
    s_lshl_b32 s10, s21, 2
    s_add_u32 s10, s10, s9
    s_cmp_ge_u32 s21, 16
    s_cselect_b32 s90, 0, 8
    s_cselect_b32 s10, 0, s10
    s_cbranch_scc1 LN_END
    LN_LOOP:""")
    mk = f"""
    v_and_b32 v250, 63, v0
    v_lshlrev_b32 v250, 4, v250
    v_mov_b32 v244, -1
    v_mov_b32 v245, -1
    v_mov_b32 v246, -1
    v_mov_b32 v247, -1
    s_lshl_b32 s20, s10, 12
    s_add_u32 s20, s20, {WS_MEMA}
    """ + '\n'.join(f'buffer_store_dwordx4 v[244:247], v250, s[4:7], s20 offen offset:{1024 * i} sc1' for i in range(4))
    prep.ln_job(p, 'sc1', ([], mk))
    e('LN_END:\nbuffer_load_dword v253, v252, s[84:87], 0 offen sc1\ns_waitcnt vmcnt(0)\ns_barrier')
    done_flag(p, 's89', 's90')
    e('s_cmp_ge_u32 s10, 64\ns_cbranch_scc1 F_CONT')
    e(f"""PREP_DONE:
    v_mov_b32 v4, 0
    s_cmp_lg_u32 s9, 0
    s_cbranch_scc1 EL_WAIT
    v_readfirstlane_b32 s20, v249
    s_and_b32 s20, s20, s93
    s_mov_b32 s21, -1
    s_cbranch_scc0 EL_PUB
    s_lshl_b32 s20, s88, 2
    s_add_u32 s20, s20, 192
    v_mov_b32 v1, 1
    v_mov_b32 v2, s20
    s_mov_b64 exec, 1
    buffer_atomic_add v1, v2, s[84:87], 0 offen sc0
    s_waitcnt vmcnt(0)
    s_mov_b64 exec, -1
    v_readfirstlane_b32 s94, v1
    v_and_b32 v1, 15, v0
    v_lshlrev_b32 v1, 2, v1
    s_mov_b32 s22, 200000
    EL_SUM:
    buffer_load_dword v3, v1, s[84:87], 0 offen offset:160 sc1
    s_waitcnt vmcnt(0)
    s_mov_b32 s23, 0""")
    for i in range(16):
        e(f'v_readlane_b32 s{24 + i}, v3, {i}')
    for i in range(8):
        e(f's_bcnt1_i32_b32 s20, s{24 + i}\ns_add_u32 s23, s23, s20\ns_add_u32 s23, s23, s{32 + i}')
    e(f"""s_sub_u32 s22, s22, 1
    s_cmp_gt_i32 s22, 0
    s_cbranch_scc0 EL_BAD
    s_cmp_lt_u32 s23, 256
    s_cbranch_scc1 EL_SUM
    v_readlane_b32 s95, v3, s88
    s_mov_b32 s21, 0
    s_bcnt0_i32_b32 s20, s95
    s_cmp_lt_u32 s94, s20
    s_cbranch_scc1 EL_BIT
    v_mov_b32 v1, 1
    v_mov_b32 v2, 4
    s_mov_b64 exec, 1
    buffer_atomic_add v1, v2, s[84:87], 0 offen sc0
    s_waitcnt vmcnt(0)
    s_mov_b64 exec, -1
    v_readfirstlane_b32 s22, v1
    s_mov_b32 s21, 256""")
    for i in range(8):
        e(f"""s_bcnt0_i32_b32 s20, s{24 + i}
        s_min_u32 s23, s20, s{32 + i}
        s_sub_u32 s20, s20, s23
        s_add_u32 s94, s23, s22
        s_mov_b32 s95, s{24 + i}
        s_mov_b32 s88, {i}
        s_cmp_lt_u32 s22, s20
        s_cbranch_scc1 EL_BIT
        s_sub_u32 s22, s22, s20""")
    e(f"""EL_BAD:
    s_mov_b32 s21, -2
    s_branch EL_PUB
    EL_BIT:
    s_ff0_i32_b32 s20, s95
    s_bitset1_b32 s95, s20
    s_sub_u32 s94, s94, 1
    s_cbranch_scc0 EL_BIT
    s_and_b32 s20, s20, 31
    s_add_u32 s21, s21, s20
    s_lshl_b32 s20, s88, 16
    s_add_u32 s21, s21, s20
    EL_PUB:
    v_mov_b32 v1, s21
    ds_write_b32 v4, v1
    s_waitcnt lgkmcnt(0)
    EL_WAIT:
    s_barrier
    ds_read_b32 v1, v4
    s_waitcnt lgkmcnt(0)
    v_readfirstlane_b32 s21, v1
    s_cmp_eq_u32 s21, -1
    s_cbranch_scc1 EL_OK
    s_cmp_eq_u32 s21, -2
    s_cbranch_scc1 EXIT
    s_barrier
    s_bfe_u32 {sSLOW}, s21, 0x10008
    s_bfe_u32 s88, s21, 0x30010
    s_and_b32 s21, s21, 31
    s_mov_b32 s93, 0
    v_mov_b32 v248, {OOB}
    s_branch SLOT
    EL_OK:""")
    tl(p, 1, 's2', WS_TL)
    srd(e, 16, 8, 7168)
    e(f's_mov_b32 {sIDX}, s100\ns_waitcnt lgkmcnt(0)')
    e(f"""s_cmp_ge_u32 {sIDX}, 32
    s_cbranch_scc1 WORKER
    s_and_b32 {sH}, {sIDX}, 15""")
    if cfg.diag:
        for i in range(NSTAMP):
            e(f's_mov_b32 s{STAMP0 + 2 * i}, 0')
    e(f"""s_cmp_ge_u32 {sIDX}, 16
    s_cbranch_scc1 ROLE_VO
    s_barrier""")
    wave_dispatch(e, 'QK')
    e(f"""ROLE_VO:
    s_cmp_ge_u32 {sH}, 14
    s_cbranch_scc1 ROLE_EN""")
    e('s_barrier')
    wave_dispatch(e, 'VO')
    e(f"""ROLE_EN:
    v_lshlrev_b32 v1, 7, v0
    s_and_b32 s20, {sH}, 1
    s_mul_i32 s20, s20, {9 * 32768}
    s_add_u32 s20, s20, {WS_MEMR}""")
    for i in range(9):
        e(f'buffer_load_dword v9, v1, s[4:7], s20 offen sc1\ns_add_u32 s20, s20, 32768')
    e('s_waitcnt vmcnt(0)')
    ready_wait(p, 'ln', 15)
    wave_dispatch(e, 'EN')
    e(f"""WORKER:
    s_sub_u32 s8, s8, 32
    s_cmp_ge_u32 s8, 96
    s_cbranch_scc1 ROLE_F
    s_cmp_ge_u32 s8, 48
    s_cselect_b32 s20, 48, 0
    s_sub_u32 s20, s8, s20            ; y
    s_cmp_ge_u32 s20, 42
    s_cbranch_scc1 WK_HI
    s_cmp_ge_u32 s20, 21
    s_cselect_b32 s21, 21, 0
    s_cselect_b32 s10, 7, 0
    s_sub_u32 s20, s20, s21
    s_mul_i32 s11, s20, 37
    s_lshr_b32 s11, s11, 8            ; replica
    s_mul_i32 s21, s11, 7
    s_sub_u32 s20, s20, s21
    s_add_u32 s10, s10, s20           ; head
    s_branch WK_GO
    WK_HI:
    s_cmp_ge_u32 s20, 45
    s_cselect_b32 s10, 15, 14
    s_cselect_b32 s21, 45, 42
    s_sub_u32 s11, s20, s21
    WK_GO:
    s_lshl_b32 s21, s10, 1
    s_cmp_ge_u32 s8, 48
    s_cbranch_scc1 ROLE_T
    s_add_u32 s21, s21, 1""")
    ready_wait(p, 'one', 15)
    tl(p, 5, 's100', WS_TL + 16384)
    workers.yt_worker(p, 0)
    e('EXIT:\ns_endpgm')
    e('ROLE_T:')
    ready_wait(p, 'one')
    workers.yt_worker(p, 1)
    e(f"""ROLE_F:
    s_cmp_ge_u32 s8, 112
    s_cbranch_scc1 F_CONT
    s_sub_u32 s10, s8, 80
    s_lshl_b32 s89, s10, 2
    s_add_u32 s89, s89, {C_LN}
    s_mov_b32 s90, 8
    s_lshl_b32 s10, s10, 2
    s_add_u32 s10, s10, s9
    s_branch LN_LOOP
    F_CONT:""")
    ready_wait(p, 'ln')
    e('s_sub_u32 s10, s8, 96')
    workers.f_worker(p)
    for role, nm in ((0, 'QK'), (1, 'VO'), (2, 'EN')):
        for w in range(4):
            e(f'{nm}{w}:')
            team_wave(p, role, w, cfg)


def build(cfg):
    TL_ON[0] = bool(cfg.tl)
    DBG_TL[0] = [(0, 0, 6), (16, 5, 7), (0, 5, 8), (16, 1, 9), (0, 1, 10), (9, 1, 11), (32, 2, 12), (16, 3, 13), (80, 4, 14), (191, 4, 15)] if cfg.dtl else None
    workers.MALL[0] = cfg.mall
    workers.GOV[:] = [cfg.gostep + 1, cfg.gostep2 + 1]
    workers.OSC[0] = ['', 'sc1', 'nt', 'sc0 sc1'][cfg.osc]
    hdr = open('cdna_kernels/%s.s.ref' % NAME).read().split('; Override launch')[0]
    hdr += '; @launch grid=(256,1,1) block=(256,1,1) lds=%d\n' % max(prep.H_LDS, prep.P_LDS, L_END, MAIN_LDS)
    hdr += '.amdgcn_target "amdgcn-amd-amdhsa--gfx950"\n.text\n'
    out = hdr
    p = Prog()
    main_kernel(p, NAME + '_kernel', cfg)
    out += '.globl %s_kernel\n.p2align 8\n.type %s_kernel,@function\n' % (NAME, NAME) + p.text()
    out += prep.KD % (NAME + '_kernel', 512)
    out = out.replace('\n    ', '\n')
    return out


def parse(args):
    cfg = Cfg()
    cfg.xcc = 7
    cfg.tl = 0
    cfg.fb = 0
    cfg.etouch = 1
    cfg.isig = 0
    cfg.dtl = 0
    cfg.dele = 0
    cfg.exit0 = 0
    cfg.osc = 0
    cfg.mall = 0
    for a in args:
        k, v = a.split('=')
        assert hasattr(cfg, k), k
        setattr(cfg, k, int(v))
    return cfg


if __name__ == '__main__':
    open(sys.argv[1], 'w').write(build(parse(sys.argv[2:])))
```

```python
import sys
from asmlib import *
from layout import *
import team, workers, prep
from team import *

NAME = 'parallel_sum__memory_aug_recurrent_mem_tr__dense_activation_squared_relu__prompt'
MAIN_LDS = 131072


def ready_wait(p, kind, lnmask=31):
    e = p.e
    L, W = p.label('RW'), p.label('RB')
    e(f"""s_cmp_lg_u32 {sWAVE}, 0
    s_cbranch_scc1 {W}
    s_mov_b32 s23, {WS_CNT}
    s_and_b32 s22, {sIDX}, 7
    s_lshl_b32 s22, s22, 7
    s_add_u32 s22, s22, {C_LN}
    v_and_b32 v1, {lnmask}, v0
    v_lshlrev_b32 v1, 2, v1
    v_add_u32 v1, s22, v1
    v_and_b32 v3, 15, v0
    v_min_u32 v3, 13, v3
    v_lshlrev_b32 v3, 2, v3""")
    if kind == 'one':
        e(f"""s_lshl_b32 s21, s21, 7
        s_add_u32 s21, s21, {C_MAT}
        v_add_u32 v3, s21, v3
        v_cmp_gt_u32 vcc, 32, v0
        v_cndmask_b32 v1, v3, v1, vcc""")
    if kind == 'vo':
        e(f"""v_lshrrev_b32 v2, 4, v0
        v_lshl_add_u32 v2, v2, 8, v3
        v_add_u32 v2, {C_MAT + 128}, v2""")
    e(f"""s_mov_b32 s22, 200000
    {L}:
    buffer_load_dword v3, v1, s[4:7], s23 offen sc1""")
    if kind == 'vo':
        e("""buffer_load_dword v5, v2, s[4:7], s23 offen sc1
        buffer_load_dword v6, v2, s[4:7], s23 offen offset:1024 sc1
        buffer_load_dword v7, v2, s[4:7], s23 offen offset:2048 sc1
        buffer_load_dword v8, v2, s[4:7], s23 offen offset:3072 sc1""")
    e(f"""s_sub_u32 s22, s22, 1
    s_cmp_gt_i32 s22, 0
    s_cbranch_scc0 {W}
    s_waitcnt vmcnt(0)""")
    if kind == 'vo':
        e('v_min3_u32 v3, v3, v5, v6\nv_min3_u32 v3, v3, v7, v8')
    e(f"""v_cmp_ne_u32 vcc, 1, v3
    s_cbranch_vccz {W}
    s_sleep 4
    s_branch {L}
    {W}:
    s_barrier""")


def done_flag(p, off_sgpr, nrep, sh=7):
    e = p.e
    W, L, K, Z = p.label('DW'), p.label('DL'), p.label('DK'), p.label('DZ')
    e(f"""s_cmp_lg_u32 {sWAVE}, 0
    s_cbranch_scc1 {W}
    v_readfirstlane_b32 s92, v253
    s_cmp_eq_u32 s92, 1
    s_cbranch_scc1 {K}
    v_mov_b32 v250, 1
    v_mov_b32 v251, 20
    s_mov_b64 exec, 1
    buffer_atomic_add v250, v251, s[84:87], 0 offen sc0
    s_mov_b64 exec, -1
    s_mov_b32 s91, 200000
    s_waitcnt vmcnt(0)
    v_readfirstlane_b32 s92, v250
    s_cmp_lg_u32 s92, 0
    s_cbranch_scc1 {L}
    v_lshlrev_b32 v250, 4, v0
    v_mov_b32 v244, 0
    v_mov_b32 v245, 0
    v_mov_b32 v246, 0
    v_mov_b32 v247, 0
    s_mov_b32 s92, {WS_CNT}
    {Z}:
    buffer_store_dwordx4 v[244:247], v250, s[4:7], s92 offen sc1
    s_add_u32 s92, s92, 1024
    s_cmp_lt_u32 s92, {WS_CNT + CNT_BYTES}
    s_cbranch_scc1 {Z}
    v_mov_b32 v253, 1
    s_waitcnt vmcnt(0)
    buffer_store_dword v253, v252, s[84:87], 0 offen sc1
    s_branch {K}
    {L}:
    s_sleep 4
    buffer_load_dword v253, v252, s[84:87], 0 offen sc1
    s_sub_u32 s91, s91, 1
    s_waitcnt vmcnt(0)
    v_readfirstlane_b32 s92, v253
    s_cmp_eq_u32 s92, 1
    s_cbranch_scc1 {K}
    s_cmp_gt_i32 s91, 0
    s_cbranch_scc1 {L}
    {K}:
    v_lshlrev_b32 v250, {sh}, v0
    v_add_u32 v250, {off_sgpr}, v250
    v_mov_b32 v251, {OOB}
    v_cmp_gt_u32 vcc, {nrep}, v0
    v_cndmask_b32 v250, v251, v250, vcc
    v_mov_b32 v251, 1
    s_mov_b32 s92, {WS_CNT}
    buffer_store_dword v251, v250, s[4:7], s92 offen sc1
    {W}:""")


def main_kernel(p, name, cfg):
    e = p.e
    srd = prep.srd
    WB = 448 * 8192
    e(f'{name}:')
    e(f"""s_cmp_ge_u32 s2, 256
    s_cbranch_scc1 EXIT""")
    srd(e, 84, 104, 256)
    srd(e, 4, 112, WS_BYTES)
    srd(e, 12, 32, WB)
    srd(e, 16, 40, WB)
    srd(e, 40, 16, WB)
    srd(e, 44, 24, WB)
    srd(e, 48, 0, S * D * 2)
    e(f"""v_lshrrev_b32 v1, 6, v0
    v_readfirstlane_b32 s9, v1
    s_getreg_b32 s88, hwreg(HW_REG_XCC_ID)
    s_and_b32 s88, s88, 7""")
    if cfg.fb:
        e("""s_bfe_u32 s20, s2, 0x10003
        s_sub_u32 s20, 7, s20
        s_cmp_eq_u32 s88, 7
        s_cselect_b32 s88, s20, s88""")
    if cfg.hwid:
        e("""; optimistic slot (die, shader engine, compute unit); the claim is checked after the first jobs
        s_getreg_b32 s20, hwreg(HW_REG_HW_ID)
        s_bfe_u32 s21, s20, 0x30008
        s_bfe_u32 s20, s20, 0x2000d
        s_lshl_b32 s21, s21, 2
        s_add_u32 s21, s21, s20""")
    else:
        e('s_lshr_b32 s21, s2, 3')
    e(f"""
    s_mov_b32 {sSLOW}, 0
    s_lshl_b32 s20, s88, 2
    s_add_u32 s20, s20, 160
    s_lshl_b32 s93, 1, s21
    v_mov_b32 v249, s93
    v_mov_b32 v248, {OOB}
    v_mov_b32 v247, s20
    v_cmp_eq_u32 vcc, 0, v0
    v_cndmask_b32 v248, v248, v247, vcc
    v_mov_b32 v252, 16
    v_mov_b32 v253, 0
    s_waitcnt lgkmcnt(0)""")
    tl(p, 0, 's2', WS_TL)
    claim = 'buffer_atomic_or v249, v248, s[84:87], 0 offen sc0'
    e(f"""SLOT:
    s_sub_u32 s22, s88, {cfg.xcc + 1}
    s_and_b32 s22, s22, 7
    s_cmp_eq_u32 s22, 7
    s_cbranch_scc1 PREP_LN
    s_mov_b32 s94, s21
    s_mul_i32 s100, s21, 7
    s_add_u32 s100, s100, s22
    s_add_u32 s100, s100, 32
    s_lshl_b32 s20, s22, 5
    s_add_u32 s20, s20, s21             ; job
    s_mul_i32 s10, s20, 4682
    s_lshr_b32 s10, s10, 16             ; head
    s_mul_i32 s21, s10, 14
    s_sub_u32 s20, s20, s21
    s_lshr_b32 s11, s20, 1              ; chunk
    s_and_b32 s33, s20, 1
    s_lshl_b32 s89, s10, 8
    s_lshl_b32 s20, s20, 2
    s_add_u32 s89, s89, s20
    s_add_u32 s89, s89, {C_MAT}
    s_add_u32 s90, s89, 128""")
    tl(p, 0, 's100', WS_TL + 16384)
    if cfg.etouch:
        e(f"""v_lshlrev_b32 v1, 7, v0
        s_mul_i32 s21, s10, 229376
        s_lshl_b32 s23, s20, 12
        s_add_u32 s21, s21, s23
        v_bfe_u32 v2, v0, 2, 5
        v_lshlrev_b32 v2, 13, v2
        v_and_b32 v3, 3, v0
        v_lshl_add_u32 v2, v3, 7, v2
        s_lshl_b32 s23, s20, 16
        s_lshl_b32 s24, s10, 9
        s_add_u32 s23, s23, s24
        s_cmp_ge_u32 s9, 2
        s_cbranch_scc1 ET_A
        buffer_load_dword v246, v1, s[16:19], s21 offen
        s_branch ET_D
        ET_A:
        buffer_load_dword v246, v2, s[12:15], s23 offen
        ET_D:""")

    if cfg.sb:
        assert prep.NBUILD == 4
        e(f"""s_mul_i32 s39, s22, 14
        s_add_u32 s39, s39, s94
        s_sub_u32 s39, s39, 18
        s_cmp_lt_u32 s94, 18
        s_cselect_b32 s39, 96, s39
        s_mul_i32 s36, s39, 43
        s_lshr_b32 s36, s36, 8
        s_mul_i32 s37, s36, 6
        s_sub_u32 s39, s39, s37
        s_lshr_b32 s37, s39, 1
        s_add_u32 s37, s37, {prep.NBUILD}
        s_and_b32 s38, s39, 1
        s_lshl_b32 s89, s39, 2
        s_lshl_b32 s39, s36, 8
        s_add_u32 s89, s89, s39
        s_add_u32 s89, s89, {C_MAT + 8 * prep.NBUILD}""")

        def tn(t0, t1, vL):
            return [f'v_lshrrev_b32 {t0}, 2, {vL}', f'v_lshlrev_b32 {t0}, 13, {t0}', f'v_and_b32 {t1}, 3, {vL}',
                    f'v_lshl_add_u32 {t0}, {t1}, 7, {t0}', 's_lshl_b32 s31, s37, 19', 's_lshl_b32 s32, s9, 17',
                    's_add_u32 s31, s31, s32', 's_lshl_b32 s32, s36, 9', 's_add_u32 s31, s31, s32',
                    's_cmp_ge_u32 s36, 16', f's_cselect_b32 s31, {OOB}, s31']
        tn.rA, tn.rB = 's[40:43]', 's[40:43]'
    else:
        def tn(t0, t1, vL):
            return [f'v_bfe_u32 {t0}, {vL}, 2, 3', f'v_lshlrev_b32 {t0}, 13, {t0}', f'v_and_b32 {t1}, 3, {vL}',
                    f'v_lshl_add_u32 {t0}, {t1}, 7, {t0}', 's_lshl_b32 s31, s11, 19', 's_lshl_b32 s32, s33, 18',
                    's_add_u32 s31, s31, s32', 's_lshl_b32 s32, s9, 16', 's_add_u32 s31, s31, s32', 's_add_u32 s31, s31, s21']
        tn.rA, tn.rB = 's[40:43]', 's[44:47]'
    prep.gemm_half(p, 1, 's[12:15]', 's[16:19]', tn, 2)
    e('buffer_load_dword v253, v252, s[84:87], 0 offen sc1')

    def sig1(n):
        e(f's_waitcnt vmcnt({n})\ns_barrier')
        done_flag(p, 's90', 1)
        if TL_ON[0]:
            e('s_memrealtime s[76:77]')
    if cfg.sb:
        e(claim)
        sig1(1)
        e("""s_cmp_ge_u32 s36, 16
        s_cbranch_scc1 JOB2_SKIP
        s_mov_b32 s10, s36
        s_mov_b32 s11, s37
        s_mov_b32 s33, s38""")
        prep.gemm_half(p, 0, 's[40:43]', 's[44:47]', None, 5)
    else:
        if cfg.dele:
            e("""s_cmp_eq_u32 s94, 0
        s_cbranch_scc1 JOB2_OFF
        s_cmp_eq_u32 s94, 3
        s_cbranch_scc1 JOB2_OFF
        s_cmp_eq_u32 s100, 74
        s_cbranch_scc1 JOB2_OFF
        s_cmp_lg_u32 s100, 77
        s_cbranch_scc1 JOB2
        JOB2_OFF:""")
            e(claim)
            sig1(1)
            e('s_branch JOB2_SKIP\nJOB2:')
        if cfg.isig:
            sig1(0)
        prep.gemm_half(p, 0, 's[40:43]', 's[44:47]', None, 5, None if cfg.isig else sig1, claim)
    e('s_waitcnt vmcnt(0)\ns_barrier')
    done_flag(p, 's89', 1)
    e('JOB2_SKIP:\ns_waitcnt vmcnt(0)')
    if TL_ON[0]:
        e(f's_lshl_b32 s98, s2, 6\ns_add_u32 s98, s98, {WS_TL}\nv_mov_b32 v255, 0\ns_waitcnt lgkmcnt(0)')
        for i in range(2, 7):
            e(f'v_mov_b32 v254, s{68 + 2 * i}\nbuffer_store_dword v254, v255, s[4:7], s98 offen offset:{4 * i}')
    e('s_branch PREP_DONE\nPREP_LN:')
    e('s_mov_b32 s100, s21')
    tl(p, 0, 's100', WS_TL + 16384)
    if cfg.dele:
        e(f"""s_cmp_lt_u32 s21, 16
        s_cbranch_scc1 LN_A
        s_sub_u32 s20, s21, 16
        s_cmp_ge_u32 s20, 7
        s_cselect_b32 s22, {7 * 32 - 3}, 0
        s_lshl_b32 s20, s20, 5
        s_sub_u32 s20, s20, s22
        s_cmp_eq_u32 s21, 30
        s_cselect_b32 s20, 6, s20
        s_cmp_eq_u32 s21, 31
        s_cselect_b32 s20, 102, s20
        s_mul_i32 s10, s20, 4682
        s_lshr_b32 s10, s10, 16
        s_mul_i32 s21, s10, 14
        s_sub_u32 s20, s20, s21
        s_lshr_b32 s11, s20, 1
        s_and_b32 s33, s20, 1
        s_lshl_b32 s89, s10, 8
        s_lshl_b32 s20, s20, 2
        s_add_u32 s89, s89, s20
        s_add_u32 s89, s89, {C_MAT}
        s_mov_b32 s90, {OOB}
        s_branch JOB2
        LN_A:""")
    e(claim)
    if cfg.sb:
        e("""s_cmp_ge_u32 s21, 16
        s_cbranch_scc1 LN_A
        s_mov_b32 s10, s21""")
        prep.qk_build(p, 's[40:43]', 's[44:47]')
        e(f"""buffer_load_dword v253, v252, s[84:87], 0 offen sc1
        s_lshl_b32 s89, s10, 8
        s_add_u32 s89, s89, {C_MAT}
        s_waitcnt vmcnt(0) lgkmcnt(0)
        s_barrier""")
        done_flag(p, 's89', 2 * prep.NBUILD, 2)
        e("""s_branch PREP_DONE
        LN_A:
        s_sub_u32 s21, s21, 16""")
    e(f"""s_lshl_b32 s89, s21, 2
    s_add_u32 s89, s89, {C_LN}
    s_lshl_b32 s10, s21, 2
    s_add_u32 s10, s10, s9
    s_cmp_ge_u32 s21, 16
    s_cselect_b32 s90, 0, 8
    s_cselect_b32 s10, 0, s10
    s_cbranch_scc1 LN_END
    LN_LOOP:""")
    mk = f"""
    v_and_b32 v250, 63, v0
    v_lshlrev_b32 v250, 4, v250
    v_mov_b32 v244, -1
    v_mov_b32 v245, -1
    v_mov_b32 v246, -1
    v_mov_b32 v247, -1
    s_lshl_b32 s20, s10, 12
    s_add_u32 s20, s20, {WS_MEMA}
    """ + '\n'.join(f'buffer_store_dwordx4 v[244:247], v250, s[4:7], s20 offen offset:{1024 * i} sc1' for i in range(4))
    prep.ln_job(p, 'sc1', ([], mk))
    e('LN_END:\nbuffer_load_dword v253, v252, s[84:87], 0 offen sc1\ns_waitcnt vmcnt(0)\ns_barrier')
    done_flag(p, 's89', 's90')
    e('s_cmp_ge_u32 s10, 64\ns_cbranch_scc1 F_CONT')
    e(f"""PREP_DONE:
    v_mov_b32 v4, 0
    s_cmp_lg_u32 s9, 0
    s_cbranch_scc1 EL_WAIT
    v_readfirstlane_b32 s20, v249
    s_and_b32 s20, s20, s93
    s_mov_b32 s21, -1
    s_cbranch_scc0 EL_PUB
    s_lshl_b32 s20, s88, 2
    s_add_u32 s20, s20, 192
    v_mov_b32 v1, 1
    v_mov_b32 v2, s20
    v_mov_b32 v3, 8
    s_mov_b64 exec, 1
    buffer_atomic_add v1, v3, s[84:87], 0 offen
    buffer_atomic_add v1, v2, s[84:87], 0 offen sc0
    s_waitcnt vmcnt(0)
    s_mov_b64 exec, -1
    v_readfirstlane_b32 s94, v1
    v_and_b32 v1, 15, v0
    v_lshlrev_b32 v1, 2, v1
    s_mov_b32 s22, 200000
    EL_SUM:
    buffer_load_dword v3, v1, s[84:87], 0 offen offset:160 sc1
    s_waitcnt vmcnt(0)
    s_mov_b32 s23, 0""")
    for i in range(16):
        e(f'v_readlane_b32 s{24 + i}, v3, {i}')
    for i in range(8):
        e(f's_bcnt1_i32_b32 s20, s{24 + i}\ns_add_u32 s23, s23, s20\ns_add_u32 s23, s23, s{32 + i}')
    e(f"""s_sub_u32 s22, s22, 1
    s_cmp_gt_i32 s22, 0
    s_cbranch_scc0 EL_BAD
    s_cmp_lt_u32 s23, 256
    s_cbranch_scc1 EL_SUM
    v_readlane_b32 s95, v3, s88
    s_mov_b32 s21, 0
    s_bcnt0_i32_b32 s20, s95
    s_cmp_lt_u32 s94, s20
    s_cbranch_scc1 EL_BIT
    v_mov_b32 v1, 1
    v_mov_b32 v2, 4
    s_mov_b64 exec, 1
    buffer_atomic_add v1, v2, s[84:87], 0 offen sc0
    s_waitcnt vmcnt(0)
    s_mov_b64 exec, -1
    v_readfirstlane_b32 s22, v1
    s_mov_b32 s21, 256""")
    for i in range(8):
        e(f"""s_bcnt0_i32_b32 s20, s{24 + i}
        s_min_u32 s23, s20, s{32 + i}
        s_sub_u32 s20, s20, s23
        s_add_u32 s94, s23, s22
        s_mov_b32 s95, s{24 + i}
        s_mov_b32 s88, {i}
        s_cmp_lt_u32 s22, s20
        s_cbranch_scc1 EL_BIT
        s_sub_u32 s22, s22, s20""")
    e(f"""EL_BAD:
    s_mov_b32 s21, -2
    s_branch EL_PUB
    EL_BIT:
    s_ff0_i32_b32 s20, s95
    s_bitset1_b32 s95, s20
    s_sub_u32 s94, s94, 1
    s_cbranch_scc0 EL_BIT
    s_and_b32 s20, s20, 31
    s_add_u32 s21, s21, s20
    s_lshl_b32 s20, s88, 16
    s_add_u32 s21, s21, s20
    EL_PUB:
    v_mov_b32 v1, s21
    ds_write_b32 v4, v1
    s_waitcnt lgkmcnt(0)
    EL_WAIT:
    s_barrier
    ds_read_b32 v1, v4
    s_waitcnt lgkmcnt(0)
    v_readfirstlane_b32 s21, v1
    s_cmp_eq_u32 s21, -1
    s_cbranch_scc1 EL_OK
    s_cmp_eq_u32 s21, -2
    s_cbranch_scc1 EXIT
    s_barrier
    s_bfe_u32 {sSLOW}, s21, 0x10008
    s_bfe_u32 s88, s21, 0x30010
    s_and_b32 s21, s21, 31
    s_mov_b32 s93, 0
    v_mov_b32 v248, {OOB}
    s_branch SLOT
    EL_OK:""")
    tl(p, 1, 's2', WS_TL)
    srd(e, 16, 8, 7168)
    e(f's_mov_b32 {sIDX}, s100\ns_waitcnt lgkmcnt(0)')
    e(f"""s_cmp_ge_u32 {sIDX}, 32
    s_cbranch_scc1 WORKER
    s_and_b32 {sH}, {sIDX}, 15""")
    if cfg.diag:
        for i in range(NSTAMP):
            e(f's_mov_b32 s{STAMP0 + 2 * i}, 0')
    e(f"""s_cmp_ge_u32 {sIDX}, 16
    s_cbranch_scc1 ROLE_VO
    s_barrier""")
    wave_dispatch(e, 'QK')
    e(f"""ROLE_VO:
    s_cmp_ge_u32 {sH}, 14
    s_cbranch_scc1 ROLE_EN""")
    e('s_barrier')
    wave_dispatch(e, 'VO')
    e(f"""ROLE_EN:
    v_lshlrev_b32 v1, 7, v0
    s_and_b32 s20, {sH}, 1
    s_mul_i32 s20, s20, {9 * 32768}
    s_add_u32 s20, s20, {WS_MEMR}""")
    for i in range(9):
        e(f'buffer_load_dword v9, v1, s[4:7], s20 offen sc1\ns_add_u32 s20, s20, 32768')
    e('s_waitcnt vmcnt(0)')
    ready_wait(p, 'ln', 15)
    wave_dispatch(e, 'EN')
    e(f"""WORKER:
    s_sub_u32 s8, s8, 32
    s_cmp_ge_u32 s8, 96
    s_cbranch_scc1 ROLE_F
    s_cmp_ge_u32 s8, 48
    s_cselect_b32 s20, 48, 0
    s_sub_u32 s20, s8, s20            ; y
    s_cmp_ge_u32 s20, 42
    s_cbranch_scc1 WK_HI
    s_cmp_ge_u32 s20, 21
    s_cselect_b32 s21, 21, 0
    s_cselect_b32 s10, 7, 0
    s_sub_u32 s20, s20, s21
    s_mul_i32 s11, s20, 37
    s_lshr_b32 s11, s11, 8            ; replica
    s_mul_i32 s21, s11, 7
    s_sub_u32 s20, s20, s21
    s_add_u32 s10, s10, s20           ; head
    s_branch WK_GO
    WK_HI:
    s_cmp_ge_u32 s20, 45
    s_cselect_b32 s10, 15, 14
    s_cselect_b32 s21, 45, 42
    s_sub_u32 s11, s20, s21
    WK_GO:
    s_lshl_b32 s21, s10, 1
    s_cmp_ge_u32 s8, 48
    s_cbranch_scc1 ROLE_T
    s_add_u32 s21, s21, 1""")
    ready_wait(p, 'one', 15)
    tl(p, 5, 's100', WS_TL + 16384)
    workers.yt_worker(p, 0)
    e('EXIT:\ns_endpgm')
    e('ROLE_T:')
    ready_wait(p, 'one')
    workers.yt_worker(p, 1)
    e(f"""ROLE_F:
    s_cmp_ge_u32 s8, 112
    s_cbranch_scc1 F_CONT
    s_sub_u32 s10, s8, 80
    s_lshl_b32 s89, s10, 2
    s_add_u32 s89, s89, {C_LN}
    s_mov_b32 s90, 8
    s_lshl_b32 s10, s10, 2
    s_add_u32 s10, s10, s9
    s_branch LN_LOOP
    F_CONT:""")
    ready_wait(p, 'ln')
    e('s_sub_u32 s10, s8, 96')
    workers.f_worker(p)
    for role, nm in ((0, 'QK'), (1, 'VO'), (2, 'EN')):
        for w in range(4):
            e(f'{nm}{w}:')
            team_wave(p, role, w, cfg)


def build(cfg):
    TL_ON[0] = bool(cfg.tl)
    DBG_TL[0] = [(0, 0, 6), (16, 5, 7), (0, 5, 8), (16, 1, 9), (0, 1, 10), (9, 1, 11), (32, 2, 12), (16, 3, 13), (80, 4, 14), (191, 4, 15)] if cfg.dtl else None
    workers.MALL[0] = cfg.mall
    workers.GOV[:] = [cfg.gostep + 1, cfg.gostep2 + 1]
    workers.OSC[0] = ['', 'sc1', 'nt', 'sc0 sc1'][cfg.osc]
    hdr = open('cdna_kernels/%s.s.ref' % NAME).read().split('; Override launch')[0]
    hdr += '; @launch grid=(256,1,1) block=(256,1,1) lds=%d\n' % max(prep.H_LDS, prep.P_LDS, L_END, MAIN_LDS)
    hdr += '.amdgcn_target "amdgcn-amd-amdhsa--gfx950"\n.text\n'
    out = hdr
    p = Prog()
    main_kernel(p, NAME + '_kernel', cfg)
    out += '.globl %s_kernel\n.p2align 8\n.type %s_kernel,@function\n' % (NAME, NAME) + p.text()
    out += prep.KD % (NAME + '_kernel', 512)
    out = out.replace('\n    ', '\n')
    return out


def parse(args):
    cfg = Cfg()
    cfg.xcc = 7
    cfg.tl = 0
    cfg.fb = 0
    cfg.hwid = 0
    cfg.etouch = 1
    cfg.isig = 0
    cfg.dtl = 0
    cfg.dele = 0
    cfg.exit0 = 0
    cfg.osc = 0
    cfg.mall = 0
    for a in args:
        k, v = a.split('=')
        assert hasattr(cfg, k), k
        setattr(cfg, k, int(v))
    return cfg


if __name__ == '__main__':
    open(sys.argv[1], 'w').write(build(parse(sys.argv[2:])))
```

```python
from asmlib import *
from layout import *
from prep import srd

sWS = 's[4:7]'
sW = 's9'
sTO = 's38'
sCN = 's39'
TIMEOUT = 400000
OOB = 0x40000000
MALL = [1]
NF = [128]
CHEAP = [2]
OSC = ['']
NRY = 3


def wait_ge(p, vaddr, vtmp, val, sleep=4):
    e = p.e
    L, D = p.label('WT'), p.label('WD')
    e(f'''{L}:
    buffer_load_dword {vtmp}, {vaddr}, {sWS}, {sCN} offen sc1
    s_sub_u32 {sTO}, {sTO}, 1
    s_cmp_gt_i32 {sTO}, 0
    s_cbranch_scc0 {D}
    s_waitcnt vmcnt(0)
    v_cmp_gt_u32 vcc, {val}, {vtmp}
    s_cbranch_vccz {D}
    s_sleep {sleep}
    s_branch {L}
    {D}:''')


def signal(p, vaddr, vtmp):
    e = p.e
    L = p.label('SG')
    e(f'''s_waitcnt vmcnt(0) lgkmcnt(0)
    s_barrier
    s_cmp_lg_u32 {sW}, 0
    s_cbranch_scc1 {L}
    v_mov_b32 {vtmp}, 1
    s_mov_b64 exec, 1
    buffer_atomic_add {vtmp}, {vaddr}, {sWS}, {sCN} offen
    s_mov_b64 exec, -1
    {L}:''')


GOV = [2, 6]


def go_wait(p, vCA, t0, sA, val):
    L = p.label('GW')
    p.e(f"""s_cmp_lg_u32 {sW}, 0
    s_cbranch_scc1 {L}
    s_and_b32 {sA}, s8, 7
    s_lshl_b32 {sA}, {sA}, 7
    s_add_u32 {sA}, {sA}, {C_GO}
    v_mov_b32 {vCA}, {sA}""")
    wait_ge(p, vCA, t0, val, 16)
    p.e(f'{L}:\ns_barrier')


def load_valid(p, loads, regs, vtmp, sleep, extra=None, onfail=None):
    e = p.e
    L, D = p.label('LV'), p.label('LD')
    e(f'{L}:')
    for l in loads:
        e(l)
    e(f"""s_sub_u32 {sTO}, {sTO}, 1
    s_cmp_gt_i32 {sTO}, 0
    s_cbranch_scc0 {D}""")
    n = len(loads)
    per = len(regs) // n
    for i in range(n):
        e(f's_waitcnt vmcnt({n - 1 - i})')
        r = regs[per * i:per * i + per]
        if per == 1:
            e(f'v_mov_b32 {vtmp}, {r[0]}' if i == 0 else f'v_max_u32 {vtmp}, {vtmp}, {r[0]}')
        else:
            e(f'v_max_u32 {vtmp}, {r[0]}, {r[1]}' if i == 0 else f'v_max3_u32 {vtmp}, {vtmp}, {r[0]}, {r[1]}')
            e(f'v_max3_u32 {vtmp}, {vtmp}, {r[2]}, {r[3]}')
    e(f"""v_cmp_eq_u32 vcc, -1, {vtmp}
    s_cbranch_vccz {D}""")
    if onfail:
        onfail()
    else:
        e(f's_sleep {sleep}')
    if extra:
        e(f's_cmp_ge_u32 {extra}, 60\ns_cbranch_scc1 {L}\ns_sleep 48')
    e(f"""s_branch {L}
    {D}:
    s_waitcnt vmcnt(0)""")


def yt_worker(p, kind):
    e = p.e
    isY = kind == 0
    L_T, L_XA = 65536, 98304
    V = Alloc('v', 1, 254)
    A = Alloc('a', 0, 256)
    vL, vG, vC, t0, t1, t2, vL16, vXB, vCA = (V.get() for _ in range(9))
    x1, x2 = V.get(), V.get()
    if not isY:
        Sx = V.get(8, 4)
        Sm = V.get(8, 4)
    else:
        vIdx, vTo = V.get(), V.get()
    buf = V.get(32, 4)
    acc = V.get(56, 4)
    frag = {}
    for t in range(7):
        for k in range(7):
            frag[(t, k)] = A.get(8, 4) if A.left() >= 8 else V.get(8, 4)
    sS, sCur, sW7, sO, sA, sB, sPrev = 's12', 's13', 's14', 's15', 's16', 's17', 's18'
    TLB = WS_TL + 16384
    e(f"""v_and_b32 {vL}, 63, v0
    v_lshrrev_b32 {vG}, 4, {vL}
    v_and_b32 {vC}, 15, {vL}
    v_lshlrev_b32 {vL16}, 4, {vL}
    v_mov_b32 {vXB}, {vL16}
    s_mov_b32 {sTO}, {TIMEOUT}
    s_mov_b32 {sCN}, {WS_CNT}
    s_mov_b32 {sS}, s11
    s_mov_b32 {sCur}, 0
    s_mov_b32 {sPrev}, {OOB}
    s_mul_i32 {sW7}, {sW}, 7168""")

    def xb_dma(seg, lds):
        e(f"""s_lshl_b32 {sA}, {seg}, 15
        s_add_u32 {sA}, {sA}, {sW7}
        s_add_u32 {sA}, {sA}, {WS_XNB}
        s_add_u32 m0, {lds}, {sW7}""")
        for i in range(7):
            if i == 4:
                e(f's_add_u32 {sA}, {sA}, 4096\ns_add_u32 m0, m0, 4096')
            e(f'buffer_load_dwordx4 {vL16}, {sWS}, {sA} offen offset:{(i & 3) * 1024} sc1 lds')

    def mem_wait():
        e(f"""s_lshl_b32 {sA}, {sS}, 13
        s_add_u32 {sA}, {sA}, {WS_MEMA}
        s_add_u32 {sB}, {sA}, 4096""")

        def hint():
            e(f"""s_sub_u32 {sO}, {sS}, 1
            s_cmp_ge_u32 {sS}, 61
            s_cselect_b32 {sO}, {sO}, {sS}
            s_lshl_b32 {sO}, {sO}, 13
            s_add_u32 {sO}, {sO}, {WS_MEMA}
            v_mov_b32 {t1}, 6144""")
            load_valid(p, [f'buffer_load_dword {buf[28]}, {t1}, {sWS}, {sO} offen sc1'], [buf[28]], t0, 12)
        load_valid(p, [f'buffer_load_dwordx4 {buf[4 * k:4 * k + 4]}, {vL16}, {sWS}, {sA if k < 4 else sB} offen '
                       f'offset:{(k & 3) * 1024} sc1' for k in range(7)], [buf[i] for i in range(28)], t0, 3,
                   None, hint if CHEAP[0] else None)
    if not isY:
        go_wait(p, vCA, t0, sA, GOV[0])
    xb_dma(sS, sCur)
    if isY:
        e(f"""s_and_b32 {sA}, {sW}, 1
        s_mul_i32 {sB}, {sA}, {7 * 32}
        s_lshr_b32 {sA}, {sW}, 1
        s_add_u32 {sB}, {sB}, {sA}
        s_lshl_b32 {sA}, s10, 1
        s_add_u32 {sB}, {sB}, {sA}""")
    else:
        e(f"""s_mul_i32 {sB}, s10, 28
        s_mul_i32 {sA}, {sW}, 7
        s_add_u32 {sB}, {sB}, {sA}""")
    e(f"""s_mul_i32 {sB}, {sB}, 14336
    s_add_u32 {sB}, {sB}, {WS_WVO if isY else WS_WQK}""")
    if isY:
        e(f"""v_and_b32 {t0}, 7, {vL}
        v_min_u32 {t0}, 6, {t0}
        v_mul_u32_u24 {t0}, {32 * 14336}, {t0}
        v_bfe_u32 {t1}, {vL}, 3, 1
        v_mul_u32_u24 {t1}, 14332, {t1}
        v_add_u32 {t0}, {t0}, {t1}
        buffer_load_dword {t2}, {t0}, {sWS}, {sB} offen sc1""")
    n_out = 8
    for t in range(7):
        for k in range(7):
            f = frag[(t, k)]
            if k % 2 == 0:
                e(f's_add_u32 {sA}, {sB}, {(t * 7 * (32 if isY else 1) + k) * 2048}')
            o = (k & 1) * 2048
            e(f"""buffer_load_dwordx4 {f[0:4]}, {vL16}, {sWS}, {sA} offen offset:{o} sc1
            buffer_load_dwordx4 {f[4:8]}, {vL16}, {sWS}, {sA} offen offset:{o + 1024} sc1""")
            n_out += 2
            if n_out >= 60:
                e('s_waitcnt vmcnt(40)')
                n_out = 40
    if isY:
        e(f"""v_bfe_u32 {t0}, {vC}, 1, 1
        v_mul_u32_u24 {vIdx}, 0xaaaa, {t0}
        v_add_u32 {vIdx}, 0x4444, {vIdx}
        v_lshlrev_b32 {t0}, 12, {vG}
        v_lshl_add_u32 {t0}, {vC}, 4, {t0}
        s_mul_i32 {sA}, {sW}, {7 * 4096}
        s_lshl_b32 {sB}, s10, 8
        s_add_u32 {sA}, {sA}, {sB}
        v_add_u32 {x1}, {sA}, {t0}
        v_add_u32 {t0}, {4 * 4096}, {x1}
        v_mov_b32 {t1}, {OOB}
        v_cmp_gt_u32 vcc, 3, {vG}
        v_cndmask_b32 {x2}, {t1}, {t0}, vcc
        v_lshrrev_b32 {t0}, 3, {vL}
        v_min_u32 {t0}, 6, {t0}
        v_lshlrev_b32 {t0}, 14, {t0}
        v_and_b32 {t1}, 7, {vL}
        v_lshl_add_u32 {vTo}, {t1}, 7, {t0}
        s_mov_b32 {sO}, {WS_YX + 7 * 16384}""")
    else:
        for i, x in enumerate((x1, x2)):
            e(f"""s_mul_i32 {sA}, {sW}, 7
            s_add_u32 {sA}, {sA}, {i}
            s_lshr_b32 {sB}, {sA}, 1
            s_lshl_b32 {sB}, {sB}, 10
            s_and_b32 {sA}, {sA}, 1
            s_lshl_b32 {sA}, {sA}, 3
            s_add_u32 {sA}, {sA}, {sB}
            s_add_u32 {sA}, {sA}, {L_T}
            v_add_u32 {x}, {sA}, {vL16}""")
        e(f"""s_and_b32 {sA}, {sW}, 1
        s_lshl_b32 {sA}, {sA}, 4
        v_add_u32 {t0}, {sA}, {vC}
        v_lshlrev_b32 {t1}, 2, {vG}""")
        for i in range(8):
            e(f"""v_add_u32 {t2}, {16 * (i >> 2) + (i & 3)}, {t1}
            v_cmp_le_u32 s[{40 + 2 * i}:{41 + 2 * i}], {t2}, {t0}""")

    def init_marks():
        IL = p.label('IL')
        mk = buf[0:4]
        for i in range(4):
            e(f'v_mov_b32 {mk[i]}, -1')
        e(f's_mov_b32 {sO}, s11')
        if not isY:
            e(f"""v_lshlrev_b32 {t0}, 2, {vL}
            s_cmp_ge_u32 {sW}, 2
            s_cbranch_scc1 {IL}x""")
        e(f'{IL}:')
        if isY:
            e(f"""s_lshl_b32 {sA}, {sO}, 17
            s_add_u32 {sA}, {sA}, {WS_YMA}
            buffer_store_dwordx4 {mk}, {x1}, {sWS}, {sA} offen sc1
            buffer_store_dwordx4 {mk}, {x2}, {sWS}, {sA} offen sc1""")
        else:
            e(f"""s_lshl_b32 {sA}, {sO}, 1
            s_add_u32 {sA}, {sA}, {sW}
            s_lshl_b32 {sA}, {sA}, 4
            s_add_u32 {sA}, {sA}, s10
            s_lshl_b32 {sB}, {sA}, 10
            s_add_u32 {sB}, {sB}, {WS_PX}
            s_lshl_b32 {sA}, {sA}, 8
            s_add_u32 {sA}, {sA}, {WS_PM}
            buffer_store_dwordx4 {mk}, {vL16}, {sWS}, {sB} offen sc1
            buffer_store_dword {mk[0]}, {t0}, {sWS}, {sA} offen sc1""")
        e(f"""s_add_u32 {sO}, {sO}, {NRY}
        s_cmp_lt_u32 {sO}, 64
        s_cbranch_scc1 {IL}
        {IL}x:
        v_mov_b32 {vCA}, {C_INIT}""")
        signal(p, vCA, t0)
    e('s_waitcnt vmcnt(0)')
    if not isY:
        init_marks()
    tl(p, 1, 's100', TLB)
    JOB = p.label('JOB')
    nst = 7 if isY else 2
    ndma = 7 if isY else 14
    e(f"""{JOB}:
    s_waitcnt vmcnt({nst}) lgkmcnt(0)
    s_barrier""")

    def rd(q):
        return [f'ds_read_b128 {buf[16 * (q & 1) + 4 * i:16 * (q & 1) + 4 * i + 4]}, {vXB} offset:{xnb_blk(q) * 4096 + i * 1024}'
                for i in range(4)]
    for l in rd(0):
        e(l)
    if not isY:
        e(f"""s_lshl_b32 {sA}, {sS}, 15
        s_lshr_b32 {sB}, {sW}, 1
        s_lshl_b32 {sB}, {sB}, 11
        s_add_u32 {sA}, {sA}, {sB}
        s_add_u32 {sA}, {sA}, {sW7}
        s_add_u32 {sA}, {sA}, {WS_XNA}
        s_add_u32 m0, {sW7}, {L_XA}""")
        for i in range(7):
            if i == 4:
                e(f's_add_u32 {sA}, {sA}, 4096\ns_add_u32 m0, m0, 4096')
            e(f'buffer_load_dwordx4 {vL16}, {sWS}, {sA} offen offset:{(i & 3) * 1024} sc1 lds')
    e(f"""s_add_u32 {sB}, {sS}, {NRY}
    s_min_u32 {sB}, {sB}, 63
    s_xor_b32 {sCur}, {sCur}, 32768""")
    xb_dma(sB, sCur)
    for q in range(7):
        side = rd(q + 1) if q < 6 else []
        e('s_waitcnt lgkmcnt(0)')
        if q == 4 and isY:
            SG = p.label('SG')
            e(f's_waitcnt vmcnt({ndma})')
            if MALL[0]:
                e(f"""s_sub_u32 {sA}, {sO}, {7 * 16384}
                buffer_load_dword {t2}, {vTo}, {sWS}, {sA} offen sc1""")
            e(f"""s_barrier
            s_cmp_lg_u32 {sW}, 0
            s_cbranch_scc1 {SG}
            v_mov_b32 {t0}, 1
            v_mov_b32 {vCA}, {sPrev}
            s_mov_b64 exec, 1
            buffer_atomic_add {t0}, {vCA}, {sWS}, {sCN} offen
            s_mov_b64 exec, -1
            {SG}:""")
        n = 0
        for rh in range(2):
            for t in range(7):
                for kt in range(2):
                    d = acc[8 * t + 4 * kt:8 * t + 4 * kt + 4]
                    xa = buf[16 * (q & 1) + 8 * kt + 4 * rh:16 * (q & 1) + 8 * kt + 4 * rh + 4]
                    wf = frag[(t, q)][4 * rh:4 * rh + 4]
                    c = 0 if (q == 0 and rh == 0) else d
                    if isY:
                        e(f'v_mfma_f32_16x16x32_bf16 {d}, {xa}, {wf}, {c}')
                    else:
                        e(f'v_mfma_f32_16x16x32_bf16 {d}, {wf}, {xa}, {c}')
                    if side and n % 4 == 1:
                        e(side.pop(0))
                    n += 1
    e(f'v_xor_b32 {vXB}, 32768, {vXB}')
    if isY:
        e(f"""s_mul_i32 {sO}, {sS}, {28 * 16384}
        s_mul_i32 {sA}, {sW}, {7 * 16384}
        s_add_u32 {sO}, {sO}, {sA}
        s_lshl_b32 {sA}, s10, 10
        s_add_u32 {sO}, {sO}, {sA}
        s_add_u32 {sO}, {sO}, {WS_YX}""")
        for t in range(7):
            a = acc[8 * t:8 * t + 8]
            for i in range(4):
                e(f'v_cvt_pk_bf16_f32 {a[i]}, {a[2 * i]}, {a[2 * i + 1]}')
            e(f"""buffer_store_dwordx4 {a[0:4]}, {vL16}, {sWS}, {sO} offen sc1
            s_add_u32 {sO}, {sO}, 16384""")
        NF = p.label('NF')
        e(f"""s_lshl_b32 {sPrev}, {sS}, 2
        s_cmp_lg_u32 {sS}, s11
        s_cbranch_scc1 {NF}
        v_mov_b32 {vCA}, {sPrev}
        s_mov_b32 {sPrev}, {OOB}""")
        signal(p, vCA, t0)
        tl(p, 2, 's100', TLB)
        e(f"""{NF}:
        s_sub_u32 {sA}, {sS}, s11
        s_cmp_lg_u32 {sA}, {5 * NRY}
        s_cbranch_scc1 {NF}x
        v_and_b32 {vCA}, 31, {vL}
        v_lshlrev_b32 {vCA}, 2, {vCA}
        v_add_u32 {vCA}, {C_LN}, {vCA}""")
        wait_ge(p, vCA, t0, 1, 8)
        e(f"""{NF}x:
        s_add_u32 {sS}, {sS}, {NRY}
        s_cmp_lt_u32 {sS}, 64
        s_cbranch_scc1 {JOB}
        v_mov_b32 {vCA}, {sPrev}""")
        signal(p, vCA, t0)
        init_marks()
        tl(p, 3, 's100', TLB)
        MJ = p.label('MJ')
        e(f"""s_mov_b32 {sS}, s11
        {MJ}:""")
        for i in range(28):
            e(f'v_mov_b32 {acc[i]}, 0')
        mem_wait()
        for k in range(7):
            for t in range(7):
                e(f'v_smfmac_f32_16x16x64_bf16 {acc[4 * t:4 * t + 4]}, {buf[4 * k:4 * k + 4]}, {frag[(t, k)]}, {vIdx}')
        o = acc[32:40]
        for t in range(7):
            a = acc[4 * t:4 * t + 4]
            e(f"""v_add_f32 {a[0]}, {a[0]}, {a[2]}
            v_add_f32 {a[1]}, {a[1]}, {a[3]}
            v_cvt_pk_bf16_f32 {o[t]}, {a[0]}, {a[1]}""")
        e(f"""v_mov_b32 {o[7]}, 0
        s_lshl_b32 {sO}, {sS}, 17
        s_add_u32 {sO}, {sO}, {WS_YMA}""")
        for b in (0, 4):
            e(f"""v_permlane32_swap_b32 {o[b]}, {o[b + 2]}
            v_permlane32_swap_b32 {o[b + 1]}, {o[b + 3]}
            v_permlane16_swap_b32 {o[b]}, {o[b + 1]}
            v_permlane16_swap_b32 {o[b + 2]}, {o[b + 3]}
            buffer_store_dwordx4 {o[b:b + 4]}, {x1 if b == 0 else x2}, {sWS}, {sO} offen sc1""")
        e(f"""s_add_u32 {sS}, {sS}, {NRY}
        s_cmp_lt_u32 {sS}, 64
        s_cbranch_scc1 {MJ}""")
        tl(p, 4, 's100', TLB)
        e('s_endpgm')
        return
    for t in range(7):
        for qt in range(2):
            a = acc[8 * t + 4 * qt:8 * t + 4 * qt + 4]
            e(f"""v_cvt_pk_bf16_f32 {a[0]}, {a[0]}, {a[1]}
            v_cvt_pk_bf16_f32 {a[1]}, {a[2]}, {a[3]}
            ds_write_b64 {x2 if (t & 1) else x1}, {a[0:2]} offset:{(t >> 1) * 1024 + qt * 14336}""")
    SK, SM = p.label('TSK'), p.label('TSM')
    L_SX = 28672
    e(f"""s_waitcnt vmcnt(0) lgkmcnt(0)
    s_barrier
    s_and_b32 {sB}, {sW}, 1
    s_mul_i32 {sA}, {sB}, 14336
    s_add_u32 {sA}, {sA}, {L_T}
    v_add_u32 {t0}, {sA}, {vL16}
    v_add_u32 {t2}, {L_XA}, {vL16}
    s_lshl_b32 {sB}, {sB}, 11
    v_add_u32 {vCA}, {sB}, {vL16}""")
    for th in range(14):
        e(f'ds_read_b128 {acc[4 * th:4 * th + 4]}, {t0} offset:{th * 1024}')
    e(f"""s_cmp_lt_u32 {sW}, 2
    s_cbranch_scc1 {SM}
    s_waitcnt lgkmcnt(6)""")

    def xa_rd(i):
        e(f'ds_read_b128 {buf[4 * (i & 7):4 * (i & 7) + 4]}, {t2} offset:{i * 1024}')
    for i in range(8):
        xa_rd(i)
    for i in range(28):
        kt, th = i // 14, i % 14
        e(f's_waitcnt lgkmcnt({min(7, 27 - i)})')
        d = Sx[4 * kt:4 * kt + 4]
        e(f'v_mfma_f32_16x16x32_bf16 {d}, {buf[4 * (i & 7):4 * (i & 7) + 4]}, {acc[4 * th:4 * th + 4]}, {0 if th == 0 else d}')
        if i + 8 < 28:
            xa_rd(i + 8)
    e(f'v_mov_b32 {t1}, 0xff800000')
    for i in range(8):
        e(f'v_cndmask_b32 {Sx[i]}, {t1}, {Sx[i]}, s[{40 + 2 * i}:{41 + 2 * i}]')
    e(f"""ds_write_b128 {vCA}, {Sx[0:4]} offset:{L_SX}
    ds_write_b128 {vCA}, {Sx[4:8]} offset:{L_SX + 1024}
    s_waitcnt lgkmcnt(0)
    s_barrier
    s_branch {SK}
    {SM}:""")
    mem_wait()
    e(f"""s_waitcnt lgkmcnt(0)
    s_barrier
    ds_read_b128 {Sx[0:4]}, {vCA} offset:{L_SX}
    ds_read_b128 {Sx[4:8]}, {vCA} offset:{L_SX + 1024}""")
    for k in range(7):
        for v in range(2):
            d = Sm[4 * v:4 * v + 4]
            e(f'v_mfma_f32_16x16x32_bf16 {d}, {buf[4 * k:4 * k + 4]}, {acc[4 * (2 * k + v):4 * (2 * k + v) + 4]}, {0 if k == 0 else d}')
    e(f"""s_waitcnt lgkmcnt(0)
    v_max3_f32 {t2}, {Sx[0]}, {Sx[1]}, {Sx[2]}
    v_max3_f32 {t2}, {t2}, {Sx[3]}, {Sx[4]}
    v_max3_f32 {t2}, {t2}, {Sx[5]}, {Sx[6]}
    v_max_f32 {t2}, {t2}, {Sx[7]}""")
    vals = [Sx[i] for i in range(8)] + [Sm[0], Sm[1]]

    def allred(op):
        e(f"""v_mov_b32 {t1}, {t0}
        v_permlane16_swap_b32 {t0}, {t1}
        v_{op}_f32 {t0}, {t0}, {t1}
        v_mov_b32 {t1}, {t0}
        v_permlane32_swap_b32 {t0}, {t1}
        v_{op}_f32 {t0}, {t0}, {t1}""")
    e(f"""s_lshl_b32 {sA}, {sS}, 1
    s_add_u32 {sA}, {sA}, {sW}
    s_lshl_b32 {sA}, {sA}, 4
    s_add_u32 {sA}, {sA}, s10            ; (s*2+qt)*16 + h
    s_lshl_b32 {sB}, {sA}, 10
    s_add_u32 {sB}, {sB}, {WS_PX}
    s_lshl_b32 {sA}, {sA}, 8
    s_add_u32 {sA}, {sA}, {WS_PM}
    v_add_f32 {Sm[0]}, {Sm[0]}, {Sm[6]}
    v_add_f32 {Sm[1]}, {Sm[1]}, {Sm[7]}
    v_max3_f32 {t0}, {t2}, {Sm[0]}, {Sm[1]}""")
    allred('max')
    for v in vals:
        e(f'v_sub_f32 {v}, {v}, {t0}')
    for v in vals:
        e(f'v_exp_f32 {v}, {v}')
    e(f'v_add_f32 {t0}, {vals[0]}, {vals[1]}')
    for v in vals[2:]:
        e(f'v_add_f32 {t0}, {t0}, {v}')
    allred('add')
    e(f'v_rcp_f32 {t0}, {t0}')
    for v in vals:
        e(f'v_mul_f32 {v}, {v}, {t0}')
    for i in range(4):
        e(f'v_cvt_pk_bf16_f32 {Sx[i]}, {Sx[2 * i]}, {Sx[2 * i + 1]}')
    e(f"""v_cvt_pk_bf16_f32 {Sm[0]}, {Sm[0]}, {Sm[1]}
    buffer_store_dwordx4 {Sx[0:4]}, {vL16}, {sWS}, {sB} offen sc1
    v_lshlrev_b32 {t0}, 4, {vC}
    v_lshl_add_u32 {t0}, {vG}, 2, {t0}
    buffer_store_dword {Sm[0]}, {t0}, {sWS}, {sA} offen sc1
    {SK}:
    s_add_u32 {sS}, {sS}, {NRY}
    s_cmp_lt_u32 {sS}, 64
    s_cbranch_scc1 {JOB}""")
    tl(p, 4, 's100', TLB)
    e('s_endpgm')


def f_worker(p):
    e = p.e
    V = Alloc('v', 1, 254)
    vL, vG, vC, t0, t1, t2, vL16, vCA, vB1 = (V.get() for _ in range(9))
    vQ = [V.get() for _ in range(7)]
    vRo = [V.get() for _ in range(4)]
    vGo = [V.get() for _ in range(4)]
    H = V.get(16, 4)
    Bs = V.get(4, 4)
    HP = V.get(8, 4)
    XF = V.get(112, 4)
    RV = V.get(80, 4)
    acc = R('v', XF.base, 112)
    PA = RV[0:40]
    facc = R('a', 0, 224)
    ring = lambda i: RV[4 * i:4 * i + 4] if i < 20 else R('a', 224 + 4 * (i - 20), 4)
    sS, sXx, sA, sB, sC, sI, sF1, sF2 = 's12', 's13', 's14', 's15', 's32', 's33', 's34', 's35'
    rW1, rW2, rB1, rB2 = 's[16:19]', 's[20:23]', 's[24:27]', 's[28:31]'
    rX, rO = 's[40:43]', 's[44:47]'
    srd(e, 16, 64, 448 * 1792 * 2)
    srd(e, 20, 80, 448 * 1792 * 2)
    srd(e, 24, 72, 1792 * 2)
    srd(e, 28, 88, 448 * 2)
    srd(e, 40, 0, S * D * 2)
    srd(e, 44, 96, S * D * 2)
    e(f'''v_and_b32 {vL}, 63, v0
    v_lshrrev_b32 {vG}, 4, {vL}
    v_and_b32 {vC}, 15, {vL}
    v_lshlrev_b32 {vL16}, 4, {vL}
    v_lshlrev_b32 {vB1}, 3, {vG}
    s_mov_b32 {sTO}, {TIMEOUT}
    s_mov_b32 {sCN}, {WS_CNT}
    s_lshr_b32 {sS}, s10, 1
    s_and_b32 {sXx}, s10, 1''')
    for q in range(7):
        e(f'v_add_u32 {vQ[q]}, {q * 4096}, {vL16}')
    go_wait(p, vCA, t0, sA, GOV[1])
    e(f'''v_mul_u32_u24 {t0}, {4 * 3584}, {vG}
    v_lshl_add_u32 {t0}, {vC}, 1, {t0}            ; w1 voffset
    v_mul_u32_u24 {t1}, {4 * 896}, {vG}
    v_and_b32 {t2}, 7, {vC}
    v_lshl_add_u32 {t1}, {t2}, 1, {t1}
    v_lshrrev_b32 {t2}, 3, {vC}
    v_lshl_add_u32 {t1}, {t2}, 6, {t1}            ; w2 voffset
    s_lshl_b32 {sI}, s10, 2
    s_add_u32 {sI}, {sI}, {sW}
    s_waitcnt lgkmcnt(0)''')
    C0 = p.label('CV')
    e(f'''{C0}:
    ; W1F id -> ft = id/14, rem = id%14 -> byte (64*chunk + 16*rh)*3584 + 32*ft
    s_mul_i32 {sA}, {sI}, 4682
    s_lshr_b32 {sA}, {sA}, 16
    s_mul_i32 {sB}, {sA}, 14
    s_sub_u32 {sB}, {sI}, {sB}
    s_lshl_b32 {sA}, {sA}, 5
    s_lshr_b32 {sC}, {sB}, 1
    s_mul_i32 {sC}, {sC}, {64 * 3584}
    s_add_u32 {sA}, {sA}, {sC}
    s_and_b32 {sB}, {sB}, 1
    s_mul_i32 {sB}, {sB}, {16 * 3584}
    s_add_u32 {sA}, {sA}, {sB}''')
    for el in range(8):
        rho, b = el >> 1, el & 1
        e(f'''s_add_u32 {sB}, {sA}, {(32 * (rho & 1) + 2 * (rho >> 1) + b) * 3584}
        buffer_load_ushort {acc[el]}, {t0}, {rW1}, {sB} offen''')
    e(f'''; W2F id -> F = id/28, j = id%28 -> byte 32F*896 + (64*(j>>2) + 8*(j&3))*2
    s_mul_i32 {sA}, {sI}, 2341
    s_lshr_b32 {sA}, {sA}, 16
    s_mul_i32 {sB}, {sA}, 28
    s_sub_u32 {sB}, {sI}, {sB}
    s_mul_i32 {sA}, {sA}, {32 * 896}
    s_lshr_b32 {sC}, {sB}, 2
    s_lshl_b32 {sC}, {sC}, 7
    s_add_u32 {sA}, {sA}, {sC}
    s_and_b32 {sB}, {sB}, 3
    s_lshl_b32 {sB}, {sB}, 4
    s_add_u32 {sA}, {sA}, {sB}
    s_add_u32 {sB}, {sA}, {16 * 896}''')
    for el in range(8):
        e(f'buffer_load_ushort {acc[8 + el]}, {t1}, {rW2}, {sA if el < 4 else sB} offen offset:{(el & 3) * 896}')
    e(f'''s_lshl_b32 {sA}, {sI}, 10
    s_add_u32 {sB}, {sA}, {WS_W2F}
    s_add_u32 {sA}, {sA}, {WS_W1F}
    s_waitcnt vmcnt(0)''')
    for i in range(8):
        e(f'v_lshl_or_b32 {acc[16 + i]}, {acc[2 * i + 1]}, 16, {acc[2 * i]}')
    e(f'''buffer_store_dwordx4 {acc[16:20]}, {vL16}, {sWS}, {sA} offen sc1
    buffer_store_dwordx4 {acc[20:24]}, {vL16}, {sWS}, {sB} offen sc1
    s_add_u32 {sI}, {sI}, {4 * NF[0]}
    s_cmp_lt_u32 {sI}, 1568
    s_cbranch_scc1 {C0}
    v_mov_b32 {vCA}, {C_WF}''')
    signal(p, vCA, t0)
    e(f"""s_cmp_ge_u32 s10, 64
    s_cbranch_scc1 F_P2
    s_lshl_b32 {sA}, s10, 15
    s_add_u32 {sA}, {sA}, {WS_XNB}""")
    for k in range(7):
        for kt in range(2):
            for rh in range(2):
                i = 56 * kt + 8 * k + 4 * rh
                e(f'buffer_load_dwordx4 {XF[i:i + 4]}, {vQ[xnb_blk(k)]}, {sWS}, {sA} offen offset:{kt * 2048 + rh * 1024} sc1')
    for i in range(224):
        e(f'v_accvgpr_write_b32 {facc[i]}, 0')
    e(f's_mov_b32 {sA}, {NF[0]}')
    wait_ge(p, vCA, t0, sA, 8)
    tl(p, 1, 's100', WS_TL + 16384)

    def blk_load(so, i):
        return f'buffer_load_dwordx4 {ring(i)}, {vQ[i >> 2]}, {sWS}, {so} offen offset:{(i & 3) * 1024} sc1'
    e(f"""s_mul_i32 {sF1}, {sW}, 28672
    s_add_u32 {sF2}, {sF1}, {WS_W2F}
    s_add_u32 {sF1}, {sF1}, {WS_W1F}
    s_lshl_b32 {sC}, {sW}, 6
    s_mov_b32 {sI}, 0""")
    for i in range(28):
        e(blk_load(sF1, i))
    FL = p.label('FL')
    e(f"""{FL}:
    buffer_load_dwordx2 {Bs[0:2]}, {vB1}, {rB1}, {sC} offen
    buffer_load_dwordx2 {Bs[2:4]}, {vB1}, {rB1}, {sC} offen offset:32
    s_add_u32 {sF1}, {sF1}, {4 * 28672}""")
    for i in range(28):
        a_, kk = i // 14, i % 14
        e('s_waitcnt vmcnt(29)')
        for kt in range(2):
            d = H[8 * kt + 4 * a_:8 * kt + 4 * a_ + 4]
            e(f'v_mfma_f32_16x16x32_bf16 {d}, {ring(i)}, {XF[56 * kt + 4 * kk:56 * kt + 4 * kk + 4]}, {0 if kk == 0 else d}')
        e(blk_load(sF2, i))
    e('s_waitcnt vmcnt(28)')
    for i in range(8):
        a_, b_ = H[2 * i], H[2 * i + 1]
        e(f"""v_cvt_pk_bf16_f32 {t0}, {a_}, {b_}
        v_lshlrev_b32 {a_}, 16, {t0}
        v_and_b32 {b_}, 0xffff0000, {t0}
        v_lshlrev_b32 {t1}, 16, {Bs[i & 3]}
        v_and_b32 {t2}, 0xffff0000, {Bs[i & 3]}
        v_add_f32 {a_}, {a_}, {t1}
        v_add_f32 {b_}, {b_}, {t2}
        v_cvt_pk_bf16_f32 {t0}, {a_}, {b_}
        v_lshlrev_b32 {a_}, 16, {t0}
        v_and_b32 {b_}, 0xffff0000, {t0}
        v_max_f32 {a_}, 0, {a_}
        v_max_f32 {b_}, 0, {b_}
        v_mul_f32 {a_}, {a_}, {a_}
        v_mul_f32 {b_}, {b_}, {b_}
        v_cvt_pk_bf16_f32 {HP[i]}, {a_}, {b_}""")
    for i in range(28):
        e('s_waitcnt vmcnt(27)')
        for kt in range(2):
            d = facc[112 * kt + 4 * i:112 * kt + 4 * i + 4]
            e(f'v_mfma_f32_16x16x32_bf16 {d}, {HP[4 * kt:4 * kt + 4]}, {ring(i)}, {d}')
        e(blk_load(sF1, i))
    e(f"""s_add_u32 {sF2}, {sF2}, {4 * 28672}
    s_add_u32 {sC}, {sC}, 256
    s_add_u32 {sI}, {sI}, 1
    s_cmp_lt_u32 {sI}, 14
    s_cbranch_scc1 {FL}""")

    def reduce_write(ntile, nq, rowb, acc):
        e(f'''v_mul_u32_u24 {t0}, {4 * rowb}, {vG}
        v_lshl_add_u32 {t0}, {vC}, 2, {t0}
        s_lshl_b32 {sA}, {sW}, 15
        v_add_u32 {t0}, {sA}, {t0}''')
        u = rowb // 256
        for tt in range(ntile):
            for qt in range(nq):
                a = acc[4 * (tt * nq + qt):4 * (tt * nq + qt) + 4]
                for r in (0, 2):
                    o = (16 * qt + r) * u
                    e(f'ds_write2st64_b32 {t0}, {a[r]}, {a[r + 1]} offset0:{o} offset1:{o + u}')
            e(f'v_add_u32 {t0}, 64, {t0}')
        e('s_waitcnt lgkmcnt(0)\ns_barrier')

    def reader_setup(nunit, rowb, jbase_sgpr, rowbase_sgpr):
        mul = {56: 1171, 28: 2341}[nunit]
        for rd in range(4):
            e(f'''v_add_u32 {t0}, {256 * rd}, v0
            v_mul_u32_u24 {t1}, {mul}, {t0}
            v_lshrrev_b32 {t1}, 16, {t1}                 ; token
            v_mul_u32_u24 {t2}, {nunit}, {t1}
            v_sub_u32 {t2}, {t0}, {t2}                   ; q
            v_mul_u32_u24 {vRo[rd]}, {rowb}, {t1}
            v_lshl_add_u32 {vRo[rd]}, {t2}, 5, {vRo[rd]}
            v_add_u32 {t1}, {rowbase_sgpr}, {t1}
            v_mul_u32_u24 {vGo[rd]}, 896, {t1}
            v_and_b32 {t1}, 1, {t2}
            v_lshl_add_u32 {vGo[rd]}, {t1}, 6, {vGo[rd]}
            v_lshrrev_b32 {t2}, 1, {t2}
            v_add_u32 {t2}, {jbase_sgpr}, {t2}           ; j
            v_lshrrev_b32 {t1}, 2, {t2}
            v_lshl_add_u32 {vGo[rd]}, {t1}, 7, {vGo[rd]}
            v_and_b32 {t1}, 3, {t2}
            v_lshl_add_u32 {vGo[rd]}, {t1}, 4, {vGo[rd]}''')
        e(f'''v_cmp_gt_u32 vcc, 128, v0
        v_mov_b32 {t0}, {OOB}
        v_cndmask_b32 {vGo[3]}, {t0}, {vGo[3]}, vcc
        v_cndmask_b32 {vRo[3]}, 0, {vRo[3]}, vcc''')

    def reduce_read(rd, dst):
        e(f'v_add_u32 {t0}, 65536, {vRo[rd]}')
        for ww in range(4):
            ad = vRo[rd] if ww < 2 else t0
            for hh in range(2):
                e(f'ds_read_b128 {dst[8 * ww + 4 * hh:8 * ww + 4 * hh + 4]}, {ad} offset:{(ww & 1) * 32768 + hh * 16}')
        e('s_waitcnt lgkmcnt(0)')
        for i in range(8):
            e(f'''v_add_f32 {dst[i]}, {dst[i]}, {dst[8 + i]}
            v_add_f32 {dst[16 + i]}, {dst[16 + i]}, {dst[24 + i]}
            v_add_f32 {dst[i]}, {dst[i]}, {dst[16 + i]}''')

    def add_packed(vals, pk):
        for i in range(4):
            a, b = vals[2 * i], vals[2 * i + 1]
            e(f'''v_cvt_pk_bf16_f32 {t0}, {a}, {b}
            v_lshlrev_b32 {a}, 16, {t0}
            v_and_b32 {b}, 0xffff0000, {t0}
            v_lshlrev_b32 {t1}, 16, {pk[i]}
            v_and_b32 {t2}, 0xffff0000, {pk[i]}
            v_add_f32 {a}, {a}, {t1}
            v_add_f32 {b}, {b}, {t2}''')

    e(f"""s_waitcnt vmcnt(0)
    s_mov_b32 {sA}, 0
    s_mov_b32 {sB}, 0""")
    reader_setup(56, 2048, sA, sB)
    for rd in range(4):
        e(f"""v_lshrrev_b32 {t1}, 11, {vRo[rd]}
        v_mul_u32_u24 {t1}, 896, {t1}
        v_sub_u32 {t1}, {vGo[rd]}, {t1}
        buffer_load_dwordx4 {PA[4 * rd:4 * rd + 4]}, {t1}, {rB2}, 0 offen""")
    for kt in range(2):
        reduce_write(28, 1, 2048, facc[112 * kt:112 * kt + 112])
        e(f"""s_mul_i32 {sB}, s10, {32 * 896}
        s_add_u32 {sB}, {sB}, {WS_BASE + kt * 16 * 896}""")
        if kt == 0:
            e('s_waitcnt vmcnt(0)')
        for rd in range(4):
            d = XF[0:32]
            reduce_read(rd, d)
            add_packed(d, PA[4 * rd:4 * rd + 4])
            o = XF[32 + 16 * kt + 4 * rd:36 + 16 * kt + 4 * rd]
            for i in range(4):
                e(f'v_cvt_pk_bf16_f32 {o[i]}, {d[2 * i]}, {d[2 * i + 1]}')
            e(f'buffer_store_dwordx4 {o}, {vGo[rd]}, {sWS}, {sB} offen sc1')
        if kt == 0:
            e('s_barrier')
    e(f"""s_lshl_b32 {sA}, s10, 7
    s_add_u32 {sA}, {sA}, {C_PY}
    v_mov_b32 {vCA}, {sA}""")
    signal(p, vCA, t0)
    e('F_P2:')
    tl(p, 2, 's100', WS_TL + 16384)
    sCG = 's36'
    e(f"""s_cmp_ge_u32 s10, {NF[0] // 7 * 7}
    s_cbranch_scc1 EXIT
    s_mul_i32 {sS}, s10, 147
    s_lshr_b32 {sS}, {sS}, 10
    s_mul_i32 {sCG}, {sS}, 7
    s_sub_u32 {sCG}, s10, {sCG}
    v_mov_b32 {vCA}, {C_INIT}
    s_mov_b32 {sA}, {32 * NRY}""")
    wait_ge(p, vCA, t0, sA, 16)
    YB = R('a', 0, 64)
    XR, BR = RV[56:60], RV[60:64]
    YM = RV[40:56]
    vWr, vRd, vG2 = vRo[0], vRo[1], vGo[0]
    e(f"""; LDS write: w*8192 + 4g*256 + ((n&7) + 32*(n>>3))*4
    v_lshlrev_b32 {vWr}, 10, {vG}
    v_and_b32 {t0}, 7, {vC}
    v_lshl_add_u32 {vWr}, {t0}, 2, {vWr}
    v_lshrrev_b32 {t0}, 3, {vC}
    v_lshl_add_u32 {vWr}, {t0}, 7, {vWr}
    s_lshl_b32 {sA}, {sW}, 13
    v_add_u32 {vWr}, {sA}, {vWr}
    v_lshlrev_b32 {vRd}, 5, v0
    v_lshrrev_b32 {t0}, 3, v0
    v_mul_u32_u24 {vG2}, 896, {t0}
    v_and_b32 {t0}, 7, v0
    v_lshl_add_u32 {vG2}, {t0}, 4, {vG2}
    s_lshl_b32 {sA}, {sCG}, 7
    v_add_u32 {vG2}, {sA}, {vG2}""")
    J2 = p.label('J2')
    e(f"""{J2}:
    s_lshl_b32 {sA}, {sS}, 2
    v_mov_b32 {vCA}, {sA}
    s_mov_b32 {sA}, 16""")
    wait_ge(p, vCA, t0, sA, 8)
    e(f"""s_lshl_b32 {sA}, {sS}, 7
    s_add_u32 {sA}, {sA}, {C_PY}
    v_mov_b32 {vCA}, {sA}
    s_mov_b32 {sA}, 1""")
    wait_ge(p, vCA, t0, sA, 8)
    e(f"""s_mul_i32 {sA}, {sS}, {28 * 16384}
    s_lshl_b32 {sB}, {sCG}, 16
    s_add_u32 {sA}, {sA}, {sB}
    s_lshl_b32 {sB}, {sW}, 12
    s_add_u32 {sA}, {sA}, {sB}
    s_add_u32 {sA}, {sA}, {WS_YX}""")
    for tt in range(4):
        for hh in range(4):
            e(f'buffer_load_dwordx4 {YB[16 * tt + 4 * hh:16 * tt + 4 * hh + 4]}, {vL16}, {sWS}, {sA} offen offset:{hh * 1024} sc1')
        e(f's_add_u32 {sA}, {sA}, 16384')
    e(f"""s_mul_i32 {sI}, {sS}, {32 * 896}
    s_add_u32 {sB}, {sI}, {WS_BASE}
    buffer_load_dwordx4 {XR}, {vG2}, {rX}, {sI} offen
    buffer_load_dwordx4 {BR}, {vG2}, {sWS}, {sB} offen sc1
    s_lshl_b32 {sA}, {sS}, 13
    s_add_u32 {sA}, {sA}, {WS_MEMA}
    v_mov_b32 {t1}, 0""")
    load_valid(p, [f'buffer_load_dword {t2}, {t1}, {sWS}, {sA} offen sc1'], [t2], t0, 8, sS if CHEAP[0] else None)
    tl(p, 3, 's100', WS_TL + 16384)
    e(f"""s_lshl_b32 {sA}, {sS}, 15
    s_lshl_b32 {sB}, {sW}, 12
    s_add_u32 {sA}, {sA}, {sB}
    s_add_u32 {sA}, {sA}, {WS_PX}
    s_lshl_b32 {sF1}, {sS}, 13
    s_lshl_b32 {sB}, {sW}, 10
    s_add_u32 {sF1}, {sF1}, {sB}
    s_add_u32 {sF1}, {sF1}, {WS_PM}
    s_lshl_b32 {sF2}, {sS}, 17
    s_add_u32 {sF2}, {sF2}, {sB}
    s_lshl_b32 {sB}, {sCG}, 14
    s_add_u32 {sF2}, {sF2}, {sB}
    s_add_u32 {sF2}, {sF2}, {WS_YMA}""")
    lds_ = []
    for hh in range(4):
        for qt in range(2):
            lds_.append(f'buffer_load_dwordx4 {PA[8 * hh + 4 * qt:8 * hh + 4 * qt + 4]}, {vQ[4 * qt]}, {sWS}, {sA} offen offset:{hh * 1024} sc1')
    lds_ += [f'buffer_load_dwordx4 {PA[32 + 4 * qt:36 + 4 * qt]}, {vQ[qt]}, {sWS}, {sF1} offen sc1' for qt in range(2)]
    lds_ += [f'buffer_load_dwordx4 {YM[4 * tt:4 * tt + 4]}, {vQ[tt]}, {sWS}, {sF2} offen sc1' for tt in range(4)]
    load_valid(p, lds_, [PA[i] for i in range(40)] + [YM[i] for i in range(16)], t0, 1, sS if CHEAP[0] else None)
    for hh in range(5):
        for tt in range(4):
            for qt in range(2):
                d = acc[4 * (2 * tt + qt):4 * (2 * tt + qt) + 4]
                bb = YB[16 * tt + 4 * hh:16 * tt + 4 * hh + 4] if hh < 4 else YM[4 * tt:4 * tt + 4]
                e(f'v_mfma_f32_16x16x32_bf16 {d}, {PA[8 * hh + 4 * qt:8 * hh + 4 * qt + 4]}, {bb}, {0 if hh == 0 else d}')
    for tt in range(4):
        if tt:
            e(f'v_add_u32 {t0}, {32 * tt}, {vWr}')
        for qt in range(2):
            a_ = acc[4 * (2 * tt + qt):4 * (2 * tt + qt) + 4]
            for r in (0, 2):
                e(f'ds_write2st64_b32 {t0 if tt else vWr}, {a_[r]}, {a_[r + 1]} offset0:{16 * qt + r} offset1:{16 * qt + r + 1}')
    e('s_waitcnt lgkmcnt(0)\ns_barrier')
    d = acc[32:64]
    for ww in range(4):
        for hh in range(2):
            e(f'ds_read_b128 {d[8 * ww + 4 * hh:8 * ww + 4 * hh + 4]}, {vRd} offset:{ww * 8192 + hh * 16}')
    e('s_waitcnt lgkmcnt(0)\ns_barrier')
    for i in range(8):
        e(f"""v_add_f32 {d[i]}, {d[i]}, {d[8 + i]}
        v_add_f32 {d[16 + i]}, {d[16 + i]}, {d[24 + i]}
        v_add_f32 {d[i]}, {d[i]}, {d[16 + i]}""")
    add_packed(d, XR)
    add_packed(d, BR)
    o = acc[64:68]
    for i in range(4):
        e(f'v_cvt_pk_bf16_f32 {o[i]}, {d[2 * i]}, {d[2 * i + 1]}')
    e(f"""buffer_store_dwordx4 {o}, {vG2}, {rO}, {sI} offen {OSC[0]}
    s_add_u32 {sS}, {sS}, {NF[0] // 7}
    s_cmp_lt_u32 {sS}, 64
    s_cbranch_scc1 {J2}""")
    if TL_ON[0]:
        e('s_waitcnt vmcnt(0)')
    tl(p, 4, 's100', WS_TL + 16384)
    e('s_endpgm')
```

```python
import sys
from asmlib import *
from layout import *
import team, workers, prep
from team import *

NAME = 'parallel_sum__memory_aug_recurrent_mem_tr__dense_activation_squared_relu__prompt'
MAIN_LDS = 131072


def ready_wait(p, kind, lnmask=31):
    e = p.e
    L, W = p.label('RW'), p.label('RB')
    e(f"""s_cmp_lg_u32 {sWAVE}, 0
    s_cbranch_scc1 {W}
    s_mov_b32 s23, {WS_CNT}
    s_and_b32 s22, {sIDX}, 7
    s_lshl_b32 s22, s22, 7
    s_add_u32 s22, s22, {C_LN}
    v_and_b32 v1, {lnmask}, v0
    v_lshlrev_b32 v1, 2, v1
    v_add_u32 v1, s22, v1
    v_and_b32 v3, 15, v0
    v_min_u32 v3, 13, v3
    v_lshlrev_b32 v3, 2, v3""")
    if kind == 'one':
        e(f"""s_lshl_b32 s21, s21, 7
        s_add_u32 s21, s21, {C_MAT}
        v_add_u32 v3, s21, v3
        v_cmp_gt_u32 vcc, 32, v0
        v_cndmask_b32 v1, v3, v1, vcc""")
    if kind == 'vo':
        e(f"""v_lshrrev_b32 v2, 4, v0
        v_lshl_add_u32 v2, v2, 8, v3
        v_add_u32 v2, {C_MAT + 128}, v2""")
    e(f"""s_mov_b32 s22, 200000
    {L}:
    buffer_load_dword v3, v1, s[4:7], s23 offen sc1""")
    if kind == 'vo':
        e("""buffer_load_dword v5, v2, s[4:7], s23 offen sc1
        buffer_load_dword v6, v2, s[4:7], s23 offen offset:1024 sc1
        buffer_load_dword v7, v2, s[4:7], s23 offen offset:2048 sc1
        buffer_load_dword v8, v2, s[4:7], s23 offen offset:3072 sc1""")
    e(f"""s_sub_u32 s22, s22, 1
    s_cmp_gt_i32 s22, 0
    s_cbranch_scc0 {W}
    s_waitcnt vmcnt(0)""")
    if kind == 'vo':
        e('v_min3_u32 v3, v3, v5, v6\nv_min3_u32 v3, v3, v7, v8')
    e(f"""v_cmp_ne_u32 vcc, 1, v3
    s_cbranch_vccz {W}
    s_sleep 4
    s_branch {L}
    {W}:
    s_barrier""")


def done_flag(p, off_sgpr, nrep, sh=7):
    e = p.e
    W, L, K, Z = p.label('DW'), p.label('DL'), p.label('DK'), p.label('DZ')
    e(f"""s_cmp_lg_u32 {sWAVE}, 0
    s_cbranch_scc1 {W}
    v_readfirstlane_b32 s92, v253
    s_cmp_eq_u32 s92, 1
    s_cbranch_scc1 {K}
    v_mov_b32 v250, 1
    v_mov_b32 v251, 20
    s_mov_b64 exec, 1
    buffer_atomic_add v250, v251, s[84:87], 0 offen sc0
    s_mov_b64 exec, -1
    s_mov_b32 s91, 200000
    s_waitcnt vmcnt(0)
    v_readfirstlane_b32 s92, v250
    s_cmp_lg_u32 s92, 0
    s_cbranch_scc1 {L}
    v_lshlrev_b32 v250, 4, v0
    v_mov_b32 v244, 0
    v_mov_b32 v245, 0
    v_mov_b32 v246, 0
    v_mov_b32 v247, 0
    s_mov_b32 s92, {WS_CNT}
    {Z}:
    buffer_store_dwordx4 v[244:247], v250, s[4:7], s92 offen sc1
    s_add_u32 s92, s92, 1024
    s_cmp_lt_u32 s92, {WS_CNT + CNT_BYTES}
    s_cbranch_scc1 {Z}
    v_mov_b32 v253, 1
    s_waitcnt vmcnt(0)
    buffer_store_dword v253, v252, s[84:87], 0 offen sc1
    s_branch {K}
    {L}:
    s_sleep 4
    buffer_load_dword v253, v252, s[84:87], 0 offen sc1
    s_sub_u32 s91, s91, 1
    s_waitcnt vmcnt(0)
    v_readfirstlane_b32 s92, v253
    s_cmp_eq_u32 s92, 1
    s_cbranch_scc1 {K}
    s_cmp_gt_i32 s91, 0
    s_cbranch_scc1 {L}
    {K}:
    v_lshlrev_b32 v250, {sh}, v0
    v_add_u32 v250, {off_sgpr}, v250
    v_mov_b32 v251, {OOB}
    v_cmp_gt_u32 vcc, {nrep}, v0
    v_cndmask_b32 v250, v251, v250, vcc
    v_mov_b32 v251, 1
    s_mov_b32 s92, {WS_CNT}
    buffer_store_dword v251, v250, s[4:7], s92 offen sc1
    {W}:""")


def main_kernel(p, name, cfg):
    e = p.e
    srd = prep.srd
    WB = 448 * 8192
    e(f'{name}:')
    e(f"""s_cmp_ge_u32 s2, 256
    s_cbranch_scc1 EXIT""")
    srd(e, 84, 104, 256)
    srd(e, 4, 112, WS_BYTES)
    srd(e, 12, 32, WB)
    srd(e, 16, 40, WB)
    srd(e, 40, 16, WB)
    srd(e, 44, 24, WB)
    srd(e, 48, 0, S * D * 2)
    e(f"""v_lshrrev_b32 v1, 6, v0
    v_readfirstlane_b32 s9, v1
    s_getreg_b32 s88, hwreg(HW_REG_XCC_ID)
    s_and_b32 s88, s88, 7""")
    if cfg.fb:
        e(f"""s_bfe_u32 s20, s2, 0x10003
        s_sub_u32 s20, {cfg.xcc}, s20
        s_cmp_eq_u32 s88, {cfg.xcc}
        s_cselect_b32 s88, s20, s88""")
    if cfg.hwid:
        e("""; optimistic slot (die, shader engine, compute unit); the claim is checked after the first jobs
        s_getreg_b32 s20, hwreg(HW_REG_HW_ID)
        s_bfe_u32 s21, s20, 0x30008
        s_bfe_u32 s20, s20, 0x2000d
        s_lshl_b32 s21, s21, 2
        s_add_u32 s21, s21, s20""")
    else:
        e('s_lshr_b32 s21, s2, 3')
    e(f"""
    s_mov_b32 {sSLOW}, 0
    s_lshl_b32 s20, s88, 2
    s_add_u32 s20, s20, 160
    s_lshl_b32 s93, 1, s21
    v_mov_b32 v249, s93
    v_mov_b32 v248, {OOB}
    v_mov_b32 v247, s20
    v_cmp_eq_u32 vcc, 0, v0
    v_cndmask_b32 v248, v248, v247, vcc
    v_mov_b32 v252, 16
    v_mov_b32 v253, 0
    s_waitcnt lgkmcnt(0)""")
    tl(p, 0, 's2', WS_TL)
    claim = 'buffer_atomic_or v249, v248, s[84:87], 0 offen sc0'
    e(f"""SLOT:
    s_sub_u32 s22, s88, {cfg.xcc + 1}
    s_and_b32 s22, s22, 7
    s_cmp_eq_u32 s22, 7
    s_cbranch_scc1 PREP_LN
    s_mov_b32 s94, s21
    s_mul_i32 s100, s21, {7 if cfg.quiet < 0 else 6}
    s_add_u32 s100, s100, s22
    s_add_u32 s100, s100, 32""")
    if cfg.quiet >= 0:
        e(f"""s_cmp_gt_u32 s22, {cfg.quiet}
        s_cselect_b32 s20, 1, 0
        s_sub_u32 s100, s100, s20
        s_add_u32 s20, s21, 224
        s_cmp_eq_u32 s22, {cfg.quiet}
        s_cselect_b32 s100, s20, s100""")
    e(f"""
    s_lshl_b32 s20, s22, 5
    s_add_u32 s20, s20, s21             ; job
    s_mul_i32 s10, s20, 4682
    s_lshr_b32 s10, s10, 16             ; head
    s_mul_i32 s21, s10, 14
    s_sub_u32 s20, s20, s21
    s_lshr_b32 s11, s20, 1              ; chunk
    s_and_b32 s33, s20, 1
    s_lshl_b32 s89, s10, 8
    s_lshl_b32 s20, s20, 2
    s_add_u32 s89, s89, s20
    s_add_u32 s89, s89, {C_MAT}
    s_add_u32 s90, s89, 128""")
    tl(p, 0, 's100', WS_TL + 16384)
    if cfg.etouch:
        e(f"""v_lshlrev_b32 v1, 7, v0
        s_mul_i32 s21, s10, 229376
        s_lshl_b32 s23, s20, 12
        s_add_u32 s21, s21, s23
        v_bfe_u32 v2, v0, 2, 5
        v_lshlrev_b32 v2, 13, v2
        v_and_b32 v3, 3, v0
        v_lshl_add_u32 v2, v3, 7, v2
        s_lshl_b32 s23, s20, 16
        s_lshl_b32 s24, s10, 9
        s_add_u32 s23, s23, s24
        s_cmp_ge_u32 s9, 2
        s_cbranch_scc1 ET_A
        buffer_load_dword v246, v1, s[16:19], s21 offen
        s_branch ET_D
        ET_A:
        buffer_load_dword v246, v2, s[12:15], s23 offen
        ET_D:""")

    if cfg.sb:
        assert prep.NBUILD == 4
        e(f"""s_mul_i32 s39, s22, 14
        s_add_u32 s39, s39, s94
        s_sub_u32 s39, s39, 18
        s_cmp_lt_u32 s94, 18
        s_cselect_b32 s39, 96, s39
        s_mul_i32 s36, s39, 43
        s_lshr_b32 s36, s36, 8
        s_mul_i32 s37, s36, 6
        s_sub_u32 s39, s39, s37
        s_lshr_b32 s37, s39, 1
        s_add_u32 s37, s37, {prep.NBUILD}
        s_and_b32 s38, s39, 1
        s_lshl_b32 s89, s39, 2
        s_lshl_b32 s39, s36, 8
        s_add_u32 s89, s89, s39
        s_add_u32 s89, s89, {C_MAT + 8 * prep.NBUILD}""")

        def tn(t0, t1, vL):
            return [f'v_lshrrev_b32 {t0}, 2, {vL}', f'v_lshlrev_b32 {t0}, 13, {t0}', f'v_and_b32 {t1}, 3, {vL}',
                    f'v_lshl_add_u32 {t0}, {t1}, 7, {t0}', 's_lshl_b32 s31, s37, 19', 's_lshl_b32 s32, s9, 17',
                    's_add_u32 s31, s31, s32', 's_lshl_b32 s32, s36, 9', 's_add_u32 s31, s31, s32',
                    's_cmp_ge_u32 s36, 16', f's_cselect_b32 s31, {OOB}, s31']
        tn.rA, tn.rB = 's[40:43]', 's[40:43]'
    else:
        def tn(t0, t1, vL):
            return [f'v_bfe_u32 {t0}, {vL}, 2, 3', f'v_lshlrev_b32 {t0}, 13, {t0}', f'v_and_b32 {t1}, 3, {vL}',
                    f'v_lshl_add_u32 {t0}, {t1}, 7, {t0}', 's_lshl_b32 s31, s11, 19', 's_lshl_b32 s32, s33, 18',
                    's_add_u32 s31, s31, s32', 's_lshl_b32 s32, s9, 16', 's_add_u32 s31, s31, s32', 's_add_u32 s31, s31, s21']
        tn.rA, tn.rB = 's[40:43]', 's[44:47]'
    prep.gemm_half(p, 1, 's[12:15]', 's[16:19]', tn, 2)
    e('buffer_load_dword v253, v252, s[84:87], 0 offen sc1')

    def sig1(n):
        e(f's_waitcnt vmcnt({n})\ns_barrier')
        done_flag(p, 's90', 1)
        if TL_ON[0]:
            e('s_memrealtime s[76:77]')
    if cfg.sb:
        e(claim)
        sig1(1)
        e("""s_cmp_ge_u32 s36, 16
        s_cbranch_scc1 JOB2_SKIP
        s_mov_b32 s10, s36
        s_mov_b32 s11, s37
        s_mov_b32 s33, s38""")
        prep.gemm_half(p, 0, 's[40:43]', 's[44:47]', None, 5)
    else:
        if cfg.dele:
            e("""s_cmp_eq_u32 s94, 0
        s_cbranch_scc1 JOB2_OFF
        s_cmp_eq_u32 s94, 3
        s_cbranch_scc1 JOB2_OFF
        s_cmp_eq_u32 s100, 74
        s_cbranch_scc1 JOB2_OFF
        s_cmp_lg_u32 s100, 77
        s_cbranch_scc1 JOB2
        JOB2_OFF:""")
            e(claim)
            sig1(1)
            e('s_branch JOB2_SKIP\nJOB2:')
        if cfg.isig:
            sig1(0)
        prep.gemm_half(p, 0, 's[40:43]', 's[44:47]', None, 5, None if cfg.isig else sig1, claim)
    e('s_waitcnt vmcnt(0)\ns_barrier')
    done_flag(p, 's89', 1)
    e('JOB2_SKIP:\ns_waitcnt vmcnt(0)')
    if TL_ON[0]:
        e(f's_lshl_b32 s98, s2, 6\ns_add_u32 s98, s98, {WS_TL}\nv_mov_b32 v255, 0\ns_waitcnt lgkmcnt(0)')
        for i in range(2, 7):
            e(f'v_mov_b32 v254, s{68 + 2 * i}\nbuffer_store_dword v254, v255, s[4:7], s98 offen offset:{4 * i}')
    e('s_branch PREP_DONE\nPREP_LN:')
    e('s_mov_b32 s100, s21')
    tl(p, 0, 's100', WS_TL + 16384)
    if cfg.dele:
        e(f"""s_cmp_lt_u32 s21, 16
        s_cbranch_scc1 LN_A
        s_sub_u32 s20, s21, 16
        s_cmp_ge_u32 s20, 7
        s_cselect_b32 s22, {7 * 32 - 3}, 0
        s_lshl_b32 s20, s20, 5
        s_sub_u32 s20, s20, s22
        s_cmp_eq_u32 s21, 30
        s_cselect_b32 s20, 6, s20
        s_cmp_eq_u32 s21, 31
        s_cselect_b32 s20, 102, s20
        s_mul_i32 s10, s20, 4682
        s_lshr_b32 s10, s10, 16
        s_mul_i32 s21, s10, 14
        s_sub_u32 s20, s20, s21
        s_lshr_b32 s11, s20, 1
        s_and_b32 s33, s20, 1
        s_lshl_b32 s89, s10, 8
        s_lshl_b32 s20, s20, 2
        s_add_u32 s89, s89, s20
        s_add_u32 s89, s89, {C_MAT}
        s_mov_b32 s90, {OOB}
        s_branch JOB2
        LN_A:""")
    e(claim)
    if cfg.sb:
        e("""s_cmp_ge_u32 s21, 16
        s_cbranch_scc1 LN_A
        s_mov_b32 s10, s21""")
        prep.qk_build(p, 's[40:43]', 's[44:47]')
        e(f"""buffer_load_dword v253, v252, s[84:87], 0 offen sc1
        s_lshl_b32 s89, s10, 8
        s_add_u32 s89, s89, {C_MAT}
        s_waitcnt vmcnt(0) lgkmcnt(0)
        s_barrier""")
        done_flag(p, 's89', 2 * prep.NBUILD, 2)
        e("""s_branch PREP_DONE
        LN_A:
        s_sub_u32 s21, s21, 16""")
    e(f"""s_lshl_b32 s89, s21, 2
    s_add_u32 s89, s89, {C_LN}
    s_lshl_b32 s10, s21, 2
    s_add_u32 s10, s10, s9
    s_cmp_ge_u32 s21, 16
    s_cselect_b32 s90, 0, 8
    s_cselect_b32 s10, 0, s10
    s_cbranch_scc1 LN_END
    LN_LOOP:""")
    mk = f"""
    v_and_b32 v250, 63, v0
    v_lshlrev_b32 v250, 4, v250
    v_mov_b32 v244, -1
    v_mov_b32 v245, -1
    v_mov_b32 v246, -1
    v_mov_b32 v247, -1
    s_lshl_b32 s20, s10, 12
    s_add_u32 s20, s20, {WS_MEMA}
    """ + '\n'.join(f'buffer_store_dwordx4 v[244:247], v250, s[4:7], s20 offen offset:{1024 * i} sc1' for i in range(4))
    prep.ln_job(p, 'sc1', ([], mk))
    e('LN_END:\nbuffer_load_dword v253, v252, s[84:87], 0 offen sc1\ns_waitcnt vmcnt(0)\ns_barrier')
    done_flag(p, 's89', 's90')
    e('s_cmp_ge_u32 s10, 64\ns_cbranch_scc1 F_CONT')
    e(f"""PREP_DONE:
    v_mov_b32 v4, 0
    s_cmp_lg_u32 s9, 0
    s_cbranch_scc1 EL_WAIT
    v_readfirstlane_b32 s20, v249
    s_and_b32 s20, s20, s93
    s_mov_b32 s21, -1
    s_cbranch_scc0 EL_PUB
    s_lshl_b32 s20, s88, 2
    s_add_u32 s20, s20, 192
    v_mov_b32 v1, 1
    v_mov_b32 v2, s20
    v_mov_b32 v3, 8
    s_mov_b64 exec, 1
    buffer_atomic_add v1, v3, s[84:87], 0 offen
    buffer_atomic_add v1, v2, s[84:87], 0 offen sc0
    s_waitcnt vmcnt(0)
    s_mov_b64 exec, -1
    v_readfirstlane_b32 s94, v1
    v_and_b32 v1, 15, v0
    v_lshlrev_b32 v1, 2, v1
    s_mov_b32 s22, 200000
    EL_SUM:
    buffer_load_dword v3, v1, s[84:87], 0 offen offset:160 sc1
    s_waitcnt vmcnt(0)
    s_mov_b32 s23, 0""")
    for i in range(16):
        e(f'v_readlane_b32 s{24 + i}, v3, {i}')
    for i in range(8):
        e(f's_bcnt1_i32_b32 s20, s{24 + i}\ns_add_u32 s23, s23, s20\ns_add_u32 s23, s23, s{32 + i}')
    e(f"""s_sub_u32 s22, s22, 1
    s_cmp_gt_i32 s22, 0
    s_cbranch_scc0 EL_BAD
    s_cmp_lt_u32 s23, 256
    s_cbranch_scc1 EL_SUM
    v_readlane_b32 s95, v3, s88
    s_mov_b32 s21, 0
    s_bcnt0_i32_b32 s20, s95
    s_cmp_lt_u32 s94, s20
    s_cbranch_scc1 EL_BIT
    v_mov_b32 v1, 1
    v_mov_b32 v2, 4
    s_mov_b64 exec, 1
    buffer_atomic_add v1, v2, s[84:87], 0 offen sc0
    s_waitcnt vmcnt(0)
    s_mov_b64 exec, -1
    v_readfirstlane_b32 s22, v1
    s_mov_b32 s21, 256""")
    for i in range(8):
        e(f"""s_bcnt0_i32_b32 s20, s{24 + i}
        s_min_u32 s23, s20, s{32 + i}
        s_sub_u32 s20, s20, s23
        s_add_u32 s94, s23, s22
        s_mov_b32 s95, s{24 + i}
        s_mov_b32 s88, {i}
        s_cmp_lt_u32 s22, s20
        s_cbranch_scc1 EL_BIT
        s_sub_u32 s22, s22, s20""")
    e(f"""EL_BAD:
    s_mov_b32 s21, -2
    s_branch EL_PUB
    EL_BIT:
    s_ff0_i32_b32 s20, s95
    s_bitset1_b32 s95, s20
    s_sub_u32 s94, s94, 1
    s_cbranch_scc0 EL_BIT
    s_and_b32 s20, s20, 31
    s_add_u32 s21, s21, s20
    s_lshl_b32 s20, s88, 16
    s_add_u32 s21, s21, s20
    EL_PUB:
    v_mov_b32 v1, s21
    ds_write_b32 v4, v1
    s_waitcnt lgkmcnt(0)
    EL_WAIT:
    s_barrier
    ds_read_b32 v1, v4
    s_waitcnt lgkmcnt(0)
    v_readfirstlane_b32 s21, v1
    s_cmp_eq_u32 s21, -1
    s_cbranch_scc1 EL_OK
    s_cmp_eq_u32 s21, -2
    s_cbranch_scc1 EXIT
    s_barrier
    s_bfe_u32 {sSLOW}, s21, 0x10008
    s_bfe_u32 s88, s21, 0x30010
    s_and_b32 s21, s21, 31
    s_mov_b32 s93, 0
    v_mov_b32 v248, {OOB}
    s_branch SLOT
    EL_OK:""")
    tl(p, 1, 's2', WS_TL)
    srd(e, 16, 8, 7168)
    e(f's_mov_b32 {sIDX}, s100\ns_waitcnt lgkmcnt(0)')
    e(f"""s_cmp_ge_u32 {sIDX}, 32
    s_cbranch_scc1 WORKER
    s_and_b32 {sH}, {sIDX}, 15""")
    if cfg.diag:
        for i in range(NSTAMP):
            e(f's_mov_b32 s{STAMP0 + 2 * i}, 0')
    e(f"""s_cmp_ge_u32 {sIDX}, 16
    s_cbranch_scc1 ROLE_VO
    s_barrier""")
    wave_dispatch(e, 'QK')
    e(f"""ROLE_VO:
    s_cmp_ge_u32 {sH}, 14
    s_cbranch_scc1 ROLE_EN""")
    e('s_barrier')
    wave_dispatch(e, 'VO')
    e(f"""ROLE_EN:
    v_lshlrev_b32 v1, 7, v0
    s_and_b32 s20, {sH}, 1
    s_mul_i32 s20, s20, {9 * 32768}
    s_add_u32 s20, s20, {WS_MEMR}""")
    for i in range(9):
        e(f'buffer_load_dword v9, v1, s[4:7], s20 offen sc1\ns_add_u32 s20, s20, 32768')
    e('s_waitcnt vmcnt(0)')
    ready_wait(p, 'ln', 15)
    wave_dispatch(e, 'EN')
    M_ = 7 if cfg.quiet < 0 else 6
    e(f"""WORKER:
    s_sub_u32 s8, s8, 32
    s_cmp_ge_u32 s8, 96
    s_cbranch_scc1 ROLE_F
    s_cmp_ge_u32 s8, 48
    s_cselect_b32 s20, 48, 0
    s_sub_u32 s20, s8, s20            ; y
    s_cmp_ge_u32 s20, {6 * M_}
    s_cbranch_scc1 WK_HI
    s_cmp_ge_u32 s20, {3 * M_}
    s_cselect_b32 s21, {3 * M_}, 0
    s_cselect_b32 s10, {M_}, 0
    s_sub_u32 s20, s20, s21
    s_mul_i32 s11, s20, {37 if M_ == 7 else 43}
    s_lshr_b32 s11, s11, 8            ; replica
    s_mul_i32 s21, s11, {M_}
    s_sub_u32 s20, s20, s21
    s_add_u32 s10, s10, s20           ; head
    s_branch WK_GO
    WK_HI:
    s_sub_u32 s20, s20, {6 * M_}
    s_mul_i32 s10, s20, 86
    s_lshr_b32 s10, s10, 8
    s_mul_i32 s21, s10, 3
    s_sub_u32 s11, s20, s21
    s_add_u32 s10, s10, {2 * M_}
    WK_GO:
    s_lshl_b32 s21, s10, 1
    s_cmp_ge_u32 s8, 48
    s_cbranch_scc1 ROLE_T
    s_add_u32 s21, s21, 1""")
    ready_wait(p, 'one', 15)
    tl(p, 5, 's100', WS_TL + 16384)
    workers.yt_worker(p, 0)
    e('EXIT:\ns_endpgm')
    e('ROLE_T:')
    ready_wait(p, 'one')
    workers.yt_worker(p, 1)
    e(f"""ROLE_F:
    s_cmp_ge_u32 s8, {96 + cfg.nf}
    s_cbranch_scc1 EXIT
    s_cmp_ge_u32 s8, 112
    s_cbranch_scc1 F_CONT
    s_sub_u32 s10, s8, 80
    s_lshl_b32 s89, s10, 2
    s_add_u32 s89, s89, {C_LN}
    s_mov_b32 s90, 8
    s_lshl_b32 s10, s10, 2
    s_add_u32 s10, s10, s9
    s_branch LN_LOOP
    F_CONT:""")
    ready_wait(p, 'ln')
    e('s_sub_u32 s10, s8, 96')
    workers.f_worker(p)
    for role, nm in ((0, 'QK'), (1, 'VO'), (2, 'EN')):
        for w in range(4):
            e(f'{nm}{w}:')
            team_wave(p, role, w, cfg)


def build(cfg):
    TL_ON[0] = bool(cfg.tl)
    DBG_TL[0] = [(0, 0, 6), (16, 5, 7), (0, 5, 8), (16, 1, 9), (0, 1, 10), (9, 1, 11), (32, 2, 12), (16, 3, 13), (80, 4, 14), (128 + 7 * (63 % (cfg.nf // 7)), 4, 15)] if cfg.dtl else None
    workers.MALL[0] = cfg.mall
    workers.NF[0] = cfg.nf
    workers.CHEAP[0] = cfg.cheap
    workers.GOV[:] = [cfg.gostep + 1, cfg.gostep2 + 1]
    workers.OSC[0] = ['', 'sc1', 'nt', 'sc0 sc1'][cfg.osc]
    hdr = open('cdna_kernels/%s.s.ref' % NAME).read().split('; Override launch')[0]
    hdr += '; @launch grid=(256,1,1) block=(256,1,1) lds=%d\n' % max(prep.H_LDS, prep.P_LDS, L_END, MAIN_LDS)
    hdr += '.amdgcn_target "amdgcn-amd-amdhsa--gfx950"\n.text\n'
    out = hdr
    p = Prog()
    main_kernel(p, NAME + '_kernel', cfg)
    out += '.globl %s_kernel\n.p2align 8\n.type %s_kernel,@function\n' % (NAME, NAME) + p.text()
    out += prep.KD % (NAME + '_kernel', 512)
    out = out.replace('\n    ', '\n')
    return out


def parse(args):
    cfg = Cfg()
    cfg.xcc = 3
    cfg.quiet = 6
    cfg.nf = 96
    cfg.tl = 0
    cfg.fb = 0
    cfg.cheap = 0
    cfg.hwid = 0
    cfg.etouch = 1
    cfg.isig = 0
    cfg.dtl = 0
    cfg.dele = 0
    cfg.exit0 = 0
    cfg.osc = 0
    cfg.mall = 0
    for a in args:
        k, v = a.split('=')
        assert hasattr(cfg, k), k
        setattr(cfg, k, int(v))
    return cfg


if __name__ == '__main__':
    open(sys.argv[1], 'w').write(build(parse(sys.argv[2:])))
```

```python
from asmlib import *
from layout import *

sWS = 's[4:7]'
sIDX, sWAVE, sSTEP = 's8', 's9', 's10'
sH = 's11'
sDBG = 's[12:15]'
sM0D = 's[16:19]'
sJ = 's24'
sMEM, sMEM2 = 's26', 's27'
sP, sPRST = 's28', 's29'
sMEMW, sMEMRST = 's32', 's33'
sT0, sT1, sT2, sT3 = 's34', 's35', 's36', 's37'
sTO = 's38'
sSTEP1 = 's39'
sYX = 's40'
sDA = 's41'
sFLG = 's43'
sTIME = 's[44:45]'
sTIME2 = 's[46:47]'
sV0 = 's[48:49]'
sCHK = 's[50:51]'
sXS, sXS2 = 's52', 's53'
sYXS, sYXS2 = 's64', 's65'
sYQ = ['s64', 's65', 's54', 's55']
sPQ = ['s20', 's21', 's22', 's23']
sRO = ['s56', 's57', 's58', 's59']
sSLOW = 's66'
sCNT = ['s68', 's69', 's70', 's71']
NSTAMP = 12
STAMP0 = 72

L_W = 0
L_SP = 4 * 14336
L_DUMP = L_SP + 4 * 1296
L_YM = 10 * 14336
L_TB = L_YM + 8192
L_END = L_TB + 64
NF2 = 14
OOB = 0x40000000
TIMEOUT = 200000
FLAG_STRIDE = 640
FLAG2_OFF = 4096 + 128
NREP = [4, 8]


class Cfg:
    stamps = 0
    dual = 1
    alone = 0
    diag = 1
    nsteps = 63
    fake = 0
    delay = 0
    vdelay = 0
    flagpos = 1
    pdelay = 0
    f2pos = 3
    nsc = 1
    gap = 14
    pdepth = 7
    pspace = 0
    vdepth = 2
    fz1 = 4
    fz2 = 6
    qtouch = 0
    vah = 4
    vtouch = 0
    ytlb = 0
    vpace = 2
    align = 1
    nyx0 = 0
    noby = 1
    perhead = 0
    vrev = 0
    warm0 = 0
    pearly = 1
    ywarm = 4
    sb = 0
    vpw = 0
    gapbar = 1
    qlate = 0
    lead = 4
    wtlb = 1
    gostep = 1
    gostep2 = 6
    qah = 4
    xsall = 0
    rot = 1
    qpace = 4
    chk = 1
    standin = 1
    nowait = 1
    nrep1 = 4
    nrep2 = 4
    qdepth = 4
    qstart = 0
    vstart = 64
    ppace = 0
    prio = 0
    bpos = 9
    vchk = 1
    selfpoll = 1
    nyx = 12
    tlb = 1
    xsb = 1
    pf = 3


def stamp(p, cfg, i):
    if cfg.stamps:
        p.e(f's_memtime s[{STAMP0 + 2 * i}:{STAMP0 + 2 * i + 1}]')


def nops(e, n):
    while n > 0:
        k = min(n, 16)
        e(f's_nop {k - 1}')
        n -= k


class VM:
    def __init__(self, e, cnt='vmcnt'):
        self.e, self.n, self.tag, self.cnt = e, 0, {}, cnt

    def issue(self, text, tag=None):
        self.e(text)
        self.n += 1
        if tag is not None:
            self.tag[tag] = self.n

    def wait(self, tag):
        self.e(f's_waitcnt {self.cnt}({self.n - self.tag[tag]})')


def team_barrier(p, w, vt, arrive=True, wait=True):
    e = p.e
    if arrive:
        e('s_waitcnt vmcnt(0) lgkmcnt(0)\ns_barrier')
    lp, done = p.label('TB'), p.label('TBD')
    e(f's_mov_b32 {sT0}, {WS_CNT + C_TB}')
    if w == 0 and arrive:
        e(f"""v_lshlrev_b32 {vt[0]}, 7, v0
        s_lshl_b32 {sT1}, {sIDX}, 2
        v_add_u32 {vt[0]}, {sT1}, {vt[0]}
        v_mov_b32 {vt[1]}, {OOB}
        v_cmp_gt_u32 vcc, 4, v0
        v_cndmask_b32 {vt[0]}, {vt[1]}, {vt[0]}, vcc
        s_add_u32 {sT1}, {sSLOW}, 1
        v_mov_b32 {vt[1]}, {sT1}
        buffer_store_dword {vt[1]}, {vt[0]}, {sWS}, {sT0} offen sc1""")
    if not wait:
        return
    if w == 0:
        e(f"""v_and_b32 {vt[0]}, 31, v0
        v_lshlrev_b32 {vt[0]}, 2, {vt[0]}
        s_and_b32 {sT1}, {sIDX}, 3
        s_lshl_b32 {sT1}, {sT1}, 7
        s_add_u32 {sT0}, {sT0}, {sT1}
        {lp}:
        buffer_load_dword {vt[2]}, {vt[0]}, {sWS}, {sT0} offen sc1
        s_sub_u32 {sTO}, {sTO}, 1
        s_cmp_gt_i32 {sTO}, 0
        s_cbranch_scc0 {done}
        s_waitcnt vmcnt(0)
        v_cmp_eq_u32 vcc, 0, {vt[2]}
        s_cbranch_vccz {done}
        s_sleep 4
        s_branch {lp}
        {done}:
        v_cmp_lt_u32 vcc, 1, {vt[2]}
        s_or_b32 {sSLOW}, vcc_lo, vcc_hi
        v_mov_b32 {vt[1]}, {sSLOW}
        v_mov_b32 {vt[0]}, {L_TB}
        ds_write_b32 {vt[0]}, {vt[1]}
        s_waitcnt lgkmcnt(0)""")
    e(f"""s_barrier
    v_mov_b32 {vt[0]}, {L_TB}
    ds_read_b32 {vt[1]}, {vt[0]}
    s_waitcnt lgkmcnt(0)
    v_readfirstlane_b32 {sSLOW}, {vt[1]}""")


def epilogue(p, w, cfg, vt):
    e = p.e
    if w == 0:
        tl(p, 3, 's100', WS_TL + 16384)
    if not cfg.diag:
        e('s_endpgm')
        return
    e(f"""s_memtime {sTIME2}
    s_waitcnt lgkmcnt(0) vmcnt(0)
    s_sub_u32 s46, s46, s44
    s_lshl_b32 {sT0}, {sIDX}, 2
    s_add_u32 {sT0}, {sT0}, {w}
    s_lshl_b32 {sT0}, {sT0}, 7
    s_add_u32 {sT0}, {sT0}, {WS_STAMP}
    v_mov_b32 {vt[0]}, 0
    v_mov_b32 {vt[1]}, s46
    buffer_store_dword {vt[1]}, {vt[0]}, {sWS}, {sT0} offen
    v_mov_b32 {vt[1]}, {sTO}
    buffer_store_dword {vt[1]}, {vt[0]}, {sWS}, {sT0} offen offset:4""")
    for i in range(NSTAMP):
        e(f"""v_mov_b32 {vt[1]}, s{STAMP0 + 2 * i}
        buffer_store_dword {vt[1]}, {vt[0]}, {sWS}, {sT0} offen offset:{64 + 4 * i}""")
    for i, c in enumerate(sCNT):
        e(f"""v_mov_b32 {vt[1]}, {c}
        buffer_store_dword {vt[1]}, {vt[0]}, {sWS}, {sT0} offen offset:{40 + 4 * i}""")
    if cfg.stamps:
        e(f's_mov_b32 {sT3}, 0')
        for i in range(24):
            e(f"""s_memrealtime s[44:45]
            s_memtime s[46:47]
            s_waitcnt lgkmcnt(0)
            s_mul_i32 s44, s44, 24
            s_sub_u32 s46, s46, s44""")
            if i == 0:
                e(f's_mov_b32 {sT2}, s46')
            e(f"""s_sub_u32 s46, s46, {sT2}
            s_min_i32 {sT3}, {sT3}, s46
            s_nop {i % 5}""")
        e(f"""s_add_u32 {sT2}, {sT2}, {sT3}
        v_mov_b32 {vt[1]}, {sT2}
        buffer_store_dword {vt[1]}, {vt[0]}, {sWS}, {sT0} offen offset:8""")
    e('s_endpgm')


def flag_store_off(e, dst, vLane, tmp, idx_sgpr, base):
    e(f'''v_mul_u32_u24 {dst}, {FLAG_STRIDE}, {vLane}
    s_lshl_b32 {sT1}, {idx_sgpr}, 2
    s_add_u32 {sT1}, {sT1}, {base}
    v_add_u32 {dst}, {sT1}, {dst}
    v_mov_b32 {tmp}, {OOB}
    v_cmp_gt_u32 vcc, {NREP[1 if base else 0]}, {vLane}
    v_cndmask_b32 {dst}, {tmp}, {dst}, vcc''')


def flag_poll_off(e, dst, vLane, base, last):
    e(f'''s_and_b32 {sT1}, {sIDX}, {NREP[1 if base else 0] - 1}
    s_mul_i32 {sT1}, {sT1}, {FLAG_STRIDE}
    s_add_u32 {sT1}, {sT1}, {base}
    v_min_u32 {dst}, {last}, {vLane}
    v_lshlrev_b32 {dst}, 2, {dst}
    v_add_u32 {dst}, {sT1}, {dst}''')


def engine_wave(p, w, cfg):
    e = p.e
    V = Alloc('v', 0, 64)
    vLane = V.get()
    vt = [V.get() for _ in range(5)]
    vL16, vL128, vFo, vFs, vD, vF = V.get(), V.get(), V.get(), V.get(), V.get(), V.get()
    mreg = V.get(16, 4)
    e(f'''v_and_b32 {vLane}, 63, v0
    v_lshlrev_b32 {vL16}, 4, {vLane}
    v_lshlrev_b32 {vL128}, 7, {vLane}
    s_mov_b32 {sFLG}, {WS_FLAGS}
    s_mov_b32 {sSTEP}, 0
    s_mov_b32 {sTO}, {TIMEOUT}''')
    for c in sCNT:
        e(f's_mov_b32 {c}, 0')
    flag_poll_off(e, vFo, vLane, FLAG2_OFF, NF2 - 1)
    e(f's_mov_b32 {sT2}, {NF2}')
    flag_store_off(e, vFs, vLane, vt[4], sT2, FLAG2_OFF)
    vL4, vOne = V.get(), V.get()
    sG, sCN = 's20', 's21'
    e(f"""v_lshlrev_b32 {vL4}, 2, {vLane}
    v_mov_b32 {vOne}, 1
    s_mov_b32 {sCN}, {WS_CNT}
    s_mov_b32 {sG}, {1000 if cfg.alone else -1}""")
    tail = []

    def gate(need, first):
        GL, GD = p.label('GL'), p.label('GD')
        if not first:
            e(f"""s_cmp_ge_i32 {sG}, 63
            s_cbranch_scc1 {GD}""")
        e(f'{GL}:')
        if not cfg.alone:
            e(f"""buffer_load_dword {vF}, {vL4}, {sWS}, {sCN} offen offset:{C_YX} sc1
            s_waitcnt vmcnt(0)
            v_cmp_gt_u32 vcc, 16, {vF}
            s_ff1_i32_b64 {sG}, vcc
            s_cmp_lt_i32 {sG}, 0
            s_cselect_b32 {sG}, 64, {sG}
            s_sub_u32 {sG}, {sG}, 1""")
        e(f"""s_max_i32 {sT1}, {sG}, 0
        v_mov_b32 {vt[0]}, {sT1}
        buffer_store_dword {vt[0]}, {vFs}, {sWS}, {sFLG} offen {'sc1' if first else ''}""")
        if not first:
            sl, bk = p.label('SL'), p.label('SB')
            e(f"""s_cmp_lg_u32 {sSLOW}, 0
            s_cbranch_scc1 {sl}
            {bk}:""")
            tail.extend([f'{sl}:', f'buffer_store_dword {vt[0]}, {vFs}, {sWS}, {sFLG} offen sc1', f's_branch {bk}'])
        e(f"""s_sub_u32 {sTO}, {sTO}, 1
        s_cmp_gt_i32 {sTO}, 0
        s_cbranch_scc0 {GD}
        s_cmp_lt_i32 {sG}, {need}
        s_cbranch_scc1 {GL}
        {GD}:""")
    if w == 1:
        sk = p.label('SK')
        e(f"""s_cmp_lg_u32 {sH}, 14
        s_cbranch_scc1 {sk}""")
        gate(-1, True)
        e(f'{sk}:')
    team_barrier(p, w, vt)
    if not cfg.alone:
        YL, YD = p.label('YL'), p.label('YD')
        e(f"""v_mov_b32 {vt[0]}, {C_YX}
        s_cmp_eq_u32 {sH}, 14
        s_cselect_b32 {sT2}, 16, {cfg.ywarm}
        {YL}:
        buffer_load_dword {vt[1]}, {vt[0]}, {sWS}, {sCN} offen sc1
        s_sub_u32 {sTO}, {sTO}, 1
        s_cmp_gt_i32 {sTO}, 0
        s_cbranch_scc0 {YD}
        s_waitcnt vmcnt(0)
        v_cmp_gt_u32 vcc, {sT2}, {vt[1]}
        s_cbranch_vccz {YD}
        s_sleep 16
        s_branch {YL}
        {YD}:""")
    if cfg.diag:
        e(f's_memtime {sTIME}')
    for i in range(cfg.pf):
        e(f"""s_mov_b32 {sT1}, {WS_XNB + i * 32768 + w * 8192}
        buffer_load_dword {vD}, {vL128}, {sWS}, {sT1} offen sc1""")
    e(f'''s_sub_u32 {sT2}, 15, {sH}
    s_lshl_b32 {sT2}, {sT2}, 15
    s_add_u32 {sT1}, {sT2}, {WS_MEMR + w * 8192}
    buffer_load_dword {vD}, {vL128}, {sWS}, {sT1} offen sc1
    s_add_u32 {sT1}, {sT2}, {WS_PR + w * 8192}
    buffer_load_dword {vD}, {vL128}, {sWS}, {sT1} offen sc1''')
    e(f'v_mov_b32 {vF}, 0')
    LOOP, END, PL, E1, AR = (p.label(x) for x in ('LOOP', 'END', 'PL', 'E1', 'AR'))
    clampn = lambda d, s_: f's_and_b32 {d}, {s_}, 1' if cfg.fake else f's_min_u32 {d}, {s_}, 63'
    odd = [u for u in range(16 * cfg.qtouch, 56) if u & 1] + [u for u in range(16 * cfg.qtouch, 56) if not u & 1]

    def prefetch_loop(units, xs, mem):
        L, SP = p.label('PF'), p.label('SP')
        nt = len(units) + 1 + xs + mem
        e(f"""{L}:
        s_cmp_ge_u32 {sSTEP}, {cfg.nsteps - cfg.pf}
        s_cbranch_scc1 {END}
        s_add_u32 {sT3}, {sSTEP}, {cfg.pf}
        {clampn(sT3, sT3)}
        s_mul_i32 {sYXS}, {sT3}, {28 * YTS[0]}
        s_add_u32 {sYXS}, {sYXS}, {WS_YX}""")
        if mem:
            e(f"""s_lshl_b32 {sDA}, {sSTEP}, 13
            s_add_u32 {sDA}, {sDA}, {WS_MEMR + (cfg.pf + 2) * 8192}
            buffer_load_dword {vD}, {vL128}, {sWS}, {sDA} offen sc1""")
        if xs:
            e(f"""s_lshl_b32 {sDA}, {sT3}, 15
            s_add_u32 {sDA}, {sDA}, {WS_XNB + w * 8192}
            buffer_load_dword {vD}, {vL128}, {sWS}, {sDA} offen sc1""")
        for u in units:
            e(f's_add_u32 {sDA}, {sYXS}, {(u >> 1) * YTS[0] + (u & 1) * 8192}\nbuffer_load_dword {vD}, {vL128}, {sWS}, {sDA} offen sc1')
        e(f"""s_add_u32 {sSTEP}, {sSTEP}, 1
        s_sub_u32 {sT2}, {sSTEP}, {cfg.lead - cfg.pf}
        s_max_i32 {sT2}, {sT2}, 0
        s_waitcnt vmcnt({nt - 1})
        v_cmp_gt_u32 vcc, {sT2}, {vF}
        buffer_load_dword {vF}, {vFo}, {sWS}, {sFLG} offen sc1
        s_cbranch_vccz {L}
        {SP}:
        s_sub_u32 {sTO}, {sTO}, 1
        s_cmp_gt_i32 {sTO}, 0
        s_cbranch_scc0 {END}
        s_waitcnt vmcnt(0)
        v_cmp_gt_u32 vcc, {sT2}, {vF}
        s_cbranch_vccz {L}
        s_sleep 4
        buffer_load_dword {vF}, {vFo}, {sWS}, {sFLG} offen sc1
        s_branch {SP}""")
    e(f's_cmp_lg_u32 {sH}, 14\ns_cbranch_scc1 {E1}')
    if w >= 2:
        u0 = odd[cfg.nyx:cfg.nyx + cfg.nyx0][(w - 2)::2]
        if u0:
            prefetch_loop(u0, 0, 0)
        else:
            e(f's_branch {END}')
    else:
        nch = 4 - w
        e(f"""{LOOP}:
        s_lshl_b32 {sMEM}, {sSTEP}, 13
        s_add_u32 {sMEMW}, {sMEM}, {WS_MEMA + w * 4096}
        s_add_u32 {sMEM}, {sMEM}, {WS_MEMR + w * 4096}
        {AR}:""")
        for i in range(nch):
            e(f'buffer_load_dwordx4 {mreg[4 * i:4 * i + 4]}, {vL16}, {sWS}, {sMEM} offen offset:{1024 * i} sc1')
        e(f"""s_sub_u32 {sTO}, {sTO}, 1
        s_cmp_gt_i32 {sTO}, 0
        s_cbranch_scc0 {END}
        s_waitcnt vmcnt(0)
        v_max_u32 {vt[0]}, {mreg[0]}, {mreg[1]}""")
        for i in range(2, 4 * nch, 2):
            e(f'v_max3_u32 {vt[0]}, {vt[0]}, {mreg[i]}, {mreg[i + 1]}')
        e(f'v_cmp_eq_u32 vcc, -1, {vt[0]}\ns_cbranch_vccnz {AR}')
        for i in range(nch):
            e(f'buffer_store_dwordx4 {mreg[4 * i:4 * i + 4]}, {vL16}, {sWS}, {sMEMW} offen offset:{1024 * i} sc1')
        if w == 0:
            gs = p.label('GS')
            e(f"""s_cmp_gt_u32 {sSTEP}, {cfg.gostep2}
            s_cbranch_scc1 {gs}
            v_mov_b32 {vt[1]}, {OOB}
            v_cmp_gt_u32 vcc, 8, {vLane}
            v_cndmask_b32 {vt[1]}, {vt[1]}, {vL128}, vcc
            s_add_u32 {sT1}, {sSTEP}, 1
            v_mov_b32 {vt[2]}, {sT1}
            s_add_u32 {sT1}, {sCN}, {C_GO}
            buffer_store_dword {vt[2]}, {vt[1]}, {sWS}, {sT1} offen sc1
            {gs}:""")
        e(f"""s_cmp_ge_u32 {sSTEP}, {cfg.nsteps - 1}
        s_cbranch_scc1 {END}""")
        if w == 1:
            e(f's_add_u32 {sT2}, {sSTEP}, 1')
            e(f's_min_u32 {sT2}, {sT2}, 63')
            gate(sT2, False)
        e(f"""s_add_u32 {sSTEP}, {sSTEP}, 1
        {PL}:
        buffer_load_dword {vF}, {vFo}, {sWS}, {sFLG} offen sc1
        s_sub_u32 {sTO}, {sTO}, 1
        s_cmp_gt_i32 {sTO}, 0
        s_cbranch_scc0 {END}
        s_waitcnt vmcnt(0)
        v_cmp_gt_u32 vcc, {sSTEP}, {vF}
        s_cbranch_vccz {LOOP}
        s_sleep 2
        s_branch {PL}""")
    e(f'{E1}:')
    prefetch_loop(odd[:cfg.nyx][(3 - w)::4], 1, 1 if w == 0 else 0)
    e(f'{END}:')
    epilogue(p, w, cfg, vt)
    for l in tail:
        e(l)


def team_wave(p, role, w, cfg):
    NREP[0], NREP[1] = cfg.nrep1, cfg.nrep2
    if role == 2:
        return engine_wave(p, w, cfg)
    qk = role == 0
    NT = 7 if qk else 8
    NR = 5 if qk else 6
    AH = cfg.qah if qk else cfg.vah
    fin = not qk and w < 2
    slots = (QK_SLOTS if qk else VO_SLOTS)[w]
    if not qk and cfg.vrev:
        slots = [[3, 4, 5, 6, 0, 1, 2], [4, 5, 6, 3, 1, 2, 0], [5, 6, 3, 4, 2, 0, 1], [6, 3, 4, 5, 0, 2, 1]][w]
    V = Alloc('v', 0, 254)
    A = Alloc('a', 0, 256)
    vLane = V.get()
    vG, vC = V.get(), V.get()
    vt = [V.get() for _ in range(5)]
    vIdx, vL16, vStep, vFo, vFs, vNeg1, vWL = (V.get() for _ in range(7))
    lds_tiles = [4] if qk else ([3, 4, 5] if fin else [4, 5])
    memA = V.get(28, 4)
    stg = V.get(16 * len(lds_tiles), 4)
    assert stg.base == memA.base + 28
    Tacc = V.get(4 * NT, 4)
    wl0 = L_W + (w if qk else [0, 3, 6, 8][w]) * 14336
    lds_rel = {t: i * 14336 for i, t in enumerate(lds_tiles)}
    if qk:
        Did = V.get(8, 4)
        AS = V.get(8, 4)
        xsB = V.get(32, 4)
        Alast = V.get(4, 4)
        Sx = V.get(8, 4)
        Sm = V.get(4, 4)
        Idn = V.get(4, 4)
        vSW, vSW2, vSR, vPo, vL128, vSZ = (V.get() for _ in range(6))
        if w == 3:
            Mx = V.get(4, 4)
        Fp = [Did[i] for i in range(8)]
        toucher = w >= 4 - cfg.qtouch
    else:
        Ym = V.get(8, 4)
        vYW, vFo2, vL128 = V.get(), V.get(), V.get()
        Fp = [memA[20 + i] for i in range(8)]
        if fin:
            YX = V.get(64, 4)
            vMo, vMr = V.get(), V.get()
            Afin = R('v', memA.base, 40)
            BM = stg[16:32]
            Facc = stg[32:36]
            Bfin = [BM[0:8], BM[8:16]] + [YX[8 * i:8 * i + 8] for i in range(8)]
    poller = (qk and w == 0) or (not qk and w >= 2)
    frag = {}
    from prep import NBUILD, built_agpr
    built = qk and cfg.sb and not cfg.alone
    if built:
        A.get(48 * NBUILD, 4)
    for t in range(NT):
        if t in lds_tiles:
            continue
        for k in range(7):
            if built and slots[k] < NBUILD:
                frag[(t, k)] = R('a', built_agpr(t, slots[k]), 8)
            else:
                frag[(t, k)] = A.get(8, 4) if A.left() >= 8 else V.get(8, 4)
    e = p.e

    e(f'''v_and_b32 {vLane}, 63, v0
    v_lshrrev_b32 {vG}, 4, {vLane}
    v_and_b32 {vC}, 15, {vLane}
    v_lshlrev_b32 {vL16}, 4, {vLane}
    v_add_u32 {vWL}, {wl0}, {vL16}
    v_bfe_u32 {vt[0]}, {vC}, 1, 1          ; v(c)
    v_lshrrev_b32 {vt[1]}, 2, {vC}
    v_lshlrev_b32 {vt[1]}, 1, {vt[1]}
    v_and_b32 {vt[2]}, 1, {vC}
    v_add_u32 {vt[1]}, {vt[1]}, {vt[2]}    ; m(c)
    v_mul_u32_u24 {vIdx}, 0xaaaa, {vt[0]}
    v_add_u32 {vIdx}, 0x4444, {vIdx}
    v_mov_b32 {vNeg1}, -1
    s_mov_b32 {sFLG}, {WS_FLAGS}''')
    if qk:
        e(f'''v_lshlrev_b32 {vL128}, 7, {vLane}
        v_lshrrev_b32 {vt[2]}, 2, {vC}
        v_and_b32 {vt[3]}, 1, {vC}
        v_lshlrev_b32 {vt[3]}, 4, {vt[3]}
        v_mov_b32 {vt[4]}, 0x3f80
        v_lshlrev_b32 {vt[3]}, {vt[3]}, {vt[4]}
        v_cmp_eq_u32 vcc, {vt[2]}, {vG}
        v_cndmask_b32 {vt[3]}, 0, {vt[3]}, vcc
        v_cmp_eq_u32 vcc, 0, {vt[0]}
        v_cndmask_b32 {Idn[0]}, 0, {vt[3]}, vcc
        v_cndmask_b32 {Idn[1]}, 0, {vt[3]}, vcc
        v_cndmask_b32 {Idn[2]}, {vt[3]}, 0, vcc
        v_cndmask_b32 {Idn[3]}, {vt[3]}, 0, vcc
        s_mov_b64 {sV0}, vcc
        v_mul_u32_u24 {vt[2]}, 320, {vG}
        v_add_u32 {vt[2]}, {L_SP + w * 1296}, {vt[2]}
        v_and_b32 {vt[3]}, 12, {vC}
        v_add_u32 {vt[3]}, {vt[3]}, {vC}
        v_lshl_add_u32 {vSW}, {vt[3]}, 2, {vt[2]}
        v_lshl_add_u32 {vt[2]}, {vt[1]}, 2, {vt[2]}
        v_add_u32 {vt[2]}, 128, {vt[2]}
        v_lshlrev_b32 {vt[3]}, 2, {vC}
        v_add_u32 {vt[3]}, {L_DUMP}, {vt[3]}
        v_cndmask_b32 {vSW2}, {vt[3]}, {vt[2]}, vcc
        v_lshrrev_b32 {vt[0]}, 5, {vLane}
        v_and_b32 {vt[1]}, 31, {vLane}
        v_mul_u32_u24 {vt[2]}, 160, {vt[0]}
        v_lshl_add_u32 {vt[2]}, {vt[1]}, 3, {vt[2]}
        v_add_u32 {vt[2]}, {L_SP + 2 * w * 160}, {vt[2]}
        v_mov_b32 {vt[3]}, {L_SP + 1280}
        v_cmp_gt_u32 vcc, 20, {vt[1]}
        v_cndmask_b32 {vSR}, {vt[3]}, {vt[2]}, vcc
        v_mov_b32 {vt[3]}, {L_SP + 1288}
        v_cndmask_b32 {vSZ}, {vt[3]}, {vt[2]}, vcc
        v_and_b32 {vt[2]}, 1, {vt[1]}
        v_lshl_add_u32 {vt[2]}, {vt[2]}, 1, {vt[0]}
        v_lshlrev_b32 {vt[2]}, 4, {vt[2]}
        v_bfe_u32 {vt[3]}, {vt[1]}, 3, 1
        v_lshl_add_u32 {vt[3]}, {vt[3]}, 8, {vt[2]}
        v_bfe_u32 {vt[4]}, {vt[1]}, 1, 2
        v_lshl_add_u32 {vt[3]}, {vt[4]}, 2, {vt[3]}
        s_lshl_b32 {sT1}, {sH}, 9
        s_add_u32 {sT1}, {sT1}, {2048 + 64 * w}
        v_add_u32 {vt[3]}, {sT1}, {vt[3]}
        v_bfe_u32 {vt[2]}, {vt[1]}, 1, 1
        v_lshlrev_b32 {vt[2]}, 8, {vt[2]}
        v_lshl_add_u32 {vt[2]}, {vt[0]}, 4, {vt[2]}
        v_and_b32 {vt[4]}, 1, {vt[1]}
        v_lshl_add_u32 {vt[2]}, {vt[4]}, 3, {vt[2]}
        s_lshr_b32 {sT1}, {sH}, 2
        s_lshl_b32 {sT1}, {sT1}, 9
        s_and_b32 {sT2}, {sH}, 1
        s_lshl_b32 {sT2}, {sT2}, 5
        s_add_u32 {sT1}, {sT1}, {sT2}
        s_and_b32 {sT2}, {sH}, 2
        s_lshl_b32 {sT2}, {sT2}, 1
        s_add_u32 {sT1}, {sT1}, {sT2}
        s_add_u32 {sT1}, {sT1}, {64 * w}
        v_add_u32 {vt[2]}, {sT1}, {vt[2]}
        v_mov_b32 {vt[4]}, {OOB}
        v_cndmask_b32 {vt[2]}, {vt[4]}, {vt[2]}, vcc
        v_cmp_gt_u32 vcc, 16, {vt[1]}
        v_cndmask_b32 {vPo}, {vt[2]}, {vt[3]}, vcc''')
        for r in range(4):
            e(f'''s_mov_b32 {sT1}, {WS_PR + r * 16384}
            buffer_store_dword {vNeg1}, {vPo}, {sWS}, {sT1} offen sc1''')
        e(f"""v_mov_b32 {vt[2]}, {L_SP + w * 1296 + 1280}
        v_mov_b32 {vt[3]}, 0xf149f2ca
        ds_write2_b32 {vt[2]}, {vt[3]}, {vt[3]} offset0:0 offset1:1""")
        flag_store_off(e, vFs, vLane, vt[4], sH, 0)
        if w == 1:
            e(f'''v_mov_b32 {vt[4]}, 0
            buffer_store_dword {vt[4]}, {vFs}, {sWS}, {sFLG} offen sc1''')
        for i in range(4):
            e(f'v_mov_b32 {Alast[i]}, 0')
        if poller:
            flag_poll_off(e, vFo, vLane, FLAG2_OFF, NF2)
        e(f'''s_mul_i32 {sYX}, {sH}, {cfg.qtouch * 8192}
        s_add_u32 {sYX}, {sYX}, {WS_YX + (3 - w) * 8192}''')
    else:
        e(f'v_add_u32 {vYW}, {L_YM}, {vL16}')
        e(f'v_lshlrev_b32 {vL128}, 7, {vLane}')
        if not fin:
            e(f's_add_u32 {sJ}, {sH}, {14 * (w - 2)}\ns_mul_i32 {sYX}, {sJ}, {YTS[0]}\ns_add_u32 {sYX}, {sYX}, {WS_YX}')
        if fin:
            e(f'''s_add_u32 {sJ}, {sH}, {14 * w}
            v_lshrrev_b32 {vt[2]}, 3, {vC}
            v_lshlrev_b32 {vt[2]}, 5, {vt[2]}
            v_lshl_add_u32 {vt[2]}, {vG}, 6, {vt[2]}
            v_and_b32 {vt[3]}, 7, {vC}
            v_lshl_add_u32 {vt[2]}, {vt[3]}, 1, {vt[2]}
            s_lshl_b32 {sT1}, {sJ}, 8
            v_add_u32 {vMo}, {sT1}, {vt[2]}
            v_lshlrev_b32 {vt[2]}, 2, {vLane}
            v_add_u32 {vMr}, {sT1}, {vt[2]}
            s_mul_i32 {sYX}, {sJ}, {YTS[0]}
            s_add_u32 {sYX}, {sYX}, {WS_YX}''')
            for g_ in range(4):
                e(f'''s_add_u32 {sRO[g_]}, {sJ if cfg.rot else 0}, {g_}
                s_and_b32 {sRO[g_]}, {sRO[g_]}, 3
                s_lshl_b32 {sRO[g_]}, {sRO[g_]}, 11''')
            e(f'''v_bfe_u32 {vt[2]}, {vLane}, 2, 1
            v_lshl_add_u32 {vt[2]}, {vG}, 1, {vt[2]}
            v_mul_u32_u24 {vt[2]}, 896, {vt[2]}
            v_bfe_u32 {vt[3]}, {vLane}, 3, 1
            v_lshl_add_u32 {vt[2]}, {vt[3]}, 6, {vt[2]}
            v_and_b32 {vt[3]}, 3, {vLane}
            v_lshl_add_u32 {vt[2]}, {vt[3]}, 2, {vt[2]}
            s_lshr_b32 {sT1}, {sJ}, 2
            s_lshl_b32 {sT1}, {sT1}, 7
            s_and_b32 {sT2}, {sJ}, 3
            s_lshl_b32 {sT2}, {sT2}, 4
            s_add_u32 {sT1}, {sT1}, {sT2}
            buffer_load_dword {vt[3]}, {vt[2]}, {sM0D}, {sT1} offen
            s_waitcnt vmcnt(0)
            s_mov_b32 {sT1}, {WS_MEMR}
            buffer_store_dword {vt[3]}, {vMr}, {sWS}, {sT1} offen sc1''')
            for r in range(1, 3):
                e(f'''s_mov_b32 {sT1}, {WS_MEMR + r * 8192}
                buffer_store_dword {vNeg1}, {vMr}, {sWS}, {sT1} offen sc1''')
            flag_store_off(e, vFs, vLane, vt[4], sH, FLAG2_OFF)
            if w == 0:
                e(f'''v_mov_b32 {vt[4]}, 0
                buffer_store_dword {vt[4]}, {vFs}, {sWS}, {sFLG} offen sc1''')
        if w == (0 if cfg.selfpoll else 2):
            flag_poll_off(e, vFo, vLane, 0, 15)
        if w == cfg.vpw:
            flag_poll_off(e, vFo2, vLane, FLAG2_OFF, NF2)

    def xs_bases(nxt):
        if cfg.xsall in (1, 2):
            return [f's_lshl_b32 {sXS}, {nxt}, 15', f's_add_u32 {sXS}, {sXS}, {WS_XNB + w * 8192}', f's_add_u32 {sXS2}, {sXS}, 4096']
        return [f's_add_u32 {sXS2}, {sXS}, 4096', f's_lshl_b32 {sXS}, {nxt}, 15', f's_add_u32 {sXS}, {sXS}, {WS_XNB + w * 8192}']

    def xs_loads():
        return [f'buffer_load_dwordx4 {xsB[4 * i:4 * i + 4]}, {vL16}, {sWS}, {sXS if i < 4 else sXS2} offen '
                f'offset:{(i & 3) * 1024} sc1' for i in range(8)]

    winA = []
    if qk:
        winA = xs_loads()[[4, 0, 8][cfg.xsall]:]
        if toucher:
            winA += [f'buffer_load_dword {vt[3]}, {vL128}, {sWS}, {sYXS} offen sc1']
    elif fin:
        winA = [f'buffer_load_dwordx4 {YX[4 * i:4 * i + 4]}, {vL16}, {sWS}, {sYQ[i >> 2]} offen '
                 f'offset:{(i & 3) * 1024} sc1' for i in range(16)]
        yx_all = list(winA)
    elif cfg.ytlb:
        winA = [f'buffer_load_dword {vt[3]}, {vt[2]}, {sWS}, {sYXS} offen sc1']
    elif cfg.vtouch:
        winA = [f'buffer_load_dword {vt[3]}, {vL128}, {sWS}, {sYXS} offen sc1', f'buffer_load_dword {vt[3]}, {vL128}, {sWS}, {sYXS2} offen sc1']

    e(f"""s_mov_b32 {sSTEP}, 0
    s_mov_b32 {sTO}, {TIMEOUT}""")
    for c in sCNT:
        e(f's_mov_b32 {c}, 0')
    if qk:
        if cfg.nowait:
            e(f'v_mov_b32 {vt[0]}, -1\nv_mov_b32 {vt[1]}, -1')
            assert vt[1].base == vt[0].base + 1
            for i in range(4):
                e(f'ds_write2_b32 {vSZ}, {vNeg1}, {vNeg1} offset0:0 offset1:1' if i == 0 else
                  f'v_add_u32 {vt[2]}, {1296 * i}, {vSZ}\nds_write2_b32 {vt[2]}, {vNeg1}, {vNeg1} offset0:0 offset1:1')
    team_barrier(p, w, vt, True, False)
    if not cfg.alone:
        e(f"""v_min_u32 {vt[0]}, {24 if qk else 27}, {vLane}
        v_lshlrev_b32 {vt[0]}, 14, {vt[0]}
        s_mul_i32 {sT0}, {sH}, {(28 if qk else 32) * 14336}
        s_add_u32 {sT0}, {sT0}, {WS_WQK if qk else WS_WVO}""")
        if cfg.wtlb:
            e(f'buffer_load_dword {vt[1]}, {vt[0]}, {sWS}, {sT0} offen sc1\ns_waitcnt vmcnt(0)')
        e(f"""v_min_u32 {vt[0]}, 13, {vC}
        v_lshlrev_b32 {vt[0]}, 2, {vt[0]}""")
        if qk:
            e(f"""s_lshl_b32 {sT1}, {sH}, 8
            s_add_u32 {sT1}, {sT1}, {C_MAT}
            v_add_u32 {vt[0]}, {sT1}, {vt[0]}""")
        else:
            e(f"""v_lshl_add_u32 {vt[0]}, {vG}, 8, {vt[0]}
            v_add_u32 {vt[0]}, {C_MAT + 128 + w * 1024}, {vt[0]}""")
        e(f's_mov_b32 {sDA}, {WS_CNT}\ns_mov_b64 vcc, -1')

    def need(mask_lo, mask_hi):
        if cfg.alone:
            return
        RL, RD = p.label('RL'), p.label('RD')
        tst = f's_and_b32 {sT2}, vcc_lo, {mask_lo}' if mask_lo else f's_and_b32 {sT2}, vcc_hi, {mask_hi}'
        e(f"""{tst}
        s_cbranch_scc0 {RD}
        {RL}:
        buffer_load_dword {vt[1]}, {vt[0]}, {sWS}, {sDA} offen sc1
        s_sub_u32 {sTO}, {sTO}, 1
        s_cmp_gt_i32 {sTO}, 0
        s_cbranch_scc0 {RD}
        s_waitcnt vmcnt(0)
        v_cmp_ne_u32 vcc, 1, {vt[1]}
        {tst}
        s_cbranch_scc0 {RD}
        s_sleep 2
        s_branch {RL}
        {RD}:""")
    e(f's_mul_i32 {sT0}, {sH}, {28 * 14336 if qk else 32 * 14336}')
    n_out = 0
    order = list(range(NT)) if qk else [0, 4, 1, 5, 2, 6, 3, 7]
    for ti, t in enumerate(order):
        if qk and ti == 0:
            need(0xffff, 0)
        if not qk and ti % 2 == 0:
            if cfg.perhead:
                need(*[(0xffff, 0), (0xffff0000, 0), (0, 0xffff), (0, 0xffff0000)][ti // 2])
            elif ti == 0:
                need(0xffffffff, 0)
                need(0, 0xffffffff)
        if ti == 0 and w == 0:
            tl(p, 5, 's100', WS_TL + 16384)
        for k in range(7):
            if qk:
                st_, pos = QK_TILES[w][t]
                T = 2 * set_quad(w, st_, pos & 1, pos >> 1) + (pos >> 1)
                off = WS_WQK + (T * 7 + slots[k]) * 2048
            else:
                off = WS_WVO + (((4 * w + (t & 3)) * 2 + (t >> 2)) * 7 + slots[k]) * 2048
            if built and t not in lds_tiles and slots[k] < NBUILD:
                continue
            e(f's_add_u32 {sT1}, {sT0}, {off}')
            if t in lds_tiles:
                e(f'''s_mov_b32 m0, {wl0 + lds_rel[t] + k * 2048}
                buffer_load_dwordx4 {vL16}, {sWS}, {sT1} offen sc1 lds
                buffer_load_dwordx4 {vL16}, {sWS}, {sT1} offen offset:1024 sc1 lds''')
            else:
                f = frag[(t, k)]
                e(f'''buffer_load_dwordx4 {f[0:4]}, {vL16}, {sWS}, {sT1} offen sc1
                buffer_load_dwordx4 {f[4:8]}, {vL16}, {sWS}, {sT1} offen offset:1024 sc1''')
            n_out += 2
            if n_out >= 60:
                e('s_waitcnt vmcnt(40)')
                n_out = 40
    team_barrier(p, w, vt, False, True)
    if qk and cfg.xsall != 1:
        for l in xs_bases(sSTEP)[(1 if cfg.xsall == 0 else 0):] + xs_loads()[:[4, 0, 8][cfg.xsall]]:
            e(l)
    e(f's_waitcnt vmcnt({[4, 0, 8][cfg.xsall] if qk else 0})')
    if w == 0:
        tl(p, 1, 's100', WS_TL + 16384)
        tl(p, 2, 's100', WS_TL + 16384)
    if cfg.diag:
        e(f's_memtime {sTIME}')

    LOOP, END = p.label('LOOP'), p.label('END')
    FAIL, JOIN = p.label('FAIL'), p.label('JOIN')
    tail = []
    vm = VM(e)
    lg = VM(e, 'lgkmcnt')

    def slow(texts):
        if cfg.dual:
            sl, bk = p.label('SL'), p.label('SB')
            e(f's_cmp_lg_u32 {sSLOW}, 0')
            e(f's_cbranch_scc1 {sl}')
            e(f'{bk}:')
            tail.extend([f'{sl}:'] + [t + ' sc1' for t in texts] + [f's_branch {bk}'])

    def st2(text):
        vm.issue(text)
        slow([text])

    nside = [0]

    def side(text):
        if 'store' in text:
            st2(text)
        else:
            nside[0] += 1
            vm.issue(text, ('side', nside[0]))

    def chunk_txt(k, fl):
        off = slots[k] * 1024
        so = sMEM if off < 4096 else sMEM2
        return f'buffer_load_dwordx4 {memA[4 * k:4 * k + 4]}, {vL16}, {sWS}, {so} offen offset:{off & 4095} {fl}'

    def chunk_load(k):
        vm.issue(chunk_txt(k, '' if k >= cfg.nsc else 'sc1'), ('c', k))

    def stg_read(k):
        o = []
        for i, t in enumerate(lds_tiles):
            r = stg[16 * i + 8 * (k & 1):16 * i + 8 * (k & 1) + 8]
            o.append(f'ds_read_b128 {r[0:4]}, {vWL} offset:{lds_rel[t] + k * 2048}')
            o.append(f'ds_read_b128 {r[4:8]}, {vWL} offset:{lds_rel[t] + k * 2048 + 1024}')
        return o

    def wfrag(t, k):
        if t in lds_tiles:
            i = lds_tiles.index(t)
            return stg[16 * i + 8 * (k & 1):16 * i + 8 * (k & 1) + 8]
        return frag[(t, k)]

    def smf_txt(t, k):
        return f'v_smfmac_f32_16x16x64_bf16 {Tacc[4 * t:4 * t + 4]}, {memA[4 * k:4 * k + 4]}, {wfrag(t, k)}, {vIdx}'

    def smf(t, k):
        e(smf_txt(t, k))

    def slot_calc():
        e(f"""s_lshl_b32 {sMEM}, {sSTEP}, 13
        s_add_u32 {sMEM}, {sMEM}, {WS_MEMR}
        s_add_u32 {sMEM2}, {sMEM}, 4096""")

    clampn = lambda d, s_: f's_and_b32 {d}, {s_}, 1' if cfg.fake else f's_min_u32 {d}, {s_}, 63'
    sal = [f's_add_u32 {sSTEP1}, {sSTEP}, 1', f's_mov_b64 {sCHK}, -1', f'v_mov_b32 {vStep}, {sSTEP1}',
           f's_and_b32 {sT0}, {sSTEP}, 3', f's_lshl_b32 {sP}, {sT0}, 14']
    if qk:
        sal += [f's_add_u32 {sP}, {sP}, {WS_PR}', f's_xor_b32 {sPRST}, {sP}, {2 << 14}', clampn(sT3, sSTEP if cfg.xsall == 1 else sSTEP1)] + xs_bases(sT3)
        if toucher:
            sal += [f's_add_u32 {sT3}, {sSTEP}, {cfg.pf}', clampn(sT3, sT3), f's_mul_i32 {sYXS}, {sT3}, {28 * YTS[0]}',
                    f's_add_u32 {sYXS}, {sYXS}, {sYX}']
    elif fin:
        sal += [f's_add_u32 {sP}, {sP}, {WS_PR}',
                f's_add_u32 {sMEMW}, {sMEM}, 8192', f's_add_u32 {sMEMRST}, {sMEM}, 16384',
                clampn(sT3, sSTEP), f's_mul_i32 {sT3}, {sT3}, {28 * YTS[0]}', f's_add_u32 {sT3}, {sT3}, {sYX}']
        sal += [f's_lshl1_add_u32 {sYQ[i]}, {sRO[i]}, {sT3}' for i in range(4)]
        sal += [f's_add_u32 {sPQ[i]}, {sP}, {sRO[i]}' for i in range(4)]
    elif cfg.ytlb:
        sal += [f's_add_u32 {sT3}, {sSTEP}, {cfg.ytlb}', clampn(sT3, sT3), f's_mul_i32 {sYXS}, {sT3}, {28 * YTS[0]}',
                f's_add_u32 {sYXS}, {sYXS}, {sYX}', f'v_mov_b32 {vt[2]}, 8192']
    elif cfg.vtouch:
        sal += [clampn(sT3, sSTEP), f's_mul_i32 {sYXS}, {sT3}, {28 * YTS[0]}', f's_add_u32 {sYXS}, {sYXS}, {sYX}', f's_add_u32 {sYXS2}, {sYXS}, 8192']
    assert (WS_PR & (3 << 14)) == 0
    zero_all = [f'v_mov_b32 {Tacc[i]}, 0' for i in range(4 * NT)]
    if qk:
        zero_all += [f'v_mov_b32 {Sx[i]}, 0' for i in range(8)]
    for l in zero_all:
        e(l)
    zq = list(zero_all)
    pre_z = []
    if qk and cfg.warm0:
        pre_z = zq[-cfg.warm0:]
        zq = zq[:-cfg.warm0] + [f'v_mov_b32 {vt[4]}, 0'] * cfg.warm0

    def fz(n):
        for _ in range(n):
            if zq:
                e(zq.pop(0))

    def poll_loop(nd, tgt=None, between=None, vo=None):
        PL, GO = p.label('PL'), p.label('GO')
        GL = GO
        if tgt:
            GO = tgt
        pl = lambda i: f'buffer_load_dword {Fp[i]}, {vo or vFo}, {sWS}, {sFLG} offen sc1'
        for i in range(nd):
            e(pl(i))
            if between:
                between(i)
            elif i < nd - 1:
                nops(e, cfg.pspace * cfg.pdepth // nd)
        if cfg.align:
            e(f's_branch {PL}\n.p2align 6')
        e(f'{PL}:')
        for i in range(nd):
            e(f"""s_waitcnt vmcnt({nd - 1})
            v_cmp_gt_u32 vcc, {sSTEP1}, {Fp[i]}
            {pl(i)}
            s_cbranch_vccz {GO}""")
        e(f"""s_sub_u32 {sTO}, {sTO}, 1
        s_cmp_gt_i32 {sTO}, 0
        s_cbranch_scc1 {PL}
        {GL}:""")

    def loop_end(polls):
        e(f"""s_cmp_ge_u32 {sSTEP}, {cfg.nsteps}
        s_cbranch_scc1 {END}""")
        if polls:
            polls()
        e(f's_branch {LOOP}')

    slot_calc()
    if cfg.prio and fin and w == 0:
        e('s_setprio 2')
    if cfg.align:
        e(f's_branch {LOOP}\n.p2align 6')
    e(f'{LOOP}:')
    if not fin and cfg.stamps != 2:
        stamp(p, cfg, 7)
    first_early = cfg.pearly and ((qk and poller) or (not qk and False))
    if first_early:
        chunk_load(0)
    e('s_barrier')
    stamp(p, cfg, 0)
    nops(e, cfg.delay if qk else cfg.vdelay)
    fill = stg_read(0) + stg_read(1) + sal
    per = (len(fill) + AH - 2) // (AH - 1)
    for k in range(AH):
        if not (k == 0 and first_early):
            chunk_load(k)
        if k < AH - 1:
            part = fill[k * per:(k + 1) * per]
            for l in part:
                if l.startswith('ds_'):
                    lg.issue(l)
                else:
                    e(l)
            if cfg.gapbar:
                e('s_barrier')
            else:
                nops(e, cfg.gap - len(part))
    for i, t in enumerate(lds_tiles):
        lg.tag[('s', 0, t)] = lg.n - 4 * len(lds_tiles) + 2 * (i + 1)
        lg.tag[('s', 1, t)] = lg.n - 2 * len(lds_tiles) + 2 * (i + 1)
    stamp(p, cfg, 1)

    def retry(k):
        RT, BK = p.label('RT'), p.label('BK')
        nre = 2 if chk == 2 else AH + 1
        t = [f'{RT}:', f's_add_u32 {sCNT[3]}, {sCNT[3]}, {1 if k < 3 else (0x10000 if k == 3 else 0x1000000)}'] + [chunk_txt(kk, 'sc1') for kk in range(k, min(7, k + nre))]
        t += [f's_sub_u32 {sTO}, {sTO}, 1', f's_cmp_gt_i32 {sTO}, 0', f's_cbranch_scc0 {END}']
        if k == 0:
            t += zero_all[:12]
        t += ['s_waitcnt vmcnt(0)', f'v_cmp_eq_u32 vcc, -1, {memA[4 * k]}', f's_cbranch_vccnz {RT}']
        if k == 0:
            t += [smf_txt(0, 0), smf_txt(1, 0), smf_txt(2, 0)]
        t += [f's_branch {BK}']
        tail.extend(t)
        e(f's_cbranch_vccnz {RT}')
        e(f'{BK}:')

    def cv_txt(t, i):
        a = Tacc[4 * t:4 * t + 4]
        if t == 6:
            dst = Alast[2 * (QK_TILES[w][6][1] & 1) + i]
        else:
            dst = Tacc[4 * (t & ~1) + 2 * (t & 1) + i]
        return f'v_cvt_pk_bf16_f32 {dst}, {a[2 * i]}, {a[2 * i + 1]}'
    late_v = [cv_txt(0, 0), cv_txt(0, 1), cv_txt(1, 0)] if qk else []
    chk = cfg.chk if qk else cfg.vchk

    for l in pre_z:
        e(l)
    vm.wait(('c', 0))
    stamp(p, cfg, 9)
    nslot = 0
    nxt_c = AH
    pace = cfg.qpace if qk else 2
    early = 1 if (qk and cfg.xsall) else 0
    for k in range(7):
        sr = stg_read(k + 1) if 1 <= k <= 5 else []
        for t in range(NR):
            smf(t, k)
            if cfg.stamps == 2 and qk and t == 1 and k in (0, 1, 2, 3, 5):
                stamp(p, cfg, {0: 1, 1: 7, 2: 10, 3: 11, 5: 8}[k])
            used = 0
            if k == 0 and t == 2 and chk:
                retry(0)
            if t == NR - 1 and k < 6 and chk == 2:
                retry(k + 1)
                used = 1
            if qk:
                if t == 0 and k + AH < 7:
                    chunk_load(k + AH)
                    used = 1
                    nslot = 0
                elif k + AH + early >= 7 and nslot >= pace - 1 and winA and not used and not (chk == 2 and t == NR - 3 and k < 6):
                    side(winA.pop(0))
                    used = 1
                    nslot = 0
                else:
                    nslot += 1
            else:
                if nxt_c < 7:
                    if t % 3 == 0:
                        chunk_load(nxt_c)
                        nxt_c += 1
                        used = 1
                elif winA and nslot % cfg.vpace == 0 and not used and (not fin or k >= cfg.vtouch):
                    side(winA.pop(0))
                    used = 1
                nslot += 1
            if sr and (not used or (len(sr) > NR - 1 - t)):
                lg.issue(sr.pop(0), ('s', k + 1, lds_tiles[len(lds_tiles) - 1 - len(sr) // 2]))
            if t + 1 in lds_tiles:
                lg.wait(('s', k, t + 1))
            if k == 0 and t == 0 and chk:
                e(f'v_cmp_eq_u32 vcc, -1, {memA[0]}')
            if chk == 2:
                if t == NR - 3 and k < 6:
                    vm.wait(('c', k + 1))
                    e(f'v_cmp_eq_u32 vcc, -1, {memA[4 * k + 4]}')
            elif t == NR - 1 and k < 6:
                vm.wait(('c', k + 1))
            if qk and k == 6 and t >= 2:
                e(late_v[t - 2])
        assert not sr
    tail += [f'{FAIL}:', f's_add_u32 {sCNT[0]}, {sCNT[0]}, 1', f's_mov_b64 {sCHK}, 0', f'{FAIL}b:']
    tail += [chunk_txt(k, 'sc1') for k in range(7)]
    tail += [f's_sub_u32 {sTO}, {sTO}, 1', f's_cmp_gt_i32 {sTO}, 0', f's_cbranch_scc0 {END}']
    tail += zero_all[:4 * NT] + stg_read(0) + stg_read(1) + ['s_waitcnt vmcnt(0)']
    tail += [f'v_max3_u32 {vt[0]}, {memA[0]}, {memA[1]}, {memA[2]}']
    for i in range(3, 27, 2):
        tail += [f'v_max3_u32 {vt[0]}, {vt[0]}, {memA[i]}, {memA[i + 1]}']
    tail += [f'v_max_u32 {vt[0]}, {vt[0]}, {memA[27]}', f'v_cmp_eq_u32 vcc, -1, {vt[0]}', f's_cbranch_vccnz {FAIL}b']
    nl = 2 * len(lds_tiles)
    for k in range(7):
        tail += [f's_waitcnt lgkmcnt({nl if k < 6 else 0})'] + [smf_txt(t, k) for t in range(NR)]
        if k < 5:
            tail += stg_read(k + 2)
    tail += late_v + ['s_nop 7', f's_branch {JOIN}']
    e(f'{JOIN}:')
    stamp(p, cfg, 2)

    def check_branch():
        e(f's_and_b64 vcc, vcc, {sCHK}')
        e(f's_cbranch_scc1 {FAIL}')

    if qk:
        ns = [nslot]
        smf0 = smf

        def smf(t, k):
            smf0(t, k)
            if winA and ns[0] >= pace - 1 and (t, k) != (6, 1):
                side(winA.pop(0))
                ns[0] = 0
            else:
                ns[0] += 1

        def cv(t, i):
            e(cv_txt(t, i))

        def ident(pair, hi):
            src = Alast if pair == 3 else Tacc[8 * pair:8 * pair + 4]
            e(f'v_mfma_f32_16x16x32_bf16 {Did[4 * hi:4 * hi + 4]}, {src}, {Idn}, 0')

        def cv2(st, hi, i):
            d = Did[4 * hi:4 * hi + 4]
            e(f'v_cvt_pk_bf16_f32 {AS[4 * st + 2 * hi + i]}, {d[2 * i]}, {d[2 * i + 1]}')

        def sx(st, kt):
            e(f'v_smfmac_f32_16x16x64_bf16 {Sx[4 * kt:4 * kt + 4]}, {AS[4 * st:4 * st + 4]}, '
              f'{xsB[16 * st + 8 * kt:16 * st + 8 * kt + 8]}, {vIdx}')

        def mch(c_):
            k_ = slots.index(c_)
            return memA[4 * k_:4 * k_ + 4]

        def sm(st):
            b = Mx if (w == 3 and st == 1) else mch(w + 4 * st)
            e(f'v_mfma_f32_16x16x32_bf16 {Sm}, {AS[4 * st:4 * st + 4]}, {b}, {0 if st == 0 else Sm}')

        def flag(pos):
            if cfg.flagpos == pos and w == 1:
                vm.issue(f'buffer_store_dword {vStep}, {vFs}, {sWS}, {sFLG} offen')
                if cfg.stamps != 2:
                    stamp(p, cfg, 8)

        if w == 3:
            zq[0:0] = [f'v_cndmask_b32 {Mx[0]}, {mch(5)[0]}, {mch(4)[0]}, {sV0}',
                       f'v_cndmask_b32 {Mx[1]}, {mch(5)[1]}, {mch(4)[1]}, {sV0}',
                       f'v_mov_b32 {Mx[2]}, {mch(6)[2]}', f'v_mov_b32 {Mx[3]}, {mch(6)[3]}']
        fh = QK_TILES[w][4][1] >> 1
        smf(5, 0); cv(1, 1)
        smf(5, 1); cv(2, 0)
        ident(0, 0); cv(2, 1); cv(3, 0)
        smf(5, 2); cv(3, 1)
        smf(5, 3); cv(4, 0)
        ident(1, 1); cv2(0, 0, 0); cv2(0, 0, 1)
        smf(5, 4); e(f'v_cmp_u_f32 vcc, {Did[0]}, {Did[1]}')
        smf(5, 5); cv(4, 1)
        smf(5, 6); cv2(0, 1, 0)
        smf(6, 0); cv2(0, 1, 1)
        smf(6, 1); check_branch()
        smf(6, 2); cv(5, 0)
        smf(6, 3); cv(5, 1)
        smf(6, 4); fz(1)
        smf(6, 5); fz(1)
        smf(6, 6); fz(1)
        assert not winA
        ident(2, fh); fz(2)
        sm(0); cv(6, 0); cv(6, 1)
        fz(1); cv2(1, fh, 0)
        nx = [4, 8, 0][cfg.xsall]
        ident(3, 1 - fh)
        if cfg.xsall == 1:
            vm.wait(('side', 4))
        cv2(1, fh, 1); fz(1)
        sx(0, 0); fz(1)
        sx(0, 1)
        cv2(1, 1 - fh, 0); cv2(1, 1 - fh, 1)
        fz(1)
        if nx:
            vm.wait(('side', nx - 2))
        sx(1, 0)
        if nx:
            vm.wait(('side', nx))
        sx(1, 1)
        sm(1)
        flag(-3)
        stamp(p, cfg, 3)
        e(f"""v_add_f32 {Sx[0]}, {Sx[0]}, {Sx[2]}
        v_add_f32 {Sx[1]}, {Sx[1]}, {Sx[3]}
        ds_write2_b32 {vSW}, {Sx[0]}, {Sx[1]} offset0:0 offset1:40
        v_add_f32 {Sx[4]}, {Sx[4]}, {Sx[6]}
        v_add_f32 {Sx[5]}, {Sx[5]}, {Sx[7]}
        ds_write2_b32 {vSW}, {Sx[4]}, {Sx[5]} offset0:4 offset1:44
        v_add_f32_dpp {Sm[0]}, {Sm[2]}, {Sm[0]} quad_perm:[2,3,0,1] row_mask:0xf bank_mask:0xf
        v_add_f32_dpp {Sm[1]}, {Sm[3]}, {Sm[1]} quad_perm:[2,3,0,1] row_mask:0xf bank_mask:0xf
        ds_write2_b32 {vSW2}, {Sm[0]}, {Sm[1]} offset0:0 offset1:40""")
        flag(-2)
        fz(cfg.fz1 - 1)
        flag(-1)
        fz(1)
        assert len(zq) >= 8
        if not cfg.nowait:
            e('s_waitcnt lgkmcnt(0)')
        e('s_barrier')
        stamp(p, cfg, 4)
        dpps = ['quad_perm:[1,0,3,2]', 'quad_perm:[2,3,0,1]', 'row_half_mirror', 'row_mirror']
        x, y = vt[0], vt[1]
        r = R('v', memA.base, 12)
        warm = lambda n: [e(zq.pop(0)) if len(zq) > 8 else e(f'v_mov_b32 {vt[4]}, 0') for _ in range(n)]
        rd_txt = [f'ds_read_b64 {r[2 * i:2 * i + 2]}, {vSR} offset:{1296 * i}' for i in range(4)]
        for i in range(4):
            e(rd_txt[i])
            if i % 2 == 0:
                warm(1)
        warm(1)
        flag(0)
        warm(cfg.fz2 - 3)
        flag(1)
        warm(1)
        add_txt = f"""s_waitcnt lgkmcnt(2)
        v_add_f32 {r[0]}, {r[0]}, {r[2]}
        v_add_f32 {r[1]}, {r[1]}, {r[3]}
        s_waitcnt lgkmcnt(0)
        v_add_f32 {r[4]}, {r[4]}, {r[6]}
        v_add_f32 {r[5]}, {r[5]}, {r[7]}
        v_add_f32 {r[0]}, {r[0]}, {r[4]}
        v_add_f32 {r[1]}, {r[1]}, {r[5]}"""
        e(add_txt)

        def allred(op, em, main):
            for i, d in enumerate(dpps):
                pos_ = (2 if op == 'max' else 8) + i
                if main and cfg.flagpos == pos_ and w == 1:
                    flag(pos_)
                elif main:
                    fz(2)
                em(f'v_{op}_f32_dpp {x}, {x}, {x} {d} row_mask:0xf bank_mask:0xf')
            em(f'v_mov_b32 {y}, {x}')
            if op == 'max' and main:
                flag(6)
            em(f'v_permlane16_swap_b32 {x}, {y}')
            em(f'v_{op}_f32 {x}, {x}, {y}')

        pst_txt = f'buffer_store_dword {y}, {vPo}, {sWS}, {sP} offen'

        def softmax_true(em, main):
            em(f'v_max_f32 {x}, {r[0]}, {r[1]}')
            allred('max', em, main)
            for l in (f'v_sub_f32 {r[8]}, {r[0]}, {x}', f'v_sub_f32 {r[9]}, {r[1]}, {x}',
                      f'v_exp_f32 {r[8]}, {r[8]}', f'v_exp_f32 {r[9]}, {r[9]}'):
                em(l)
            if main:
                flag(7)
            em(f'v_add_f32 {x}, {r[8]}, {r[9]}')
            allred('add', em, main)
            for l in (f'v_rcp_f32 {r[10]}, {x}', f'v_subrev_u32 {x}, 0x21800000, {x}', f'v_mul_f32 {r[8]}, {r[8]}, {r[10]}',
                      f'v_mul_f32 {r[9]}, {r[9]}, {r[10]}', f'v_cvt_pk_bf16_f32 {y}, {r[8]}, {r[9]}'):
                em(l)
        if cfg.standin:
            e(f"""v_exp_f32 {r[8]}, {r[0]}
            v_exp_f32 {r[9]}, {r[1]}""")
            flag(7)
            e(f'v_add_f32 {x}, {r[8]}, {r[9]}')
            allred('add', e, True)
            e(f"""v_rcp_f32 {r[10]}, {x}
            v_subrev_u32 {x}, 0x21800000, {x}
            v_mul_f32 {r[8]}, {r[8]}, {r[10]}
            v_mul_f32 {r[9]}, {r[9]}, {r[10]}
            v_cvt_pk_bf16_f32 {y}, {r[8]}, {r[9]}""")
        else:
            softmax_true(e, True)
        if cfg.standin or cfg.nowait:
            FB, FD = p.label('FB'), p.label('FD')
            e(f'v_cmpx_gt_u32 vcc, 0x50000000, {x}')
            vm.issue(pst_txt)
            e(f"""s_mov_b64 exec, -1
            s_cmp_lg_u64 vcc, -1
            s_cbranch_scc1 {FB}
            {FD}:""")
            tail += [f'{FB}:', f's_add_u32 {sCNT[2]}, {sCNT[2]}, 1']
            if cfg.nowait:
                tail += rd_txt + [f's_sub_u32 {sTO}, {sTO}, 1', f's_cmp_gt_i32 {sTO}, 0', f's_cbranch_scc0 {FD}',
                                  's_waitcnt lgkmcnt(0)', f'v_max3_u32 {x}, {r[0]}, {r[1]}, {r[2]}',
                                  f'v_max3_u32 {x}, {x}, {r[3]}, {r[4]}', f'v_max3_u32 {x}, {x}, {r[5]}, {r[6]}',
                                  f'v_max_u32 {x}, {x}, {r[7]}', f'v_cmp_eq_u32 vcc, -1, {x}', f's_cbranch_vccnz {FB}']
                tail += [l.strip() for l in add_txt.split('\n')]
            softmax_true(tail.append, False)
            tail += [pst_txt, f's_branch {FD}']
        else:
            vm.issue(pst_txt)
        stamp(p, cfg, 5)
        slow([f'buffer_store_dword {y}, {vPo}, {sWS}, {sP} offen'] +
             ([f'buffer_store_dword {vStep}, {vFs}, {sWS}, {sFLG} offen'] if w == 1 else []))
        e('s_barrier')
        st2(f'buffer_store_dword {vNeg1}, {vPo}, {sWS}, {sPRST} offen')
        if cfg.qlate and w == 2:
            e(f"""s_add_u32 {sT3}, {sSTEP}, 2
            {clampn(sT3, sT3)}
            s_mul_i32 {sT3}, {sT3}, {28 * YTS[0]}
            s_lshl_b32 {sT2}, {sH}, 14
            s_add_u32 {sT3}, {sT3}, {sT2}
            s_add_u32 {sT3}, {sT3}, {WS_YX + 8192}
            buffer_load_dword {vt[3]}, {vL128}, {sWS}, {sT3} offen sc1""")
        if cfg.tlb and w == 3:
            e(f"""v_mov_b32 {vt[2]}, {2 * 8192 + 7680}
            buffer_load_dword {vt[3]}, {vt[2]}, {sWS}, {sMEM} offen sc1
            v_mov_b32 {vt[2]}, {65536 if cfg.xsall == 0 else 32768}
            buffer_load_dword {vt[3]}, {vt[2]}, {sWS}, {sXS2} offen sc1""")
        for l in xs_loads()[:[4, 0, 8][cfg.xsall]]:
            e(l)
        if cfg.nowait:
            e(f'v_mov_b32 {r[0]}, -1\nv_mov_b32 {r[1]}, -1')
            for i in range(4):
                e(f'ds_write_b64 {vSZ}, {r[0:2]} offset:{1296 * i}')
            e('s_waitcnt lgkmcnt(0)')
        zq[:] = [z for z in zq if z != f'v_mov_b32 {vt[4]}, 0']
        fz(40)
        if TL_ON[0] and w in (1, 2):
            e(f"""{'s_memtime' if w == 2 else 's_memrealtime'} s[96:97]
            s_lshl_b32 s98, {sH}, 8
            s_lshl_b32 s99, {sSTEP}, 2
            s_add_u32 s98, s98, s99
            s_add_u32 s98, s98, {WS_TL + 0x8000 + (0 if w == 2 else 0x1000)}
            s_waitcnt lgkmcnt(0)
            v_mov_b32 v254, s96
            v_mov_b32 v255, 0
            buffer_store_dword v254, v255, {sWS}, s98 offen""")
        e(f's_add_u32 {sSTEP}, {sSTEP}, 1')
        slot_calc()

        def qpoll():
            e('s_waitcnt vmcnt(0)')
            stamp(p, cfg, 6)
            nops(e, cfg.qstart)
            poll_loop(cfg.qdepth, LOOP)
        loop_end(qpoll if poller else None)
    else:
        def pk(t):
            a = Tacc[4 * t:4 * t + 4]
            return [f'v_add_f32 {a[0]}, {a[0]}, {a[2]}', f'v_add_f32 {a[1]}, {a[1]}, {a[3]}',
                    f'v_cvt_pk_bf16_f32 {Ym[t]}, {a[0]}, {a[1]}']
        vq = pk(0)[:2] + [f'v_cmp_u_f32 vcc, {Tacc[0]}, {Tacc[1]}'] + pk(0)[2:]
        for t in range(1, 6):
            vq += pk(t)
        n = 0
        for t in (6, 7):
            for k in range(7):
                smf(t, k)
                if n == 4:
                    check_branch()
                elif winA:
                    side(winA.pop(0))
                if n == 10:
                    vq += pk(6)
                for _ in range(2 if n % 2 else 1):
                    if vq:
                        e(vq.pop(0))
                n += 1
        while winA:
            side(winA.pop(0))
        for l in vq + pk(7):
            e(l)
        e(f"""ds_write_b128 {vYW}, {Ym[0:4]} offset:{w * 1024}
        ds_write_b128 {vYW}, {Ym[4:8]} offset:{4096 + w * 1024}""")
        if fin and not cfg.alone:
            Y0, YL, YD, YB = p.label('Y0'), p.label('YL'), p.label('YD'), p.label('YB')
            e(f's_cmp_eq_u32 {sSTEP}, 0\ns_cbranch_scc1 {Y0}\n{YB}:')
            tail += [f'{Y0}:', f'v_mov_b32 {vt[0]}, {C_YX}', f's_mov_b32 {sT0}, {WS_CNT}', f'{YL}:',
                     f'buffer_load_dword {vt[1]}, {vt[0]}, {sWS}, {sT0} offen sc1', f's_sub_u32 {sTO}, {sTO}, 1',
                     f's_cmp_gt_i32 {sTO}, 0', f's_cbranch_scc0 {YD}', 's_waitcnt vmcnt(0)', f'v_cmp_gt_u32 vcc, 16, {vt[1]}',
                     f's_cbranch_vccz {YD}', 's_sleep 6', f's_branch {YL}', f'{YD}:'] + yx_all + [f's_branch {YB}']
        if fin and cfg.selfpoll and w == 0:
            e(f'buffer_store_dword {vNeg1}, {vMr}, {sWS}, {sMEMRST} offen')
        stamp(p, cfg, 3)
        if cfg.tlb and w == 3:
            e(f"""v_mov_b32 {vt[2]}, {3 * 8192 + 7680}
            buffer_load_dword {vt[3]}, {vt[2]}, {sWS}, {sMEM} offen sc1""")
        sp0 = cfg.selfpoll and w == 0
        bm_rd = [f'ds_read_b128 {BM[4 * i:4 * i + 4]}, {vYW} offset:{w * 4096 + i * 1024}' for i in range(4)] if fin else []
        zf = [f'v_mov_b32 {Facc[i]}, 0' for i in range(4)] if fin else []

        def part(i):
            if i == 0:
                fz(0 if (w == 3 and cfg.vstart == 0) else 6)
                e(f's_add_u32 {sSTEP}, {sSTEP}, 1')
                slot_calc()
            elif i == 1:
                e('s_waitcnt lgkmcnt(0)')
                if not cfg.noby:
                    e('s_barrier')
            elif i == 2:
                for l in ([] if cfg.noby else bm_rd) + zf:
                    e(l)
                if fin and not sp0:
                    e(f'buffer_store_dword {vNeg1}, {vMr}, {sWS}, {sMEMRST} offen')
            else:
                fz(6)
        if sp0:
            poll_loop(cfg.pdepth, None, part)
            stamp(p, cfg, 5)
            nops(e, cfg.pdelay)
        else:
            for i in range(3):
                part(i)
            if fin:
                stamp(p, cfg, 5)
            if not (w == 3 and cfg.vstart == 0):
                fz(32)
            if w == 2 and not cfg.selfpoll:
                poll_loop(cfg.pdepth)
                stamp(p, cfg, 5)
                nops(e, cfg.pdelay)
        if not sp0:
            e('s_barrier')
        stamp(p, cfg, 6)
        if fin:
            PD, PF, PR, PB = p.label('PD'), p.label('PF'), p.label('PR'), p.label('PB')

            def p_txt(i):
                so, of = (sP, i * 1024) if i < 2 else (sPQ[(i - 2) >> 1], 2048 + (i & 1) * 1024)
                return f'buffer_load_dwordx4 {Afin[4 * i:4 * i + 4]}, {vL16}, {sWS}, {so} offen offset:{of} sc1'

            def f_txt(i):
                return f'v_smfmac_f32_16x16x64_bf16 {Facc}, {Afin[4 * i:4 * i + 4]}, {Bfin[i]}, {vIdx}'
            if w == 1 and not cfg.selfpoll:
                nops(e, 4)
            f2 = f'buffer_store_dword {vStep}, {vFs}, {sWS}, {sFLG} offen'
            burst = []
            for i in range(10):
                vm.issue(p_txt(i), ('p', i))
                burst.append(p_txt(i))
                if (sp0 and -12 <= cfg.f2pos <= -2 and i == 11 + cfg.f2pos) or (w == 1 and i == cfg.f2pos - 20):
                    vm.issue(f2)
                    burst.append(f2)
                    stamp(p, cfg, 8)
                if sp0 and i == cfg.bpos:
                    e('s_barrier')
            stamp(p, cfg, 11)
            if cfg.noby:
                for l in bm_rd:
                    e(l)
            e(f'{PB}:')
            if cfg.f2pos == -1 and w == 0:
                vm.issue(f2)
                stamp(p, cfg, 8)
            fz(32)
            e('s_waitcnt lgkmcnt(0)')
            vm.wait(('p', 0))
            stamp(p, cfg, 4)
            for i in range(10):
                e(f_txt(i))
                if i == (max(cfg.f2pos, 2) if cfg.f2pos < 10 else 2):
                    e(f's_cbranch_vccnz {PR}')
                if i == cfg.f2pos and w == 0:
                    vm.issue(f2)
                    stamp(p, cfg, 8)
                if i < 9:
                    vm.wait(('p', i + 1))
                if i == 0:
                    e(f'v_max3_u32 {vt[0]}, {Afin[0]}, {Afin[1]}, {Afin[4]}')
                    e(f'v_max_u32 {vt[0]}, {vt[0]}, {Afin[5]}')
                if i == 1:
                    e(f'v_cmp_eq_u32 vcc, -1, {vt[0]}')
            tail += [f'{PR}:', f's_add_u32 {sCNT[1]}, {sCNT[1]}, 1'] + burst + zf
            tail += [f's_sub_u32 {sTO}, {sTO}, 1', f's_cmp_gt_i32 {sTO}, 0', f's_cbranch_scc1 {PB}', f's_branch {PD}']
            fsum = [f'v_add_f32 {Facc[0]}, {Facc[0]}, {Facc[2]}', f'v_add_f32 {Facc[1]}, {Facc[1]}, {Facc[3]}']
            stamp(p, cfg, 10)
            for i in range(7):
                e(f'v_mov_b32 {vt[4]}, 0')
            for l in fsum:
                e(l)
            st_txt = [f'buffer_store_short {vt[0]}, {vMo}, {sWS}, {sMEMW} offen',
                      f'buffer_store_short_d16_hi {vt[0]}, {vMo}, {sWS}, {sMEMW} offen offset:16']
            e(f"""v_cvt_pk_bf16_f32 {vt[0]}, {Facc[0]}, {Facc[1]}
            v_cmpx_o_f32 vcc, {Facc[0]}, {Facc[1]}""")
            for l in st_txt:
                e(l)
            stamp(p, cfg, 7)
            e(f"""s_mov_b64 exec, -1
            s_cmp_lg_u64 vcc, -1
            s_cbranch_scc1 {PF}
            {PD}:""")
            rst = f'buffer_store_dword {vNeg1}, {vMr}, {sWS}, {sMEMRST} offen'
            slow(st_txt + ([f2] if w == (1 if cfg.f2pos >= 20 else 0) else []) + [rst])
            tail += [f'{PF}:', f's_add_u32 {sCNT[1]}, {sCNT[1]}, 0x10000']
            tail += [p_txt(i) for i in range(10)]
            tail += [f's_sub_u32 {sTO}, {sTO}, 1', f's_cmp_gt_i32 {sTO}, 0', f's_cbranch_scc0 {PD}']
            tail += zf + ['s_waitcnt vmcnt(0)']
            tail += [f'v_max3_u32 {vt[0]}, {Afin[0]}, {Afin[1]}, {Afin[2]}']
            for i in range(3, 39, 2):
                tail += [f'v_max3_u32 {vt[0]}, {vt[0]}, {Afin[i]}, {Afin[i + 1]}']
            tail += [f'v_max_u32 {vt[0]}, {vt[0]}, {Afin[39]}', f'v_cmp_eq_u32 vcc, -1, {vt[0]}', f's_cbranch_vccnz {PF}']
            tail += [f_txt(i) for i in range(10)] + fsum + [f'v_cvt_pk_bf16_f32 {vt[0]}, {Facc[0]}, {Facc[1]}'] + st_txt
            tail += [f's_branch {PD}']

        fz(32)

        def vpoll():
            if w == 3:
                nops(e, cfg.vstart)
            poll_loop(cfg.vdepth, LOOP, None, vFo2)
        loop_end(vpoll if w == cfg.vpw else None)
    assert not zq
    e(f'{END}:')
    if fin:
        e(f's_add_u32 {sMEMW}, {sMEMW}, {WS_MEMA - WS_MEMR}')
        for l in st_txt:
            e(l + ' sc1')
    epilogue(p, w, cfg, vt)
    for l in tail:
        if not cfg.diag and any(l.startswith(f's_add_u32 {c},') for c in sCNT):
            continue
        e(l)


HEADER = '''; generated
; @launch grid=(256,1,1) block=(256,1,1) lds=%d
.amdgcn_target "amdgcn-amd-amdhsa--gfx950"
.text
.globl %s
.p2align 8
.type %s,@function
'''
FOOTER = '''.section .rodata,"a"
.p2align 6
.amdhsa_kernel %s
  .amdhsa_next_free_vgpr 512
  .amdhsa_next_free_sgpr 102
  .amdhsa_accum_offset 256
  .amdhsa_group_segment_fixed_size 0
  .amdhsa_kernarg_size 120
  .amdhsa_user_sgpr_count 2
  .amdhsa_user_sgpr_kernarg_segment_ptr 1
  .amdhsa_system_sgpr_workgroup_id_x 1
.end_amdhsa_kernel
'''


def wave_dispatch(e, nm):
    e(f'''s_cmp_eq_u32 {sWAVE}, 0
    s_cbranch_scc1 {nm}0
    s_cmp_eq_u32 {sWAVE}, 1
    s_cbranch_scc1 {nm}1
    s_cmp_eq_u32 {sWAVE}, 2
    s_cbranch_scc1 {nm}2
    s_branch {nm}3''')


def standalone(cfg, name='team_kernel'):
    TL_ON[0] = True
    p = Prog()
    e = p.e
    e(f'{name}:')
    e(f'''s_and_b32 s3, s2, 7
    s_cmp_lg_u32 s3, 0
    s_cbranch_scc1 EXIT
    s_cmp_ge_u32 s2, 256
    s_cbranch_scc1 EXIT
    s_lshr_b32 {sIDX}, s2, 3
    s_mov_b32 s100, {sIDX}
    s_mov_b32 {sSLOW}, 0
    s_load_dwordx2 s[4:5], s[0:1], 112
    s_load_dwordx2 s[12:13], s[0:1], 104
    s_load_dwordx2 s[16:17], s[0:1], 8
    v_lshrrev_b32 v1, 6, v0
    v_readfirstlane_b32 {sWAVE}, v1
    s_mov_b32 s6, {WS_BYTES}
    s_mov_b32 s7, 0x20000
    s_mov_b32 s14, 256
    s_mov_b32 s15, 0x20000
    s_mov_b32 s18, 7168
    s_mov_b32 s19, 0x20000
    s_and_b32 {sH}, {sIDX}, 15''')
    for i in range(NSTAMP):
        e(f's_mov_b32 s{STAMP0 + 2 * i}, 0')
    e(f'''s_waitcnt lgkmcnt(0)
    s_cmp_ge_u32 {sIDX}, 16
    s_cbranch_scc1 ROLE_VO''')
    wave_dispatch(e, 'QK')
    e(f'''ROLE_VO:
    s_cmp_ge_u32 {sH}, 14
    s_cbranch_scc1 ROLE_EN''')
    wave_dispatch(e, 'VO')
    e('ROLE_EN:')
    wave_dispatch(e, 'EN')
    e('EXIT:\ns_endpgm')
    for role, nm in ((0, 'QK'), (1, 'VO'), (2, 'EN')):
        for w in range(4):
            e(f'{nm}{w}:')
            team_wave(p, role, w, cfg)
    return HEADER % (L_END, name, name) + p.text() + FOOTER % name


if __name__ == '__main__':
    import sys
    cfg = Cfg()
    for a in sys.argv[2:]:
        k, v = a.split('=')
        assert hasattr(cfg, k), k
        setattr(cfg, k, int(v) if not isinstance(getattr(cfg, k), str) else v)
    open(sys.argv[1], 'w').write(standalone(cfg))
```

```python
from asmlib import *
from layout import *
from prep import srd

sWS = 's[4:7]'
sW = 's9'
sTO = 's38'
sCN = 's39'
TIMEOUT = 400000
OOB = 0x40000000
MALL = [1]
NF = [128]
CHEAP = [2]
OSC = ['']
NRT = [4]
NRY = 3


def wait_ge(p, vaddr, vtmp, val, sleep=4):
    e = p.e
    L, D = p.label('WT'), p.label('WD')
    e(f'''{L}:
    buffer_load_dword {vtmp}, {vaddr}, {sWS}, {sCN} offen sc1
    s_sub_u32 {sTO}, {sTO}, 1
    s_cmp_gt_i32 {sTO}, 0
    s_cbranch_scc0 {D}
    s_waitcnt vmcnt(0)
    v_cmp_gt_u32 vcc, {val}, {vtmp}
    s_cbranch_vccz {D}
    s_sleep {sleep}
    s_branch {L}
    {D}:''')


def signal(p, vaddr, vtmp):
    e = p.e
    L = p.label('SG')
    e(f'''s_waitcnt vmcnt(0) lgkmcnt(0)
    s_barrier
    s_cmp_lg_u32 {sW}, 0
    s_cbranch_scc1 {L}
    v_mov_b32 {vtmp}, 1
    s_mov_b64 exec, 1
    buffer_atomic_add {vtmp}, {vaddr}, {sWS}, {sCN} offen
    s_mov_b64 exec, -1
    {L}:''')


GOV = [2, 6]


def go_wait(p, vCA, t0, sA, val):
    L = p.label('GW')
    p.e(f"""s_cmp_lg_u32 {sW}, 0
    s_cbranch_scc1 {L}
    s_and_b32 {sA}, s8, 7
    s_lshl_b32 {sA}, {sA}, 7
    s_add_u32 {sA}, {sA}, {C_GO}
    v_mov_b32 {vCA}, {sA}""")
    wait_ge(p, vCA, t0, val, 16)
    p.e(f'{L}:\ns_barrier')


def load_valid(p, loads, regs, vtmp, sleep, extra=None, onfail=None):
    e = p.e
    L, D = p.label('LV'), p.label('LD')
    e(f'{L}:')
    for l in loads:
        e(l)
    e(f"""s_sub_u32 {sTO}, {sTO}, 1
    s_cmp_gt_i32 {sTO}, 0
    s_cbranch_scc0 {D}""")
    n = len(loads)
    per = len(regs) // n
    for i in range(n):
        e(f's_waitcnt vmcnt({n - 1 - i})')
        r = regs[per * i:per * i + per]
        if per == 1:
            e(f'v_mov_b32 {vtmp}, {r[0]}' if i == 0 else f'v_max_u32 {vtmp}, {vtmp}, {r[0]}')
        else:
            e(f'v_max_u32 {vtmp}, {r[0]}, {r[1]}' if i == 0 else f'v_max3_u32 {vtmp}, {vtmp}, {r[0]}, {r[1]}')
            e(f'v_max3_u32 {vtmp}, {vtmp}, {r[2]}, {r[3]}')
    e(f"""v_cmp_eq_u32 vcc, -1, {vtmp}
    s_cbranch_vccz {D}""")
    if onfail:
        onfail()
    else:
        e(f's_sleep {sleep}')
    if extra:
        e(f's_cmp_ge_u32 {extra}, 60\ns_cbranch_scc1 {L}\ns_sleep 48')
    e(f"""s_branch {L}
    {D}:
    s_waitcnt vmcnt(0)""")


def yt_worker(p, kind):
    e = p.e
    isY = kind == 0
    NRY = 3 if isY else NRT[0]
    L_T, L_XA = 65536, 98304
    V = Alloc('v', 1, 254)
    A = Alloc('a', 0, 256)
    vL, vG, vC, t0, t1, t2, vL16, vXB, vCA = (V.get() for _ in range(9))
    x1, x2 = V.get(), V.get()
    if not isY:
        Sx = V.get(8, 4)
        Sm = V.get(8, 4)
    else:
        vIdx, vTo = V.get(), V.get()
    buf = V.get(32, 4)
    acc = V.get(56, 4)
    frag = {}
    for t in range(7):
        for k in range(7):
            frag[(t, k)] = A.get(8, 4) if A.left() >= 8 else V.get(8, 4)
    sS, sCur, sW7, sO, sA, sB, sPrev = 's12', 's13', 's14', 's15', 's16', 's17', 's18'
    TLB = WS_TL + 16384
    e(f"""v_and_b32 {vL}, 63, v0
    v_lshrrev_b32 {vG}, 4, {vL}
    v_and_b32 {vC}, 15, {vL}
    v_lshlrev_b32 {vL16}, 4, {vL}
    v_mov_b32 {vXB}, {vL16}
    s_mov_b32 {sTO}, {TIMEOUT}
    s_mov_b32 {sCN}, {WS_CNT}
    s_mov_b32 {sS}, s11
    s_mov_b32 {sCur}, 0
    s_mov_b32 {sPrev}, {OOB}
    s_mul_i32 {sW7}, {sW}, 7168""")

    def xb_dma(seg, lds):
        e(f"""s_lshl_b32 {sA}, {seg}, 15
        s_add_u32 {sA}, {sA}, {sW7}
        s_add_u32 {sA}, {sA}, {WS_XNB}
        s_add_u32 m0, {lds}, {sW7}""")
        for i in range(7):
            if i == 4:
                e(f's_add_u32 {sA}, {sA}, 4096\ns_add_u32 m0, m0, 4096')
            e(f'buffer_load_dwordx4 {vL16}, {sWS}, {sA} offen offset:{(i & 3) * 1024} sc1 lds')

    def mem_wait():
        e(f"""s_lshl_b32 {sA}, {sS}, 13
        s_add_u32 {sA}, {sA}, {WS_MEMA}
        s_add_u32 {sB}, {sA}, 4096""")

        def hint():
            e(f"""s_sub_u32 {sO}, {sS}, 1
            s_cmp_ge_u32 {sS}, 61
            s_cselect_b32 {sO}, {sO}, {sS}
            s_lshl_b32 {sO}, {sO}, 13
            s_add_u32 {sO}, {sO}, {WS_MEMA}
            v_mov_b32 {t1}, 6144""")
            load_valid(p, [f'buffer_load_dword {buf[28]}, {t1}, {sWS}, {sO} offen sc1'], [buf[28]], t0, 12)
        load_valid(p, [f'buffer_load_dwordx4 {buf[4 * k:4 * k + 4]}, {vL16}, {sWS}, {sA if k < 4 else sB} offen '
                       f'offset:{(k & 3) * 1024} sc1' for k in range(7)], [buf[i] for i in range(28)], t0, 3,
                   None, hint if CHEAP[0] else None)
    if not isY:
        go_wait(p, vCA, t0, sA, GOV[0])
    xb_dma(sS, sCur)
    if isY:
        e(f"""s_and_b32 {sA}, {sW}, 1
        s_mul_i32 {sB}, {sA}, {7 * 32}
        s_lshr_b32 {sA}, {sW}, 1
        s_add_u32 {sB}, {sB}, {sA}
        s_lshl_b32 {sA}, s10, 1
        s_add_u32 {sB}, {sB}, {sA}""")
    else:
        e(f"""s_mul_i32 {sB}, s10, 28
        s_mul_i32 {sA}, {sW}, 7
        s_add_u32 {sB}, {sB}, {sA}""")
    e(f"""s_mul_i32 {sB}, {sB}, 14336
    s_add_u32 {sB}, {sB}, {WS_WVO if isY else WS_WQK}""")
    if isY:
        e(f"""v_and_b32 {t0}, 7, {vL}
        v_min_u32 {t0}, 6, {t0}
        v_mul_u32_u24 {t0}, {32 * 14336}, {t0}
        v_bfe_u32 {t1}, {vL}, 3, 1
        v_mul_u32_u24 {t1}, 14332, {t1}
        v_add_u32 {t0}, {t0}, {t1}
        buffer_load_dword {t2}, {t0}, {sWS}, {sB} offen sc1""")
    n_out = 8
    for t in range(7):
        for k in range(7):
            f = frag[(t, k)]
            if k % 2 == 0:
                e(f's_add_u32 {sA}, {sB}, {(t * 7 * (32 if isY else 1) + k) * 2048}')
            o = (k & 1) * 2048
            e(f"""buffer_load_dwordx4 {f[0:4]}, {vL16}, {sWS}, {sA} offen offset:{o} sc1
            buffer_load_dwordx4 {f[4:8]}, {vL16}, {sWS}, {sA} offen offset:{o + 1024} sc1""")
            n_out += 2
            if n_out >= 60:
                e('s_waitcnt vmcnt(40)')
                n_out = 40
    if isY:
        e(f"""v_bfe_u32 {t0}, {vC}, 1, 1
        v_mul_u32_u24 {vIdx}, 0xaaaa, {t0}
        v_add_u32 {vIdx}, 0x4444, {vIdx}
        v_lshlrev_b32 {t0}, 12, {vG}
        v_lshl_add_u32 {t0}, {vC}, 4, {t0}
        s_mul_i32 {sA}, {sW}, {7 * 4096}
        s_lshl_b32 {sB}, s10, 8
        s_add_u32 {sA}, {sA}, {sB}
        v_add_u32 {x1}, {sA}, {t0}
        v_add_u32 {t0}, {4 * 4096}, {x1}
        v_mov_b32 {t1}, {OOB}
        v_cmp_gt_u32 vcc, 3, {vG}
        v_cndmask_b32 {x2}, {t1}, {t0}, vcc
        v_lshrrev_b32 {t0}, 3, {vL}
        v_min_u32 {t0}, 6, {t0}
        v_mul_u32_u24 {t0}, {YTS[0]}, {t0}
        v_and_b32 {t1}, 7, {vL}
        v_lshl_add_u32 {vTo}, {t1}, 7, {t0}
        s_mov_b32 {sO}, {WS_YX + 7 * YTS[0]}""")
    else:
        for i, x in enumerate((x1, x2)):
            e(f"""s_mul_i32 {sA}, {sW}, 7
            s_add_u32 {sA}, {sA}, {i}
            s_lshr_b32 {sB}, {sA}, 1
            s_lshl_b32 {sB}, {sB}, 10
            s_and_b32 {sA}, {sA}, 1
            s_lshl_b32 {sA}, {sA}, 3
            s_add_u32 {sA}, {sA}, {sB}
            s_add_u32 {sA}, {sA}, {L_T}
            v_add_u32 {x}, {sA}, {vL16}""")
        e(f"""s_and_b32 {sA}, {sW}, 1
        s_lshl_b32 {sA}, {sA}, 4
        v_add_u32 {t0}, {sA}, {vC}
        v_lshlrev_b32 {t1}, 2, {vG}""")
        for i in range(8):
            e(f"""v_add_u32 {t2}, {16 * (i >> 2) + (i & 3)}, {t1}
            v_cmp_le_u32 s[{40 + 2 * i}:{41 + 2 * i}], {t2}, {t0}""")

    def init_marks():
        IL = p.label('IL')
        mk = buf[0:4]
        for i in range(4):
            e(f'v_mov_b32 {mk[i]}, -1')
        e(f's_mov_b32 {sO}, s11')
        if not isY:
            e(f"""v_lshlrev_b32 {t0}, 2, {vL}
            s_cmp_ge_u32 {sW}, 2
            s_cbranch_scc1 {IL}x""")
        e(f'{IL}:')
        if isY:
            e(f"""s_lshl_b32 {sA}, {sO}, 17
            s_add_u32 {sA}, {sA}, {WS_YMA}
            buffer_store_dwordx4 {mk}, {x1}, {sWS}, {sA} offen sc1
            buffer_store_dwordx4 {mk}, {x2}, {sWS}, {sA} offen sc1""")
        else:
            e(f"""s_lshl_b32 {sA}, {sO}, 1
            s_add_u32 {sA}, {sA}, {sW}
            s_lshl_b32 {sA}, {sA}, 4
            s_add_u32 {sA}, {sA}, s10
            s_lshl_b32 {sB}, {sA}, 10
            s_add_u32 {sB}, {sB}, {WS_PX}
            s_lshl_b32 {sA}, {sA}, 8
            s_add_u32 {sA}, {sA}, {WS_PM}
            buffer_store_dwordx4 {mk}, {vL16}, {sWS}, {sB} offen sc1
            buffer_store_dword {mk[0]}, {t0}, {sWS}, {sA} offen sc1""")
        e(f"""s_add_u32 {sO}, {sO}, {NRY}
        s_cmp_lt_u32 {sO}, 64
        s_cbranch_scc1 {IL}
        {IL}x:
        v_mov_b32 {vCA}, {C_INIT}""")
        signal(p, vCA, t0)
    e('s_waitcnt vmcnt(0)')
    if not isY:
        init_marks()
    tl(p, 1, 's100', TLB)
    JOB = p.label('JOB')
    nst = 7 if isY else 2
    ndma = 7 if isY else 14
    e(f"""{JOB}:
    s_waitcnt vmcnt({nst}) lgkmcnt(0)
    s_barrier""")

    def rd(q):
        return [f'ds_read_b128 {buf[16 * (q & 1) + 4 * i:16 * (q & 1) + 4 * i + 4]}, {vXB} offset:{xnb_blk(q) * 4096 + i * 1024}'
                for i in range(4)]
    for l in rd(0):
        e(l)
    if not isY:
        e(f"""s_lshl_b32 {sA}, {sS}, 15
        s_lshr_b32 {sB}, {sW}, 1
        s_lshl_b32 {sB}, {sB}, 11
        s_add_u32 {sA}, {sA}, {sB}
        s_add_u32 {sA}, {sA}, {sW7}
        s_add_u32 {sA}, {sA}, {WS_XNA}
        s_add_u32 m0, {sW7}, {L_XA}""")
        for i in range(7):
            if i == 4:
                e(f's_add_u32 {sA}, {sA}, 4096\ns_add_u32 m0, m0, 4096')
            e(f'buffer_load_dwordx4 {vL16}, {sWS}, {sA} offen offset:{(i & 3) * 1024} sc1 lds')
    e(f"""s_add_u32 {sB}, {sS}, {NRY}
    s_min_u32 {sB}, {sB}, 63
    s_xor_b32 {sCur}, {sCur}, 32768""")
    xb_dma(sB, sCur)
    for q in range(7):
        side = rd(q + 1) if q < 6 else []
        e('s_waitcnt lgkmcnt(0)')
        if q == 4 and isY:
            SG = p.label('SG')
            e(f's_waitcnt vmcnt({ndma})')
            if MALL[0]:
                e(f"""s_sub_u32 {sA}, {sO}, {7 * YTS[0]}
                buffer_load_dword {t2}, {vTo}, {sWS}, {sA} offen sc1""")
            e(f"""s_barrier
            s_cmp_lg_u32 {sW}, 0
            s_cbranch_scc1 {SG}
            v_mov_b32 {t0}, 1
            v_mov_b32 {vCA}, {sPrev}
            s_mov_b64 exec, 1
            buffer_atomic_add {t0}, {vCA}, {sWS}, {sCN} offen
            s_mov_b64 exec, -1
            {SG}:""")
        n = 0
        for rh in range(2):
            for t in range(7):
                for kt in range(2):
                    d = acc[8 * t + 4 * kt:8 * t + 4 * kt + 4]
                    xa = buf[16 * (q & 1) + 8 * kt + 4 * rh:16 * (q & 1) + 8 * kt + 4 * rh + 4]
                    wf = frag[(t, q)][4 * rh:4 * rh + 4]
                    c = 0 if (q == 0 and rh == 0) else d
                    if isY:
                        e(f'v_mfma_f32_16x16x32_bf16 {d}, {xa}, {wf}, {c}')
                    else:
                        e(f'v_mfma_f32_16x16x32_bf16 {d}, {wf}, {xa}, {c}')
                    if side and n % 4 == 1:
                        e(side.pop(0))
                    n += 1
    e(f'v_xor_b32 {vXB}, 32768, {vXB}')
    if isY:
        e(f"""s_mul_i32 {sO}, {sS}, {28 * YTS[0]}
        s_mul_i32 {sA}, {sW}, {7 * YTS[0]}
        s_add_u32 {sO}, {sO}, {sA}
        s_lshl_b32 {sA}, s10, 10
        s_add_u32 {sO}, {sO}, {sA}
        s_add_u32 {sO}, {sO}, {WS_YX}""")
        for t in range(7):
            a = acc[8 * t:8 * t + 8]
            for i in range(4):
                e(f'v_cvt_pk_bf16_f32 {a[i]}, {a[2 * i]}, {a[2 * i + 1]}')
            e(f"""buffer_store_dwordx4 {a[0:4]}, {vL16}, {sWS}, {sO} offen sc1
            s_add_u32 {sO}, {sO}, {YTS[0]}""")
        NF = p.label('NF')
        e(f"""s_lshl_b32 {sPrev}, {sS}, 2
        s_cmp_lg_u32 {sS}, s11
        s_cbranch_scc1 {NF}
        v_mov_b32 {vCA}, {sPrev}
        s_mov_b32 {sPrev}, {OOB}""")
        signal(p, vCA, t0)
        tl(p, 2, 's100', TLB)
        e(f"""{NF}:
        s_sub_u32 {sA}, {sS}, s11
        s_cmp_lg_u32 {sA}, {5 * NRY}
        s_cbranch_scc1 {NF}x
        v_and_b32 {vCA}, 31, {vL}
        v_lshlrev_b32 {vCA}, 2, {vCA}
        v_add_u32 {vCA}, {C_LN}, {vCA}""")
        wait_ge(p, vCA, t0, 1, 8)
        e(f"""{NF}x:
        s_add_u32 {sS}, {sS}, {NRY}
        s_cmp_lt_u32 {sS}, 64
        s_cbranch_scc1 {JOB}
        v_mov_b32 {vCA}, {sPrev}""")
        signal(p, vCA, t0)
        init_marks()
        tl(p, 3, 's100', TLB)
        MJ = p.label('MJ')
        e(f"""s_mov_b32 {sS}, s11
        {MJ}:""")
        for i in range(28):
            e(f'v_mov_b32 {acc[i]}, 0')
        mem_wait()
        for k in range(7):
            for t in range(7):
                e(f'v_smfmac_f32_16x16x64_bf16 {acc[4 * t:4 * t + 4]}, {buf[4 * k:4 * k + 4]}, {frag[(t, k)]}, {vIdx}')
        o = acc[32:40]
        for t in range(7):
            a = acc[4 * t:4 * t + 4]
            e(f"""v_add_f32 {a[0]}, {a[0]}, {a[2]}
            v_add_f32 {a[1]}, {a[1]}, {a[3]}
            v_cvt_pk_bf16_f32 {o[t]}, {a[0]}, {a[1]}""")
        e(f"""v_mov_b32 {o[7]}, 0
        s_lshl_b32 {sO}, {sS}, 17
        s_add_u32 {sO}, {sO}, {WS_YMA}""")
        for b in (0, 4):
            e(f"""v_permlane32_swap_b32 {o[b]}, {o[b + 2]}
            v_permlane32_swap_b32 {o[b + 1]}, {o[b + 3]}
            v_permlane16_swap_b32 {o[b]}, {o[b + 1]}
            v_permlane16_swap_b32 {o[b + 2]}, {o[b + 3]}
            buffer_store_dwordx4 {o[b:b + 4]}, {x1 if b == 0 else x2}, {sWS}, {sO} offen sc1""")
        e(f"""s_add_u32 {sS}, {sS}, {NRY}
        s_cmp_lt_u32 {sS}, 64
        s_cbranch_scc1 {MJ}""")
        tl(p, 4, 's100', TLB)
        e('s_endpgm')
        return
    for t in range(7):
        for qt in range(2):
            a = acc[8 * t + 4 * qt:8 * t + 4 * qt + 4]
            e(f"""v_cvt_pk_bf16_f32 {a[0]}, {a[0]}, {a[1]}
            v_cvt_pk_bf16_f32 {a[1]}, {a[2]}, {a[3]}
            ds_write_b64 {x2 if (t & 1) else x1}, {a[0:2]} offset:{(t >> 1) * 1024 + qt * 14336}""")
    SK, SM = p.label('TSK'), p.label('TSM')
    L_SX = 28672
    e(f"""s_waitcnt vmcnt(0) lgkmcnt(0)
    s_barrier
    s_and_b32 {sB}, {sW}, 1
    s_mul_i32 {sA}, {sB}, 14336
    s_add_u32 {sA}, {sA}, {L_T}
    v_add_u32 {t0}, {sA}, {vL16}
    v_add_u32 {t2}, {L_XA}, {vL16}
    s_lshl_b32 {sB}, {sB}, 11
    v_add_u32 {vCA}, {sB}, {vL16}""")
    for th in range(14):
        e(f'ds_read_b128 {acc[4 * th:4 * th + 4]}, {t0} offset:{th * 1024}')
    e(f"""s_cmp_lt_u32 {sW}, 2
    s_cbranch_scc1 {SM}
    s_waitcnt lgkmcnt(6)""")

    def xa_rd(i):
        e(f'ds_read_b128 {buf[4 * (i & 7):4 * (i & 7) + 4]}, {t2} offset:{i * 1024}')
    for i in range(8):
        xa_rd(i)
    for i in range(28):
        kt, th = i // 14, i % 14
        e(f's_waitcnt lgkmcnt({min(7, 27 - i)})')
        d = Sx[4 * kt:4 * kt + 4]
        e(f'v_mfma_f32_16x16x32_bf16 {d}, {buf[4 * (i & 7):4 * (i & 7) + 4]}, {acc[4 * th:4 * th + 4]}, {0 if th == 0 else d}')
        if i + 8 < 28:
            xa_rd(i + 8)
    e(f'v_mov_b32 {t1}, 0xff800000')
    for i in range(8):
        e(f'v_cndmask_b32 {Sx[i]}, {t1}, {Sx[i]}, s[{40 + 2 * i}:{41 + 2 * i}]')
    e(f"""ds_write_b128 {vCA}, {Sx[0:4]} offset:{L_SX}
    ds_write_b128 {vCA}, {Sx[4:8]} offset:{L_SX + 1024}
    s_waitcnt lgkmcnt(0)
    s_barrier
    s_branch {SK}
    {SM}:""")
    mem_wait()
    e(f"""s_waitcnt lgkmcnt(0)
    s_barrier
    ds_read_b128 {Sx[0:4]}, {vCA} offset:{L_SX}
    ds_read_b128 {Sx[4:8]}, {vCA} offset:{L_SX + 1024}""")
    for k in range(7):
        for v in range(2):
            d = Sm[4 * v:4 * v + 4]
            e(f'v_mfma_f32_16x16x32_bf16 {d}, {buf[4 * k:4 * k + 4]}, {acc[4 * (2 * k + v):4 * (2 * k + v) + 4]}, {0 if k == 0 else d}')
    e(f"""s_waitcnt lgkmcnt(0)
    v_max3_f32 {t2}, {Sx[0]}, {Sx[1]}, {Sx[2]}
    v_max3_f32 {t2}, {t2}, {Sx[3]}, {Sx[4]}
    v_max3_f32 {t2}, {t2}, {Sx[5]}, {Sx[6]}
    v_max_f32 {t2}, {t2}, {Sx[7]}""")
    vals = [Sx[i] for i in range(8)] + [Sm[0], Sm[1]]

    def allred(op):
        e(f"""v_mov_b32 {t1}, {t0}
        v_permlane16_swap_b32 {t0}, {t1}
        v_{op}_f32 {t0}, {t0}, {t1}
        v_mov_b32 {t1}, {t0}
        v_permlane32_swap_b32 {t0}, {t1}
        v_{op}_f32 {t0}, {t0}, {t1}""")
    e(f"""s_lshl_b32 {sA}, {sS}, 1
    s_add_u32 {sA}, {sA}, {sW}
    s_lshl_b32 {sA}, {sA}, 4
    s_add_u32 {sA}, {sA}, s10            ; (s*2+qt)*16 + h
    s_lshl_b32 {sB}, {sA}, 10
    s_add_u32 {sB}, {sB}, {WS_PX}
    s_lshl_b32 {sA}, {sA}, 8
    s_add_u32 {sA}, {sA}, {WS_PM}
    v_add_f32 {Sm[0]}, {Sm[0]}, {Sm[6]}
    v_add_f32 {Sm[1]}, {Sm[1]}, {Sm[7]}
    v_max3_f32 {t0}, {t2}, {Sm[0]}, {Sm[1]}""")
    allred('max')
    for v in vals:
        e(f'v_sub_f32 {v}, {v}, {t0}')
    for v in vals:
        e(f'v_exp_f32 {v}, {v}')
    e(f'v_add_f32 {t0}, {vals[0]}, {vals[1]}')
    for v in vals[2:]:
        e(f'v_add_f32 {t0}, {t0}, {v}')
    allred('add')
    e(f'v_rcp_f32 {t0}, {t0}')
    for v in vals:
        e(f'v_mul_f32 {v}, {v}, {t0}')
    for i in range(4):
        e(f'v_cvt_pk_bf16_f32 {Sx[i]}, {Sx[2 * i]}, {Sx[2 * i + 1]}')
    e(f"""v_cvt_pk_bf16_f32 {Sm[0]}, {Sm[0]}, {Sm[1]}
    buffer_store_dwordx4 {Sx[0:4]}, {vL16}, {sWS}, {sB} offen sc1
    v_lshlrev_b32 {t0}, 4, {vC}
    v_lshl_add_u32 {t0}, {vG}, 2, {t0}
    buffer_store_dword {Sm[0]}, {t0}, {sWS}, {sA} offen sc1
    {SK}:
    s_add_u32 {sS}, {sS}, {NRY}
    s_cmp_lt_u32 {sS}, 64
    s_cbranch_scc1 {JOB}""")
    tl(p, 4, 's100', TLB)
    e('s_endpgm')


def f_worker(p):
    e = p.e
    V = Alloc('v', 1, 254)
    vL, vG, vC, t0, t1, t2, vL16, vCA, vB1 = (V.get() for _ in range(9))
    vQ = [V.get() for _ in range(7)]
    vRo = [V.get() for _ in range(4)]
    vGo = [V.get() for _ in range(4)]
    H = V.get(16, 4)
    Bs = V.get(4, 4)
    HP = V.get(8, 4)
    XF = V.get(112, 4)
    RV = V.get(80, 4)
    acc = R('v', XF.base, 112)
    PA = RV[0:40]
    facc = R('a', 0, 224)
    ring = lambda i: RV[4 * i:4 * i + 4] if i < 20 else R('a', 224 + 4 * (i - 20), 4)
    sS, sXx, sA, sB, sC, sI, sF1, sF2 = 's12', 's13', 's14', 's15', 's32', 's33', 's34', 's35'
    rW1, rW2, rB1, rB2 = 's[16:19]', 's[20:23]', 's[24:27]', 's[28:31]'
    rX, rO = 's[40:43]', 's[44:47]'
    srd(e, 16, 64, 448 * 1792 * 2)
    srd(e, 20, 80, 448 * 1792 * 2)
    srd(e, 24, 72, 1792 * 2)
    srd(e, 28, 88, 448 * 2)
    srd(e, 40, 0, S * D * 2)
    srd(e, 44, 96, S * D * 2)
    e(f'''v_and_b32 {vL}, 63, v0
    v_lshrrev_b32 {vG}, 4, {vL}
    v_and_b32 {vC}, 15, {vL}
    v_lshlrev_b32 {vL16}, 4, {vL}
    v_lshlrev_b32 {vB1}, 3, {vG}
    s_mov_b32 {sTO}, {TIMEOUT}
    s_mov_b32 {sCN}, {WS_CNT}
    s_lshr_b32 {sS}, s10, 1
    s_and_b32 {sXx}, s10, 1''')
    for q in range(7):
        e(f'v_add_u32 {vQ[q]}, {q * 4096}, {vL16}')
    go_wait(p, vCA, t0, sA, GOV[1])
    e(f'''v_mul_u32_u24 {t0}, {4 * 3584}, {vG}
    v_lshl_add_u32 {t0}, {vC}, 1, {t0}            ; w1 voffset
    v_mul_u32_u24 {t1}, {4 * 896}, {vG}
    v_and_b32 {t2}, 7, {vC}
    v_lshl_add_u32 {t1}, {t2}, 1, {t1}
    v_lshrrev_b32 {t2}, 3, {vC}
    v_lshl_add_u32 {t1}, {t2}, 6, {t1}            ; w2 voffset
    s_lshl_b32 {sI}, s10, 2
    s_add_u32 {sI}, {sI}, {sW}
    s_waitcnt lgkmcnt(0)''')
    C0 = p.label('CV')
    e(f'''{C0}:
    ; W1F id -> ft = id/14, rem = id%14 -> byte (64*chunk + 16*rh)*3584 + 32*ft
    s_mul_i32 {sA}, {sI}, 4682
    s_lshr_b32 {sA}, {sA}, 16
    s_mul_i32 {sB}, {sA}, 14
    s_sub_u32 {sB}, {sI}, {sB}
    s_lshl_b32 {sA}, {sA}, 5
    s_lshr_b32 {sC}, {sB}, 1
    s_mul_i32 {sC}, {sC}, {64 * 3584}
    s_add_u32 {sA}, {sA}, {sC}
    s_and_b32 {sB}, {sB}, 1
    s_mul_i32 {sB}, {sB}, {16 * 3584}
    s_add_u32 {sA}, {sA}, {sB}''')
    for el in range(8):
        rho, b = el >> 1, el & 1
        e(f'''s_add_u32 {sB}, {sA}, {(32 * (rho & 1) + 2 * (rho >> 1) + b) * 3584}
        buffer_load_ushort {acc[el]}, {t0}, {rW1}, {sB} offen''')
    e(f'''; W2F id -> F = id/28, j = id%28 -> byte 32F*896 + (64*(j>>2) + 8*(j&3))*2
    s_mul_i32 {sA}, {sI}, 2341
    s_lshr_b32 {sA}, {sA}, 16
    s_mul_i32 {sB}, {sA}, 28
    s_sub_u32 {sB}, {sI}, {sB}
    s_mul_i32 {sA}, {sA}, {32 * 896}
    s_lshr_b32 {sC}, {sB}, 2
    s_lshl_b32 {sC}, {sC}, 7
    s_add_u32 {sA}, {sA}, {sC}
    s_and_b32 {sB}, {sB}, 3
    s_lshl_b32 {sB}, {sB}, 4
    s_add_u32 {sA}, {sA}, {sB}
    s_add_u32 {sB}, {sA}, {16 * 896}''')
    for el in range(8):
        e(f'buffer_load_ushort {acc[8 + el]}, {t1}, {rW2}, {sA if el < 4 else sB} offen offset:{(el & 3) * 896}')
    e(f'''s_lshl_b32 {sA}, {sI}, 10
    s_add_u32 {sB}, {sA}, {WS_W2F}
    s_add_u32 {sA}, {sA}, {WS_W1F}
    s_waitcnt vmcnt(0)''')
    for i in range(8):
        e(f'v_lshl_or_b32 {acc[16 + i]}, {acc[2 * i + 1]}, 16, {acc[2 * i]}')
    e(f'''buffer_store_dwordx4 {acc[16:20]}, {vL16}, {sWS}, {sA} offen sc1
    buffer_store_dwordx4 {acc[20:24]}, {vL16}, {sWS}, {sB} offen sc1
    s_add_u32 {sI}, {sI}, {4 * NF[0]}
    s_cmp_lt_u32 {sI}, 1568
    s_cbranch_scc1 {C0}
    v_mov_b32 {vCA}, {C_WF}''')
    signal(p, vCA, t0)
    e(f"""s_cmp_ge_u32 s10, 64
    s_cbranch_scc1 F_P2
    s_lshl_b32 {sA}, s10, 15
    s_add_u32 {sA}, {sA}, {WS_XNB}""")
    for k in range(7):
        for kt in range(2):
            for rh in range(2):
                i = 56 * kt + 8 * k + 4 * rh
                e(f'buffer_load_dwordx4 {XF[i:i + 4]}, {vQ[xnb_blk(k)]}, {sWS}, {sA} offen offset:{kt * 2048 + rh * 1024} sc1')
    for i in range(224):
        e(f'v_accvgpr_write_b32 {facc[i]}, 0')
    e(f's_mov_b32 {sA}, {NF[0]}')
    wait_ge(p, vCA, t0, sA, 8)
    tl(p, 1, 's100', WS_TL + 16384)

    def blk_load(so, i):
        return f'buffer_load_dwordx4 {ring(i)}, {vQ[i >> 2]}, {sWS}, {so} offen offset:{(i & 3) * 1024} sc1'
    e(f"""s_mul_i32 {sF1}, {sW}, 28672
    s_add_u32 {sF2}, {sF1}, {WS_W2F}
    s_add_u32 {sF1}, {sF1}, {WS_W1F}
    s_lshl_b32 {sC}, {sW}, 6
    s_mov_b32 {sI}, 0""")
    for i in range(28):
        e(blk_load(sF1, i))
    FL = p.label('FL')
    e(f"""{FL}:
    buffer_load_dwordx2 {Bs[0:2]}, {vB1}, {rB1}, {sC} offen
    buffer_load_dwordx2 {Bs[2:4]}, {vB1}, {rB1}, {sC} offen offset:32
    s_add_u32 {sF1}, {sF1}, {4 * 28672}""")
    for i in range(28):
        a_, kk = i // 14, i % 14
        e('s_waitcnt vmcnt(29)')
        for kt in range(2):
            d = H[8 * kt + 4 * a_:8 * kt + 4 * a_ + 4]
            e(f'v_mfma_f32_16x16x32_bf16 {d}, {ring(i)}, {XF[56 * kt + 4 * kk:56 * kt + 4 * kk + 4]}, {0 if kk == 0 else d}')
        e(blk_load(sF2, i))
    e('s_waitcnt vmcnt(28)')
    for i in range(8):
        a_, b_ = H[2 * i], H[2 * i + 1]
        e(f"""v_cvt_pk_bf16_f32 {t0}, {a_}, {b_}
        v_lshlrev_b32 {a_}, 16, {t0}
        v_and_b32 {b_}, 0xffff0000, {t0}
        v_lshlrev_b32 {t1}, 16, {Bs[i & 3]}
        v_and_b32 {t2}, 0xffff0000, {Bs[i & 3]}
        v_add_f32 {a_}, {a_}, {t1}
        v_add_f32 {b_}, {b_}, {t2}
        v_cvt_pk_bf16_f32 {t0}, {a_}, {b_}
        v_lshlrev_b32 {a_}, 16, {t0}
        v_and_b32 {b_}, 0xffff0000, {t0}
        v_max_f32 {a_}, 0, {a_}
        v_max_f32 {b_}, 0, {b_}
        v_mul_f32 {a_}, {a_}, {a_}
        v_mul_f32 {b_}, {b_}, {b_}
        v_cvt_pk_bf16_f32 {HP[i]}, {a_}, {b_}""")
    for i in range(28):
        e('s_waitcnt vmcnt(27)')
        for kt in range(2):
            d = facc[112 * kt + 4 * i:112 * kt + 4 * i + 4]
            e(f'v_mfma_f32_16x16x32_bf16 {d}, {HP[4 * kt:4 * kt + 4]}, {ring(i)}, {d}')
        e(blk_load(sF1, i))
    e(f"""s_add_u32 {sF2}, {sF2}, {4 * 28672}
    s_add_u32 {sC}, {sC}, 256
    s_add_u32 {sI}, {sI}, 1
    s_cmp_lt_u32 {sI}, 14
    s_cbranch_scc1 {FL}""")

    def reduce_write(ntile, nq, rowb, acc):
        e(f'''v_mul_u32_u24 {t0}, {4 * rowb}, {vG}
        v_lshl_add_u32 {t0}, {vC}, 2, {t0}
        s_lshl_b32 {sA}, {sW}, 15
        v_add_u32 {t0}, {sA}, {t0}''')
        u = rowb // 256
        for tt in range(ntile):
            for qt in range(nq):
                a = acc[4 * (tt * nq + qt):4 * (tt * nq + qt) + 4]
                for r in (0, 2):
                    o = (16 * qt + r) * u
                    e(f'ds_write2st64_b32 {t0}, {a[r]}, {a[r + 1]} offset0:{o} offset1:{o + u}')
            e(f'v_add_u32 {t0}, 64, {t0}')
        e('s_waitcnt lgkmcnt(0)\ns_barrier')

    def reader_setup(nunit, rowb, jbase_sgpr, rowbase_sgpr):
        mul = {56: 1171, 28: 2341}[nunit]
        for rd in range(4):
            e(f'''v_add_u32 {t0}, {256 * rd}, v0
            v_mul_u32_u24 {t1}, {mul}, {t0}
            v_lshrrev_b32 {t1}, 16, {t1}                 ; token
            v_mul_u32_u24 {t2}, {nunit}, {t1}
            v_sub_u32 {t2}, {t0}, {t2}                   ; q
            v_mul_u32_u24 {vRo[rd]}, {rowb}, {t1}
            v_lshl_add_u32 {vRo[rd]}, {t2}, 5, {vRo[rd]}
            v_add_u32 {t1}, {rowbase_sgpr}, {t1}
            v_mul_u32_u24 {vGo[rd]}, 896, {t1}
            v_and_b32 {t1}, 1, {t2}
            v_lshl_add_u32 {vGo[rd]}, {t1}, 6, {vGo[rd]}
            v_lshrrev_b32 {t2}, 1, {t2}
            v_add_u32 {t2}, {jbase_sgpr}, {t2}           ; j
            v_lshrrev_b32 {t1}, 2, {t2}
            v_lshl_add_u32 {vGo[rd]}, {t1}, 7, {vGo[rd]}
            v_and_b32 {t1}, 3, {t2}
            v_lshl_add_u32 {vGo[rd]}, {t1}, 4, {vGo[rd]}''')
        e(f'''v_cmp_gt_u32 vcc, 128, v0
        v_mov_b32 {t0}, {OOB}
        v_cndmask_b32 {vGo[3]}, {t0}, {vGo[3]}, vcc
        v_cndmask_b32 {vRo[3]}, 0, {vRo[3]}, vcc''')

    def reduce_read(rd, dst):
        e(f'v_add_u32 {t0}, 65536, {vRo[rd]}')
        for ww in range(4):
            ad = vRo[rd] if ww < 2 else t0
            for hh in range(2):
                e(f'ds_read_b128 {dst[8 * ww + 4 * hh:8 * ww + 4 * hh + 4]}, {ad} offset:{(ww & 1) * 32768 + hh * 16}')
        e('s_waitcnt lgkmcnt(0)')
        for i in range(8):
            e(f'''v_add_f32 {dst[i]}, {dst[i]}, {dst[8 + i]}
            v_add_f32 {dst[16 + i]}, {dst[16 + i]}, {dst[24 + i]}
            v_add_f32 {dst[i]}, {dst[i]}, {dst[16 + i]}''')

    def add_packed(vals, pk):
        for i in range(4):
            a, b = vals[2 * i], vals[2 * i + 1]
            e(f'''v_cvt_pk_bf16_f32 {t0}, {a}, {b}
            v_lshlrev_b32 {a}, 16, {t0}
            v_and_b32 {b}, 0xffff0000, {t0}
            v_lshlrev_b32 {t1}, 16, {pk[i]}
            v_and_b32 {t2}, 0xffff0000, {pk[i]}
            v_add_f32 {a}, {a}, {t1}
            v_add_f32 {b}, {b}, {t2}''')

    e(f"""s_waitcnt vmcnt(0)
    s_mov_b32 {sA}, 0
    s_mov_b32 {sB}, 0""")
    reader_setup(56, 2048, sA, sB)
    for rd in range(4):
        e(f"""v_lshrrev_b32 {t1}, 11, {vRo[rd]}
        v_mul_u32_u24 {t1}, 896, {t1}
        v_sub_u32 {t1}, {vGo[rd]}, {t1}
        buffer_load_dwordx4 {PA[4 * rd:4 * rd + 4]}, {t1}, {rB2}, 0 offen""")
    for kt in range(2):
        reduce_write(28, 1, 2048, facc[112 * kt:112 * kt + 112])
        e(f"""s_mul_i32 {sB}, s10, {32 * 896}
        s_add_u32 {sB}, {sB}, {WS_BASE + kt * 16 * 896}""")
        if kt == 0:
            e('s_waitcnt vmcnt(0)')
        for rd in range(4):
            d = XF[0:32]
            reduce_read(rd, d)
            add_packed(d, PA[4 * rd:4 * rd + 4])
            o = XF[32 + 16 * kt + 4 * rd:36 + 16 * kt + 4 * rd]
            for i in range(4):
                e(f'v_cvt_pk_bf16_f32 {o[i]}, {d[2 * i]}, {d[2 * i + 1]}')
            e(f'buffer_store_dwordx4 {o}, {vGo[rd]}, {sWS}, {sB} offen sc1')
        if kt == 0:
            e('s_barrier')
    e(f"""s_lshl_b32 {sA}, s10, 7
    s_add_u32 {sA}, {sA}, {C_PY}
    v_mov_b32 {vCA}, {sA}""")
    signal(p, vCA, t0)
    e('F_P2:')
    tl(p, 2, 's100', WS_TL + 16384)
    sCG = 's36'
    e(f"""s_cmp_ge_u32 s10, {NF[0] // 7 * 7}
    s_cbranch_scc1 EXIT
    s_mul_i32 {sS}, s10, 147
    s_lshr_b32 {sS}, {sS}, 10
    s_mul_i32 {sCG}, {sS}, 7
    s_sub_u32 {sCG}, s10, {sCG}
    v_mov_b32 {vCA}, {C_INIT}
    s_mov_b32 {sA}, {16 * (3 + NRT[0])}""")
    wait_ge(p, vCA, t0, sA, 16)
    YB = R('a', 0, 64)
    XR, BR = RV[56:60], RV[60:64]
    YM = RV[40:56]
    vWr, vRd, vG2 = vRo[0], vRo[1], vGo[0]
    e(f"""; LDS write: w*8192 + 4g*256 + ((n&7) + 32*(n>>3))*4
    v_lshlrev_b32 {vWr}, 10, {vG}
    v_and_b32 {t0}, 7, {vC}
    v_lshl_add_u32 {vWr}, {t0}, 2, {vWr}
    v_lshrrev_b32 {t0}, 3, {vC}
    v_lshl_add_u32 {vWr}, {t0}, 7, {vWr}
    s_lshl_b32 {sA}, {sW}, 13
    v_add_u32 {vWr}, {sA}, {vWr}
    v_lshlrev_b32 {vRd}, 5, v0
    v_lshrrev_b32 {t0}, 3, v0
    v_mul_u32_u24 {vG2}, 896, {t0}
    v_and_b32 {t0}, 7, v0
    v_lshl_add_u32 {vG2}, {t0}, 4, {vG2}
    s_lshl_b32 {sA}, {sCG}, 7
    v_add_u32 {vG2}, {sA}, {vG2}""")
    J2 = p.label('J2')
    e(f"""{J2}:
    s_lshl_b32 {sA}, {sS}, 2
    v_mov_b32 {vCA}, {sA}
    s_mov_b32 {sA}, 16""")
    wait_ge(p, vCA, t0, sA, 8)
    e(f"""s_lshl_b32 {sA}, {sS}, 7
    s_add_u32 {sA}, {sA}, {C_PY}
    v_mov_b32 {vCA}, {sA}
    s_mov_b32 {sA}, 1""")
    wait_ge(p, vCA, t0, sA, 8)
    e(f"""s_mul_i32 {sA}, {sS}, {28 * YTS[0]}
    s_mul_i32 {sB}, {sCG}, {4 * YTS[0]}
    s_add_u32 {sA}, {sA}, {sB}
    s_lshl_b32 {sB}, {sW}, 12
    s_add_u32 {sA}, {sA}, {sB}
    s_add_u32 {sA}, {sA}, {WS_YX}""")
    for tt in range(4):
        for hh in range(4):
            e(f'buffer_load_dwordx4 {YB[16 * tt + 4 * hh:16 * tt + 4 * hh + 4]}, {vL16}, {sWS}, {sA} offen offset:{hh * 1024} sc1')
        e(f's_add_u32 {sA}, {sA}, {YTS[0]}')
    e(f"""s_mul_i32 {sI}, {sS}, {32 * 896}
    s_add_u32 {sB}, {sI}, {WS_BASE}
    buffer_load_dwordx4 {XR}, {vG2}, {rX}, {sI} offen
    buffer_load_dwordx4 {BR}, {vG2}, {sWS}, {sB} offen sc1
    s_lshl_b32 {sA}, {sS}, 13
    s_add_u32 {sA}, {sA}, {WS_MEMA}
    v_mov_b32 {t1}, 0""")
    load_valid(p, [f'buffer_load_dword {t2}, {t1}, {sWS}, {sA} offen sc1'], [t2], t0, 8, sS if CHEAP[0] else None)
    tl(p, 3, 's100', WS_TL + 16384)
    e(f"""s_lshl_b32 {sA}, {sS}, 15
    s_lshl_b32 {sB}, {sW}, 12
    s_add_u32 {sA}, {sA}, {sB}
    s_add_u32 {sA}, {sA}, {WS_PX}
    s_lshl_b32 {sF1}, {sS}, 13
    s_lshl_b32 {sB}, {sW}, 10
    s_add_u32 {sF1}, {sF1}, {sB}
    s_add_u32 {sF1}, {sF1}, {WS_PM}
    s_lshl_b32 {sF2}, {sS}, 17
    s_add_u32 {sF2}, {sF2}, {sB}
    s_lshl_b32 {sB}, {sCG}, 14
    s_add_u32 {sF2}, {sF2}, {sB}
    s_add_u32 {sF2}, {sF2}, {WS_YMA}""")
    lds_ = []
    for hh in range(4):
        for qt in range(2):
            lds_.append(f'buffer_load_dwordx4 {PA[8 * hh + 4 * qt:8 * hh + 4 * qt + 4]}, {vQ[4 * qt]}, {sWS}, {sA} offen offset:{hh * 1024} sc1')
    lds_ += [f'buffer_load_dwordx4 {PA[32 + 4 * qt:36 + 4 * qt]}, {vQ[qt]}, {sWS}, {sF1} offen sc1' for qt in range(2)]
    lds_ += [f'buffer_load_dwordx4 {YM[4 * tt:4 * tt + 4]}, {vQ[tt]}, {sWS}, {sF2} offen sc1' for tt in range(4)]
    load_valid(p, lds_, [PA[i] for i in range(40)] + [YM[i] for i in range(16)], t0, 1, sS if CHEAP[0] else None)
    for hh in range(5):
        for tt in range(4):
            for qt in range(2):
                d = acc[4 * (2 * tt + qt):4 * (2 * tt + qt) + 4]
                bb = YB[16 * tt + 4 * hh:16 * tt + 4 * hh + 4] if hh < 4 else YM[4 * tt:4 * tt + 4]
                e(f'v_mfma_f32_16x16x32_bf16 {d}, {PA[8 * hh + 4 * qt:8 * hh + 4 * qt + 4]}, {bb}, {0 if hh == 0 else d}')
    for tt in range(4):
        if tt:
            e(f'v_add_u32 {t0}, {32 * tt}, {vWr}')
        for qt in range(2):
            a_ = acc[4 * (2 * tt + qt):4 * (2 * tt + qt) + 4]
            for r in (0, 2):
                e(f'ds_write2st64_b32 {t0 if tt else vWr}, {a_[r]}, {a_[r + 1]} offset0:{16 * qt + r} offset1:{16 * qt + r + 1}')
    e('s_waitcnt lgkmcnt(0)\ns_barrier')
    d = acc[32:64]
    for ww in range(4):
        for hh in range(2):
            e(f'ds_read_b128 {d[8 * ww + 4 * hh:8 * ww + 4 * hh + 4]}, {vRd} offset:{ww * 8192 + hh * 16}')
    e('s_waitcnt lgkmcnt(0)\ns_barrier')
    for i in range(8):
        e(f"""v_add_f32 {d[i]}, {d[i]}, {d[8 + i]}
        v_add_f32 {d[16 + i]}, {d[16 + i]}, {d[24 + i]}
        v_add_f32 {d[i]}, {d[i]}, {d[16 + i]}""")
    add_packed(d, XR)
    add_packed(d, BR)
    o = acc[64:68]
    for i in range(4):
        e(f'v_cvt_pk_bf16_f32 {o[i]}, {d[2 * i]}, {d[2 * i + 1]}')
    e(f"""buffer_store_dwordx4 {o}, {vG2}, {rO}, {sI} offen {OSC[0]}
    s_add_u32 {sS}, {sS}, {NF[0] // 7}
    s_cmp_lt_u32 {sS}, 64
    s_cbranch_scc1 {J2}""")
    if TL_ON[0]:
        e('s_waitcnt vmcnt(0)')
    tl(p, 4, 's100', WS_TL + 16384)
    e('s_endpgm')
```

```python
import sys
from asmlib import *
from layout import *
import team, workers, prep
from team import *

NAME = 'parallel_sum__memory_aug_recurrent_mem_tr__dense_activation_squared_relu__prompt'
MAIN_LDS = 131072


def ready_wait(p, kind, lnmask=31):
    e = p.e
    L, W = p.label('RW'), p.label('RB')
    e(f"""s_cmp_lg_u32 {sWAVE}, 0
    s_cbranch_scc1 {W}
    s_mov_b32 s23, {WS_CNT}
    s_and_b32 s22, {sIDX}, 7
    s_lshl_b32 s22, s22, 7
    s_add_u32 s22, s22, {C_LN}
    v_and_b32 v1, {lnmask}, v0
    v_lshlrev_b32 v1, 2, v1
    v_add_u32 v1, s22, v1
    v_and_b32 v3, 15, v0
    v_min_u32 v3, 13, v3
    v_lshlrev_b32 v3, 2, v3""")
    if kind == 'one':
        e(f"""s_lshl_b32 s21, s21, 7
        s_add_u32 s21, s21, {C_MAT}
        v_add_u32 v3, s21, v3
        v_cmp_gt_u32 vcc, 32, v0
        v_cndmask_b32 v1, v3, v1, vcc""")
    if kind == 'vo':
        e(f"""v_lshrrev_b32 v2, 4, v0
        v_lshl_add_u32 v2, v2, 8, v3
        v_add_u32 v2, {C_MAT + 128}, v2""")
    e(f"""s_mov_b32 s22, 200000
    {L}:
    buffer_load_dword v3, v1, s[4:7], s23 offen sc1""")
    if kind == 'vo':
        e("""buffer_load_dword v5, v2, s[4:7], s23 offen sc1
        buffer_load_dword v6, v2, s[4:7], s23 offen offset:1024 sc1
        buffer_load_dword v7, v2, s[4:7], s23 offen offset:2048 sc1
        buffer_load_dword v8, v2, s[4:7], s23 offen offset:3072 sc1""")
    e(f"""s_sub_u32 s22, s22, 1
    s_cmp_gt_i32 s22, 0
    s_cbranch_scc0 {W}
    s_waitcnt vmcnt(0)""")
    if kind == 'vo':
        e('v_min3_u32 v3, v3, v5, v6\nv_min3_u32 v3, v3, v7, v8')
    e(f"""v_cmp_ne_u32 vcc, 1, v3
    s_cbranch_vccz {W}
    s_sleep 4
    s_branch {L}
    {W}:
    s_barrier""")


def done_flag(p, off_sgpr, nrep, sh=7):
    e = p.e
    W, L, K, Z = p.label('DW'), p.label('DL'), p.label('DK'), p.label('DZ')
    e(f"""s_cmp_lg_u32 {sWAVE}, 0
    s_cbranch_scc1 {W}
    v_readfirstlane_b32 s92, v253
    s_cmp_eq_u32 s92, 1
    s_cbranch_scc1 {K}
    v_mov_b32 v250, 1
    v_mov_b32 v251, 20
    s_mov_b64 exec, 1
    buffer_atomic_add v250, v251, s[84:87], 0 offen sc0
    s_mov_b64 exec, -1
    s_mov_b32 s91, 200000
    s_waitcnt vmcnt(0)
    v_readfirstlane_b32 s92, v250
    s_cmp_lg_u32 s92, 0
    s_cbranch_scc1 {L}
    v_lshlrev_b32 v250, 4, v0
    v_mov_b32 v244, 0
    v_mov_b32 v245, 0
    v_mov_b32 v246, 0
    v_mov_b32 v247, 0
    s_mov_b32 s92, {WS_CNT}
    {Z}:
    buffer_store_dwordx4 v[244:247], v250, s[4:7], s92 offen sc1
    s_add_u32 s92, s92, 1024
    s_cmp_lt_u32 s92, {WS_CNT + CNT_BYTES}
    s_cbranch_scc1 {Z}
    v_mov_b32 v253, 1
    s_waitcnt vmcnt(0)
    buffer_store_dword v253, v252, s[84:87], 0 offen sc1
    s_branch {K}
    {L}:
    s_sleep 4
    buffer_load_dword v253, v252, s[84:87], 0 offen sc1
    s_sub_u32 s91, s91, 1
    s_waitcnt vmcnt(0)
    v_readfirstlane_b32 s92, v253
    s_cmp_eq_u32 s92, 1
    s_cbranch_scc1 {K}
    s_cmp_gt_i32 s91, 0
    s_cbranch_scc1 {L}
    {K}:
    v_lshlrev_b32 v250, {sh}, v0
    v_add_u32 v250, {off_sgpr}, v250
    v_mov_b32 v251, {OOB}
    v_cmp_gt_u32 vcc, {nrep}, v0
    v_cndmask_b32 v250, v251, v250, vcc
    v_mov_b32 v251, 1
    s_mov_b32 s92, {WS_CNT}
    buffer_store_dword v251, v250, s[4:7], s92 offen sc1
    {W}:""")


def main_kernel(p, name, cfg):
    e = p.e
    srd = prep.srd
    WB = 448 * 8192
    e(f'{name}:')
    e(f"""s_cmp_ge_u32 s2, 256
    s_cbranch_scc1 EXIT""")
    srd(e, 84, 104, 256)
    srd(e, 4, 112, WS_BYTES)
    srd(e, 12, 32, WB)
    srd(e, 16, 40, WB)
    srd(e, 40, 16, WB)
    srd(e, 44, 24, WB)
    srd(e, 48, 0, S * D * 2)
    e(f"""v_lshrrev_b32 v1, 6, v0
    v_readfirstlane_b32 s9, v1
    s_getreg_b32 s88, hwreg(HW_REG_XCC_ID)
    s_and_b32 s88, s88, 7""")
    if cfg.fb:
        e(f"""s_bfe_u32 s20, s2, 0x10003
        s_sub_u32 s20, {cfg.xcc}, s20
        s_cmp_eq_u32 s88, {cfg.xcc}
        s_cselect_b32 s88, s20, s88""")
    if cfg.hwid:
        e("""; optimistic slot (die, shader engine, compute unit); the claim is checked after the first jobs
        s_getreg_b32 s20, hwreg(HW_REG_HW_ID)
        s_bfe_u32 s21, s20, 0x30008
        s_bfe_u32 s20, s20, 0x2000d
        s_lshl_b32 s21, s21, 2
        s_add_u32 s21, s21, s20""")
    else:
        e('s_lshr_b32 s21, s2, 3')
    e(f"""
    s_mov_b32 {sSLOW}, 0
    s_lshl_b32 s20, s88, 2
    s_add_u32 s20, s20, 160
    s_lshl_b32 s93, 1, s21
    v_mov_b32 v249, s93
    v_mov_b32 v248, {OOB}
    v_mov_b32 v247, s20
    v_cmp_eq_u32 vcc, 0, v0
    v_cndmask_b32 v248, v248, v247, vcc
    v_mov_b32 v252, 16
    v_mov_b32 v253, 0
    s_waitcnt lgkmcnt(0)""")
    tl(p, 0, 's2', WS_TL)
    claim = 'buffer_atomic_or v249, v248, s[84:87], 0 offen sc0'
    e(f"""SLOT:
    s_sub_u32 s22, s88, {cfg.xcc + 1}
    s_and_b32 s22, s22, 7
    s_cmp_eq_u32 s22, 7
    s_cbranch_scc1 PREP_LN
    s_mov_b32 s94, s21
    s_mul_i32 s100, s21, {7 if cfg.quiet < 0 else 6}
    s_add_u32 s100, s100, s22
    s_add_u32 s100, s100, 32""")
    if cfg.quiet >= 0:
        e(f"""s_cmp_gt_u32 s22, {cfg.quiet}
        s_cselect_b32 s20, 1, 0
        s_sub_u32 s100, s100, s20
        s_add_u32 s20, s21, 224
        s_cmp_eq_u32 s22, {cfg.quiet}
        s_cselect_b32 s100, s20, s100""")
    e(f"""
    s_lshl_b32 s20, s22, 5
    s_add_u32 s20, s20, s21             ; job
    s_mul_i32 s10, s20, 4682
    s_lshr_b32 s10, s10, 16             ; head
    s_mul_i32 s21, s10, 14
    s_sub_u32 s20, s20, s21
    s_lshr_b32 s11, s20, 1              ; chunk
    s_and_b32 s33, s20, 1
    s_lshl_b32 s89, s10, 8
    s_lshl_b32 s20, s20, 2
    s_add_u32 s89, s89, s20
    s_add_u32 s89, s89, {C_MAT}
    s_add_u32 s90, s89, 128""")
    tl(p, 0, 's100', WS_TL + 16384)
    if cfg.etouch:
        e(f"""v_lshlrev_b32 v1, 7, v0
        s_mul_i32 s21, s10, 229376
        s_lshl_b32 s23, s20, 12
        s_add_u32 s21, s21, s23
        v_bfe_u32 v2, v0, 2, 5
        v_lshlrev_b32 v2, 13, v2
        v_and_b32 v3, 3, v0
        v_lshl_add_u32 v2, v3, 7, v2
        s_lshl_b32 s23, s20, 16
        s_lshl_b32 s24, s10, 9
        s_add_u32 s23, s23, s24
        s_cmp_ge_u32 s9, 2
        s_cbranch_scc1 ET_A
        buffer_load_dword v246, v1, s[16:19], s21 offen
        s_branch ET_D
        ET_A:
        buffer_load_dword v246, v2, s[12:15], s23 offen
        ET_D:""")

    if cfg.sb:
        assert prep.NBUILD == 4
        e(f"""s_mul_i32 s39, s22, 14
        s_add_u32 s39, s39, s94
        s_sub_u32 s39, s39, 18
        s_cmp_lt_u32 s94, 18
        s_cselect_b32 s39, 96, s39
        s_mul_i32 s36, s39, 43
        s_lshr_b32 s36, s36, 8
        s_mul_i32 s37, s36, 6
        s_sub_u32 s39, s39, s37
        s_lshr_b32 s37, s39, 1
        s_add_u32 s37, s37, {prep.NBUILD}
        s_and_b32 s38, s39, 1
        s_lshl_b32 s89, s39, 2
        s_lshl_b32 s39, s36, 8
        s_add_u32 s89, s89, s39
        s_add_u32 s89, s89, {C_MAT + 8 * prep.NBUILD}""")

        def tn(t0, t1, vL):
            return [f'v_lshrrev_b32 {t0}, 2, {vL}', f'v_lshlrev_b32 {t0}, 13, {t0}', f'v_and_b32 {t1}, 3, {vL}',
                    f'v_lshl_add_u32 {t0}, {t1}, 7, {t0}', 's_lshl_b32 s31, s37, 19', 's_lshl_b32 s32, s9, 17',
                    's_add_u32 s31, s31, s32', 's_lshl_b32 s32, s36, 9', 's_add_u32 s31, s31, s32',
                    's_cmp_ge_u32 s36, 16', f's_cselect_b32 s31, {OOB}, s31']
        tn.rA, tn.rB = 's[40:43]', 's[40:43]'
    else:
        def tn(t0, t1, vL):
            return [f'v_bfe_u32 {t0}, {vL}, 2, 3', f'v_lshlrev_b32 {t0}, 13, {t0}', f'v_and_b32 {t1}, 3, {vL}',
                    f'v_lshl_add_u32 {t0}, {t1}, 7, {t0}', 's_lshl_b32 s31, s11, 19', 's_lshl_b32 s32, s33, 18',
                    's_add_u32 s31, s31, s32', 's_lshl_b32 s32, s9, 16', 's_add_u32 s31, s31, s32', 's_add_u32 s31, s31, s21']
        tn.rA, tn.rB = 's[40:43]', 's[44:47]'
    prep.gemm_half(p, 1, 's[12:15]', 's[16:19]', tn, 2)
    e('buffer_load_dword v253, v252, s[84:87], 0 offen sc1')

    def sig1(n):
        e(f's_waitcnt vmcnt({n})\ns_barrier')
        done_flag(p, 's90', 1)
        if TL_ON[0]:
            e('s_memrealtime s[76:77]')
    if cfg.sb:
        e(claim)
        sig1(1)
        e("""s_cmp_ge_u32 s36, 16
        s_cbranch_scc1 JOB2_SKIP
        s_mov_b32 s10, s36
        s_mov_b32 s11, s37
        s_mov_b32 s33, s38""")
        prep.gemm_half(p, 0, 's[40:43]', 's[44:47]', None, 5)
    else:
        if cfg.dele:
            e("""s_cmp_eq_u32 s94, 0
        s_cbranch_scc1 JOB2_OFF
        s_cmp_eq_u32 s94, 3
        s_cbranch_scc1 JOB2_OFF
        s_cmp_eq_u32 s100, 74
        s_cbranch_scc1 JOB2_OFF
        s_cmp_lg_u32 s100, 77
        s_cbranch_scc1 JOB2
        JOB2_OFF:""")
            e(claim)
            sig1(1)
            e('s_branch JOB2_SKIP\nJOB2:')
        if cfg.isig:
            sig1(0)
        prep.gemm_half(p, 0, 's[40:43]', 's[44:47]', None, 5, None if cfg.isig else sig1, claim)
    e('s_waitcnt vmcnt(0)\ns_barrier')
    done_flag(p, 's89', 1)
    e('JOB2_SKIP:\ns_waitcnt vmcnt(0)')
    if TL_ON[0]:
        e(f's_lshl_b32 s98, s2, 6\ns_add_u32 s98, s98, {WS_TL}\nv_mov_b32 v255, 0\ns_waitcnt lgkmcnt(0)')
        for i in range(2, 7):
            e(f'v_mov_b32 v254, s{68 + 2 * i}\nbuffer_store_dword v254, v255, s[4:7], s98 offen offset:{4 * i}')
    e('s_branch PREP_DONE\nPREP_LN:')
    e('s_mov_b32 s100, s21')
    tl(p, 0, 's100', WS_TL + 16384)
    if cfg.dele:
        e(f"""s_cmp_lt_u32 s21, 16
        s_cbranch_scc1 LN_A
        s_sub_u32 s20, s21, 16
        s_cmp_ge_u32 s20, 7
        s_cselect_b32 s22, {7 * 32 - 3}, 0
        s_lshl_b32 s20, s20, 5
        s_sub_u32 s20, s20, s22
        s_cmp_eq_u32 s21, 30
        s_cselect_b32 s20, 6, s20
        s_cmp_eq_u32 s21, 31
        s_cselect_b32 s20, 102, s20
        s_mul_i32 s10, s20, 4682
        s_lshr_b32 s10, s10, 16
        s_mul_i32 s21, s10, 14
        s_sub_u32 s20, s20, s21
        s_lshr_b32 s11, s20, 1
        s_and_b32 s33, s20, 1
        s_lshl_b32 s89, s10, 8
        s_lshl_b32 s20, s20, 2
        s_add_u32 s89, s89, s20
        s_add_u32 s89, s89, {C_MAT}
        s_mov_b32 s90, {OOB}
        s_branch JOB2
        LN_A:""")
    e(claim)
    if cfg.sb:
        e("""s_cmp_ge_u32 s21, 16
        s_cbranch_scc1 LN_A
        s_mov_b32 s10, s21""")
        prep.qk_build(p, 's[40:43]', 's[44:47]')
        e(f"""buffer_load_dword v253, v252, s[84:87], 0 offen sc1
        s_lshl_b32 s89, s10, 8
        s_add_u32 s89, s89, {C_MAT}
        s_waitcnt vmcnt(0) lgkmcnt(0)
        s_barrier""")
        done_flag(p, 's89', 2 * prep.NBUILD, 2)
        e("""s_branch PREP_DONE
        LN_A:
        s_sub_u32 s21, s21, 16""")
    e(f"""s_lshl_b32 s89, s21, 2
    s_add_u32 s89, s89, {C_LN}
    s_lshl_b32 s10, s21, 2
    s_add_u32 s10, s10, s9
    s_cmp_ge_u32 s21, 16
    s_cselect_b32 s90, 0, 8
    s_cselect_b32 s10, 0, s10
    s_cbranch_scc1 LN_END
    LN_LOOP:""")
    mk = f"""
    v_and_b32 v250, 63, v0
    v_lshlrev_b32 v250, 4, v250
    v_mov_b32 v244, -1
    v_mov_b32 v245, -1
    v_mov_b32 v246, -1
    v_mov_b32 v247, -1
    s_lshl_b32 s20, s10, 12
    s_add_u32 s20, s20, {WS_MEMA}
    """ + '\n'.join(f'buffer_store_dwordx4 v[244:247], v250, s[4:7], s20 offen offset:{1024 * i} sc1' for i in range(4))
    prep.ln_job(p, 'sc1', ([], mk))
    e('LN_END:\nbuffer_load_dword v253, v252, s[84:87], 0 offen sc1\ns_waitcnt vmcnt(0)\ns_barrier')
    done_flag(p, 's89', 's90')
    e('s_cmp_ge_u32 s10, 64\ns_cbranch_scc1 F_CONT')
    e(f"""PREP_DONE:
    v_mov_b32 v4, 0
    s_cmp_lg_u32 s9, 0
    s_cbranch_scc1 EL_WAIT
    v_readfirstlane_b32 s20, v249
    s_and_b32 s20, s20, s93
    s_mov_b32 s21, -1
    s_cbranch_scc0 EL_PUB
    s_lshl_b32 s20, s88, 2
    s_add_u32 s20, s20, 192
    v_mov_b32 v1, 1
    v_mov_b32 v2, s20
    v_mov_b32 v3, 8
    s_mov_b64 exec, 1
    buffer_atomic_add v1, v3, s[84:87], 0 offen
    buffer_atomic_add v1, v2, s[84:87], 0 offen sc0
    s_waitcnt vmcnt(0)
    s_mov_b64 exec, -1
    v_readfirstlane_b32 s94, v1
    v_and_b32 v1, 15, v0
    v_lshlrev_b32 v1, 2, v1
    s_mov_b32 s22, 200000
    EL_SUM:
    buffer_load_dword v3, v1, s[84:87], 0 offen offset:160 sc1
    s_waitcnt vmcnt(0)
    s_mov_b32 s23, 0""")
    for i in range(16):
        e(f'v_readlane_b32 s{24 + i}, v3, {i}')
    for i in range(8):
        e(f's_bcnt1_i32_b32 s20, s{24 + i}\ns_add_u32 s23, s23, s20\ns_add_u32 s23, s23, s{32 + i}')
    e(f"""s_sub_u32 s22, s22, 1
    s_cmp_gt_i32 s22, 0
    s_cbranch_scc0 EL_BAD
    s_cmp_lt_u32 s23, 256
    s_cbranch_scc1 EL_SUM
    v_readlane_b32 s95, v3, s88
    s_mov_b32 s21, 0
    s_bcnt0_i32_b32 s20, s95
    s_cmp_lt_u32 s94, s20
    s_cbranch_scc1 EL_BIT
    v_mov_b32 v1, 1
    v_mov_b32 v2, 4
    s_mov_b64 exec, 1
    buffer_atomic_add v1, v2, s[84:87], 0 offen sc0
    s_waitcnt vmcnt(0)
    s_mov_b64 exec, -1
    v_readfirstlane_b32 s22, v1
    s_mov_b32 s21, 256""")
    for i in range(8):
        e(f"""s_bcnt0_i32_b32 s20, s{24 + i}
        s_min_u32 s23, s20, s{32 + i}
        s_sub_u32 s20, s20, s23
        s_add_u32 s94, s23, s22
        s_mov_b32 s95, s{24 + i}
        s_mov_b32 s88, {i}
        s_cmp_lt_u32 s22, s20
        s_cbranch_scc1 EL_BIT
        s_sub_u32 s22, s22, s20""")
    e(f"""EL_BAD:
    s_mov_b32 s21, -2
    s_branch EL_PUB
    EL_BIT:
    s_ff0_i32_b32 s20, s95
    s_bitset1_b32 s95, s20
    s_sub_u32 s94, s94, 1
    s_cbranch_scc0 EL_BIT
    s_and_b32 s20, s20, 31
    s_add_u32 s21, s21, s20
    s_lshl_b32 s20, s88, 16
    s_add_u32 s21, s21, s20
    EL_PUB:
    v_mov_b32 v1, s21
    ds_write_b32 v4, v1
    s_waitcnt lgkmcnt(0)
    EL_WAIT:
    s_barrier
    ds_read_b32 v1, v4
    s_waitcnt lgkmcnt(0)
    v_readfirstlane_b32 s21, v1
    s_cmp_eq_u32 s21, -1
    s_cbranch_scc1 EL_OK
    s_cmp_eq_u32 s21, -2
    s_cbranch_scc1 EXIT
    s_barrier
    s_bfe_u32 {sSLOW}, s21, 0x10008
    s_bfe_u32 s88, s21, 0x30010
    s_and_b32 s21, s21, 31
    s_mov_b32 s93, 0
    v_mov_b32 v248, {OOB}
    s_branch SLOT
    EL_OK:""")
    tl(p, 1, 's2', WS_TL)
    srd(e, 16, 8, 7168)
    e(f's_mov_b32 {sIDX}, s100\ns_waitcnt lgkmcnt(0)')
    e(f"""s_cmp_ge_u32 {sIDX}, 32
    s_cbranch_scc1 WORKER
    s_and_b32 {sH}, {sIDX}, 15""")
    if cfg.diag:
        for i in range(NSTAMP):
            e(f's_mov_b32 s{STAMP0 + 2 * i}, 0')
    e(f"""s_cmp_ge_u32 {sIDX}, 16
    s_cbranch_scc1 ROLE_VO
    s_barrier""")
    wave_dispatch(e, 'QK')
    e(f"""ROLE_VO:
    s_cmp_ge_u32 {sH}, 14
    s_cbranch_scc1 ROLE_EN""")
    e('s_barrier')
    wave_dispatch(e, 'VO')
    e(f"""ROLE_EN:
    v_lshlrev_b32 v1, 7, v0
    s_and_b32 s20, {sH}, 1
    s_mul_i32 s20, s20, {9 * 32768}
    s_add_u32 s20, s20, {WS_MEMR}""")
    for i in range(9):
        e(f'buffer_load_dword v9, v1, s[4:7], s20 offen sc1\ns_add_u32 s20, s20, 32768')
    e('s_waitcnt vmcnt(0)')
    ready_wait(p, 'ln', 15)
    wave_dispatch(e, 'EN')
    M_ = 7 if cfg.quiet < 0 else 6
    F0 = 48 + 16 * cfg.nrt

    def decode(nr, tag):
        e(f"""s_cmp_ge_u32 s20, {2 * nr * M_}
        s_cbranch_scc1 WK_HI{tag}
        s_cmp_ge_u32 s20, {nr * M_}
        s_cselect_b32 s21, {nr * M_}, 0
        s_cselect_b32 s10, {M_}, 0
        s_sub_u32 s20, s20, s21
        s_mul_i32 s11, s20, {37 if M_ == 7 else 43}
        s_lshr_b32 s11, s11, 8            ; replica
        s_mul_i32 s21, s11, {M_}
        s_sub_u32 s20, s20, s21
        s_add_u32 s10, s10, s20           ; head
        s_branch WK_GO{tag}
        WK_HI{tag}:
        s_sub_u32 s20, s20, {2 * nr * M_}
        s_mul_i32 s10, s20, {86 if nr == 3 else 64}
        s_lshr_b32 s10, s10, 8
        s_mul_i32 s21, s10, {nr}
        s_sub_u32 s11, s20, s21
        s_add_u32 s10, s10, {2 * M_}
        WK_GO{tag}:
        s_lshl_b32 s21, s10, 1""")
    e(f"""WORKER:
    s_sub_u32 s8, s8, 32
    s_cmp_ge_u32 s8, {F0}
    s_cbranch_scc1 ROLE_F
    s_cmp_ge_u32 s8, 48
    s_cbranch_scc1 ROLE_T
    s_mov_b32 s20, s8""")
    decode(3, 'Y')
    e('s_add_u32 s21, s21, 1')
    ready_wait(p, 'one', 15)
    tl(p, 5, 's100', WS_TL + 16384)
    workers.yt_worker(p, 0)
    e('EXIT:\ns_endpgm')
    e('ROLE_T:\ns_sub_u32 s20, s8, 48')
    decode(cfg.nrt, 'T')
    ready_wait(p, 'one')
    workers.yt_worker(p, 1)
    e(f"""ROLE_F:
    s_cmp_ge_u32 s8, {F0 + cfg.nf}
    s_cbranch_scc1 EXIT
    s_cmp_ge_u32 s8, {F0 + 16}
    s_cbranch_scc1 F_CONT
    s_sub_u32 s10, s8, {F0 - 16}
    s_lshl_b32 s89, s10, 2
    s_add_u32 s89, s89, {C_LN}
    s_mov_b32 s90, 8
    s_lshl_b32 s10, s10, 2
    s_add_u32 s10, s10, s9
    s_branch LN_LOOP
    F_CONT:""")
    ready_wait(p, 'ln')
    e(f's_sub_u32 s10, s8, {F0}')
    workers.f_worker(p)
    for role, nm in ((0, 'QK'), (1, 'VO'), (2, 'EN')):
        for w in range(4):
            e(f'{nm}{w}:')
            team_wave(p, role, w, cfg)


def build(cfg):
    TL_ON[0] = bool(cfg.tl)
    workers.MALL[0] = cfg.mall
    YTS[0] = 16384 + cfg.skew
    assert WS_YX + 64 * 28 * YTS[0] <= WS_XNB
    cfg.nf = 192 - 48 - 16 * cfg.nrt
    workers.NF[0] = cfg.nf
    workers.NRT[0] = cfg.nrt
    DBG_TL[0] = [(0, 0, 6), (16, 5, 7), (0, 5, 8), (16, 1, 9), (0, 1, 10), (9, 1, 11), (32, 2, 12), (16, 3, 13), (80, 4, 14), (80 + 16 * cfg.nrt + 7 * (63 % (cfg.nf // 7)), 4, 15)] if cfg.dtl else None
    workers.CHEAP[0] = cfg.cheap
    workers.GOV[:] = [cfg.gostep + 1, cfg.gostep2 + 1]
    workers.OSC[0] = ['', 'sc1', 'nt', 'sc0 sc1'][cfg.osc]
    hdr = open('cdna_kernels/%s.s.ref' % NAME).read().split('; Override launch')[0]
    hdr += '; @launch grid=(256,1,1) block=(256,1,1) lds=%d\n' % max(prep.H_LDS, prep.P_LDS, L_END, MAIN_LDS)
    hdr += '.amdgcn_target "amdgcn-amd-amdhsa--gfx950"\n.text\n'
    out = hdr
    p = Prog()
    main_kernel(p, NAME + '_kernel', cfg)
    out += '.globl %s_kernel\n.p2align 8\n.type %s_kernel,@function\n' % (NAME, NAME) + p.text()
    out += prep.KD % (NAME + '_kernel', 512)
    out = out.replace('\n    ', '\n')
    return out


def parse(args):
    cfg = Cfg()
    cfg.xcc = 3
    cfg.quiet = 6
    cfg.nf = 96
    cfg.nrt = 4
    cfg.tl = 0
    cfg.fb = 0
    cfg.skew = 0
    cfg.cheap = 0
    cfg.hwid = 0
    cfg.etouch = 1
    cfg.isig = 0
    cfg.dtl = 0
    cfg.dele = 0
    cfg.exit0 = 0
    cfg.osc = 0
    cfg.mall = 0
    for a in args:
        k, v = a.split('=')
        assert hasattr(cfg, k), k
        setattr(cfg, k, int(v))
    return cfg


if __name__ == '__main__':
    open(sys.argv[1], 'w').write(build(parse(sys.argv[2:])))
```
